```python
import torch

def _softmax(x, axis=-1):
    return torch.softmax(x, dim=axis)
def _gelu(x):
    return torch.nn.functional.gelu(x, approximate="tanh")
def _silu(x):
    return torch.nn.functional.silu(x)
def _sigmoid(x):
    return torch.sigmoid(x)
def _layernorm(x, axis=-1, eps=1e-5):
    m = x.mean(dim=axis, keepdim=True)
    v = x.var(dim=axis, keepdim=True, unbiased=False)
    return (x - m) / torch.sqrt(v + eps)
def _scatter_add(tgt, idx, src, axis=0):
    return tgt.clone().index_add_(axis, idx, src)
def _segment_sum(src, seg, n):
    out = torch.zeros((n,) + src.shape[1:], dtype=src.dtype)
    return out.index_add_(0, seg, src)
def _pad(x, pw):
    flat = tuple(v for pair in reversed(pw) for v in pair)
    return torch.nn.functional.pad(x, flat)

kernel_name = 'interleave_layers__sliding_block_cached__dense_activation_mish__decode'

def setup_inputs():

    _w = (lambda a: (lambda t: t.to(torch.bfloat16) if t.is_floating_point() else t)(torch.as_tensor(a)))
    def _A_setup():
        B, Sq, D = 1, 1, 512
        Hq, Hkv, Sk, Dh = 32, 8, 65536, 128
        assert Hq % Hkv == 0, (Hq, Hkv)
        return {
            "x": _w((lambda *s: torch.randn(*s, dtype=torch.bfloat16) * 0.05)(B, Sq, D)),
            "k_cache": _w((lambda *s: torch.randn(*s, dtype=torch.bfloat16) * 0.8)(B, Hkv, Sk, Dh)),
            "v_cache": _w((lambda *s: torch.randn(*s, dtype=torch.bfloat16) * 1.6)(B, Hkv, Sk, Dh)),
            "wq": _w((lambda *s: torch.randn(*s, dtype=torch.bfloat16) * 0.8)(D, Hq * Dh) * (D ** -0.5)),
            "wo": _w((lambda *s: torch.randn(*s, dtype=torch.bfloat16) * 1.6)(Hq * Dh, D) * ((Hq * Dh) ** -0.5)),
        }
    _A_in = _A_setup()

    def _B_setup():
        B, S, D, F = 1, 1, 512, 1792
        return {
            "x": _w((lambda *s: torch.randn(*s, dtype=torch.bfloat16) * 0.05)(B, S, D)),
            "w1": _w((lambda *s: torch.randn(*s, dtype=torch.bfloat16) * 1.6)(D, F) * (D ** -0.5)),
            "b1": _w((lambda *s: torch.randn(*s, dtype=torch.bfloat16) * 0.4)(F)),
            "w2": _w((lambda *s: torch.randn(*s, dtype=torch.bfloat16) * 0.2)(F, D) * (F ** -0.5)),
        }
    _B_in = _B_setup()

    return {
        "A_x": _A_in["x"],
        "A_k_cache": _A_in["k_cache"],
        "A_v_cache": _A_in["v_cache"],
        "A_wq": _A_in["wq"],
        "A_wo": _A_in["wo"],
        "B_x": _B_in["x"],
        "B_w1": _B_in["w1"],
        "B_b1": _B_in["b1"],
        "B_w2": _B_in["w2"],
    }

def reference(A_x, A_k_cache, A_v_cache, A_wq, A_wo, B_x, B_w1, B_b1, B_w2):
    def _A_ref(x, k_cache, v_cache, wq, wo):
        B, Sq, D = x.shape
        Hq, Dh = 32, 128
        Hkv, Sk = k_cache.shape[1], k_cache.shape[2]
        W = min(4096, max(256, Sk // 4))
        rep = Hq // Hkv
        q = (lambda x, *d: x.permute(*d))((x @ wq).reshape(B, Sq, Hq, Dh), 0, 2, 1, 3)
        k = (lambda x, n, axis: torch.repeat_interleave(x, n, dim=axis))(k_cache[:, :, Sk - W:, :], rep, axis=1)
        v = (lambda x, n, axis: torch.repeat_interleave(x, n, dim=axis))(v_cache[:, :, Sk - W:, :], rep, axis=1)
        scores = torch.einsum("bhqd,bhkd->bhqk", q, k) * (Dh ** -0.5)
        p = _softmax(scores, axis=-1)
        o = torch.einsum("bhqk,bhkd->bhqd", p, v)
        return (lambda x, *d: x.permute(*d))(o, 0, 2, 1, 3).reshape(B, Sq, Hq * Dh) @ wo

    def _B_ref(x, w1, b1, w2):
        h = torch.einsum("bsd,df->bsf", x, w1) + b1
        sp = torch.log1p(torch.exp(-torch.abs(h))) + torch.where(h > 0, h, torch.zeros_like(h))
        act = h * torch.tanh(sp)
        return torch.einsum("bsf,fd->bsd", act, w2)

    x = A_x
    x = x + _A_ref(_layernorm(x, axis=-1), A_k_cache, A_v_cache, A_wq, A_wo)
    x = x + _B_ref(_layernorm(x, axis=-1), B_w1, B_b1, B_w2)
    x = x + _A_ref(_layernorm(x, axis=-1), A_k_cache, A_v_cache, A_wq, A_wo)
    x = x + _B_ref(_layernorm(x, axis=-1), B_w1, B_b1, B_w2)
    return x
```

```python
import sys, math
PROF = int(sys.argv[2]) if len(sys.argv) > 2 else 0
NAME = "interleave_layers__sliding_block_cached__dense_activation_mish__decode"
out = []
def E(s=""): out.append("    " + s if s and not s.endswith(":") else s)
def L(s): out.append(s + ":")
def vr(a, n=1): return f"v{a}" if n == 1 else f"v[{a}:{a+n-1}]"
def sr(a, n=1): return f"s{a}" if n == 1 else f"s[{a}:{a+n-1}]"

K_LDS, V_LDS, WQ_LDS, WO_LDS, W1_LDS, W2_LDS = 0, 32768, 65536, 81920, 98304, 106496
QS_LDS, PX_LDS, SX_LDS, FL_LDS = 113664, 114688, 118784, 119296
LDS_BYTES = 119808
LS = 0x90000
W_Q, W_O, W_ST, W_ACT = 0, 1024, 2048, 3072
W_Y, W_Z, W_P = 32768, 40960, 65536
WS_USED = 2 * LS
PROF_OFF = 0x200000
WS_REC = PROF_OFF + 256 * 1024

sX, sK, sV, sWQ, sWO, sBX, sW1, sB1 = 8, 10, 12, 14, 16, 18, 20, 22
sW2, sOUT, sDBG, sWS = 24, 26, 28, 30
sG, sJ, sWV = 3, 4, 5
R_WS = 32
R_A = 36
R_B = 40
R_C = 44
sT0, sT1, sT2, sT3 = 48, 49, 50, 51
sLOC, sLAY = 52, 53
sYoff, sZoff, sPoff = 54, 55, 56
sSPIN = 57
sRET = 58
sMA_f, sMA_s = 60, 62
sMB_f, sMB_s = 64, 66
sMC_f, sMC_s = 68, 70
sMD_f, sMD_s = 72, 74
sFFFE = 76
sC1, sC2, sC3 = 77, 78, 79
sS1, sS2, sPIV = 80, 81, 82
sPub16, sPubY, sPubZ, sPubA = 83, 84, 85, 86
sST = 88
sGoff = 90

def srd(r, base, add_lo=None, rec=None):
    if add_lo is None:
        E(f"s_mov_b32 s{r}, s{base}")
        E(f"s_and_b32 s{r+1}, s{base+1}, 0xffff")
    else:
        E(f"s_add_u32 s{r}, s{base}, {add_lo}")
        E(f"s_addc_u32 s{r+1}, s{base+1}, 0")
        E(f"s_and_b32 s{r+1}, s{r+1}, 0xffff")
    E(f"s_mov_b32 s{r+2}, {rec}")
    E(f"s_mov_b32 s{r+3}, 0x00020000")

stamp_n = [0]
V_STAMP = 250
def stamp(idx, layer_dep=False):
    if not PROF: return
    E(f"s_memrealtime s[{sST}:{sST+1}]")
    E("s_waitcnt lgkmcnt(0)")
    if layer_dep:
        E(f"s_lshl_b32 s{sT3}, s{sLAY}, 4")
        E(f"s_add_u32 s{sT3}, s{sT3}, {idx}")
        E(f"s_mov_b32 m0, s{sT3}")
        E("s_nop 0")
        E(f"v_writelane_b32 v{V_STAMP}, s{sST}, m0")
    else:
        E(f"v_writelane_b32 v{V_STAMP}, s{sST}, {idx}")
def stamp_flush(slot):
    if not PROF: return
    E("s_mov_b64 exec, -1")
    E(f"s_lshl_b32 s{sT0}, s2, 10")
    E(f"s_add_u32 s{sT0}, s{sT0}, {PROF_OFF + slot*256}")
    E(f"v_lshlrev_b32 v{V_STAMP-1}, 2, v1")
    E(f"buffer_store_dword v{V_STAMP}, v{V_STAMP-1}, s[{R_WS}:{R_WS+3}], s{sT0} offen")

def spin_check(fail_label):
    E(f"s_sub_u32 s{sSPIN}, s{sSPIN}, 1")
    E(f"s_cbranch_scc1 L_exit")
    E(f"s_branch {fail_label}")

def chk_bf16(v, t):
    E(f"v_pk_max_u16 v{t}, v{v}, v{v+1}")
    E(f"v_pk_max_u16 v{t+1}, v{v+2}, v{v+3}")
    E(f"v_pk_max_u16 v{t}, v{t}, v{t+1}")
    E(f"v_pk_max_u16 v{t}, v{t}, v{t} op_sel:[0,1] op_sel_hi:[1,0]")
    E(f"v_cmp_eq_u32 vcc, -1, v{t}")

def pub2(op, data, addr, soff, mf, ms, imm=0):
    o = f" offset:{imm}" if imm else ""
    E(f"s_mov_b64 exec, s[{mf}:{mf+1}]")
    E(f"{op} {data}, v{addr}, s[{R_WS}:{R_WS+3}], s{soff} offen{o}")
    E(f"s_mov_b64 exec, s[{ms}:{ms+1}]")
    E(f"{op} {data}, v{addr}, s[{R_WS}:{R_WS+3}], s{soff} offen{o} sc1")
    E("s_mov_b64 exec, -1")

def masks(mf, ms, lo, hi, smode):
    E(f"s_cselect_b32 s{mf}, {lo}, 0")
    E(f"s_cselect_b32 s{mf+1}, {hi}, 0")
    E(f"s_cselect_b32 s{ms}, 0, {lo}")
    E(f"s_cselect_b32 s{ms+1}, 0, {hi}")

hdr = open("cdna_kernels/" + NAME + ".s.ref").read().split("; Override")[0]
out.append(hdr.rstrip("\n"))
out.append(f"; @launch grid=(256,1,1) block=(384,1,1) lds={LDS_BYTES}")
out.append('.amdgcn_target "amdgcn-amd-amdhsa--gfx950"')
out.append(".text")
out.append(f".globl {NAME}_kernel")
out.append(".p2align 8")
out.append(f".type {NAME}_kernel,@function")
L(f"{NAME}_kernel")
E("s_cmp_ge_u32 s2, 256")
E("s_cbranch_scc1 L_exit")
E("s_load_dwordx16 s[8:23], s[0:1], 0")
E("s_load_dwordx8 s[24:31], s[0:1], 64")
if PROF:
    E(f"v_mov_b32 v{V_STAMP}, 0")
    E(f"s_memrealtime s[{sST}:{sST+1}]")
E("v_lshrrev_b32 v1, 6, v0")
E(f"s_and_b32 s{sG}, s2, 7")
E(f"v_readfirstlane_b32 s{sWV}, v1")
E(f"s_lshr_b32 s{sJ}, s2, 3")
E("v_and_b32 v1, 63, v0")
E("v_and_b32 v2, 15, v0")
E("v_lshrrev_b32 v3, 4, v1")
E(f"s_mov_b32 s{sSPIN}, 0x400000")
E(f"s_mov_b32 s{sLAY}, 0")
E(f"s_lshl_b32 s{sLOC}, s{sG}, 12")
E(f"s_lshl_b32 s{sPoff}, s{sG}, 16")
E(f"s_add_u32 s{sPoff}, s{sPoff}, {W_P}")
E("s_waitcnt lgkmcnt(0)")
if PROF: E(f"v_writelane_b32 v{V_STAMP}, s{sST}, 60")
srd(R_WS, sWS, None, WS_REC if PROF else WS_USED)
E(f"s_cmp_eq_u32 s{sWV}, 4")
E("s_cbranch_scc1 L_S_init")
E(f"s_cmp_eq_u32 s{sWV}, 5")
E("s_cbranch_scc1 L_L_init")

E(f"s_lshl_b32 s{sT0}, s{sG}, 24")
E(f"s_lshl_b32 s{sT1}, s{sJ}, 15")
E(f"s_add_u32 s{sT0}, s{sT0}, s{sT1}")
E(f"s_add_u32 s{sT0}, s{sT0}, {61440*256}")
srd(R_A, sK, f"s{sT0}", 32768)
srd(R_B, sV, f"s{sT0}", 32768)
E("v_xor_b32 v4, v2, v3")
E("v_lshlrev_b32 v4, 4, v4")
E("v_lshl_add_u32 v4, v3, 8, v4")
E("v_xor_b32 v5, 64, v4")
E("v_xor_b32 v6, 0x80, v4")
E("v_xor_b32 v7, 0xc0, v4")
E(f"s_lshl_b32 s{sT0}, s{sWV}, 13")
E(f"s_mov_b32 m0, s{sT0}")
E(f"s_add_u32 s{sT1}, s{sT0}, 4096")
for i in range(4):
    E(f"buffer_load_dwordx4 v{4+i}, s[{R_A}:{R_A+3}], s{sT0} offen offset:{1024*i} lds")
E(f"s_mov_b32 m0, s{sT1}")
E("v_and_b32 v8, 1, v3")
for i in range(4):
    E(f"buffer_load_dwordx4 v{4+i}, s[{R_A}:{R_A+3}], s{sT1} offen offset:{1024*i} lds")
E("v_lshlrev_b32 v8, 1, v8")
E("v_and_b32 v9, 3, v1")
E("v_xor_b32 v8, v8, v9")
E("v_lshlrev_b32 v8, 4, v8")
E("v_lshrrev_b32 v9, 2, v1")
E("v_lshl_add_u32 v8, v9, 8, v8")
E(f"s_lshl_b32 s{sT2}, s{sWV}, 6")
E(f"v_add_u32 v8, s{sT2}, v8")
E(f"s_add_u32 m0, s{sT0}, {V_LDS}")
E(f"s_mov_b32 s{sT1}, 0")
for i in range(8):
    E(f"buffer_load_dwordx4 v8, s[{R_B}:{R_B+3}], s{sT1} offen lds")
    if i < 7:
        E("s_add_u32 m0, m0, 1024")
        E(f"s_add_u32 s{sT1}, s{sT1}, 4096")
E("s_branch L_A_main")

L("L_S_init")
E(f"s_lshl_b32 s{sT0}, s{sG}, 10")
E(f"s_lshl_b32 s{sT1}, s{sJ}, 5")
E(f"s_add_u32 s{sT0}, s{sT0}, s{sT1}")
E(f"s_sub_u32 s{sT2}, {4194304}, s{sT0}")
srd(R_A, sWQ, f"s{sT0}", f"s{sT2}")
E("v_lshrrev_b32 v4, 1, v1")
E("v_and_b32 v5, 1, v1")
E("v_lshlrev_b32 v4, 13, v4")
E("v_lshl_add_u32 v4, v5, 4, v4")
E(f"s_mov_b32 m0, {WQ_LDS}")
E(f"s_mov_b32 s{sT1}, 0")
for i in range(16):
    E(f"buffer_load_dwordx4 v4, s[{R_A}:{R_A+3}], s{sT1} offen lds")
    if i < 15:
        E("s_add_u32 m0, m0, 1024")
        E(f"s_add_u32 s{sT1}, s{sT1}, 262144")
E("s_branch L_S_main")

L("L_L_init")
E("v_mov_b32 v8, -1"); E("v_mov_b32 v9, -1"); E("v_mov_b32 v10, -1"); E("v_mov_b32 v11, -1")
E("v_lshlrev_b32 v4, 4, v1")
E(f"s_lshl_b32 s{sT0}, s{sJ}, 11")
E(f"s_add_u32 s{sT0}, s{sT0}, s{sPoff}")
E(f"s_add_u32 s{sT1}, s{sT0}, {LS}")
for so in (sT0, sT1):
    for o in (0, 1024):
        E(f"buffer_store_dwordx4 v[8:11], v4, s[{R_WS}:{R_WS+3}], s{so} offen offset:{o} sc1")
E(f"s_mov_b32 s{sT2}, {LS}")
E(f"v_mul_lo_u32 v5, v3, s{sT2}")
E("v_lshl_add_u32 v5, v2, 4, v5")
E(f"s_mul_i32 s{sT2}, s2, 192")
E("s_mov_b64 exec, 0x0fff0fff")
E(f"buffer_store_dwordx4 v[8:11], v5, s[{R_WS}:{R_WS+3}], s{sT2} offen sc1")
E("s_mov_b64 exec, -1")
srd(R_A, sDBG, None, 256)
E(f"s_getreg_b32 s{sT2}, hwreg(HW_REG_XCC_ID, 0, 4)")
E(f"s_mul_i32 s{sT3}, s{sT2}, s{sT2}")
E(f"s_lshl_b32 s{sT3}, s{sT3}, 18")
E(f"s_lshl_b32 s{sT2}, s{sT2}, 8")
E(f"s_add_u32 s{sT2}, s{sT2}, s{sT3}")
E(f"s_add_u32 s{sT2}, s{sT2}, 1")
E(f"v_mov_b32 v6, s{sT2}")
E(f"s_lshl_b32 s{sT3}, s{sG}, 5")
E(f"v_mov_b32 v7, s{sT3}")
E(f"s_lshl_b32 s{sT2}, s{sT2}, 5")
E("v_lshlrev_b32 v12, 7, v2")
E("v_and_b32 v13, 1, v3")
E(f"s_mov_b32 s{sC1}, {LS}")
E(f"v_mul_lo_u32 v13, v13, s{sC1}")
E(f"v_add3_u32 v12, v12, v13, s{sT0}")
E("v_and_b32 v13, 1, v1")
E(f"v_mul_lo_u32 v13, v13, s{sC1}")
E(f"s_lshl_b32 s{sC2}, s{sJ}, 7")
E(f"s_add_u32 s{sC2}, s{sC2}, s{sLOC}")
E(f"v_add_u32 v13, s{sC2}, v13")
E("v_cmp_gt_u32 vcc, 32, v1")
E("s_nop 1")
E("v_cndmask_b32 v12, v13, v12, vcc")
E("v_lshlrev_b32 v14, 5, v1")
E("v_mov_b32 v15, 0")
E(f"v_mov_b32 v16, {FL_LDS}")
E("ds_write_b32 v16, v15 offset:4")
E("ds_write_b32 v16, v15 offset:8")
E("s_waitcnt vmcnt(0)")
stamp(1)
E("s_mov_b64 exec, 1")
E(f"buffer_atomic_add v6, v7, s[{R_A}:{R_A+3}], 0 offen sc1")
E("s_waitcnt vmcnt(0)")
stamp(2)
E("s_mov_b64 exec, 0xff")
L("L_L_poll")
E(f"buffer_load_dword v17, v14, s[{R_A}:{R_A+3}], 0 offen sc1")
E("s_waitcnt vmcnt(0)")
E("v_and_b32 v18, 0xff, v17")
E("v_cmp_ne_u32 vcc, 32, v18")
E("s_cbranch_vccz L_L_ok")
E("s_sleep 4")
spin_check("L_L_poll")
L("L_L_ok")
E(f"v_readlane_b32 s{sT3}, v17, s{sG}")
E("s_mov_b32 exec_lo, -1")
E("s_mov_b32 exec_hi, 3")
E(f"buffer_load_dword v19, v12, s[{R_WS}:{R_WS+3}], 0 offen sc1")
E("s_mov_b64 exec, -1")
E(f"s_cmp_eq_u32 s{sT3}, s{sT2}")
E(f"s_cselect_b32 s{sT3}, 1, 0")
E(f"v_mov_b32 v15, s{sT3}")
E("ds_write_b32 v16, v15")
stamp(3)
E(f"s_lshl_b32 s{sT0}, s{sG}, 19")
E(f"s_lshl_b32 s{sT1}, s{sJ}, 5")
E(f"s_add_u32 s{sT0}, s{sT0}, s{sT1}")
E(f"s_sub_u32 s{sT2}, {4194304}, s{sT0}")
srd(R_A, sWO, f"s{sT0}", f"s{sT2}")
E(f"s_min_u32 s{sT3}, s{sJ}, 27")
E(f"s_mul_i32 s{sT0}, s{sG}, 448")
E(f"s_lshl_b32 s{sT3}, s{sT3}, 4")
E(f"s_add_u32 s{sT0}, s{sT0}, s{sT3}")
E(f"s_sub_u32 s{sT2}, {1835008}, s{sT0}")
srd(R_B, sW1, f"s{sT0}", f"s{sT2}")
E(f"s_mul_i32 s{sT0}, s{sG}, {224*1024}")
E(f"s_add_u32 s{sT0}, s{sT0}, s{sT1}")
E(f"s_sub_u32 s{sT2}, {1835008}, s{sT0}")
srd(R_C, sW2, f"s{sT0}", f"s{sT2}")
E("v_lshrrev_b32 v4, 1, v1")
E("v_and_b32 v5, 1, v1")
E("v_lshlrev_b32 v4, 10, v4")
E("v_lshl_add_u32 v4, v5, 4, v4")
E("v_mul_u32_u24 v5, 3584, v1")
E("s_waitcnt lgkmcnt(0)")
E("s_barrier")
E("s_barrier")
E(f"s_mov_b32 m0, {WO_LDS}")
E(f"s_mov_b32 s{sT1}, 0")
for i in range(16):
    E(f"buffer_load_dwordx4 v4, s[{R_A}:{R_A+3}], s{sT1} offen lds")
    E("s_add_u32 m0, m0, 1024")
    if i < 15: E(f"s_add_u32 s{sT1}, s{sT1}, 32768")
E(f"s_mov_b32 s{sT1}, 0")
for i in range(8):
    E(f"buffer_load_dwordx4 v5, s[{R_B}:{R_B+3}], s{sT1} offen lds")
    E("s_add_u32 m0, m0, 1024")
    if i < 7: E(f"s_add_u32 s{sT1}, s{sT1}, 229376")
E(f"s_mov_b32 s{sT1}, 0")
for i in range(7):
    E(f"buffer_load_dwordx4 v4, s[{R_C}:{R_C+3}], s{sT1} offen lds")
    if i < 6:
        E("s_add_u32 m0, m0, 1024")
        E(f"s_add_u32 s{sT1}, s{sT1}, 32768")
srd(R_A, sOUT, None, 1024)
E("v_mov_b32 v15, 1")
E("v_mov_b32 v20, 0")
E(f"buffer_load_dword v19, v20, s[{R_A}:{R_A+3}], 0 offen")
stamp(4)
E("s_barrier")
E("s_waitcnt vmcnt(16)")
E("ds_write_b32 v16, v15 offset:4")
stamp(5)
E("s_waitcnt vmcnt(1)")
E("ds_write_b32 v16, v15 offset:8")
stamp(6)
E("s_waitcnt lgkmcnt(0)")
stamp_flush(1)
E("s_endpgm")

KF, VF, QF, SC, PB, PF, STT, OD, OUTV = 16, 48, 80, 96, 104, 108, 124, 132, 164
T = 172
L("L_A_main")
E("v_xor_b32 v4, v2, v3")
E("v_lshlrev_b32 v4, 4, v4")
E("v_lshl_add_u32 v4, v2, 8, v4")
E(f"v_add_u32 v4, s{sT0}, v4")
E("v_xor_b32 v5, 64, v4")
E("v_xor_b32 v6, 0x80, v4")
E("v_xor_b32 v7, 0xc0, v4")
E("v_and_b32 v15, 3, v2")
E("v_lshlrev_b32 v8, 8, v15")
E("v_lshl_add_u32 v8, v3, 4, v8")
E(f"v_add_u32 v8, {QS_LDS}, v8")
E("v_lshlrev_b32 v10, 4, v1")
E(f"v_add_u32 v10, {PX_LDS}, v10")
E(f"s_lshl_b32 s{sT1}, s{sWV}, 10")
E(f"v_add_u32 v9, s{sT1}, v10")
E("v_lshlrev_b32 v12, 5, v2")
E(f"v_add_u32 v12, {SX_LDS}, v12")
E(f"s_lshl_b32 s{sT1}, s{sWV}, 3")
E(f"v_add_u32 v11, s{sT1}, v12")
E("v_lshlrev_b32 v13, 14, v15")
E("v_lshl_add_u32 v13, v3, 4, v13")
E(f"s_lshl_b32 s{sT1}, s{sWV}, 12")
E(f"v_add_u32 v13, s{sT1}, v13")
E(f"s_lshl_b32 s{sT1}, s{sWV}, 8")
E(f"v_mov_b32 v14, s{sT1}")
E(f"v_lshrrev_b32 v{T}, 2, v2")
E(f"v_lshl_add_u32 v{T}, v3, 2, v{T}")
E(f"v_lshlrev_b32 v{T}, 6, v{T}")
E(f"v_lshl_add_u32 v{T}, v15, 3, v{T}")
E(f"v_and_b32 v{T+1}, 1, v3")
E(f"v_lshl_add_u32 v{T}, v{T+1}, 5, v{T}")
E(f"s_add_u32 s{sT1}, s{sT0}, {V_LDS}")
E(f"v_add_u32 v{T}, s{sT1}, v{T}")
E(f"v_xor_b32 v{T+1}, 32, v{T}")
E(f"s_lshl_b32 s{sT1}, s{sJ}, 6")
E(f"s_add_u32 s{sPoff}, s{sPoff}, s{sT1}")
E(f"s_and_b32 s{sT1}, s{sJ}, 15")
E(f"s_lshl_b32 s{sT1}, s{sT1}, 4")
E(f"s_lshr_b32 s{sT2}, s{sJ}, 4")
E(f"s_lshl_b32 s{sT2}, s{sT2}, 3")
E(f"s_add_u32 s{sT1}, s{sT1}, s{sT2}")
E(f"s_add_u32 s{sT1}, s{sT1}, {W_ST}")
E(f"s_add_u32 s{sLOC}, s{sLOC}, s{sT1}")
E(f"s_mov_b32 s{sC1}, {hex(int.from_bytes(__import__('struct').pack('<f', (128**-0.5)*math.log2(math.e)), 'little'))}")
E(f"v_mov_b32 v{T+2}, {FL_LDS}")
E("s_barrier")
E(f"ds_read_b32 v{T+3}, v{T+2}")
E("s_waitcnt vmcnt(8)")
stamp(1)
for e in range(2):
    for s in range(4):
        E(f"ds_read_b128 {vr(KF+(e*4+s)*4,4)}, v{4+s} offset:{4096*e}")
E("s_waitcnt lgkmcnt(0)")
E(f"v_readfirstlane_b32 s{sT1}, v{T+3}")
E(f"s_lshl_b32 s{sT2}, 1, s{sWV}")
E("s_nop 2")
E(f"s_cmp_eq_u32 s{sT1}, 1")
masks(sMA_f, sMA_s, "0x000f000f", "0x000f000f", None)
E(f"s_cselect_b32 s{sMB_f}, s{sT2}, 0")
E(f"s_mov_b32 s{sMB_f+1}, 0")
E(f"s_cselect_b32 s{sMB_s}, 0, s{sT2}")
E(f"s_mov_b32 s{sMB_s+1}, 0")
L("L_A_loop")
E("s_barrier")
for s in range(4):
    E(f"ds_read_b128 {vr(QF+4*s,4)}, v8 offset:{64*s}")
stamp(2, True)
for s in range(4):
    E(f"s_waitcnt lgkmcnt({3-s})")
    for e in range(2):
        c = "0" if s == 0 else vr(SC+4*e,4)
        E(f"v_mfma_f32_16x16x32_bf16 {vr(SC+4*e,4)}, {vr(KF+(e*4+s)*4,4)}, {vr(QF+4*s,4)}, {c}")
E("s_nop 6")
E(f"v_max3_f32 v{T+4}, v{SC}, v{SC+1}, v{SC+2}")
E(f"v_max3_f32 v{T+4}, v{T+4}, v{SC+3}, v{SC+4}")
E(f"v_max3_f32 v{T+4}, v{T+4}, v{SC+5}, v{SC+6}")
E(f"v_max_f32 v{T+4}, v{T+4}, v{SC+7}")
E(f"v_mov_b32 v{T+5}, v{T+4}")
E("s_nop 1")
E(f"v_permlane16_swap_b32 v{T+4}, v{T+5}")
E(f"v_max_f32 v{T+4}, v{T+4}, v{T+5}")
E(f"v_mov_b32 v{T+5}, v{T+4}")
E("s_nop 1")
E(f"v_permlane32_swap_b32 v{T+4}, v{T+5}")
E(f"v_max_f32 v{T+4}, v{T+4}, v{T+5}")
E(f"v_mul_f32 v{T+6}, s{sC1}, v{T+4}")
for i in range(8):
    E(f"v_fma_f32 v{SC+i}, v{SC+i}, s{sC1}, -v{T+6}")
for i in range(8):
    E(f"v_exp_f32 v{SC+i}, v{SC+i}")
E("s_nop 0")
for i in range(4):
    E(f"v_cvt_pk_bf16_f32 v{PB+i}, v{SC+2*i}, v{SC+2*i+1}")
E(f"ds_write_b128 v9, {vr(PB,4)}")
E(f"v_add_f32 v{T+7}, v{SC}, v{SC+1}")
E(f"v_add_f32 v{T+5}, v{SC+2}, v{SC+3}")
E(f"v_add_f32 v{T+8}, v{SC+4}, v{SC+5}")
E(f"v_add_f32 v{T+9}, v{SC+6}, v{SC+7}")
E(f"v_add_f32 v{T+7}, v{T+7}, v{T+5}")
E(f"v_add_f32 v{T+8}, v{T+8}, v{T+9}")
E(f"v_add_f32 v{T+7}, v{T+7}, v{T+8}")
E(f"v_mov_b32 v{T+5}, v{T+7}")
E("s_nop 1")
E(f"v_permlane16_swap_b32 v{T+7}, v{T+5}")
E(f"v_add_f32 v{T+7}, v{T+7}, v{T+5}")
E(f"v_mov_b32 v{T+5}, v{T+7}")
E("s_nop 1")
E(f"v_permlane32_swap_b32 v{T+7}, v{T+5}")
E(f"v_add_f32 v{T+7}, v{T+7}, v{T+5}")
E(f"ds_write_b64 v11, {vr(T+6,2)}")
E("s_waitcnt lgkmcnt(0)")
E("s_barrier")
for b in range(4):
    E(f"ds_read_b128 {vr(PF+4*b,4)}, v10 offset:{1024*b}")
E(f"ds_read_b128 {vr(STT,4)}, v12")
E(f"ds_read_b128 {vr(STT+4,4)}, v12 offset:16")
stamp(3, True)
E(f"s_cmp_lg_u32 s{sLAY}, 0")
E("s_cbranch_scc1 L_A_havev")
E("s_waitcnt vmcnt(0)")
stamp(4, True)
for tp in range(2):
    for b in range(4):
        for e in range(2):
            E(f"ds_read_b64_tr_b16 {vr(VF+(tp*4+b)*4+2*e,2)}, v{T+tp} offset:{(32*b+16*e)*64}")
L("L_A_havev")
E("s_waitcnt lgkmcnt(0)")
F = T + 8
assert F % 2 == 0
mf = []
for tp in range(2):
    for b in range(4):
        mf.append(f"v_mfma_f32_16x16x32_bf16 {vr(OD+(tp*4+b)*4,4)}, {vr(VF+(tp*4+b)*4,4)}, {vr(PF+4*b,4)}, 0")
va = [
 f"v_max3_f32 v{T+4}, v{STT}, v{STT+2}, v{STT+4}",
 f"v_max_f32 v{T+6}, v{T+4}, v{STT+6}",
 f"v_sub_f32 v{F}, v{STT}, v{T+6}",
 f"v_sub_f32 v{F+2}, v{STT+2}, v{T+6}",
 f"v_sub_f32 v{F+4}, v{STT+4}, v{T+6}",
 f"v_sub_f32 v{F+6}, v{STT+6}, v{T+6}",
 f"v_exp_f32 v{F}, v{F}",
 f"v_exp_f32 v{F+2}, v{F+2}",
 f"v_exp_f32 v{F+4}, v{F+4}",
 f"v_exp_f32 v{F+6}, v{F+6}",
 f"v_mul_f32 v{T+7}, v{F}, v{STT+1}",
 f"v_fmac_f32 v{T+7}, v{F+2}, v{STT+3}",
 f"v_fmac_f32 v{T+7}, v{F+4}, v{STT+5}",
 f"v_fmac_f32 v{T+7}, v{F+6}, v{STT+7}",
]
k = 0
for i in range(8):
    E(mf[i])
    for _ in range(2):
        if k < len(va): E(va[k]); k += 1
def comb(tp):
    for h in range(2):
        E(f"v_pk_mul_f32 {vr(OUTV+4*tp+2*h,2)}, {vr(OD+(tp*4)*4+2*h,2)}, {vr(F,2)} op_sel_hi:[1,0]")
    for b in range(1, 4):
        for h in range(2):
            E(f"v_pk_fma_f32 {vr(OUTV+4*tp+2*h,2)}, {vr(OD+(tp*4+b)*4+2*h,2)}, {vr(F+2*b,2)}, {vr(OUTV+4*tp+2*h,2)} op_sel_hi:[1,0,1]")
comb(0)
pub2("buffer_store_dwordx4", vr(OUTV,4), 13, sPoff, sMA_f, sMA_s)
comb(1)
pub2("buffer_store_dwordx4", vr(OUTV+4,4), 13, sPoff, sMA_f, sMA_s, 2048)
pub2("buffer_store_dwordx2", vr(T+6,2), 14, sLOC, sMB_f, sMB_s)
stamp(5, True)
E(f"s_add_u32 s{sPoff}, s{sPoff}, {LS}")
E(f"s_add_u32 s{sLOC}, s{sLOC}, {LS}")
E(f"s_add_u32 s{sLAY}, s{sLAY}, 1")
E(f"s_cmp_lt_u32 s{sLAY}, 2")
E("s_cbranch_scc1 L_A_loop")
if PROF:
    E(f"s_cmp_lg_u32 s{sWV}, 0")
    E("s_cbranch_scc1 L_exit")
    stamp_flush(2)
E("s_endpgm")

vL16, aXIO, aTX, aT1, aTO, aT2, aACT, aST, aP16, aPO, aPY, vONE = 4, 5, 6, 7, 8, 9, 10, 11, 12, 13, 14, 15
SEL0, SEL1, ONESB, XR, XN, XB, vT = 16, 20, 24, 28, 36, 44, 48
TT = 49
vB1 = 63
GB, WF, ACC, CS, W2F = 64, 96, 160, 224, 228

L("L_S_main")
if PROF: E("v_mov_b32 v62, v250")
V_STAMP = 62
srd(R_B, sX, None, 1024)
E(f"v_lshrrev_b32 v{TT}, 1, v3")
E(f"v_and_b32 v{TT+1}, 1, v3")
E(f"v_lshlrev_b32 v{aXIO}, 8, v{TT}")
E(f"v_lshl_add_u32 v{aXIO}, v2, 4, v{aXIO}")
E(f"v_lshl_add_u32 v{aXIO}, v{TT+1}, 3, v{aXIO}")
E(f"buffer_load_dwordx2 {vr(XB,2)}, v{aXIO}, s[{R_B}:{R_B+3}], 0 offen")
E(f"buffer_load_dwordx2 {vr(XB+2,2)}, v{aXIO}, s[{R_B}:{R_B+3}], 0 offen offset:512")
E(f"s_min_u32 s{sT3}, s{sJ}, 27")
E(f"s_mul_i32 s{sT0}, s{sG}, 448")
E(f"s_lshl_b32 s{sT3}, s{sT3}, 4")
E(f"s_add_u32 s{sT0}, s{sT0}, s{sT3}")
srd(R_C, sB1, None, 3584)
E(f"v_and_b32 v{TT+2}, 7, v2")
E(f"v_lshlrev_b32 v{TT+2}, 1, v{TT+2}")
E(f"buffer_load_ushort v{vB1}, v{TT+2}, s[{R_C}:{R_C+3}], s{sT0} offen")
E(f"v_lshlrev_b32 v{vL16}, 4, v1")
E(f"v_lshrrev_b32 v{TT+2}, 2, v2")
E(f"v_and_b32 v{TT+3}, 3, v2")
E(f"v_lshl_add_u32 v{TT+4}, v{TT}, 7, v{TT+2}")
E(f"v_lshl_add_u32 v{TT+4}, v{TT+1}, 2, v{TT+4}")
E(f"v_lshlrev_b32 v{aTX}, 5, v{TT+4}")
E(f"v_lshl_add_u32 v{aTX}, v{TT+3}, 3, v{aTX}")
E(f"v_add_u32 v{aTX}, {WQ_LDS}, v{aTX}")
E(f"v_and_b32 v{TT+5}, 1, v2")
E(f"v_lshlrev_b32 v{aT1}, 4, v{TT+4}")
E(f"v_lshl_add_u32 v{aT1}, v{TT+5}, 3, v{aT1}")
E(f"v_add_u32 v{aT1}, {W1_LDS}, v{aT1}")
E(f"v_lshl_add_u32 v{aTO}, v3, 7, v{TT+2}")
E(f"v_lshlrev_b32 v{aTO}, 5, v{aTO}")
E(f"v_lshl_add_u32 v{aTO}, v{TT+3}, 3, v{aTO}")
E(f"v_add_u32 v{aTO}, {WO_LDS}, v{aTO}")
E(f"v_lshl_add_u32 v{aT2}, v3, 3, v{TT+2}")
E(f"v_lshlrev_b32 v{aT2}, 5, v{aT2}")
E(f"v_lshl_add_u32 v{aT2}, v{TT+3}, 3, v{aT2}")
E(f"v_add_u32 v{aT2}, {W2_LDS}, v{aT2}")
E(f"v_min_u32 v{aACT}, 6, v2")
E(f"v_lshlrev_b32 v{aACT}, 6, v{aACT}")
E(f"v_lshl_add_u32 v{aACT}, v3, 4, v{aACT}")
E(f"v_lshrrev_b32 v{aST}, 2, v1")
E(f"v_lshlrev_b32 v{aST}, 4, v{aST}")
E(f"v_lshlrev_b32 v{aP16}, 1, v2")
E(f"v_lshl_add_u32 v{aPO}, v{TT+3}, 2, v3")
E(f"v_lshlrev_b32 v{aPO}, 1, v{aPO}")
E(f"v_lshrrev_b32 v{aPY}, 5, v1")
E(f"v_lshlrev_b32 v{aPY}, 4, v{aPY}")
E(f"v_mov_b32 v{vONE}, 1.0")
for d in range(4): E(f"v_mov_b32 v{ONESB+d}, 0x3f803f80")
E(f"v_lshlrev_b32 v{TT+5}, 4, v{TT+5}")
E(f"v_mov_b32 v{TT+6}, 0x3f80")
E(f"v_lshlrev_b32 v{TT+6}, v{TT+5}, v{TT+6}")
E(f"v_lshrrev_b32 v{TT+7}, 3, v2")
E(f"v_cmp_eq_u32 vcc, v{TT+7}, v{TT+1}")
E("s_nop 1")
E(f"v_cndmask_b32 v{TT+6}, 0, v{TT+6}, vcc")
E(f"v_bfe_u32 v{TT+7}, v2, 1, 2")
E(f"v_lshl_add_u32 v{TT+7}, v{TT}, 2, v{TT+7}")
for d in range(8):
    E(f"v_cmp_eq_u32 vcc, {d}, v{TT+7}")
    E("s_nop 1")
    E(f"v_cndmask_b32 v{SEL0+d}, 0, v{TT+6}, vcc")
E(f"s_mov_b32 s{sFFFE}, 0xfffefffe")
E(f"s_mov_b32 s{sC1}, 0x3b000000")
E(f"s_mov_b32 s{sC2}, 0x3727c5ac")
E(f"s_mov_b32 s{sC3}, 0xbfb8aa3b")
E(f"s_lshl_b32 s{sT1}, s{sJ}, 5")
E(f"s_add_u32 s{sPub16}, s{sLOC}, s{sT1}")
E(f"s_lshl_b32 s{sT2}, s{sJ}, 4")
E(f"s_add_u32 s{sPubA}, s{sLOC}, s{sT2}")
E(f"s_lshl_b32 s{sT2}, s{sG}, 10")
E(f"s_add_u32 s{sT2}, s{sT2}, s{sT1}")
E(f"s_add_u32 s{sPubY}, s{sT2}, {W_Y}")
E(f"s_add_u32 s{sPubZ}, s{sT2}, {W_Z}")
E(f"s_mov_b32 s{sYoff}, {W_Y}")
E(f"s_mov_b32 s{sZoff}, {W_Z - LS + (1<<32)}")
E(f"s_lshl_b32 s{sT2}, s{sJ}, 11")
E(f"s_add_u32 s{sPoff}, s{sPoff}, s{sT2}")
E(f"s_lshr_b32 s{sT2}, s{sJ}, 3")
E(f"s_lshl_b32 s{sT2}, s{sT2}, 8")
E(f"s_add_u32 s{sGoff}, s{sLOC}, s{sT2}")
E(f"v_mov_b32 v60, {FL_LDS}")

def frags_X(addr, rowbytes):
    for s in range(16):
        for e in range(2):
            E(f"ds_read_b64_tr_b16 {vr(WF+4*s+2*e,2)}, v{addr} offset:{(256*e+8*s)*rowbytes}")
def colsum():
    for s in range(16):
        E(f"s_waitcnt lgkmcnt({min(15, 30-2*s)})")
        c = "0" if s == 0 else vr(CS,4)
        E(f"v_mfma_f32_16x16x32_bf16 {vr(CS,4)}, {vr(ONESB,4)}, {vr(WF+4*s,4)}, {c}")

def gather_X(tag, soff):
    E(f"s_add_u32 s{sT0}, s{soff}, 4096")
    E(f"s_getpc_b64 s[{sRET}:{sRET+1}]")
    L(f"L_{tag}_pc")
    E(f"s_add_u32 s{sRET}, s{sRET}, L_{tag}_c0-L_{tag}_pc")
    E(f"s_addc_u32 s{sRET+1}, s{sRET+1}, 0")
    for i in range(8):
        L(f"L_{tag}_ld{i}")
        so = soff if i < 4 else sT0
        E(f"buffer_load_dwordx4 {vr(GB+4*i,4)}, v{vL16}, s[{R_WS}:{R_WS+3}], s{so} offen offset:{1024*(i%4)} sc1")
    E(f"s_setpc_b64 s[{sRET}:{sRET+1}]")
    for i in range(8):
        L(f"L_{tag}_r{i}")
        E(f"s_sub_u32 s{sSPIN}, s{sSPIN}, 1")
        E(f"s_cbranch_scc1 L_exit")
        E(f"s_call_b64 s[{sRET}:{sRET+1}], L_{tag}_ld{i}")
        E(f"s_branch L_{tag}_c{i}")
    for i in range(8):
        L(f"L_{tag}_c{i}")
        E(f"s_waitcnt vmcnt({7-i})")
        chk_bf16(GB+4*i, TT)
        E(f"s_cbranch_vccnz L_{tag}_r{i}")
        for e in range(2):
            c = vr(XR+4*e,4) if i == 0 else vr(XN+4*e,4)
            E(f"v_mfma_f32_16x16x32_bf16 {vr(XN+4*e,4)}, {vr(SEL0+4*e,4)}, {vr(GB+4*i,4)}, {c}")
    E("s_nop 6")
    for d in range(4):
        E(f"v_cvt_pk_bf16_f32 v{XB+d}, v{XN+2*d}, v{XN+2*d+1}")

def matvec(nsteps, A, W, fillers, per=3):
    ext = []
    for G in range((nsteps + 3) // 4):
        n = min(4, nsteps - 4*G)
        dp = f"quad_perm:[0,1,2,3] row_mask:{hex(1<<G)} bank_mask:0xf"
        a = lambda r: f"v{ACC+4*(4*G+r)+r}"
        ext.append((4*G+1, f"v_add_f32_dpp v{vT}, {a(0)}, {a(1)} {dp}"))
        for r in range(2, n):
            ext.append((4*G+r, f"v_add_f32_dpp v{vT}, {a(r)}, v{vT} {dp}"))
    st = dict(pos=0, lastT=0)
    st["lastT"] = -1
    pm = {}
    def put(x, n=1):
        E(x); st["pos"] += n
    def need(e):
        if e[0] not in pm: return 99
        return max(pm[e[0]] + 9 - st["pos"], st["lastT"] + 3 - st["pos"], 0)
    fl = list(fillers)
    for s_ in range(nsteps):
        pm[s_] = st["pos"]
        put(f"v_mfma_f32_16x16x32_bf16 {vr(ACC+4*s_,4)}, {vr(A,4)}, {vr(W+4*s_,4)}, 0")
        for _ in range(per):
            if ext and need(ext[0]) == 0:
                st["lastT"] = st["pos"]; put(ext.pop(0)[1])
            elif fl:
                put(fl.pop(0))
    while ext or fl:
        if ext and need(ext[0]) == 0:
            st["lastT"] = st["pos"]; put(ext.pop(0)[1])
        elif fl:
            put(fl.pop(0))
        else:
            n = need(ext[0]); put(f"s_nop {n-1}", n)

def stats_fillers():
    f = []
    for d in range(4):
        f.append(f"v_lshlrev_b32 v{XR+2*d}, 16, v{XB+d}")
        f.append(f"v_and_b32 v{XR+2*d+1}, 0xffff0000, v{XB+d}")
    f.append(f"v_readfirstlane_b32 s{sPIV}, v{XR}")
    f.append("s_nop 1")
    D = XN
    for i in range(8):
        f.append(f"v_subrev_f32 v{D+i}, s{sPIV}, v{XR+i}")
    a, b = TT, TT+1
    f.append(f"v_add_f32 v{a}, v{D}, v{D+1}")
    f.append(f"v_mul_f32 v{b}, v{D}, v{D}")
    f.append(f"v_fmac_f32 v{b}, v{D+1}, v{D+1}")
    for i in range(2, 8):
        f.append(f"v_add_f32 v{a}, v{a}, v{D+i}")
        f.append(f"v_fmac_f32 v{b}, v{D+i}, v{D+i}")
    f.append("s_nop 0")
    for dp in ("quad_perm:[1,0,3,2] row_mask:0xf", "quad_perm:[2,3,0,1] row_mask:0xf", "row_half_mirror row_mask:0xf",
               "row_mirror row_mask:0xf", "row_bcast:15 row_mask:0xa", "row_bcast:31 row_mask:0xc"):
        f.append(f"v_add_f32_dpp v{a}, v{a}, v{a} {dp} bank_mask:0xf")
        f.append(f"v_add_f32_dpp v{b}, v{b}, v{b} {dp} bank_mask:0xf")
        f.append("s_nop 0")
    f.append(f"v_readlane_b32 s{sS1}, v{a}, 63")
    f.append(f"v_readlane_b32 s{sS2}, v{b}, 63")
    f.append(f"v_mov_b32 v{TT+4}, s{sC1}")
    f.append("s_nop 0")
    f.append(f"v_mul_f32 v{TT+2}, s{sS1}, v{TT+4}")
    f.append(f"v_mul_f32 v{TT+3}, s{sS2}, v{TT+4}")
    f.append(f"v_fma_f32 v{TT+3}, -v{TT+2}, v{TT+2}, v{TT+3}")
    f.append(f"v_max_f32 v{TT+3}, 0, v{TT+3}")
    f.append(f"v_add_f32 v{TT+3}, s{sC2}, v{TT+3}")
    f.append(f"v_rsq_f32 v{TT+3}, v{TT+3}")
    f.append(f"v_add_f32 v{TT+2}, s{sPIV}, v{TT+2}")
    return f

def xgroup_sum():
    E(f"v_mov_b32 v{TT+5}, v{vT}")
    E("s_nop 1")
    E(f"v_permlane16_swap_b32 v{vT}, v{TT+5}")
    E(f"v_add_f32 v{vT}, v{vT}, v{TT+5}")
    E(f"v_mov_b32 v{TT+5}, v{vT}")
    E("s_nop 1")
    E(f"v_permlane32_swap_b32 v{vT}, v{TT+5}")
    E(f"v_add_f32 v{vT}, v{vT}, v{TT+5}")
    E(f"v_fma_f32 v{vT}, -v{TT+2}, v{CS}, v{vT}")
    E(f"v_mul_f32 v{vT}, v{vT}, v{TT+3}")

def y_publish(soff):
    Y = TT + 3
    assert Y % 4 == 0
    E("s_nop 1")
    E(f"v_mfma_f32_16x16x4_f32 {vr(Y,4)}, v{vT}, v{vONE}, 0")
    E("s_nop 9")
    E(f"v_cvt_pk_bf16_f32 v{Y+4}, v{Y}, v{Y+1}")
    E(f"v_cvt_pk_bf16_f32 v{Y+5}, v{Y+2}, v{Y+3}")
    E(f"v_pk_min_u16 v{Y+4}, v{Y+4}, s{sFFFE}")
    E(f"v_pk_min_u16 v{Y+5}, v{Y+5}, s{sFFFE}")
    E(f"v_mov_b32 v{Y+6}, v{Y+4}")
    E(f"v_mov_b32 v{Y+7}, v{Y+5}")
    E("s_mov_b64 exec, -1")
    E(f"v_permlane16_swap_b32 v{Y+4}, v{Y+6}")
    E(f"v_permlane16_swap_b32 v{Y+5}, v{Y+7}")
    E("s_mov_b32 exec_lo, 1")
    E("s_mov_b32 exec_hi, 1")
    E(f"buffer_store_dwordx4 {vr(Y+4,4)}, v{aPY}, s[{R_WS}:{R_WS+3}], s{soff} offen sc1")
    E("s_mov_b64 exec, -1")

def gather1(tag, dst, addr, soff, imm):
    L(f"L_{tag}_poll")
    E(f"buffer_load_dwordx4 {vr(dst,4)}, v{addr}, s[{R_WS}:{R_WS+3}], s{soff} offen offset:{imm} sc1")
    E("s_waitcnt vmcnt(0)")
    chk_bf16(dst, TT)
    E(f"s_cbranch_vccz L_{tag}_ok")
    spin_check(f"L_{tag}_poll")
    L(f"L_{tag}_ok")

def wait_flag(tag, off):
    L(f"L_{tag}")
    E(f"ds_read_b32 v61, v60 offset:{off}")
    E("s_waitcnt lgkmcnt(0)")
    E(f"v_cmp_eq_u32 vcc, 1, v61")
    E(f"s_cbranch_vccnz L_{tag}_ok")
    spin_check(f"L_{tag}")
    L(f"L_{tag}_ok")

E("s_waitcnt vmcnt(0)")
stamp(1)
E(f"v_lshlrev_b32 v{vB1}, 16, v{vB1}")
frags_X(aTX, 32)
colsum()
E("s_barrier")
E(f"ds_read_b32 v61, v60")
E("s_waitcnt lgkmcnt(0)")
E(f"v_readfirstlane_b32 s{sT1}, v61")
E("s_nop 3")
E(f"s_cmp_eq_u32 s{sT1}, 1")
masks(sMA_f, sMA_s, "0xffff", "0", None)
masks(sMB_f, sMB_s, "0x000f000f", "0x000f000f", None)
masks(sMC_f, sMC_s, "0xff", "0", None)
E(f"s_cmp_lt_u32 s{sJ}, 28")
E(f"s_cselect_b32 s{sMC_f}, s{sMC_f}, 0")
E(f"s_cselect_b32 s{sMC_s}, s{sMC_s}, 0")
srd(R_B, sOUT, None, 1024)
stamp(2)
E("s_branch L_S_q")

L("L_S_loop")
E(f"s_cmp_eq_u32 s{sLAY}, 2")
E("s_cbranch_scc1 L_S_nofr")
frags_X(aTX, 32)
colsum()
L("L_S_nofr")
E("s_waitcnt vmcnt(0)")
gather_X("gz", sZoff)
stamp(14, True)
E(f"s_cmp_eq_u32 s{sLAY}, 2")
E("s_cbranch_scc0 L_S_q")
E(f"buffer_store_dwordx2 {vr(XB,2)}, v{aXIO}, s[{R_B}:{R_B+3}], 0 offen")
E(f"buffer_store_dwordx2 {vr(XB+2,2)}, v{aXIO}, s[{R_B}:{R_B+3}], 0 offen offset:512")
if PROF:
    E("s_waitcnt vmcnt(0)")
    stamp(15, True)
    stamp_flush(0)
E("s_endpgm")
L("L_S_q")
E(f"v_mov_b32 v{vT}, 0")
matvec(16, XB, WF, stats_fillers())
xgroup_sum()
E(f"v_cvt_pk_bf16_f32 v{vT}, v{vT}, v{vT}")
E(f"v_min_u32 v{vT}, -2, v{vT}")
pub2("buffer_store_short", f"v{vT}", aP16, sPub16, sMA_f, sMA_s, W_Q)
stamp(3, True)
gather1("gq", GB, vL16, sLOC, W_Q)
E(f"v_add_u32 v{TT+1}, {QS_LDS}, v{vL16}")
E(f"ds_write_b128 v{TT+1}, {vr(GB,4)}")
E("s_waitcnt lgkmcnt(0)")
E("s_barrier")
stamp(4, True)
E("s_barrier")
stamp(5, True)
wait_flag("fwo", 4)
for s in range(16):
    for e in range(2):
        E(f"ds_read_b64_tr_b16 {vr(WF+4*s+2*e,2)}, v{aTO} offset:{256*s+128*e}")
stamp(6, True)
L("L_gc_poll")
E(f"buffer_load_dwordx4 {vr(GB,4)}, v{vL16}, s[{R_WS}:{R_WS+3}], s{sPoff} offen sc1")
E(f"buffer_load_dwordx4 {vr(GB+4,4)}, v{vL16}, s[{R_WS}:{R_WS+3}], s{sPoff} offen offset:1024 sc1")
E(f"buffer_load_dwordx4 {vr(GB+8,4)}, v{aST}, s[{R_WS}:{R_WS+3}], s{sGoff} offen offset:{W_ST} sc1")
E("s_waitcnt vmcnt(0)")
E(f"v_max3_u32 v{TT}, v{GB}, v{GB+1}, v{GB+2}")
E(f"v_max3_u32 v{TT+1}, v{GB+3}, v{GB+4}, v{GB+5}")
E(f"v_max3_u32 v{TT+2}, v{GB+6}, v{GB+7}, v{GB+8}")
E(f"v_max3_u32 v{TT}, v{TT}, v{GB+9}, v{GB+10}")
E(f"v_max3_u32 v{TT+1}, v{TT+1}, v{TT+2}, v{GB+11}")
E(f"v_max_u32 v{TT}, v{TT}, v{TT+1}")
E(f"v_cmp_eq_u32 vcc, -1, v{TT}")
E("s_cbranch_vccz L_gc_ok")
spin_check("L_gc_poll")
L("L_gc_ok")
stamp(7, True)
ma, la, mb, lb = GB+8, GB+9, GB+10, GB+11
E(f"v_max_f32 v{TT}, v{ma}, v{mb}")
E("s_nop 1")
E(f"v_max_f32_dpp v{TT}, v{TT}, v{TT} row_ror:4 row_mask:0xf bank_mask:0xf")
E("s_nop 1")
E(f"v_max_f32_dpp v{TT}, v{TT}, v{TT} row_ror:8 row_mask:0xf bank_mask:0xf")
E(f"v_mov_b32 v{TT+1}, v{TT}")
E("s_nop 1")
E(f"v_permlane16_swap_b32 v{TT}, v{TT+1}")
E(f"v_max_f32 v{TT}, v{TT}, v{TT+1}")
E(f"v_mov_b32 v{TT+1}, v{TT}")
E("s_nop 1")
E(f"v_permlane32_swap_b32 v{TT}, v{TT+1}")
E(f"v_max_f32 v{TT}, v{TT}, v{TT+1}")
E(f"v_sub_f32 v{ma}, v{ma}, v{TT}")
E(f"v_sub_f32 v{mb}, v{mb}, v{TT}")
E(f"v_exp_f32 v{ma}, v{ma}")
E(f"v_exp_f32 v{mb}, v{mb}")
E("s_nop 0")
E(f"v_mul_f32 v{la}, v{ma}, v{la}")
for r in range(4): E(f"v_mul_f32 v{GB+r}, v{ma}, v{GB+r}")
E(f"v_fmac_f32 v{la}, v{mb}, v{lb}")
for r in range(4): E(f"v_fmac_f32 v{GB+r}, v{mb}, v{GB+4+r}")
for rot in (4, 8):
    for x in (la, GB, GB+1, GB+2, GB+3):
        E(f"v_add_f32_dpp v{x}, v{x}, v{x} row_ror:{rot} row_mask:0xf bank_mask:0xf")
E(f"v_mov_b32 v{lb}, v{la}")
E(f"v_permlane16_swap_b32 v{GB}, v{GB+1}")
E("s_nop 0")
E(f"v_permlane16_swap_b32 v{GB+2}, v{GB+3}")
E(f"v_permlane16_swap_b32 v{la}, v{lb}")
E(f"v_add_f32 v{GB}, v{GB}, v{GB+1}")
E(f"v_add_f32 v{GB+2}, v{GB+2}, v{GB+3}")
E(f"v_add_f32 v{la}, v{la}, v{lb}")
E(f"v_mov_b32 v{lb}, v{la}")
E("s_nop 0")
E(f"v_permlane32_swap_b32 v{GB}, v{GB+2}")
E(f"v_permlane32_swap_b32 v{la}, v{lb}")
E(f"v_add_f32 v{GB}, v{GB}, v{GB+2}")
E(f"v_add_f32 v{la}, v{la}, v{lb}")
E(f"v_rcp_f32 v{la}, v{la}")
E("s_nop 0")
E(f"v_mul_f32 v{GB}, v{GB}, v{la}")
E(f"v_cvt_pk_bf16_f32 v{GB}, v{GB}, v{GB}")
E(f"v_min_u32 v{GB}, -2, v{GB}")
pub2("buffer_store_short", f"v{GB}", aPO, sPub16, sMB_f, sMB_s, W_O)
stamp(8, True)
gather1("go", XB, vL16, sLOC, W_O)
stamp(9, True)
E("s_waitcnt lgkmcnt(0)")
E(f"v_mov_b32 v{vT}, 0")
matvec(16, XB, WF, [])
y_publish(sPubY)
stamp(10, True)
wait_flag("fall", 8)
frags_X(aT1, 16)
for s in range(7):
    for e in range(2):
        E(f"ds_read_b64_tr_b16 {vr(W2F+4*s+2*e,2)}, v{aT2} offset:{1024*s+128*e}")
for s in range(16):
    E(f"s_waitcnt lgkmcnt({min(15, 44-2*s)})")
    c = "0" if s == 0 else vr(CS,4)
    E(f"v_mfma_f32_16x16x32_bf16 {vr(CS,4)}, {vr(ONESB,4)}, {vr(WF+4*s,4)}, {c}")
E("s_waitcnt vmcnt(0)")
gather_X("gy", sYoff)
stamp(11, True)
E(f"v_mov_b32 v{vT}, 0")
E("s_nop 0")
matvec(16, XB, WF, stats_fillers())
xgroup_sum()
h, u, a, b = vT, TT+5, TT+6, TT+7
E(f"v_add_f32 v{h}, v{h}, v{vB1}")
E(f"v_mul_f32 v{u}, s{sC3}, |v{h}|")
E(f"v_exp_f32 v{u}, v{u}")
E(f"v_cmp_le_f32 vcc, 0, v{h}")
E(f"v_add_f32 v{b}, 2.0, v{u}")
E(f"v_fma_f32 v{a}, v{u}, 2.0, 1.0")
E(f"v_mul_f32 v{b}, v{u}, v{b}")
E(f"v_mul_f32 v{u}, v{u}, v{u}")
E(f"v_cndmask_b32 v{a}, v{b}, v{a}, vcc")
E(f"v_cndmask_b32 v{u}, 1.0, v{u}, vcc")
E(f"v_fma_f32 v{b}, v{u}, 2.0, v{a}")
E(f"v_rcp_f32 v{b}, v{b}")
E(f"v_mul_f32 v{h}, v{h}, v{a}")
E(f"v_mul_f32 v{h}, v{h}, v{b}")
E(f"v_cvt_pk_bf16_f32 v{h}, v{h}, v{h}")
E(f"v_min_u32 v{h}, -2, v{h}")
pub2("buffer_store_short", f"v{h}", aP16, sPubA, sMC_f, sMC_s, W_ACT)
stamp(12, True)
gather1("ga", XB, aACT, sLOC, W_ACT)
E("s_waitcnt lgkmcnt(0)")
E(f"v_mov_b32 v{vT}, 0")
matvec(7, XB, W2F, [])
y_publish(sPubZ)
stamp(13, True)
for s_ in (sLOC, sPoff, sGoff, sPub16, sPubA, sPubY, sPubZ, sYoff, sZoff):
    E(f"s_add_u32 s{s_}, s{s_}, {LS}")
E(f"s_add_u32 s{sLAY}, s{sLAY}, 1")
E(f"s_cmp_lt_u32 s{sLAY}, 2")
E("s_cbranch_scc1 L_S_loop")
E("s_cmp_eq_u32 s2, 0")
E("s_cbranch_scc1 L_S_loop")
stamp_flush(0)
L("L_exit")
E("s_endpgm")

out.append('.section .rodata,"a"')
out.append(".p2align 6")
out.append(f".amdhsa_kernel {NAME}_kernel")
out.append("  .amdhsa_next_free_vgpr 256")
out.append("  .amdhsa_next_free_sgpr 96")
out.append("  .amdhsa_accum_offset 256")
out.append("  .amdhsa_group_segment_fixed_size 0")
out.append("  .amdhsa_kernarg_size 96")
out.append("  .amdhsa_user_sgpr_count 2")
out.append("  .amdhsa_user_sgpr_kernarg_segment_ptr 1")
out.append("  .amdhsa_system_sgpr_workgroup_id_x 1")
out.append("  .amdhsa_float_denorm_mode_32 3")
out.append(".end_amdhsa_kernel")
open(sys.argv[1], "w").write("\n".join(out) + "\n")
```

```python
import sys, math, struct
PROF = int(sys.argv[2]) if len(sys.argv) > 2 else 0
OPT = dict(a.split("=") for a in sys.argv[3:])
THR = int(OPT.get("thr", 6))
ACK = int(OPT.get("ack", 1))
PER = int(OPT.get("per", 3))
PD = int(OPT.get("pd", 4))
SLP = int(OPT.get("slp", 1))
LATE0 = int(OPT.get("late0", 2))
GP = int(OPT.get("gp", 1))
GSL = int(OPT.get("gsl", 0))
THV = int(OPT.get("thv", 8))
GD = int(OPT.get("gd", 0))
WARM = int(OPT.get("warm", 1))
NTT = " nt" if OPT.get("ntt", "1") == "1" else ""
NAME = "interleave_layers__sliding_block_cached__dense_activation_mish__decode"
out = []
def E(s=""): out.append("    " + s)
def L(s): out.append(s + ":")
def vr(a, n=1): return f"v{a}" if n == 1 else f"v[{a}:{a+n-1}]"
def f32(x): return hex(struct.unpack("<I", struct.pack("<f", x))[0])

K_LDS, V_LDS = 0, 65536
WA_LDS, WB_LDS = 0, 65536
QS_LDS, PX_LDS, SX_LDS, FL_LDS = 131072, 132096, 140288, 141312
OS_LDS, XS_LDS = QS_LDS, PX_LDS
LDS_BYTES = 141824
LS = 0x30000
W_Q, W_X2, W_X1, W_ST, W_ACT = 0, 1024, 2048, 3072, 3584
W_Y, W_Z, W_P = 32768, 40960, 65536
W_Q0 = 2 * LS
W_Q0B = 32768
W_EP = W_Q0 + 65536
ALT = 0x80000
WS_USED = ALT + 2 * LS
PROF_OFF = 0x300000
WS_REC = PROF_OFF + 256 * 1024

sX, sK, sV, sWQ, sWO, sBX, sW1, sB1 = 8, 10, 12, 14, 16, 18, 20, 22
sW2, sOUT, sDBG, sWS = 24, 26, 28, 30
sG, sJ, sWV, sC, sPJ = 3, 4, 5, 6, 7
R_WS, R_A, R_B, R_C = 32, 36, 40, 44
sT0, sT1, sT2, sT3 = 48, 49, 50, 51
sLOC, sLAY = 52, 53
sYoff, sZoff, sPoff = 54, 55, 56
sSPIN = 57
sRET = 58
sMA_f, sMA_s, sMB_f, sMB_s, sMC_f, sMC_s = 60, 62, 64, 66, 68, 70
sTAG, sXCC, sQ0, sQ0B = 72, 73, 74, 75
sFFFE = 76
sC1, sC2, sC3 = 77, 78, 79
sS1, sS2, sPIV = 80, 81, 82
sPub, sPubG = 83, 84
sST = 88
sPe, sLe, sMODE = 90, 91, 92
SPIN0 = 0x200000
WSR = f"s[{R_WS}:{R_WS+3}]"

def srd(r, base, add_lo=None, rec=None):
    if add_lo is None:
        E(f"s_mov_b32 s{r}, s{base}")
        E(f"s_and_b32 s{r+1}, s{base+1}, 0xffff")
    else:
        E(f"s_add_u32 s{r}, s{base}, {add_lo}")
        E(f"s_addc_u32 s{r+1}, s{base+1}, 0")
        E(f"s_and_b32 s{r+1}, s{r+1}, 0xffff")
    E(f"s_mov_b32 s{r+2}, {rec}")
    E(f"s_mov_b32 s{r+3}, 0x00020000")

V_STAMP = 254
def stamp(idx, layer_dep=False):
    if not PROF: return
    E(f"s_memrealtime s[{sST}:{sST+1}]")
    E("s_waitcnt lgkmcnt(0)")
    if layer_dep:
        E(f"s_lshl_b32 s{sT3}, s{sLAY}, 4")
        E(f"s_add_u32 s{sT3}, s{sT3}, {idx}")
        E(f"s_mov_b32 m0, s{sT3}")
        E("s_nop 0")
        E(f"v_writelane_b32 v{V_STAMP}, s{sST}, m0")
    else:
        E(f"v_writelane_b32 v{V_STAMP}, s{sST}, {idx}")
def stamp_flush(wave, slot, dbg=None):
    if not PROF: return
    E(f"s_cmp_lg_u32 s{sWV}, {wave}")
    E("s_cbranch_scc1 L_exit")
    E("s_mov_b64 exec, -1")
    if dbg and "dbg" in OPT:
        wg, off, idx = dbg
        for i, x in enumerate(idx):
            E(f"v_readlane_b32 s{sT0}, v{V_STAMP}, {x}")
            E("s_nop 3")
            E(f"v_writelane_b32 v{V_STAMP-2}, s{sT0}, {i}")
        srd(R_A, sDBG, None, 256)
        E(f"v_lshlrev_b32 v{V_STAMP-1}, 2, v1")
        E(f"s_cmp_eq_u32 s2, {wg}")
        E(f"s_cselect_b32 exec_lo, {(1 << len(idx)) - 1}, 0")
        E("s_mov_b32 exec_hi, 0")
        E(f"buffer_store_dword v{V_STAMP-2}, v{V_STAMP-1}, s[{R_A}:{R_A+3}], 0 offen offset:{off}")
        E("s_mov_b64 exec, -1")
    E(f"s_lshl_b32 s{sT0}, s2, 10")
    E(f"s_add_u32 s{sT0}, s{sT0}, {PROF_OFF + slot*256}")
    E(f"v_lshlrev_b32 v{V_STAMP-1}, 2, v1")
    E(f"buffer_store_dword v{V_STAMP}, v{V_STAMP-1}, {WSR}, s{sT0} offen")

marks = {}
def mark(role):
    if not WARM: return
    l = marks.setdefault(role, [])
    l.append(f"L_wm_{role}{len(l)}")
    L(l[-1])
    E("s_cbranch_execz L_wret")
def warm(role, n, first=0, step=1):
    if not WARM: return
    E("s_mov_b64 exec, 0")
    for i in range(first, n, step):
        E(f"s_call_b64 s[{sRET}:{sRET+1}], L_wm_{role}{i}")
    E("s_mov_b64 exec, -1")
NM = {"a": 2, "d1": 4, "d2": 6}

def spin_check(fail_label):
    E(f"s_sub_u32 s{sSPIN}, s{sSPIN}, 1")
    E(f"s_cbranch_scc1 L_exit")
    E(f"s_branch {fail_label}")

def chk_bf16(v, t):
    E(f"v_pk_max_u16 v{t}, v{v}, v{v+1}")
    E(f"v_pk_max_u16 v{t+1}, v{v+2}, v{v+3}")
    E(f"v_pk_max_u16 v{t}, v{t}, v{t+1}")
    E(f"v_pk_max_u16 v{t}, v{t}, v{t} op_sel:[0,1] op_sel_hi:[1,0]")
    E(f"v_cmp_eq_u32 vcc, -1, v{t}")

def pub2(op, data, addr, soff, mf, ms, imm=0):
    o = f" offset:{imm}" if imm else ""
    E(f"s_mov_b64 exec, s[{mf}:{mf+1}]")
    E(f"{op} {data}, v{addr}, {WSR}, s{soff} offen{o}")
    E(f"s_mov_b64 exec, s[{ms}:{ms+1}]")
    E(f"{op} {data}, v{addr}, {WSR}, s{soff} offen{o} sc1")
    E("s_mov_b64 exec, -1")

def masks(mf, ms, lo, hi):
    E(f"s_cselect_b32 s{mf}, {lo}, 0")
    E(f"s_cselect_b32 s{mf+1}, {hi}, 0")
    E(f"s_cselect_b32 s{ms}, 0, {lo}")
    E(f"s_cselect_b32 s{ms+1}, 0, {hi}")

def arm(dst, n):
    for r in range(n): E(f"v_mov_b32 v{dst+r}, -1")

def gather1(tag, dst, addr, soff, imm, t, pd=None, slp=None):
    pd = PD if pd is None else pd
    slp = SLP if slp is None else slp
    L(f"L_{tag}_poll")
    E(f"buffer_load_dwordx4 {vr(dst,4)}, v{addr}, {WSR}, s{soff} offen offset:{imm} sc1")
    E(f"s_waitcnt vmcnt({pd-1})")
    chk_bf16(dst, t)
    E(f"s_cbranch_vccz L_{tag}_ok")
    if slp: E(f"s_sleep {slp}")
    spin_check(f"L_{tag}_poll")
    L(f"L_{tag}_ok")

cD, cA, cXa, cG, cT, cL16 = 208, 210, 211, 212, 224, 232
def xc_publish():
    E(f"s_getreg_b32 s{sXCC}, hwreg(HW_REG_XCC_ID, 0, 4)")
    E(f"v_mov_b32 v{cD+1}, s{sTAG}")
    E(f"s_lshl_b32 s{sT3}, s{sJ}, 3")
    E(f"v_mov_b32 v{cD}, s{sXCC}")
    E(f"v_mov_b32 v{cA}, s{sT3}")
    E("s_mov_b64 exec, 1")
    E(f"buffer_store_dwordx2 {vr(cD,2)}, v{cA}, {WSR}, s{sQ0} offen offset:2048")
    E("s_mov_b64 exec, -1")

def first_gather(tag, with_q, clear_alt):
    regs = (1, 3, 5, 7, 9) if with_q else (9,)
    nl = 3 if with_q else 1
    E(f"s_sub_u32 s{sS2}, s{sSPIN}, 160")
    E(f"v_and_b32 v{cXa}, 31, v1")
    E(f"v_lshlrev_b32 v{cXa}, 3, v{cXa}")
    E(f"s_not_b32 s{sT1}, s{sTAG}")
    for r in regs: E(f"v_mov_b32 v{cG+r}, s{sT1}")
    def loads(so):
        if with_q:
            E(f"buffer_load_dwordx4 {vr(cG,4)}, v{cL16}, {WSR}, s{so} offen sc1")
            E(f"buffer_load_dwordx4 {vr(cG+4,4)}, v{cL16}, {WSR}, s{so} offen offset:1024 sc1")
        E(f"buffer_load_dwordx2 {vr(cG+8,2)}, v{cXa}, {WSR}, s{so} offen offset:2048 sc1")
    def check():
        if with_q:
            for i, r in enumerate(regs): E(f"v_xor_b32 v{cT+i}, s{sTAG}, v{cG+r}")
            E(f"v_or3_b32 v{cT}, v{cT}, v{cT+1}, v{cT+2}")
            E(f"v_or3_b32 v{cT}, v{cT}, v{cT+3}, v{cT+4}")
            E(f"v_cmp_ne_u32 vcc, 0, v{cT}")
        else:
            E(f"v_cmp_ne_u32 vcc, s{sTAG}, v{cG+9}")
    def copy_b():
        E("s_mov_b64 exec, 1")
        E(f"buffer_store_dwordx2 {vr(cD,2)}, v{cA}, {WSR}, s{sQ0B} offen offset:2048 sc1")
        E("s_mov_b64 exec, -1")
    L(f"L_{tag}_poll")
    loads(sQ0)
    E(f"s_waitcnt vmcnt({min(nl*6, 60)})")
    check()
    E(f"s_cbranch_vccz L_{tag}_seen")
    E("s_sleep 3")
    E(f"s_cmp_gt_u32 s{sSPIN}, s{sS2}")
    E(f"s_cbranch_scc0 L_{tag}_b")
    spin_check(f"L_{tag}_poll")
    L(f"L_{tag}_b")
    copy_b()
    L(f"L_{tag}_alt")
    for so in (sQ0B, sQ0):
        loads(so)
        E("s_waitcnt vmcnt(0)")
        check()
        E(f"s_cbranch_vccz L_{tag}_ok")
    spin_check(f"L_{tag}_alt")
    L(f"L_{tag}_seen")
    E("s_nop 15")
    L(f"L_{tag}_ok")
    if with_q:
        E(f"v_lshlrev_b32 v{cT+1}, 3, v1")
        E(f"v_add_u32 v{cT+1}, {QS_LDS}, v{cT+1}")
        E(f"ds_write2_b32 v{cT+1}, v{cG}, v{cG+2} offset0:0 offset1:1")
        E(f"ds_write2_b32 v{cT+1}, v{cG+4}, v{cG+6} offset0:128 offset1:129")
    E(f"v_cmp_ne_u32 vcc, s{sXCC}, v{cG+8}")
    E("s_nop 3")
    if OPT.get("slow") == "1": E("s_mov_b64 vcc, -1")
    E("s_cmp_eq_u64 vcc, 0")
    E(f"s_cselect_b32 s{sMODE}, 1, 0")
    E(f"s_cbranch_scc1 L_{tag}_done")
    E("s_waitcnt vmcnt(0) lgkmcnt(0)")
    copy_b()
    if clear_alt: clear_alt()
    if clear_alt:
        E("s_waitcnt vmcnt(0)")
        E("s_mov_b64 exec, 1")
        E(f"buffer_store_dwordx2 {vr(cD,2)}, v{cA}, {WSR}, s{sQ0B} offen offset:2560 sc1")
        E("s_mov_b64 exec, -1")
    E(f"v_and_b32 v{cXa}, 56, v{cXa}")
    E(f"v_add_u32 v{cXa}, 192, v{cXa}")
    L(f"L_{tag}_h")
    E(f"buffer_load_dwordx2 {vr(cG+8,2)}, v{cXa}, {WSR}, s{sQ0B} offen offset:2560 sc1")
    E("s_waitcnt vmcnt(0)")
    E(f"v_cmp_ne_u32 vcc, s{sTAG}, v{cG+9}")
    E(f"s_cbranch_vccz L_{tag}_done")
    spin_check(f"L_{tag}_h")
    L(f"L_{tag}_done")
    E(f"v_mov_b32 v{cT+2}, {FL_LDS}")
    E(f"v_mov_b32 v{cT+3}, s{sMODE}")
    E(f"ds_write_b32 v{cT+2}, v{cT+3}")

hdr = open("cdna_kernels/" + NAME + ".s.ref").read().split("; Override")[0]
out.append(hdr.rstrip("\n"))
out.append(f"; @launch grid=(256,1,1) block=(512,1,1) lds={LDS_BYTES}")
out.append('.amdgcn_target "amdgcn-amd-amdhsa--gfx950"')
out.append(".text")
out.append(f".globl {NAME}_kernel")
out.append(".p2align 8")
out.append(f".type {NAME}_kernel,@function")
L(f"{NAME}_kernel")
E("s_cmp_ge_u32 s2, 256")
E("s_cbranch_scc1 L_exit")
E("s_load_dwordx16 s[8:23], s[0:1], 0")
E("s_load_dwordx8 s[24:31], s[0:1], 64")
if PROF:
    E(f"v_mov_b32 v{V_STAMP}, 0")
    E(f"s_memrealtime s[{sST}:{sST+1}]")
E("v_lshrrev_b32 v1, 6, v0")
E(f"s_and_b32 s{sG}, s2, 7")
E(f"v_readfirstlane_b32 s{sWV}, v1")
E(f"s_lshr_b32 s{sJ}, s2, 3")
E("v_and_b32 v1, 63, v0")
E("v_and_b32 v2, 15, v0")
E("v_lshrrev_b32 v3, 4, v1")
E(f"s_mov_b32 s{sSPIN}, {SPIN0}")
E(f"s_mov_b32 s{sLAY}, 0")
E(f"s_lshl_b32 s{sLOC}, s{sG}, 12")
E(f"s_lshl_b32 s{sPoff}, s{sG}, 14")
E(f"s_add_u32 s{sPoff}, s{sPoff}, {W_P}")
E(f"s_add_u32 s{sQ0}, s{sLOC}, {W_Q0}")
E(f"s_add_u32 s{sQ0B}, s{sQ0}, {W_Q0B}")
E("v_lshrrev_b32 v5, 3, v1")
E("v_and_b32 v6, 7, v1")
E("v_lshlrev_b32 v4, 13, v5")
E("v_lshl_add_u32 v4, v6, 7, v4")
E(f"s_lshl_b32 s{sT0}, s{sJ}, 17")
E(f"s_lshl_b32 s{sT1}, s{sG}, 10")
E(f"s_add_u32 s{sT0}, s{sT0}, s{sT1}")
E(f"s_sub_u32 s{sT1}, s{sWV}, 1")
E(f"s_lshl_b32 s{sT2}, s{sT1}, 16")
E(f"s_add_u32 s{sT0}, s{sT0}, s{sT2}")
E(f"s_mov_b32 s{sT2}, {W_EP}")
E("v_mov_b32 v7, 0")
E(f"s_cmp_lt_u32 s{sT1}, 2")
E("s_waitcnt lgkmcnt(0)")
E("s_cbranch_scc0 L_notouch")
srd(R_C, sWQ, None, 4194304)
E(f"buffer_load_dword v240, v4, s[{R_C}:{R_C+3}], s{sT0} offen nt")
L("L_notouch")
srd(R_WS, sWS, None, WS_REC if PROF else WS_USED)
E(f"buffer_load_dword v241, v7, {WSR}, s{sT2} offen sc1")
if PROF: E(f"v_writelane_b32 v{V_STAMP}, s{sST}, 60")
E(f"v_mov_b32 v{cA}, 0")
E(f"v_lshlrev_b32 v{cL16}, 4, v1")
E(f"s_cmp_ge_u32 s{sJ}, 16")
E("s_cbranch_scc1 L_D_init")

E(f"s_lshl_b32 s{sT0}, s{sG}, 24")
E(f"s_lshl_b32 s{sT1}, s{sJ}, 16")
E(f"s_add_u32 s{sT0}, s{sT0}, s{sT1}")
E(f"s_add_u32 s{sT0}, s{sT0}, {61440*256}")
srd(R_A, sK, f"s{sT0}", 65536)
srd(R_B, sV, f"s{sT0}", 65536)
E("v_xor_b32 v4, v2, v3")
E("v_lshlrev_b32 v4, 4, v4")
E("v_lshl_add_u32 v4, v3, 8, v4")
E("v_lshlrev_b32 v5, 1, v3")
E("v_xor_b32 v5, v2, v5")
E("v_lshlrev_b32 v5, 4, v5")
E("v_lshl_add_u32 v5, v3, 8, v5")
E(f"s_add_u32 s{sC1}, s{sJ}, s{sG}")
E(f"s_cmp_ge_u32 s{sWV}, 4")
E("s_cbranch_scc1 L_A_help")
E(f"s_lshl_b32 s{sT0}, s{sWV}, 14")
for i in range(16):
    E(f"s_add_u32 s{sT1}, s{sC1}, {i}")
    E(f"s_and_b32 s{sT1}, s{sT1}, 15")
    E(f"s_and_b32 s{sT2}, s{sT1}, 3")
    E(f"s_lshl_b32 s{sT2}, s{sT2}, 6")
    E(f"s_lshl_b32 s{sT1}, s{sT1}, 10")
    E(f"s_add_u32 s{sT1}, s{sT1}, s{sT0}")
    E(f"s_mov_b32 m0, s{sT1}")
    E(f"v_xor_b32 v6, s{sT2}, v4")
    if i >= THR: E(f"s_waitcnt vmcnt({THR-1})")
    E(f"buffer_load_dwordx4 v6, s[{R_A}:{R_A+3}], s{sT1} offen nt lds")
stamp(1)
KF, VF, QF, SC, PB, OD, OUTV, PF, STT = 16, 80, 144, 160, 176, 144, 176, 184, 216
T = 224
E("v_xor_b32 v4, v2, v3")
E("v_lshlrev_b32 v4, 4, v4")
E("v_lshl_add_u32 v4, v2, 8, v4")
E(f"v_add_u32 v4, s{sT0}, v4")
E("v_xor_b32 v5, 64, v4")
E("v_xor_b32 v6, 0x80, v4")
E("v_xor_b32 v7, 0xc0, v4")
E("v_and_b32 v15, 3, v2")
E("v_lshlrev_b32 v8, 8, v15")
E("v_lshl_add_u32 v8, v3, 4, v8")
E(f"v_add_u32 v8, {QS_LDS}, v8")
E("v_lshlrev_b32 v10, 4, v1")
E(f"v_add_u32 v10, {PX_LDS}, v10")
E(f"s_lshl_b32 s{sT1}, s{sWV}, 11")
E(f"v_add_u32 v9, s{sT1}, v10")
E("v_lshlrev_b32 v12, 5, v2")
E(f"v_add_u32 v12, {SX_LDS}, v12")
E(f"s_lshl_b32 s{sT1}, s{sWV}, 3")
E(f"v_add_u32 v11, s{sT1}, v12")
E("v_lshlrev_b32 v13, 12, v15")
E("v_lshl_add_u32 v13, v3, 3, v13")
E("v_bfe_u32 v14, v2, 2, 1")
E("v_lshl_add_u32 v13, v14, 5, v13")
E(f"s_lshl_b32 s{sT1}, s{sWV}, 6")
E(f"v_add_u32 v13, s{sT1}, v13")
E(f"v_cmp_eq_u32 s[{sMC_f}:{sMC_f+1}], 1, v14")
E(f"v_lshlrev_b32 v14, 7, v15")
E(f"v_lshrrev_b32 v{T}, 2, v2")
E(f"v_lshl_add_u32 v{T}, v3, 2, v{T}")
E(f"v_and_b32 v{T+1}, 7, v{T}")
E(f"s_lshl_b32 s{sT1}, s{sWV}, 1")
E(f"v_xor_b32 v{T+1}, s{sT1}, v{T+1}")
E(f"v_lshlrev_b32 v{T}, 8, v{T}")
E(f"v_lshl_add_u32 v{T}, v{T+1}, 5, v{T}")
E(f"v_lshl_add_u32 v{T}, v15, 3, v{T}")
E(f"v_add_u32 v{T}, {V_LDS}, v{T}")
E(f"v_xor_b32 v{T+1}, 32, v{T}")
E(f"s_lshl_b32 s{sT1}, s{sJ}, 8")
E(f"s_add_u32 s{sPoff}, s{sPoff}, s{sT1}")
E(f"s_and_b32 s{sT1}, s{sJ}, 3")
E(f"s_lshl_b32 s{sT1}, s{sT1}, 5")
E(f"s_lshr_b32 s{sT2}, s{sJ}, 2")
E(f"s_lshl_b32 s{sT2}, s{sT2}, 3")
E(f"s_add_u32 s{sT1}, s{sT1}, s{sT2}")
E(f"s_add_u32 s{sPub}, s{sT1}, {W_ST}")
E(f"s_mov_b32 s{sC1}, {f32((128**-0.5)*math.log2(math.e))}")
E(f"s_mov_b32 s{sFFFE}, 0xfffefffe")
E(f"v_mov_b32 v{T+2}, {FL_LDS}")
E(f"v_mov_b32 v{T+8}, s{sC1}")
E(f"s_cmp_eq_u32 s{sWV}, 0")
E(f"s_cselect_b32 s{sC2}, 15, 0")
E(f"s_mov_b32 s{sMB_f+1}, 0")
E(f"s_mov_b32 s{sMB_s+1}, 0")
E("s_waitcnt vmcnt(0)")
stamp(2)
for e in range(4):
    for s in range(4):
        E(f"ds_read_b128 {vr(KF+(e*4+s)*4,4)}, v{4+s} offset:{4096*e}")
L("L_A_b1")
mark("a")
E("s_barrier")
for s in range(4):
    E(f"ds_read_b128 {vr(QF+4*s,4)}, v8 offset:{64*s}")
stamp(3, True)
def qk(e, s):
    c = "0" if s == 0 else vr(SC+4*e,4)
    E(f"v_mfma_f32_16x16x32_bf16 {vr(SC+4*e,4)}, {vr(KF+(e*4+s)*4,4)}, {vr(QF+4*s,4)}, {c}")
for s in range(4):
    E(f"s_waitcnt lgkmcnt({3-s})")
    qk(0, s); qk(1, s)
for s in range(4):
    qk(2, s); qk(3, s)
E(f"v_max3_f32 v{T+4}, v{SC}, v{SC+1}, v{SC+2}")
E(f"v_max3_f32 v{T+5}, v{SC+3}, v{SC+4}, v{SC+5}")
E(f"v_max3_f32 v{T+4}, v{T+4}, v{SC+6}, v{SC+7}")
E("s_nop 3")
E(f"v_max3_f32 v{T+5}, v{T+5}, v{SC+8}, v{SC+9}")
E(f"v_max3_f32 v{T+4}, v{T+4}, v{SC+10}, v{SC+11}")
E(f"v_max3_f32 v{T+5}, v{T+5}, v{SC+12}, v{SC+13}")
E(f"v_max3_f32 v{T+4}, v{T+4}, v{SC+14}, v{SC+15}")
E(f"v_max_f32 v{T+4}, v{T+4}, v{T+5}")
E(f"v_mov_b32 v{T+5}, v{T+4}")
E("s_nop 1")
E(f"v_permlane16_swap_b32 v{T+4}, v{T+5}")
E(f"v_max_f32 v{T+4}, v{T+4}, v{T+5}")
E(f"v_mov_b32 v{T+5}, v{T+4}")
E("s_nop 1")
E(f"v_permlane32_swap_b32 v{T+4}, v{T+5}")
E(f"v_max_f32 v{T+4}, v{T+4}, v{T+5}")
E(f"v_mul_f32 v{T+6}, s{sC1}, v{T+4}")
for i in range(8):
    E(f"v_pk_fma_f32 {vr(SC+2*i,2)}, {vr(SC+2*i,2)}, {vr(T+8,2)}, {vr(T+6,2)} op_sel_hi:[1,0,0] neg_lo:[0,0,1] neg_hi:[0,0,1]")
for i in range(8):
    E(f"v_exp_f32 v{SC+i}, v{SC+i}")
E(f"v_exp_f32 v{SC+8}, v{SC+8}")
for i in range(4):
    E(f"v_cvt_pk_bf16_f32 v{PB+i}, v{SC+2*i}, v{SC+2*i+1}")
E(f"ds_write_b128 v9, {vr(PB,4)}")
for i in range(9, 16):
    E(f"v_exp_f32 v{SC+i}, v{SC+i}")
E(f"v_add_f32 v{T+7}, v{SC}, v{SC+1}")
for i in range(4, 8):
    E(f"v_cvt_pk_bf16_f32 v{PB+i}, v{SC+2*i}, v{SC+2*i+1}")
E(f"ds_write_b128 v9, {vr(PB+4,4)} offset:1024")
for i in range(4):
    E(f"v_pk_add_f32 {vr(SC+2+ 0,2) if False else vr(SC+4*i,2)}, {vr(SC+4*i,2)}, {vr(SC+4*i+2,2)}")
E(f"v_pk_add_f32 {vr(SC,2)}, {vr(SC,2)}, {vr(SC+4,2)}")
E(f"v_pk_add_f32 {vr(SC+8,2)}, {vr(SC+8,2)}, {vr(SC+12,2)}")
E(f"v_pk_add_f32 {vr(SC,2)}, {vr(SC,2)}, {vr(SC+8,2)}")
E(f"v_add_f32 v{T+7}, v{SC}, v{SC+1}")
E(f"v_mov_b32 v{T+5}, v{T+7}")
E("s_nop 1")
E(f"v_permlane16_swap_b32 v{T+7}, v{T+5}")
E(f"v_add_f32 v{T+7}, v{T+7}, v{T+5}")
E(f"v_mov_b32 v{T+5}, v{T+7}")
E("s_nop 1")
E(f"v_permlane32_swap_b32 v{T+7}, v{T+5}")
E(f"v_add_f32 v{T+7}, v{T+7}, v{T+5}")
E(f"ds_write_b64 v11, {vr(T+6,2)}")
stamp(4, True)
mark("a")
E("s_waitcnt lgkmcnt(0)")
E("s_barrier")
E(f"ds_read_b32 v{T+3}, v{T+2}")
for b in range(2):
    E(f"ds_read_b128 {vr(STT+4*b,4)}, v12 offset:{16*b}")
for b in range(8):
    E(f"ds_read_b128 {vr(PF+4*b,4)}, v10 offset:{1024*b}")
stamp(5, True)
E(f"s_cmp_lg_u32 s{sLAY}, 0")
E("s_cbranch_scc1 L_A_havev")
for tp in range(2):
    for b in range(8):
        for e in range(2):
            E(f"ds_read_b64_tr_b16 {vr(VF+(tp*8+b)*4+2*e,2)}, v{T+tp} offset:{(32*b+16*e)*256}")
E("s_waitcnt lgkmcnt(0)")
L("L_A_havev")
E("s_waitcnt lgkmcnt(8)")
F = STT
va = [f"v_max3_f32 v{T+4}, v{STT}, v{STT+2}, v{STT+4}", f"v_max_f32 v{T+6}, v{T+4}, v{STT+6}"]
va += [f"v_sub_f32 v{F+2*b}, v{STT+2*b}, v{T+6}" for b in range(4)]
va += [f"v_exp_f32 v{F+2*b}, v{F+2*b}" for b in range(4)]
va += [f"v_mul_f32 v{T+7}, v{F}, v{STT+1}"] + [f"v_fmac_f32 v{T+7}, v{F+2*b}, v{STT+2*b+1}" for b in range(1, 4)]
E(f"v_readfirstlane_b32 s{sMODE}, v{T+3}")
for x in va[:2]: E(x)
sa = [f"s_cmp_eq_u32 s{sMODE}, 1", f"s_cselect_b32 s{sMB_f}, s{sC2}, 0", f"s_cselect_b32 s{sMB_s}, 0, s{sC2}",
      f"s_cselect_b32 s{sMA_f}, 0x00ff00ff, 0", f"s_cselect_b32 s{sMA_f+1}, 0x00ff00ff, 0", f"s_cselect_b32 s{sMA_s}, 0, 0x00ff00ff",
      f"s_cselect_b32 s{sMA_s+1}, 0, 0x00ff00ff", f"s_cselect_b32 s{sT2}, 0, {ALT}", f"s_add_u32 s{sPe}, s{sPoff}, s{sT2}",
      f"s_add_u32 s{sT2}, s{sLOC}, s{sT2}", f"s_add_u32 s{sT2}, s{sT2}, s{sPub}"]
k = 2
for u in range(8):
    E(f"s_waitcnt lgkmcnt({7-u})")
    for tp in range(2):
        d = vr(OD+(tp*4+u//2)*4,4)
        E(f"v_mfma_f32_16x16x32_bf16 {d}, {vr(VF+(tp*8+u)*4,4)}, {vr(PF+4*u,4)}, {'0' if u % 2 == 0 else d}")
        if k < len(va): E(va[k]); k += 1
        if sa and u >= 1: E(sa.pop(0)); E(sa.pop(0)) if sa else None
    if u == 5:
        assert k == len(va)
        pub2("buffer_store_dwordx2", vr(T+6,2), 14, sT2, sMB_f, sMB_s)
def cb(b):
    for tp in range(2):
        for h in range(2):
            o = vr(OUTV+4*tp+2*h,2)
            if b == 0: E(f"v_pk_mul_f32 {o}, {vr(OD+tp*16+2*h,2)}, {vr(F,2)} op_sel_hi:[1,0]")
            else: E(f"v_pk_fma_f32 {o}, {vr(OD+(tp*4+b)*4+2*h,2)}, {vr(F+2*b,2)}, {o} op_sel_hi:[1,0,1]")
for b in range(4): cb(b)
for r in range(4):
    E(f"v_cndmask_b32 v{OUTV+r}, v{OUTV+r}, v{OUTV+4+r}, s[{sMC_f}:{sMC_f+1}]")
E(f"v_cvt_pk_bf16_f32 v{OUTV}, v{OUTV}, v{OUTV+1}")
E(f"v_cvt_pk_bf16_f32 v{OUTV+1}, v{OUTV+2}, v{OUTV+3}")
E(f"v_pk_min_u16 v{OUTV}, v{OUTV}, s{sFFFE}")
E(f"v_pk_min_u16 v{OUTV+1}, v{OUTV+1}, s{sFFFE}")
pub2("buffer_store_dwordx2", vr(OUTV,2), 13, sPe, sMA_f, sMA_s)
stamp(6, True)
E(f"s_add_u32 s{sPoff}, s{sPoff}, {LS}")
E(f"s_add_u32 s{sLOC}, s{sLOC}, {LS}")
E(f"s_add_u32 s{sLAY}, s{sLAY}, 1")
E(f"s_cmp_lt_u32 s{sLAY}, 2")
E("s_cbranch_scc1 L_A_b1")
stamp_flush(0, 0, (int(OPT.get("dbg", 0)), 36, [60, 2, 3, 5, 6, 19, 22]))
E("s_endpgm")
L("L_A_help")
E(f"s_cmp_eq_u32 s{sWV}, 4")
E("s_cbranch_scc1 L_A_ctl")
E(f"s_sub_u32 s{sT0}, s{sWV}, 5")
E(f"s_lshl_b32 s{sC1}, s{sC1}, 2")
E(f"s_mov_b32 s{sT3}, 0")
L("L_A_vl")
E(f"s_add_u32 s{sT1}, s{sC1}, s{sT0}")
E(f"s_and_b32 s{sT1}, s{sT1}, 63")
E(f"s_and_b32 s{sT2}, s{sT1}, 1")
E(f"s_lshl_b32 s{sT2}, s{sT2}, 7")
E(f"s_lshl_b32 s{sT1}, s{sT1}, 10")
E(f"s_add_u32 m0, s{sT1}, {V_LDS}")
E(f"v_xor_b32 v6, s{sT2}, v5")
E(f"s_waitcnt vmcnt({THV-1})")
E(f"buffer_load_dwordx4 v6, s[{R_B}:{R_B+3}], s{sT1} offen nt lds")
E(f"s_add_u32 s{sT0}, s{sT0}, 3")
E(f"s_cmp_lt_u32 s{sT0}, 64")
E("s_cbranch_scc1 L_A_vl")
stamp(1)
E(f"s_cmp_eq_u32 s{sWV}, 5")
E("s_cbranch_scc0 L_A_pf2")
srd(R_C, sW1, None, 1835008)
E(f"s_mul_i32 s{sT1}, s{sJ}, {32*3584}")
E(f"s_mul_i32 s{sT2}, s{sG}, 448")
E(f"s_add_u32 s{sT1}, s{sT1}, s{sT2}")
E(f"s_add_u32 s{sT2}, s{sT1}, {16*3584}")
E("v_mul_u32_u24 v6, 3584, v2")
E("v_mul_u32_u24 v7, 0x94, v3")
E("v_add_u32 v6, v6, v7")
E("s_branch L_A_pf")
L("L_A_pf2")
E(f"s_mul_i32 s{sT1}, s{sG}, {224*1024}")
E(f"s_mul_i32 s{sT2}, s{sJ}, 14336")
E(f"s_add_u32 s{sT1}, s{sT1}, s{sT2}")
E(f"s_cmp_eq_u32 s{sWV}, 6")
E(f"s_cselect_b32 s{sT3}, 14336, 0")
srd(R_C, sW2, f"s{sT1}", f"s{sT3}")
E(f"s_mov_b32 s{sT1}, 0")
E(f"s_mov_b32 s{sT2}, 8192")
E("v_lshlrev_b32 v6, 7, v1")
L("L_A_pf")
E(f"buffer_load_dword v240, v6, s[{R_C}:{R_C+3}], s{sT1} offen{NTT}")
E(f"buffer_load_dword v240, v6, s[{R_C}:{R_C+3}], s{sT2} offen{NTT}")
warm("a", NM["a"])
E("s_barrier")
E("s_waitcnt vmcnt(2)")
stamp(2)
E("s_barrier")
stamp_flush(5, 2)
E("s_endpgm")
L("L_A_ctl")
E("s_waitcnt vmcnt(0)")
E(f"v_readfirstlane_b32 s{sTAG}, v241")
E("s_nop 3")
E(f"s_add_u32 s{sTAG}, s{sTAG}, 1")
xc_publish()
first_gather("aq0", True, None)
stamp(2)
E("s_waitcnt lgkmcnt(0)")
E("s_barrier")
E(f"s_cmp_eq_u32 s{sMODE}, 1")
E(f"s_cselect_b32 s{sT2}, 0, {ALT}")
E(f"s_add_u32 s{sLe}, s{sLOC}, s{sT2}")
E(f"s_add_u32 s{sLe}, s{sLe}, {LS}")
E(f"v_add_u32 v{cT+2}, {QS_LDS}, v{cL16}")
E("s_barrier")
E("s_waitcnt vmcnt(0)")
arm(cG, 4)
gather1("aq", cG, cL16, sLe, W_Q, cT)
E(f"ds_write_b128 v{cT+2}, {vr(cG,4)}")
stamp(18)
E("s_waitcnt lgkmcnt(0)")
E("s_barrier")
stamp_flush(4, 1)
E("s_endpgm")

vL16, aXIO, aTA, aTB, aIN, aST, aP16, aPY, vONE, aOS, aXS = 4, 5, 6, 7, 8, 9, 10, 11, 12, 13, 14
SEL0, ONESB, XR, XN, XB, vT = 16, 24, 28, 36, 44, 48
TT = 49
vB1, vCS, aGX, vINV, vVAL = 15, 0, 249, 250, 252
GB, WA, ACC, WB = 64, 96, 160, 192
vST, CA, MK, vFLG = 224, 232, 236, 248
NACC = 8

retry_blocks = []
def gather_X(tag, soff, role, hook=None):
    def loads():
        for i in range(8):
            so = soff if i < 4 else sT0
            E(f"buffer_load_dwordx4 {vr(GB+4*i,4)}, v{aGX}, {WSR}, s{so} offen offset:{256*(i%4)} sc1")
    def sums(wait):
        for i in range(8):
            if wait is not None: E(f"s_waitcnt vmcnt({wait + 7 - i})")
            e, w = (i % 4) // 2, i % 2
            c = vr(XR+4*e,4) if i in (0, 2) else vr(XN+4*e,4)
            E(f"v_mfma_f32_16x16x32_bf16 {vr(XN+4*e,4)}, {vr(SEL0+4*w,4)}, {vr(GB+4*i,4)}, {c}")
    E(f"s_add_u32 s{sT0}, s{soff}, 4096")
    if ACK: E("s_waitcnt vmcnt(0)")
    elif GD: E(f"s_sleep {GD}")
    if PROF == 2: stamp(9, True)
    for _ in range(GP - 1):
        loads()
        if GSL: E(f"s_sleep {GSL}")
    E(f"s_branch L_{tag}_again")
    L(f"L_{tag}_nan")
    E(f"s_sub_u32 s{sSPIN}, s{sSPIN}, 1")
    E("s_cbranch_scc1 L_exit")
    E(f"s_and_b32 s{sT1}, s{sSPIN}, 15")
    E(f"s_cbranch_scc0 L_{tag}_retry")
    if GSL: E(f"s_sleep {GSL}")
    L(f"L_{tag}_again")
    loads()
    if hook: hook()
    mark(role)
    sums(8 * (GP - 1))
    E("s_nop 6")
    E(f"v_cmp_u_f32 vcc, v{XN}, v{XN}")
    E(f"v_cmp_u_f32 s[{sS1}:{sS1+1}], v{XN+4}, v{XN+4}")
    for d in range(4):
        E(f"v_cvt_pk_bf16_f32 v{XB+d}, v{XN+2*d}, v{XN+2*d+1}")
    E(f"s_or_b64 vcc, vcc, s[{sS1}:{sS1+1}]")
    E(f"s_cbranch_vccnz L_{tag}_nan")
    L(f"L_{tag}_ok")
    if PROF == 2:
        stamp(11, True)
        E(f"s_mov_b32 s{sST}, s{sSPIN}")
    def blk():
        L(f"L_{tag}_retry")
        for i in range(16): E(f"v_pk_max_u16 v{ACC+i}, v{GB+2*i}, v{GB+2*i+1}")
        for i in range(8): E(f"v_pk_max_u16 v{ACC+i}, v{ACC+2*i}, v{ACC+2*i+1}")
        for i in range(4): E(f"v_pk_max_u16 v{ACC+i}, v{ACC+2*i}, v{ACC+2*i+1}")
        chk_bf16(ACC, TT)
        E(f"s_cbranch_vccnz L_{tag}_again")
        sums(None)
        E("s_nop 7")
        for d in range(4):
            E(f"v_cvt_pk_bf16_f32 v{XB+d}, v{XN+2*d}, v{XN+2*d+1}")
        E(f"s_branch L_{tag}_ok")
    retry_blocks.append(blk)

def relay_X(tag, soff, pre):
    E(f"v_mov_b32 v{vT}, 0")
    E(f"s_cmp_lg_u32 s{sWV}, 0")
    E(f"s_cbranch_scc1 L_{tag}_other")
    pre()
    gather_X(tag, soff, "d2", lambda: w1_setup("a"))
    E(f"ds_write_b128 v{aXS}, {vr(XB,4)}")
    post = f"L_{tag}_join"
    E("s_waitcnt lgkmcnt(0)")
    E("s_barrier")
    E(f"s_branch {post}")
    L(f"L_{tag}_other")
    w1_setup("b")
    E("s_waitcnt vmcnt(0)")
    E("s_barrier")
    E(f"ds_read_b128 {vr(XB,4)}, v{aXS}")
    E("s_waitcnt lgkmcnt(0)")
    L(post)

def unpack_resid(src):
    for d in range(4):
        E(f"v_lshlrev_b32 v{XR+2*d}, 16, v{src+d}")
        E(f"v_and_b32 v{XR+2*d+1}, 0xffff0000, v{src+d}")

def matvec(nsteps, A, W, fillers, rows=None, per=PER):
    if rows is None:
        rows = [(1 << G, 0xf, list(range(4*G, min(4*G+4, nsteps)))) for G in range((nsteps + 3) // 4)]
    acc = lambda s_: ACC + 4*(s_ % NACC)
    ext = []
    for (rm, bm, st_) in rows:
        dp = f"quad_perm:[0,1,2,3] row_mask:{hex(rm)} bank_mask:{hex(bm)}"
        a = lambda s_: f"v{acc(s_) + s_ % 4}"
        ext.append((st_[1], f"v_add_f32_dpp v{vT}, {a(st_[0])}, {a(st_[1])} {dp}"))
        for s_ in st_[2:]:
            ext.append((s_, f"v_add_f32_dpp v{vT}, {a(s_)}, v{vT} {dp}"))
    ext.sort(key=lambda e: e[0])
    st = dict(pos=0, lastT=-1)
    pm = {}
    def put(x, n=1):
        E(x); st["pos"] += n
    def need(e):
        if e[0] not in pm: return 99
        return max(pm[e[0]] + 9 - st["pos"], st["lastT"] + 3 - st["pos"], 0)
    fl = list(fillers)
    for s_ in range(nsteps):
        while ext and ext[0][0] <= s_ - NACC + 1 and s_ >= NACC:
            n = need(ext[0])
            if n: put(f"s_nop {n-1}", n)
            st["lastT"] = st["pos"]; put(ext.pop(0)[1])
        pm[s_] = st["pos"]
        put(f"v_mfma_f32_16x16x32_bf16 {vr(acc(s_),4)}, {vr(A,4)}, {vr(W+4*s_,4)}, 0")
        for _ in range(per):
            if ext and need(ext[0]) == 0:
                st["lastT"] = st["pos"]; put(ext.pop(0)[1])
            elif fl:
                put(fl.pop(0))
    while ext or fl:
        if ext and need(ext[0]) == 0:
            st["lastT"] = st["pos"]; put(ext.pop(0)[1])
        elif fl:
            put(fl.pop(0))
        else:
            n = need(ext[0]); put(f"s_nop {n-1}", n)

def stats_fillers():
    f = []
    for d in range(4):
        f.append(f"v_lshlrev_b32 v{XR+2*d}, 16, v{XB+d}")
        f.append(f"v_and_b32 v{XR+2*d+1}, 0xffff0000, v{XB+d}")
        if d == 0: f.append(f"v_readfirstlane_b32 s{sPIV}, v{XR}")
    D = XN
    for i in range(4):
        f.append(f"v_pk_add_f32 {vr(D+2*i,2)}, {vr(XR+2*i,2)}, s[{sPIV}:{sPIV+1}] op_sel_hi:[1,0] neg_lo:[0,1] neg_hi:[0,1]")
    a, b = TT+1, TT+3
    assert a % 2 == 0
    f.append(f"v_pk_add_f32 {vr(a,2)}, {vr(D,2)}, {vr(D+2,2)}")
    f.append(f"v_pk_mul_f32 {vr(b,2)}, {vr(D,2)}, {vr(D,2)}")
    for i in range(1, 4):
        f.append(f"v_pk_fma_f32 {vr(b,2)}, {vr(D+2*i,2)}, {vr(D+2*i,2)}, {vr(b,2)}")
        if i > 1: f.append(f"v_pk_add_f32 {vr(a,2)}, {vr(a,2)}, {vr(D+2*i,2)}")
    f.append(f"v_add_f32 v{b}, v{b}, v{b+1}")
    f.append(f"v_add_f32 v{a}, v{a}, v{a+1}")
    f.append("s_nop 0")
    for dp in ("quad_perm:[1,0,3,2] row_mask:0xf", "quad_perm:[2,3,0,1] row_mask:0xf", "row_half_mirror row_mask:0xf",
               "row_mirror row_mask:0xf", "row_bcast:15 row_mask:0xa", "row_bcast:31 row_mask:0xc"):
        f.append(f"v_add_f32_dpp v{b}, v{b}, v{b} {dp} bank_mask:0xf")
        f.append(f"v_add_f32_dpp v{a}, v{a}, v{a} {dp} bank_mask:0xf")
        f.append("s_nop 0")
    f.append(f"v_readlane_b32 s{sS2}, v{b}, 63")
    f.append(f"v_readlane_b32 s{sS1}, v{a}, 63")
    f.append(f"v_fma_f32 v{TT+3}, s{sS2}, v{vINV}, v{vINV+1}" if False else "s_nop 0")
    f.append(f"v_fma_f32 v{TT+3}, s{sS2}, v{vINV}, v{vINV+1}")
    f.append(f"v_mul_f32 v{TT+2}, s{sS1}, v{vINV}")
    f.append(f"v_fma_f32 v{TT+3}, -v{TT+2}, v{TT+2}, v{TT+3}")
    f.append(f"v_max_f32 v{TT+3}, v{vINV+1}, v{TT+3}")
    f.append(f"v_rsq_f32 v{TT+3}, v{TT+3}")
    f.append(f"v_add_f32 v{TT+2}, s{sPIV}, v{TT+2}")
    return f

def xgroup_sum(fold8=False):
    if fold8: E(f"v_and_b32 v{vT}, v{vVAL}, v{vT}")
    E(f"v_mov_b32 v{TT+5}, v{vT}")
    E("s_nop 1")
    E(f"v_permlane16_swap_b32 v{vT}, v{TT+5}")
    E(f"v_add_f32 v{vT}, v{vT}, v{TT+5}")
    E(f"v_mov_b32 v{TT+5}, v{vT}")
    E("s_nop 1")
    E(f"v_permlane32_swap_b32 v{vT}, v{TT+5}")
    E(f"v_add_f32 v{vT}, v{vT}, v{TT+5}")
    if fold8:
        E("s_nop 1")
        E(f"v_add_f32_dpp v{vT}, v{vT}, v{vT} row_ror:8 row_mask:0xf bank_mask:0xf")
    E(f"v_fma_f32 v{vT}, -v{TT+2}, v{vCS}, v{vT}")
    E(f"v_mul_f32 v{vT}, v{vT}, v{TT+3}")

def y_publish():
    Y = TT + 3
    assert Y % 4 == 0
    E("s_nop 1")
    E(f"v_mfma_f32_16x16x4_f32 {vr(Y,4)}, v{vT}, v{vONE}, 0")
    E("s_nop 9")
    E(f"v_cvt_pk_bf16_f32 v{Y+4}, v{Y}, v{Y+1}")
    E(f"v_cvt_pk_bf16_f32 v{Y+5}, v{Y+2}, v{Y+3}")
    E(f"v_pk_min_u16 v{Y+4}, v{Y+4}, s{sFFFE}")
    E(f"v_pk_min_u16 v{Y+5}, v{Y+5}, s{sFFFE}")
    E(f"v_mov_b32 v{Y+6}, v{Y+4}")
    E(f"v_mov_b32 v{Y+7}, v{Y+5}")
    E("s_nop 0")
    E(f"v_permlane16_swap_b32 v{Y+4}, v{Y+6}")
    E(f"v_permlane16_swap_b32 v{Y+5}, v{Y+7}")
    E("s_mov_b32 exec_lo, 1")
    E("s_mov_b32 exec_hi, 1")
    E(f"buffer_store_dwordx4 {vr(Y+4,4)}, v{aPY}, {WSR}, s{sPubG} offen sc1")
    E("s_mov_b64 exec, -1")

def pub_resid(off):
    for d in range(4): E(f"v_pk_min_u16 v{TT+7+d}, v{XB+d}, s{sFFFE}")
    pub2("buffer_store_dwordx4", vr(TT+7,4), vL16, sLOC, sMB_f, sMB_s, off)

def read_mode(lo_a):
    E(f"v_mov_b32 v{TT}, {FL_LDS}")
    E(f"ds_read_b32 v{TT+1}, v{TT}")
    E("s_waitcnt lgkmcnt(0)")
    E(f"v_readfirstlane_b32 s{sMODE}, v{TT+1}")
    E(f"s_cmp_eq_u32 s{sPJ}, 0")
    E(f"s_cselect_b32 s{sT1}, -1, 0")
    E("s_nop 2")
    E(f"s_cmp_eq_u32 s{sMODE}, 1")
    masks(sMA_f, sMA_s, lo_a, "0")
    masks(sMB_f, sMB_s, f"s{sT1}", f"s{sT1}")
    E(f"s_cselect_b32 s{sT1}, 0, {ALT}")
    for s_ in (sLOC, sPoff, sPub):
        E(f"s_add_u32 s{s_}, s{s_}, s{sT1}")

L("L_D_init")
E(f"s_and_b32 s{sC}, s{sJ}, 7")
E(f"s_lshl_b32 s{sPJ}, s{sC}, 2")
E(f"s_add_u32 s{sPJ}, s{sPJ}, s{sWV}")
E("v_lshrrev_b32 v242, 3, v1")
E("v_and_b32 v243, 7, v1")
srd(R_B, sX, None, 1024)
E(f"v_lshrrev_b32 v{TT}, 1, v3")
E(f"v_and_b32 v{TT+1}, 1, v3")
E(f"v_lshlrev_b32 v{aXIO}, 8, v{TT}")
E(f"v_lshl_add_u32 v{aXIO}, v2, 4, v{aXIO}")
E(f"v_lshl_add_u32 v{aXIO}, v{TT+1}, 3, v{aXIO}")
E(f"buffer_load_dwordx2 {vr(XB,2)}, v{aXIO}, s[{R_B}:{R_B+3}], 0 offen")
E(f"buffer_load_dwordx2 {vr(XB+2,2)}, v{aXIO}, s[{R_B}:{R_B+3}], 0 offen offset:512")
E(f"v_lshlrev_b32 v{vL16}, 4, v1")
E(f"v_lshrrev_b32 v{TT+2}, 2, v2")
E(f"v_and_b32 v{TT+3}, 3, v2")
E(f"v_lshl_add_u32 v{TT+4}, v{TT}, 7, v{TT+2}")
E(f"v_lshl_add_u32 v{TT+4}, v{TT+1}, 2, v{TT+4}")
E(f"v_lshlrev_b32 v{aP16}, 1, v2")
E(f"v_lshrrev_b32 v{aPY}, 5, v1")
E(f"v_lshlrev_b32 v{aPY}, 4, v{aPY}")
E(f"v_add_u32 v{aXS}, {XS_LDS}, v{vL16}")
E(f"v_mov_b32 v{vONE}, 1.0")
for d in range(4): E(f"v_mov_b32 v{ONESB+d}, 0x3f803f80")
E(f"v_and_b32 v{TT+5}, 1, v2")
E(f"v_lshlrev_b32 v{TT+5}, 4, v{TT+5}")
E(f"v_mov_b32 v{TT+6}, 0x3f80")
E(f"v_lshlrev_b32 v{TT+6}, v{TT+5}, v{TT+6}")
E(f"v_lshrrev_b32 v{TT+7}, 1, v2")
E(f"v_lshlrev_b32 v{aGX}, 10, v3")
E(f"v_lshl_add_u32 v{aGX}, v2, 4, v{aGX}")
for d in range(8):
    E(f"v_cmp_eq_u32 vcc, {d}, v{TT+7}")
    E("s_nop 1")
    E(f"v_cndmask_b32 v{SEL0+d}, 0, v{TT+6}, vcc")
E(f"s_mov_b32 s{sFFFE}, 0xfffefffe")
E(f"v_mov_b32 v{vINV}, {f32(1/512)}")
E(f"v_mov_b32 v{vINV+1}, {f32(1e-5)}")
E(f"s_mov_b32 s{sC3}, {f32(-math.log2(math.e))}")
E(f"s_lshl_b32 s{sT1}, s{sPJ}, 5")
E(f"s_lshl_b32 s{sPubG}, s{sG}, 10")
E(f"s_add_u32 s{sPubG}, s{sPubG}, s{sT1}")
E(f"s_lshl_b32 s{sT2}, s{sWV}, 5")
E(f"s_cmp_ge_u32 s{sJ}, 24")
E("s_cbranch_scc1 L_D2_init")

def ctl_head():
    E("s_waitcnt vmcnt(0)")
    E(f"v_readfirstlane_b32 s{sTAG}, v241")
    for r in range(4): E(f"v_mov_b32 v{cG+r}, -1")
    E(f"s_add_u32 s{sTAG}, s{sTAG}, 1")
def clear_global():
    E(f"s_mov_b32 s{sT1}, {LS}")
    E(f"v_lshrrev_b32 v{cT}, 3, v2")
    E(f"v_mul_lo_u32 v{cT}, v{cT}, s{sT1}")
    E(f"v_lshl_add_u32 v{cT}, v243, 4, v{cT}")
    E(f"v_lshl_add_u32 v{cT}, v3, 13, v{cT}")
    E(f"s_lshl_b32 s{sT1}, s{sG}, 10")
    E(f"s_lshl_b32 s{sT2}, s{sC}, 7")
    E(f"s_add_u32 s{sT1}, s{sT1}, s{sT2}")
    E(f"s_add_u32 s{sT1}, s{sT1}, {W_Y}")
    E("s_mov_b32 exec_hi, 0")
    E(f"buffer_store_dwordx4 {vr(cG,4)}, v{cT}, {WSR}, s{sT1} offen sc1")
    E("s_mov_b64 exec, -1")

E(f"s_lshl_b32 s{sT0}, s{sG}, 10")
E(f"s_lshl_b32 s{sT1}, s{sC}, 7")
E(f"s_add_u32 s{sT0}, s{sT0}, s{sT1}")
E(f"s_sub_u32 s{sT3}, {4194304}, s{sT0}")
srd(R_A, sWQ, f"s{sT0}", f"s{sT3}")
E("v_and_b32 v245, 6, v242")
E("v_xor_b32 v245, v245, v243")
E("v_lshlrev_b32 v244, 13, v242")
E("v_lshl_add_u32 v244, v245, 4, v244")
E(f"s_cmp_ge_u32 s{sWV}, 4")
E("s_cbranch_scc1 L_D1_help")
E("s_waitcnt vmcnt(0)")
stamp(1)
E(f"s_lshl_b32 s{sT0}, s{sWV}, 14")
E(f"s_mov_b32 m0, s{sT0}")
E(f"s_lshl_b32 s{sT1}, s{sWV}, 20")
for i in range(16):
    E(f"buffer_load_dwordx4 v244, s[{R_A}:{R_A+3}], s{sT1} offen nt lds")
    if i < 15:
        E("s_add_u32 m0, m0, 1024")
        E(f"s_add_u32 s{sT1}, s{sT1}, 65536")
E(f"v_bfe_u32 v{TT+5}, v{TT+4}, 1, 2")
E(f"v_xor_b32 v{TT+5}, s{sWV}, v{TT+5}")
E(f"v_lshlrev_b32 v{aTA}, 7, v{TT+4}")
E(f"v_lshl_add_u32 v{aTA}, v{TT+3}, 3, v{aTA}")
E(f"v_lshl_add_u32 v{aTA}, v{TT+5}, 5, v{aTA}")
E("s_waitcnt vmcnt(0)")
E("s_barrier")
stamp(2)
for s in range(16):
    for e in range(2):
        E(f"ds_read_b64_tr_b16 {vr(WA+4*s+2*e,2)}, v{aTA} offset:{32768*e+1024*s}")
E(f"v_lshl_add_u32 v{aTB}, v3, 3, v{TT+2}")
E(f"v_lshlrev_b32 v{aTB}, 7, v{aTB}")
E(f"v_lshl_add_u32 v{aTB}, v{TT+3}, 3, v{aTB}")
E(f"s_add_u32 s{sT2}, s{sT2}, {WB_LDS}")
E(f"v_add_u32 v{aTB}, s{sT2}, v{aTB}")
E(f"v_min_u32 v{aIN}, 6, v2")
E(f"v_lshlrev_b32 v{aIN}, 6, v{aIN}")
E(f"v_lshl_add_u32 v{aIN}, v3, 4, v{aIN}")
E(f"v_readfirstlane_b32 s{sTAG}, v241")
E(f"s_add_u32 s{sPubG}, s{sPubG}, {W_Z}")
E(f"s_mov_b32 s{sZoff}, {W_Z}")
E(f"s_lshl_b32 s{sT1}, s{sPJ}, 5")
E(f"s_add_u32 s{sPub}, s{sLOC}, s{sT1}")
srd(R_B, sOUT, None, 1024)
E(f"s_add_u32 s{sTAG}, s{sTAG}, 1")
for s in range(16):
    E(f"s_waitcnt lgkmcnt({min(15, 30-2*s)})")
    c = "0" if s == 0 else vr(CA,4)
    E(f"v_mfma_f32_16x16x32_bf16 {vr(CA,4)}, {vr(ONESB,4)}, {vr(WA+4*s,4)}, {c}")
E(f"v_mov_b32 v{vT}, 0")
E("s_nop 6")
E(f"v_mov_b32 v{vCS}, v{CA}")
L("L_D1_q")
mark("d1")
matvec(16, XB, WA, stats_fillers())
xgroup_sum()
E(f"s_cmp_eq_u32 s{sLAY}, 0")
E("s_cbranch_scc1 L_D1_qfirst")
E(f"v_cvt_pk_bf16_f32 v{vT}, v{vT}, v{vT}")
E(f"v_min_u32 v{vT}, -2, v{vT}")
pub2("buffer_store_short", f"v{vT}", aP16, sPub, sMA_f, sMA_s, W_Q)
stamp(3, True)
pub_resid(W_X2)
L("L_D1_act")
mark("d1")
AIN = vST
arm(AIN, 4)
E(f"v_mov_b32 v{vT}, 0")
gather1("ga", AIN, aIN, sLOC, W_ACT, TT)
stamp(4, True)
E(f"buffer_load_dwordx4 {vr(CA,4)}, v{vL16}, {WSR}, s{sLOC} offen offset:{W_X1} sc1")
matvec(7, AIN, WB, [], per=1)
y_publish()
stamp(5, True)
E(f"s_add_u32 s{sLAY}, s{sLAY}, 1")
E(f"s_cmp_lt_u32 s{sLAY}, 2")
E("s_cbranch_scc1 L_D1_z")
E(f"s_cmp_lg_u32 s2, 128")
E("s_cbranch_scc1 L_D1_end")
E(f"s_cmp_lg_u32 s{sWV}, 0")
E("s_cbranch_scc1 L_D1_end")
L("L_D1_z")
mark("d1")
def pre_z():
    E("s_waitcnt vmcnt(1)")
    chk_bf16(CA, TT)
    E("s_cbranch_vccz L_gx1_have")
    gather1("gx1", CA, vL16, sLOC, W_X1, TT, pd=1, slp=0)
    L("L_gx1_have")
    unpack_resid(CA)
def relay_z():
    E(f"v_mov_b32 v{vT}, 0")
    E(f"s_cmp_lg_u32 s{sWV}, 0")
    E(f"s_cbranch_scc1 L_gz_other")
    pre_z()
    gather_X("gz", sZoff, "d1")
    E(f"s_cmp_eq_u32 s{sLAY}, 2")
    E("s_cbranch_scc1 L_D1_out")
    E(f"ds_write_b128 v{aXS}, {vr(XB,4)}")
    E("s_waitcnt lgkmcnt(0)")
    E("s_barrier")
    E(f"s_branch L_gz_join")
    L(f"L_gz_other")
    E("s_waitcnt vmcnt(0)")
    E("s_barrier")
    E(f"ds_read_b128 {vr(XB,4)}, v{aXS}")
    E("s_waitcnt lgkmcnt(0)")
    L("L_gz_join")
relay_z()
stamp(6)
for s_ in (sLOC, sPub, sPubG, sZoff):
    E(f"s_add_u32 s{s_}, s{s_}, {LS}")
E("s_branch L_D1_q")
L("L_D1_out")
E(f"buffer_store_dwordx2 {vr(XB,2)}, v{aXIO}, s[{R_B}:{R_B+3}], 0 offen")
E(f"buffer_store_dwordx2 {vr(XB+2,2)}, v{aXIO}, s[{R_B}:{R_B+3}], 0 offen offset:512")
E(f"v_mov_b32 v{TT}, s{sTAG}")
E(f"v_mov_b32 v{TT+1}, {W_EP}")
E("s_mov_b64 exec, 1")
E(f"buffer_store_dword v{TT}, v{TT+1}, {WSR}, 0 offen")
if PROF:
    stamp(7)
    E("s_waitcnt vmcnt(0)")
    stamp(8)
L("L_D1_end")
stamp_flush(0, 0, (128, 4, [60, 2, 3, 4, 6, 20, 8]))
E("s_endpgm")
L("L_D1_qfirst")
D0 = GB + 12
E("s_nop 0")
E(f"v_mov_b32_dpp v{TT+5}, v{vT} quad_perm:[1,1,3,3] row_mask:0xf bank_mask:0xf")
E(f"v_mov_b32 v{D0+1}, s{sTAG}")
E(f"v_cvt_pk_bf16_f32 v{D0}, v{vT}, v{TT+5}")
E(f"s_lshl_b32 s{sT1}, s{sPJ}, 6")
E(f"v_lshl_add_u32 v{TT+6}, v2, 2, s{sT1}")
E("s_mov_b64 exec, 0x5555")
E(f"buffer_store_dwordx2 {vr(D0,2)}, v{TT+6}, {WSR}, s{sQ0} offen")
E("s_mov_b64 exec, -1")
stamp(3, True)
E(f"v_mov_b32 v{TT+7}, 0")
E(f"buffer_load_dword v{GB+20}, v{TT+7}, s[{R_B}:{R_B+3}], 0 offen")
E("s_barrier")
read_mode("0xffff")
E(f"s_mov_b32 s{sT1}, 0x5555")
E(f"s_cmp_eq_u32 s{sMODE}, 1")
E(f"s_cselect_b32 exec_lo, 0, s{sT1}")
E("s_mov_b32 exec_hi, 0")
E(f"buffer_store_dwordx2 {vr(D0,2)}, v{TT+6}, {WSR}, s{sQ0B} offen sc1")
E("s_mov_b64 exec, -1")
E("s_barrier")
for s in range(7):
    for e in range(2):
        E(f"ds_read_b64_tr_b16 {vr(WB+4*s+2*e,2)}, v{aTB} offset:{4096*s+512*e}")
E("s_waitcnt lgkmcnt(0)")
E("s_branch L_D1_act")
L("L_D1_help")
E(f"s_mul_i32 s{sT0}, s{sG}, {224*1024}")
E(f"s_lshl_b32 s{sT1}, s{sC}, 7")
E(f"s_add_u32 s{sT0}, s{sT0}, s{sT1}")
srd(R_B, sW2, f"s{sT0}", 224*1024 - 896)
E("v_lshlrev_b32 v244, 10, v242")
E("v_lshl_add_u32 v244, v243, 4, v244")
E(f"s_cmp_eq_u32 s{sWV}, 4")
E("s_cbranch_scc1 L_D1_ctl")
warm("d1", NM["d1"])
E("s_branch L_D1_bq")
L("L_D1_ctl")
E(f"v_lshlrev_b32 v{cT}, 7, v2")
E(f"buffer_load_dword v240, v{cT}, {WSR}, s{sQ0} offen sc1")
ctl_head()
xc_publish()
L("L_D1_bq")
E("s_barrier")
E(f"s_cmp_lg_u32 s{sWV}, 4")
E("s_cbranch_scc1 L_D1_w2")
first_gather("d1x", False, None)
stamp(3)
E(f"v_lshlrev_b32 v{cT}, 3, v1")
E(f"s_cmp_eq_u32 s{sMODE}, 1")
E("s_cbranch_scc0 L_D1_b2")
L("L_D1_st")
E(f"buffer_load_dword v{cT+1}, v{cT}, {WSR}, s{sLOC} offen offset:{W_ST} sc1")
E("s_waitcnt vmcnt(0)")
E(f"v_cmp_ne_u32 vcc, -1, v{cT+1}")
E("s_cbranch_vccnz L_D1_b2")
E("s_sleep 8")
spin_check("L_D1_st")
L("L_D1_b2")
E("s_waitcnt lgkmcnt(0)")
L("L_D1_w2")
E("s_barrier")
E(f"s_sub_u32 s{sT0}, s{sWV}, 4")
E(f"s_mul_i32 s{sT1}, s{sT0}, 7168")
E(f"s_add_u32 m0, s{sT1}, {WB_LDS}")
E(f"s_mul_i32 s{sT1}, s{sT0}, {56*1024}")
for i in range(7):
    E(f"buffer_load_dwordx4 v244, s[{R_B}:{R_B+3}], s{sT1} offen nt lds")
    if i < 6:
        E("s_add_u32 m0, m0, 1024")
        E(f"s_add_u32 s{sT1}, s{sT1}, 8192")
E("s_waitcnt vmcnt(0) lgkmcnt(0)")
stamp(4)
E("s_barrier")
stamp_flush(4, 1)
E("s_endpgm")

L("L_D2_init")
E(f"s_lshl_b32 s{sT0}, s{sG}, 19")
E(f"s_lshl_b32 s{sT1}, s{sC}, 7")
E(f"s_add_u32 s{sT0}, s{sT0}, s{sT1}")
E(f"s_sub_u32 s{sT3}, {4194304}, s{sT0}")
srd(R_A, sWO, f"s{sT0}", f"s{sT3}")
E(f"s_min_u32 s{sT1}, s{sC}, 6")
E(f"s_lshl_b32 s{sT1}, s{sT1}, 6")
E(f"s_mul_i32 s{sT0}, s{sG}, 448")
E(f"s_add_u32 s{sS1}, s{sT0}, s{sT1}")
E(f"s_sub_u32 s{sT3}, {1835008}, s{sS1}")
srd(R_B, sW1, f"s{sS1}", f"s{sT3}")
def d2_clear(sc, alt):
    for r in range(4): E(f"v_mov_b32 v{cG+r}, -1")
    E(f"s_lshl_b32 s{sT1}, s{sC}, 11")
    E(f"s_add_u32 s{sT1}, s{sT1}, s{sPoff}")
    if alt: E(f"s_add_u32 s{sT1}, s{sT1}, {ALT}")
    E(f"s_add_u32 s{sT2}, s{sT1}, {LS}")
    for so in (sT1, sT2):
        for o in range(2):
            E(f"buffer_store_dwordx4 {vr(cG,4)}, v{cL16}, {WSR}, s{so} offen offset:{1024*o}{sc}")
    E(f"s_mov_b32 s{sT1}, {LS}")
    E(f"v_lshrrev_b32 v{cT}, 5, v1")
    E(f"v_mul_lo_u32 v{cT}, v{cT}, s{sT1}")
    E(f"v_and_b32 v{cT+1}, 31, v1")
    E(f"v_lshl_add_u32 v{cT}, v{cT+1}, 4, v{cT}")
    E(f"s_lshl_b32 s{sT1}, s{sC}, 9")
    E(f"s_add_u32 s{sT1}, s{sT1}, s{sLOC}")
    if alt: E(f"s_add_u32 s{sT1}, s{sT1}, {ALT}")
    E(f"buffer_store_dwordx4 {vr(cG,4)}, v{cT}, {WSR}, s{sT1} offen{sc}")
srd(R_C, sDBG, None, 256)
E(f"s_cmp_lt_u32 s{sWV}, 4")
E("s_cbranch_scc1 L_D2_comp")
E(f"s_cmp_eq_u32 s{sWV}, 4")
E("s_cbranch_scc1 L_D2_ctl")
warm("d2", NM["d2"])
if LATE0 == 2: E("s_barrier")
E("s_branch L_D2_bw")
L("L_D2_ctl")
d2_clear("", False)
clear_global()
ctl_head()
stamp(1)
xc_publish()
first_gather("d2x", False, lambda: d2_clear(" sc1", True))
stamp(2)
E(f"s_lshl_b32 s{sT1}, s{sG}, 5")
E(f"v_mov_b32 v{cT}, 1")
E(f"v_mov_b32 v{cT+1}, s{sT1}")
E(f"s_cmp_eq_u32 s{sC}, 0")
E("s_cselect_b32 exec_lo, 1, 0")
E("s_mov_b32 exec_hi, 0")
E(f"buffer_store_dword v{cT}, v{cT+1}, s[{R_C}:{R_C+3}], 0 offen sc1")
E("s_mov_b64 exec, -1")
if LATE0 == 2: E("s_barrier")
stamp(3)
E("s_waitcnt lgkmcnt(0)")
L("L_D2_bw")
E("v_lshrrev_b32 v245, 2, v1")
E("v_mul_u32_u24 v245, 3584, v245")
E("v_and_b32 v246, 3, v1")
E("v_and_b32 v247, 1, v3")
E("v_xor_b32 v246, v246, v247")
E("v_lshl_add_u32 v244, v246, 4, v245")
E("v_xor_b32 v246, 2, v246")
E("v_lshl_add_u32 v245, v246, 4, v245")
E(f"s_sub_u32 s{sT0}, s{sWV}, 4")
E(f"s_lshl_b32 s{sT1}, s{sT0}, 13")
E(f"s_add_u32 m0, s{sT1}, {WB_LDS}")
E(f"s_mul_i32 s{sT1}, s{sT0}, {128*3584}")
E("s_barrier")
E(f"s_cmp_lg_u32 s{sWV}, 4")
E("s_cbranch_scc1 L_D2_bo")
E(f"v_lshlrev_b32 v{cT+2}, 5, v1")
E("s_mov_b64 exec, 0xff")
L("L_D2_fpoll")
E(f"buffer_load_dword v{cT+3}, v{cT+2}, s[{R_C}:{R_C+3}], 0 offen sc1")
E("s_waitcnt vmcnt(0)")
E(f"v_cmp_ne_u32 vcc, 1, v{cT+3}")
E("s_cbranch_vccz L_D2_fok")
E("s_sleep 2")
spin_check("L_D2_fpoll")
L("L_D2_fok")
E("s_mov_b64 exec, -1")
L("L_D2_bo")
E("s_barrier")
for i in range(8):
    E(f"buffer_load_dwordx4 v{244 + i//4}, s[{R_B}:{R_B+3}], s{sT1} offen nt lds")
    if i < 7:
        E("s_add_u32 m0, m0, 1024")
        E(f"s_add_u32 s{sT1}, s{sT1}, {16*3584}")
E("s_waitcnt vmcnt(0)")
stamp(4)
E("s_barrier")
stamp_flush(4, 1)
E("s_endpgm")
L("L_D2_comp")
E("v_and_b32 v245, 2, v242")
E("v_xor_b32 v245, v245, v243")
E(f"s_and_b32 s{sT1}, s{sWV}, 1")
E(f"s_lshl_b32 s{sT1}, s{sT1}, 2")
E(f"v_xor_b32 v245, s{sT1}, v245")
E("v_lshlrev_b32 v244, 10, v242")
E("v_lshl_add_u32 v244, v245, 4, v244")
E(f"s_lshl_b32 s{sT0}, s{sWV}, 14")
E(f"s_mov_b32 m0, s{sT0}")
E(f"s_lshl_b32 s{sT1}, s{sWV}, 17")
if LATE0 == 1: E("s_waitcnt vmcnt(0)")
if LATE0 == 2: E("s_barrier")
for i in range(16):
    E(f"buffer_load_dwordx4 v244, s[{R_A}:{R_A+3}], s{sT1} offen nt lds")
    if i < 15:
        E("s_add_u32 m0, m0, 1024")
        E(f"s_add_u32 s{sT1}, s{sT1}, 8192")
srd(R_C, sB1, None, 3584)
E(f"v_and_b32 v{TT+5}, 7, v2")
E(f"v_lshlrev_b32 v{TT+5}, 1, v{TT+5}")
E(f"s_lshl_b32 s{sT1}, s{sWV}, 4")
E(f"s_add_u32 s{sT0}, s{sS1}, s{sT1}")
E(f"buffer_load_ushort v{vB1}, v{TT+5}, s[{R_C}:{R_C+3}], s{sT0} offen")
E(f"v_lshrrev_b32 v{TT+5}, 1, v{TT+2}")
E(f"v_lshl_add_u32 v{TT+5}, v{TT+1}, 1, v{TT+5}")
E(f"v_xor_b32 v{TT+5}, s{sWV}, v{TT+5}")
E(f"v_lshl_add_u32 v{aTA}, v3, 7, v{TT+2}")
E(f"v_lshlrev_b32 v{aTA}, 7, v{aTA}")
E(f"v_lshl_add_u32 v{aTA}, v{TT+3}, 3, v{aTA}")
E(f"v_lshl_add_u32 v{aTA}, v{TT+5}, 5, v{aTA}")
E(f"v_bfe_u32 v{TT+5}, v2, 1, 1")
E(f"v_lshl_add_u32 v{TT+6}, v{TT+5}, 6, v{TT+4}")
E(f"v_lshl_add_u32 v{TT+5}, v{TT+5}, 1, v{TT+1}")
E(f"v_xor_b32 v{TT+5}, s{sWV}, v{TT+5}")
E(f"v_lshlrev_b32 v{aTB}, 6, v{TT+6}")
E(f"v_lshl_add_u32 v{aTB}, v{TT+5}, 4, v{aTB}")
E(f"v_and_b32 v{TT+5}, 1, v2")
E(f"v_lshl_add_u32 v{aTB}, v{TT+5}, 3, v{aTB}")
E(f"v_add_u32 v{aTB}, {WB_LDS}, v{aTB}")
E(f"s_lshl_b32 s{sT1}, s{sWV}, 7")
E(f"v_lshlrev_b32 v{aST}, 5, v3")
E(f"v_add_u32 v{aST}, s{sT1}, v{aST}")
E(f"v_lshlrev_b32 v{aOS}, 4, v2")
E(f"v_lshl_add_u32 v{aOS}, v{TT+1}, 3, v{aOS}")
E(f"v_lshl_add_u32 v{aOS}, v{TT}, 2, v{aOS}")
E(f"s_lshl_b32 s{sT1}, s{sWV}, 8")
E(f"s_add_u32 s{sT1}, s{sT1}, {OS_LDS}")
E(f"v_add_u32 v{aOS}, s{sT1}, v{aOS}")
E(f"v_add_u32 v{aIN}, {OS_LDS}, v{vL16}")
E(f"v_lshlrev_b32 v{TT+5}, 4, v{TT+5}")
E(f"v_mov_b32 v{TT+6}, 0xffff")
E(f"v_lshlrev_b32 v{TT+6}, v{TT+5}, v{TT+6}")
E(f"v_bfe_u32 v{TT+7}, v2, 1, 2")
for d in range(4):
    E(f"v_cmp_eq_u32 vcc, {d}, v{TT+7}")
    E("s_nop 1")
    E(f"v_cndmask_b32 v{MK+d}, 0, v{TT+6}, vcc")
E(f"v_lshrrev_b32 v{vFLG}, 3, v2")
E(f"v_cmp_eq_u32 vcc, v{vFLG}, v{TT}")
E(f"v_cvt_f32_u32 v{vFLG}, v{vFLG}")
E("s_nop 0")
E(f"v_cndmask_b32 v{vVAL}, 0, -1, vcc")
E(f"s_lshl_b32 s{sT1}, s{sWV}, 12")
E(f"s_add_u32 s{sPoff}, s{sPoff}, s{sT1}")
E(f"s_lshl_b32 s{sT1}, s{sPJ}, 4")
E(f"s_add_u32 s{sPub}, s{sLOC}, s{sT1}")
E(f"s_add_u32 s{sPubG}, s{sPubG}, {W_Y}")
E(f"s_mov_b32 s{sYoff}, {W_Y}")
E(f"s_mov_b32 s{sC2}, 0")
E("s_waitcnt vmcnt(0)")
unpack_resid(XB)
E(f"v_lshlrev_b32 v{vB1}, 16, v{vB1}")
stamp(1)
E("s_barrier")
stamp(2)
for s in range(16):
    for e in range(2):
        E(f"ds_read_b64_tr_b16 {vr(WA+4*s+2*e,2)}, v{aTA} offset:{1024*s+512*e}")
read_mode("0xff")
E(f"s_cmp_lt_u32 s{sC}, 7")
E(f"s_cselect_b32 s{sMA_f}, s{sMA_f}, 0")
E(f"s_cselect_b32 s{sMA_s}, s{sMA_s}, 0")
L("L_D2_loop")
mark("d2")
def p_loads():
    for i in range(4):
        E(f"buffer_load_dwordx4 {vr(GB+4*i,4)}, v{vL16}, {WSR}, s{sPoff} offen offset:{1024*i} sc1")
arm(vST, 8)
p_loads()
L("L_gs_poll")
E(f"buffer_load_dwordx4 {vr(vST,4)}, v{aST}, {WSR}, s{sLOC} offen offset:{W_ST} sc1")
E(f"buffer_load_dwordx4 {vr(vST+4,4)}, v{aST}, {WSR}, s{sLOC} offen offset:{W_ST+16} sc1")
E(f"s_waitcnt vmcnt({2*(PD-1)})")
E(f"v_max3_u32 v{TT}, v{vST}, v{vST+1}, v{vST+2}")
E(f"v_max3_u32 v{TT+1}, v{vST+3}, v{vST+4}, v{vST+5}")
E(f"v_max3_u32 v{TT}, v{TT}, v{vST+6}, v{vST+7}")
E(f"v_max_u32 v{TT}, v{TT}, v{TT+1}")
E(f"v_cmp_eq_u32 vcc, -1, v{TT}")
E("s_cbranch_vccz L_gs_ok")
if SLP: E(f"s_sleep {SLP}")
spin_check("L_gs_poll")
L("L_gs_ok")
p_loads()
stamp(3, True)
vM, vU, vLs = TT, TT+1, TT+2
WT = TT + 3
AW = GB + 16
E(f"v_max3_f32 v{vM}, v{vST}, v{vST+2}, v{vST+4}")
E(f"v_max_f32 v{vM}, v{vM}, v{vST+6}")
for sw in ("16", "32"):
    E(f"v_mov_b32 v{vU}, v{vM}")
    E("s_nop 1")
    E(f"v_permlane{sw}_swap_b32 v{vM}, v{vU}")
    E(f"v_max_f32 v{vM}, v{vM}, v{vU}")
for t in range(4): E(f"v_sub_f32 v{WT+t}, v{vST+2*t}, v{vM}")
for t in range(4): E(f"v_exp_f32 v{WT+t}, v{WT+t}")
E("s_nop 0")
E(f"v_mul_f32 v{vLs}, v{WT}, v{vST+1}")
for t in range(1, 4): E(f"v_fmac_f32 v{vLs}, v{WT+t}, v{vST+2*t+1}")
for sw in ("16", "32"):
    E(f"v_mov_b32 v{vU}, v{vLs}")
    E("s_nop 1")
    E(f"v_permlane{sw}_swap_b32 v{vLs}, v{vU}")
    E(f"v_add_f32 v{vLs}, v{vLs}, v{vU}")
E(f"v_rcp_f32 v{vLs}, v{vLs}")
p_loads()
for t in range(4): E(f"v_mul_f32 v{WT+t}, v{WT+t}, v{vLs}")
for t in range(4): E(f"v_cvt_pk_bf16_f32 v{WT+4+t}, v{WT+t}, v{WT+t}")
for t in range(4): E(f"v_and_b32 v{WT+4+t}, 0xffff0000, v{WT+4+t}")
for t in range(4): E(f"v_fma_f32 v{WT+t}, -v{WT+4+t}, v{vFLG}, v{WT+t}")
for t in range(4): E(f"v_cvt_pk_bf16_f32 v{WT+t}, v{WT+t}, v{WT+t}")
for t in range(4):
    for d in range(4): E(f"v_and_b32 v{AW+4*t+d}, v{MK+d}, v{WT+t}")
E("s_branch L_gp_use")
L("L_gp_nan")
E(f"s_sub_u32 s{sSPIN}, s{sSPIN}, 1")
E("s_cbranch_scc1 L_exit")
E(f"s_and_b32 s{sT1}, s{sSPIN}, 15")
E("s_cbranch_scc0 L_gp_retry")
L("L_gp_again")
p_loads()
L("L_gp_use")
E("s_waitcnt vmcnt(4)")
for t in range(4):
    E(f"v_mfma_f32_16x16x32_bf16 {vr(CA,4)}, {vr(AW+4*t,4)}, {vr(GB+4*t,4)}, {'0' if t == 0 else vr(CA,4)}")
E("s_nop 7")
E(f"v_cmp_u_f32 vcc, v{CA}, v{CA}")
E(f"v_permlane32_swap_b32 v{CA}, v{CA+2}")
E(f"v_permlane32_swap_b32 v{CA+1}, v{CA+3}")
E("s_cbranch_vccnz L_gp_nan")
L("L_gp_ok")
E(f"v_add_f32 v{CA}, v{CA}, v{CA+2}")
E(f"v_add_f32 v{CA+1}, v{CA+1}, v{CA+3}")
E(f"v_cvt_pk_bf16_f32 v{CA}, v{CA}, v{CA+1}")
E(f"ds_write_b32 v{aOS}, v{CA}")
E(f"v_mov_b32 v{vT}, 0")
stamp(4, True)
mark("d2")
E("s_waitcnt lgkmcnt(0)")
E("s_barrier")
E(f"ds_read_b128 {vr(XB,4)}, v{aIN}")
E(f"buffer_load_dwordx4 {vr(CA,4)}, v{vL16}, {WSR}, s{sLOC} offen offset:{W_X2} sc1")
E("s_waitcnt lgkmcnt(0)")
matvec(16, XB, WA, [], per=1)
y_publish()
stamp(5, True)
mark("d2")
def w1_setup(tag):
    E(f"s_cmp_lg_u32 s{sC2}, 0")
    E(f"s_cbranch_scc1 L_D2_havew1{tag}")
    E(f"s_mov_b32 s{sC2}, 1")
    E("s_barrier")
    for s in range(8):
        for e in range(2):
            E(f"ds_read_b64_tr_b16 {vr(WB+4*s+2*e,2)}, v{aTB} offset:{16384*e+512*s}")
    for s in range(8):
        E(f"s_waitcnt lgkmcnt({14-2*s})")
        c = "0" if s == 0 else vr(ACC,4)
        E(f"v_mfma_f32_16x16x32_bf16 {vr(ACC,4)}, {vr(ONESB,4)}, {vr(WB+4*s,4)}, {c}")
    E("s_nop 7")
    E(f"v_add_f32_dpp v{vCS}, v{ACC}, v{ACC} row_ror:8 row_mask:0xf bank_mask:0xf")
    L(f"L_D2_havew1{tag}")
def pre_y():
    E(f"s_cmp_eq_u32 s{sLAY}, 0")
    E("s_cbranch_scc1 L_D2_havex")
    E("s_waitcnt vmcnt(1)")
    chk_bf16(CA, TT)
    E("s_cbranch_vccz L_gx2_have")
    gather1("gx2", CA, vL16, sLOC, W_X2, TT, pd=1, slp=0)
    L("L_gx2_have")
    unpack_resid(CA)
    L("L_D2_havex")
relay_X("gy", sYoff, pre_y)
stamp(6, True)
mark("d2")
matvec(8, XB, WB, stats_fillers(), rows=[(0x5, 0xf, [0,1,2,3]), (0xa, 0xf, [4,5,6,7])], per=PER+2)
mark("d2")
xgroup_sum(True)
h, u, a, b = vT, TT+5, TT+6, TT+7
E(f"v_add_f32 v{h}, v{h}, v{vB1}")
E(f"v_mul_f32 v{u}, s{sC3}, |v{h}|")
E(f"v_exp_f32 v{u}, v{u}")
E(f"v_cmp_le_f32 vcc, 0, v{h}")
E(f"v_add_f32 v{b}, 2.0, v{u}")
E(f"v_fma_f32 v{a}, v{u}, 2.0, 1.0")
E(f"v_mul_f32 v{b}, v{u}, v{b}")
E(f"v_mul_f32 v{u}, v{u}, v{u}")
E(f"v_cndmask_b32 v{a}, v{b}, v{a}, vcc")
E(f"v_cndmask_b32 v{u}, 1.0, v{u}, vcc")
E(f"v_fma_f32 v{b}, v{u}, 2.0, v{a}")
E(f"v_rcp_f32 v{b}, v{b}")
E(f"v_mul_f32 v{h}, v{h}, v{a}")
E(f"v_mul_f32 v{h}, v{h}, v{b}")
E(f"v_cvt_pk_bf16_f32 v{h}, v{h}, v{h}")
E(f"v_min_u32 v{h}, -2, v{h}")
pub2("buffer_store_short", f"v{h}", aP16, sPub, sMA_f, sMA_s, W_ACT)
stamp(7, True)
pub_resid(W_X1)
for s_ in (sLOC, sPoff, sPub, sPubG, sYoff):
    E(f"s_add_u32 s{s_}, s{s_}, {LS}")
E(f"s_add_u32 s{sLAY}, s{sLAY}, 1")
E(f"s_cmp_lt_u32 s{sLAY}, 2")
E("s_cbranch_scc1 L_D2_loop")
stamp_flush(0, 0)
L("L_exit")
E("s_endpgm")
L("L_gp_retry")
for i in range(0, 16, 2): E(f"v_pk_max_u16 v{ACC+i//2}, v{GB+i}, v{GB+i+1}")
for i in range(0, 8, 2): E(f"v_pk_max_u16 v{ACC+i//2}, v{ACC+i}, v{ACC+i+1}")
chk_bf16(ACC, TT)
E("s_cbranch_vccnz L_gp_again")
for t in range(4):
    E(f"v_mfma_f32_16x16x32_bf16 {vr(CA,4)}, {vr(AW+4*t,4)}, {vr(GB+4*t,4)}, {'0' if t == 0 else vr(CA,4)}")
E("s_nop 9")
E(f"v_permlane32_swap_b32 v{CA}, v{CA+2}")
E(f"v_permlane32_swap_b32 v{CA+1}, v{CA+3}")
E("s_branch L_gp_ok")
for b_ in retry_blocks: b_()
L("L_wret")
E(f"s_setpc_b64 s[{sRET}:{sRET+1}]")
for r_, n_ in NM.items(): assert not WARM or len(marks[r_]) == n_, (r_, len(marks[r_]))

out.append('.section .rodata,"a"')
out.append(".p2align 6")
out.append(f".amdhsa_kernel {NAME}_kernel")
out.append("  .amdhsa_next_free_vgpr 256")
out.append("  .amdhsa_next_free_sgpr 96")
out.append("  .amdhsa_accum_offset 256")
out.append("  .amdhsa_group_segment_fixed_size 0")
out.append("  .amdhsa_kernarg_size 96")
out.append("  .amdhsa_user_sgpr_count 2")
out.append("  .amdhsa_user_sgpr_kernarg_segment_ptr 1")
out.append("  .amdhsa_system_sgpr_workgroup_id_x 1")
out.append("  .amdhsa_float_denorm_mode_32 3")
out.append(".end_amdhsa_kernel")
open(sys.argv[1], "w").write("\n".join(out) + "\n")
```

```python
import sys, math, struct
PROF = int(sys.argv[2]) if len(sys.argv) > 2 else 0
OPT = dict(a.split("=") for a in sys.argv[3:])
THR = int(OPT.get("thr", 6))
ACK = int(OPT.get("ack", 1))
PER = int(OPT.get("per", 3))
PD = int(OPT.get("pd", 4))
SLP = int(OPT.get("slp", 1))
LATE0 = int(OPT.get("late0", 2))
GP = int(OPT.get("gp", 1))
GSL = int(OPT.get("gsl", 0))
THV = int(OPT.get("thv", 8))
GD = int(OPT.get("gd", 0))
fl = lambda k, d: {"0": "", "1": " nt", "2": " sc1", "3": " sc0 sc1", "4": " sc1 nt"}[OPT.get(k, d)]
NTQ, NTW, NTK, NTV = fl("ntq", "1"), fl("ntw", "1"), fl("ntk", "1"), fl("ntv", "1")
TQ = int(OPT.get("tq", 1))
WARM = int(OPT.get("warm", 1))
NTT = fl("ntt", "1")
NAME = "interleave_layers__sliding_block_cached__dense_activation_mish__decode"
out = []
def E(s=""): out.append("    " + s)
def L(s): out.append(s + ":")
def vr(a, n=1): return f"v{a}" if n == 1 else f"v[{a}:{a+n-1}]"
def f32(x): return hex(struct.unpack("<I", struct.pack("<f", x))[0])

K_LDS, V_LDS = 0, 65536
WA_LDS, WB_LDS = 0, 65536
QS_LDS, PX_LDS, SX_LDS, FL_LDS = 131072, 132096, 140288, 141312
OS_LDS, XS_LDS = QS_LDS, PX_LDS
LDS_BYTES = 141824
LS = 0x30000
W_Q, W_X2, W_X1, W_ST, W_ACT = 0, 1024, 2048, 3072, 3584
W_Y, W_Z, W_P = 32768, 40960, 65536
W_Q0 = 2 * LS
W_Q0B = 32768
W_EP = W_Q0 + 65536
ALT = 0x80000
WS_USED = ALT + 2 * LS
PROF_OFF = 0x300000
WS_REC = PROF_OFF + 256 * 1024

sX, sK, sV, sWQ, sWO, sBX, sW1, sB1 = 8, 10, 12, 14, 16, 18, 20, 22
sW2, sOUT, sDBG, sWS = 24, 26, 28, 30
sG, sJ, sWV, sC, sPJ = 3, 4, 5, 6, 7
R_WS, R_A, R_B, R_C = 32, 36, 40, 44
sT0, sT1, sT2, sT3 = 48, 49, 50, 51
sLOC, sLAY = 52, 53
sYoff, sZoff, sPoff = 54, 55, 56
sSPIN = 57
sRET = 58
sMA_f, sMA_s, sMB_f, sMB_s, sMC_f, sMC_s = 60, 62, 64, 66, 68, 70
sTAG, sXCC, sQ0, sQ0B = 72, 73, 74, 75
sFFFE = 76
sC1, sC2, sC3 = 77, 78, 79
sS1, sS2, sPIV = 80, 81, 82
sPub, sPubG = 83, 84
sST = 88
sPe, sLe, sMODE = 90, 91, 92
SPIN0 = 0x200000
WSR = f"s[{R_WS}:{R_WS+3}]"

def srd(r, base, add_lo=None, rec=None):
    if add_lo is None:
        E(f"s_mov_b32 s{r}, s{base}")
        E(f"s_and_b32 s{r+1}, s{base+1}, 0xffff")
    else:
        E(f"s_add_u32 s{r}, s{base}, {add_lo}")
        E(f"s_addc_u32 s{r+1}, s{base+1}, 0")
        E(f"s_and_b32 s{r+1}, s{r+1}, 0xffff")
    E(f"s_mov_b32 s{r+2}, {rec}")
    E(f"s_mov_b32 s{r+3}, 0x00020000")

V_STAMP = 254
ROLE = ["a"]
def stamp(idx, layer_dep=False):
    if not PROF: return
    if PROF == 9 and not (idx == 8 and not layer_dep) and not (idx == 6 and layer_dep and ROLE[0] == "a"): return
    E(f"s_memrealtime s[{sST}:{sST+1}]")
    E("s_waitcnt lgkmcnt(0)")
    if layer_dep:
        E(f"s_lshl_b32 s{sT3}, s{sLAY}, 4")
        E(f"s_add_u32 s{sT3}, s{sT3}, {idx}")
        E(f"s_mov_b32 m0, s{sT3}")
        E("s_nop 0")
        E(f"v_writelane_b32 v{V_STAMP}, s{sST}, m0")
    else:
        E(f"v_writelane_b32 v{V_STAMP}, s{sST}, {idx}")
def stamp_flush(wave, slot, dbg=None):
    if not PROF: return
    E(f"s_cmp_lg_u32 s{sWV}, {wave}")
    E("s_cbranch_scc1 L_exit")
    E("s_mov_b64 exec, -1")
    if dbg and "dbg" in OPT:
        wg, off, idx = dbg
        for i, x in enumerate(idx):
            E(f"v_readlane_b32 s{sT0}, v{V_STAMP}, {x}")
            E("s_nop 3")
            E(f"v_writelane_b32 v{V_STAMP-2}, s{sT0}, {i}")
        srd(R_A, sDBG, None, 256)
        E(f"v_lshlrev_b32 v{V_STAMP-1}, 2, v1")
        E(f"s_cmp_eq_u32 s2, {wg}")
        E(f"s_cselect_b32 exec_lo, {(1 << len(idx)) - 1}, 0")
        E("s_mov_b32 exec_hi, 0")
        E(f"buffer_store_dword v{V_STAMP-2}, v{V_STAMP-1}, s[{R_A}:{R_A+3}], 0 offen offset:{off}")
        E("s_mov_b64 exec, -1")
    E(f"s_lshl_b32 s{sT0}, s2, 10")
    E(f"s_add_u32 s{sT0}, s{sT0}, {PROF_OFF + slot*256}")
    E(f"v_lshlrev_b32 v{V_STAMP-1}, 2, v1")
    E(f"buffer_store_dword v{V_STAMP}, v{V_STAMP-1}, {WSR}, s{sT0} offen")

marks = {}
def mark(role):
    if not WARM: return
    l = marks.setdefault(role, [])
    l.append(f"L_wm_{role}{len(l)}")
    L(l[-1])
    E("s_cbranch_execz L_wret")
def warm(role, n, first=0, step=1):
    if not WARM: return
    E("s_mov_b64 exec, 0")
    for i in range(first, n, step):
        E(f"s_call_b64 s[{sRET}:{sRET+1}], L_wm_{role}{i}")
    E("s_mov_b64 exec, -1")
NM = {"a": 2, "d1": 4, "d2": 6}

def spin_check(fail_label):
    E(f"s_sub_u32 s{sSPIN}, s{sSPIN}, 1")
    E(f"s_cbranch_scc1 L_exit")
    E(f"s_branch {fail_label}")

def chk_bf16(v, t):
    E(f"v_pk_max_u16 v{t}, v{v}, v{v+1}")
    E(f"v_pk_max_u16 v{t+1}, v{v+2}, v{v+3}")
    E(f"v_pk_max_u16 v{t}, v{t}, v{t+1}")
    E(f"v_pk_max_u16 v{t}, v{t}, v{t} op_sel:[0,1] op_sel_hi:[1,0]")
    E(f"v_cmp_eq_u32 vcc, -1, v{t}")

def pub2(op, data, addr, soff, mf, ms, imm=0):
    o = f" offset:{imm}" if imm else ""
    E(f"s_mov_b64 exec, s[{mf}:{mf+1}]")
    E(f"{op} {data}, v{addr}, {WSR}, s{soff} offen{o}")
    E(f"s_mov_b64 exec, s[{ms}:{ms+1}]")
    E(f"{op} {data}, v{addr}, {WSR}, s{soff} offen{o} sc1")
    E("s_mov_b64 exec, -1")

def masks(mf, ms, lo, hi):
    E(f"s_cselect_b32 s{mf}, {lo}, 0")
    E(f"s_cselect_b32 s{mf+1}, {hi}, 0")
    E(f"s_cselect_b32 s{ms}, 0, {lo}")
    E(f"s_cselect_b32 s{ms+1}, 0, {hi}")

def arm(dst, n):
    for r in range(n): E(f"v_mov_b32 v{dst+r}, -1")

def gather1(tag, dst, addr, soff, imm, t, pd=None, slp=None):
    pd = PD if pd is None else pd
    slp = SLP if slp is None else slp
    L(f"L_{tag}_poll")
    E(f"buffer_load_dwordx4 {vr(dst,4)}, v{addr}, {WSR}, s{soff} offen offset:{imm} sc1")
    E(f"s_waitcnt vmcnt({pd-1})")
    chk_bf16(dst, t)
    E(f"s_cbranch_vccz L_{tag}_ok")
    if slp: E(f"s_sleep {slp}")
    spin_check(f"L_{tag}_poll")
    L(f"L_{tag}_ok")

cD, cA, cXa, cG, cT, cL16 = 208, 210, 211, 212, 224, 232
def xc_publish():
    E(f"s_getreg_b32 s{sXCC}, hwreg(HW_REG_XCC_ID, 0, 4)")
    E(f"v_mov_b32 v{cD+1}, s{sTAG}")
    E(f"s_lshl_b32 s{sT3}, s{sJ}, 3")
    E(f"v_mov_b32 v{cD}, s{sXCC}")
    E(f"v_mov_b32 v{cA}, s{sT3}")
    E("s_mov_b64 exec, 1")
    E(f"buffer_store_dwordx2 {vr(cD,2)}, v{cA}, {WSR}, s{sQ0} offen offset:2048")
    E("s_mov_b64 exec, -1")

def first_gather(tag, with_q, clear_alt):
    regs = (1, 3, 5, 7, 9) if with_q else (9,)
    nl = 3 if with_q else 1
    E(f"s_sub_u32 s{sS2}, s{sSPIN}, 160")
    E(f"v_and_b32 v{cXa}, 31, v1")
    E(f"v_lshlrev_b32 v{cXa}, 3, v{cXa}")
    E(f"s_not_b32 s{sT1}, s{sTAG}")
    for r in regs: E(f"v_mov_b32 v{cG+r}, s{sT1}")
    def loads(so):
        if with_q:
            E(f"buffer_load_dwordx4 {vr(cG,4)}, v{cL16}, {WSR}, s{so} offen sc1")
            E(f"buffer_load_dwordx4 {vr(cG+4,4)}, v{cL16}, {WSR}, s{so} offen offset:1024 sc1")
        E(f"buffer_load_dwordx2 {vr(cG+8,2)}, v{cXa}, {WSR}, s{so} offen offset:2048 sc1")
    def check():
        if with_q:
            for i, r in enumerate(regs): E(f"v_xor_b32 v{cT+i}, s{sTAG}, v{cG+r}")
            E(f"v_or3_b32 v{cT}, v{cT}, v{cT+1}, v{cT+2}")
            E(f"v_or3_b32 v{cT}, v{cT}, v{cT+3}, v{cT+4}")
            E(f"v_cmp_ne_u32 vcc, 0, v{cT}")
        else:
            E(f"v_cmp_ne_u32 vcc, s{sTAG}, v{cG+9}")
    def copy_b():
        E("s_mov_b64 exec, 1")
        E(f"buffer_store_dwordx2 {vr(cD,2)}, v{cA}, {WSR}, s{sQ0B} offen offset:2048 sc1")
        E("s_mov_b64 exec, -1")
    L(f"L_{tag}_poll")
    loads(sQ0)
    E(f"s_waitcnt vmcnt({min(nl*6, 60)})")
    check()
    E(f"s_cbranch_vccz L_{tag}_seen")
    E("s_sleep 3")
    E(f"s_cmp_gt_u32 s{sSPIN}, s{sS2}")
    E(f"s_cbranch_scc0 L_{tag}_b")
    spin_check(f"L_{tag}_poll")
    L(f"L_{tag}_b")
    copy_b()
    L(f"L_{tag}_alt")
    for so in (sQ0B, sQ0):
        loads(so)
        E("s_waitcnt vmcnt(0)")
        check()
        E(f"s_cbranch_vccz L_{tag}_ok")
    spin_check(f"L_{tag}_alt")
    L(f"L_{tag}_seen")
    E("s_nop 15")
    L(f"L_{tag}_ok")
    if with_q:
        E(f"v_lshlrev_b32 v{cT+1}, 3, v1")
        E(f"v_add_u32 v{cT+1}, {QS_LDS}, v{cT+1}")
        E(f"ds_write2_b32 v{cT+1}, v{cG}, v{cG+2} offset0:0 offset1:1")
        E(f"ds_write2_b32 v{cT+1}, v{cG+4}, v{cG+6} offset0:128 offset1:129")
    E(f"v_cmp_ne_u32 vcc, s{sXCC}, v{cG+8}")
    E("s_nop 3")
    if OPT.get("slow") == "1": E("s_mov_b64 vcc, -1")
    E("s_cmp_eq_u64 vcc, 0")
    E(f"s_cselect_b32 s{sMODE}, 1, 0")
    E(f"s_cbranch_scc1 L_{tag}_done")
    E("s_waitcnt vmcnt(0) lgkmcnt(0)")
    copy_b()
    if clear_alt: clear_alt()
    if clear_alt:
        E("s_waitcnt vmcnt(0)")
        E("s_mov_b64 exec, 1")
        E(f"buffer_store_dwordx2 {vr(cD,2)}, v{cA}, {WSR}, s{sQ0B} offen offset:2560 sc1")
        E("s_mov_b64 exec, -1")
    E(f"v_and_b32 v{cXa}, 56, v{cXa}")
    E(f"v_add_u32 v{cXa}, 192, v{cXa}")
    L(f"L_{tag}_h")
    E(f"buffer_load_dwordx2 {vr(cG+8,2)}, v{cXa}, {WSR}, s{sQ0B} offen offset:2560 sc1")
    E("s_waitcnt vmcnt(0)")
    E(f"v_cmp_ne_u32 vcc, s{sTAG}, v{cG+9}")
    E(f"s_cbranch_vccz L_{tag}_done")
    spin_check(f"L_{tag}_h")
    L(f"L_{tag}_done")
    E(f"v_mov_b32 v{cT+2}, {FL_LDS}")
    E(f"v_mov_b32 v{cT+3}, s{sMODE}")
    E(f"ds_write_b32 v{cT+2}, v{cT+3}")

hdr = open("cdna_kernels/" + NAME + ".s.ref").read().split("; Override")[0]
out.append(hdr.rstrip("\n"))
out.append(f"; @launch grid=(256,1,1) block=(512,1,1) lds={LDS_BYTES}")
out.append('.amdgcn_target "amdgcn-amd-amdhsa--gfx950"')
out.append(".text")
out.append(f".globl {NAME}_kernel")
out.append(".p2align 8")
out.append(f".type {NAME}_kernel,@function")
L(f"{NAME}_kernel")
E("s_cmp_ge_u32 s2, 256")
E("s_cbranch_scc1 L_exit")
E("s_load_dwordx16 s[8:23], s[0:1], 0")
E("s_load_dwordx8 s[24:31], s[0:1], 64")
if PROF:
    E(f"v_mov_b32 v{V_STAMP}, 0")
    E(f"s_memrealtime s[{sST}:{sST+1}]")
E("v_lshrrev_b32 v1, 6, v0")
E(f"s_and_b32 s{sG}, s2, 7")
E(f"v_readfirstlane_b32 s{sWV}, v1")
E(f"s_lshr_b32 s{sJ}, s2, 3")
E("v_and_b32 v1, 63, v0")
E("v_and_b32 v2, 15, v0")
E("v_lshrrev_b32 v3, 4, v1")
E(f"s_mov_b32 s{sSPIN}, {SPIN0}")
E(f"s_mov_b32 s{sLAY}, 0")
E(f"s_lshl_b32 s{sLOC}, s{sG}, 12")
E(f"s_lshl_b32 s{sPoff}, s{sG}, 14")
E(f"s_add_u32 s{sPoff}, s{sPoff}, {W_P}")
E(f"s_add_u32 s{sQ0}, s{sLOC}, {W_Q0}")
E(f"s_add_u32 s{sQ0B}, s{sQ0}, {W_Q0B}")
E("v_lshrrev_b32 v5, 3, v1")
E("v_and_b32 v6, 7, v1")
E("v_lshlrev_b32 v4, 13, v5")
E("v_lshl_add_u32 v4, v6, 7, v4")
E(f"s_lshl_b32 s{sT0}, s{sJ}, 17")
E(f"s_lshl_b32 s{sT1}, s{sG}, 10")
E(f"s_add_u32 s{sT0}, s{sT0}, s{sT1}")
E(f"s_sub_u32 s{sT1}, s{sWV}, 1")
E(f"s_lshl_b32 s{sT2}, s{sT1}, 16")
E(f"s_add_u32 s{sT0}, s{sT0}, s{sT2}")
E(f"s_mov_b32 s{sT2}, {W_EP}")
E("v_mov_b32 v7, 0")
E(f"s_cmp_lt_u32 s{sT1}, 2")
E("s_waitcnt lgkmcnt(0)")
E("s_cbranch_scc0 L_notouch")
srd(R_C, sWQ, None, 4194304)
if TQ: E(f"buffer_load_dword v240, v4, s[{R_C}:{R_C+3}], s{sT0} offen{NTQ}")
L("L_notouch")
srd(R_WS, sWS, None, WS_REC if PROF else WS_USED)
E(f"buffer_load_dword v241, v7, {WSR}, s{sT2} offen sc1")
if PROF: E(f"v_writelane_b32 v{V_STAMP}, s{sST}, 60")
E(f"v_mov_b32 v{cA}, 0")
E(f"v_lshlrev_b32 v{cL16}, 4, v1")
E(f"s_cmp_ge_u32 s{sJ}, 16")
E("s_cbranch_scc1 L_D_init")

E(f"s_lshl_b32 s{sT0}, s{sG}, 24")
E(f"s_lshl_b32 s{sT1}, s{sJ}, 16")
E(f"s_add_u32 s{sT0}, s{sT0}, s{sT1}")
E(f"s_add_u32 s{sT0}, s{sT0}, {61440*256}")
srd(R_A, sK, f"s{sT0}", 65536)
srd(R_B, sV, f"s{sT0}", 65536)
E("v_xor_b32 v4, v2, v3")
E("v_lshlrev_b32 v4, 4, v4")
E("v_lshl_add_u32 v4, v3, 8, v4")
E("v_lshlrev_b32 v5, 1, v3")
E("v_xor_b32 v5, v2, v5")
E("v_lshlrev_b32 v5, 4, v5")
E("v_lshl_add_u32 v5, v3, 8, v5")
E(f"s_add_u32 s{sC1}, s{sJ}, s{sG}")
E(f"s_cmp_ge_u32 s{sWV}, 4")
E("s_cbranch_scc1 L_A_help")
E(f"s_lshl_b32 s{sT0}, s{sWV}, 14")
for i in range(16):
    E(f"s_add_u32 s{sT1}, s{sC1}, {i}")
    E(f"s_and_b32 s{sT1}, s{sT1}, 15")
    E(f"s_and_b32 s{sT2}, s{sT1}, 3")
    E(f"s_lshl_b32 s{sT2}, s{sT2}, 6")
    E(f"s_lshl_b32 s{sT1}, s{sT1}, 10")
    E(f"s_add_u32 s{sT1}, s{sT1}, s{sT0}")
    E(f"s_mov_b32 m0, s{sT1}")
    E(f"v_xor_b32 v6, s{sT2}, v4")
    if i >= THR: E(f"s_waitcnt vmcnt({THR-1})")
    E(f"buffer_load_dwordx4 v6, s[{R_A}:{R_A+3}], s{sT1} offen{NTK} lds")
stamp(1)
KF, VF, QF, SC, PB, OD, OUTV, PF, STT = 16, 80, 144, 160, 176, 144, 176, 184, 216
T = 224
E("v_xor_b32 v4, v2, v3")
E("v_lshlrev_b32 v4, 4, v4")
E("v_lshl_add_u32 v4, v2, 8, v4")
E(f"v_add_u32 v4, s{sT0}, v4")
E("v_xor_b32 v5, 64, v4")
E("v_xor_b32 v6, 0x80, v4")
E("v_xor_b32 v7, 0xc0, v4")
E("v_and_b32 v15, 3, v2")
E("v_lshlrev_b32 v8, 8, v15")
E("v_lshl_add_u32 v8, v3, 4, v8")
E(f"v_add_u32 v8, {QS_LDS}, v8")
E("v_lshlrev_b32 v10, 4, v1")
E(f"v_add_u32 v10, {PX_LDS}, v10")
E(f"s_lshl_b32 s{sT1}, s{sWV}, 11")
E(f"v_add_u32 v9, s{sT1}, v10")
E("v_lshlrev_b32 v12, 5, v2")
E(f"v_add_u32 v12, {SX_LDS}, v12")
E(f"s_lshl_b32 s{sT1}, s{sWV}, 3")
E(f"v_add_u32 v11, s{sT1}, v12")
E("v_lshlrev_b32 v13, 12, v15")
E("v_lshl_add_u32 v13, v3, 3, v13")
E("v_bfe_u32 v14, v2, 2, 1")
E("v_lshl_add_u32 v13, v14, 5, v13")
E(f"s_lshl_b32 s{sT1}, s{sWV}, 6")
E(f"v_add_u32 v13, s{sT1}, v13")
E(f"v_cmp_eq_u32 s[{sMC_f}:{sMC_f+1}], 1, v14")
E(f"v_lshlrev_b32 v14, 7, v15")
E(f"v_lshrrev_b32 v{T}, 2, v2")
E(f"v_lshl_add_u32 v{T}, v3, 2, v{T}")
E(f"v_and_b32 v{T+1}, 7, v{T}")
E(f"s_lshl_b32 s{sT1}, s{sWV}, 1")
E(f"v_xor_b32 v{T+1}, s{sT1}, v{T+1}")
E(f"v_lshlrev_b32 v{T}, 8, v{T}")
E(f"v_lshl_add_u32 v{T}, v{T+1}, 5, v{T}")
E(f"v_lshl_add_u32 v{T}, v15, 3, v{T}")
E(f"v_add_u32 v{T}, {V_LDS}, v{T}")
E(f"v_xor_b32 v{T+1}, 32, v{T}")
E(f"s_lshl_b32 s{sT1}, s{sJ}, 8")
E(f"s_add_u32 s{sPoff}, s{sPoff}, s{sT1}")
E(f"s_and_b32 s{sT1}, s{sJ}, 3")
E(f"s_lshl_b32 s{sT1}, s{sT1}, 5")
E(f"s_lshr_b32 s{sT2}, s{sJ}, 2")
E(f"s_lshl_b32 s{sT2}, s{sT2}, 3")
E(f"s_add_u32 s{sT1}, s{sT1}, s{sT2}")
E(f"s_add_u32 s{sPub}, s{sT1}, {W_ST}")
E(f"s_mov_b32 s{sC1}, {f32((128**-0.5)*math.log2(math.e))}")
E(f"s_mov_b32 s{sFFFE}, 0xfffefffe")
E(f"v_mov_b32 v{T+2}, {FL_LDS}")
E(f"v_mov_b32 v{T+8}, s{sC1}")
E(f"s_cmp_eq_u32 s{sWV}, 0")
E(f"s_cselect_b32 s{sC2}, 15, 0")
E(f"s_mov_b32 s{sMB_f+1}, 0")
E(f"s_mov_b32 s{sMB_s+1}, 0")
E("s_waitcnt vmcnt(0)")
stamp(2)
for e in range(4):
    for s in range(4):
        E(f"ds_read_b128 {vr(KF+(e*4+s)*4,4)}, v{4+s} offset:{4096*e}")
L("L_A_b1")
mark("a")
E("s_barrier")
for s in range(4):
    E(f"ds_read_b128 {vr(QF+4*s,4)}, v8 offset:{64*s}")
stamp(3, True)
def qk(e, s):
    c = "0" if s == 0 else vr(SC+4*e,4)
    E(f"v_mfma_f32_16x16x32_bf16 {vr(SC+4*e,4)}, {vr(KF+(e*4+s)*4,4)}, {vr(QF+4*s,4)}, {c}")
for s in range(4):
    E(f"s_waitcnt lgkmcnt({3-s})")
    qk(0, s); qk(1, s)
for s in range(4):
    qk(2, s); qk(3, s)
E(f"v_max3_f32 v{T+4}, v{SC}, v{SC+1}, v{SC+2}")
E(f"v_max3_f32 v{T+5}, v{SC+3}, v{SC+4}, v{SC+5}")
E(f"v_max3_f32 v{T+4}, v{T+4}, v{SC+6}, v{SC+7}")
E("s_nop 3")
E(f"v_max3_f32 v{T+5}, v{T+5}, v{SC+8}, v{SC+9}")
E(f"v_max3_f32 v{T+4}, v{T+4}, v{SC+10}, v{SC+11}")
E(f"v_max3_f32 v{T+5}, v{T+5}, v{SC+12}, v{SC+13}")
E(f"v_max3_f32 v{T+4}, v{T+4}, v{SC+14}, v{SC+15}")
E(f"v_max_f32 v{T+4}, v{T+4}, v{T+5}")
E(f"v_mov_b32 v{T+5}, v{T+4}")
E("s_nop 1")
E(f"v_permlane16_swap_b32 v{T+4}, v{T+5}")
E(f"v_max_f32 v{T+4}, v{T+4}, v{T+5}")
E(f"v_mov_b32 v{T+5}, v{T+4}")
E("s_nop 1")
E(f"v_permlane32_swap_b32 v{T+4}, v{T+5}")
E(f"v_max_f32 v{T+4}, v{T+4}, v{T+5}")
E(f"v_mul_f32 v{T+6}, s{sC1}, v{T+4}")
for i in range(8):
    E(f"v_pk_fma_f32 {vr(SC+2*i,2)}, {vr(SC+2*i,2)}, {vr(T+8,2)}, {vr(T+6,2)} op_sel_hi:[1,0,0] neg_lo:[0,0,1] neg_hi:[0,0,1]")
for i in range(8):
    E(f"v_exp_f32 v{SC+i}, v{SC+i}")
E(f"v_exp_f32 v{SC+8}, v{SC+8}")
for i in range(4):
    E(f"v_cvt_pk_bf16_f32 v{PB+i}, v{SC+2*i}, v{SC+2*i+1}")
E(f"ds_write_b128 v9, {vr(PB,4)}")
for i in range(9, 16):
    E(f"v_exp_f32 v{SC+i}, v{SC+i}")
E(f"v_add_f32 v{T+7}, v{SC}, v{SC+1}")
for i in range(4, 8):
    E(f"v_cvt_pk_bf16_f32 v{PB+i}, v{SC+2*i}, v{SC+2*i+1}")
E(f"ds_write_b128 v9, {vr(PB+4,4)} offset:1024")
for i in range(4):
    E(f"v_pk_add_f32 {vr(SC+2+ 0,2) if False else vr(SC+4*i,2)}, {vr(SC+4*i,2)}, {vr(SC+4*i+2,2)}")
E(f"v_pk_add_f32 {vr(SC,2)}, {vr(SC,2)}, {vr(SC+4,2)}")
E(f"v_pk_add_f32 {vr(SC+8,2)}, {vr(SC+8,2)}, {vr(SC+12,2)}")
E(f"v_pk_add_f32 {vr(SC,2)}, {vr(SC,2)}, {vr(SC+8,2)}")
E(f"v_add_f32 v{T+7}, v{SC}, v{SC+1}")
E(f"v_mov_b32 v{T+5}, v{T+7}")
E("s_nop 1")
E(f"v_permlane16_swap_b32 v{T+7}, v{T+5}")
E(f"v_add_f32 v{T+7}, v{T+7}, v{T+5}")
E(f"v_mov_b32 v{T+5}, v{T+7}")
E("s_nop 1")
E(f"v_permlane32_swap_b32 v{T+7}, v{T+5}")
E(f"v_add_f32 v{T+7}, v{T+7}, v{T+5}")
E(f"ds_write_b64 v11, {vr(T+6,2)}")
stamp(4, True)
mark("a")
E("s_waitcnt lgkmcnt(0)")
E("s_barrier")
E(f"ds_read_b32 v{T+3}, v{T+2}")
for b in range(2):
    E(f"ds_read_b128 {vr(STT+4*b,4)}, v12 offset:{16*b}")
for b in range(8):
    E(f"ds_read_b128 {vr(PF+4*b,4)}, v10 offset:{1024*b}")
stamp(5, True)
E(f"s_cmp_lg_u32 s{sLAY}, 0")
E("s_cbranch_scc1 L_A_havev")
for tp in range(2):
    for b in range(8):
        for e in range(2):
            E(f"ds_read_b64_tr_b16 {vr(VF+(tp*8+b)*4+2*e,2)}, v{T+tp} offset:{(32*b+16*e)*256}")
E("s_waitcnt lgkmcnt(0)")
L("L_A_havev")
E("s_waitcnt lgkmcnt(8)")
F = STT
va = [f"v_max3_f32 v{T+4}, v{STT}, v{STT+2}, v{STT+4}", f"v_max_f32 v{T+6}, v{T+4}, v{STT+6}"]
va += [f"v_sub_f32 v{F+2*b}, v{STT+2*b}, v{T+6}" for b in range(4)]
va += [f"v_exp_f32 v{F+2*b}, v{F+2*b}" for b in range(4)]
va += [f"v_mul_f32 v{T+7}, v{F}, v{STT+1}"] + [f"v_fmac_f32 v{T+7}, v{F+2*b}, v{STT+2*b+1}" for b in range(1, 4)]
E(f"v_readfirstlane_b32 s{sMODE}, v{T+3}")
for x in va[:2]: E(x)
sa = [f"s_cmp_eq_u32 s{sMODE}, 1", f"s_cselect_b32 s{sMB_f}, s{sC2}, 0", f"s_cselect_b32 s{sMB_s}, 0, s{sC2}",
      f"s_cselect_b32 s{sMA_f}, 0x00ff00ff, 0", f"s_cselect_b32 s{sMA_f+1}, 0x00ff00ff, 0", f"s_cselect_b32 s{sMA_s}, 0, 0x00ff00ff",
      f"s_cselect_b32 s{sMA_s+1}, 0, 0x00ff00ff", f"s_cselect_b32 s{sT2}, 0, {ALT}", f"s_add_u32 s{sPe}, s{sPoff}, s{sT2}",
      f"s_add_u32 s{sT2}, s{sLOC}, s{sT2}", f"s_add_u32 s{sT2}, s{sT2}, s{sPub}"]
k = 2
for u in range(8):
    E(f"s_waitcnt lgkmcnt({7-u})")
    for tp in range(2):
        d = vr(OD+(tp*4+u//2)*4,4)
        E(f"v_mfma_f32_16x16x32_bf16 {d}, {vr(VF+(tp*8+u)*4,4)}, {vr(PF+4*u,4)}, {'0' if u % 2 == 0 else d}")
        if k < len(va): E(va[k]); k += 1
        if sa and u >= 1: E(sa.pop(0)); E(sa.pop(0)) if sa else None
    if u == 5:
        assert k == len(va)
        pub2("buffer_store_dwordx2", vr(T+6,2), 14, sT2, sMB_f, sMB_s)
def cb(b):
    for tp in range(2):
        for h in range(2):
            o = vr(OUTV+4*tp+2*h,2)
            if b == 0: E(f"v_pk_mul_f32 {o}, {vr(OD+tp*16+2*h,2)}, {vr(F,2)} op_sel_hi:[1,0]")
            else: E(f"v_pk_fma_f32 {o}, {vr(OD+(tp*4+b)*4+2*h,2)}, {vr(F+2*b,2)}, {o} op_sel_hi:[1,0,1]")
for b in range(4): cb(b)
for r in range(4):
    E(f"v_cndmask_b32 v{OUTV+r}, v{OUTV+r}, v{OUTV+4+r}, s[{sMC_f}:{sMC_f+1}]")
E(f"v_cvt_pk_bf16_f32 v{OUTV}, v{OUTV}, v{OUTV+1}")
E(f"v_cvt_pk_bf16_f32 v{OUTV+1}, v{OUTV+2}, v{OUTV+3}")
E(f"v_pk_min_u16 v{OUTV}, v{OUTV}, s{sFFFE}")
E(f"v_pk_min_u16 v{OUTV+1}, v{OUTV+1}, s{sFFFE}")
pub2("buffer_store_dwordx2", vr(OUTV,2), 13, sPe, sMA_f, sMA_s)
stamp(6, True)
E(f"s_add_u32 s{sPoff}, s{sPoff}, {LS}")
E(f"s_add_u32 s{sLOC}, s{sLOC}, {LS}")
E(f"s_add_u32 s{sLAY}, s{sLAY}, 1")
E(f"s_cmp_lt_u32 s{sLAY}, 2")
E("s_cbranch_scc1 L_A_b1")
stamp_flush(0, 0, (int(OPT.get("dbg", 0)), 36, [60, 2, 3, 5, 6, 19, 22]))
E("s_endpgm")
L("L_A_help")
E(f"s_cmp_eq_u32 s{sWV}, 4")
E("s_cbranch_scc1 L_A_ctl")
E(f"s_sub_u32 s{sT0}, s{sWV}, 5")
E(f"s_lshl_b32 s{sC1}, s{sC1}, 2")
E(f"s_mov_b32 s{sT3}, 0")
L("L_A_vl")
E(f"s_add_u32 s{sT1}, s{sC1}, s{sT0}")
E(f"s_and_b32 s{sT1}, s{sT1}, 63")
E(f"s_and_b32 s{sT2}, s{sT1}, 1")
E(f"s_lshl_b32 s{sT2}, s{sT2}, 7")
E(f"s_lshl_b32 s{sT1}, s{sT1}, 10")
E(f"s_add_u32 m0, s{sT1}, {V_LDS}")
E(f"v_xor_b32 v6, s{sT2}, v5")
E(f"s_waitcnt vmcnt({THV-1})")
E(f"buffer_load_dwordx4 v6, s[{R_B}:{R_B+3}], s{sT1} offen{NTV} lds")
E(f"s_add_u32 s{sT0}, s{sT0}, 3")
E(f"s_cmp_lt_u32 s{sT0}, 64")
E("s_cbranch_scc1 L_A_vl")
stamp(1)
E(f"s_cmp_eq_u32 s{sWV}, 5")
E("s_cbranch_scc0 L_A_pf2")
srd(R_C, sW1, None, 1835008)
E(f"s_mul_i32 s{sT1}, s{sJ}, {32*3584}")
E(f"s_mul_i32 s{sT2}, s{sG}, 448")
E(f"s_add_u32 s{sT1}, s{sT1}, s{sT2}")
E(f"s_add_u32 s{sT2}, s{sT1}, {16*3584}")
E("v_mul_u32_u24 v6, 3584, v2")
E("v_mul_u32_u24 v7, 0x94, v3")
E("v_add_u32 v6, v6, v7")
E("s_branch L_A_pf")
L("L_A_pf2")
E(f"s_mul_i32 s{sT1}, s{sG}, {224*1024}")
E(f"s_mul_i32 s{sT2}, s{sJ}, 14336")
E(f"s_add_u32 s{sT1}, s{sT1}, s{sT2}")
E(f"s_cmp_eq_u32 s{sWV}, 6")
E(f"s_cselect_b32 s{sT3}, 14336, 0")
srd(R_C, sW2, f"s{sT1}", f"s{sT3}")
E(f"s_mov_b32 s{sT1}, 0")
E(f"s_mov_b32 s{sT2}, 8192")
E("v_lshlrev_b32 v6, 7, v1")
L("L_A_pf")
E(f"buffer_load_dword v240, v6, s[{R_C}:{R_C+3}], s{sT1} offen{NTT}")
E(f"buffer_load_dword v240, v6, s[{R_C}:{R_C+3}], s{sT2} offen{NTT}")
warm("a", NM["a"])
E("s_barrier")
E("s_waitcnt vmcnt(2)")
stamp(2)
E("s_barrier")
stamp_flush(5, 2)
E("s_endpgm")
L("L_A_ctl")
E("s_waitcnt vmcnt(0)")
E(f"v_readfirstlane_b32 s{sTAG}, v241")
E("s_nop 3")
E(f"s_add_u32 s{sTAG}, s{sTAG}, 1")
xc_publish()
first_gather("aq0", True, None)
stamp(2)
E("s_waitcnt lgkmcnt(0)")
E("s_barrier")
E(f"s_cmp_eq_u32 s{sMODE}, 1")
E(f"s_cselect_b32 s{sT2}, 0, {ALT}")
E(f"s_add_u32 s{sLe}, s{sLOC}, s{sT2}")
E(f"s_add_u32 s{sLe}, s{sLe}, {LS}")
E(f"v_add_u32 v{cT+2}, {QS_LDS}, v{cL16}")
E("s_barrier")
E("s_waitcnt vmcnt(0)")
arm(cG, 4)
gather1("aq", cG, cL16, sLe, W_Q, cT)
E(f"ds_write_b128 v{cT+2}, {vr(cG,4)}")
stamp(18)
E("s_waitcnt lgkmcnt(0)")
E("s_barrier")
stamp_flush(4, 1)
E("s_endpgm")

vL16, aXIO, aTA, aTB, aIN, aST, aP16, aPY, vONE, aOS, aXS = 4, 5, 6, 7, 8, 9, 10, 11, 12, 13, 14
SEL0, ONESB, XR, XN, XB, vT = 16, 24, 28, 36, 44, 48
TT = 49
vB1, vCS, aGX, vINV, vVAL = 15, 0, 249, 250, 252
GB, WA, ACC, WB = 64, 96, 160, 192
vST, CA, MK, vFLG = 224, 232, 236, 248
NACC = 8

retry_blocks = []
def gather_X(tag, soff, role, hook=None):
    def loads():
        for i in range(8):
            so = soff if i < 4 else sT0
            E(f"buffer_load_dwordx4 {vr(GB+4*i,4)}, v{aGX}, {WSR}, s{so} offen offset:{256*(i%4)} sc1")
    def sums(wait):
        for i in range(8):
            if wait is not None: E(f"s_waitcnt vmcnt({wait + 7 - i})")
            e, w = (i % 4) // 2, i % 2
            c = vr(XR+4*e,4) if i in (0, 2) else vr(XN+4*e,4)
            E(f"v_mfma_f32_16x16x32_bf16 {vr(XN+4*e,4)}, {vr(SEL0+4*w,4)}, {vr(GB+4*i,4)}, {c}")
    E(f"s_add_u32 s{sT0}, s{soff}, 4096")
    if ACK: E("s_waitcnt vmcnt(0)")
    elif GD: E(f"s_sleep {GD}")
    if PROF == 2: stamp(9, True)
    for _ in range(GP - 1):
        loads()
        if GSL: E(f"s_sleep {GSL}")
    E(f"s_branch L_{tag}_again")
    L(f"L_{tag}_nan")
    E(f"s_sub_u32 s{sSPIN}, s{sSPIN}, 1")
    E("s_cbranch_scc1 L_exit")
    E(f"s_and_b32 s{sT1}, s{sSPIN}, 15")
    E(f"s_cbranch_scc0 L_{tag}_retry")
    if GSL: E(f"s_sleep {GSL}")
    L(f"L_{tag}_again")
    loads()
    if hook: hook()
    mark(role)
    sums(8 * (GP - 1))
    E("s_nop 6")
    E(f"v_cmp_u_f32 vcc, v{XN}, v{XN}")
    E(f"v_cmp_u_f32 s[{sS1}:{sS1+1}], v{XN+4}, v{XN+4}")
    for d in range(4):
        E(f"v_cvt_pk_bf16_f32 v{XB+d}, v{XN+2*d}, v{XN+2*d+1}")
    E(f"s_or_b64 vcc, vcc, s[{sS1}:{sS1+1}]")
    E(f"s_cbranch_vccnz L_{tag}_nan")
    L(f"L_{tag}_ok")
    if PROF == 2:
        stamp(11, True)
        E(f"s_mov_b32 s{sST}, s{sSPIN}")
    def blk():
        L(f"L_{tag}_retry")
        for i in range(16): E(f"v_pk_max_u16 v{ACC+i}, v{GB+2*i}, v{GB+2*i+1}")
        for i in range(8): E(f"v_pk_max_u16 v{ACC+i}, v{ACC+2*i}, v{ACC+2*i+1}")
        for i in range(4): E(f"v_pk_max_u16 v{ACC+i}, v{ACC+2*i}, v{ACC+2*i+1}")
        chk_bf16(ACC, TT)
        E(f"s_cbranch_vccnz L_{tag}_again")
        sums(None)
        E("s_nop 7")
        for d in range(4):
            E(f"v_cvt_pk_bf16_f32 v{XB+d}, v{XN+2*d}, v{XN+2*d+1}")
        E(f"s_branch L_{tag}_ok")
    retry_blocks.append(blk)

def relay_X(tag, soff, pre):
    E(f"v_mov_b32 v{vT}, 0")
    E(f"s_cmp_lg_u32 s{sWV}, 0")
    E(f"s_cbranch_scc1 L_{tag}_other")
    pre()
    gather_X(tag, soff, "d2", lambda: w1_setup("a"))
    E(f"ds_write_b128 v{aXS}, {vr(XB,4)}")
    post = f"L_{tag}_join"
    E("s_waitcnt lgkmcnt(0)")
    E("s_barrier")
    E(f"s_branch {post}")
    L(f"L_{tag}_other")
    w1_setup("b")
    E("s_waitcnt vmcnt(0)")
    E("s_barrier")
    E(f"ds_read_b128 {vr(XB,4)}, v{aXS}")
    E("s_waitcnt lgkmcnt(0)")
    L(post)

def unpack_resid(src):
    for d in range(4):
        E(f"v_lshlrev_b32 v{XR+2*d}, 16, v{src+d}")
        E(f"v_and_b32 v{XR+2*d+1}, 0xffff0000, v{src+d}")

def matvec(nsteps, A, W, fillers, rows=None, per=PER):
    if rows is None:
        rows = [(1 << G, 0xf, list(range(4*G, min(4*G+4, nsteps)))) for G in range((nsteps + 3) // 4)]
    acc = lambda s_: ACC + 4*(s_ % NACC)
    ext = []
    for (rm, bm, st_) in rows:
        dp = f"quad_perm:[0,1,2,3] row_mask:{hex(rm)} bank_mask:{hex(bm)}"
        a = lambda s_: f"v{acc(s_) + s_ % 4}"
        ext.append((st_[1], f"v_add_f32_dpp v{vT}, {a(st_[0])}, {a(st_[1])} {dp}"))
        for s_ in st_[2:]:
            ext.append((s_, f"v_add_f32_dpp v{vT}, {a(s_)}, v{vT} {dp}"))
    ext.sort(key=lambda e: e[0])
    st = dict(pos=0, lastT=-1)
    pm = {}
    def put(x, n=1):
        E(x); st["pos"] += n
    def need(e):
        if e[0] not in pm: return 99
        return max(pm[e[0]] + 9 - st["pos"], st["lastT"] + 3 - st["pos"], 0)
    fl = list(fillers)
    for s_ in range(nsteps):
        while ext and ext[0][0] <= s_ - NACC + 1 and s_ >= NACC:
            n = need(ext[0])
            if n: put(f"s_nop {n-1}", n)
            st["lastT"] = st["pos"]; put(ext.pop(0)[1])
        pm[s_] = st["pos"]
        put(f"v_mfma_f32_16x16x32_bf16 {vr(acc(s_),4)}, {vr(A,4)}, {vr(W+4*s_,4)}, 0")
        for _ in range(per):
            if ext and need(ext[0]) == 0:
                st["lastT"] = st["pos"]; put(ext.pop(0)[1])
            elif fl:
                put(fl.pop(0))
    while ext or fl:
        if ext and need(ext[0]) == 0:
            st["lastT"] = st["pos"]; put(ext.pop(0)[1])
        elif fl:
            put(fl.pop(0))
        else:
            n = need(ext[0]); put(f"s_nop {n-1}", n)

def stats_fillers():
    f = []
    for d in range(4):
        f.append(f"v_lshlrev_b32 v{XR+2*d}, 16, v{XB+d}")
        f.append(f"v_and_b32 v{XR+2*d+1}, 0xffff0000, v{XB+d}")
        if d == 0: f.append(f"v_readfirstlane_b32 s{sPIV}, v{XR}")
    D = XN
    for i in range(4):
        f.append(f"v_pk_add_f32 {vr(D+2*i,2)}, {vr(XR+2*i,2)}, s[{sPIV}:{sPIV+1}] op_sel_hi:[1,0] neg_lo:[0,1] neg_hi:[0,1]")
    a, b = TT+1, TT+3
    assert a % 2 == 0
    f.append(f"v_pk_add_f32 {vr(a,2)}, {vr(D,2)}, {vr(D+2,2)}")
    f.append(f"v_pk_mul_f32 {vr(b,2)}, {vr(D,2)}, {vr(D,2)}")
    for i in range(1, 4):
        f.append(f"v_pk_fma_f32 {vr(b,2)}, {vr(D+2*i,2)}, {vr(D+2*i,2)}, {vr(b,2)}")
        if i > 1: f.append(f"v_pk_add_f32 {vr(a,2)}, {vr(a,2)}, {vr(D+2*i,2)}")
    f.append(f"v_add_f32 v{b}, v{b}, v{b+1}")
    f.append(f"v_add_f32 v{a}, v{a}, v{a+1}")
    f.append("s_nop 0")
    for dp in ("quad_perm:[1,0,3,2] row_mask:0xf", "quad_perm:[2,3,0,1] row_mask:0xf", "row_half_mirror row_mask:0xf",
               "row_mirror row_mask:0xf", "row_bcast:15 row_mask:0xa", "row_bcast:31 row_mask:0xc"):
        f.append(f"v_add_f32_dpp v{b}, v{b}, v{b} {dp} bank_mask:0xf")
        f.append(f"v_add_f32_dpp v{a}, v{a}, v{a} {dp} bank_mask:0xf")
        f.append("s_nop 0")
    f.append(f"v_readlane_b32 s{sS2}, v{b}, 63")
    f.append(f"v_readlane_b32 s{sS1}, v{a}, 63")
    f.append(f"v_fma_f32 v{TT+3}, s{sS2}, v{vINV}, v{vINV+1}" if False else "s_nop 0")
    f.append(f"v_fma_f32 v{TT+3}, s{sS2}, v{vINV}, v{vINV+1}")
    f.append(f"v_mul_f32 v{TT+2}, s{sS1}, v{vINV}")
    f.append(f"v_fma_f32 v{TT+3}, -v{TT+2}, v{TT+2}, v{TT+3}")
    f.append(f"v_max_f32 v{TT+3}, v{vINV+1}, v{TT+3}")
    f.append(f"v_rsq_f32 v{TT+3}, v{TT+3}")
    f.append(f"v_add_f32 v{TT+2}, s{sPIV}, v{TT+2}")
    return f

def xgroup_sum(fold8=False):
    if fold8: E(f"v_and_b32 v{vT}, v{vVAL}, v{vT}")
    E(f"v_mov_b32 v{TT+5}, v{vT}")
    E("s_nop 1")
    E(f"v_permlane16_swap_b32 v{vT}, v{TT+5}")
    E(f"v_add_f32 v{vT}, v{vT}, v{TT+5}")
    E(f"v_mov_b32 v{TT+5}, v{vT}")
    E("s_nop 1")
    E(f"v_permlane32_swap_b32 v{vT}, v{TT+5}")
    E(f"v_add_f32 v{vT}, v{vT}, v{TT+5}")
    if fold8:
        E("s_nop 1")
        E(f"v_add_f32_dpp v{vT}, v{vT}, v{vT} row_ror:8 row_mask:0xf bank_mask:0xf")
    E(f"v_fma_f32 v{vT}, -v{TT+2}, v{vCS}, v{vT}")
    E(f"v_mul_f32 v{vT}, v{vT}, v{TT+3}")

def y_publish():
    Y = TT + 3
    assert Y % 4 == 0
    E("s_nop 1")
    E(f"v_mfma_f32_16x16x4_f32 {vr(Y,4)}, v{vT}, v{vONE}, 0")
    E("s_nop 9")
    E(f"v_cvt_pk_bf16_f32 v{Y+4}, v{Y}, v{Y+1}")
    E(f"v_cvt_pk_bf16_f32 v{Y+5}, v{Y+2}, v{Y+3}")
    E(f"v_pk_min_u16 v{Y+4}, v{Y+4}, s{sFFFE}")
    E(f"v_pk_min_u16 v{Y+5}, v{Y+5}, s{sFFFE}")
    E(f"v_mov_b32 v{Y+6}, v{Y+4}")
    E(f"v_mov_b32 v{Y+7}, v{Y+5}")
    E("s_nop 0")
    E(f"v_permlane16_swap_b32 v{Y+4}, v{Y+6}")
    E(f"v_permlane16_swap_b32 v{Y+5}, v{Y+7}")
    E("s_mov_b32 exec_lo, 1")
    E("s_mov_b32 exec_hi, 1")
    E(f"buffer_store_dwordx4 {vr(Y+4,4)}, v{aPY}, {WSR}, s{sPubG} offen sc1")
    E("s_mov_b64 exec, -1")

def pub_resid(off):
    for d in range(4): E(f"v_pk_min_u16 v{TT+7+d}, v{XB+d}, s{sFFFE}")
    pub2("buffer_store_dwordx4", vr(TT+7,4), vL16, sLOC, sMB_f, sMB_s, off)

def read_mode(lo_a):
    E(f"v_mov_b32 v{TT}, {FL_LDS}")
    E(f"ds_read_b32 v{TT+1}, v{TT}")
    E("s_waitcnt lgkmcnt(0)")
    E(f"v_readfirstlane_b32 s{sMODE}, v{TT+1}")
    E(f"s_cmp_eq_u32 s{sPJ}, 0")
    E(f"s_cselect_b32 s{sT1}, -1, 0")
    E("s_nop 2")
    E(f"s_cmp_eq_u32 s{sMODE}, 1")
    masks(sMA_f, sMA_s, lo_a, "0")
    masks(sMB_f, sMB_s, f"s{sT1}", f"s{sT1}")
    E(f"s_cselect_b32 s{sT1}, 0, {ALT}")
    for s_ in (sLOC, sPoff, sPub):
        E(f"s_add_u32 s{s_}, s{s_}, s{sT1}")

L("L_D_init")
ROLE[0] = "d"
E(f"s_and_b32 s{sC}, s{sJ}, 7")
E(f"s_lshl_b32 s{sPJ}, s{sC}, 2")
E(f"s_add_u32 s{sPJ}, s{sPJ}, s{sWV}")
E("v_lshrrev_b32 v242, 3, v1")
E("v_and_b32 v243, 7, v1")
srd(R_B, sX, None, 1024)
E(f"v_lshrrev_b32 v{TT}, 1, v3")
E(f"v_and_b32 v{TT+1}, 1, v3")
E(f"v_lshlrev_b32 v{aXIO}, 8, v{TT}")
E(f"v_lshl_add_u32 v{aXIO}, v2, 4, v{aXIO}")
E(f"v_lshl_add_u32 v{aXIO}, v{TT+1}, 3, v{aXIO}")
E(f"buffer_load_dwordx2 {vr(XB,2)}, v{aXIO}, s[{R_B}:{R_B+3}], 0 offen")
E(f"buffer_load_dwordx2 {vr(XB+2,2)}, v{aXIO}, s[{R_B}:{R_B+3}], 0 offen offset:512")
E(f"v_lshlrev_b32 v{vL16}, 4, v1")
E(f"v_lshrrev_b32 v{TT+2}, 2, v2")
E(f"v_and_b32 v{TT+3}, 3, v2")
E(f"v_lshl_add_u32 v{TT+4}, v{TT}, 7, v{TT+2}")
E(f"v_lshl_add_u32 v{TT+4}, v{TT+1}, 2, v{TT+4}")
E(f"v_lshlrev_b32 v{aP16}, 1, v2")
E(f"v_lshrrev_b32 v{aPY}, 5, v1")
E(f"v_lshlrev_b32 v{aPY}, 4, v{aPY}")
E(f"v_add_u32 v{aXS}, {XS_LDS}, v{vL16}")
E(f"v_mov_b32 v{vONE}, 1.0")
for d in range(4): E(f"v_mov_b32 v{ONESB+d}, 0x3f803f80")
E(f"v_and_b32 v{TT+5}, 1, v2")
E(f"v_lshlrev_b32 v{TT+5}, 4, v{TT+5}")
E(f"v_mov_b32 v{TT+6}, 0x3f80")
E(f"v_lshlrev_b32 v{TT+6}, v{TT+5}, v{TT+6}")
E(f"v_lshrrev_b32 v{TT+7}, 1, v2")
E(f"v_lshlrev_b32 v{aGX}, 10, v3")
E(f"v_lshl_add_u32 v{aGX}, v2, 4, v{aGX}")
for d in range(8):
    E(f"v_cmp_eq_u32 vcc, {d}, v{TT+7}")
    E("s_nop 1")
    E(f"v_cndmask_b32 v{SEL0+d}, 0, v{TT+6}, vcc")
E(f"s_mov_b32 s{sFFFE}, 0xfffefffe")
E(f"v_mov_b32 v{vINV}, {f32(1/512)}")
E(f"v_mov_b32 v{vINV+1}, {f32(1e-5)}")
E(f"s_mov_b32 s{sC3}, {f32(-math.log2(math.e))}")
E(f"s_lshl_b32 s{sT1}, s{sPJ}, 5")
E(f"s_lshl_b32 s{sPubG}, s{sG}, 10")
E(f"s_add_u32 s{sPubG}, s{sPubG}, s{sT1}")
E(f"s_lshl_b32 s{sT2}, s{sWV}, 5")
E(f"s_cmp_ge_u32 s{sJ}, 24")
E("s_cbranch_scc1 L_D2_init")

def ctl_head():
    E("s_waitcnt vmcnt(0)")
    E(f"v_readfirstlane_b32 s{sTAG}, v241")
    for r in range(4): E(f"v_mov_b32 v{cG+r}, -1")
    E(f"s_add_u32 s{sTAG}, s{sTAG}, 1")
def clear_global():
    E(f"s_mov_b32 s{sT1}, {LS}")
    E(f"v_lshrrev_b32 v{cT}, 3, v2")
    E(f"v_mul_lo_u32 v{cT}, v{cT}, s{sT1}")
    E(f"v_lshl_add_u32 v{cT}, v243, 4, v{cT}")
    E(f"v_lshl_add_u32 v{cT}, v3, 13, v{cT}")
    E(f"s_lshl_b32 s{sT1}, s{sG}, 10")
    E(f"s_lshl_b32 s{sT2}, s{sC}, 7")
    E(f"s_add_u32 s{sT1}, s{sT1}, s{sT2}")
    E(f"s_add_u32 s{sT1}, s{sT1}, {W_Y}")
    E("s_mov_b32 exec_hi, 0")
    E(f"buffer_store_dwordx4 {vr(cG,4)}, v{cT}, {WSR}, s{sT1} offen sc1")
    E("s_mov_b64 exec, -1")

E(f"s_lshl_b32 s{sT0}, s{sG}, 10")
E(f"s_lshl_b32 s{sT1}, s{sC}, 7")
E(f"s_add_u32 s{sT0}, s{sT0}, s{sT1}")
E(f"s_sub_u32 s{sT3}, {4194304}, s{sT0}")
srd(R_A, sWQ, f"s{sT0}", f"s{sT3}")
E("v_and_b32 v245, 6, v242")
E("v_xor_b32 v245, v245, v243")
E("v_lshlrev_b32 v244, 13, v242")
E("v_lshl_add_u32 v244, v245, 4, v244")
E(f"s_cmp_ge_u32 s{sWV}, 4")
E("s_cbranch_scc1 L_D1_help")
if TQ: E("s_waitcnt vmcnt(0)")
stamp(1)
E(f"s_lshl_b32 s{sT0}, s{sWV}, 14")
E(f"s_mov_b32 m0, s{sT0}")
E(f"s_lshl_b32 s{sT1}, s{sWV}, 20")
for i in range(16):
    E(f"buffer_load_dwordx4 v244, s[{R_A}:{R_A+3}], s{sT1} offen{NTW} lds")
    if i < 15:
        E("s_add_u32 m0, m0, 1024")
        E(f"s_add_u32 s{sT1}, s{sT1}, 65536")
E(f"v_bfe_u32 v{TT+5}, v{TT+4}, 1, 2")
E(f"v_xor_b32 v{TT+5}, s{sWV}, v{TT+5}")
E(f"v_lshlrev_b32 v{aTA}, 7, v{TT+4}")
E(f"v_lshl_add_u32 v{aTA}, v{TT+3}, 3, v{aTA}")
E(f"v_lshl_add_u32 v{aTA}, v{TT+5}, 5, v{aTA}")
E("s_waitcnt vmcnt(0)")
E("s_barrier")
stamp(2)
for s in range(16):
    for e in range(2):
        E(f"ds_read_b64_tr_b16 {vr(WA+4*s+2*e,2)}, v{aTA} offset:{32768*e+1024*s}")
E(f"v_lshl_add_u32 v{aTB}, v3, 3, v{TT+2}")
E(f"v_lshlrev_b32 v{aTB}, 7, v{aTB}")
E(f"v_lshl_add_u32 v{aTB}, v{TT+3}, 3, v{aTB}")
E(f"s_add_u32 s{sT2}, s{sT2}, {WB_LDS}")
E(f"v_add_u32 v{aTB}, s{sT2}, v{aTB}")
E(f"v_min_u32 v{aIN}, 6, v2")
E(f"v_lshlrev_b32 v{aIN}, 6, v{aIN}")
E(f"v_lshl_add_u32 v{aIN}, v3, 4, v{aIN}")
E(f"v_readfirstlane_b32 s{sTAG}, v241")
E(f"s_add_u32 s{sPubG}, s{sPubG}, {W_Z}")
E(f"s_mov_b32 s{sZoff}, {W_Z}")
E(f"s_lshl_b32 s{sT1}, s{sPJ}, 5")
E(f"s_add_u32 s{sPub}, s{sLOC}, s{sT1}")
srd(R_B, sOUT, None, 1024)
E(f"s_add_u32 s{sTAG}, s{sTAG}, 1")
for s in range(16):
    E(f"s_waitcnt lgkmcnt({min(15, 30-2*s)})")
    c = "0" if s == 0 else vr(CA,4)
    E(f"v_mfma_f32_16x16x32_bf16 {vr(CA,4)}, {vr(ONESB,4)}, {vr(WA+4*s,4)}, {c}")
E(f"v_mov_b32 v{vT}, 0")
E("s_nop 6")
E(f"v_mov_b32 v{vCS}, v{CA}")
L("L_D1_q")
mark("d1")
matvec(16, XB, WA, stats_fillers())
xgroup_sum()
E(f"s_cmp_eq_u32 s{sLAY}, 0")
E("s_cbranch_scc1 L_D1_qfirst")
E(f"v_cvt_pk_bf16_f32 v{vT}, v{vT}, v{vT}")
E(f"v_min_u32 v{vT}, -2, v{vT}")
pub2("buffer_store_short", f"v{vT}", aP16, sPub, sMA_f, sMA_s, W_Q)
stamp(3, True)
pub_resid(W_X2)
L("L_D1_act")
mark("d1")
AIN = vST
arm(AIN, 4)
E(f"v_mov_b32 v{vT}, 0")
gather1("ga", AIN, aIN, sLOC, W_ACT, TT)
stamp(4, True)
E(f"buffer_load_dwordx4 {vr(CA,4)}, v{vL16}, {WSR}, s{sLOC} offen offset:{W_X1} sc1")
matvec(7, AIN, WB, [], per=1)
y_publish()
stamp(5, True)
E(f"s_add_u32 s{sLAY}, s{sLAY}, 1")
E(f"s_cmp_lt_u32 s{sLAY}, 2")
E("s_cbranch_scc1 L_D1_z")
E(f"s_cmp_lg_u32 s2, 128")
E("s_cbranch_scc1 L_D1_end")
E(f"s_cmp_lg_u32 s{sWV}, 0")
E("s_cbranch_scc1 L_D1_end")
L("L_D1_z")
mark("d1")
def pre_z():
    E("s_waitcnt vmcnt(1)")
    chk_bf16(CA, TT)
    E("s_cbranch_vccz L_gx1_have")
    gather1("gx1", CA, vL16, sLOC, W_X1, TT, pd=1, slp=0)
    L("L_gx1_have")
    unpack_resid(CA)
def relay_z():
    E(f"v_mov_b32 v{vT}, 0")
    E(f"s_cmp_lg_u32 s{sWV}, 0")
    E(f"s_cbranch_scc1 L_gz_other")
    pre_z()
    gather_X("gz", sZoff, "d1")
    E(f"s_cmp_eq_u32 s{sLAY}, 2")
    E("s_cbranch_scc1 L_D1_out")
    E(f"ds_write_b128 v{aXS}, {vr(XB,4)}")
    E("s_waitcnt lgkmcnt(0)")
    E("s_barrier")
    E(f"s_branch L_gz_join")
    L(f"L_gz_other")
    E("s_waitcnt vmcnt(0)")
    E("s_barrier")
    E(f"ds_read_b128 {vr(XB,4)}, v{aXS}")
    E("s_waitcnt lgkmcnt(0)")
    L("L_gz_join")
relay_z()
stamp(6)
for s_ in (sLOC, sPub, sPubG, sZoff):
    E(f"s_add_u32 s{s_}, s{s_}, {LS}")
E("s_branch L_D1_q")
L("L_D1_out")
E(f"buffer_store_dwordx2 {vr(XB,2)}, v{aXIO}, s[{R_B}:{R_B+3}], 0 offen")
E(f"buffer_store_dwordx2 {vr(XB+2,2)}, v{aXIO}, s[{R_B}:{R_B+3}], 0 offen offset:512")
E(f"v_mov_b32 v{TT}, s{sTAG}")
E(f"v_mov_b32 v{TT+1}, {W_EP}")
E("s_mov_b64 exec, 1")
E(f"buffer_store_dword v{TT}, v{TT+1}, {WSR}, 0 offen")
if PROF:
    stamp(7)
    E("s_waitcnt vmcnt(0)")
    stamp(8)
L("L_D1_end")
stamp_flush(0, 0, (128, 4, [60, 2, 3, 4, 6, 20, 8]))
E("s_endpgm")
L("L_D1_qfirst")
D0 = GB + 12
E("s_nop 0")
E(f"v_mov_b32_dpp v{TT+5}, v{vT} quad_perm:[1,1,3,3] row_mask:0xf bank_mask:0xf")
E(f"v_mov_b32 v{D0+1}, s{sTAG}")
E(f"v_cvt_pk_bf16_f32 v{D0}, v{vT}, v{TT+5}")
E(f"s_lshl_b32 s{sT1}, s{sPJ}, 6")
E(f"v_lshl_add_u32 v{TT+6}, v2, 2, s{sT1}")
E("s_mov_b64 exec, 0x5555")
E(f"buffer_store_dwordx2 {vr(D0,2)}, v{TT+6}, {WSR}, s{sQ0} offen")
E("s_mov_b64 exec, -1")
stamp(3, True)
E(f"v_mov_b32 v{TT+7}, 0")
E(f"buffer_load_dword v{GB+20}, v{TT+7}, s[{R_B}:{R_B+3}], 0 offen")
E("s_barrier")
read_mode("0xffff")
E(f"s_mov_b32 s{sT1}, 0x5555")
E(f"s_cmp_eq_u32 s{sMODE}, 1")
E(f"s_cselect_b32 exec_lo, 0, s{sT1}")
E("s_mov_b32 exec_hi, 0")
E(f"buffer_store_dwordx2 {vr(D0,2)}, v{TT+6}, {WSR}, s{sQ0B} offen sc1")
E("s_mov_b64 exec, -1")
E("s_barrier")
for s in range(7):
    for e in range(2):
        E(f"ds_read_b64_tr_b16 {vr(WB+4*s+2*e,2)}, v{aTB} offset:{4096*s+512*e}")
E("s_waitcnt lgkmcnt(0)")
E("s_branch L_D1_act")
L("L_D1_help")
E(f"s_mul_i32 s{sT0}, s{sG}, {224*1024}")
E(f"s_lshl_b32 s{sT1}, s{sC}, 7")
E(f"s_add_u32 s{sT0}, s{sT0}, s{sT1}")
srd(R_B, sW2, f"s{sT0}", 224*1024 - 896)
E("v_lshlrev_b32 v244, 10, v242")
E("v_lshl_add_u32 v244, v243, 4, v244")
E(f"s_cmp_eq_u32 s{sWV}, 4")
E("s_cbranch_scc1 L_D1_ctl")
warm("d1", NM["d1"])
E("s_branch L_D1_bq")
L("L_D1_ctl")
E(f"v_lshlrev_b32 v{cT}, 7, v2")
E(f"buffer_load_dword v240, v{cT}, {WSR}, s{sQ0} offen sc1")
ctl_head()
xc_publish()
L("L_D1_bq")
E("s_barrier")
E(f"s_cmp_lg_u32 s{sWV}, 4")
E("s_cbranch_scc1 L_D1_w2")
first_gather("d1x", False, None)
stamp(3)
E(f"v_lshlrev_b32 v{cT}, 3, v1")
E(f"s_cmp_eq_u32 s{sMODE}, 1")
E("s_cbranch_scc0 L_D1_b2")
L("L_D1_st")
E(f"buffer_load_dword v{cT+1}, v{cT}, {WSR}, s{sLOC} offen offset:{W_ST} sc1")
E("s_waitcnt vmcnt(0)")
E(f"v_cmp_ne_u32 vcc, -1, v{cT+1}")
E("s_cbranch_vccnz L_D1_b2")
E("s_sleep 8")
spin_check("L_D1_st")
L("L_D1_b2")
E("s_waitcnt lgkmcnt(0)")
L("L_D1_w2")
E("s_barrier")
E(f"s_sub_u32 s{sT0}, s{sWV}, 4")
E(f"s_mul_i32 s{sT1}, s{sT0}, 7168")
E(f"s_add_u32 m0, s{sT1}, {WB_LDS}")
E(f"s_mul_i32 s{sT1}, s{sT0}, {56*1024}")
for i in range(7):
    E(f"buffer_load_dwordx4 v244, s[{R_B}:{R_B+3}], s{sT1} offen{NTW} lds")
    if i < 6:
        E("s_add_u32 m0, m0, 1024")
        E(f"s_add_u32 s{sT1}, s{sT1}, 8192")
E("s_waitcnt vmcnt(0) lgkmcnt(0)")
stamp(4)
E("s_barrier")
stamp_flush(4, 1)
E("s_endpgm")

L("L_D2_init")
E(f"s_lshl_b32 s{sT0}, s{sG}, 19")
E(f"s_lshl_b32 s{sT1}, s{sC}, 7")
E(f"s_add_u32 s{sT0}, s{sT0}, s{sT1}")
E(f"s_sub_u32 s{sT3}, {4194304}, s{sT0}")
srd(R_A, sWO, f"s{sT0}", f"s{sT3}")
E(f"s_min_u32 s{sT1}, s{sC}, 6")
E(f"s_lshl_b32 s{sT1}, s{sT1}, 6")
E(f"s_mul_i32 s{sT0}, s{sG}, 448")
E(f"s_add_u32 s{sS1}, s{sT0}, s{sT1}")
E(f"s_sub_u32 s{sT3}, {1835008}, s{sS1}")
srd(R_B, sW1, f"s{sS1}", f"s{sT3}")
def d2_clear(sc, alt):
    for r in range(4): E(f"v_mov_b32 v{cG+r}, -1")
    E(f"s_lshl_b32 s{sT1}, s{sC}, 11")
    E(f"s_add_u32 s{sT1}, s{sT1}, s{sPoff}")
    if alt: E(f"s_add_u32 s{sT1}, s{sT1}, {ALT}")
    E(f"s_add_u32 s{sT2}, s{sT1}, {LS}")
    for so in (sT1, sT2):
        for o in range(2):
            E(f"buffer_store_dwordx4 {vr(cG,4)}, v{cL16}, {WSR}, s{so} offen offset:{1024*o}{sc}")
    E(f"s_mov_b32 s{sT1}, {LS}")
    E(f"v_lshrrev_b32 v{cT}, 5, v1")
    E(f"v_mul_lo_u32 v{cT}, v{cT}, s{sT1}")
    E(f"v_and_b32 v{cT+1}, 31, v1")
    E(f"v_lshl_add_u32 v{cT}, v{cT+1}, 4, v{cT}")
    E(f"s_lshl_b32 s{sT1}, s{sC}, 9")
    E(f"s_add_u32 s{sT1}, s{sT1}, s{sLOC}")
    if alt: E(f"s_add_u32 s{sT1}, s{sT1}, {ALT}")
    E(f"buffer_store_dwordx4 {vr(cG,4)}, v{cT}, {WSR}, s{sT1} offen{sc}")
srd(R_C, sDBG, None, 256)
E(f"s_cmp_lt_u32 s{sWV}, 4")
E("s_cbranch_scc1 L_D2_comp")
E(f"s_cmp_eq_u32 s{sWV}, 4")
E("s_cbranch_scc1 L_D2_ctl")
warm("d2", NM["d2"])
if LATE0 == 2: E("s_barrier")
E("s_branch L_D2_bw")
L("L_D2_ctl")
d2_clear("", False)
clear_global()
ctl_head()
stamp(1)
xc_publish()
first_gather("d2x", False, lambda: d2_clear(" sc1", True))
stamp(2)
E(f"s_lshl_b32 s{sT1}, s{sG}, 5")
E(f"v_mov_b32 v{cT}, 1")
E(f"v_mov_b32 v{cT+1}, s{sT1}")
E(f"s_cmp_eq_u32 s{sC}, 0")
E("s_cselect_b32 exec_lo, 1, 0")
E("s_mov_b32 exec_hi, 0")
E(f"buffer_store_dword v{cT}, v{cT+1}, s[{R_C}:{R_C+3}], 0 offen sc1")
E("s_mov_b64 exec, -1")
if LATE0 == 2: E("s_barrier")
stamp(3)
E("s_waitcnt lgkmcnt(0)")
L("L_D2_bw")
E("v_lshrrev_b32 v245, 2, v1")
E("v_mul_u32_u24 v245, 3584, v245")
E("v_and_b32 v246, 3, v1")
E("v_and_b32 v247, 1, v3")
E("v_xor_b32 v246, v246, v247")
E("v_lshl_add_u32 v244, v246, 4, v245")
E("v_xor_b32 v246, 2, v246")
E("v_lshl_add_u32 v245, v246, 4, v245")
E(f"s_sub_u32 s{sT0}, s{sWV}, 4")
E(f"s_lshl_b32 s{sT1}, s{sT0}, 13")
E(f"s_add_u32 m0, s{sT1}, {WB_LDS}")
E(f"s_mul_i32 s{sT1}, s{sT0}, {128*3584}")
E("s_barrier")
E(f"s_cmp_lg_u32 s{sWV}, 4")
E("s_cbranch_scc1 L_D2_bo")
E(f"v_lshlrev_b32 v{cT+2}, 5, v1")
E("s_mov_b64 exec, 0xff")
L("L_D2_fpoll")
E(f"buffer_load_dword v{cT+3}, v{cT+2}, s[{R_C}:{R_C+3}], 0 offen sc1")
E("s_waitcnt vmcnt(0)")
E(f"v_cmp_ne_u32 vcc, 1, v{cT+3}")
E("s_cbranch_vccz L_D2_fok")
E("s_sleep 2")
spin_check("L_D2_fpoll")
L("L_D2_fok")
E("s_mov_b64 exec, -1")
L("L_D2_bo")
E("s_barrier")
for i in range(8):
    E(f"buffer_load_dwordx4 v{244 + i//4}, s[{R_B}:{R_B+3}], s{sT1} offen{NTW} lds")
    if i < 7:
        E("s_add_u32 m0, m0, 1024")
        E(f"s_add_u32 s{sT1}, s{sT1}, {16*3584}")
E("s_waitcnt vmcnt(0)")
stamp(4)
E("s_barrier")
stamp_flush(4, 1)
E("s_endpgm")
L("L_D2_comp")
E("v_and_b32 v245, 2, v242")
E("v_xor_b32 v245, v245, v243")
E(f"s_and_b32 s{sT1}, s{sWV}, 1")
E(f"s_lshl_b32 s{sT1}, s{sT1}, 2")
E(f"v_xor_b32 v245, s{sT1}, v245")
E("v_lshlrev_b32 v244, 10, v242")
E("v_lshl_add_u32 v244, v245, 4, v244")
E(f"s_lshl_b32 s{sT0}, s{sWV}, 14")
E(f"s_mov_b32 m0, s{sT0}")
E(f"s_lshl_b32 s{sT1}, s{sWV}, 17")
if LATE0 == 1: E("s_waitcnt vmcnt(0)")
if LATE0 == 2: E("s_barrier")
for i in range(16):
    E(f"buffer_load_dwordx4 v244, s[{R_A}:{R_A+3}], s{sT1} offen{NTW} lds")
    if i < 15:
        E("s_add_u32 m0, m0, 1024")
        E(f"s_add_u32 s{sT1}, s{sT1}, 8192")
srd(R_C, sB1, None, 3584)
E(f"v_and_b32 v{TT+5}, 7, v2")
E(f"v_lshlrev_b32 v{TT+5}, 1, v{TT+5}")
E(f"s_lshl_b32 s{sT1}, s{sWV}, 4")
E(f"s_add_u32 s{sT0}, s{sS1}, s{sT1}")
E(f"buffer_load_ushort v{vB1}, v{TT+5}, s[{R_C}:{R_C+3}], s{sT0} offen")
E(f"v_lshrrev_b32 v{TT+5}, 1, v{TT+2}")
E(f"v_lshl_add_u32 v{TT+5}, v{TT+1}, 1, v{TT+5}")
E(f"v_xor_b32 v{TT+5}, s{sWV}, v{TT+5}")
E(f"v_lshl_add_u32 v{aTA}, v3, 7, v{TT+2}")
E(f"v_lshlrev_b32 v{aTA}, 7, v{aTA}")
E(f"v_lshl_add_u32 v{aTA}, v{TT+3}, 3, v{aTA}")
E(f"v_lshl_add_u32 v{aTA}, v{TT+5}, 5, v{aTA}")
E(f"v_bfe_u32 v{TT+5}, v2, 1, 1")
E(f"v_lshl_add_u32 v{TT+6}, v{TT+5}, 6, v{TT+4}")
E(f"v_lshl_add_u32 v{TT+5}, v{TT+5}, 1, v{TT+1}")
E(f"v_xor_b32 v{TT+5}, s{sWV}, v{TT+5}")
E(f"v_lshlrev_b32 v{aTB}, 6, v{TT+6}")
E(f"v_lshl_add_u32 v{aTB}, v{TT+5}, 4, v{aTB}")
E(f"v_and_b32 v{TT+5}, 1, v2")
E(f"v_lshl_add_u32 v{aTB}, v{TT+5}, 3, v{aTB}")
E(f"v_add_u32 v{aTB}, {WB_LDS}, v{aTB}")
E(f"s_lshl_b32 s{sT1}, s{sWV}, 7")
E(f"v_lshlrev_b32 v{aST}, 5, v3")
E(f"v_add_u32 v{aST}, s{sT1}, v{aST}")
E(f"v_lshlrev_b32 v{aOS}, 4, v2")
E(f"v_lshl_add_u32 v{aOS}, v{TT+1}, 3, v{aOS}")
E(f"v_lshl_add_u32 v{aOS}, v{TT}, 2, v{aOS}")
E(f"s_lshl_b32 s{sT1}, s{sWV}, 8")
E(f"s_add_u32 s{sT1}, s{sT1}, {OS_LDS}")
E(f"v_add_u32 v{aOS}, s{sT1}, v{aOS}")
E(f"v_add_u32 v{aIN}, {OS_LDS}, v{vL16}")
E(f"v_lshlrev_b32 v{TT+5}, 4, v{TT+5}")
E(f"v_mov_b32 v{TT+6}, 0xffff")
E(f"v_lshlrev_b32 v{TT+6}, v{TT+5}, v{TT+6}")
E(f"v_bfe_u32 v{TT+7}, v2, 1, 2")
for d in range(4):
    E(f"v_cmp_eq_u32 vcc, {d}, v{TT+7}")
    E("s_nop 1")
    E(f"v_cndmask_b32 v{MK+d}, 0, v{TT+6}, vcc")
E(f"v_lshrrev_b32 v{vFLG}, 3, v2")
E(f"v_cmp_eq_u32 vcc, v{vFLG}, v{TT}")
E(f"v_cvt_f32_u32 v{vFLG}, v{vFLG}")
E("s_nop 0")
E(f"v_cndmask_b32 v{vVAL}, 0, -1, vcc")
E(f"s_lshl_b32 s{sT1}, s{sWV}, 12")
E(f"s_add_u32 s{sPoff}, s{sPoff}, s{sT1}")
E(f"s_lshl_b32 s{sT1}, s{sPJ}, 4")
E(f"s_add_u32 s{sPub}, s{sLOC}, s{sT1}")
E(f"s_add_u32 s{sPubG}, s{sPubG}, {W_Y}")
E(f"s_mov_b32 s{sYoff}, {W_Y}")
E(f"s_mov_b32 s{sC2}, 0")
E("s_waitcnt vmcnt(0)")
unpack_resid(XB)
E(f"v_lshlrev_b32 v{vB1}, 16, v{vB1}")
stamp(1)
E("s_barrier")
stamp(2)
for s in range(16):
    for e in range(2):
        E(f"ds_read_b64_tr_b16 {vr(WA+4*s+2*e,2)}, v{aTA} offset:{1024*s+512*e}")
read_mode("0xff")
E(f"s_cmp_lt_u32 s{sC}, 7")
E(f"s_cselect_b32 s{sMA_f}, s{sMA_f}, 0")
E(f"s_cselect_b32 s{sMA_s}, s{sMA_s}, 0")
L("L_D2_loop")
mark("d2")
def p_loads():
    for i in range(4):
        E(f"buffer_load_dwordx4 {vr(GB+4*i,4)}, v{vL16}, {WSR}, s{sPoff} offen offset:{1024*i} sc1")
arm(vST, 8)
p_loads()
L("L_gs_poll")
E(f"buffer_load_dwordx4 {vr(vST,4)}, v{aST}, {WSR}, s{sLOC} offen offset:{W_ST} sc1")
E(f"buffer_load_dwordx4 {vr(vST+4,4)}, v{aST}, {WSR}, s{sLOC} offen offset:{W_ST+16} sc1")
E(f"s_waitcnt vmcnt({2*(PD-1)})")
E(f"v_max3_u32 v{TT}, v{vST}, v{vST+1}, v{vST+2}")
E(f"v_max3_u32 v{TT+1}, v{vST+3}, v{vST+4}, v{vST+5}")
E(f"v_max3_u32 v{TT}, v{TT}, v{vST+6}, v{vST+7}")
E(f"v_max_u32 v{TT}, v{TT}, v{TT+1}")
E(f"v_cmp_eq_u32 vcc, -1, v{TT}")
E("s_cbranch_vccz L_gs_ok")
if SLP: E(f"s_sleep {SLP}")
spin_check("L_gs_poll")
L("L_gs_ok")
p_loads()
stamp(3, True)
vM, vU, vLs = TT, TT+1, TT+2
WT = TT + 3
AW = GB + 16
E(f"v_max3_f32 v{vM}, v{vST}, v{vST+2}, v{vST+4}")
E(f"v_max_f32 v{vM}, v{vM}, v{vST+6}")
for sw in ("16", "32"):
    E(f"v_mov_b32 v{vU}, v{vM}")
    E("s_nop 1")
    E(f"v_permlane{sw}_swap_b32 v{vM}, v{vU}")
    E(f"v_max_f32 v{vM}, v{vM}, v{vU}")
for t in range(4): E(f"v_sub_f32 v{WT+t}, v{vST+2*t}, v{vM}")
for t in range(4): E(f"v_exp_f32 v{WT+t}, v{WT+t}")
E("s_nop 0")
E(f"v_mul_f32 v{vLs}, v{WT}, v{vST+1}")
for t in range(1, 4): E(f"v_fmac_f32 v{vLs}, v{WT+t}, v{vST+2*t+1}")
for sw in ("16", "32"):
    E(f"v_mov_b32 v{vU}, v{vLs}")
    E("s_nop 1")
    E(f"v_permlane{sw}_swap_b32 v{vLs}, v{vU}")
    E(f"v_add_f32 v{vLs}, v{vLs}, v{vU}")
E(f"v_rcp_f32 v{vLs}, v{vLs}")
p_loads()
for t in range(4): E(f"v_mul_f32 v{WT+t}, v{WT+t}, v{vLs}")
for t in range(4): E(f"v_cvt_pk_bf16_f32 v{WT+4+t}, v{WT+t}, v{WT+t}")
for t in range(4): E(f"v_and_b32 v{WT+4+t}, 0xffff0000, v{WT+4+t}")
for t in range(4): E(f"v_fma_f32 v{WT+t}, -v{WT+4+t}, v{vFLG}, v{WT+t}")
for t in range(4): E(f"v_cvt_pk_bf16_f32 v{WT+t}, v{WT+t}, v{WT+t}")
for t in range(4):
    for d in range(4): E(f"v_and_b32 v{AW+4*t+d}, v{MK+d}, v{WT+t}")
E("s_branch L_gp_use")
L("L_gp_nan")
E(f"s_sub_u32 s{sSPIN}, s{sSPIN}, 1")
E("s_cbranch_scc1 L_exit")
E(f"s_and_b32 s{sT1}, s{sSPIN}, 15")
E("s_cbranch_scc0 L_gp_retry")
L("L_gp_again")
p_loads()
L("L_gp_use")
E("s_waitcnt vmcnt(4)")
for t in range(4):
    E(f"v_mfma_f32_16x16x32_bf16 {vr(CA,4)}, {vr(AW+4*t,4)}, {vr(GB+4*t,4)}, {'0' if t == 0 else vr(CA,4)}")
E("s_nop 7")
E(f"v_cmp_u_f32 vcc, v{CA}, v{CA}")
E(f"v_permlane32_swap_b32 v{CA}, v{CA+2}")
E(f"v_permlane32_swap_b32 v{CA+1}, v{CA+3}")
E("s_cbranch_vccnz L_gp_nan")
L("L_gp_ok")
E(f"v_add_f32 v{CA}, v{CA}, v{CA+2}")
E(f"v_add_f32 v{CA+1}, v{CA+1}, v{CA+3}")
E(f"v_cvt_pk_bf16_f32 v{CA}, v{CA}, v{CA+1}")
E(f"ds_write_b32 v{aOS}, v{CA}")
E(f"v_mov_b32 v{vT}, 0")
stamp(4, True)
mark("d2")
E("s_waitcnt lgkmcnt(0)")
E("s_barrier")
E(f"ds_read_b128 {vr(XB,4)}, v{aIN}")
E(f"buffer_load_dwordx4 {vr(CA,4)}, v{vL16}, {WSR}, s{sLOC} offen offset:{W_X2} sc1")
E("s_waitcnt lgkmcnt(0)")
matvec(16, XB, WA, [], per=1)
y_publish()
stamp(5, True)
mark("d2")
def w1_setup(tag):
    E(f"s_cmp_lg_u32 s{sC2}, 0")
    E(f"s_cbranch_scc1 L_D2_havew1{tag}")
    E(f"s_mov_b32 s{sC2}, 1")
    E("s_barrier")
    for s in range(8):
        for e in range(2):
            E(f"ds_read_b64_tr_b16 {vr(WB+4*s+2*e,2)}, v{aTB} offset:{16384*e+512*s}")
    for s in range(8):
        E(f"s_waitcnt lgkmcnt({14-2*s})")
        c = "0" if s == 0 else vr(ACC,4)
        E(f"v_mfma_f32_16x16x32_bf16 {vr(ACC,4)}, {vr(ONESB,4)}, {vr(WB+4*s,4)}, {c}")
    E("s_nop 7")
    E(f"v_add_f32_dpp v{vCS}, v{ACC}, v{ACC} row_ror:8 row_mask:0xf bank_mask:0xf")
    L(f"L_D2_havew1{tag}")
def pre_y():
    E(f"s_cmp_eq_u32 s{sLAY}, 0")
    E("s_cbranch_scc1 L_D2_havex")
    E("s_waitcnt vmcnt(1)")
    chk_bf16(CA, TT)
    E("s_cbranch_vccz L_gx2_have")
    gather1("gx2", CA, vL16, sLOC, W_X2, TT, pd=1, slp=0)
    L("L_gx2_have")
    unpack_resid(CA)
    L("L_D2_havex")
relay_X("gy", sYoff, pre_y)
stamp(6, True)
mark("d2")
matvec(8, XB, WB, stats_fillers(), rows=[(0x5, 0xf, [0,1,2,3]), (0xa, 0xf, [4,5,6,7])], per=PER+2)
mark("d2")
xgroup_sum(True)
h, u, a, b = vT, TT+5, TT+6, TT+7
E(f"v_add_f32 v{h}, v{h}, v{vB1}")
E(f"v_mul_f32 v{u}, s{sC3}, |v{h}|")
E(f"v_exp_f32 v{u}, v{u}")
E(f"v_cmp_le_f32 vcc, 0, v{h}")
E(f"v_add_f32 v{b}, 2.0, v{u}")
E(f"v_fma_f32 v{a}, v{u}, 2.0, 1.0")
E(f"v_mul_f32 v{b}, v{u}, v{b}")
E(f"v_mul_f32 v{u}, v{u}, v{u}")
E(f"v_cndmask_b32 v{a}, v{b}, v{a}, vcc")
E(f"v_cndmask_b32 v{u}, 1.0, v{u}, vcc")
E(f"v_fma_f32 v{b}, v{u}, 2.0, v{a}")
E(f"v_rcp_f32 v{b}, v{b}")
E(f"v_mul_f32 v{h}, v{h}, v{a}")
E(f"v_mul_f32 v{h}, v{h}, v{b}")
E(f"v_cvt_pk_bf16_f32 v{h}, v{h}, v{h}")
E(f"v_min_u32 v{h}, -2, v{h}")
pub2("buffer_store_short", f"v{h}", aP16, sPub, sMA_f, sMA_s, W_ACT)
stamp(7, True)
pub_resid(W_X1)
for s_ in (sLOC, sPoff, sPub, sPubG, sYoff):
    E(f"s_add_u32 s{s_}, s{s_}, {LS}")
E(f"s_add_u32 s{sLAY}, s{sLAY}, 1")
E(f"s_cmp_lt_u32 s{sLAY}, 2")
E("s_cbranch_scc1 L_D2_loop")
stamp_flush(0, 0)
L("L_exit")
E("s_endpgm")
L("L_gp_retry")
for i in range(0, 16, 2): E(f"v_pk_max_u16 v{ACC+i//2}, v{GB+i}, v{GB+i+1}")
for i in range(0, 8, 2): E(f"v_pk_max_u16 v{ACC+i//2}, v{ACC+i}, v{ACC+i+1}")
chk_bf16(ACC, TT)
E("s_cbranch_vccnz L_gp_again")
for t in range(4):
    E(f"v_mfma_f32_16x16x32_bf16 {vr(CA,4)}, {vr(AW+4*t,4)}, {vr(GB+4*t,4)}, {'0' if t == 0 else vr(CA,4)}")
E("s_nop 9")
E(f"v_permlane32_swap_b32 v{CA}, v{CA+2}")
E(f"v_permlane32_swap_b32 v{CA+1}, v{CA+3}")
E("s_branch L_gp_ok")
for b_ in retry_blocks: b_()
L("L_wret")
E(f"s_setpc_b64 s[{sRET}:{sRET+1}]")
for r_, n_ in NM.items(): assert not WARM or len(marks[r_]) == n_, (r_, len(marks[r_]))

out.append('.section .rodata,"a"')
out.append(".p2align 6")
out.append(f".amdhsa_kernel {NAME}_kernel")
out.append("  .amdhsa_next_free_vgpr 256")
out.append("  .amdhsa_next_free_sgpr 96")
out.append("  .amdhsa_accum_offset 256")
out.append("  .amdhsa_group_segment_fixed_size 0")
out.append("  .amdhsa_kernarg_size 96")
out.append("  .amdhsa_user_sgpr_count 2")
out.append("  .amdhsa_user_sgpr_kernarg_segment_ptr 1")
out.append("  .amdhsa_system_sgpr_workgroup_id_x 1")
out.append("  .amdhsa_float_denorm_mode_32 3")
out.append(".end_amdhsa_kernel")
open(sys.argv[1], "w").write("\n".join(out) + "\n")
```

```python
import sys, math, struct
PROF = int(sys.argv[2]) if len(sys.argv) > 2 else 0
OPT = dict(a.split("=") for a in sys.argv[3:])
THR = int(OPT.get("thr", 6))
ACK = int(OPT.get("ack", 1))
PER = int(OPT.get("per", 3))
PD = int(OPT.get("pd", 4))
SLP = int(OPT.get("slp", 1))
LATE0 = int(OPT.get("late0", 2))
GP = int(OPT.get("gp", 1))
GSL = int(OPT.get("gsl", 0))
THV = int(OPT.get("thv", 8))
GD = int(OPT.get("gd", 0))
fl = lambda k, d: {"0": "", "1": " nt", "2": " sc1", "3": " sc0 sc1", "4": " sc1 nt"}[OPT.get(k, d)]
NTQ, NTW, NTK, NTV = fl("ntq", "0"), fl("ntw", "0"), fl("ntk", "0"), fl("ntv", "0")
TQ = int(OPT.get("tq", 1))
WARM = int(OPT.get("warm", 1))
NTT = fl("ntt", "0")
NAME = "interleave_layers__sliding_block_cached__dense_activation_mish__decode"
out = []
def E(s=""): out.append("    " + s)
def L(s): out.append(s + ":")
def vr(a, n=1): return f"v{a}" if n == 1 else f"v[{a}:{a+n-1}]"
def f32(x): return hex(struct.unpack("<I", struct.pack("<f", x))[0])

K_LDS, V_LDS = 0, 65536
WA_LDS, WB_LDS = 0, 65536
QS_LDS, PX_LDS, SX_LDS, FL_LDS = 131072, 132096, 140288, 141312
OS_LDS, XS_LDS = QS_LDS, PX_LDS
LDS_BYTES = 141824
LS = 0x30000
W_Q, W_X2, W_X1, W_ST, W_ACT = 0, 1024, 2048, 3072, 3584
W_Y, W_Z, W_P = 32768, 40960, 65536
W_Q0 = 2 * LS
W_Q0B = 32768
W_EP = W_Q0 + 65536
ALT = 0x80000
WS_USED = ALT + 2 * LS
PROF_OFF = 0x300000
WS_REC = PROF_OFF + 256 * 1024

sX, sK, sV, sWQ, sWO, sBX, sW1, sB1 = 8, 10, 12, 14, 16, 18, 20, 22
sW2, sOUT, sDBG, sWS = 24, 26, 28, 30
sG, sJ, sWV, sC, sPJ = 3, 4, 5, 6, 7
R_WS, R_A, R_B, R_C = 32, 36, 40, 44
sT0, sT1, sT2, sT3 = 48, 49, 50, 51
sLOC, sLAY = 52, 53
sYoff, sZoff, sPoff = 54, 55, 56
sSPIN = 57
sRET = 58
sMA_f, sMA_s, sMB_f, sMB_s, sMC_f, sMC_s = 60, 62, 64, 66, 68, 70
sTAG, sXCC, sQ0, sQ0B = 72, 73, 74, 75
sFFFE = 76
sC1, sC2, sC3 = 77, 78, 79
sS1, sS2, sPIV = 80, 81, 82
sPub, sPubG = 83, 84
sST = 88
sPe, sLe, sMODE = 90, 91, 92
SPIN0 = 0x200000
WSR = f"s[{R_WS}:{R_WS+3}]"

def srd(r, base, add_lo=None, rec=None):
    if add_lo is None:
        E(f"s_mov_b32 s{r}, s{base}")
        E(f"s_and_b32 s{r+1}, s{base+1}, 0xffff")
    else:
        E(f"s_add_u32 s{r}, s{base}, {add_lo}")
        E(f"s_addc_u32 s{r+1}, s{base+1}, 0")
        E(f"s_and_b32 s{r+1}, s{r+1}, 0xffff")
    E(f"s_mov_b32 s{r+2}, {rec}")
    E(f"s_mov_b32 s{r+3}, 0x00020000")

V_STAMP = 254
ROLE = ["a"]
def stamp(idx, layer_dep=False):
    if not PROF: return
    if PROF == 9 and not (idx == 8 and not layer_dep) and not (idx == 6 and layer_dep and ROLE[0] == "a"): return
    E(f"s_memrealtime s[{sST}:{sST+1}]")
    E("s_waitcnt lgkmcnt(0)")
    if layer_dep:
        E(f"s_lshl_b32 s{sT3}, s{sLAY}, 4")
        E(f"s_add_u32 s{sT3}, s{sT3}, {idx}")
        E(f"s_mov_b32 m0, s{sT3}")
        E("s_nop 0")
        E(f"v_writelane_b32 v{V_STAMP}, s{sST}, m0")
    else:
        E(f"v_writelane_b32 v{V_STAMP}, s{sST}, {idx}")
AMP = OPT.get("amp")
def amp(name):
    if AMP != name: return
    E(f"s_cmp_eq_u32 s{sLAY}, {OPT.get('amplay', '0')}")
    E(f"s_cbranch_scc0 L_amp_{name}")
    E("s_memrealtime s[94:95]")
    E("s_waitcnt lgkmcnt(0)")
    L(f"L_amp_{name}")
def stamp_flush(wave, slot, dbg=None):
    if not PROF: return
    E(f"s_cmp_lg_u32 s{sWV}, {wave}")
    E("s_cbranch_scc1 L_exit")
    E("s_mov_b64 exec, -1")
    if dbg and "dbg" in OPT:
        wg, off, idx = dbg
        for i, x in enumerate(idx):
            E(f"v_readlane_b32 s{sT0}, v{V_STAMP}, {x}")
            E("s_nop 3")
            E(f"v_writelane_b32 v{V_STAMP-2}, s{sT0}, {i}")
        srd(R_A, sDBG, None, 256)
        E(f"v_lshlrev_b32 v{V_STAMP-1}, 2, v1")
        E(f"s_cmp_eq_u32 s2, {wg}")
        E(f"s_cselect_b32 exec_lo, {(1 << len(idx)) - 1}, 0")
        E("s_mov_b32 exec_hi, 0")
        E(f"buffer_store_dword v{V_STAMP-2}, v{V_STAMP-1}, s[{R_A}:{R_A+3}], 0 offen offset:{off}")
        E("s_mov_b64 exec, -1")
    E(f"s_lshl_b32 s{sT0}, s2, 10")
    E(f"s_add_u32 s{sT0}, s{sT0}, {PROF_OFF + slot*256}")
    E(f"v_lshlrev_b32 v{V_STAMP-1}, 2, v1")
    E(f"buffer_store_dword v{V_STAMP}, v{V_STAMP-1}, {WSR}, s{sT0} offen")

marks = {}
def mark(role):
    if not WARM: return
    l = marks.setdefault(role, [])
    l.append(f"L_wm_{role}{len(l)}")
    L(l[-1])
    E("s_cbranch_execz L_wret")
def warm(role, n, first=0, step=1):
    if not WARM: return
    E("s_mov_b64 exec, 0")
    for i in range(first, n, step):
        E(f"s_call_b64 s[{sRET}:{sRET+1}], L_wm_{role}{i}")
    E("s_mov_b64 exec, -1")
NM = {"a": 2, "d1": 4, "d2": 6}

def spin_check(fail_label):
    E(f"s_sub_u32 s{sSPIN}, s{sSPIN}, 1")
    E(f"s_cbranch_scc1 L_exit")
    E(f"s_branch {fail_label}")

def chk_bf16(v, t):
    E(f"v_pk_max_u16 v{t}, v{v}, v{v+1}")
    E(f"v_pk_max_u16 v{t+1}, v{v+2}, v{v+3}")
    E(f"v_pk_max_u16 v{t}, v{t}, v{t+1}")
    E(f"v_pk_max_u16 v{t}, v{t}, v{t} op_sel:[0,1] op_sel_hi:[1,0]")
    E(f"v_cmp_eq_u32 vcc, -1, v{t}")

def pub2(op, data, addr, soff, mf, ms, imm=0):
    o = f" offset:{imm}" if imm else ""
    E(f"s_mov_b64 exec, s[{mf}:{mf+1}]")
    E(f"{op} {data}, v{addr}, {WSR}, s{soff} offen{o}")
    E(f"s_mov_b64 exec, s[{ms}:{ms+1}]")
    E(f"{op} {data}, v{addr}, {WSR}, s{soff} offen{o} sc1")
    E("s_mov_b64 exec, -1")

def masks(mf, ms, lo, hi):
    E(f"s_cselect_b32 s{mf}, {lo}, 0")
    E(f"s_cselect_b32 s{mf+1}, {hi}, 0")
    E(f"s_cselect_b32 s{ms}, 0, {lo}")
    E(f"s_cselect_b32 s{ms+1}, 0, {hi}")

def arm(dst, n):
    for r in range(n): E(f"v_mov_b32 v{dst+r}, -1")

def gather1(tag, dst, addr, soff, imm, t, pd=None, slp=None):
    pd = PD if pd is None else pd
    slp = SLP if slp is None else slp
    L(f"L_{tag}_poll")
    E(f"buffer_load_dwordx4 {vr(dst,4)}, v{addr}, {WSR}, s{soff} offen offset:{imm} sc1")
    E(f"s_waitcnt vmcnt({pd-1})")
    chk_bf16(dst, t)
    E(f"s_cbranch_vccz L_{tag}_ok")
    if slp: E(f"s_sleep {slp}")
    spin_check(f"L_{tag}_poll")
    L(f"L_{tag}_ok")

cD, cA, cXa, cG, cT, cL16 = 208, 210, 211, 212, 224, 232
def xc_publish():
    E(f"s_getreg_b32 s{sXCC}, hwreg(HW_REG_XCC_ID, 0, 4)")
    E(f"v_mov_b32 v{cD+1}, s{sTAG}")
    E(f"s_lshl_b32 s{sT3}, s{sJ}, 3")
    E(f"v_mov_b32 v{cD}, s{sXCC}")
    E(f"v_mov_b32 v{cA}, s{sT3}")
    E("s_mov_b64 exec, 1")
    E(f"buffer_store_dwordx2 {vr(cD,2)}, v{cA}, {WSR}, s{sQ0} offen offset:2048")
    E("s_mov_b64 exec, -1")

def first_gather(tag, with_q, clear_alt):
    regs = (1, 3, 5, 7, 9) if with_q else (9,)
    nl = 3 if with_q else 1
    E(f"s_sub_u32 s{sS2}, s{sSPIN}, 160")
    E(f"v_and_b32 v{cXa}, 31, v1")
    E(f"v_lshlrev_b32 v{cXa}, 3, v{cXa}")
    E(f"s_not_b32 s{sT1}, s{sTAG}")
    for r in regs: E(f"v_mov_b32 v{cG+r}, s{sT1}")
    def loads(so):
        if with_q:
            E(f"buffer_load_dwordx4 {vr(cG,4)}, v{cL16}, {WSR}, s{so} offen sc1")
            E(f"buffer_load_dwordx4 {vr(cG+4,4)}, v{cL16}, {WSR}, s{so} offen offset:1024 sc1")
        E(f"buffer_load_dwordx2 {vr(cG+8,2)}, v{cXa}, {WSR}, s{so} offen offset:2048 sc1")
    def check():
        if with_q:
            for i, r in enumerate(regs): E(f"v_xor_b32 v{cT+i}, s{sTAG}, v{cG+r}")
            E(f"v_or3_b32 v{cT}, v{cT}, v{cT+1}, v{cT+2}")
            E(f"v_or3_b32 v{cT}, v{cT}, v{cT+3}, v{cT+4}")
            E(f"v_cmp_ne_u32 vcc, 0, v{cT}")
        else:
            E(f"v_cmp_ne_u32 vcc, s{sTAG}, v{cG+9}")
    def copy_b():
        E("s_mov_b64 exec, 1")
        E(f"buffer_store_dwordx2 {vr(cD,2)}, v{cA}, {WSR}, s{sQ0B} offen offset:2048 sc1")
        E("s_mov_b64 exec, -1")
    L(f"L_{tag}_poll")
    loads(sQ0)
    E(f"s_waitcnt vmcnt({min(nl*6, 60)})")
    check()
    E(f"s_cbranch_vccz L_{tag}_seen")
    E("s_sleep 3")
    E(f"s_cmp_gt_u32 s{sSPIN}, s{sS2}")
    E(f"s_cbranch_scc0 L_{tag}_b")
    spin_check(f"L_{tag}_poll")
    L(f"L_{tag}_b")
    copy_b()
    L(f"L_{tag}_alt")
    for so in (sQ0B, sQ0):
        loads(so)
        E("s_waitcnt vmcnt(0)")
        check()
        E(f"s_cbranch_vccz L_{tag}_ok")
    spin_check(f"L_{tag}_alt")
    L(f"L_{tag}_seen")
    E("s_nop 15")
    L(f"L_{tag}_ok")
    if with_q:
        E(f"v_lshlrev_b32 v{cT+1}, 3, v1")
        E(f"v_add_u32 v{cT+1}, {QS_LDS}, v{cT+1}")
        E(f"ds_write2_b32 v{cT+1}, v{cG}, v{cG+2} offset0:0 offset1:1")
        E(f"ds_write2_b32 v{cT+1}, v{cG+4}, v{cG+6} offset0:128 offset1:129")
    E(f"v_cmp_ne_u32 vcc, s{sXCC}, v{cG+8}")
    E("s_nop 3")
    if OPT.get("slow") == "1": E("s_mov_b64 vcc, -1")
    E("s_cmp_eq_u64 vcc, 0")
    E(f"s_cselect_b32 s{sMODE}, 1, 0")
    E(f"s_cbranch_scc1 L_{tag}_done")
    E("s_waitcnt vmcnt(0) lgkmcnt(0)")
    copy_b()
    if clear_alt: clear_alt()
    if clear_alt:
        E("s_waitcnt vmcnt(0)")
        E("s_mov_b64 exec, 1")
        E(f"buffer_store_dwordx2 {vr(cD,2)}, v{cA}, {WSR}, s{sQ0B} offen offset:2560 sc1")
        E("s_mov_b64 exec, -1")
    E(f"v_and_b32 v{cXa}, 56, v{cXa}")
    E(f"v_add_u32 v{cXa}, 192, v{cXa}")
    L(f"L_{tag}_h")
    E(f"buffer_load_dwordx2 {vr(cG+8,2)}, v{cXa}, {WSR}, s{sQ0B} offen offset:2560 sc1")
    E("s_waitcnt vmcnt(0)")
    E(f"v_cmp_ne_u32 vcc, s{sTAG}, v{cG+9}")
    E(f"s_cbranch_vccz L_{tag}_done")
    spin_check(f"L_{tag}_h")
    L(f"L_{tag}_done")
    E(f"v_mov_b32 v{cT+2}, {FL_LDS}")
    E(f"v_mov_b32 v{cT+3}, s{sMODE}")
    E(f"ds_write_b32 v{cT+2}, v{cT+3}")

hdr = open("cdna_kernels/" + NAME + ".s.ref").read().split("; Override")[0]
out.append(hdr.rstrip("\n"))
out.append(f"; @launch grid=(256,1,1) block=(512,1,1) lds={LDS_BYTES}")
out.append('.amdgcn_target "amdgcn-amd-amdhsa--gfx950"')
out.append(".text")
out.append(f".globl {NAME}_kernel")
out.append(".p2align 8")
out.append(f".type {NAME}_kernel,@function")
L(f"{NAME}_kernel")
E("s_cmp_ge_u32 s2, 256")
E("s_cbranch_scc1 L_exit")
E("s_load_dwordx16 s[8:23], s[0:1], 0")
E("s_load_dwordx8 s[24:31], s[0:1], 64")
if PROF:
    E(f"v_mov_b32 v{V_STAMP}, 0")
    E(f"s_memrealtime s[{sST}:{sST+1}]")
if AMP: E("s_memrealtime s[86:87]")
E("v_lshrrev_b32 v1, 6, v0")
E(f"s_and_b32 s{sG}, s2, 7")
E(f"v_readfirstlane_b32 s{sWV}, v1")
E(f"s_lshr_b32 s{sJ}, s2, 3")
E("v_and_b32 v1, 63, v0")
E("v_and_b32 v2, 15, v0")
E("v_lshrrev_b32 v3, 4, v1")
E(f"s_mov_b32 s{sSPIN}, {SPIN0}")
E(f"s_mov_b32 s{sLAY}, 0")
E(f"s_lshl_b32 s{sLOC}, s{sG}, 12")
E(f"s_lshl_b32 s{sPoff}, s{sG}, 14")
E(f"s_add_u32 s{sPoff}, s{sPoff}, {W_P}")
E(f"s_add_u32 s{sQ0}, s{sLOC}, {W_Q0}")
E(f"s_add_u32 s{sQ0B}, s{sQ0}, {W_Q0B}")
E("v_lshrrev_b32 v5, 3, v1")
E("v_and_b32 v6, 7, v1")
E("v_lshlrev_b32 v4, 13, v5")
E("v_lshl_add_u32 v4, v6, 7, v4")
E(f"s_lshl_b32 s{sT0}, s{sJ}, 17")
E(f"s_lshl_b32 s{sT1}, s{sG}, 10")
E(f"s_add_u32 s{sT0}, s{sT0}, s{sT1}")
E(f"s_sub_u32 s{sT1}, s{sWV}, 1")
E(f"s_lshl_b32 s{sT2}, s{sT1}, 16")
E(f"s_add_u32 s{sT0}, s{sT0}, s{sT2}")
E(f"s_mov_b32 s{sT2}, {W_EP}")
E("v_mov_b32 v7, 0")
E(f"s_cmp_lt_u32 s{sT1}, 2")
E("s_waitcnt lgkmcnt(0)")
E("s_cbranch_scc0 L_notouch")
srd(R_C, sWQ, None, 4194304)
if TQ: E(f"buffer_load_dword v240, v4, s[{R_C}:{R_C+3}], s{sT0} offen{NTQ}")
L("L_notouch")
srd(R_WS, sWS, None, WS_REC if PROF else WS_USED)
E(f"buffer_load_dword v241, v7, {WSR}, s{sT2} offen sc1")
if PROF: E(f"v_writelane_b32 v{V_STAMP}, s{sST}, 60")
E(f"v_mov_b32 v{cA}, 0")
E(f"v_lshlrev_b32 v{cL16}, 4, v1")
E(f"s_cmp_ge_u32 s{sJ}, 16")
E("s_cbranch_scc1 L_D_init")

E(f"s_lshl_b32 s{sT0}, s{sG}, 24")
E(f"s_lshl_b32 s{sT1}, s{sJ}, 16")
E(f"s_add_u32 s{sT0}, s{sT0}, s{sT1}")
E(f"s_add_u32 s{sT0}, s{sT0}, {61440*256}")
srd(R_A, sK, f"s{sT0}", 65536)
srd(R_B, sV, f"s{sT0}", 65536)
E("v_xor_b32 v4, v2, v3")
E("v_lshlrev_b32 v4, 4, v4")
E("v_lshl_add_u32 v4, v3, 8, v4")
E("v_lshlrev_b32 v5, 1, v3")
E("v_xor_b32 v5, v2, v5")
E("v_lshlrev_b32 v5, 4, v5")
E("v_lshl_add_u32 v5, v3, 8, v5")
E(f"s_add_u32 s{sC1}, s{sJ}, s{sG}")
E(f"s_cmp_ge_u32 s{sWV}, 4")
E("s_cbranch_scc1 L_A_help")
E(f"s_lshl_b32 s{sT0}, s{sWV}, 14")
for i in range(16):
    E(f"s_add_u32 s{sT1}, s{sC1}, {i}")
    E(f"s_and_b32 s{sT1}, s{sT1}, 15")
    E(f"s_and_b32 s{sT2}, s{sT1}, 3")
    E(f"s_lshl_b32 s{sT2}, s{sT2}, 6")
    E(f"s_lshl_b32 s{sT1}, s{sT1}, 10")
    E(f"s_add_u32 s{sT1}, s{sT1}, s{sT0}")
    E(f"s_mov_b32 m0, s{sT1}")
    E(f"v_xor_b32 v6, s{sT2}, v4")
    if i >= THR: E(f"s_waitcnt vmcnt({THR-1})")
    E(f"buffer_load_dwordx4 v6, s[{R_A}:{R_A+3}], s{sT1} offen{NTK} lds")
stamp(1)
KF, VF, QF, SC, PB, OD, OUTV, PF, STT = 16, 80, 144, 160, 176, 144, 176, 184, 216
T = 224
E("v_xor_b32 v4, v2, v3")
E("v_lshlrev_b32 v4, 4, v4")
E("v_lshl_add_u32 v4, v2, 8, v4")
E(f"v_add_u32 v4, s{sT0}, v4")
E("v_xor_b32 v5, 64, v4")
E("v_xor_b32 v6, 0x80, v4")
E("v_xor_b32 v7, 0xc0, v4")
E("v_and_b32 v15, 3, v2")
E("v_lshlrev_b32 v8, 8, v15")
E("v_lshl_add_u32 v8, v3, 4, v8")
E(f"v_add_u32 v8, {QS_LDS}, v8")
E("v_lshlrev_b32 v10, 4, v1")
E(f"v_add_u32 v10, {PX_LDS}, v10")
E(f"s_lshl_b32 s{sT1}, s{sWV}, 11")
E(f"v_add_u32 v9, s{sT1}, v10")
E("v_lshlrev_b32 v12, 5, v2")
E(f"v_add_u32 v12, {SX_LDS}, v12")
E(f"s_lshl_b32 s{sT1}, s{sWV}, 3")
E(f"v_add_u32 v11, s{sT1}, v12")
E("v_lshlrev_b32 v13, 12, v15")
E("v_lshl_add_u32 v13, v3, 3, v13")
E("v_bfe_u32 v14, v2, 2, 1")
E("v_lshl_add_u32 v13, v14, 5, v13")
E(f"s_lshl_b32 s{sT1}, s{sWV}, 6")
E(f"v_add_u32 v13, s{sT1}, v13")
E(f"v_cmp_eq_u32 s[{sMC_f}:{sMC_f+1}], 1, v14")
E(f"v_lshlrev_b32 v14, 7, v15")
E(f"v_lshrrev_b32 v{T}, 2, v2")
E(f"v_lshl_add_u32 v{T}, v3, 2, v{T}")
E(f"v_and_b32 v{T+1}, 7, v{T}")
E(f"s_lshl_b32 s{sT1}, s{sWV}, 1")
E(f"v_xor_b32 v{T+1}, s{sT1}, v{T+1}")
E(f"v_lshlrev_b32 v{T}, 8, v{T}")
E(f"v_lshl_add_u32 v{T}, v{T+1}, 5, v{T}")
E(f"v_lshl_add_u32 v{T}, v15, 3, v{T}")
E(f"v_add_u32 v{T}, {V_LDS}, v{T}")
E(f"v_xor_b32 v{T+1}, 32, v{T}")
E(f"s_lshl_b32 s{sT1}, s{sJ}, 8")
E(f"s_add_u32 s{sPoff}, s{sPoff}, s{sT1}")
E(f"s_and_b32 s{sT1}, s{sJ}, 3")
E(f"s_lshl_b32 s{sT1}, s{sT1}, 5")
E(f"s_lshr_b32 s{sT2}, s{sJ}, 2")
E(f"s_lshl_b32 s{sT2}, s{sT2}, 3")
E(f"s_add_u32 s{sT1}, s{sT1}, s{sT2}")
E(f"s_add_u32 s{sPub}, s{sT1}, {W_ST}")
E(f"s_mov_b32 s{sC1}, {f32((128**-0.5)*math.log2(math.e))}")
E(f"s_mov_b32 s{sFFFE}, 0xfffefffe")
E(f"v_mov_b32 v{T+2}, {FL_LDS}")
E(f"v_mov_b32 v{T+8}, s{sC1}")
E(f"s_cmp_eq_u32 s{sWV}, 0")
E(f"s_cselect_b32 s{sC2}, 15, 0")
E(f"s_mov_b32 s{sMB_f+1}, 0")
E(f"s_mov_b32 s{sMB_s+1}, 0")
E("s_waitcnt vmcnt(0)")
stamp(2)
for e in range(4):
    for s in range(4):
        E(f"ds_read_b128 {vr(KF+(e*4+s)*4,4)}, v{4+s} offset:{4096*e}")
L("L_A_b1")
mark("a")
E("s_barrier")
for s in range(4):
    E(f"ds_read_b128 {vr(QF+4*s,4)}, v8 offset:{64*s}")
stamp(3, True)
def qk(e, s):
    c = "0" if s == 0 else vr(SC+4*e,4)
    E(f"v_mfma_f32_16x16x32_bf16 {vr(SC+4*e,4)}, {vr(KF+(e*4+s)*4,4)}, {vr(QF+4*s,4)}, {c}")
for s in range(4):
    E(f"s_waitcnt lgkmcnt({3-s})")
    qk(0, s); qk(1, s)
for s in range(4):
    qk(2, s); qk(3, s)
E(f"v_max3_f32 v{T+4}, v{SC}, v{SC+1}, v{SC+2}")
E(f"v_max3_f32 v{T+5}, v{SC+3}, v{SC+4}, v{SC+5}")
E(f"v_max3_f32 v{T+4}, v{T+4}, v{SC+6}, v{SC+7}")
E("s_nop 3")
E(f"v_max3_f32 v{T+5}, v{T+5}, v{SC+8}, v{SC+9}")
E(f"v_max3_f32 v{T+4}, v{T+4}, v{SC+10}, v{SC+11}")
E(f"v_max3_f32 v{T+5}, v{T+5}, v{SC+12}, v{SC+13}")
E(f"v_max3_f32 v{T+4}, v{T+4}, v{SC+14}, v{SC+15}")
E(f"v_max_f32 v{T+4}, v{T+4}, v{T+5}")
E(f"v_mov_b32 v{T+5}, v{T+4}")
E("s_nop 1")
E(f"v_permlane16_swap_b32 v{T+4}, v{T+5}")
E(f"v_max_f32 v{T+4}, v{T+4}, v{T+5}")
E(f"v_mov_b32 v{T+5}, v{T+4}")
E("s_nop 1")
E(f"v_permlane32_swap_b32 v{T+4}, v{T+5}")
E(f"v_max_f32 v{T+4}, v{T+4}, v{T+5}")
E(f"v_mul_f32 v{T+6}, s{sC1}, v{T+4}")
for i in range(8):
    E(f"v_pk_fma_f32 {vr(SC+2*i,2)}, {vr(SC+2*i,2)}, {vr(T+8,2)}, {vr(T+6,2)} op_sel_hi:[1,0,0] neg_lo:[0,0,1] neg_hi:[0,0,1]")
for i in range(8):
    E(f"v_exp_f32 v{SC+i}, v{SC+i}")
E(f"v_exp_f32 v{SC+8}, v{SC+8}")
for i in range(4):
    E(f"v_cvt_pk_bf16_f32 v{PB+i}, v{SC+2*i}, v{SC+2*i+1}")
E(f"ds_write_b128 v9, {vr(PB,4)}")
for i in range(9, 16):
    E(f"v_exp_f32 v{SC+i}, v{SC+i}")
E(f"v_add_f32 v{T+7}, v{SC}, v{SC+1}")
for i in range(4, 8):
    E(f"v_cvt_pk_bf16_f32 v{PB+i}, v{SC+2*i}, v{SC+2*i+1}")
E(f"ds_write_b128 v9, {vr(PB+4,4)} offset:1024")
for i in range(4):
    E(f"v_pk_add_f32 {vr(SC+2+ 0,2) if False else vr(SC+4*i,2)}, {vr(SC+4*i,2)}, {vr(SC+4*i+2,2)}")
E(f"v_pk_add_f32 {vr(SC,2)}, {vr(SC,2)}, {vr(SC+4,2)}")
E(f"v_pk_add_f32 {vr(SC+8,2)}, {vr(SC+8,2)}, {vr(SC+12,2)}")
E(f"v_pk_add_f32 {vr(SC,2)}, {vr(SC,2)}, {vr(SC+8,2)}")
E(f"v_add_f32 v{T+7}, v{SC}, v{SC+1}")
E(f"v_mov_b32 v{T+5}, v{T+7}")
E("s_nop 1")
E(f"v_permlane16_swap_b32 v{T+7}, v{T+5}")
E(f"v_add_f32 v{T+7}, v{T+7}, v{T+5}")
E(f"v_mov_b32 v{T+5}, v{T+7}")
E("s_nop 1")
E(f"v_permlane32_swap_b32 v{T+7}, v{T+5}")
E(f"v_add_f32 v{T+7}, v{T+7}, v{T+5}")
E(f"ds_write_b64 v11, {vr(T+6,2)}")
stamp(4, True)
mark("a")
E("s_waitcnt lgkmcnt(0)")
E("s_barrier")
E(f"ds_read_b32 v{T+3}, v{T+2}")
for b in range(2):
    E(f"ds_read_b128 {vr(STT+4*b,4)}, v12 offset:{16*b}")
for b in range(8):
    E(f"ds_read_b128 {vr(PF+4*b,4)}, v10 offset:{1024*b}")
stamp(5, True)
E(f"s_cmp_lg_u32 s{sLAY}, 0")
E("s_cbranch_scc1 L_A_havev")
for tp in range(2):
    for b in range(8):
        for e in range(2):
            E(f"ds_read_b64_tr_b16 {vr(VF+(tp*8+b)*4+2*e,2)}, v{T+tp} offset:{(32*b+16*e)*256}")
E("s_waitcnt lgkmcnt(0)")
L("L_A_havev")
E("s_waitcnt lgkmcnt(8)")
F = STT
va = [f"v_max3_f32 v{T+4}, v{STT}, v{STT+2}, v{STT+4}", f"v_max_f32 v{T+6}, v{T+4}, v{STT+6}"]
va += [f"v_sub_f32 v{F+2*b}, v{STT+2*b}, v{T+6}" for b in range(4)]
va += [f"v_exp_f32 v{F+2*b}, v{F+2*b}" for b in range(4)]
va += [f"v_mul_f32 v{T+7}, v{F}, v{STT+1}"] + [f"v_fmac_f32 v{T+7}, v{F+2*b}, v{STT+2*b+1}" for b in range(1, 4)]
E(f"v_readfirstlane_b32 s{sMODE}, v{T+3}")
for x in va[:2]: E(x)
sa = [f"s_cmp_eq_u32 s{sMODE}, 1", f"s_cselect_b32 s{sMB_f}, s{sC2}, 0", f"s_cselect_b32 s{sMB_s}, 0, s{sC2}",
      f"s_cselect_b32 s{sMA_f}, 0x00ff00ff, 0", f"s_cselect_b32 s{sMA_f+1}, 0x00ff00ff, 0", f"s_cselect_b32 s{sMA_s}, 0, 0x00ff00ff",
      f"s_cselect_b32 s{sMA_s+1}, 0, 0x00ff00ff", f"s_cselect_b32 s{sT2}, 0, {ALT}", f"s_add_u32 s{sPe}, s{sPoff}, s{sT2}",
      f"s_add_u32 s{sT2}, s{sLOC}, s{sT2}", f"s_add_u32 s{sT2}, s{sT2}, s{sPub}"]
k = 2
for u in range(8):
    E(f"s_waitcnt lgkmcnt({7-u})")
    for tp in range(2):
        d = vr(OD+(tp*4+u//2)*4,4)
        E(f"v_mfma_f32_16x16x32_bf16 {d}, {vr(VF+(tp*8+u)*4,4)}, {vr(PF+4*u,4)}, {'0' if u % 2 == 0 else d}")
        if k < len(va): E(va[k]); k += 1
        if sa and u >= 1: E(sa.pop(0)); E(sa.pop(0)) if sa else None
    if u == 5:
        assert k == len(va)
        pub2("buffer_store_dwordx2", vr(T+6,2), 14, sT2, sMB_f, sMB_s)
def cb(b):
    for tp in range(2):
        for h in range(2):
            o = vr(OUTV+4*tp+2*h,2)
            if b == 0: E(f"v_pk_mul_f32 {o}, {vr(OD+tp*16+2*h,2)}, {vr(F,2)} op_sel_hi:[1,0]")
            else: E(f"v_pk_fma_f32 {o}, {vr(OD+(tp*4+b)*4+2*h,2)}, {vr(F+2*b,2)}, {o} op_sel_hi:[1,0,1]")
for b in range(4): cb(b)
for r in range(4):
    E(f"v_cndmask_b32 v{OUTV+r}, v{OUTV+r}, v{OUTV+4+r}, s[{sMC_f}:{sMC_f+1}]")
E(f"v_cvt_pk_bf16_f32 v{OUTV}, v{OUTV}, v{OUTV+1}")
E(f"v_cvt_pk_bf16_f32 v{OUTV+1}, v{OUTV+2}, v{OUTV+3}")
E(f"v_pk_min_u16 v{OUTV}, v{OUTV}, s{sFFFE}")
E(f"v_pk_min_u16 v{OUTV+1}, v{OUTV+1}, s{sFFFE}")
pub2("buffer_store_dwordx2", vr(OUTV,2), 13, sPe, sMA_f, sMA_s)
stamp(6, True)
E(f"s_add_u32 s{sPoff}, s{sPoff}, {LS}")
E(f"s_add_u32 s{sLOC}, s{sLOC}, {LS}")
E(f"s_add_u32 s{sLAY}, s{sLAY}, 1")
E(f"s_cmp_lt_u32 s{sLAY}, 2")
E("s_cbranch_scc1 L_A_b1")
stamp_flush(0, 0, (int(OPT.get("dbg", 0)), 36, [60, 2, 3, 5, 6, 19, 22]))
E("s_endpgm")
L("L_A_help")
E(f"s_cmp_eq_u32 s{sWV}, 4")
E("s_cbranch_scc1 L_A_ctl")
E(f"s_sub_u32 s{sT0}, s{sWV}, 5")
E(f"s_lshl_b32 s{sC1}, s{sC1}, 2")
E(f"s_mov_b32 s{sT3}, 0")
L("L_A_vl")
E(f"s_add_u32 s{sT1}, s{sC1}, s{sT0}")
E(f"s_and_b32 s{sT1}, s{sT1}, 63")
E(f"s_and_b32 s{sT2}, s{sT1}, 1")
E(f"s_lshl_b32 s{sT2}, s{sT2}, 7")
E(f"s_lshl_b32 s{sT1}, s{sT1}, 10")
E(f"s_add_u32 m0, s{sT1}, {V_LDS}")
E(f"v_xor_b32 v6, s{sT2}, v5")
E(f"s_waitcnt vmcnt({THV-1})")
E(f"buffer_load_dwordx4 v6, s[{R_B}:{R_B+3}], s{sT1} offen{NTV} lds")
E(f"s_add_u32 s{sT0}, s{sT0}, 3")
E(f"s_cmp_lt_u32 s{sT0}, 64")
E("s_cbranch_scc1 L_A_vl")
stamp(1)
E(f"s_cmp_eq_u32 s{sWV}, 5")
E("s_cbranch_scc0 L_A_pf2")
srd(R_C, sW1, None, 1835008)
E(f"s_mul_i32 s{sT1}, s{sJ}, {32*3584}")
E(f"s_mul_i32 s{sT2}, s{sG}, 448")
E(f"s_add_u32 s{sT1}, s{sT1}, s{sT2}")
E(f"s_add_u32 s{sT2}, s{sT1}, {16*3584}")
E("v_mul_u32_u24 v6, 3584, v2")
E("v_mul_u32_u24 v7, 0x94, v3")
E("v_add_u32 v6, v6, v7")
E("s_branch L_A_pf")
L("L_A_pf2")
E(f"s_mul_i32 s{sT1}, s{sG}, {224*1024}")
E(f"s_mul_i32 s{sT2}, s{sJ}, 14336")
E(f"s_add_u32 s{sT1}, s{sT1}, s{sT2}")
E(f"s_cmp_eq_u32 s{sWV}, 6")
E(f"s_cselect_b32 s{sT3}, 14336, 0")
srd(R_C, sW2, f"s{sT1}", f"s{sT3}")
E(f"s_mov_b32 s{sT1}, 0")
E(f"s_mov_b32 s{sT2}, 8192")
E("v_lshlrev_b32 v6, 7, v1")
L("L_A_pf")
E(f"buffer_load_dword v240, v6, s[{R_C}:{R_C+3}], s{sT1} offen{NTT}")
E(f"buffer_load_dword v240, v6, s[{R_C}:{R_C+3}], s{sT2} offen{NTT}")
warm("a", NM["a"])
E("s_barrier")
E("s_waitcnt vmcnt(2)")
stamp(2)
E("s_barrier")
stamp_flush(5, 2)
E("s_endpgm")
L("L_A_ctl")
E("s_waitcnt vmcnt(0)")
E(f"v_readfirstlane_b32 s{sTAG}, v241")
E("s_nop 3")
E(f"s_add_u32 s{sTAG}, s{sTAG}, 1")
xc_publish()
first_gather("aq0", True, None)
stamp(2)
E("s_waitcnt lgkmcnt(0)")
E("s_barrier")
E(f"s_cmp_eq_u32 s{sMODE}, 1")
E(f"s_cselect_b32 s{sT2}, 0, {ALT}")
E(f"s_add_u32 s{sLe}, s{sLOC}, s{sT2}")
E(f"s_add_u32 s{sLe}, s{sLe}, {LS}")
E(f"v_add_u32 v{cT+2}, {QS_LDS}, v{cL16}")
E("s_barrier")
E("s_waitcnt vmcnt(0)")
arm(cG, 4)
gather1("aq", cG, cL16, sLe, W_Q, cT)
E(f"ds_write_b128 v{cT+2}, {vr(cG,4)}")
stamp(18)
E("s_waitcnt lgkmcnt(0)")
E("s_barrier")
stamp_flush(4, 1)
E("s_endpgm")

vL16, aXIO, aTA, aTB, aIN, aST, aP16, aPY, vONE, aOS, aXS = 4, 5, 6, 7, 8, 9, 10, 11, 12, 13, 14
SEL0, ONESB, XR, XN, XB, vT = 16, 24, 28, 36, 44, 48
TT = 49
vB1, vCS, aGX, vINV, vVAL = 15, 0, 249, 250, 252
GB, WA, ACC, WB = 64, 96, 160, 192
vST, CA, MK, vFLG = 224, 232, 236, 248
NACC = 8

retry_blocks = []
def gather_X(tag, soff, role, hook=None):
    def loads():
        for i in range(8):
            so = soff if i < 4 else sT0
            E(f"buffer_load_dwordx4 {vr(GB+4*i,4)}, v{aGX}, {WSR}, s{so} offen offset:{256*(i%4)} sc1")
    def sums(wait):
        for i in range(8):
            if wait is not None: E(f"s_waitcnt vmcnt({wait + 7 - i})")
            e, w = (i % 4) // 2, i % 2
            c = vr(XR+4*e,4) if i in (0, 2) else vr(XN+4*e,4)
            E(f"v_mfma_f32_16x16x32_bf16 {vr(XN+4*e,4)}, {vr(SEL0+4*w,4)}, {vr(GB+4*i,4)}, {c}")
    E(f"s_add_u32 s{sT0}, s{soff}, 4096")
    if ACK: E("s_waitcnt vmcnt(0)")
    elif GD: E(f"s_sleep {GD}")
    if PROF == 2: stamp(9, True)
    for _ in range(GP - 1):
        loads()
        if GSL: E(f"s_sleep {GSL}")
    E(f"s_branch L_{tag}_again")
    L(f"L_{tag}_nan")
    E(f"s_sub_u32 s{sSPIN}, s{sSPIN}, 1")
    E("s_cbranch_scc1 L_exit")
    E(f"s_and_b32 s{sT1}, s{sSPIN}, 15")
    E(f"s_cbranch_scc0 L_{tag}_retry")
    if GSL: E(f"s_sleep {GSL}")
    L(f"L_{tag}_again")
    loads()
    if hook: hook()
    mark(role)
    sums(8 * (GP - 1))
    E("s_nop 6")
    E(f"v_cmp_u_f32 vcc, v{XN}, v{XN}")
    E(f"v_cmp_u_f32 s[{sS1}:{sS1+1}], v{XN+4}, v{XN+4}")
    for d in range(4):
        E(f"v_cvt_pk_bf16_f32 v{XB+d}, v{XN+2*d}, v{XN+2*d+1}")
    E(f"s_or_b64 vcc, vcc, s[{sS1}:{sS1+1}]")
    E(f"s_cbranch_vccnz L_{tag}_nan")
    L(f"L_{tag}_ok")
    if PROF == 2:
        stamp(11, True)
        E(f"s_mov_b32 s{sST}, s{sSPIN}")
    def blk():
        L(f"L_{tag}_retry")
        for i in range(16): E(f"v_pk_max_u16 v{ACC+i}, v{GB+2*i}, v{GB+2*i+1}")
        for i in range(8): E(f"v_pk_max_u16 v{ACC+i}, v{ACC+2*i}, v{ACC+2*i+1}")
        for i in range(4): E(f"v_pk_max_u16 v{ACC+i}, v{ACC+2*i}, v{ACC+2*i+1}")
        chk_bf16(ACC, TT)
        E(f"s_cbranch_vccnz L_{tag}_again")
        sums(None)
        E("s_nop 7")
        for d in range(4):
            E(f"v_cvt_pk_bf16_f32 v{XB+d}, v{XN+2*d}, v{XN+2*d+1}")
        E(f"s_branch L_{tag}_ok")
    retry_blocks.append(blk)

def relay_X(tag, soff, pre):
    E(f"v_mov_b32 v{vT}, 0")
    E(f"s_cmp_lg_u32 s{sWV}, 0")
    E(f"s_cbranch_scc1 L_{tag}_other")
    pre()
    gather_X(tag, soff, "d2", lambda: w1_setup("a"))
    E(f"ds_write_b128 v{aXS}, {vr(XB,4)}")
    post = f"L_{tag}_join"
    E("s_waitcnt lgkmcnt(0)")
    E("s_barrier")
    E(f"s_branch {post}")
    L(f"L_{tag}_other")
    w1_setup("b")
    E("s_waitcnt vmcnt(0)")
    E("s_barrier")
    E(f"ds_read_b128 {vr(XB,4)}, v{aXS}")
    E("s_waitcnt lgkmcnt(0)")
    L(post)

def unpack_resid(src):
    for d in range(4):
        E(f"v_lshlrev_b32 v{XR+2*d}, 16, v{src+d}")
        E(f"v_and_b32 v{XR+2*d+1}, 0xffff0000, v{src+d}")

def matvec(nsteps, A, W, fillers, rows=None, per=PER):
    if rows is None:
        rows = [(1 << G, 0xf, list(range(4*G, min(4*G+4, nsteps)))) for G in range((nsteps + 3) // 4)]
    acc = lambda s_: ACC + 4*(s_ % NACC)
    ext = []
    for (rm, bm, st_) in rows:
        dp = f"quad_perm:[0,1,2,3] row_mask:{hex(rm)} bank_mask:{hex(bm)}"
        a = lambda s_: f"v{acc(s_) + s_ % 4}"
        ext.append((st_[1], f"v_add_f32_dpp v{vT}, {a(st_[0])}, {a(st_[1])} {dp}"))
        for s_ in st_[2:]:
            ext.append((s_, f"v_add_f32_dpp v{vT}, {a(s_)}, v{vT} {dp}"))
    ext.sort(key=lambda e: e[0])
    st = dict(pos=0, lastT=-1)
    pm = {}
    def put(x, n=1):
        E(x); st["pos"] += n
    def need(e):
        if e[0] not in pm: return 99
        return max(pm[e[0]] + 9 - st["pos"], st["lastT"] + 3 - st["pos"], 0)
    fl = list(fillers)
    for s_ in range(nsteps):
        while ext and ext[0][0] <= s_ - NACC + 1 and s_ >= NACC:
            n = need(ext[0])
            if n: put(f"s_nop {n-1}", n)
            st["lastT"] = st["pos"]; put(ext.pop(0)[1])
        pm[s_] = st["pos"]
        put(f"v_mfma_f32_16x16x32_bf16 {vr(acc(s_),4)}, {vr(A,4)}, {vr(W+4*s_,4)}, 0")
        for _ in range(per):
            if ext and need(ext[0]) == 0:
                st["lastT"] = st["pos"]; put(ext.pop(0)[1])
            elif fl:
                put(fl.pop(0))
    while ext or fl:
        if ext and need(ext[0]) == 0:
            st["lastT"] = st["pos"]; put(ext.pop(0)[1])
        elif fl:
            put(fl.pop(0))
        else:
            n = need(ext[0]); put(f"s_nop {n-1}", n)

def stats_fillers():
    f = []
    for d in range(4):
        f.append(f"v_lshlrev_b32 v{XR+2*d}, 16, v{XB+d}")
        f.append(f"v_and_b32 v{XR+2*d+1}, 0xffff0000, v{XB+d}")
        if d == 0: f.append(f"v_readfirstlane_b32 s{sPIV}, v{XR}")
    D = XN
    for i in range(4):
        f.append(f"v_pk_add_f32 {vr(D+2*i,2)}, {vr(XR+2*i,2)}, s[{sPIV}:{sPIV+1}] op_sel_hi:[1,0] neg_lo:[0,1] neg_hi:[0,1]")
    a, b = TT+1, TT+3
    assert a % 2 == 0
    f.append(f"v_pk_add_f32 {vr(a,2)}, {vr(D,2)}, {vr(D+2,2)}")
    f.append(f"v_pk_mul_f32 {vr(b,2)}, {vr(D,2)}, {vr(D,2)}")
    for i in range(1, 4):
        f.append(f"v_pk_fma_f32 {vr(b,2)}, {vr(D+2*i,2)}, {vr(D+2*i,2)}, {vr(b,2)}")
        if i > 1: f.append(f"v_pk_add_f32 {vr(a,2)}, {vr(a,2)}, {vr(D+2*i,2)}")
    f.append(f"v_add_f32 v{b}, v{b}, v{b+1}")
    f.append(f"v_add_f32 v{a}, v{a}, v{a+1}")
    f.append("s_nop 0")
    for dp in ("quad_perm:[1,0,3,2] row_mask:0xf", "quad_perm:[2,3,0,1] row_mask:0xf", "row_half_mirror row_mask:0xf",
               "row_mirror row_mask:0xf", "row_bcast:15 row_mask:0xa", "row_bcast:31 row_mask:0xc"):
        f.append(f"v_add_f32_dpp v{b}, v{b}, v{b} {dp} bank_mask:0xf")
        f.append(f"v_add_f32_dpp v{a}, v{a}, v{a} {dp} bank_mask:0xf")
        f.append("s_nop 0")
    f.append(f"v_readlane_b32 s{sS2}, v{b}, 63")
    f.append(f"v_readlane_b32 s{sS1}, v{a}, 63")
    f.append(f"v_fma_f32 v{TT+3}, s{sS2}, v{vINV}, v{vINV+1}" if False else "s_nop 0")
    f.append(f"v_fma_f32 v{TT+3}, s{sS2}, v{vINV}, v{vINV+1}")
    f.append(f"v_mul_f32 v{TT+2}, s{sS1}, v{vINV}")
    f.append(f"v_fma_f32 v{TT+3}, -v{TT+2}, v{TT+2}, v{TT+3}")
    f.append(f"v_max_f32 v{TT+3}, v{vINV+1}, v{TT+3}")
    f.append(f"v_rsq_f32 v{TT+3}, v{TT+3}")
    f.append(f"v_add_f32 v{TT+2}, s{sPIV}, v{TT+2}")
    return f

def xgroup_sum(fold8=False):
    if fold8: E(f"v_and_b32 v{vT}, v{vVAL}, v{vT}")
    E(f"v_mov_b32 v{TT+5}, v{vT}")
    E("s_nop 1")
    E(f"v_permlane16_swap_b32 v{vT}, v{TT+5}")
    E(f"v_add_f32 v{vT}, v{vT}, v{TT+5}")
    E(f"v_mov_b32 v{TT+5}, v{vT}")
    E("s_nop 1")
    E(f"v_permlane32_swap_b32 v{vT}, v{TT+5}")
    E(f"v_add_f32 v{vT}, v{vT}, v{TT+5}")
    if fold8:
        E("s_nop 1")
        E(f"v_add_f32_dpp v{vT}, v{vT}, v{vT} row_ror:8 row_mask:0xf bank_mask:0xf")
    E(f"v_fma_f32 v{vT}, -v{TT+2}, v{vCS}, v{vT}")
    E(f"v_mul_f32 v{vT}, v{vT}, v{TT+3}")

def y_publish():
    Y = TT + 3
    assert Y % 4 == 0
    E("s_nop 1")
    E(f"v_mfma_f32_16x16x4_f32 {vr(Y,4)}, v{vT}, v{vONE}, 0")
    E("s_nop 9")
    E(f"v_cvt_pk_bf16_f32 v{Y+4}, v{Y}, v{Y+1}")
    E(f"v_cvt_pk_bf16_f32 v{Y+5}, v{Y+2}, v{Y+3}")
    E(f"v_pk_min_u16 v{Y+4}, v{Y+4}, s{sFFFE}")
    E(f"v_pk_min_u16 v{Y+5}, v{Y+5}, s{sFFFE}")
    E(f"v_mov_b32 v{Y+6}, v{Y+4}")
    E(f"v_mov_b32 v{Y+7}, v{Y+5}")
    E("s_nop 0")
    E(f"v_permlane16_swap_b32 v{Y+4}, v{Y+6}")
    E(f"v_permlane16_swap_b32 v{Y+5}, v{Y+7}")
    E("s_mov_b32 exec_lo, 1")
    E("s_mov_b32 exec_hi, 1")
    E(f"buffer_store_dwordx4 {vr(Y+4,4)}, v{aPY}, {WSR}, s{sPubG} offen sc1")
    E("s_mov_b64 exec, -1")

def pub_resid(off):
    for d in range(4): E(f"v_pk_min_u16 v{TT+7+d}, v{XB+d}, s{sFFFE}")
    pub2("buffer_store_dwordx4", vr(TT+7,4), vL16, sLOC, sMB_f, sMB_s, off)

def read_mode(lo_a):
    E(f"v_mov_b32 v{TT}, {FL_LDS}")
    E(f"ds_read_b32 v{TT+1}, v{TT}")
    E("s_waitcnt lgkmcnt(0)")
    E(f"v_readfirstlane_b32 s{sMODE}, v{TT+1}")
    E(f"s_cmp_eq_u32 s{sPJ}, 0")
    E(f"s_cselect_b32 s{sT1}, -1, 0")
    E("s_nop 2")
    E(f"s_cmp_eq_u32 s{sMODE}, 1")
    masks(sMA_f, sMA_s, lo_a, "0")
    masks(sMB_f, sMB_s, f"s{sT1}", f"s{sT1}")
    E(f"s_cselect_b32 s{sT1}, 0, {ALT}")
    for s_ in (sLOC, sPoff, sPub):
        E(f"s_add_u32 s{s_}, s{s_}, s{sT1}")

L("L_D_init")
ROLE[0] = "d"
E(f"s_and_b32 s{sC}, s{sJ}, 7")
E(f"s_lshl_b32 s{sPJ}, s{sC}, 2")
E(f"s_add_u32 s{sPJ}, s{sPJ}, s{sWV}")
E("v_lshrrev_b32 v242, 3, v1")
E("v_and_b32 v243, 7, v1")
srd(R_B, sX, None, 1024)
E(f"v_lshrrev_b32 v{TT}, 1, v3")
E(f"v_and_b32 v{TT+1}, 1, v3")
E(f"v_lshlrev_b32 v{aXIO}, 8, v{TT}")
E(f"v_lshl_add_u32 v{aXIO}, v2, 4, v{aXIO}")
E(f"v_lshl_add_u32 v{aXIO}, v{TT+1}, 3, v{aXIO}")
E(f"buffer_load_dwordx2 {vr(XB,2)}, v{aXIO}, s[{R_B}:{R_B+3}], 0 offen")
E(f"buffer_load_dwordx2 {vr(XB+2,2)}, v{aXIO}, s[{R_B}:{R_B+3}], 0 offen offset:512")
E(f"v_lshlrev_b32 v{vL16}, 4, v1")
E(f"v_lshrrev_b32 v{TT+2}, 2, v2")
E(f"v_and_b32 v{TT+3}, 3, v2")
E(f"v_lshl_add_u32 v{TT+4}, v{TT}, 7, v{TT+2}")
E(f"v_lshl_add_u32 v{TT+4}, v{TT+1}, 2, v{TT+4}")
E(f"v_lshlrev_b32 v{aP16}, 1, v2")
E(f"v_lshrrev_b32 v{aPY}, 5, v1")
E(f"v_lshlrev_b32 v{aPY}, 4, v{aPY}")
E(f"v_add_u32 v{aXS}, {XS_LDS}, v{vL16}")
E(f"v_mov_b32 v{vONE}, 1.0")
for d in range(4): E(f"v_mov_b32 v{ONESB+d}, 0x3f803f80")
E(f"v_and_b32 v{TT+5}, 1, v2")
E(f"v_lshlrev_b32 v{TT+5}, 4, v{TT+5}")
E(f"v_mov_b32 v{TT+6}, 0x3f80")
E(f"v_lshlrev_b32 v{TT+6}, v{TT+5}, v{TT+6}")
E(f"v_lshrrev_b32 v{TT+7}, 1, v2")
E(f"v_lshlrev_b32 v{aGX}, 10, v3")
E(f"v_lshl_add_u32 v{aGX}, v2, 4, v{aGX}")
for d in range(8):
    E(f"v_cmp_eq_u32 vcc, {d}, v{TT+7}")
    E("s_nop 1")
    E(f"v_cndmask_b32 v{SEL0+d}, 0, v{TT+6}, vcc")
E(f"s_mov_b32 s{sFFFE}, 0xfffefffe")
E(f"v_mov_b32 v{vINV}, {f32(1/512)}")
E(f"v_mov_b32 v{vINV+1}, {f32(1e-5)}")
E(f"s_mov_b32 s{sC3}, {f32(-math.log2(math.e))}")
E(f"s_lshl_b32 s{sT1}, s{sPJ}, 5")
E(f"s_lshl_b32 s{sPubG}, s{sG}, 10")
E(f"s_add_u32 s{sPubG}, s{sPubG}, s{sT1}")
E(f"s_lshl_b32 s{sT2}, s{sWV}, 5")
E(f"s_cmp_ge_u32 s{sJ}, 24")
E("s_cbranch_scc1 L_D2_init")

def ctl_head():
    E("s_waitcnt vmcnt(0)")
    E(f"v_readfirstlane_b32 s{sTAG}, v241")
    for r in range(4): E(f"v_mov_b32 v{cG+r}, -1")
    E(f"s_add_u32 s{sTAG}, s{sTAG}, 1")
def clear_global():
    E(f"s_mov_b32 s{sT1}, {LS}")
    E(f"v_lshrrev_b32 v{cT}, 3, v2")
    E(f"v_mul_lo_u32 v{cT}, v{cT}, s{sT1}")
    E(f"v_lshl_add_u32 v{cT}, v243, 4, v{cT}")
    E(f"v_lshl_add_u32 v{cT}, v3, 13, v{cT}")
    E(f"s_lshl_b32 s{sT1}, s{sG}, 10")
    E(f"s_lshl_b32 s{sT2}, s{sC}, 7")
    E(f"s_add_u32 s{sT1}, s{sT1}, s{sT2}")
    E(f"s_add_u32 s{sT1}, s{sT1}, {W_Y}")
    E("s_mov_b32 exec_hi, 0")
    E(f"buffer_store_dwordx4 {vr(cG,4)}, v{cT}, {WSR}, s{sT1} offen sc1")
    E("s_mov_b64 exec, -1")

E(f"s_lshl_b32 s{sT0}, s{sG}, 10")
E(f"s_lshl_b32 s{sT1}, s{sC}, 7")
E(f"s_add_u32 s{sT0}, s{sT0}, s{sT1}")
E(f"s_sub_u32 s{sT3}, {4194304}, s{sT0}")
srd(R_A, sWQ, f"s{sT0}", f"s{sT3}")
E("v_and_b32 v245, 6, v242")
E("v_xor_b32 v245, v245, v243")
E("v_lshlrev_b32 v244, 13, v242")
E("v_lshl_add_u32 v244, v245, 4, v244")
E(f"s_cmp_ge_u32 s{sWV}, 4")
E("s_cbranch_scc1 L_D1_help")
if TQ: E("s_waitcnt vmcnt(0)")
stamp(1)
E(f"s_lshl_b32 s{sT0}, s{sWV}, 14")
E(f"s_mov_b32 m0, s{sT0}")
E(f"s_lshl_b32 s{sT1}, s{sWV}, 20")
for i in range(16):
    E(f"buffer_load_dwordx4 v244, s[{R_A}:{R_A+3}], s{sT1} offen{NTW} lds")
    if i < 15:
        E("s_add_u32 m0, m0, 1024")
        E(f"s_add_u32 s{sT1}, s{sT1}, 65536")
E(f"v_bfe_u32 v{TT+5}, v{TT+4}, 1, 2")
E(f"v_xor_b32 v{TT+5}, s{sWV}, v{TT+5}")
E(f"v_lshlrev_b32 v{aTA}, 7, v{TT+4}")
E(f"v_lshl_add_u32 v{aTA}, v{TT+3}, 3, v{aTA}")
E(f"v_lshl_add_u32 v{aTA}, v{TT+5}, 5, v{aTA}")
E("s_waitcnt vmcnt(0)")
E("s_barrier")
amp("wq")
stamp(2)
for s in range(16):
    for e in range(2):
        E(f"ds_read_b64_tr_b16 {vr(WA+4*s+2*e,2)}, v{aTA} offset:{32768*e+1024*s}")
E(f"v_lshl_add_u32 v{aTB}, v3, 3, v{TT+2}")
E(f"v_lshlrev_b32 v{aTB}, 7, v{aTB}")
E(f"v_lshl_add_u32 v{aTB}, v{TT+3}, 3, v{aTB}")
E(f"s_add_u32 s{sT2}, s{sT2}, {WB_LDS}")
E(f"v_add_u32 v{aTB}, s{sT2}, v{aTB}")
E(f"v_min_u32 v{aIN}, 6, v2")
E(f"v_lshlrev_b32 v{aIN}, 6, v{aIN}")
E(f"v_lshl_add_u32 v{aIN}, v3, 4, v{aIN}")
E(f"v_readfirstlane_b32 s{sTAG}, v241")
E(f"s_add_u32 s{sPubG}, s{sPubG}, {W_Z}")
E(f"s_mov_b32 s{sZoff}, {W_Z}")
E(f"s_lshl_b32 s{sT1}, s{sPJ}, 5")
E(f"s_add_u32 s{sPub}, s{sLOC}, s{sT1}")
srd(R_B, sOUT, None, 1024)
E(f"s_add_u32 s{sTAG}, s{sTAG}, 1")
for s in range(16):
    E(f"s_waitcnt lgkmcnt({min(15, 30-2*s)})")
    c = "0" if s == 0 else vr(CA,4)
    E(f"v_mfma_f32_16x16x32_bf16 {vr(CA,4)}, {vr(ONESB,4)}, {vr(WA+4*s,4)}, {c}")
E(f"v_mov_b32 v{vT}, 0")
E("s_nop 6")
E(f"v_mov_b32 v{vCS}, v{CA}")
L("L_D1_q")
mark("d1")
matvec(16, XB, WA, stats_fillers())
xgroup_sum()
E(f"s_cmp_eq_u32 s{sLAY}, 0")
E("s_cbranch_scc1 L_D1_qfirst")
E(f"v_cvt_pk_bf16_f32 v{vT}, v{vT}, v{vT}")
E(f"v_min_u32 v{vT}, -2, v{vT}")
pub2("buffer_store_short", f"v{vT}", aP16, sPub, sMA_f, sMA_s, W_Q)
stamp(3, True)
pub_resid(W_X2)
L("L_D1_act")
mark("d1")
AIN = vST
arm(AIN, 4)
E(f"v_mov_b32 v{vT}, 0")
gather1("ga", AIN, aIN, sLOC, W_ACT, TT)
amp("act")
stamp(4, True)
E(f"buffer_load_dwordx4 {vr(CA,4)}, v{vL16}, {WSR}, s{sLOC} offen offset:{W_X1} sc1")
matvec(7, AIN, WB, [], per=1)
y_publish()
stamp(5, True)
E(f"s_add_u32 s{sLAY}, s{sLAY}, 1")
E(f"s_cmp_lt_u32 s{sLAY}, 2")
E("s_cbranch_scc1 L_D1_z")
E(f"s_cmp_lg_u32 s2, 128")
E("s_cbranch_scc1 L_D1_end")
E(f"s_cmp_lg_u32 s{sWV}, 0")
E("s_cbranch_scc1 L_D1_end")
L("L_D1_z")
mark("d1")
def pre_z():
    E("s_waitcnt vmcnt(1)")
    chk_bf16(CA, TT)
    E("s_cbranch_vccz L_gx1_have")
    gather1("gx1", CA, vL16, sLOC, W_X1, TT, pd=1, slp=0)
    L("L_gx1_have")
    unpack_resid(CA)
def relay_z():
    E(f"v_mov_b32 v{vT}, 0")
    E(f"s_cmp_lg_u32 s{sWV}, 0")
    E(f"s_cbranch_scc1 L_gz_other")
    pre_z()
    gather_X("gz", sZoff, "d1")
    E(f"s_cmp_eq_u32 s{sLAY}, 2")
    E("s_cbranch_scc1 L_D1_out")
    E(f"ds_write_b128 v{aXS}, {vr(XB,4)}")
    E("s_waitcnt lgkmcnt(0)")
    E("s_barrier")
    E(f"s_branch L_gz_join")
    L(f"L_gz_other")
    E("s_waitcnt vmcnt(0)")
    E("s_barrier")
    E(f"ds_read_b128 {vr(XB,4)}, v{aXS}")
    E("s_waitcnt lgkmcnt(0)")
    L("L_gz_join")
relay_z()
stamp(6)
for s_ in (sLOC, sPub, sPubG, sZoff):
    E(f"s_add_u32 s{s_}, s{s_}, {LS}")
E("s_branch L_D1_q")
L("L_D1_out")
E(f"buffer_store_dwordx2 {vr(XB,2)}, v{aXIO}, s[{R_B}:{R_B+3}], 0 offen")
E(f"buffer_store_dwordx2 {vr(XB+2,2)}, v{aXIO}, s[{R_B}:{R_B+3}], 0 offen offset:512")
E(f"v_mov_b32 v{TT}, s{sTAG}")
E(f"v_mov_b32 v{TT+1}, {W_EP}")
E("s_mov_b64 exec, 1")
E(f"buffer_store_dword v{TT}, v{TT+1}, {WSR}, 0 offen")
if AMP:
    E("s_memrealtime s[88:89]")
    E("s_waitcnt lgkmcnt(0)")
    if AMP == "end": E("s_mov_b32 s94, s88")
    E("s_sub_u32 s94, s94, s86")
    E("s_lshl_b32 s94, s94, 2")
    E("s_min_u32 s94, s94, 20000")
    E("s_add_u32 s94, s94, s88")
    L("L_amp_spin")
    E("s_memrealtime s[88:89]")
    E("s_waitcnt lgkmcnt(0)")
    E("s_sub_u32 s89, s94, s88")
    E("s_cmp_gt_i32 s89, 0")
    E("s_cbranch_scc1 L_amp_spin")
if PROF:
    stamp(7)
    E("s_waitcnt vmcnt(0)")
    stamp(8)
L("L_D1_end")
stamp_flush(0, 0, (128, 4, [60, 2, 3, 4, 6, 20, 8]))
E("s_endpgm")
L("L_D1_qfirst")
D0 = GB + 12
E("s_nop 0")
E(f"v_mov_b32_dpp v{TT+5}, v{vT} quad_perm:[1,1,3,3] row_mask:0xf bank_mask:0xf")
E(f"v_mov_b32 v{D0+1}, s{sTAG}")
E(f"v_cvt_pk_bf16_f32 v{D0}, v{vT}, v{TT+5}")
E(f"s_lshl_b32 s{sT1}, s{sPJ}, 6")
E(f"v_lshl_add_u32 v{TT+6}, v2, 2, s{sT1}")
E("s_mov_b64 exec, 0x5555")
E(f"buffer_store_dwordx2 {vr(D0,2)}, v{TT+6}, {WSR}, s{sQ0} offen")
E("s_mov_b64 exec, -1")
stamp(3, True)
E(f"v_mov_b32 v{TT+7}, 0")
E(f"buffer_load_dword v{GB+20}, v{TT+7}, s[{R_B}:{R_B+3}], 0 offen")
E("s_barrier")
amp("st")
read_mode("0xffff")
E(f"s_mov_b32 s{sT1}, 0x5555")
E(f"s_cmp_eq_u32 s{sMODE}, 1")
E(f"s_cselect_b32 exec_lo, 0, s{sT1}")
E("s_mov_b32 exec_hi, 0")
E(f"buffer_store_dwordx2 {vr(D0,2)}, v{TT+6}, {WSR}, s{sQ0B} offen sc1")
E("s_mov_b64 exec, -1")
E("s_barrier")
for s in range(7):
    for e in range(2):
        E(f"ds_read_b64_tr_b16 {vr(WB+4*s+2*e,2)}, v{aTB} offset:{4096*s+512*e}")
E("s_waitcnt lgkmcnt(0)")
E("s_branch L_D1_act")
L("L_D1_help")
E(f"s_mul_i32 s{sT0}, s{sG}, {224*1024}")
E(f"s_lshl_b32 s{sT1}, s{sC}, 7")
E(f"s_add_u32 s{sT0}, s{sT0}, s{sT1}")
srd(R_B, sW2, f"s{sT0}", 224*1024 - 896)
E("v_lshlrev_b32 v244, 10, v242")
E("v_lshl_add_u32 v244, v243, 4, v244")
E(f"s_cmp_eq_u32 s{sWV}, 4")
E("s_cbranch_scc1 L_D1_ctl")
warm("d1", NM["d1"])
E("s_branch L_D1_bq")
L("L_D1_ctl")
E(f"v_lshlrev_b32 v{cT}, 7, v2")
E(f"buffer_load_dword v240, v{cT}, {WSR}, s{sQ0} offen sc1")
ctl_head()
xc_publish()
L("L_D1_bq")
E("s_barrier")
E(f"s_cmp_lg_u32 s{sWV}, 4")
E("s_cbranch_scc1 L_D1_w2")
first_gather("d1x", False, None)
stamp(3)
E(f"v_lshlrev_b32 v{cT}, 3, v1")
E(f"s_cmp_eq_u32 s{sMODE}, 1")
E("s_cbranch_scc0 L_D1_b2")
L("L_D1_st")
E(f"buffer_load_dword v{cT+1}, v{cT}, {WSR}, s{sLOC} offen offset:{W_ST} sc1")
E("s_waitcnt vmcnt(0)")
E(f"v_cmp_ne_u32 vcc, -1, v{cT+1}")
E("s_cbranch_vccnz L_D1_b2")
E("s_sleep 8")
spin_check("L_D1_st")
L("L_D1_b2")
E("s_waitcnt lgkmcnt(0)")
L("L_D1_w2")
E("s_barrier")
E(f"s_sub_u32 s{sT0}, s{sWV}, 4")
E(f"s_mul_i32 s{sT1}, s{sT0}, 7168")
E(f"s_add_u32 m0, s{sT1}, {WB_LDS}")
E(f"s_mul_i32 s{sT1}, s{sT0}, {56*1024}")
for i in range(7):
    E(f"buffer_load_dwordx4 v244, s[{R_B}:{R_B+3}], s{sT1} offen{NTW} lds")
    if i < 6:
        E("s_add_u32 m0, m0, 1024")
        E(f"s_add_u32 s{sT1}, s{sT1}, 8192")
E("s_waitcnt vmcnt(0) lgkmcnt(0)")
stamp(4)
E("s_barrier")
stamp_flush(4, 1)
E("s_endpgm")

L("L_D2_init")
E(f"s_lshl_b32 s{sT0}, s{sG}, 19")
E(f"s_lshl_b32 s{sT1}, s{sC}, 7")
E(f"s_add_u32 s{sT0}, s{sT0}, s{sT1}")
E(f"s_sub_u32 s{sT3}, {4194304}, s{sT0}")
srd(R_A, sWO, f"s{sT0}", f"s{sT3}")
E(f"s_min_u32 s{sT1}, s{sC}, 6")
E(f"s_lshl_b32 s{sT1}, s{sT1}, 6")
E(f"s_mul_i32 s{sT0}, s{sG}, 448")
E(f"s_add_u32 s{sS1}, s{sT0}, s{sT1}")
E(f"s_sub_u32 s{sT3}, {1835008}, s{sS1}")
srd(R_B, sW1, f"s{sS1}", f"s{sT3}")
def d2_clear(sc, alt):
    for r in range(4): E(f"v_mov_b32 v{cG+r}, -1")
    E(f"s_lshl_b32 s{sT1}, s{sC}, 11")
    E(f"s_add_u32 s{sT1}, s{sT1}, s{sPoff}")
    if alt: E(f"s_add_u32 s{sT1}, s{sT1}, {ALT}")
    E(f"s_add_u32 s{sT2}, s{sT1}, {LS}")
    for so in (sT1, sT2):
        for o in range(2):
            E(f"buffer_store_dwordx4 {vr(cG,4)}, v{cL16}, {WSR}, s{so} offen offset:{1024*o}{sc}")
    E(f"s_mov_b32 s{sT1}, {LS}")
    E(f"v_lshrrev_b32 v{cT}, 5, v1")
    E(f"v_mul_lo_u32 v{cT}, v{cT}, s{sT1}")
    E(f"v_and_b32 v{cT+1}, 31, v1")
    E(f"v_lshl_add_u32 v{cT}, v{cT+1}, 4, v{cT}")
    E(f"s_lshl_b32 s{sT1}, s{sC}, 9")
    E(f"s_add_u32 s{sT1}, s{sT1}, s{sLOC}")
    if alt: E(f"s_add_u32 s{sT1}, s{sT1}, {ALT}")
    E(f"buffer_store_dwordx4 {vr(cG,4)}, v{cT}, {WSR}, s{sT1} offen{sc}")
srd(R_C, sDBG, None, 256)
E(f"s_cmp_lt_u32 s{sWV}, 4")
E("s_cbranch_scc1 L_D2_comp")
E(f"s_cmp_eq_u32 s{sWV}, 4")
E("s_cbranch_scc1 L_D2_ctl")
warm("d2", NM["d2"])
if LATE0 == 2: E("s_barrier")
E("s_branch L_D2_bw")
L("L_D2_ctl")
d2_clear("", False)
clear_global()
ctl_head()
stamp(1)
xc_publish()
first_gather("d2x", False, lambda: d2_clear(" sc1", True))
stamp(2)
E(f"s_lshl_b32 s{sT1}, s{sG}, 5")
E(f"v_mov_b32 v{cT}, 1")
E(f"v_mov_b32 v{cT+1}, s{sT1}")
E(f"s_cmp_eq_u32 s{sC}, 0")
E("s_cselect_b32 exec_lo, 1, 0")
E("s_mov_b32 exec_hi, 0")
E(f"buffer_store_dword v{cT}, v{cT+1}, s[{R_C}:{R_C+3}], 0 offen sc1")
E("s_mov_b64 exec, -1")
if LATE0 == 2: E("s_barrier")
stamp(3)
E("s_waitcnt lgkmcnt(0)")
L("L_D2_bw")
E("v_lshrrev_b32 v245, 2, v1")
E("v_mul_u32_u24 v245, 3584, v245")
E("v_and_b32 v246, 3, v1")
E("v_and_b32 v247, 1, v3")
E("v_xor_b32 v246, v246, v247")
E("v_lshl_add_u32 v244, v246, 4, v245")
E("v_xor_b32 v246, 2, v246")
E("v_lshl_add_u32 v245, v246, 4, v245")
E(f"s_sub_u32 s{sT0}, s{sWV}, 4")
E(f"s_lshl_b32 s{sT1}, s{sT0}, 13")
E(f"s_add_u32 m0, s{sT1}, {WB_LDS}")
E(f"s_mul_i32 s{sT1}, s{sT0}, {128*3584}")
E("s_barrier")
E(f"s_cmp_lg_u32 s{sWV}, 4")
E("s_cbranch_scc1 L_D2_bo")
E(f"v_lshlrev_b32 v{cT+2}, 5, v1")
E("s_mov_b64 exec, 0xff")
L("L_D2_fpoll")
E(f"buffer_load_dword v{cT+3}, v{cT+2}, s[{R_C}:{R_C+3}], 0 offen sc1")
E("s_waitcnt vmcnt(0)")
E(f"v_cmp_ne_u32 vcc, 1, v{cT+3}")
E("s_cbranch_vccz L_D2_fok")
E("s_sleep 2")
spin_check("L_D2_fpoll")
L("L_D2_fok")
E("s_mov_b64 exec, -1")
L("L_D2_bo")
E("s_barrier")
for i in range(8):
    E(f"buffer_load_dwordx4 v{244 + i//4}, s[{R_B}:{R_B+3}], s{sT1} offen{NTW} lds")
    if i < 7:
        E("s_add_u32 m0, m0, 1024")
        E(f"s_add_u32 s{sT1}, s{sT1}, {16*3584}")
E("s_waitcnt vmcnt(0)")
stamp(4)
E("s_barrier")
stamp_flush(4, 1)
E("s_endpgm")
L("L_D2_comp")
E("v_and_b32 v245, 2, v242")
E("v_xor_b32 v245, v245, v243")
E(f"s_and_b32 s{sT1}, s{sWV}, 1")
E(f"s_lshl_b32 s{sT1}, s{sT1}, 2")
E(f"v_xor_b32 v245, s{sT1}, v245")
E("v_lshlrev_b32 v244, 10, v242")
E("v_lshl_add_u32 v244, v245, 4, v244")
E(f"s_lshl_b32 s{sT0}, s{sWV}, 14")
E(f"s_mov_b32 m0, s{sT0}")
E(f"s_lshl_b32 s{sT1}, s{sWV}, 17")
if LATE0 == 1: E("s_waitcnt vmcnt(0)")
if LATE0 == 2: E("s_barrier")
for i in range(16):
    E(f"buffer_load_dwordx4 v244, s[{R_A}:{R_A+3}], s{sT1} offen{NTW} lds")
    if i < 15:
        E("s_add_u32 m0, m0, 1024")
        E(f"s_add_u32 s{sT1}, s{sT1}, 8192")
srd(R_C, sB1, None, 3584)
E(f"v_and_b32 v{TT+5}, 7, v2")
E(f"v_lshlrev_b32 v{TT+5}, 1, v{TT+5}")
E(f"s_lshl_b32 s{sT1}, s{sWV}, 4")
E(f"s_add_u32 s{sT0}, s{sS1}, s{sT1}")
E(f"buffer_load_ushort v{vB1}, v{TT+5}, s[{R_C}:{R_C+3}], s{sT0} offen")
E(f"v_lshrrev_b32 v{TT+5}, 1, v{TT+2}")
E(f"v_lshl_add_u32 v{TT+5}, v{TT+1}, 1, v{TT+5}")
E(f"v_xor_b32 v{TT+5}, s{sWV}, v{TT+5}")
E(f"v_lshl_add_u32 v{aTA}, v3, 7, v{TT+2}")
E(f"v_lshlrev_b32 v{aTA}, 7, v{aTA}")
E(f"v_lshl_add_u32 v{aTA}, v{TT+3}, 3, v{aTA}")
E(f"v_lshl_add_u32 v{aTA}, v{TT+5}, 5, v{aTA}")
E(f"v_bfe_u32 v{TT+5}, v2, 1, 1")
E(f"v_lshl_add_u32 v{TT+6}, v{TT+5}, 6, v{TT+4}")
E(f"v_lshl_add_u32 v{TT+5}, v{TT+5}, 1, v{TT+1}")
E(f"v_xor_b32 v{TT+5}, s{sWV}, v{TT+5}")
E(f"v_lshlrev_b32 v{aTB}, 6, v{TT+6}")
E(f"v_lshl_add_u32 v{aTB}, v{TT+5}, 4, v{aTB}")
E(f"v_and_b32 v{TT+5}, 1, v2")
E(f"v_lshl_add_u32 v{aTB}, v{TT+5}, 3, v{aTB}")
E(f"v_add_u32 v{aTB}, {WB_LDS}, v{aTB}")
E(f"s_lshl_b32 s{sT1}, s{sWV}, 7")
E(f"v_lshlrev_b32 v{aST}, 5, v3")
E(f"v_add_u32 v{aST}, s{sT1}, v{aST}")
E(f"v_lshlrev_b32 v{aOS}, 4, v2")
E(f"v_lshl_add_u32 v{aOS}, v{TT+1}, 3, v{aOS}")
E(f"v_lshl_add_u32 v{aOS}, v{TT}, 2, v{aOS}")
E(f"s_lshl_b32 s{sT1}, s{sWV}, 8")
E(f"s_add_u32 s{sT1}, s{sT1}, {OS_LDS}")
E(f"v_add_u32 v{aOS}, s{sT1}, v{aOS}")
E(f"v_add_u32 v{aIN}, {OS_LDS}, v{vL16}")
E(f"v_lshlrev_b32 v{TT+5}, 4, v{TT+5}")
E(f"v_mov_b32 v{TT+6}, 0xffff")
E(f"v_lshlrev_b32 v{TT+6}, v{TT+5}, v{TT+6}")
E(f"v_bfe_u32 v{TT+7}, v2, 1, 2")
for d in range(4):
    E(f"v_cmp_eq_u32 vcc, {d}, v{TT+7}")
    E("s_nop 1")
    E(f"v_cndmask_b32 v{MK+d}, 0, v{TT+6}, vcc")
E(f"v_lshrrev_b32 v{vFLG}, 3, v2")
E(f"v_cmp_eq_u32 vcc, v{vFLG}, v{TT}")
E(f"v_cvt_f32_u32 v{vFLG}, v{vFLG}")
E("s_nop 0")
E(f"v_cndmask_b32 v{vVAL}, 0, -1, vcc")
E(f"s_lshl_b32 s{sT1}, s{sWV}, 12")
E(f"s_add_u32 s{sPoff}, s{sPoff}, s{sT1}")
E(f"s_lshl_b32 s{sT1}, s{sPJ}, 4")
E(f"s_add_u32 s{sPub}, s{sLOC}, s{sT1}")
E(f"s_add_u32 s{sPubG}, s{sPubG}, {W_Y}")
E(f"s_mov_b32 s{sYoff}, {W_Y}")
E(f"s_mov_b32 s{sC2}, 0")
E("s_waitcnt vmcnt(0)")
unpack_resid(XB)
E(f"v_lshlrev_b32 v{vB1}, 16, v{vB1}")
stamp(1)
E("s_barrier")
stamp(2)
for s in range(16):
    for e in range(2):
        E(f"ds_read_b64_tr_b16 {vr(WA+4*s+2*e,2)}, v{aTA} offset:{1024*s+512*e}")
read_mode("0xff")
E(f"s_cmp_lt_u32 s{sC}, 7")
E(f"s_cselect_b32 s{sMA_f}, s{sMA_f}, 0")
E(f"s_cselect_b32 s{sMA_s}, s{sMA_s}, 0")
L("L_D2_loop")
mark("d2")
def p_loads():
    for i in range(4):
        E(f"buffer_load_dwordx4 {vr(GB+4*i,4)}, v{vL16}, {WSR}, s{sPoff} offen offset:{1024*i} sc1")
arm(vST, 8)
p_loads()
L("L_gs_poll")
E(f"buffer_load_dwordx4 {vr(vST,4)}, v{aST}, {WSR}, s{sLOC} offen offset:{W_ST} sc1")
E(f"buffer_load_dwordx4 {vr(vST+4,4)}, v{aST}, {WSR}, s{sLOC} offen offset:{W_ST+16} sc1")
E(f"s_waitcnt vmcnt({2*(PD-1)})")
E(f"v_max3_u32 v{TT}, v{vST}, v{vST+1}, v{vST+2}")
E(f"v_max3_u32 v{TT+1}, v{vST+3}, v{vST+4}, v{vST+5}")
E(f"v_max3_u32 v{TT}, v{TT}, v{vST+6}, v{vST+7}")
E(f"v_max_u32 v{TT}, v{TT}, v{TT+1}")
E(f"v_cmp_eq_u32 vcc, -1, v{TT}")
E("s_cbranch_vccz L_gs_ok")
if SLP: E(f"s_sleep {SLP}")
spin_check("L_gs_poll")
L("L_gs_ok")
p_loads()
stamp(3, True)
vM, vU, vLs = TT, TT+1, TT+2
WT = TT + 3
AW = GB + 16
E(f"v_max3_f32 v{vM}, v{vST}, v{vST+2}, v{vST+4}")
E(f"v_max_f32 v{vM}, v{vM}, v{vST+6}")
for sw in ("16", "32"):
    E(f"v_mov_b32 v{vU}, v{vM}")
    E("s_nop 1")
    E(f"v_permlane{sw}_swap_b32 v{vM}, v{vU}")
    E(f"v_max_f32 v{vM}, v{vM}, v{vU}")
for t in range(4): E(f"v_sub_f32 v{WT+t}, v{vST+2*t}, v{vM}")
for t in range(4): E(f"v_exp_f32 v{WT+t}, v{WT+t}")
E("s_nop 0")
E(f"v_mul_f32 v{vLs}, v{WT}, v{vST+1}")
for t in range(1, 4): E(f"v_fmac_f32 v{vLs}, v{WT+t}, v{vST+2*t+1}")
for sw in ("16", "32"):
    E(f"v_mov_b32 v{vU}, v{vLs}")
    E("s_nop 1")
    E(f"v_permlane{sw}_swap_b32 v{vLs}, v{vU}")
    E(f"v_add_f32 v{vLs}, v{vLs}, v{vU}")
E(f"v_rcp_f32 v{vLs}, v{vLs}")
p_loads()
for t in range(4): E(f"v_mul_f32 v{WT+t}, v{WT+t}, v{vLs}")
for t in range(4): E(f"v_cvt_pk_bf16_f32 v{WT+4+t}, v{WT+t}, v{WT+t}")
for t in range(4): E(f"v_and_b32 v{WT+4+t}, 0xffff0000, v{WT+4+t}")
for t in range(4): E(f"v_fma_f32 v{WT+t}, -v{WT+4+t}, v{vFLG}, v{WT+t}")
for t in range(4): E(f"v_cvt_pk_bf16_f32 v{WT+t}, v{WT+t}, v{WT+t}")
for t in range(4):
    for d in range(4): E(f"v_and_b32 v{AW+4*t+d}, v{MK+d}, v{WT+t}")
E("s_branch L_gp_use")
L("L_gp_nan")
E(f"s_sub_u32 s{sSPIN}, s{sSPIN}, 1")
E("s_cbranch_scc1 L_exit")
E(f"s_and_b32 s{sT1}, s{sSPIN}, 15")
E("s_cbranch_scc0 L_gp_retry")
L("L_gp_again")
p_loads()
L("L_gp_use")
E("s_waitcnt vmcnt(4)")
for t in range(4):
    E(f"v_mfma_f32_16x16x32_bf16 {vr(CA,4)}, {vr(AW+4*t,4)}, {vr(GB+4*t,4)}, {'0' if t == 0 else vr(CA,4)}")
E("s_nop 7")
E(f"v_cmp_u_f32 vcc, v{CA}, v{CA}")
E(f"v_permlane32_swap_b32 v{CA}, v{CA+2}")
E(f"v_permlane32_swap_b32 v{CA+1}, v{CA+3}")
E("s_cbranch_vccnz L_gp_nan")
L("L_gp_ok")
E(f"v_add_f32 v{CA}, v{CA}, v{CA+2}")
E(f"v_add_f32 v{CA+1}, v{CA+1}, v{CA+3}")
E(f"v_cvt_pk_bf16_f32 v{CA}, v{CA}, v{CA+1}")
E(f"ds_write_b32 v{aOS}, v{CA}")
E(f"v_mov_b32 v{vT}, 0")
stamp(4, True)
mark("d2")
E("s_waitcnt lgkmcnt(0)")
E("s_barrier")
E(f"ds_read_b128 {vr(XB,4)}, v{aIN}")
E(f"buffer_load_dwordx4 {vr(CA,4)}, v{vL16}, {WSR}, s{sLOC} offen offset:{W_X2} sc1")
E("s_waitcnt lgkmcnt(0)")
matvec(16, XB, WA, [], per=1)
y_publish()
stamp(5, True)
mark("d2")
def w1_setup(tag):
    E(f"s_cmp_lg_u32 s{sC2}, 0")
    E(f"s_cbranch_scc1 L_D2_havew1{tag}")
    E(f"s_mov_b32 s{sC2}, 1")
    E("s_barrier")
    for s in range(8):
        for e in range(2):
            E(f"ds_read_b64_tr_b16 {vr(WB+4*s+2*e,2)}, v{aTB} offset:{16384*e+512*s}")
    for s in range(8):
        E(f"s_waitcnt lgkmcnt({14-2*s})")
        c = "0" if s == 0 else vr(ACC,4)
        E(f"v_mfma_f32_16x16x32_bf16 {vr(ACC,4)}, {vr(ONESB,4)}, {vr(WB+4*s,4)}, {c}")
    E("s_nop 7")
    E(f"v_add_f32_dpp v{vCS}, v{ACC}, v{ACC} row_ror:8 row_mask:0xf bank_mask:0xf")
    L(f"L_D2_havew1{tag}")
def pre_y():
    E(f"s_cmp_eq_u32 s{sLAY}, 0")
    E("s_cbranch_scc1 L_D2_havex")
    E("s_waitcnt vmcnt(1)")
    chk_bf16(CA, TT)
    E("s_cbranch_vccz L_gx2_have")
    gather1("gx2", CA, vL16, sLOC, W_X2, TT, pd=1, slp=0)
    L("L_gx2_have")
    unpack_resid(CA)
    L("L_D2_havex")
relay_X("gy", sYoff, pre_y)
stamp(6, True)
mark("d2")
matvec(8, XB, WB, stats_fillers(), rows=[(0x5, 0xf, [0,1,2,3]), (0xa, 0xf, [4,5,6,7])], per=PER+2)
mark("d2")
xgroup_sum(True)
h, u, a, b = vT, TT+5, TT+6, TT+7
E(f"v_add_f32 v{h}, v{h}, v{vB1}")
E(f"v_mul_f32 v{u}, s{sC3}, |v{h}|")
E(f"v_exp_f32 v{u}, v{u}")
E(f"v_cmp_le_f32 vcc, 0, v{h}")
E(f"v_add_f32 v{b}, 2.0, v{u}")
E(f"v_fma_f32 v{a}, v{u}, 2.0, 1.0")
E(f"v_mul_f32 v{b}, v{u}, v{b}")
E(f"v_mul_f32 v{u}, v{u}, v{u}")
E(f"v_cndmask_b32 v{a}, v{b}, v{a}, vcc")
E(f"v_cndmask_b32 v{u}, 1.0, v{u}, vcc")
E(f"v_fma_f32 v{b}, v{u}, 2.0, v{a}")
E(f"v_rcp_f32 v{b}, v{b}")
E(f"v_mul_f32 v{h}, v{h}, v{a}")
E(f"v_mul_f32 v{h}, v{h}, v{b}")
E(f"v_cvt_pk_bf16_f32 v{h}, v{h}, v{h}")
E(f"v_min_u32 v{h}, -2, v{h}")
pub2("buffer_store_short", f"v{h}", aP16, sPub, sMA_f, sMA_s, W_ACT)
stamp(7, True)
pub_resid(W_X1)
for s_ in (sLOC, sPoff, sPub, sPubG, sYoff):
    E(f"s_add_u32 s{s_}, s{s_}, {LS}")
E(f"s_add_u32 s{sLAY}, s{sLAY}, 1")
E(f"s_cmp_lt_u32 s{sLAY}, 2")
E("s_cbranch_scc1 L_D2_loop")
stamp_flush(0, 0)
L("L_exit")
E("s_endpgm")
L("L_gp_retry")
for i in range(0, 16, 2): E(f"v_pk_max_u16 v{ACC+i//2}, v{GB+i}, v{GB+i+1}")
for i in range(0, 8, 2): E(f"v_pk_max_u16 v{ACC+i//2}, v{ACC+i}, v{ACC+i+1}")
chk_bf16(ACC, TT)
E("s_cbranch_vccnz L_gp_again")
for t in range(4):
    E(f"v_mfma_f32_16x16x32_bf16 {vr(CA,4)}, {vr(AW+4*t,4)}, {vr(GB+4*t,4)}, {'0' if t == 0 else vr(CA,4)}")
E("s_nop 9")
E(f"v_permlane32_swap_b32 v{CA}, v{CA+2}")
E(f"v_permlane32_swap_b32 v{CA+1}, v{CA+3}")
E("s_branch L_gp_ok")
for b_ in retry_blocks: b_()
L("L_wret")
E(f"s_setpc_b64 s[{sRET}:{sRET+1}]")
for r_, n_ in NM.items(): assert not WARM or len(marks[r_]) == n_, (r_, len(marks[r_]))

out.append('.section .rodata,"a"')
out.append(".p2align 6")
out.append(f".amdhsa_kernel {NAME}_kernel")
out.append("  .amdhsa_next_free_vgpr 256")
out.append("  .amdhsa_next_free_sgpr 96")
out.append("  .amdhsa_accum_offset 256")
out.append("  .amdhsa_group_segment_fixed_size 0")
out.append("  .amdhsa_kernarg_size 96")
out.append("  .amdhsa_user_sgpr_count 2")
out.append("  .amdhsa_user_sgpr_kernarg_segment_ptr 1")
out.append("  .amdhsa_system_sgpr_workgroup_id_x 1")
out.append("  .amdhsa_float_denorm_mode_32 3")
out.append(".end_amdhsa_kernel")
open(sys.argv[1], "w").write("\n".join(out) + "\n")
```

```python
import sys, math, struct
PROF = int(sys.argv[2]) if len(sys.argv) > 2 else 0
OPT = dict(a.split("=") for a in sys.argv[3:])
THR = int(OPT.get("thr", 6))
ACK = int(OPT.get("ack", 1))
PER = int(OPT.get("per", 3))
PD = int(OPT.get("pd", 4))
SLP = int(OPT.get("slp", 1))
LATE0 = int(OPT.get("late0", 0))
GP = int(OPT.get("gp", 1))
GSL = int(OPT.get("gsl", 0))
THV = int(OPT.get("thv", 8))
GD = int(OPT.get("gd", 0))
fl = lambda k, d: {"0": "", "1": " nt", "2": " sc1", "3": " sc0 sc1", "4": " sc1 nt"}[OPT.get(k, d)]
NTQ, NTW, NTK, NTV = fl("ntq", "0"), fl("ntw", "0"), fl("ntk", "1"), fl("ntv", "0")
TQ = int(OPT.get("tq", 1))
MARKGAP = int(OPT.get("gap", 768))
CPF = int(OPT.get("cpf", 1))
WARM = int(OPT.get("warm", 1))
NTT = fl("ntt", "0")
NAME = "interleave_layers__sliding_block_cached__dense_activation_mish__decode"
import re
ORDER = ["entry", "dinit", "d1", "actl", "a", "d2", "help", "cold"]
secs = {k: [] for k in ORDER}
cur = ["entry"]
since = {k: 0 for k in ORDER}
unsafe = [False]
marks = {k: [] for k in ORDER}
WARMED = ("d1", "a", "d2")
BIG = ("v_mfma", "v_pk_", "v_fma_", "v_max3", "v_or3", "v_add3", "v_lshl_add", "v_bfe", "v_mul_lo", "v_cvt_pk", "v_readlane", "v_writelane",
       "ds_", "buffer_", "global_", "s_load", "s_memrealtime")
def isize(t):
    if t.startswith(BIG) or "_dpp" in t or "|v" in t or (t.startswith(("v_cmp", "v_cndmask")) and "s[" in t): return 8
    ops = t.split(None, 1)[1] if " " in t else ""
    if t.startswith(("s_waitcnt", "s_nop", "s_sleep", "s_branch", "s_cbranch", "s_call", "s_getreg", "s_setprio")): return 4
    for tok in re.split(r"[,\s]+", ops):
        if re.fullmatch(r"0x[0-9a-f]+|\d+", tok) and int(tok, 0) > 64: return 8
    return 4
def sec(name): cur[0] = name
def put_mark():
    k = cur[0]
    marks[k].append(f"L_wm_{k}{len(marks[k])}")
    secs[k].append(marks[k][-1] + ":")
    secs[k].append("    s_cbranch_execz L_wret")
    since[k] = 4
def E(s=""):
    k = cur[0]
    if WARM and k in WARMED and not unsafe[0] and (since[k] >= MARKGAP or not marks[k]): put_mark()
    secs[k].append("    " + s)
    since[k] += isize(s)
    if re.match(r"s_\w+ exec", s): unsafe[0] = s != "s_mov_b64 exec, -1"
def L(s): secs[cur[0]].append(s + ":")
def vr(a, n=1): return f"v{a}" if n == 1 else f"v[{a}:{a+n-1}]"
def f32(x): return hex(struct.unpack("<I", struct.pack("<f", x))[0])

K_LDS, V_LDS = 0, 65536
WA_LDS, WB_LDS = 0, 65536
QS_LDS, PX_LDS, SX_LDS, FL_LDS = 131072, 132096, 140288, 141312
OS_LDS, XS_LDS = QS_LDS, PX_LDS
LDS_BYTES = 141824
LS = 0x30000
W_Q, W_X2, W_X1, W_ST, W_ACT = 0, 1024, 2048, 3072, 3584
W_Y, W_Z, W_P = 32768, 40960, 65536
W_Q0 = 2 * LS
W_Q0B = 32768
W_EP = W_Q0 + 65536
ALT = 0x80000
WS_USED = ALT + 2 * LS
PROF_OFF = 0x300000
WS_REC = PROF_OFF + 256 * 1024

sX, sK, sV, sWQ, sWO, sBX, sW1, sB1 = 8, 10, 12, 14, 16, 18, 20, 22
sW2, sOUT, sDBG, sWS = 24, 26, 28, 30
sG, sJ, sWV, sC, sPJ = 3, 4, 5, 6, 7
R_WS, R_A, R_B, R_C = 32, 36, 40, 44
sT0, sT1, sT2, sT3 = 48, 49, 50, 51
sLOC, sLAY = 52, 53
sYoff, sZoff, sPoff = 54, 55, 56
sSPIN = 57
sRET = 58
sMA_f, sMA_s, sMB_f, sMB_s, sMC_f, sMC_s = 60, 62, 64, 66, 68, 70
sTAG, sXCC, sQ0, sQ0B = 72, 73, 74, 75
sFFFE = 76
sC1, sC2, sC3 = 77, 78, 79
sS1, sS2, sPIV = 80, 81, 82
sPub, sPubG = 83, 84
sST = 88
sPe, sLe, sMODE = 90, 91, 92
SPIN0 = 0x200000
WSR = f"s[{R_WS}:{R_WS+3}]"

def srd(r, base, add_lo=None, rec=None):
    if add_lo is None:
        E(f"s_mov_b32 s{r}, s{base}")
        E(f"s_and_b32 s{r+1}, s{base+1}, 0xffff")
    else:
        E(f"s_add_u32 s{r}, s{base}, {add_lo}")
        E(f"s_addc_u32 s{r+1}, s{base+1}, 0")
        E(f"s_and_b32 s{r+1}, s{r+1}, 0xffff")
    E(f"s_mov_b32 s{r+2}, {rec}")
    E(f"s_mov_b32 s{r+3}, 0x00020000")

V_STAMP = 254
ROLE = ["a"]
def stamp(idx, layer_dep=False):
    if not PROF: return
    if PROF == 9 and not (idx == 8 and not layer_dep) and not (idx == 6 and layer_dep and ROLE[0] == "a"): return
    E(f"s_memrealtime s[{sST}:{sST+1}]")
    E("s_waitcnt lgkmcnt(0)")
    if layer_dep:
        E(f"s_lshl_b32 s{sT3}, s{sLAY}, 4")
        E(f"s_add_u32 s{sT3}, s{sT3}, {idx}")
        E(f"s_mov_b32 m0, s{sT3}")
        E("s_nop 0")
        E(f"v_writelane_b32 v{V_STAMP}, s{sST}, m0")
    else:
        E(f"v_writelane_b32 v{V_STAMP}, s{sST}, {idx}")
AMP = OPT.get("amp")
def amp(name):
    if AMP != name: return
    E(f"s_cmp_eq_u32 s{sLAY}, {OPT.get('amplay', '0')}")
    E(f"s_cbranch_scc0 L_amp_{name}")
    E("s_memrealtime s[94:95]")
    E("s_waitcnt lgkmcnt(0)")
    L(f"L_amp_{name}")
def stamp_flush(wave, slot, dbg=None):
    if not PROF: return
    E(f"s_cmp_lg_u32 s{sWV}, {wave}")
    E("s_cbranch_scc1 L_exit")
    E("s_mov_b64 exec, -1")
    if dbg and "dbg" in OPT:
        wg, off, idx = dbg
        for i, x in enumerate(idx):
            E(f"v_readlane_b32 s{sT0}, v{V_STAMP}, {x}")
            E("s_nop 3")
            E(f"v_writelane_b32 v{V_STAMP-2}, s{sT0}, {i}")
        srd(R_A, sDBG, None, 256)
        E(f"v_lshlrev_b32 v{V_STAMP-1}, 2, v1")
        E(f"s_cmp_eq_u32 s2, {wg}")
        E(f"s_cselect_b32 exec_lo, {(1 << len(idx)) - 1}, 0")
        E("s_mov_b32 exec_hi, 0")
        E(f"buffer_store_dword v{V_STAMP-2}, v{V_STAMP-1}, s[{R_A}:{R_A+3}], 0 offen offset:{off}")
        E("s_mov_b64 exec, -1")
    E(f"s_lshl_b32 s{sT0}, s2, 10")
    E(f"s_add_u32 s{sT0}, s{sT0}, {PROF_OFF + slot*256}")
    E(f"v_lshlrev_b32 v{V_STAMP-1}, 2, v1")
    E(f"buffer_store_dword v{V_STAMP}, v{V_STAMP-1}, {WSR}, s{sT0} offen")

def mark(role): pass
def warm(role, first=0, step=1):
    if WARM: secs[cur[0]].append(("WARM", role, first, step))

def spin_check(fail_label):
    E(f"s_sub_u32 s{sSPIN}, s{sSPIN}, 1")
    E(f"s_cbranch_scc1 L_exit")
    E(f"s_branch {fail_label}")

def chk_bf16(v, t):
    E(f"v_pk_max_u16 v{t}, v{v}, v{v+1}")
    E(f"v_pk_max_u16 v{t+1}, v{v+2}, v{v+3}")
    E(f"v_pk_max_u16 v{t}, v{t}, v{t+1}")
    E(f"v_pk_max_u16 v{t}, v{t}, v{t} op_sel:[0,1] op_sel_hi:[1,0]")
    E(f"v_cmp_eq_u32 vcc, -1, v{t}")

def pub2(op, data, addr, soff, mf, ms, imm=0):
    o = f" offset:{imm}" if imm else ""
    E(f"s_mov_b64 exec, s[{mf}:{mf+1}]")
    E(f"{op} {data}, v{addr}, {WSR}, s{soff} offen{o}")
    E(f"s_mov_b64 exec, s[{ms}:{ms+1}]")
    E(f"{op} {data}, v{addr}, {WSR}, s{soff} offen{o} sc1")
    E("s_mov_b64 exec, -1")

def masks(mf, ms, lo, hi):
    E(f"s_cselect_b32 s{mf}, {lo}, 0")
    E(f"s_cselect_b32 s{mf+1}, {hi}, 0")
    E(f"s_cselect_b32 s{ms}, 0, {lo}")
    E(f"s_cselect_b32 s{ms+1}, 0, {hi}")

def arm(dst, n):
    for r in range(n): E(f"v_mov_b32 v{dst+r}, -1")

def gather1(tag, dst, addr, soff, imm, t, pd=None, slp=None):
    pd = PD if pd is None else pd
    slp = SLP if slp is None else slp
    L(f"L_{tag}_poll")
    E(f"buffer_load_dwordx4 {vr(dst,4)}, v{addr}, {WSR}, s{soff} offen offset:{imm} sc1")
    E(f"s_waitcnt vmcnt({pd-1})")
    chk_bf16(dst, t)
    E(f"s_cbranch_vccz L_{tag}_ok")
    if slp: E(f"s_sleep {slp}")
    spin_check(f"L_{tag}_poll")
    L(f"L_{tag}_ok")

cD, cA, cXa, cG, cT, cL16 = 208, 210, 211, 212, 224, 232
def xc_publish():
    E(f"s_getreg_b32 s{sXCC}, hwreg(HW_REG_XCC_ID, 0, 4)")
    E(f"v_mov_b32 v{cD+1}, s{sTAG}")
    E(f"s_lshl_b32 s{sT3}, s{sJ}, 3")
    E(f"v_mov_b32 v{cD}, s{sXCC}")
    E(f"v_mov_b32 v{cA}, s{sT3}")
    E("s_mov_b64 exec, 1")
    E(f"buffer_store_dwordx2 {vr(cD,2)}, v{cA}, {WSR}, s{sQ0} offen offset:2048")
    E("s_mov_b64 exec, -1")

def first_gather(tag, with_q, clear_alt):
    regs = (1, 3, 5, 7, 9) if with_q else (9,)
    nl = 3 if with_q else 1
    E(f"s_sub_u32 s{sS2}, s{sSPIN}, 160")
    E(f"v_and_b32 v{cXa}, 31, v1")
    E(f"v_lshlrev_b32 v{cXa}, 3, v{cXa}")
    E(f"s_not_b32 s{sT1}, s{sTAG}")
    for r in regs: E(f"v_mov_b32 v{cG+r}, s{sT1}")
    def loads(so):
        if with_q:
            E(f"buffer_load_dwordx4 {vr(cG,4)}, v{cL16}, {WSR}, s{so} offen sc1")
            E(f"buffer_load_dwordx4 {vr(cG+4,4)}, v{cL16}, {WSR}, s{so} offen offset:1024 sc1")
        E(f"buffer_load_dwordx2 {vr(cG+8,2)}, v{cXa}, {WSR}, s{so} offen offset:2048 sc1")
    def check():
        if with_q:
            for i, r in enumerate(regs): E(f"v_xor_b32 v{cT+i}, s{sTAG}, v{cG+r}")
            E(f"v_or3_b32 v{cT}, v{cT}, v{cT+1}, v{cT+2}")
            E(f"v_or3_b32 v{cT}, v{cT}, v{cT+3}, v{cT+4}")
            E(f"v_cmp_ne_u32 vcc, 0, v{cT}")
        else:
            E(f"v_cmp_ne_u32 vcc, s{sTAG}, v{cG+9}")
    def copy_b():
        E("s_mov_b64 exec, 1")
        E(f"buffer_store_dwordx2 {vr(cD,2)}, v{cA}, {WSR}, s{sQ0B} offen offset:2048 sc1")
        E("s_mov_b64 exec, -1")
    L(f"L_{tag}_poll")
    loads(sQ0)
    E(f"s_waitcnt vmcnt({min(nl*6, 60)})")
    check()
    E(f"s_cbranch_vccz L_{tag}_seen")
    E("s_sleep 3")
    E(f"s_cmp_gt_u32 s{sSPIN}, s{sS2}")
    E(f"s_cbranch_scc0 L_{tag}_b")
    spin_check(f"L_{tag}_poll")
    home = cur[0]; sec("cold")
    L(f"L_{tag}_b")
    copy_b()
    L(f"L_{tag}_alt")
    for so in (sQ0B, sQ0):
        loads(so)
        E("s_waitcnt vmcnt(0)")
        check()
        E(f"s_cbranch_vccz L_{tag}_ok")
    spin_check(f"L_{tag}_alt")
    sec(home)
    L(f"L_{tag}_seen")
    E("s_nop 15")
    L(f"L_{tag}_ok")
    if with_q:
        E(f"v_lshlrev_b32 v{cT+1}, 3, v1")
        E(f"v_add_u32 v{cT+1}, {QS_LDS}, v{cT+1}")
        E(f"ds_write2_b32 v{cT+1}, v{cG}, v{cG+2} offset0:0 offset1:1")
        E(f"ds_write2_b32 v{cT+1}, v{cG+4}, v{cG+6} offset0:128 offset1:129")
    E(f"v_cmp_ne_u32 vcc, s{sXCC}, v{cG+8}")
    E("s_nop 3")
    if OPT.get("slow") == "1": E("s_mov_b64 vcc, -1")
    E("s_cmp_eq_u64 vcc, 0")
    E(f"s_cselect_b32 s{sMODE}, 1, 0")
    E(f"s_cbranch_scc0 L_{tag}_slow")
    sec("cold")
    L(f"L_{tag}_slow")
    E("s_waitcnt vmcnt(0) lgkmcnt(0)")
    copy_b()
    if clear_alt: clear_alt()
    if clear_alt:
        E("s_waitcnt vmcnt(0)")
        E("s_mov_b64 exec, 1")
        E(f"buffer_store_dwordx2 {vr(cD,2)}, v{cA}, {WSR}, s{sQ0B} offen offset:2560 sc1")
        E("s_mov_b64 exec, -1")
    E(f"v_and_b32 v{cXa}, 56, v{cXa}")
    E(f"v_add_u32 v{cXa}, 192, v{cXa}")
    L(f"L_{tag}_h")
    E(f"buffer_load_dwordx2 {vr(cG+8,2)}, v{cXa}, {WSR}, s{sQ0B} offen offset:2560 sc1")
    E("s_waitcnt vmcnt(0)")
    E(f"v_cmp_ne_u32 vcc, s{sTAG}, v{cG+9}")
    E(f"s_cbranch_vccz L_{tag}_done")
    spin_check(f"L_{tag}_h")
    sec(home)
    L(f"L_{tag}_done")
    E(f"v_mov_b32 v{cT+2}, {FL_LDS}")
    E(f"v_mov_b32 v{cT+3}, s{sMODE}")
    E(f"ds_write_b32 v{cT+2}, v{cT+3}")

L(f"{NAME}_kernel")
E("s_cmp_ge_u32 s2, 256")
E("s_cbranch_scc1 L_exit")
E("s_load_dwordx16 s[8:23], s[0:1], 0")
E("s_load_dwordx8 s[24:31], s[0:1], 64")
if PROF:
    E(f"v_mov_b32 v{V_STAMP}, 0")
    E(f"s_memrealtime s[{sST}:{sST+1}]")
if AMP: E("s_memrealtime s[86:87]")
E("s_getpc_b64 s[92:93]")
E("v_lshrrev_b32 v1, 6, v0")
E(f"s_and_b32 s{sG}, s2, 7")
E(f"v_readfirstlane_b32 s{sWV}, v1")
E(f"s_lshr_b32 s{sJ}, s2, 3")
E("v_and_b32 v1, 63, v0")
if CPF:
    E("s_and_b32 s92, s92, 0xffffff00")
    E("v_lshlrev_b32 v4, 7, v1")
    E("v_add_u32 v5, 0x2000, v4")
    E(f"v_min_u32 v5, L_code_end-{NAME}_kernel-4, v5")
    E(f"s_cmp_lg_u32 s{sWV}, 7")
    E("s_cbranch_scc1 L_nocpf")
    E("global_load_dword v239, v4, s[92:93]")
    E("global_load_dword v239, v5, s[92:93]")
    L("L_nocpf")
E("v_and_b32 v2, 15, v0")
E("v_lshrrev_b32 v3, 4, v1")
E(f"s_mov_b32 s{sSPIN}, {SPIN0}")
E(f"s_mov_b32 s{sLAY}, 0")
E(f"s_lshl_b32 s{sLOC}, s{sG}, 12")
E(f"s_lshl_b32 s{sPoff}, s{sG}, 14")
E(f"s_add_u32 s{sPoff}, s{sPoff}, {W_P}")
E(f"s_add_u32 s{sQ0}, s{sLOC}, {W_Q0}")
E(f"s_add_u32 s{sQ0B}, s{sQ0}, {W_Q0B}")
E("v_lshrrev_b32 v5, 3, v1")
E("v_and_b32 v6, 7, v1")
E("v_lshlrev_b32 v4, 13, v5")
E("v_lshl_add_u32 v4, v6, 7, v4")
E(f"s_lshl_b32 s{sT0}, s{sJ}, 17")
E(f"s_lshl_b32 s{sT1}, s{sG}, 10")
E(f"s_add_u32 s{sT0}, s{sT0}, s{sT1}")
E(f"s_sub_u32 s{sT1}, s{sWV}, 1")
E(f"s_lshl_b32 s{sT2}, s{sT1}, 16")
E(f"s_add_u32 s{sT0}, s{sT0}, s{sT2}")
E(f"s_mov_b32 s{sT2}, {W_EP}")
E("v_mov_b32 v7, 0")
E(f"s_cmp_lt_u32 s{sT1}, 2")
E("s_waitcnt lgkmcnt(0)")
E("s_cbranch_scc0 L_notouch")
srd(R_C, sWQ, None, 4194304)
if TQ: E(f"buffer_load_dword v240, v4, s[{R_C}:{R_C+3}], s{sT0} offen{NTQ}")
L("L_notouch")
srd(R_WS, sWS, None, WS_REC if PROF else WS_USED)
E(f"buffer_load_dword v241, v7, {WSR}, s{sT2} offen sc1")
if PROF: E(f"v_writelane_b32 v{V_STAMP}, s{sST}, 60")
E(f"v_mov_b32 v{cA}, 0")
E(f"v_lshlrev_b32 v{cL16}, 4, v1")
E(f"s_cmp_ge_u32 s{sJ}, 16")
E("s_cbranch_scc1 L_D_init")

E(f"s_lshl_b32 s{sT0}, s{sG}, 24")
E(f"s_lshl_b32 s{sT1}, s{sJ}, 16")
E(f"s_add_u32 s{sT0}, s{sT0}, s{sT1}")
E(f"s_add_u32 s{sT0}, s{sT0}, {61440*256}")
srd(R_A, sK, f"s{sT0}", 65536)
srd(R_B, sV, f"s{sT0}", 65536)
E("v_xor_b32 v4, v2, v3")
E("v_lshlrev_b32 v4, 4, v4")
E("v_lshl_add_u32 v4, v3, 8, v4")
E("v_lshlrev_b32 v5, 1, v3")
E("v_xor_b32 v5, v2, v5")
E("v_lshlrev_b32 v5, 4, v5")
E("v_lshl_add_u32 v5, v3, 8, v5")
E(f"s_add_u32 s{sC1}, s{sJ}, s{sG}")
E(f"s_cmp_eq_u32 s{sWV}, 4")
E("s_cbranch_scc1 L_A_ctl")
E(f"s_cmp_gt_u32 s{sWV}, 4")
E("s_cbranch_scc1 L_A_help")
E(f"s_lshl_b32 s{sT0}, s{sWV}, 14")
E(f"s_add_u32 s{sT3}, s{sC1}, 16")
L("L_A_kl")
E(f"s_and_b32 s{sT1}, s{sC1}, 15")
E(f"s_and_b32 s{sT2}, s{sT1}, 3")
E(f"s_lshl_b32 s{sT2}, s{sT2}, 6")
E(f"s_lshl_b32 s{sT1}, s{sT1}, 10")
E(f"s_add_u32 s{sT1}, s{sT1}, s{sT0}")
E(f"s_mov_b32 m0, s{sT1}")
E(f"v_xor_b32 v6, s{sT2}, v4")
E(f"s_waitcnt vmcnt({THR-1})")
E(f"buffer_load_dwordx4 v6, s[{R_A}:{R_A+3}], s{sT1} offen{NTK} lds")
E(f"s_add_u32 s{sC1}, s{sC1}, 1")
E(f"s_cmp_lt_u32 s{sC1}, s{sT3}")
E("s_cbranch_scc1 L_A_kl")
E("s_branch L_A_setup")
L("L_A_help")
E(f"s_sub_u32 s{sT0}, s{sWV}, 5")
E(f"s_lshl_b32 s{sC1}, s{sC1}, 2")
E(f"s_mov_b32 s{sT3}, 0")
THV1, NV1 = int(OPT.get("thv1", 0)), int(OPT.get("nv1", 15))
if THV1:
    L("L_A_vl1")
    E(f"s_add_u32 s{sT1}, s{sC1}, s{sT0}")
    E(f"s_and_b32 s{sT1}, s{sT1}, 63")
    E(f"s_and_b32 s{sT2}, s{sT1}, 1")
    E(f"s_lshl_b32 s{sT2}, s{sT2}, 7")
    E(f"s_lshl_b32 s{sT1}, s{sT1}, 10")
    E(f"s_add_u32 m0, s{sT1}, {V_LDS}")
    E(f"v_xor_b32 v6, s{sT2}, v5")
    E(f"s_waitcnt vmcnt({THV1-1})")
    E(f"buffer_load_dwordx4 v6, s[{R_B}:{R_B+3}], s{sT1} offen{NTV} lds")
    E(f"s_add_u32 s{sT0}, s{sT0}, 3")
    E(f"s_cmp_lt_u32 s{sT0}, {NV1}")
    E("s_cbranch_scc1 L_A_vl1")
L("L_A_vl")
E(f"s_add_u32 s{sT1}, s{sC1}, s{sT0}")
E(f"s_and_b32 s{sT1}, s{sT1}, 63")
E(f"s_and_b32 s{sT2}, s{sT1}, 1")
E(f"s_lshl_b32 s{sT2}, s{sT2}, 7")
E(f"s_lshl_b32 s{sT1}, s{sT1}, 10")
E(f"s_add_u32 m0, s{sT1}, {V_LDS}")
E(f"v_xor_b32 v6, s{sT2}, v5")
E(f"s_waitcnt vmcnt({THV-1})")
E(f"buffer_load_dwordx4 v6, s[{R_B}:{R_B+3}], s{sT1} offen{NTV} lds")
E(f"s_add_u32 s{sT0}, s{sT0}, 3")
E(f"s_cmp_lt_u32 s{sT0}, 64")
E("s_cbranch_scc1 L_A_vl")
stamp(1)
E(f"s_cmp_eq_u32 s{sWV}, 5")
E("s_cbranch_scc0 L_A_pf2")
srd(R_C, sW1, None, 1835008)
E(f"s_mul_i32 s{sT1}, s{sJ}, {32*3584}")
E(f"s_mul_i32 s{sT2}, s{sG}, 448")
E(f"s_add_u32 s{sT1}, s{sT1}, s{sT2}")
E(f"s_add_u32 s{sT2}, s{sT1}, {16*3584}")
E("v_mul_u32_u24 v6, 3584, v2")
E("v_mul_u32_u24 v7, 0x94, v3")
E("v_add_u32 v6, v6, v7")
E("s_branch L_A_pf")
L("L_A_pf2")
E(f"s_mul_i32 s{sT1}, s{sG}, {224*1024}")
E(f"s_mul_i32 s{sT2}, s{sJ}, 14336")
E(f"s_add_u32 s{sT1}, s{sT1}, s{sT2}")
E(f"s_cmp_eq_u32 s{sWV}, 6")
E(f"s_cselect_b32 s{sT3}, 14336, 0")
srd(R_C, sW2, f"s{sT1}", f"s{sT3}")
E(f"s_mov_b32 s{sT1}, 0")
E(f"s_mov_b32 s{sT2}, 8192")
E("v_lshlrev_b32 v6, 7, v1")
L("L_A_pf")
E(f"buffer_load_dword v240, v6, s[{R_C}:{R_C+3}], s{sT1} offen{NTT}")
E(f"buffer_load_dword v240, v6, s[{R_C}:{R_C+3}], s{sT2} offen{NTT}")
E("s_barrier")
E("s_waitcnt vmcnt(2)")
stamp(2)
E("s_barrier")
stamp_flush(5, 2)
E("s_endpgm")
sec("a")
L("L_A_setup")
stamp(1)
KF, VF, QF, SC, PB, OD, OUTV, PF, STT = 16, 80, 144, 160, 176, 144, 176, 184, 216
T = 224
E("v_xor_b32 v4, v2, v3")
E("v_lshlrev_b32 v4, 4, v4")
E("v_lshl_add_u32 v4, v2, 8, v4")
E(f"v_add_u32 v4, s{sT0}, v4")
E("v_xor_b32 v5, 64, v4")
E("v_xor_b32 v6, 0x80, v4")
E("v_xor_b32 v7, 0xc0, v4")
E("v_and_b32 v15, 3, v2")
E("v_lshlrev_b32 v8, 8, v15")
E("v_lshl_add_u32 v8, v3, 4, v8")
E(f"v_add_u32 v8, {QS_LDS}, v8")
E("v_lshlrev_b32 v10, 4, v1")
E(f"v_add_u32 v10, {PX_LDS}, v10")
E(f"s_lshl_b32 s{sT1}, s{sWV}, 11")
E(f"v_add_u32 v9, s{sT1}, v10")
E("v_lshlrev_b32 v12, 5, v2")
E(f"v_add_u32 v12, {SX_LDS}, v12")
E(f"s_lshl_b32 s{sT1}, s{sWV}, 3")
E(f"v_add_u32 v11, s{sT1}, v12")
E("v_lshlrev_b32 v13, 12, v15")
E("v_lshl_add_u32 v13, v3, 3, v13")
E("v_bfe_u32 v14, v2, 2, 1")
E("v_lshl_add_u32 v13, v14, 5, v13")
E(f"s_lshl_b32 s{sT1}, s{sWV}, 6")
E(f"v_add_u32 v13, s{sT1}, v13")
E(f"v_cmp_eq_u32 s[{sMC_f}:{sMC_f+1}], 1, v14")
E(f"v_lshlrev_b32 v14, 7, v15")
E(f"v_lshrrev_b32 v{T}, 2, v2")
E(f"v_lshl_add_u32 v{T}, v3, 2, v{T}")
E(f"v_and_b32 v{T+1}, 7, v{T}")
E(f"s_lshl_b32 s{sT1}, s{sWV}, 1")
E(f"v_xor_b32 v{T+1}, s{sT1}, v{T+1}")
E(f"v_lshlrev_b32 v{T}, 8, v{T}")
E(f"v_lshl_add_u32 v{T}, v{T+1}, 5, v{T}")
E(f"v_lshl_add_u32 v{T}, v15, 3, v{T}")
E(f"v_add_u32 v{T}, {V_LDS}, v{T}")
E(f"v_xor_b32 v{T+1}, 32, v{T}")
E(f"s_lshl_b32 s{sT1}, s{sJ}, 8")
E(f"s_add_u32 s{sPoff}, s{sPoff}, s{sT1}")
E(f"s_and_b32 s{sT1}, s{sJ}, 3")
E(f"s_lshl_b32 s{sT1}, s{sT1}, 5")
E(f"s_lshr_b32 s{sT2}, s{sJ}, 2")
E(f"s_lshl_b32 s{sT2}, s{sT2}, 3")
E(f"s_add_u32 s{sT1}, s{sT1}, s{sT2}")
E(f"s_add_u32 s{sPub}, s{sT1}, {W_ST}")
E(f"s_mov_b32 s{sC1}, {f32((128**-0.5)*math.log2(math.e))}")
E(f"s_mov_b32 s{sFFFE}, 0xfffefffe")
E(f"v_mov_b32 v{T+2}, {FL_LDS}")
E(f"v_mov_b32 v{T+8}, s{sC1}")
E(f"s_cmp_eq_u32 s{sWV}, 0")
E(f"s_cselect_b32 s{sC2}, 15, 0")
E(f"s_mov_b32 s{sMB_f+1}, 0")
E(f"s_mov_b32 s{sMB_s+1}, 0")
E("s_waitcnt vmcnt(0)")
stamp(2)
for e in range(4):
    for s in range(4):
        E(f"ds_read_b128 {vr(KF+(e*4+s)*4,4)}, v{4+s} offset:{4096*e}")
L("L_A_b1")
mark("a")
E("s_barrier")
for s in range(4):
    E(f"ds_read_b128 {vr(QF+4*s,4)}, v8 offset:{64*s}")
stamp(3, True)
def qk(e, s):
    c = "0" if s == 0 else vr(SC+4*e,4)
    E(f"v_mfma_f32_16x16x32_bf16 {vr(SC+4*e,4)}, {vr(KF+(e*4+s)*4,4)}, {vr(QF+4*s,4)}, {c}")
for s in range(4):
    E(f"s_waitcnt lgkmcnt({3-s})")
    qk(0, s); qk(1, s)
for s in range(4):
    qk(2, s); qk(3, s)
E(f"v_max3_f32 v{T+4}, v{SC}, v{SC+1}, v{SC+2}")
E(f"v_max3_f32 v{T+5}, v{SC+3}, v{SC+4}, v{SC+5}")
E(f"v_max3_f32 v{T+4}, v{T+4}, v{SC+6}, v{SC+7}")
E("s_nop 3")
E(f"v_max3_f32 v{T+5}, v{T+5}, v{SC+8}, v{SC+9}")
E(f"v_max3_f32 v{T+4}, v{T+4}, v{SC+10}, v{SC+11}")
E(f"v_max3_f32 v{T+5}, v{T+5}, v{SC+12}, v{SC+13}")
E(f"v_max3_f32 v{T+4}, v{T+4}, v{SC+14}, v{SC+15}")
E(f"v_max_f32 v{T+4}, v{T+4}, v{T+5}")
E(f"v_mov_b32 v{T+5}, v{T+4}")
E("s_nop 1")
E(f"v_permlane16_swap_b32 v{T+4}, v{T+5}")
E(f"v_max_f32 v{T+4}, v{T+4}, v{T+5}")
E(f"v_mov_b32 v{T+5}, v{T+4}")
E("s_nop 1")
E(f"v_permlane32_swap_b32 v{T+4}, v{T+5}")
E(f"v_max_f32 v{T+4}, v{T+4}, v{T+5}")
E(f"v_mul_f32 v{T+6}, s{sC1}, v{T+4}")
for i in range(8):
    E(f"v_pk_fma_f32 {vr(SC+2*i,2)}, {vr(SC+2*i,2)}, {vr(T+8,2)}, {vr(T+6,2)} op_sel_hi:[1,0,0] neg_lo:[0,0,1] neg_hi:[0,0,1]")
for i in range(8):
    E(f"v_exp_f32 v{SC+i}, v{SC+i}")
E(f"v_exp_f32 v{SC+8}, v{SC+8}")
for i in range(4):
    E(f"v_cvt_pk_bf16_f32 v{PB+i}, v{SC+2*i}, v{SC+2*i+1}")
E(f"ds_write_b128 v9, {vr(PB,4)}")
for i in range(9, 16):
    E(f"v_exp_f32 v{SC+i}, v{SC+i}")
E(f"v_add_f32 v{T+7}, v{SC}, v{SC+1}")
for i in range(4, 8):
    E(f"v_cvt_pk_bf16_f32 v{PB+i}, v{SC+2*i}, v{SC+2*i+1}")
E(f"ds_write_b128 v9, {vr(PB+4,4)} offset:1024")
for i in range(4):
    E(f"v_pk_add_f32 {vr(SC+2+ 0,2) if False else vr(SC+4*i,2)}, {vr(SC+4*i,2)}, {vr(SC+4*i+2,2)}")
E(f"v_pk_add_f32 {vr(SC,2)}, {vr(SC,2)}, {vr(SC+4,2)}")
E(f"v_pk_add_f32 {vr(SC+8,2)}, {vr(SC+8,2)}, {vr(SC+12,2)}")
E(f"v_pk_add_f32 {vr(SC,2)}, {vr(SC,2)}, {vr(SC+8,2)}")
E(f"v_add_f32 v{T+7}, v{SC}, v{SC+1}")
E(f"v_mov_b32 v{T+5}, v{T+7}")
E("s_nop 1")
E(f"v_permlane16_swap_b32 v{T+7}, v{T+5}")
E(f"v_add_f32 v{T+7}, v{T+7}, v{T+5}")
E(f"v_mov_b32 v{T+5}, v{T+7}")
E("s_nop 1")
E(f"v_permlane32_swap_b32 v{T+7}, v{T+5}")
E(f"v_add_f32 v{T+7}, v{T+7}, v{T+5}")
E(f"ds_write_b64 v11, {vr(T+6,2)}")
stamp(4, True)
mark("a")
E("s_waitcnt lgkmcnt(0)")
E("s_barrier")
E(f"ds_read_b32 v{T+3}, v{T+2}")
for b in range(2):
    E(f"ds_read_b128 {vr(STT+4*b,4)}, v12 offset:{16*b}")
for b in range(8):
    E(f"ds_read_b128 {vr(PF+4*b,4)}, v10 offset:{1024*b}")
stamp(5, True)
E(f"s_cmp_lg_u32 s{sLAY}, 0")
E("s_cbranch_scc1 L_A_havev")
for tp in range(2):
    for b in range(8):
        for e in range(2):
            E(f"ds_read_b64_tr_b16 {vr(VF+(tp*8+b)*4+2*e,2)}, v{T+tp} offset:{(32*b+16*e)*256}")
E("s_waitcnt lgkmcnt(0)")
L("L_A_havev")
E("s_waitcnt lgkmcnt(8)")
F = STT
va = [f"v_max3_f32 v{T+4}, v{STT}, v{STT+2}, v{STT+4}", f"v_max_f32 v{T+6}, v{T+4}, v{STT+6}"]
va += [f"v_sub_f32 v{F+2*b}, v{STT+2*b}, v{T+6}" for b in range(4)]
va += [f"v_exp_f32 v{F+2*b}, v{F+2*b}" for b in range(4)]
va += [f"v_mul_f32 v{T+7}, v{F}, v{STT+1}"] + [f"v_fmac_f32 v{T+7}, v{F+2*b}, v{STT+2*b+1}" for b in range(1, 4)]
E(f"v_readfirstlane_b32 s{sMODE}, v{T+3}")
for x in va[:2]: E(x)
sa = [f"s_cmp_eq_u32 s{sMODE}, 1", f"s_cselect_b32 s{sMB_f}, s{sC2}, 0", f"s_cselect_b32 s{sMB_s}, 0, s{sC2}",
      f"s_cselect_b32 s{sMA_f}, 0x00ff00ff, 0", f"s_cselect_b32 s{sMA_f+1}, 0x00ff00ff, 0", f"s_cselect_b32 s{sMA_s}, 0, 0x00ff00ff",
      f"s_cselect_b32 s{sMA_s+1}, 0, 0x00ff00ff", f"s_cselect_b32 s{sT2}, 0, {ALT}", f"s_add_u32 s{sPe}, s{sPoff}, s{sT2}",
      f"s_add_u32 s{sT2}, s{sLOC}, s{sT2}", f"s_add_u32 s{sT2}, s{sT2}, s{sPub}"]
k = 2
for u in range(8):
    E(f"s_waitcnt lgkmcnt({7-u})")
    for tp in range(2):
        d = vr(OD+(tp*4+u//2)*4,4)
        E(f"v_mfma_f32_16x16x32_bf16 {d}, {vr(VF+(tp*8+u)*4,4)}, {vr(PF+4*u,4)}, {'0' if u % 2 == 0 else d}")
        if k < len(va): E(va[k]); k += 1
        if sa and u >= 1: E(sa.pop(0)); E(sa.pop(0)) if sa else None
    if u == 5:
        assert k == len(va)
        pub2("buffer_store_dwordx2", vr(T+6,2), 14, sT2, sMB_f, sMB_s)
def cb(b):
    for tp in range(2):
        for h in range(2):
            o = vr(OUTV+4*tp+2*h,2)
            if b == 0: E(f"v_pk_mul_f32 {o}, {vr(OD+tp*16+2*h,2)}, {vr(F,2)} op_sel_hi:[1,0]")
            else: E(f"v_pk_fma_f32 {o}, {vr(OD+(tp*4+b)*4+2*h,2)}, {vr(F+2*b,2)}, {o} op_sel_hi:[1,0,1]")
for b in range(4): cb(b)
for r in range(4):
    E(f"v_cndmask_b32 v{OUTV+r}, v{OUTV+r}, v{OUTV+4+r}, s[{sMC_f}:{sMC_f+1}]")
E(f"v_cvt_pk_bf16_f32 v{OUTV}, v{OUTV}, v{OUTV+1}")
E(f"v_cvt_pk_bf16_f32 v{OUTV+1}, v{OUTV+2}, v{OUTV+3}")
E(f"v_pk_min_u16 v{OUTV}, v{OUTV}, s{sFFFE}")
E(f"v_pk_min_u16 v{OUTV+1}, v{OUTV+1}, s{sFFFE}")
pub2("buffer_store_dwordx2", vr(OUTV,2), 13, sPe, sMA_f, sMA_s)
stamp(6, True)
E(f"s_add_u32 s{sPoff}, s{sPoff}, {LS}")
E(f"s_add_u32 s{sLOC}, s{sLOC}, {LS}")
E(f"s_add_u32 s{sLAY}, s{sLAY}, 1")
E(f"s_cmp_lt_u32 s{sLAY}, 2")
E("s_cbranch_scc1 L_A_b1")
stamp_flush(0, 0, (int(OPT.get("dbg", 0)), 36, [60, 2, 3, 5, 6, 19, 22]))
E("s_endpgm")
sec("actl")
L("L_A_ctl")
warm("a")
E("s_waitcnt vmcnt(0)")
E(f"v_readfirstlane_b32 s{sTAG}, v241")
E("s_nop 3")
E(f"s_add_u32 s{sTAG}, s{sTAG}, 1")
xc_publish()
first_gather("aq0", True, None)
stamp(2)
E("s_waitcnt lgkmcnt(0)")
E("s_barrier")
E(f"s_cmp_eq_u32 s{sMODE}, 1")
E(f"s_cselect_b32 s{sT2}, 0, {ALT}")
E(f"s_add_u32 s{sLe}, s{sLOC}, s{sT2}")
E(f"s_add_u32 s{sLe}, s{sLe}, {LS}")
E(f"v_add_u32 v{cT+2}, {QS_LDS}, v{cL16}")
E("s_barrier")
E("s_waitcnt vmcnt(0)")
arm(cG, 4)
gather1("aq", cG, cL16, sLe, W_Q, cT)
E(f"ds_write_b128 v{cT+2}, {vr(cG,4)}")
stamp(18)
E("s_waitcnt lgkmcnt(0)")
E("s_barrier")
stamp_flush(4, 1)
E("s_endpgm")

vL16, aXIO, aTA, aTB, aIN, aST, aP16, aPY, vONE, aOS, aXS = 4, 5, 6, 7, 8, 9, 10, 11, 12, 13, 14
SEL0, ONESB, XR, XN, XB, vT = 16, 24, 28, 36, 44, 48
TT = 49
vB1, vCS, aGX, vINV, vVAL = 15, 0, 249, 250, 252
GB, WA, ACC, WB = 64, 96, 160, 192
vST, CA, MK, vFLG = 224, 232, 236, 248
NACC = 8

retry_blocks = []
def gather_X(tag, soff, role, hook=None):
    def loads():
        for i in range(8):
            so = soff if i < 4 else sT0
            E(f"buffer_load_dwordx4 {vr(GB+4*i,4)}, v{aGX}, {WSR}, s{so} offen offset:{256*(i%4)} sc1")
    def sums(wait):
        for i in range(8):
            if wait is not None: E(f"s_waitcnt vmcnt({wait + 7 - i})")
            e, w = (i % 4) // 2, i % 2
            c = vr(XR+4*e,4) if i in (0, 2) else vr(XN+4*e,4)
            E(f"v_mfma_f32_16x16x32_bf16 {vr(XN+4*e,4)}, {vr(SEL0+4*w,4)}, {vr(GB+4*i,4)}, {c}")
    E(f"s_add_u32 s{sT0}, s{soff}, 4096")
    if ACK: E("s_waitcnt vmcnt(0)")
    elif GD: E(f"s_sleep {GD}")
    if PROF == 2: stamp(9, True)
    for _ in range(GP - 1):
        loads()
        if GSL: E(f"s_sleep {GSL}")
    E(f"s_branch L_{tag}_again")
    L(f"L_{tag}_nan")
    E(f"s_sub_u32 s{sSPIN}, s{sSPIN}, 1")
    E("s_cbranch_scc1 L_exit")
    E(f"s_and_b32 s{sT1}, s{sSPIN}, 15")
    E(f"s_cbranch_scc0 L_{tag}_retry")
    if GSL: E(f"s_sleep {GSL}")
    L(f"L_{tag}_again")
    loads()
    if hook: hook()
    mark(role)
    sums(8 * (GP - 1))
    E("s_nop 6")
    E(f"v_cmp_u_f32 vcc, v{XN}, v{XN}")
    E(f"v_cmp_u_f32 s[{sS1}:{sS1+1}], v{XN+4}, v{XN+4}")
    for d in range(4):
        E(f"v_cvt_pk_bf16_f32 v{XB+d}, v{XN+2*d}, v{XN+2*d+1}")
    E(f"s_or_b64 vcc, vcc, s[{sS1}:{sS1+1}]")
    E(f"s_cbranch_vccnz L_{tag}_nan")
    L(f"L_{tag}_ok")
    if PROF == 2:
        stamp(11, True)
        E(f"s_mov_b32 s{sST}, s{sSPIN}")
    def blk():
        L(f"L_{tag}_retry")
        for i in range(16): E(f"v_pk_max_u16 v{ACC+i}, v{GB+2*i}, v{GB+2*i+1}")
        for i in range(8): E(f"v_pk_max_u16 v{ACC+i}, v{ACC+2*i}, v{ACC+2*i+1}")
        for i in range(4): E(f"v_pk_max_u16 v{ACC+i}, v{ACC+2*i}, v{ACC+2*i+1}")
        chk_bf16(ACC, TT)
        E(f"s_cbranch_vccnz L_{tag}_again")
        sums(None)
        E("s_nop 7")
        for d in range(4):
            E(f"v_cvt_pk_bf16_f32 v{XB+d}, v{XN+2*d}, v{XN+2*d+1}")
        E(f"s_branch L_{tag}_ok")
    retry_blocks.append(blk)

def relay_X(tag, soff, pre):
    E(f"v_mov_b32 v{vT}, 0")
    E(f"s_cmp_lg_u32 s{sWV}, 0")
    E(f"s_cbranch_scc1 L_{tag}_other")
    pre()
    gather_X(tag, soff, "d2", lambda: w1_setup("a"))
    E(f"ds_write_b128 v{aXS}, {vr(XB,4)}")
    post = f"L_{tag}_join"
    E("s_waitcnt lgkmcnt(0)")
    E("s_barrier")
    E(f"s_branch {post}")
    L(f"L_{tag}_other")
    w1_setup("b")
    E("s_waitcnt vmcnt(0)")
    E("s_barrier")
    E(f"ds_read_b128 {vr(XB,4)}, v{aXS}")
    E("s_waitcnt lgkmcnt(0)")
    L(post)

def unpack_resid(src):
    for d in range(4):
        E(f"v_lshlrev_b32 v{XR+2*d}, 16, v{src+d}")
        E(f"v_and_b32 v{XR+2*d+1}, 0xffff0000, v{src+d}")

def matvec(nsteps, A, W, fillers, rows=None, per=PER, waits=False):
    if rows is None:
        rows = [(1 << G, 0xf, list(range(4*G, min(4*G+4, nsteps)))) for G in range((nsteps + 3) // 4)]
    acc = lambda s_: ACC + 4*(s_ % NACC)
    ext = []
    for (rm, bm, st_) in rows:
        dp = f"quad_perm:[0,1,2,3] row_mask:{hex(rm)} bank_mask:{hex(bm)}"
        a = lambda s_: f"v{acc(s_) + s_ % 4}"
        ext.append((st_[1], f"v_add_f32_dpp v{vT}, {a(st_[0])}, {a(st_[1])} {dp}"))
        for s_ in st_[2:]:
            ext.append((s_, f"v_add_f32_dpp v{vT}, {a(s_)}, v{vT} {dp}"))
    ext.sort(key=lambda e: e[0])
    st = dict(pos=0, lastT=-1)
    pm = {}
    def put(x, n=1):
        E(x); st["pos"] += n
    def need(e):
        if e[0] not in pm: return 99
        return max(pm[e[0]] + 9 - st["pos"], st["lastT"] + 3 - st["pos"], 0)
    fl = list(fillers)
    for s_ in range(nsteps):
        while ext and ext[0][0] <= s_ - NACC + 1 and s_ >= NACC:
            n = need(ext[0])
            if n: put(f"s_nop {n-1}", n)
            st["lastT"] = st["pos"]; put(ext.pop(0)[1])
        if waits and s_ >= 8 or waits and s_ == 0: put(f"s_waitcnt lgkmcnt({min(15, 30-2*s_)})")
        pm[s_] = st["pos"]
        put(f"v_mfma_f32_16x16x32_bf16 {vr(acc(s_),4)}, {vr(A,4)}, {vr(W+4*s_,4)}, 0")
        for _ in range(per):
            if ext and need(ext[0]) == 0:
                st["lastT"] = st["pos"]; put(ext.pop(0)[1])
            elif fl:
                put(fl.pop(0))
    while ext or fl:
        if ext and need(ext[0]) == 0:
            st["lastT"] = st["pos"]; put(ext.pop(0)[1])
        elif fl:
            put(fl.pop(0))
        else:
            n = need(ext[0]); put(f"s_nop {n-1}", n)

def stats_fillers():
    f = []
    for d in range(4):
        f.append(f"v_lshlrev_b32 v{XR+2*d}, 16, v{XB+d}")
        f.append(f"v_and_b32 v{XR+2*d+1}, 0xffff0000, v{XB+d}")
        if d == 0: f.append(f"v_readfirstlane_b32 s{sPIV}, v{XR}")
    D = XN
    for i in range(4):
        f.append(f"v_pk_add_f32 {vr(D+2*i,2)}, {vr(XR+2*i,2)}, s[{sPIV}:{sPIV+1}] op_sel_hi:[1,0] neg_lo:[0,1] neg_hi:[0,1]")
    a, b = TT+1, TT+3
    assert a % 2 == 0
    f.append(f"v_pk_add_f32 {vr(a,2)}, {vr(D,2)}, {vr(D+2,2)}")
    f.append(f"v_pk_mul_f32 {vr(b,2)}, {vr(D,2)}, {vr(D,2)}")
    for i in range(1, 4):
        f.append(f"v_pk_fma_f32 {vr(b,2)}, {vr(D+2*i,2)}, {vr(D+2*i,2)}, {vr(b,2)}")
        if i > 1: f.append(f"v_pk_add_f32 {vr(a,2)}, {vr(a,2)}, {vr(D+2*i,2)}")
    f.append(f"v_add_f32 v{b}, v{b}, v{b+1}")
    f.append(f"v_add_f32 v{a}, v{a}, v{a+1}")
    f.append("s_nop 0")
    for dp in ("quad_perm:[1,0,3,2] row_mask:0xf", "quad_perm:[2,3,0,1] row_mask:0xf", "row_half_mirror row_mask:0xf",
               "row_mirror row_mask:0xf", "row_bcast:15 row_mask:0xa", "row_bcast:31 row_mask:0xc"):
        f.append(f"v_add_f32_dpp v{b}, v{b}, v{b} {dp} bank_mask:0xf")
        f.append(f"v_add_f32_dpp v{a}, v{a}, v{a} {dp} bank_mask:0xf")
        f.append("s_nop 0")
    f.append(f"v_readlane_b32 s{sS2}, v{b}, 63")
    f.append(f"v_readlane_b32 s{sS1}, v{a}, 63")
    f.append(f"v_fma_f32 v{TT+3}, s{sS2}, v{vINV}, v{vINV+1}" if False else "s_nop 0")
    f.append(f"v_fma_f32 v{TT+3}, s{sS2}, v{vINV}, v{vINV+1}")
    f.append(f"v_mul_f32 v{TT+2}, s{sS1}, v{vINV}")
    f.append(f"v_fma_f32 v{TT+3}, -v{TT+2}, v{TT+2}, v{TT+3}")
    f.append(f"v_max_f32 v{TT+3}, v{vINV+1}, v{TT+3}")
    f.append(f"v_rsq_f32 v{TT+3}, v{TT+3}")
    f.append(f"v_add_f32 v{TT+2}, s{sPIV}, v{TT+2}")
    return f

def xgroup_sum(fold8=False, plain=False):
    if fold8: E(f"v_and_b32 v{vT}, v{vVAL}, v{vT}")
    E(f"v_mov_b32 v{TT+5}, v{vT}")
    E("s_nop 1")
    E(f"v_permlane16_swap_b32 v{vT}, v{TT+5}")
    E(f"v_add_f32 v{vT}, v{vT}, v{TT+5}")
    E(f"v_mov_b32 v{TT+5}, v{vT}")
    E("s_nop 1")
    E(f"v_permlane32_swap_b32 v{vT}, v{TT+5}")
    E(f"v_add_f32 v{vT}, v{vT}, v{TT+5}")
    if fold8:
        E("s_nop 1")
        E(f"v_add_f32_dpp v{vT}, v{vT}, v{vT} row_ror:8 row_mask:0xf bank_mask:0xf")
    if plain: return
    E(f"v_fma_f32 v{vT}, -v{TT+2}, v{vCS}, v{vT}")
    E(f"v_mul_f32 v{vT}, v{vT}, v{TT+3}")

def y_publish():
    Y = TT + 3
    assert Y % 4 == 0
    E("s_nop 1")
    E(f"v_mfma_f32_16x16x4_f32 {vr(Y,4)}, v{vT}, v{vONE}, 0")
    E("s_nop 9")
    E(f"v_cvt_pk_bf16_f32 v{Y+4}, v{Y}, v{Y+1}")
    E(f"v_cvt_pk_bf16_f32 v{Y+5}, v{Y+2}, v{Y+3}")
    E(f"v_pk_min_u16 v{Y+4}, v{Y+4}, s{sFFFE}")
    E(f"v_pk_min_u16 v{Y+5}, v{Y+5}, s{sFFFE}")
    E(f"v_mov_b32 v{Y+6}, v{Y+4}")
    E(f"v_mov_b32 v{Y+7}, v{Y+5}")
    E("s_nop 0")
    E(f"v_permlane16_swap_b32 v{Y+4}, v{Y+6}")
    E(f"v_permlane16_swap_b32 v{Y+5}, v{Y+7}")
    E("s_mov_b32 exec_lo, 1")
    E("s_mov_b32 exec_hi, 1")
    E(f"buffer_store_dwordx4 {vr(Y+4,4)}, v{aPY}, {WSR}, s{sPubG} offen sc1")
    E("s_mov_b64 exec, -1")

def pub_resid(off):
    for d in range(4): E(f"v_pk_min_u16 v{TT+7+d}, v{XB+d}, s{sFFFE}")
    pub2("buffer_store_dwordx4", vr(TT+7,4), vL16, sLOC, sMB_f, sMB_s, off)

def read_mode(lo_a):
    E(f"v_mov_b32 v{TT}, {FL_LDS}")
    E(f"ds_read_b32 v{TT+1}, v{TT}")
    E("s_waitcnt lgkmcnt(0)")
    E(f"v_readfirstlane_b32 s{sMODE}, v{TT+1}")
    E(f"s_cmp_eq_u32 s{sPJ}, 0")
    E(f"s_cselect_b32 s{sT1}, -1, 0")
    E("s_nop 2")
    E(f"s_cmp_eq_u32 s{sMODE}, 1")
    masks(sMA_f, sMA_s, lo_a, "0")
    masks(sMB_f, sMB_s, f"s{sT1}", f"s{sT1}")
    E(f"s_cselect_b32 s{sT1}, 0, {ALT}")
    for s_ in (sLOC, sPoff, sPub):
        E(f"s_add_u32 s{s_}, s{s_}, s{sT1}")

sec("entry")
L("L_D_init")
ROLE[0] = "d"
E(f"s_and_b32 s{sC}, s{sJ}, 7")
E(f"s_lshl_b32 s{sPJ}, s{sC}, 2")
E(f"s_add_u32 s{sPJ}, s{sPJ}, s{sWV}")
E("v_lshrrev_b32 v242, 3, v1")
E("v_and_b32 v243, 7, v1")
def wo_issue():
    E(f"s_lshl_b32 s{sT0}, s{sG}, 19")
    E(f"s_lshl_b32 s{sT1}, s{sC}, 7")
    E(f"s_add_u32 s{sT0}, s{sT0}, s{sT1}")
    E(f"s_sub_u32 s{sT3}, {4194304}, s{sT0}")
    srd(R_A, sWO, f"s{sT0}", f"s{sT3}")
    E("v_and_b32 v245, 2, v242")
    E("v_xor_b32 v245, v245, v243")
    E(f"s_and_b32 s{sT1}, s{sWV}, 1")
    E(f"s_lshl_b32 s{sT1}, s{sT1}, 2")
    E(f"v_xor_b32 v245, s{sT1}, v245")
    E("v_lshlrev_b32 v244, 10, v242")
    E("v_lshl_add_u32 v244, v245, 4, v244")
    E(f"s_lshl_b32 s{sT0}, s{sWV}, 14")
    E(f"s_mov_b32 m0, s{sT0}")
    E(f"s_lshl_b32 s{sT1}, s{sWV}, 17")
    if LATE0 == 1: E("s_waitcnt vmcnt(0)")
    if LATE0 == 2: E("s_barrier")
    E(f"s_add_u32 s{sT2}, s{sT1}, {16*8192}")
    L("L_D2_wol")
    E(f"buffer_load_dwordx4 v244, s[{R_A}:{R_A+3}], s{sT1} offen{NTW} lds")
    E("s_add_u32 m0, m0, 1024")
    E(f"s_add_u32 s{sT1}, s{sT1}, 8192")
    E(f"s_cmp_lt_u32 s{sT1}, s{sT2}")
    E("s_cbranch_scc1 L_D2_wol")
if LATE0 == 0:
    E(f"s_cmp_lt_u32 s{sJ}, 24")
    E("s_cbranch_scc1 L_D_const")
    E(f"s_cmp_ge_u32 s{sWV}, 4")
    E("s_cbranch_scc1 L_D_const")
    wo_issue()
sec("dinit")
L("L_D_const")
srd(R_B, sX, None, 1024)
E(f"v_lshrrev_b32 v{TT}, 1, v3")
E(f"v_and_b32 v{TT+1}, 1, v3")
E(f"v_lshlrev_b32 v{aXIO}, 8, v{TT}")
E(f"v_lshl_add_u32 v{aXIO}, v2, 4, v{aXIO}")
E(f"v_lshl_add_u32 v{aXIO}, v{TT+1}, 3, v{aXIO}")
E(f"buffer_load_dwordx2 {vr(XB,2)}, v{aXIO}, s[{R_B}:{R_B+3}], 0 offen")
E(f"buffer_load_dwordx2 {vr(XB+2,2)}, v{aXIO}, s[{R_B}:{R_B+3}], 0 offen offset:512")
E(f"v_lshlrev_b32 v{vL16}, 4, v1")
E(f"v_lshrrev_b32 v{TT+2}, 2, v2")
E(f"v_and_b32 v{TT+3}, 3, v2")
E(f"v_lshl_add_u32 v{TT+4}, v{TT}, 7, v{TT+2}")
E(f"v_lshl_add_u32 v{TT+4}, v{TT+1}, 2, v{TT+4}")
E(f"v_lshlrev_b32 v{aP16}, 1, v2")
E(f"v_lshrrev_b32 v{aPY}, 5, v1")
E(f"v_lshlrev_b32 v{aPY}, 4, v{aPY}")
E(f"v_add_u32 v{aXS}, {XS_LDS}, v{vL16}")
E(f"v_mov_b32 v{vONE}, 1.0")
for d in range(4): E(f"v_mov_b32 v{ONESB+d}, 0x3f803f80")
E(f"v_and_b32 v{TT+5}, 1, v2")
E(f"v_lshlrev_b32 v{TT+5}, 4, v{TT+5}")
E(f"v_mov_b32 v{TT+6}, 0x3f80")
E(f"v_lshlrev_b32 v{TT+6}, v{TT+5}, v{TT+6}")
E(f"v_lshrrev_b32 v{TT+7}, 1, v2")
E(f"v_lshlrev_b32 v{aGX}, 10, v3")
E(f"v_lshl_add_u32 v{aGX}, v2, 4, v{aGX}")
for d in range(8):
    E(f"v_cmp_eq_u32 vcc, {d}, v{TT+7}")
    E("s_nop 1")
    E(f"v_cndmask_b32 v{SEL0+d}, 0, v{TT+6}, vcc")
E(f"s_mov_b32 s{sFFFE}, 0xfffefffe")
E(f"v_mov_b32 v{vINV}, {f32(1/512)}")
E(f"v_mov_b32 v{vINV+1}, {f32(1e-5)}")
E(f"s_mov_b32 s{sC3}, {f32(-math.log2(math.e))}")
E(f"s_lshl_b32 s{sT1}, s{sPJ}, 5")
E(f"s_lshl_b32 s{sPubG}, s{sG}, 10")
E(f"s_add_u32 s{sPubG}, s{sPubG}, s{sT1}")
E(f"s_lshl_b32 s{sT2}, s{sWV}, 5")
E(f"s_cmp_ge_u32 s{sJ}, 24")
E("s_cbranch_scc1 L_D2_init")

def ctl_head():
    E("s_waitcnt vmcnt(0)")
    E(f"v_readfirstlane_b32 s{sTAG}, v241")
    for r in range(4): E(f"v_mov_b32 v{cG+r}, -1")
    E(f"s_add_u32 s{sTAG}, s{sTAG}, 1")
def clear_global():
    E(f"s_mov_b32 s{sT1}, {LS}")
    E(f"v_lshrrev_b32 v{cT}, 3, v2")
    E(f"v_mul_lo_u32 v{cT}, v{cT}, s{sT1}")
    E(f"v_lshl_add_u32 v{cT}, v243, 4, v{cT}")
    E(f"v_lshl_add_u32 v{cT}, v3, 13, v{cT}")
    E(f"s_lshl_b32 s{sT1}, s{sG}, 10")
    E(f"s_lshl_b32 s{sT2}, s{sC}, 7")
    E(f"s_add_u32 s{sT1}, s{sT1}, s{sT2}")
    E(f"s_add_u32 s{sT1}, s{sT1}, {W_Y}")
    E("s_mov_b32 exec_hi, 0")
    E(f"buffer_store_dwordx4 {vr(cG,4)}, v{cT}, {WSR}, s{sT1} offen sc1")
    E("s_mov_b64 exec, -1")

E(f"s_lshl_b32 s{sT0}, s{sG}, 10")
E(f"s_lshl_b32 s{sT1}, s{sC}, 7")
E(f"s_add_u32 s{sT0}, s{sT0}, s{sT1}")
E(f"s_sub_u32 s{sT3}, {4194304}, s{sT0}")
srd(R_A, sWQ, f"s{sT0}", f"s{sT3}")
E("v_and_b32 v245, 6, v242")
E("v_xor_b32 v245, v245, v243")
E("v_lshlrev_b32 v244, 13, v242")
E("v_lshl_add_u32 v244, v245, 4, v244")
E(f"s_cmp_ge_u32 s{sWV}, 4")
E("s_cbranch_scc1 L_D1_help")
if TQ: E("s_waitcnt vmcnt(0)")
stamp(1)
E(f"s_lshl_b32 s{sT0}, s{sWV}, 14")
E(f"s_mov_b32 m0, s{sT0}")
E(f"s_lshl_b32 s{sT1}, s{sWV}, 20")
E(f"s_add_u32 s{sT3}, s{sT1}, {16*65536}")
L("L_D1_wql")
E(f"buffer_load_dwordx4 v244, s[{R_A}:{R_A+3}], s{sT1} offen{NTW} lds")
E("s_add_u32 m0, m0, 1024")
E(f"s_add_u32 s{sT1}, s{sT1}, 65536")
E(f"s_cmp_lt_u32 s{sT1}, s{sT3}")
E("s_cbranch_scc1 L_D1_wql")
sec("d1")
E(f"v_bfe_u32 v{TT+5}, v{TT+4}, 1, 2")
E(f"v_xor_b32 v{TT+5}, s{sWV}, v{TT+5}")
E(f"v_lshlrev_b32 v{aTA}, 7, v{TT+4}")
E(f"v_lshl_add_u32 v{aTA}, v{TT+3}, 3, v{aTA}")
E(f"v_lshl_add_u32 v{aTA}, v{TT+5}, 5, v{aTA}")
if not TQ: E("s_waitcnt vmcnt(16)")
E(f"v_lshl_add_u32 v{aTB}, v3, 3, v{TT+2}")
E(f"v_lshlrev_b32 v{aTB}, 7, v{aTB}")
E(f"v_lshl_add_u32 v{aTB}, v{TT+3}, 3, v{aTB}")
E(f"s_add_u32 s{sT2}, s{sT2}, {WB_LDS}")
E(f"v_add_u32 v{aTB}, s{sT2}, v{aTB}")
E(f"v_min_u32 v{aIN}, 6, v2")
E(f"v_lshlrev_b32 v{aIN}, 6, v{aIN}")
E(f"v_lshl_add_u32 v{aIN}, v3, 4, v{aIN}")
E(f"v_readfirstlane_b32 s{sTAG}, v241")
E(f"s_add_u32 s{sPubG}, s{sPubG}, {W_Z}")
E(f"s_mov_b32 s{sZoff}, {W_Z}")
E(f"s_lshl_b32 s{sT1}, s{sPJ}, 5")
E(f"s_add_u32 s{sPub}, s{sLOC}, s{sT1}")
srd(R_B, sOUT, None, 1024)
E(f"s_add_u32 s{sTAG}, s{sTAG}, 1")
for x in stats_fillers(): E(x)
for i in range(8): E(f"v_sub_f32 v{XN+i}, v{XR+i}, v{TT+2}")
for i in range(8): E(f"v_mul_f32 v{XN+i}, v{XN+i}, v{TT+3}")
for d in range(4): E(f"v_cvt_pk_bf16_f32 v{GB+d}, v{XN+2*d}, v{XN+2*d+1}")
E(f"v_mov_b32 v{vT}, 0")
D0 = GB + 12
E(f"v_mov_b32 v{D0+1}, s{sTAG}")
E(f"s_lshl_b32 s{sT1}, s{sPJ}, 6")
E(f"v_lshl_add_u32 v{TT+6}, v2, 2, s{sT1}")
E("s_waitcnt vmcnt(0)")
E("s_barrier")
amp("wq")
stamp(2)
for s in range(16):
    for e in range(2):
        E(f"ds_read_b64_tr_b16 {vr(WA+4*s+2*e,2)}, v{aTA} offset:{32768*e+1024*s}")
matvec(16, GB, WA, [], per=1, waits=True)
xgroup_sum(plain=True)
E("s_nop 1")
E(f"v_mov_b32_dpp v{TT+5}, v{vT} quad_perm:[1,1,3,3] row_mask:0xf bank_mask:0xf")
E(f"v_cvt_pk_bf16_f32 v{D0}, v{vT}, v{TT+5}")
E("s_mov_b64 exec, 0x5555")
E(f"buffer_store_dwordx2 {vr(D0,2)}, v{TT+6}, {WSR}, s{sQ0} offen")
E("s_mov_b64 exec, -1")
stamp(3, True)
E(f"v_mov_b32 v{TT+7}, 0")
E(f"buffer_load_dword v{GB+20}, v{TT+7}, s[{R_B}:{R_B+3}], 0 offen")
for s in range(16):
    c = "0" if s == 0 else vr(CA,4)
    E(f"v_mfma_f32_16x16x32_bf16 {vr(CA,4)}, {vr(ONESB,4)}, {vr(WA+4*s,4)}, {c}")
E("s_nop 7")
E(f"v_mov_b32 v{vCS}, v{CA}")
E("s_barrier")
amp("st")
read_mode("0xffff")
E(f"s_mov_b32 s{sT1}, 0x5555")
E(f"s_cmp_eq_u32 s{sMODE}, 1")
E(f"s_cselect_b32 exec_lo, 0, s{sT1}")
E("s_mov_b32 exec_hi, 0")
E(f"buffer_store_dwordx2 {vr(D0,2)}, v{TT+6}, {WSR}, s{sQ0B} offen sc1")
E("s_mov_b64 exec, -1")
E("s_barrier")
for s in range(7):
    for e in range(2):
        E(f"ds_read_b64_tr_b16 {vr(WB+4*s+2*e,2)}, v{aTB} offset:{4096*s+512*e}")
E("s_waitcnt lgkmcnt(0)")
E("s_branch L_D1_act")
L("L_D1_q")
mark("d1")
matvec(16, XB, WA, stats_fillers())
xgroup_sum()
E(f"v_cvt_pk_bf16_f32 v{vT}, v{vT}, v{vT}")
E(f"v_min_u32 v{vT}, -2, v{vT}")
pub2("buffer_store_short", f"v{vT}", aP16, sPub, sMA_f, sMA_s, W_Q)
stamp(3, True)
pub_resid(W_X2)
L("L_D1_act")
mark("d1")
AIN = vST
arm(AIN, 4)
E(f"v_mov_b32 v{vT}, 0")
gather1("ga", AIN, aIN, sLOC, W_ACT, TT)
amp("act")
stamp(4, True)
E(f"buffer_load_dwordx4 {vr(CA,4)}, v{vL16}, {WSR}, s{sLOC} offen offset:{W_X1} sc1")
matvec(7, AIN, WB, [], per=1)
y_publish()
stamp(5, True)
E(f"s_add_u32 s{sLAY}, s{sLAY}, 1")
E(f"s_cmp_lt_u32 s{sLAY}, 2")
E("s_cbranch_scc1 L_D1_z")
E(f"s_cmp_lg_u32 s2, 128")
E("s_cbranch_scc1 L_D1_end")
E(f"s_cmp_lg_u32 s{sWV}, 0")
E("s_cbranch_scc1 L_D1_end")
L("L_D1_z")
mark("d1")
def pre_z():
    E("s_waitcnt vmcnt(1)")
    chk_bf16(CA, TT)
    E("s_cbranch_vccz L_gx1_have")
    gather1("gx1", CA, vL16, sLOC, W_X1, TT, pd=1, slp=0)
    L("L_gx1_have")
    unpack_resid(CA)
def relay_z():
    E(f"v_mov_b32 v{vT}, 0")
    E(f"s_cmp_lg_u32 s{sWV}, 0")
    E(f"s_cbranch_scc1 L_gz_other")
    pre_z()
    gather_X("gz", sZoff, "d1")
    E(f"s_cmp_eq_u32 s{sLAY}, 2")
    E("s_cbranch_scc1 L_D1_out")
    E(f"ds_write_b128 v{aXS}, {vr(XB,4)}")
    E("s_waitcnt lgkmcnt(0)")
    E("s_barrier")
    E(f"s_branch L_gz_join")
    L(f"L_gz_other")
    E("s_waitcnt vmcnt(0)")
    E("s_barrier")
    E(f"ds_read_b128 {vr(XB,4)}, v{aXS}")
    E("s_waitcnt lgkmcnt(0)")
    L("L_gz_join")
relay_z()
stamp(6)
for s_ in (sLOC, sPub, sPubG, sZoff):
    E(f"s_add_u32 s{s_}, s{s_}, {LS}")
E("s_branch L_D1_q")
L("L_D1_out")
E(f"buffer_store_dwordx2 {vr(XB,2)}, v{aXIO}, s[{R_B}:{R_B+3}], 0 offen")
E(f"buffer_store_dwordx2 {vr(XB+2,2)}, v{aXIO}, s[{R_B}:{R_B+3}], 0 offen offset:512")
E(f"v_mov_b32 v{TT}, s{sTAG}")
E(f"v_mov_b32 v{TT+1}, {W_EP}")
E("s_mov_b64 exec, 1")
E(f"buffer_store_dword v{TT}, v{TT+1}, {WSR}, 0 offen")
if AMP:
    E("s_memrealtime s[88:89]")
    E("s_waitcnt lgkmcnt(0)")
    if AMP == "end": E("s_mov_b32 s94, s88")
    E("s_sub_u32 s94, s94, s86")
    E("s_lshl_b32 s94, s94, 2")
    E("s_min_u32 s94, s94, 20000")
    E("s_add_u32 s94, s94, s88")
    L("L_amp_spin")
    E("s_memrealtime s[88:89]")
    E("s_waitcnt lgkmcnt(0)")
    E("s_sub_u32 s89, s94, s88")
    E("s_cmp_gt_i32 s89, 0")
    E("s_cbranch_scc1 L_amp_spin")
if PROF:
    stamp(7)
    E("s_waitcnt vmcnt(0)")
    stamp(8)
L("L_D1_end")
stamp_flush(0, 0, (128, 4, [60, 2, 3, 4, 6, 20, 8]))
E("s_endpgm")
sec("help")
L("L_D1_help")
E(f"s_mul_i32 s{sT0}, s{sG}, {224*1024}")
E(f"s_lshl_b32 s{sT1}, s{sC}, 7")
E(f"s_add_u32 s{sT0}, s{sT0}, s{sT1}")
srd(R_B, sW2, f"s{sT0}", 224*1024 - 896)
E("v_lshlrev_b32 v244, 10, v242")
E("v_lshl_add_u32 v244, v243, 4, v244")
E(f"s_cmp_eq_u32 s{sWV}, 4")
E("s_cbranch_scc1 L_D1_ctl")
for u in range(3):
    E(f"s_cmp_lg_u32 s{sWV}, {5+u}")
    E(f"s_cbranch_scc1 L_D1_wm{u}")
    warm("d1", u, 3)
    L(f"L_D1_wm{u}")
E("s_branch L_D1_bq")
L("L_D1_ctl")
E(f"v_lshlrev_b32 v{cT}, 7, v2")
E(f"buffer_load_dword v240, v{cT}, {WSR}, s{sQ0} offen sc1")
ctl_head()
xc_publish()
L("L_D1_bq")
E("s_barrier")
E(f"s_cmp_lg_u32 s{sWV}, 4")
E("s_cbranch_scc1 L_D1_w2")
first_gather("d1x", False, None)
stamp(3)
E(f"v_lshlrev_b32 v{cT}, 3, v1")
E(f"s_cmp_eq_u32 s{sMODE}, 1")
E("s_cbranch_scc0 L_D1_b2")
L("L_D1_st")
E(f"buffer_load_dword v{cT+1}, v{cT}, {WSR}, s{sLOC} offen offset:{W_ST} sc1")
E("s_waitcnt vmcnt(0)")
E(f"v_cmp_ne_u32 vcc, -1, v{cT+1}")
E("s_cbranch_vccnz L_D1_b2")
E("s_sleep 8")
spin_check("L_D1_st")
L("L_D1_b2")
E("s_waitcnt lgkmcnt(0)")
L("L_D1_w2")
E("s_barrier")
E(f"s_sub_u32 s{sT0}, s{sWV}, 4")
E(f"s_mul_i32 s{sT1}, s{sT0}, 7168")
E(f"s_add_u32 m0, s{sT1}, {WB_LDS}")
E(f"s_mul_i32 s{sT1}, s{sT0}, {56*1024}")
for i in range(7):
    E(f"buffer_load_dwordx4 v244, s[{R_B}:{R_B+3}], s{sT1} offen{NTW} lds")
    if i < 6:
        E("s_add_u32 m0, m0, 1024")
        E(f"s_add_u32 s{sT1}, s{sT1}, 8192")
E("s_waitcnt vmcnt(0) lgkmcnt(0)")
stamp(4)
E("s_barrier")
stamp_flush(4, 1)
E("s_endpgm")

L("L_D2_init")
E(f"s_min_u32 s{sT1}, s{sC}, 6")
E(f"s_lshl_b32 s{sT1}, s{sT1}, 6")
E(f"s_mul_i32 s{sT0}, s{sG}, 448")
E(f"s_add_u32 s{sS1}, s{sT0}, s{sT1}")
E(f"s_sub_u32 s{sT3}, {1835008}, s{sS1}")
srd(R_B, sW1, f"s{sS1}", f"s{sT3}")
def d2_clear(sc, alt):
    for r in range(4): E(f"v_mov_b32 v{cG+r}, -1")
    E(f"s_lshl_b32 s{sT1}, s{sC}, 11")
    E(f"s_add_u32 s{sT1}, s{sT1}, s{sPoff}")
    if alt: E(f"s_add_u32 s{sT1}, s{sT1}, {ALT}")
    E(f"s_add_u32 s{sT2}, s{sT1}, {LS}")
    for so in (sT1, sT2):
        for o in range(2):
            E(f"buffer_store_dwordx4 {vr(cG,4)}, v{cL16}, {WSR}, s{so} offen offset:{1024*o}{sc}")
    E(f"s_mov_b32 s{sT1}, {LS}")
    E(f"v_lshrrev_b32 v{cT}, 5, v1")
    E(f"v_mul_lo_u32 v{cT}, v{cT}, s{sT1}")
    E(f"v_and_b32 v{cT+1}, 31, v1")
    E(f"v_lshl_add_u32 v{cT}, v{cT+1}, 4, v{cT}")
    E(f"s_lshl_b32 s{sT1}, s{sC}, 9")
    E(f"s_add_u32 s{sT1}, s{sT1}, s{sLOC}")
    if alt: E(f"s_add_u32 s{sT1}, s{sT1}, {ALT}")
    E(f"buffer_store_dwordx4 {vr(cG,4)}, v{cT}, {WSR}, s{sT1} offen{sc}")
srd(R_C, sDBG, None, 256)
E(f"s_cmp_lt_u32 s{sWV}, 4")
E("s_cbranch_scc1 L_D2_comp")
E(f"s_cmp_eq_u32 s{sWV}, 4")
E("s_cbranch_scc1 L_D2_ctl")
for u in range(3):
    E(f"s_cmp_lg_u32 s{sWV}, {5+u}")
    E(f"s_cbranch_scc1 L_D2_wm{u}")
    warm("d2", u, 3)
    L(f"L_D2_wm{u}")
if LATE0 == 2: E("s_barrier")
E("s_branch L_D2_bw")
L("L_D2_ctl")
d2_clear("", False)
clear_global()
ctl_head()
stamp(1)
xc_publish()
first_gather("d2x", False, lambda: d2_clear(" sc1", True))
stamp(2)
E(f"s_lshl_b32 s{sT1}, s{sG}, 5")
E(f"v_mov_b32 v{cT}, 1")
E(f"v_mov_b32 v{cT+1}, s{sT1}")
E(f"s_cmp_eq_u32 s{sC}, 0")
E("s_cselect_b32 exec_lo, 1, 0")
E("s_mov_b32 exec_hi, 0")
E(f"buffer_store_dword v{cT}, v{cT+1}, s[{R_C}:{R_C+3}], 0 offen sc1")
E("s_mov_b64 exec, -1")
if LATE0 == 2: E("s_barrier")
stamp(3)
E("s_waitcnt lgkmcnt(0)")
L("L_D2_bw")
E("v_lshrrev_b32 v245, 2, v1")
E("v_mul_u32_u24 v245, 3584, v245")
E("v_and_b32 v246, 3, v1")
E("v_and_b32 v247, 1, v3")
E("v_xor_b32 v246, v246, v247")
E("v_lshl_add_u32 v244, v246, 4, v245")
E("v_xor_b32 v246, 2, v246")
E("v_lshl_add_u32 v245, v246, 4, v245")
E(f"s_sub_u32 s{sT0}, s{sWV}, 4")
E(f"s_lshl_b32 s{sT1}, s{sT0}, 13")
E(f"s_add_u32 m0, s{sT1}, {WB_LDS}")
E(f"s_mul_i32 s{sT1}, s{sT0}, {128*3584}")
E("s_barrier")
E(f"s_cmp_lg_u32 s{sWV}, 4")
E("s_cbranch_scc1 L_D2_bo")
E(f"v_lshlrev_b32 v{cT+2}, 5, v1")
E("s_mov_b64 exec, 0xff")
L("L_D2_fpoll")
E(f"buffer_load_dword v{cT+3}, v{cT+2}, s[{R_C}:{R_C+3}], 0 offen sc1")
E("s_waitcnt vmcnt(0)")
E(f"v_cmp_ne_u32 vcc, 1, v{cT+3}")
E("s_cbranch_vccz L_D2_fok")
E("s_sleep 2")
spin_check("L_D2_fpoll")
L("L_D2_fok")
E("s_mov_b64 exec, -1")
L("L_D2_bo")
E("s_barrier")
for i in range(8):
    E(f"buffer_load_dwordx4 v{244 + i//4}, s[{R_B}:{R_B+3}], s{sT1} offen{NTW} lds")
    if i < 7:
        E("s_add_u32 m0, m0, 1024")
        E(f"s_add_u32 s{sT1}, s{sT1}, {16*3584}")
E("s_waitcnt vmcnt(0)")
stamp(4)
E("s_barrier")
stamp_flush(4, 1)
E("s_endpgm")
sec("d2")
L("L_D2_comp")
if LATE0: wo_issue()
srd(R_C, sB1, None, 3584)
E(f"v_and_b32 v{TT+5}, 7, v2")
E(f"v_lshlrev_b32 v{TT+5}, 1, v{TT+5}")
E(f"s_lshl_b32 s{sT1}, s{sWV}, 4")
E(f"s_add_u32 s{sT0}, s{sS1}, s{sT1}")
E(f"buffer_load_ushort v{vB1}, v{TT+5}, s[{R_C}:{R_C+3}], s{sT0} offen")
E(f"v_lshrrev_b32 v{TT+5}, 1, v{TT+2}")
E(f"v_lshl_add_u32 v{TT+5}, v{TT+1}, 1, v{TT+5}")
E(f"v_xor_b32 v{TT+5}, s{sWV}, v{TT+5}")
E(f"v_lshl_add_u32 v{aTA}, v3, 7, v{TT+2}")
E(f"v_lshlrev_b32 v{aTA}, 7, v{aTA}")
E(f"v_lshl_add_u32 v{aTA}, v{TT+3}, 3, v{aTA}")
E(f"v_lshl_add_u32 v{aTA}, v{TT+5}, 5, v{aTA}")
E(f"v_bfe_u32 v{TT+5}, v2, 1, 1")
E(f"v_lshl_add_u32 v{TT+6}, v{TT+5}, 6, v{TT+4}")
E(f"v_lshl_add_u32 v{TT+5}, v{TT+5}, 1, v{TT+1}")
E(f"v_xor_b32 v{TT+5}, s{sWV}, v{TT+5}")
E(f"v_lshlrev_b32 v{aTB}, 6, v{TT+6}")
E(f"v_lshl_add_u32 v{aTB}, v{TT+5}, 4, v{aTB}")
E(f"v_and_b32 v{TT+5}, 1, v2")
E(f"v_lshl_add_u32 v{aTB}, v{TT+5}, 3, v{aTB}")
E(f"v_add_u32 v{aTB}, {WB_LDS}, v{aTB}")
E(f"s_lshl_b32 s{sT1}, s{sWV}, 7")
E(f"v_lshlrev_b32 v{aST}, 5, v3")
E(f"v_add_u32 v{aST}, s{sT1}, v{aST}")
E(f"v_lshlrev_b32 v{aOS}, 4, v2")
E(f"v_lshl_add_u32 v{aOS}, v{TT+1}, 3, v{aOS}")
E(f"v_lshl_add_u32 v{aOS}, v{TT}, 2, v{aOS}")
E(f"s_lshl_b32 s{sT1}, s{sWV}, 8")
E(f"s_add_u32 s{sT1}, s{sT1}, {OS_LDS}")
E(f"v_add_u32 v{aOS}, s{sT1}, v{aOS}")
E(f"v_add_u32 v{aIN}, {OS_LDS}, v{vL16}")
E(f"v_lshlrev_b32 v{TT+5}, 4, v{TT+5}")
E(f"v_mov_b32 v{TT+6}, 0xffff")
E(f"v_lshlrev_b32 v{TT+6}, v{TT+5}, v{TT+6}")
E(f"v_bfe_u32 v{TT+7}, v2, 1, 2")
for d in range(4):
    E(f"v_cmp_eq_u32 vcc, {d}, v{TT+7}")
    E("s_nop 1")
    E(f"v_cndmask_b32 v{MK+d}, 0, v{TT+6}, vcc")
E(f"v_lshrrev_b32 v{vFLG}, 3, v2")
E(f"v_cmp_eq_u32 vcc, v{vFLG}, v{TT}")
E(f"v_cvt_f32_u32 v{vFLG}, v{vFLG}")
E("s_nop 0")
E(f"v_cndmask_b32 v{vVAL}, 0, -1, vcc")
E(f"s_lshl_b32 s{sT1}, s{sWV}, 12")
E(f"s_add_u32 s{sPoff}, s{sPoff}, s{sT1}")
E(f"s_lshl_b32 s{sT1}, s{sPJ}, 4")
E(f"s_add_u32 s{sPub}, s{sLOC}, s{sT1}")
E(f"s_add_u32 s{sPubG}, s{sPubG}, {W_Y}")
E(f"s_mov_b32 s{sYoff}, {W_Y}")
E(f"s_mov_b32 s{sC2}, 0")
E("s_waitcnt vmcnt(0)")
unpack_resid(XB)
E(f"v_lshlrev_b32 v{vB1}, 16, v{vB1}")
stamp(1)
E("s_barrier")
stamp(2)
for s in range(16):
    for e in range(2):
        E(f"ds_read_b64_tr_b16 {vr(WA+4*s+2*e,2)}, v{aTA} offset:{1024*s+512*e}")
read_mode("0xff")
E(f"s_cmp_lt_u32 s{sC}, 7")
E(f"s_cselect_b32 s{sMA_f}, s{sMA_f}, 0")
E(f"s_cselect_b32 s{sMA_s}, s{sMA_s}, 0")
L("L_D2_loop")
mark("d2")
def p_loads():
    for i in range(4):
        E(f"buffer_load_dwordx4 {vr(GB+4*i,4)}, v{vL16}, {WSR}, s{sPoff} offen offset:{1024*i} sc1")
arm(vST, 8)
p_loads()
L("L_gs_poll")
E(f"buffer_load_dwordx4 {vr(vST,4)}, v{aST}, {WSR}, s{sLOC} offen offset:{W_ST} sc1")
E(f"buffer_load_dwordx4 {vr(vST+4,4)}, v{aST}, {WSR}, s{sLOC} offen offset:{W_ST+16} sc1")
E(f"s_waitcnt vmcnt({2*(PD-1)})")
E(f"v_max3_u32 v{TT}, v{vST}, v{vST+1}, v{vST+2}")
E(f"v_max3_u32 v{TT+1}, v{vST+3}, v{vST+4}, v{vST+5}")
E(f"v_max3_u32 v{TT}, v{TT}, v{vST+6}, v{vST+7}")
E(f"v_max_u32 v{TT}, v{TT}, v{TT+1}")
E(f"v_cmp_eq_u32 vcc, -1, v{TT}")
E("s_cbranch_vccz L_gs_ok")
if SLP: E(f"s_sleep {SLP}")
spin_check("L_gs_poll")
L("L_gs_ok")
p_loads()
stamp(3, True)
vM, vU, vLs = TT, TT+1, TT+2
WT = TT + 3
AW = GB + 16
E(f"v_max3_f32 v{vM}, v{vST}, v{vST+2}, v{vST+4}")
E(f"v_max_f32 v{vM}, v{vM}, v{vST+6}")
for sw in ("16", "32"):
    E(f"v_mov_b32 v{vU}, v{vM}")
    E("s_nop 1")
    E(f"v_permlane{sw}_swap_b32 v{vM}, v{vU}")
    E(f"v_max_f32 v{vM}, v{vM}, v{vU}")
for t in range(4): E(f"v_sub_f32 v{WT+t}, v{vST+2*t}, v{vM}")
for t in range(4): E(f"v_exp_f32 v{WT+t}, v{WT+t}")
E("s_nop 0")
E(f"v_mul_f32 v{vLs}, v{WT}, v{vST+1}")
for t in range(1, 4): E(f"v_fmac_f32 v{vLs}, v{WT+t}, v{vST+2*t+1}")
for sw in ("16", "32"):
    E(f"v_mov_b32 v{vU}, v{vLs}")
    E("s_nop 1")
    E(f"v_permlane{sw}_swap_b32 v{vLs}, v{vU}")
    E(f"v_add_f32 v{vLs}, v{vLs}, v{vU}")
E(f"v_rcp_f32 v{vLs}, v{vLs}")
p_loads()
for t in range(4): E(f"v_mul_f32 v{WT+t}, v{WT+t}, v{vLs}")
for t in range(4): E(f"v_cvt_pk_bf16_f32 v{WT+4+t}, v{WT+t}, v{WT+t}")
for t in range(4): E(f"v_and_b32 v{WT+4+t}, 0xffff0000, v{WT+4+t}")
for t in range(4): E(f"v_fma_f32 v{WT+t}, -v{WT+4+t}, v{vFLG}, v{WT+t}")
for t in range(4): E(f"v_cvt_pk_bf16_f32 v{WT+t}, v{WT+t}, v{WT+t}")
for t in range(4):
    for d in range(4): E(f"v_and_b32 v{AW+4*t+d}, v{MK+d}, v{WT+t}")
E("s_branch L_gp_use")
L("L_gp_nan")
E(f"s_sub_u32 s{sSPIN}, s{sSPIN}, 1")
E("s_cbranch_scc1 L_exit")
E(f"s_and_b32 s{sT1}, s{sSPIN}, 15")
E("s_cbranch_scc0 L_gp_retry")
L("L_gp_again")
p_loads()
L("L_gp_use")
E("s_waitcnt vmcnt(4)")
for t in range(4):
    E(f"v_mfma_f32_16x16x32_bf16 {vr(CA,4)}, {vr(AW+4*t,4)}, {vr(GB+4*t,4)}, {'0' if t == 0 else vr(CA,4)}")
E("s_nop 7")
E(f"v_cmp_u_f32 vcc, v{CA}, v{CA}")
E(f"v_permlane32_swap_b32 v{CA}, v{CA+2}")
E(f"v_permlane32_swap_b32 v{CA+1}, v{CA+3}")
E("s_cbranch_vccnz L_gp_nan")
L("L_gp_ok")
E(f"v_add_f32 v{CA}, v{CA}, v{CA+2}")
E(f"v_add_f32 v{CA+1}, v{CA+1}, v{CA+3}")
E(f"v_cvt_pk_bf16_f32 v{CA}, v{CA}, v{CA+1}")
E(f"ds_write_b32 v{aOS}, v{CA}")
E(f"v_mov_b32 v{vT}, 0")
stamp(4, True)
mark("d2")
E("s_waitcnt lgkmcnt(0)")
E("s_barrier")
E(f"ds_read_b128 {vr(XB,4)}, v{aIN}")
E(f"buffer_load_dwordx4 {vr(CA,4)}, v{vL16}, {WSR}, s{sLOC} offen offset:{W_X2} sc1")
E("s_waitcnt lgkmcnt(0)")
matvec(16, XB, WA, [], per=1)
y_publish()
stamp(5, True)
mark("d2")
def w1_setup(tag):
    E(f"s_cmp_lg_u32 s{sC2}, 0")
    E(f"s_cbranch_scc1 L_D2_havew1{tag}")
    E(f"s_mov_b32 s{sC2}, 1")
    E("s_barrier")
    for s in range(8):
        for e in range(2):
            E(f"ds_read_b64_tr_b16 {vr(WB+4*s+2*e,2)}, v{aTB} offset:{16384*e+512*s}")
    for s in range(8):
        E(f"s_waitcnt lgkmcnt({14-2*s})")
        c = "0" if s == 0 else vr(ACC,4)
        E(f"v_mfma_f32_16x16x32_bf16 {vr(ACC,4)}, {vr(ONESB,4)}, {vr(WB+4*s,4)}, {c}")
    E("s_nop 7")
    E(f"v_add_f32_dpp v{vCS}, v{ACC}, v{ACC} row_ror:8 row_mask:0xf bank_mask:0xf")
    L(f"L_D2_havew1{tag}")
def pre_y():
    E(f"s_cmp_eq_u32 s{sLAY}, 0")
    E("s_cbranch_scc1 L_D2_havex")
    E("s_waitcnt vmcnt(1)")
    chk_bf16(CA, TT)
    E("s_cbranch_vccz L_gx2_have")
    gather1("gx2", CA, vL16, sLOC, W_X2, TT, pd=1, slp=0)
    L("L_gx2_have")
    unpack_resid(CA)
    L("L_D2_havex")
relay_X("gy", sYoff, pre_y)
stamp(6, True)
mark("d2")
matvec(8, XB, WB, stats_fillers(), rows=[(0x5, 0xf, [0,1,2,3]), (0xa, 0xf, [4,5,6,7])], per=PER+2)
mark("d2")
xgroup_sum(True)
h, u, a, b = vT, TT+5, TT+6, TT+7
E(f"v_add_f32 v{h}, v{h}, v{vB1}")
E(f"v_mul_f32 v{u}, s{sC3}, |v{h}|")
E(f"v_exp_f32 v{u}, v{u}")
E(f"v_cmp_le_f32 vcc, 0, v{h}")
E(f"v_add_f32 v{b}, 2.0, v{u}")
E(f"v_fma_f32 v{a}, v{u}, 2.0, 1.0")
E(f"v_mul_f32 v{b}, v{u}, v{b}")
E(f"v_mul_f32 v{u}, v{u}, v{u}")
E(f"v_cndmask_b32 v{a}, v{b}, v{a}, vcc")
E(f"v_cndmask_b32 v{u}, 1.0, v{u}, vcc")
E(f"v_fma_f32 v{b}, v{u}, 2.0, v{a}")
E(f"v_rcp_f32 v{b}, v{b}")
E(f"v_mul_f32 v{h}, v{h}, v{a}")
E(f"v_mul_f32 v{h}, v{h}, v{b}")
E(f"v_cvt_pk_bf16_f32 v{h}, v{h}, v{h}")
E(f"v_min_u32 v{h}, -2, v{h}")
pub2("buffer_store_short", f"v{h}", aP16, sPub, sMA_f, sMA_s, W_ACT)
stamp(7, True)
pub_resid(W_X1)
for s_ in (sLOC, sPoff, sPub, sPubG, sYoff):
    E(f"s_add_u32 s{s_}, s{s_}, {LS}")
E(f"s_add_u32 s{sLAY}, s{sLAY}, 1")
E(f"s_cmp_lt_u32 s{sLAY}, 2")
E("s_cbranch_scc1 L_D2_loop")
stamp_flush(0, 0)
E("s_endpgm")
sec("cold")
L("L_exit")
E("s_endpgm")
L("L_gp_retry")
for i in range(0, 16, 2): E(f"v_pk_max_u16 v{ACC+i//2}, v{GB+i}, v{GB+i+1}")
for i in range(0, 8, 2): E(f"v_pk_max_u16 v{ACC+i//2}, v{ACC+i}, v{ACC+i+1}")
chk_bf16(ACC, TT)
E("s_cbranch_vccnz L_gp_again")
for t in range(4):
    E(f"v_mfma_f32_16x16x32_bf16 {vr(CA,4)}, {vr(AW+4*t,4)}, {vr(GB+4*t,4)}, {'0' if t == 0 else vr(CA,4)}")
E("s_nop 9")
E(f"v_permlane32_swap_b32 v{CA}, v{CA+2}")
E(f"v_permlane32_swap_b32 v{CA+1}, v{CA+3}")
E("s_branch L_gp_ok")
for b_ in retry_blocks: b_()
L("L_wret")
E(f"s_setpc_b64 s[{sRET}:{sRET+1}]")
L("L_code_end")

out = [open("cdna_kernels/" + NAME + ".s.ref").read().split("; Override")[0].rstrip("\n"),
       f"; @launch grid=(256,1,1) block=(512,1,1) lds={LDS_BYTES}", '.amdgcn_target "amdgcn-amd-amdhsa--gfx950"', ".text",
       f".globl {NAME}_kernel", ".p2align 8", f".type {NAME}_kernel,@function"]
for k in ORDER:
    for x in secs[k]:
        if isinstance(x, tuple):
            _, role, first, step = x
            out.append("    s_mov_b64 exec, 0")
            out += [f"    s_call_b64 s[{sRET}:{sRET+1}], {m}" for m in marks[role][first::step]]
            out.append("    s_mov_b64 exec, -1")
        else: out.append(x)
out.append('.section .rodata,"a"')
out.append(".p2align 6")
out.append(f".amdhsa_kernel {NAME}_kernel")
out.append("  .amdhsa_next_free_vgpr 256")
out.append("  .amdhsa_next_free_sgpr 96")
out.append("  .amdhsa_accum_offset 256")
out.append("  .amdhsa_group_segment_fixed_size 0")
out.append("  .amdhsa_kernarg_size 96")
out.append("  .amdhsa_user_sgpr_count 2")
out.append("  .amdhsa_user_sgpr_kernarg_segment_ptr 1")
out.append("  .amdhsa_system_sgpr_workgroup_id_x 1")
out.append("  .amdhsa_float_denorm_mode_32 3")
out.append(".end_amdhsa_kernel")
open(sys.argv[1], "w").write("\n".join(out) + "\n")
```

```python
import sys, math, struct
PROF = int(sys.argv[2]) if len(sys.argv) > 2 else 0
OPT = dict(a.split("=") for a in sys.argv[3:])
THR = int(OPT.get("thr", 6))
ACK = int(OPT.get("ack", 1))
PER = int(OPT.get("per", 3))
PD = int(OPT.get("pd", 4))
SLP = int(OPT.get("slp", 1))
LATE0 = int(OPT.get("late0", 0))
GP = int(OPT.get("gp", 1))
GSL = int(OPT.get("gsl", 0))
THV = int(OPT.get("thv", 8))
GD = int(OPT.get("gd", 0))
fl = lambda k, d: {"0": "", "1": " nt", "2": " sc1", "3": " sc0 sc1", "4": " sc1 nt"}[OPT.get(k, d)]
NTQ, NTW, NTK, NTV = fl("ntq", "0"), fl("ntw", "0"), fl("ntk", "1"), fl("ntv", "0")
TQ = int(OPT.get("tq", 1))
MARKGAP = int(OPT.get("gap", 768))
CPF = int(OPT.get("cpf", 1))
WARM = int(OPT.get("warm", 1))
NTT = fl("ntt", "0")
NAME = "interleave_layers__sliding_block_cached__dense_activation_mish__decode"
import re
ORDER = ["entry", "dinit", "d1", "actl", "a", "d2", "help", "cold"]
secs = {k: [] for k in ORDER}
cur = ["entry"]
since = {k: 0 for k in ORDER}
unsafe = [False]
marks = {k: [] for k in ORDER}
WARMED = ("d1", "a", "d2")
BIG = ("v_mfma", "v_pk_", "v_fma_", "v_max3", "v_or3", "v_add3", "v_lshl_add", "v_bfe", "v_mul_lo", "v_cvt_pk", "v_readlane", "v_writelane",
       "ds_", "buffer_", "global_", "s_load", "s_memrealtime")
def isize(t):
    if t.startswith(BIG) or "_dpp" in t or "|v" in t or (t.startswith(("v_cmp", "v_cndmask")) and "s[" in t): return 8
    ops = t.split(None, 1)[1] if " " in t else ""
    if t.startswith(("s_waitcnt", "s_nop", "s_sleep", "s_branch", "s_cbranch", "s_call", "s_getreg", "s_setprio")): return 4
    for tok in re.split(r"[,\s]+", ops):
        if re.fullmatch(r"0x[0-9a-f]+|\d+", tok) and int(tok, 0) > 64: return 8
    return 4
def sec(name): cur[0] = name
def put_mark():
    k = cur[0]
    marks[k].append(f"L_wm_{k}{len(marks[k])}")
    secs[k].append(marks[k][-1] + ":")
    secs[k].append("    s_cbranch_execz L_wret")
    since[k] = 4
def E(s=""):
    k = cur[0]
    if WARM and k in WARMED and not unsafe[0] and (since[k] >= MARKGAP or not marks[k]): put_mark()
    secs[k].append("    " + s)
    since[k] += isize(s)
    if re.match(r"s_\w+ exec", s): unsafe[0] = s != "s_mov_b64 exec, -1"
def L(s): secs[cur[0]].append(s + ":")
def vr(a, n=1): return f"v{a}" if n == 1 else f"v[{a}:{a+n-1}]"
def f32(x): return hex(struct.unpack("<I", struct.pack("<f", x))[0])

K_LDS, V_LDS = 0, 65536
WA_LDS, WB_LDS = 0, 65536
QS_LDS, PX_LDS, SX_LDS, FL_LDS = 131072, 132096, 140288, 141312
OS_LDS, XS_LDS = QS_LDS, PX_LDS
LDS_BYTES = 141824
LS = 0x30000
W_Q, W_X2, W_X1, W_ST, W_ACT = 0, 1024, 2048, 3072, 3584
W_Y, W_Z, W_P = 32768, 40960, 65536
W_Q0 = 2 * LS
W_Q0B = 32768
W_EP = W_Q0 + 65536
ALT = 0x80000
WS_USED = ALT + 2 * LS
PROF_OFF = 0x300000
WS_REC = PROF_OFF + 256 * 1024

sX, sK, sV, sWQ, sWO, sBX, sW1, sB1 = 8, 10, 12, 14, 16, 18, 20, 22
sW2, sOUT, sDBG, sWS = 24, 26, 28, 30
sG, sJ, sWV, sC, sPJ = 3, 4, 5, 6, 7
R_WS, R_A, R_B, R_C = 32, 36, 40, 44
sT0, sT1, sT2, sT3 = 48, 49, 50, 51
sLOC, sLAY = 52, 53
sYoff, sZoff, sPoff = 54, 55, 56
sSPIN = 57
sRET = 58
sMA_f, sMA_s, sMB_f, sMB_s, sMC_f, sMC_s = 60, 62, 64, 66, 68, 70
sTAG, sXCC, sQ0, sQ0B = 72, 73, 74, 75
sFFFE = 76
sC1, sC2, sC3 = 77, 78, 79
sS1, sS2, sPIV = 80, 81, 82
sPub, sPubG = 83, 84
sST = 88
sPe, sLe, sMODE = 90, 91, 92
SPIN0 = 0x200000
WSR = f"s[{R_WS}:{R_WS+3}]"

def srd(r, base, add_lo=None, rec=None):
    if add_lo is None:
        E(f"s_mov_b32 s{r}, s{base}")
        E(f"s_and_b32 s{r+1}, s{base+1}, 0xffff")
    else:
        E(f"s_add_u32 s{r}, s{base}, {add_lo}")
        E(f"s_addc_u32 s{r+1}, s{base+1}, 0")
        E(f"s_and_b32 s{r+1}, s{r+1}, 0xffff")
    E(f"s_mov_b32 s{r+2}, {rec}")
    E(f"s_mov_b32 s{r+3}, 0x00020000")

V_STAMP = 254
ROLE = ["a"]
def stamp(idx, layer_dep=False):
    if not PROF: return
    if PROF == 9 and not (idx == 8 and not layer_dep) and not (idx == 6 and layer_dep and ROLE[0] == "a"): return
    E(f"s_memrealtime s[{sST}:{sST+1}]")
    E("s_waitcnt lgkmcnt(0)")
    if layer_dep:
        E(f"s_lshl_b32 s{sT3}, s{sLAY}, 4")
        E(f"s_add_u32 s{sT3}, s{sT3}, {idx}")
        E(f"s_mov_b32 m0, s{sT3}")
        E("s_nop 0")
        E(f"v_writelane_b32 v{V_STAMP}, s{sST}, m0")
    else:
        E(f"v_writelane_b32 v{V_STAMP}, s{sST}, {idx}")
AMP = OPT.get("amp")
def amp(name):
    if AMP != name: return
    E(f"s_cmp_eq_u32 s{sLAY}, {OPT.get('amplay', '0')}")
    E(f"s_cbranch_scc0 L_amp_{name}")
    E("s_memrealtime s[94:95]")
    E("s_waitcnt lgkmcnt(0)")
    L(f"L_amp_{name}")
def ampx(name, wave):
    if AMP != name: return
    E(f"s_cmp_eq_u32 s2, {OPT.get('ampwg', '0')}")
    E(f"s_cbranch_scc0 L_amp_{name}")
    E(f"s_cmp_eq_u32 s{sWV}, {wave}")
    E(f"s_cbranch_scc0 L_amp_{name}")
    E(f"s_cmp_eq_u32 s{sLAY}, 0")
    E(f"s_cbranch_scc0 L_amp_{name}")
    E("s_memrealtime s[94:95]")
    E("s_waitcnt lgkmcnt(0)")
    E("s_sub_u32 s94, s94, s86")
    E("v_mov_b32 v252, s94")
    E(f"v_mov_b32 v253, {W_EP + 64}")
    E(f"buffer_store_dword v252, v253, {WSR}, 0 offen sc1")
    L(f"L_amp_{name}")
def stamp_flush(wave, slot, dbg=None):
    if not PROF: return
    E(f"s_cmp_lg_u32 s{sWV}, {wave}")
    E("s_cbranch_scc1 L_exit")
    E("s_mov_b64 exec, -1")
    if dbg and "dbg" in OPT:
        wg, off, idx = dbg
        for i, x in enumerate(idx):
            E(f"v_readlane_b32 s{sT0}, v{V_STAMP}, {x}")
            E("s_nop 3")
            E(f"v_writelane_b32 v{V_STAMP-2}, s{sT0}, {i}")
        srd(R_A, sDBG, None, 256)
        E(f"v_lshlrev_b32 v{V_STAMP-1}, 2, v1")
        E(f"s_cmp_eq_u32 s2, {wg}")
        E(f"s_cselect_b32 exec_lo, {(1 << len(idx)) - 1}, 0")
        E("s_mov_b32 exec_hi, 0")
        E(f"buffer_store_dword v{V_STAMP-2}, v{V_STAMP-1}, s[{R_A}:{R_A+3}], 0 offen offset:{off}")
        E("s_mov_b64 exec, -1")
    E(f"s_lshl_b32 s{sT0}, s2, 10")
    E(f"s_add_u32 s{sT0}, s{sT0}, {PROF_OFF + slot*256}")
    E(f"v_lshlrev_b32 v{V_STAMP-1}, 2, v1")
    E(f"buffer_store_dword v{V_STAMP}, v{V_STAMP-1}, {WSR}, s{sT0} offen")

def mark(role): pass
def warm(role, first=0, step=1):
    if WARM: secs[cur[0]].append(("WARM", role, first, step))

def spin_check(fail_label):
    E(f"s_sub_u32 s{sSPIN}, s{sSPIN}, 1")
    E(f"s_cbranch_scc1 L_exit")
    E(f"s_branch {fail_label}")

def chk_bf16(v, t):
    E(f"v_pk_max_u16 v{t}, v{v}, v{v+1}")
    E(f"v_pk_max_u16 v{t+1}, v{v+2}, v{v+3}")
    E(f"v_pk_max_u16 v{t}, v{t}, v{t+1}")
    E(f"v_pk_max_u16 v{t}, v{t}, v{t} op_sel:[0,1] op_sel_hi:[1,0]")
    E(f"v_cmp_eq_u32 vcc, -1, v{t}")

def pub2(op, data, addr, soff, mf, ms, imm=0):
    o = f" offset:{imm}" if imm else ""
    E(f"s_mov_b64 exec, s[{mf}:{mf+1}]")
    E(f"{op} {data}, v{addr}, {WSR}, s{soff} offen{o}")
    E(f"s_mov_b64 exec, s[{ms}:{ms+1}]")
    E(f"{op} {data}, v{addr}, {WSR}, s{soff} offen{o} sc1")
    E("s_mov_b64 exec, -1")

def masks(mf, ms, lo, hi):
    E(f"s_cselect_b32 s{mf}, {lo}, 0")
    E(f"s_cselect_b32 s{mf+1}, {hi}, 0")
    E(f"s_cselect_b32 s{ms}, 0, {lo}")
    E(f"s_cselect_b32 s{ms+1}, 0, {hi}")

def arm(dst, n):
    for r in range(n): E(f"v_mov_b32 v{dst+r}, -1")

def gather1(tag, dst, addr, soff, imm, t, pd=None, slp=None):
    pd = PD if pd is None else pd
    slp = SLP if slp is None else slp
    L(f"L_{tag}_poll")
    E(f"buffer_load_dwordx4 {vr(dst,4)}, v{addr}, {WSR}, s{soff} offen offset:{imm} sc1")
    E(f"s_waitcnt vmcnt({pd-1})")
    chk_bf16(dst, t)
    E(f"s_cbranch_vccz L_{tag}_ok")
    if slp: E(f"s_sleep {slp}")
    spin_check(f"L_{tag}_poll")
    L(f"L_{tag}_ok")

cD, cA, cXa, cG, cT, cL16 = 208, 210, 211, 212, 224, 232
def xc_publish():
    E(f"s_getreg_b32 s{sXCC}, hwreg(HW_REG_XCC_ID, 0, 4)")
    E(f"v_mov_b32 v{cD+1}, s{sTAG}")
    E(f"s_lshl_b32 s{sT3}, s{sJ}, 3")
    E(f"v_mov_b32 v{cD}, s{sXCC}")
    E(f"v_mov_b32 v{cA}, s{sT3}")
    E("s_mov_b64 exec, 1")
    E(f"buffer_store_dwordx2 {vr(cD,2)}, v{cA}, {WSR}, s{sQ0} offen offset:2048")
    E("s_mov_b64 exec, -1")

def first_gather(tag, with_q, clear_alt):
    regs = (1, 3, 5, 7, 9) if with_q else (9,)
    nl = 3 if with_q else 1
    E(f"s_sub_u32 s{sS2}, s{sSPIN}, 160")
    E(f"v_and_b32 v{cXa}, 31, v1")
    E(f"v_lshlrev_b32 v{cXa}, 3, v{cXa}")
    E(f"s_not_b32 s{sT1}, s{sTAG}")
    for r in regs: E(f"v_mov_b32 v{cG+r}, s{sT1}")
    def loads(so):
        if with_q:
            E(f"buffer_load_dwordx4 {vr(cG,4)}, v{cL16}, {WSR}, s{so} offen sc1")
            E(f"buffer_load_dwordx4 {vr(cG+4,4)}, v{cL16}, {WSR}, s{so} offen offset:1024 sc1")
        E(f"buffer_load_dwordx2 {vr(cG+8,2)}, v{cXa}, {WSR}, s{so} offen offset:2048 sc1")
    def check():
        if with_q:
            for i, r in enumerate(regs): E(f"v_xor_b32 v{cT+i}, s{sTAG}, v{cG+r}")
            E(f"v_or3_b32 v{cT}, v{cT}, v{cT+1}, v{cT+2}")
            E(f"v_or3_b32 v{cT}, v{cT}, v{cT+3}, v{cT+4}")
            E(f"v_cmp_ne_u32 vcc, 0, v{cT}")
        else:
            E(f"v_cmp_ne_u32 vcc, s{sTAG}, v{cG+9}")
    def copy_b():
        E("s_mov_b64 exec, 1")
        E(f"buffer_store_dwordx2 {vr(cD,2)}, v{cA}, {WSR}, s{sQ0B} offen offset:2048 sc1")
        E("s_mov_b64 exec, -1")
    L(f"L_{tag}_poll")
    loads(sQ0)
    E(f"s_waitcnt vmcnt({min(nl*6, 60)})")
    check()
    E(f"s_cbranch_vccz L_{tag}_seen")
    E("s_sleep 3")
    E(f"s_cmp_gt_u32 s{sSPIN}, s{sS2}")
    E(f"s_cbranch_scc0 L_{tag}_b")
    spin_check(f"L_{tag}_poll")
    home = cur[0]; sec("cold")
    L(f"L_{tag}_b")
    copy_b()
    L(f"L_{tag}_alt")
    for so in (sQ0B, sQ0):
        loads(so)
        E("s_waitcnt vmcnt(0)")
        check()
        E(f"s_cbranch_vccz L_{tag}_ok")
    spin_check(f"L_{tag}_alt")
    sec(home)
    L(f"L_{tag}_seen")
    E("s_nop 15")
    L(f"L_{tag}_ok")
    if with_q:
        E(f"v_lshlrev_b32 v{cT+1}, 3, v1")
        E(f"v_add_u32 v{cT+1}, {QS_LDS}, v{cT+1}")
        E(f"ds_write2_b32 v{cT+1}, v{cG}, v{cG+2} offset0:0 offset1:1")
        E(f"ds_write2_b32 v{cT+1}, v{cG+4}, v{cG+6} offset0:128 offset1:129")
    E(f"v_cmp_ne_u32 vcc, s{sXCC}, v{cG+8}")
    E("s_nop 3")
    if OPT.get("slow") == "1": E("s_mov_b64 vcc, -1")
    E("s_cmp_eq_u64 vcc, 0")
    E(f"s_cselect_b32 s{sMODE}, 1, 0")
    E(f"s_cbranch_scc0 L_{tag}_slow")
    sec("cold")
    L(f"L_{tag}_slow")
    E("s_waitcnt vmcnt(0) lgkmcnt(0)")
    copy_b()
    if clear_alt: clear_alt()
    if clear_alt:
        E("s_waitcnt vmcnt(0)")
        E("s_mov_b64 exec, 1")
        E(f"buffer_store_dwordx2 {vr(cD,2)}, v{cA}, {WSR}, s{sQ0B} offen offset:2560 sc1")
        E("s_mov_b64 exec, -1")
    E(f"v_and_b32 v{cXa}, 56, v{cXa}")
    E(f"v_add_u32 v{cXa}, 192, v{cXa}")
    L(f"L_{tag}_h")
    E(f"buffer_load_dwordx2 {vr(cG+8,2)}, v{cXa}, {WSR}, s{sQ0B} offen offset:2560 sc1")
    E("s_waitcnt vmcnt(0)")
    E(f"v_cmp_ne_u32 vcc, s{sTAG}, v{cG+9}")
    E(f"s_cbranch_vccz L_{tag}_done")
    spin_check(f"L_{tag}_h")
    sec(home)
    L(f"L_{tag}_done")
    E(f"v_mov_b32 v{cT+2}, {FL_LDS}")
    E(f"v_mov_b32 v{cT+3}, s{sMODE}")
    E(f"ds_write_b32 v{cT+2}, v{cT+3}")

L(f"{NAME}_kernel")
E("s_cmp_ge_u32 s2, 256")
E("s_cbranch_scc1 L_exit")
E("s_load_dwordx16 s[8:23], s[0:1], 0")
E("s_load_dwordx8 s[24:31], s[0:1], 64")
if PROF:
    E(f"v_mov_b32 v{V_STAMP}, 0")
    E(f"s_memrealtime s[{sST}:{sST+1}]")
if AMP: E("s_memrealtime s[86:87]")
E("s_getpc_b64 s[92:93]")
E("v_lshrrev_b32 v1, 6, v0")
E(f"s_and_b32 s{sG}, s2, 7")
E(f"v_readfirstlane_b32 s{sWV}, v1")
E(f"s_lshr_b32 s{sJ}, s2, 3")
E("v_and_b32 v1, 63, v0")
if CPF:
    E("s_and_b32 s92, s92, 0xffffff00")
    E("v_lshlrev_b32 v4, 7, v1")
    E("v_add_u32 v5, 0x2000, v4")
    E(f"v_min_u32 v5, L_code_end-{NAME}_kernel-4, v5")
    E(f"s_cmp_lg_u32 s{sWV}, 7")
    E("s_cbranch_scc1 L_nocpf")
    E("global_load_dword v239, v4, s[92:93]")
    E("global_load_dword v239, v5, s[92:93]")
    L("L_nocpf")
E("v_and_b32 v2, 15, v0")
E("v_lshrrev_b32 v3, 4, v1")
E(f"s_mov_b32 s{sSPIN}, {SPIN0}")
E(f"s_mov_b32 s{sLAY}, 0")
E(f"s_lshl_b32 s{sLOC}, s{sG}, 12")
E(f"s_lshl_b32 s{sPoff}, s{sG}, 14")
E(f"s_add_u32 s{sPoff}, s{sPoff}, {W_P}")
E(f"s_add_u32 s{sQ0}, s{sLOC}, {W_Q0}")
E(f"s_add_u32 s{sQ0B}, s{sQ0}, {W_Q0B}")
E("v_lshrrev_b32 v5, 3, v1")
E("v_and_b32 v6, 7, v1")
E("v_lshlrev_b32 v4, 13, v5")
E("v_lshl_add_u32 v4, v6, 7, v4")
E(f"s_lshl_b32 s{sT0}, s{sJ}, 17")
E(f"s_lshl_b32 s{sT1}, s{sG}, 10")
E(f"s_add_u32 s{sT0}, s{sT0}, s{sT1}")
E(f"s_sub_u32 s{sT1}, s{sWV}, 1")
E(f"s_lshl_b32 s{sT2}, s{sT1}, 16")
E(f"s_add_u32 s{sT0}, s{sT0}, s{sT2}")
E(f"s_mov_b32 s{sT2}, {W_EP}")
E("v_mov_b32 v7, 0")
E(f"s_cmp_lt_u32 s{sT1}, 2")
E("s_waitcnt lgkmcnt(0)")
E("s_cbranch_scc0 L_notouch")
srd(R_C, sWQ, None, 4194304)
if TQ: E(f"buffer_load_dword v240, v4, s[{R_C}:{R_C+3}], s{sT0} offen{NTQ}")
L("L_notouch")
srd(R_WS, sWS, None, WS_REC if PROF else WS_USED)
E(f"buffer_load_dword v241, v7, {WSR}, s{sT2} offen sc1")
if PROF: E(f"v_writelane_b32 v{V_STAMP}, s{sST}, 60")
E(f"v_mov_b32 v{cA}, 0")
E(f"v_lshlrev_b32 v{cL16}, 4, v1")
E(f"s_cmp_ge_u32 s{sJ}, 16")
E("s_cbranch_scc1 L_D_init")

E(f"s_lshl_b32 s{sT0}, s{sG}, 24")
E(f"s_lshl_b32 s{sT1}, s{sJ}, 16")
E(f"s_add_u32 s{sT0}, s{sT0}, s{sT1}")
E(f"s_add_u32 s{sT0}, s{sT0}, {61440*256}")
srd(R_A, sK, f"s{sT0}", 65536)
srd(R_B, sV, f"s{sT0}", 65536)
E("v_xor_b32 v4, v2, v3")
E("v_lshlrev_b32 v4, 4, v4")
E("v_lshl_add_u32 v4, v3, 8, v4")
E("v_lshlrev_b32 v5, 1, v3")
E("v_xor_b32 v5, v2, v5")
E("v_lshlrev_b32 v5, 4, v5")
E("v_lshl_add_u32 v5, v3, 8, v5")
E(f"s_add_u32 s{sC1}, s{sJ}, s{sG}")
E(f"s_cmp_eq_u32 s{sWV}, 4")
E("s_cbranch_scc1 L_A_ctl")
E(f"s_cmp_gt_u32 s{sWV}, 4")
E("s_cbranch_scc1 L_A_help")
E(f"s_lshl_b32 s{sT0}, s{sWV}, 14")
E(f"s_add_u32 s{sT3}, s{sC1}, 16")
L("L_A_kl")
E(f"s_and_b32 s{sT1}, s{sC1}, 15")
E(f"s_and_b32 s{sT2}, s{sT1}, 3")
E(f"s_lshl_b32 s{sT2}, s{sT2}, 6")
E(f"s_lshl_b32 s{sT1}, s{sT1}, 10")
E(f"s_add_u32 s{sT1}, s{sT1}, s{sT0}")
E(f"s_mov_b32 m0, s{sT1}")
E(f"v_xor_b32 v6, s{sT2}, v4")
E(f"s_waitcnt vmcnt({THR-1})")
E(f"buffer_load_dwordx4 v6, s[{R_A}:{R_A+3}], s{sT1} offen{NTK} lds")
E(f"s_add_u32 s{sC1}, s{sC1}, 1")
E(f"s_cmp_lt_u32 s{sC1}, s{sT3}")
E("s_cbranch_scc1 L_A_kl")
E("s_branch L_A_setup")
L("L_A_help")
E(f"s_sub_u32 s{sT0}, s{sWV}, 5")
E(f"s_lshl_b32 s{sC1}, s{sC1}, 2")
E(f"s_mov_b32 s{sT3}, 0")
THV1, NV1 = int(OPT.get("thv1", 0)), int(OPT.get("nv1", 15))
if THV1:
    L("L_A_vl1")
    E(f"s_add_u32 s{sT1}, s{sC1}, s{sT0}")
    E(f"s_and_b32 s{sT1}, s{sT1}, 63")
    E(f"s_and_b32 s{sT2}, s{sT1}, 1")
    E(f"s_lshl_b32 s{sT2}, s{sT2}, 7")
    E(f"s_lshl_b32 s{sT1}, s{sT1}, 10")
    E(f"s_add_u32 m0, s{sT1}, {V_LDS}")
    E(f"v_xor_b32 v6, s{sT2}, v5")
    E(f"s_waitcnt vmcnt({THV1-1})")
    E(f"buffer_load_dwordx4 v6, s[{R_B}:{R_B+3}], s{sT1} offen{NTV} lds")
    E(f"s_add_u32 s{sT0}, s{sT0}, 3")
    E(f"s_cmp_lt_u32 s{sT0}, {NV1}")
    E("s_cbranch_scc1 L_A_vl1")
L("L_A_vl")
E(f"s_add_u32 s{sT1}, s{sC1}, s{sT0}")
E(f"s_and_b32 s{sT1}, s{sT1}, 63")
E(f"s_and_b32 s{sT2}, s{sT1}, 1")
E(f"s_lshl_b32 s{sT2}, s{sT2}, 7")
E(f"s_lshl_b32 s{sT1}, s{sT1}, 10")
E(f"s_add_u32 m0, s{sT1}, {V_LDS}")
E(f"v_xor_b32 v6, s{sT2}, v5")
E(f"s_waitcnt vmcnt({THV-1})")
E(f"buffer_load_dwordx4 v6, s[{R_B}:{R_B+3}], s{sT1} offen{NTV} lds")
E(f"s_add_u32 s{sT0}, s{sT0}, 3")
E(f"s_cmp_lt_u32 s{sT0}, 64")
E("s_cbranch_scc1 L_A_vl")
stamp(1)
E(f"s_cmp_eq_u32 s{sWV}, 5")
E("s_cbranch_scc0 L_A_pf2")
srd(R_C, sW1, None, 1835008)
E(f"s_mul_i32 s{sT1}, s{sJ}, {32*3584}")
E(f"s_mul_i32 s{sT2}, s{sG}, 448")
E(f"s_add_u32 s{sT1}, s{sT1}, s{sT2}")
E(f"s_add_u32 s{sT2}, s{sT1}, {16*3584}")
E("v_mul_u32_u24 v6, 3584, v2")
E("v_mul_u32_u24 v7, 0x94, v3")
E("v_add_u32 v6, v6, v7")
E("s_branch L_A_pf")
L("L_A_pf2")
E(f"s_mul_i32 s{sT1}, s{sG}, {224*1024}")
E(f"s_mul_i32 s{sT2}, s{sJ}, 14336")
E(f"s_add_u32 s{sT1}, s{sT1}, s{sT2}")
E(f"s_cmp_eq_u32 s{sWV}, 6")
E(f"s_cselect_b32 s{sT3}, 14336, 0")
srd(R_C, sW2, f"s{sT1}", f"s{sT3}")
E(f"s_mov_b32 s{sT1}, 0")
E(f"s_mov_b32 s{sT2}, 8192")
E("v_lshlrev_b32 v6, 7, v1")
L("L_A_pf")
E(f"buffer_load_dword v240, v6, s[{R_C}:{R_C+3}], s{sT1} offen{NTT}")
E(f"buffer_load_dword v240, v6, s[{R_C}:{R_C+3}], s{sT2} offen{NTT}")
E("s_barrier")
E("s_waitcnt vmcnt(2)")
stamp(2)
ampx("xv", 5)
E("s_barrier")
stamp_flush(5, 2)
E("s_endpgm")
sec("a")
L("L_A_setup")
stamp(1)
KF, VF, QF, SC, PB, OD, OUTV, PF, STT = 16, 80, 144, 160, 176, 144, 176, 184, 216
T = 224
E("v_xor_b32 v4, v2, v3")
E("v_lshlrev_b32 v4, 4, v4")
E("v_lshl_add_u32 v4, v2, 8, v4")
E(f"v_add_u32 v4, s{sT0}, v4")
E("v_xor_b32 v5, 64, v4")
E("v_xor_b32 v6, 0x80, v4")
E("v_xor_b32 v7, 0xc0, v4")
E("v_and_b32 v15, 3, v2")
E("v_lshlrev_b32 v8, 8, v15")
E("v_lshl_add_u32 v8, v3, 4, v8")
E(f"v_add_u32 v8, {QS_LDS}, v8")
E("v_lshlrev_b32 v10, 4, v1")
E(f"v_add_u32 v10, {PX_LDS}, v10")
E(f"s_lshl_b32 s{sT1}, s{sWV}, 11")
E(f"v_add_u32 v9, s{sT1}, v10")
E("v_lshlrev_b32 v12, 5, v2")
E(f"v_add_u32 v12, {SX_LDS}, v12")
E(f"s_lshl_b32 s{sT1}, s{sWV}, 3")
E(f"v_add_u32 v11, s{sT1}, v12")
E("v_lshlrev_b32 v13, 12, v15")
E("v_lshl_add_u32 v13, v3, 3, v13")
E("v_bfe_u32 v14, v2, 2, 1")
E("v_lshl_add_u32 v13, v14, 5, v13")
E(f"s_lshl_b32 s{sT1}, s{sWV}, 6")
E(f"v_add_u32 v13, s{sT1}, v13")
E(f"v_cmp_eq_u32 s[{sMC_f}:{sMC_f+1}], 1, v14")
E(f"v_lshlrev_b32 v14, 7, v15")
E(f"v_lshrrev_b32 v{T}, 2, v2")
E(f"v_lshl_add_u32 v{T}, v3, 2, v{T}")
E(f"v_and_b32 v{T+1}, 7, v{T}")
E(f"s_lshl_b32 s{sT1}, s{sWV}, 1")
E(f"v_xor_b32 v{T+1}, s{sT1}, v{T+1}")
E(f"v_lshlrev_b32 v{T}, 8, v{T}")
E(f"v_lshl_add_u32 v{T}, v{T+1}, 5, v{T}")
E(f"v_lshl_add_u32 v{T}, v15, 3, v{T}")
E(f"v_add_u32 v{T}, {V_LDS}, v{T}")
E(f"v_xor_b32 v{T+1}, 32, v{T}")
E(f"s_lshl_b32 s{sT1}, s{sJ}, 8")
E(f"s_add_u32 s{sPoff}, s{sPoff}, s{sT1}")
E(f"s_and_b32 s{sT1}, s{sJ}, 3")
E(f"s_lshl_b32 s{sT1}, s{sT1}, 5")
E(f"s_lshr_b32 s{sT2}, s{sJ}, 2")
E(f"s_lshl_b32 s{sT2}, s{sT2}, 3")
E(f"s_add_u32 s{sT1}, s{sT1}, s{sT2}")
E(f"s_add_u32 s{sPub}, s{sT1}, {W_ST}")
E(f"s_mov_b32 s{sC1}, {f32((128**-0.5)*math.log2(math.e))}")
E(f"s_mov_b32 s{sFFFE}, 0xfffefffe")
E(f"v_mov_b32 v{T+2}, {FL_LDS}")
E(f"v_mov_b32 v{T+8}, s{sC1}")
E(f"s_cmp_eq_u32 s{sWV}, 0")
E(f"s_cselect_b32 s{sC2}, 15, 0")
E(f"s_mov_b32 s{sMB_f+1}, 0")
E(f"s_mov_b32 s{sMB_s+1}, 0")
E("s_waitcnt vmcnt(0)")
stamp(2)
ampx("xk", 0)
for e in range(4):
    for s in range(4):
        E(f"ds_read_b128 {vr(KF+(e*4+s)*4,4)}, v{4+s} offset:{4096*e}")
L("L_A_b1")
mark("a")
E("s_barrier")
for s in range(4):
    E(f"ds_read_b128 {vr(QF+4*s,4)}, v8 offset:{64*s}")
stamp(3, True)
def qk(e, s):
    c = "0" if s == 0 else vr(SC+4*e,4)
    E(f"v_mfma_f32_16x16x32_bf16 {vr(SC+4*e,4)}, {vr(KF+(e*4+s)*4,4)}, {vr(QF+4*s,4)}, {c}")
for s in range(4):
    E(f"s_waitcnt lgkmcnt({3-s})")
    qk(0, s); qk(1, s)
for s in range(4):
    qk(2, s); qk(3, s)
E(f"v_max3_f32 v{T+4}, v{SC}, v{SC+1}, v{SC+2}")
E(f"v_max3_f32 v{T+5}, v{SC+3}, v{SC+4}, v{SC+5}")
E(f"v_max3_f32 v{T+4}, v{T+4}, v{SC+6}, v{SC+7}")
E("s_nop 3")
E(f"v_max3_f32 v{T+5}, v{T+5}, v{SC+8}, v{SC+9}")
E(f"v_max3_f32 v{T+4}, v{T+4}, v{SC+10}, v{SC+11}")
E(f"v_max3_f32 v{T+5}, v{T+5}, v{SC+12}, v{SC+13}")
E(f"v_max3_f32 v{T+4}, v{T+4}, v{SC+14}, v{SC+15}")
E(f"v_max_f32 v{T+4}, v{T+4}, v{T+5}")
E(f"v_mov_b32 v{T+5}, v{T+4}")
E("s_nop 1")
E(f"v_permlane16_swap_b32 v{T+4}, v{T+5}")
E(f"v_max_f32 v{T+4}, v{T+4}, v{T+5}")
E(f"v_mov_b32 v{T+5}, v{T+4}")
E("s_nop 1")
E(f"v_permlane32_swap_b32 v{T+4}, v{T+5}")
E(f"v_max_f32 v{T+4}, v{T+4}, v{T+5}")
E(f"v_mul_f32 v{T+6}, s{sC1}, v{T+4}")
for i in range(8):
    E(f"v_pk_fma_f32 {vr(SC+2*i,2)}, {vr(SC+2*i,2)}, {vr(T+8,2)}, {vr(T+6,2)} op_sel_hi:[1,0,0] neg_lo:[0,0,1] neg_hi:[0,0,1]")
for i in range(8):
    E(f"v_exp_f32 v{SC+i}, v{SC+i}")
E(f"v_exp_f32 v{SC+8}, v{SC+8}")
for i in range(4):
    E(f"v_cvt_pk_bf16_f32 v{PB+i}, v{SC+2*i}, v{SC+2*i+1}")
E(f"ds_write_b128 v9, {vr(PB,4)}")
for i in range(9, 16):
    E(f"v_exp_f32 v{SC+i}, v{SC+i}")
E(f"v_add_f32 v{T+7}, v{SC}, v{SC+1}")
for i in range(4, 8):
    E(f"v_cvt_pk_bf16_f32 v{PB+i}, v{SC+2*i}, v{SC+2*i+1}")
E(f"ds_write_b128 v9, {vr(PB+4,4)} offset:1024")
for i in range(4):
    E(f"v_pk_add_f32 {vr(SC+2+ 0,2) if False else vr(SC+4*i,2)}, {vr(SC+4*i,2)}, {vr(SC+4*i+2,2)}")
E(f"v_pk_add_f32 {vr(SC,2)}, {vr(SC,2)}, {vr(SC+4,2)}")
E(f"v_pk_add_f32 {vr(SC+8,2)}, {vr(SC+8,2)}, {vr(SC+12,2)}")
E(f"v_pk_add_f32 {vr(SC,2)}, {vr(SC,2)}, {vr(SC+8,2)}")
E(f"v_add_f32 v{T+7}, v{SC}, v{SC+1}")
E(f"v_mov_b32 v{T+5}, v{T+7}")
E("s_nop 1")
E(f"v_permlane16_swap_b32 v{T+7}, v{T+5}")
E(f"v_add_f32 v{T+7}, v{T+7}, v{T+5}")
E(f"v_mov_b32 v{T+5}, v{T+7}")
E("s_nop 1")
E(f"v_permlane32_swap_b32 v{T+7}, v{T+5}")
E(f"v_add_f32 v{T+7}, v{T+7}, v{T+5}")
E(f"ds_write_b64 v11, {vr(T+6,2)}")
stamp(4, True)
mark("a")
E("s_waitcnt lgkmcnt(0)")
E("s_barrier")
E(f"ds_read_b32 v{T+3}, v{T+2}")
for b in range(2):
    E(f"ds_read_b128 {vr(STT+4*b,4)}, v12 offset:{16*b}")
for b in range(8):
    E(f"ds_read_b128 {vr(PF+4*b,4)}, v10 offset:{1024*b}")
stamp(5, True)
E(f"s_cmp_lg_u32 s{sLAY}, 0")
E("s_cbranch_scc1 L_A_havev")
for tp in range(2):
    for b in range(8):
        for e in range(2):
            E(f"ds_read_b64_tr_b16 {vr(VF+(tp*8+b)*4+2*e,2)}, v{T+tp} offset:{(32*b+16*e)*256}")
E("s_waitcnt lgkmcnt(0)")
L("L_A_havev")
E("s_waitcnt lgkmcnt(8)")
F = STT
va = [f"v_max3_f32 v{T+4}, v{STT}, v{STT+2}, v{STT+4}", f"v_max_f32 v{T+6}, v{T+4}, v{STT+6}"]
va += [f"v_sub_f32 v{F+2*b}, v{STT+2*b}, v{T+6}" for b in range(4)]
va += [f"v_exp_f32 v{F+2*b}, v{F+2*b}" for b in range(4)]
va += [f"v_mul_f32 v{T+7}, v{F}, v{STT+1}"] + [f"v_fmac_f32 v{T+7}, v{F+2*b}, v{STT+2*b+1}" for b in range(1, 4)]
E(f"v_readfirstlane_b32 s{sMODE}, v{T+3}")
for x in va[:2]: E(x)
sa = [f"s_cmp_eq_u32 s{sMODE}, 1", f"s_cselect_b32 s{sMB_f}, s{sC2}, 0", f"s_cselect_b32 s{sMB_s}, 0, s{sC2}",
      f"s_cselect_b32 s{sMA_f}, 0x00ff00ff, 0", f"s_cselect_b32 s{sMA_f+1}, 0x00ff00ff, 0", f"s_cselect_b32 s{sMA_s}, 0, 0x00ff00ff",
      f"s_cselect_b32 s{sMA_s+1}, 0, 0x00ff00ff", f"s_cselect_b32 s{sT2}, 0, {ALT}", f"s_add_u32 s{sPe}, s{sPoff}, s{sT2}",
      f"s_add_u32 s{sT2}, s{sLOC}, s{sT2}", f"s_add_u32 s{sT2}, s{sT2}, s{sPub}"]
k = 2
for u in range(8):
    E(f"s_waitcnt lgkmcnt({7-u})")
    for tp in range(2):
        d = vr(OD+(tp*4+u//2)*4,4)
        E(f"v_mfma_f32_16x16x32_bf16 {d}, {vr(VF+(tp*8+u)*4,4)}, {vr(PF+4*u,4)}, {'0' if u % 2 == 0 else d}")
        if k < len(va): E(va[k]); k += 1
        if sa and u >= 1: E(sa.pop(0)); E(sa.pop(0)) if sa else None
    if u == 5:
        assert k == len(va)
        pub2("buffer_store_dwordx2", vr(T+6,2), 14, sT2, sMB_f, sMB_s)
def cb(b):
    for tp in range(2):
        for h in range(2):
            o = vr(OUTV+4*tp+2*h,2)
            if b == 0: E(f"v_pk_mul_f32 {o}, {vr(OD+tp*16+2*h,2)}, {vr(F,2)} op_sel_hi:[1,0]")
            else: E(f"v_pk_fma_f32 {o}, {vr(OD+(tp*4+b)*4+2*h,2)}, {vr(F+2*b,2)}, {o} op_sel_hi:[1,0,1]")
for b in range(4): cb(b)
for r in range(4):
    E(f"v_cndmask_b32 v{OUTV+r}, v{OUTV+r}, v{OUTV+4+r}, s[{sMC_f}:{sMC_f+1}]")
E(f"v_cvt_pk_bf16_f32 v{OUTV}, v{OUTV}, v{OUTV+1}")
E(f"v_cvt_pk_bf16_f32 v{OUTV+1}, v{OUTV+2}, v{OUTV+3}")
E(f"v_pk_min_u16 v{OUTV}, v{OUTV}, s{sFFFE}")
E(f"v_pk_min_u16 v{OUTV+1}, v{OUTV+1}, s{sFFFE}")
pub2("buffer_store_dwordx2", vr(OUTV,2), 13, sPe, sMA_f, sMA_s)
stamp(6, True)
ampx("xp", 0)
E(f"s_add_u32 s{sPoff}, s{sPoff}, {LS}")
E(f"s_add_u32 s{sLOC}, s{sLOC}, {LS}")
E(f"s_add_u32 s{sLAY}, s{sLAY}, 1")
E(f"s_cmp_lt_u32 s{sLAY}, 2")
E("s_cbranch_scc1 L_A_b1")
stamp_flush(0, 0, (int(OPT.get("dbg", 0)), 36, [60, 2, 3, 5, 6, 19, 22]))
E("s_endpgm")
sec("actl")
L("L_A_ctl")
warm("a")
E("s_waitcnt vmcnt(0)")
E(f"v_readfirstlane_b32 s{sTAG}, v241")
E("s_nop 3")
E(f"s_add_u32 s{sTAG}, s{sTAG}, 1")
ampx("xe", 4)
xc_publish()
first_gather("aq0", True, None)
stamp(2)
ampx("xq", 4)
E("s_waitcnt lgkmcnt(0)")
E("s_barrier")
E(f"s_cmp_eq_u32 s{sMODE}, 1")
E(f"s_cselect_b32 s{sT2}, 0, {ALT}")
E(f"s_add_u32 s{sLe}, s{sLOC}, s{sT2}")
E(f"s_add_u32 s{sLe}, s{sLe}, {LS}")
E(f"v_add_u32 v{cT+2}, {QS_LDS}, v{cL16}")
E("s_barrier")
E("s_waitcnt vmcnt(0)")
arm(cG, 4)
gather1("aq", cG, cL16, sLe, W_Q, cT)
E(f"ds_write_b128 v{cT+2}, {vr(cG,4)}")
stamp(18)
E("s_waitcnt lgkmcnt(0)")
E("s_barrier")
stamp_flush(4, 1)
E("s_endpgm")

vL16, aXIO, aTA, aTB, aIN, aST, aP16, aPY, vONE, aOS, aXS = 4, 5, 6, 7, 8, 9, 10, 11, 12, 13, 14
SEL0, ONESB, XR, XN, XB, vT = 16, 24, 28, 36, 44, 48
TT = 49
vB1, vCS, aGX, vINV, vVAL = 15, 0, 249, 250, 252
GB, WA, ACC, WB = 64, 96, 160, 192
vST, CA, MK, vFLG = 224, 232, 236, 248
NACC = 8

retry_blocks = []
def gather_X(tag, soff, role, hook=None):
    def loads():
        for i in range(8):
            so = soff if i < 4 else sT0
            E(f"buffer_load_dwordx4 {vr(GB+4*i,4)}, v{aGX}, {WSR}, s{so} offen offset:{256*(i%4)} sc1")
    def sums(wait):
        for i in range(8):
            if wait is not None: E(f"s_waitcnt vmcnt({wait + 7 - i})")
            e, w = (i % 4) // 2, i % 2
            c = vr(XR+4*e,4) if i in (0, 2) else vr(XN+4*e,4)
            E(f"v_mfma_f32_16x16x32_bf16 {vr(XN+4*e,4)}, {vr(SEL0+4*w,4)}, {vr(GB+4*i,4)}, {c}")
    E(f"s_add_u32 s{sT0}, s{soff}, 4096")
    if ACK: E("s_waitcnt vmcnt(0)")
    elif GD: E(f"s_sleep {GD}")
    if PROF == 2: stamp(9, True)
    for _ in range(GP - 1):
        loads()
        if GSL: E(f"s_sleep {GSL}")
    E(f"s_branch L_{tag}_again")
    L(f"L_{tag}_nan")
    E(f"s_sub_u32 s{sSPIN}, s{sSPIN}, 1")
    E("s_cbranch_scc1 L_exit")
    E(f"s_and_b32 s{sT1}, s{sSPIN}, 15")
    E(f"s_cbranch_scc0 L_{tag}_retry")
    if GSL: E(f"s_sleep {GSL}")
    L(f"L_{tag}_again")
    loads()
    if hook: hook()
    mark(role)
    sums(8 * (GP - 1))
    E("s_nop 6")
    E(f"v_cmp_u_f32 vcc, v{XN}, v{XN}")
    E(f"v_cmp_u_f32 s[{sS1}:{sS1+1}], v{XN+4}, v{XN+4}")
    for d in range(4):
        E(f"v_cvt_pk_bf16_f32 v{XB+d}, v{XN+2*d}, v{XN+2*d+1}")
    E(f"s_or_b64 vcc, vcc, s[{sS1}:{sS1+1}]")
    E(f"s_cbranch_vccnz L_{tag}_nan")
    L(f"L_{tag}_ok")
    if PROF == 2:
        stamp(11, True)
        E(f"s_mov_b32 s{sST}, s{sSPIN}")
    def blk():
        L(f"L_{tag}_retry")
        for i in range(16): E(f"v_pk_max_u16 v{ACC+i}, v{GB+2*i}, v{GB+2*i+1}")
        for i in range(8): E(f"v_pk_max_u16 v{ACC+i}, v{ACC+2*i}, v{ACC+2*i+1}")
        for i in range(4): E(f"v_pk_max_u16 v{ACC+i}, v{ACC+2*i}, v{ACC+2*i+1}")
        chk_bf16(ACC, TT)
        E(f"s_cbranch_vccnz L_{tag}_again")
        sums(None)
        E("s_nop 7")
        for d in range(4):
            E(f"v_cvt_pk_bf16_f32 v{XB+d}, v{XN+2*d}, v{XN+2*d+1}")
        E(f"s_branch L_{tag}_ok")
    retry_blocks.append(blk)

def relay_X(tag, soff, pre):
    E(f"v_mov_b32 v{vT}, 0")
    E(f"s_cmp_lg_u32 s{sWV}, 0")
    E(f"s_cbranch_scc1 L_{tag}_other")
    pre()
    gather_X(tag, soff, "d2", lambda: w1_setup("a"))
    E(f"ds_write_b128 v{aXS}, {vr(XB,4)}")
    post = f"L_{tag}_join"
    E("s_waitcnt lgkmcnt(0)")
    E("s_barrier")
    E(f"s_branch {post}")
    L(f"L_{tag}_other")
    w1_setup("b")
    E("s_waitcnt vmcnt(0)")
    E("s_barrier")
    E(f"ds_read_b128 {vr(XB,4)}, v{aXS}")
    E("s_waitcnt lgkmcnt(0)")
    L(post)

def unpack_resid(src):
    for d in range(4):
        E(f"v_lshlrev_b32 v{XR+2*d}, 16, v{src+d}")
        E(f"v_and_b32 v{XR+2*d+1}, 0xffff0000, v{src+d}")

def matvec(nsteps, A, W, fillers, rows=None, per=PER, waits=False):
    if rows is None:
        rows = [(1 << G, 0xf, list(range(4*G, min(4*G+4, nsteps)))) for G in range((nsteps + 3) // 4)]
    acc = lambda s_: ACC + 4*(s_ % NACC)
    ext = []
    for (rm, bm, st_) in rows:
        dp = f"quad_perm:[0,1,2,3] row_mask:{hex(rm)} bank_mask:{hex(bm)}"
        a = lambda s_: f"v{acc(s_) + s_ % 4}"
        ext.append((st_[1], f"v_add_f32_dpp v{vT}, {a(st_[0])}, {a(st_[1])} {dp}"))
        for s_ in st_[2:]:
            ext.append((s_, f"v_add_f32_dpp v{vT}, {a(s_)}, v{vT} {dp}"))
    ext.sort(key=lambda e: e[0])
    st = dict(pos=0, lastT=-1)
    pm = {}
    def put(x, n=1):
        E(x); st["pos"] += n
    def need(e):
        if e[0] not in pm: return 99
        return max(pm[e[0]] + 9 - st["pos"], st["lastT"] + 3 - st["pos"], 0)
    fl = list(fillers)
    for s_ in range(nsteps):
        while ext and ext[0][0] <= s_ - NACC + 1 and s_ >= NACC:
            n = need(ext[0])
            if n: put(f"s_nop {n-1}", n)
            st["lastT"] = st["pos"]; put(ext.pop(0)[1])
        if waits and s_ >= 8 or waits and s_ == 0: put(f"s_waitcnt lgkmcnt({min(15, 30-2*s_)})")
        pm[s_] = st["pos"]
        put(f"v_mfma_f32_16x16x32_bf16 {vr(acc(s_),4)}, {vr(A,4)}, {vr(W+4*s_,4)}, 0")
        for _ in range(per):
            if ext and need(ext[0]) == 0:
                st["lastT"] = st["pos"]; put(ext.pop(0)[1])
            elif fl:
                put(fl.pop(0))
    while ext or fl:
        if ext and need(ext[0]) == 0:
            st["lastT"] = st["pos"]; put(ext.pop(0)[1])
        elif fl:
            put(fl.pop(0))
        else:
            n = need(ext[0]); put(f"s_nop {n-1}", n)

def stats_fillers():
    f = []
    for d in range(4):
        f.append(f"v_lshlrev_b32 v{XR+2*d}, 16, v{XB+d}")
        f.append(f"v_and_b32 v{XR+2*d+1}, 0xffff0000, v{XB+d}")
        if d == 0: f.append(f"v_readfirstlane_b32 s{sPIV}, v{XR}")
    D = XN
    for i in range(4):
        f.append(f"v_pk_add_f32 {vr(D+2*i,2)}, {vr(XR+2*i,2)}, s[{sPIV}:{sPIV+1}] op_sel_hi:[1,0] neg_lo:[0,1] neg_hi:[0,1]")
    a, b = TT+1, TT+3
    assert a % 2 == 0
    f.append(f"v_pk_add_f32 {vr(a,2)}, {vr(D,2)}, {vr(D+2,2)}")
    f.append(f"v_pk_mul_f32 {vr(b,2)}, {vr(D,2)}, {vr(D,2)}")
    for i in range(1, 4):
        f.append(f"v_pk_fma_f32 {vr(b,2)}, {vr(D+2*i,2)}, {vr(D+2*i,2)}, {vr(b,2)}")
        if i > 1: f.append(f"v_pk_add_f32 {vr(a,2)}, {vr(a,2)}, {vr(D+2*i,2)}")
    f.append(f"v_add_f32 v{b}, v{b}, v{b+1}")
    f.append(f"v_add_f32 v{a}, v{a}, v{a+1}")
    f.append("s_nop 0")
    for dp in ("quad_perm:[1,0,3,2] row_mask:0xf", "quad_perm:[2,3,0,1] row_mask:0xf", "row_half_mirror row_mask:0xf",
               "row_mirror row_mask:0xf", "row_bcast:15 row_mask:0xa", "row_bcast:31 row_mask:0xc"):
        f.append(f"v_add_f32_dpp v{b}, v{b}, v{b} {dp} bank_mask:0xf")
        f.append(f"v_add_f32_dpp v{a}, v{a}, v{a} {dp} bank_mask:0xf")
        f.append("s_nop 0")
    f.append(f"v_readlane_b32 s{sS2}, v{b}, 63")
    f.append(f"v_readlane_b32 s{sS1}, v{a}, 63")
    f.append(f"v_fma_f32 v{TT+3}, s{sS2}, v{vINV}, v{vINV+1}" if False else "s_nop 0")
    f.append(f"v_fma_f32 v{TT+3}, s{sS2}, v{vINV}, v{vINV+1}")
    f.append(f"v_mul_f32 v{TT+2}, s{sS1}, v{vINV}")
    f.append(f"v_fma_f32 v{TT+3}, -v{TT+2}, v{TT+2}, v{TT+3}")
    f.append(f"v_max_f32 v{TT+3}, v{vINV+1}, v{TT+3}")
    f.append(f"v_rsq_f32 v{TT+3}, v{TT+3}")
    f.append(f"v_add_f32 v{TT+2}, s{sPIV}, v{TT+2}")
    return f

def xgroup_sum(fold8=False, plain=False):
    if fold8: E(f"v_and_b32 v{vT}, v{vVAL}, v{vT}")
    E(f"v_mov_b32 v{TT+5}, v{vT}")
    E("s_nop 1")
    E(f"v_permlane16_swap_b32 v{vT}, v{TT+5}")
    E(f"v_add_f32 v{vT}, v{vT}, v{TT+5}")
    E(f"v_mov_b32 v{TT+5}, v{vT}")
    E("s_nop 1")
    E(f"v_permlane32_swap_b32 v{vT}, v{TT+5}")
    E(f"v_add_f32 v{vT}, v{vT}, v{TT+5}")
    if fold8:
        E("s_nop 1")
        E(f"v_add_f32_dpp v{vT}, v{vT}, v{vT} row_ror:8 row_mask:0xf bank_mask:0xf")
    if plain: return
    E(f"v_fma_f32 v{vT}, -v{TT+2}, v{vCS}, v{vT}")
    E(f"v_mul_f32 v{vT}, v{vT}, v{TT+3}")

def y_publish():
    Y = TT + 3
    assert Y % 4 == 0
    E("s_nop 1")
    E(f"v_mfma_f32_16x16x4_f32 {vr(Y,4)}, v{vT}, v{vONE}, 0")
    E("s_nop 9")
    E(f"v_cvt_pk_bf16_f32 v{Y+4}, v{Y}, v{Y+1}")
    E(f"v_cvt_pk_bf16_f32 v{Y+5}, v{Y+2}, v{Y+3}")
    E(f"v_pk_min_u16 v{Y+4}, v{Y+4}, s{sFFFE}")
    E(f"v_pk_min_u16 v{Y+5}, v{Y+5}, s{sFFFE}")
    E(f"v_mov_b32 v{Y+6}, v{Y+4}")
    E(f"v_mov_b32 v{Y+7}, v{Y+5}")
    E("s_nop 0")
    E(f"v_permlane16_swap_b32 v{Y+4}, v{Y+6}")
    E(f"v_permlane16_swap_b32 v{Y+5}, v{Y+7}")
    E("s_mov_b32 exec_lo, 1")
    E("s_mov_b32 exec_hi, 1")
    E(f"buffer_store_dwordx4 {vr(Y+4,4)}, v{aPY}, {WSR}, s{sPubG} offen sc1")
    E("s_mov_b64 exec, -1")

def pub_resid(off):
    for d in range(4): E(f"v_pk_min_u16 v{TT+7+d}, v{XB+d}, s{sFFFE}")
    pub2("buffer_store_dwordx4", vr(TT+7,4), vL16, sLOC, sMB_f, sMB_s, off)

def read_mode(lo_a):
    E(f"v_mov_b32 v{TT}, {FL_LDS}")
    E(f"ds_read_b32 v{TT+1}, v{TT}")
    E("s_waitcnt lgkmcnt(0)")
    E(f"v_readfirstlane_b32 s{sMODE}, v{TT+1}")
    E(f"s_cmp_eq_u32 s{sPJ}, 0")
    E(f"s_cselect_b32 s{sT1}, -1, 0")
    E("s_nop 2")
    E(f"s_cmp_eq_u32 s{sMODE}, 1")
    masks(sMA_f, sMA_s, lo_a, "0")
    masks(sMB_f, sMB_s, f"s{sT1}", f"s{sT1}")
    E(f"s_cselect_b32 s{sT1}, 0, {ALT}")
    for s_ in (sLOC, sPoff, sPub):
        E(f"s_add_u32 s{s_}, s{s_}, s{sT1}")

sec("entry")
L("L_D_init")
ROLE[0] = "d"
E(f"s_and_b32 s{sC}, s{sJ}, 7")
E(f"s_lshl_b32 s{sPJ}, s{sC}, 2")
E(f"s_add_u32 s{sPJ}, s{sPJ}, s{sWV}")
E("v_lshrrev_b32 v242, 3, v1")
E("v_and_b32 v243, 7, v1")
def wo_issue():
    E(f"s_lshl_b32 s{sT0}, s{sG}, 19")
    E(f"s_lshl_b32 s{sT1}, s{sC}, 7")
    E(f"s_add_u32 s{sT0}, s{sT0}, s{sT1}")
    E(f"s_sub_u32 s{sT3}, {4194304}, s{sT0}")
    srd(R_A, sWO, f"s{sT0}", f"s{sT3}")
    E("v_and_b32 v245, 2, v242")
    E("v_xor_b32 v245, v245, v243")
    E(f"s_and_b32 s{sT1}, s{sWV}, 1")
    E(f"s_lshl_b32 s{sT1}, s{sT1}, 2")
    E(f"v_xor_b32 v245, s{sT1}, v245")
    E("v_lshlrev_b32 v244, 10, v242")
    E("v_lshl_add_u32 v244, v245, 4, v244")
    E(f"s_lshl_b32 s{sT0}, s{sWV}, 14")
    E(f"s_mov_b32 m0, s{sT0}")
    E(f"s_lshl_b32 s{sT1}, s{sWV}, 17")
    if LATE0 == 1: E("s_waitcnt vmcnt(0)")
    if LATE0 == 2: E("s_barrier")
    E(f"s_add_u32 s{sT2}, s{sT1}, {16*8192}")
    L("L_D2_wol")
    E(f"buffer_load_dwordx4 v244, s[{R_A}:{R_A+3}], s{sT1} offen{NTW} lds")
    E("s_add_u32 m0, m0, 1024")
    E(f"s_add_u32 s{sT1}, s{sT1}, 8192")
    E(f"s_cmp_lt_u32 s{sT1}, s{sT2}")
    E("s_cbranch_scc1 L_D2_wol")
if LATE0 == 0:
    E(f"s_cmp_lt_u32 s{sJ}, 24")
    E("s_cbranch_scc1 L_D_const")
    E(f"s_cmp_ge_u32 s{sWV}, 4")
    E("s_cbranch_scc1 L_D_const")
    wo_issue()
sec("dinit")
L("L_D_const")
srd(R_B, sX, None, 1024)
E(f"v_lshrrev_b32 v{TT}, 1, v3")
E(f"v_and_b32 v{TT+1}, 1, v3")
E(f"v_lshlrev_b32 v{aXIO}, 8, v{TT}")
E(f"v_lshl_add_u32 v{aXIO}, v2, 4, v{aXIO}")
E(f"v_lshl_add_u32 v{aXIO}, v{TT+1}, 3, v{aXIO}")
E(f"buffer_load_dwordx2 {vr(XB,2)}, v{aXIO}, s[{R_B}:{R_B+3}], 0 offen")
E(f"buffer_load_dwordx2 {vr(XB+2,2)}, v{aXIO}, s[{R_B}:{R_B+3}], 0 offen offset:512")
E(f"v_lshlrev_b32 v{vL16}, 4, v1")
E(f"v_lshrrev_b32 v{TT+2}, 2, v2")
E(f"v_and_b32 v{TT+3}, 3, v2")
E(f"v_lshl_add_u32 v{TT+4}, v{TT}, 7, v{TT+2}")
E(f"v_lshl_add_u32 v{TT+4}, v{TT+1}, 2, v{TT+4}")
E(f"v_lshlrev_b32 v{aP16}, 1, v2")
E(f"v_lshrrev_b32 v{aPY}, 5, v1")
E(f"v_lshlrev_b32 v{aPY}, 4, v{aPY}")
E(f"v_add_u32 v{aXS}, {XS_LDS}, v{vL16}")
E(f"v_mov_b32 v{vONE}, 1.0")
for d in range(4): E(f"v_mov_b32 v{ONESB+d}, 0x3f803f80")
E(f"v_and_b32 v{TT+5}, 1, v2")
E(f"v_lshlrev_b32 v{TT+5}, 4, v{TT+5}")
E(f"v_mov_b32 v{TT+6}, 0x3f80")
E(f"v_lshlrev_b32 v{TT+6}, v{TT+5}, v{TT+6}")
E(f"v_lshrrev_b32 v{TT+7}, 1, v2")
E(f"v_lshlrev_b32 v{aGX}, 10, v3")
E(f"v_lshl_add_u32 v{aGX}, v2, 4, v{aGX}")
for d in range(8):
    E(f"v_cmp_eq_u32 vcc, {d}, v{TT+7}")
    E("s_nop 1")
    E(f"v_cndmask_b32 v{SEL0+d}, 0, v{TT+6}, vcc")
E(f"s_mov_b32 s{sFFFE}, 0xfffefffe")
E(f"v_mov_b32 v{vINV}, {f32(1/512)}")
E(f"v_mov_b32 v{vINV+1}, {f32(1e-5)}")
E(f"s_mov_b32 s{sC3}, {f32(-math.log2(math.e))}")
E(f"s_lshl_b32 s{sT1}, s{sPJ}, 5")
E(f"s_lshl_b32 s{sPubG}, s{sG}, 10")
E(f"s_add_u32 s{sPubG}, s{sPubG}, s{sT1}")
E(f"s_lshl_b32 s{sT2}, s{sWV}, 5")
E(f"s_cmp_ge_u32 s{sJ}, 24")
E("s_cbranch_scc1 L_D2_init")

def ctl_head():
    E("s_waitcnt vmcnt(0)")
    E(f"v_readfirstlane_b32 s{sTAG}, v241")
    for r in range(4): E(f"v_mov_b32 v{cG+r}, -1")
    E(f"s_add_u32 s{sTAG}, s{sTAG}, 1")
def clear_global():
    E(f"s_mov_b32 s{sT1}, {LS}")
    E(f"v_lshrrev_b32 v{cT}, 3, v2")
    E(f"v_mul_lo_u32 v{cT}, v{cT}, s{sT1}")
    E(f"v_lshl_add_u32 v{cT}, v243, 4, v{cT}")
    E(f"v_lshl_add_u32 v{cT}, v3, 13, v{cT}")
    E(f"s_lshl_b32 s{sT1}, s{sG}, 10")
    E(f"s_lshl_b32 s{sT2}, s{sC}, 7")
    E(f"s_add_u32 s{sT1}, s{sT1}, s{sT2}")
    E(f"s_add_u32 s{sT1}, s{sT1}, {W_Y}")
    E("s_mov_b32 exec_hi, 0")
    E(f"buffer_store_dwordx4 {vr(cG,4)}, v{cT}, {WSR}, s{sT1} offen sc1")
    E("s_mov_b64 exec, -1")

E(f"s_lshl_b32 s{sT0}, s{sG}, 10")
E(f"s_lshl_b32 s{sT1}, s{sC}, 7")
E(f"s_add_u32 s{sT0}, s{sT0}, s{sT1}")
E(f"s_sub_u32 s{sT3}, {4194304}, s{sT0}")
srd(R_A, sWQ, f"s{sT0}", f"s{sT3}")
E("v_and_b32 v245, 6, v242")
E("v_xor_b32 v245, v245, v243")
E("v_lshlrev_b32 v244, 13, v242")
E("v_lshl_add_u32 v244, v245, 4, v244")
E(f"s_cmp_ge_u32 s{sWV}, 4")
E("s_cbranch_scc1 L_D1_help")
if TQ: E("s_waitcnt vmcnt(0)")
stamp(1)
E(f"s_lshl_b32 s{sT0}, s{sWV}, 14")
E(f"s_mov_b32 m0, s{sT0}")
E(f"s_lshl_b32 s{sT1}, s{sWV}, 20")
E(f"s_add_u32 s{sT3}, s{sT1}, {16*65536}")
L("L_D1_wql")
E(f"buffer_load_dwordx4 v244, s[{R_A}:{R_A+3}], s{sT1} offen{NTW} lds")
E("s_add_u32 m0, m0, 1024")
E(f"s_add_u32 s{sT1}, s{sT1}, 65536")
E(f"s_cmp_lt_u32 s{sT1}, s{sT3}")
E("s_cbranch_scc1 L_D1_wql")
sec("d1")
E(f"v_bfe_u32 v{TT+5}, v{TT+4}, 1, 2")
E(f"v_xor_b32 v{TT+5}, s{sWV}, v{TT+5}")
E(f"v_lshlrev_b32 v{aTA}, 7, v{TT+4}")
E(f"v_lshl_add_u32 v{aTA}, v{TT+3}, 3, v{aTA}")
E(f"v_lshl_add_u32 v{aTA}, v{TT+5}, 5, v{aTA}")
if not TQ: E("s_waitcnt vmcnt(16)")
E(f"v_lshl_add_u32 v{aTB}, v3, 3, v{TT+2}")
E(f"v_lshlrev_b32 v{aTB}, 7, v{aTB}")
E(f"v_lshl_add_u32 v{aTB}, v{TT+3}, 3, v{aTB}")
E(f"s_add_u32 s{sT2}, s{sT2}, {WB_LDS}")
E(f"v_add_u32 v{aTB}, s{sT2}, v{aTB}")
E(f"v_min_u32 v{aIN}, 6, v2")
E(f"v_lshlrev_b32 v{aIN}, 6, v{aIN}")
E(f"v_lshl_add_u32 v{aIN}, v3, 4, v{aIN}")
E(f"v_readfirstlane_b32 s{sTAG}, v241")
E(f"s_add_u32 s{sPubG}, s{sPubG}, {W_Z}")
E(f"s_mov_b32 s{sZoff}, {W_Z}")
E(f"s_lshl_b32 s{sT1}, s{sPJ}, 5")
E(f"s_add_u32 s{sPub}, s{sLOC}, s{sT1}")
srd(R_B, sOUT, None, 1024)
E(f"s_add_u32 s{sTAG}, s{sTAG}, 1")
for x in stats_fillers(): E(x)
for i in range(8): E(f"v_sub_f32 v{XN+i}, v{XR+i}, v{TT+2}")
for i in range(8): E(f"v_mul_f32 v{XN+i}, v{XN+i}, v{TT+3}")
for d in range(4): E(f"v_cvt_pk_bf16_f32 v{GB+d}, v{XN+2*d}, v{XN+2*d+1}")
E(f"v_mov_b32 v{vT}, 0")
D0 = GB + 12
E(f"v_mov_b32 v{D0+1}, s{sTAG}")
E(f"s_lshl_b32 s{sT1}, s{sPJ}, 6")
E(f"v_lshl_add_u32 v{TT+6}, v2, 2, s{sT1}")
E("s_waitcnt vmcnt(0)")
E("s_barrier")
amp("wq")
stamp(2)
for s in range(16):
    for e in range(2):
        E(f"ds_read_b64_tr_b16 {vr(WA+4*s+2*e,2)}, v{aTA} offset:{32768*e+1024*s}")
matvec(16, GB, WA, [], per=1, waits=True)
xgroup_sum(plain=True)
E("s_nop 1")
E(f"v_mov_b32_dpp v{TT+5}, v{vT} quad_perm:[1,1,3,3] row_mask:0xf bank_mask:0xf")
E(f"v_cvt_pk_bf16_f32 v{D0}, v{vT}, v{TT+5}")
E("s_mov_b64 exec, 0x5555")
E(f"buffer_store_dwordx2 {vr(D0,2)}, v{TT+6}, {WSR}, s{sQ0} offen")
E("s_mov_b64 exec, -1")
stamp(3, True)
E(f"v_mov_b32 v{TT+7}, 0")
E(f"buffer_load_dword v{GB+20}, v{TT+7}, s[{R_B}:{R_B+3}], 0 offen")
for s in range(16):
    c = "0" if s == 0 else vr(CA,4)
    E(f"v_mfma_f32_16x16x32_bf16 {vr(CA,4)}, {vr(ONESB,4)}, {vr(WA+4*s,4)}, {c}")
E("s_nop 7")
E(f"v_mov_b32 v{vCS}, v{CA}")
E("s_barrier")
amp("st")
read_mode("0xffff")
E(f"s_mov_b32 s{sT1}, 0x5555")
E(f"s_cmp_eq_u32 s{sMODE}, 1")
E(f"s_cselect_b32 exec_lo, 0, s{sT1}")
E("s_mov_b32 exec_hi, 0")
E(f"buffer_store_dwordx2 {vr(D0,2)}, v{TT+6}, {WSR}, s{sQ0B} offen sc1")
E("s_mov_b64 exec, -1")
E("s_barrier")
for s in range(7):
    for e in range(2):
        E(f"ds_read_b64_tr_b16 {vr(WB+4*s+2*e,2)}, v{aTB} offset:{4096*s+512*e}")
E("s_waitcnt lgkmcnt(0)")
E("s_branch L_D1_act")
L("L_D1_q")
mark("d1")
matvec(16, XB, WA, stats_fillers())
xgroup_sum()
E(f"v_cvt_pk_bf16_f32 v{vT}, v{vT}, v{vT}")
E(f"v_min_u32 v{vT}, -2, v{vT}")
pub2("buffer_store_short", f"v{vT}", aP16, sPub, sMA_f, sMA_s, W_Q)
stamp(3, True)
pub_resid(W_X2)
L("L_D1_act")
mark("d1")
AIN = vST
arm(AIN, 4)
E(f"v_mov_b32 v{vT}, 0")
gather1("ga", AIN, aIN, sLOC, W_ACT, TT)
amp("act")
stamp(4, True)
E(f"buffer_load_dwordx4 {vr(CA,4)}, v{vL16}, {WSR}, s{sLOC} offen offset:{W_X1} sc1")
matvec(7, AIN, WB, [], per=1)
y_publish()
stamp(5, True)
E(f"s_add_u32 s{sLAY}, s{sLAY}, 1")
E(f"s_cmp_lt_u32 s{sLAY}, 2")
E("s_cbranch_scc1 L_D1_z")
E(f"s_cmp_lg_u32 s2, 128")
E("s_cbranch_scc1 L_D1_end")
E(f"s_cmp_lg_u32 s{sWV}, 0")
E("s_cbranch_scc1 L_D1_end")
L("L_D1_z")
mark("d1")
def pre_z():
    E("s_waitcnt vmcnt(1)")
    chk_bf16(CA, TT)
    E("s_cbranch_vccz L_gx1_have")
    gather1("gx1", CA, vL16, sLOC, W_X1, TT, pd=1, slp=0)
    L("L_gx1_have")
    unpack_resid(CA)
def relay_z():
    E(f"v_mov_b32 v{vT}, 0")
    E(f"s_cmp_lg_u32 s{sWV}, 0")
    E(f"s_cbranch_scc1 L_gz_other")
    pre_z()
    gather_X("gz", sZoff, "d1")
    E(f"s_cmp_eq_u32 s{sLAY}, 2")
    E("s_cbranch_scc1 L_D1_out")
    E(f"ds_write_b128 v{aXS}, {vr(XB,4)}")
    E("s_waitcnt lgkmcnt(0)")
    E("s_barrier")
    E(f"s_branch L_gz_join")
    L(f"L_gz_other")
    E("s_waitcnt vmcnt(0)")
    E("s_barrier")
    E(f"ds_read_b128 {vr(XB,4)}, v{aXS}")
    E("s_waitcnt lgkmcnt(0)")
    L("L_gz_join")
relay_z()
stamp(6)
for s_ in (sLOC, sPub, sPubG, sZoff):
    E(f"s_add_u32 s{s_}, s{s_}, {LS}")
E("s_branch L_D1_q")
L("L_D1_out")
E(f"buffer_store_dwordx2 {vr(XB,2)}, v{aXIO}, s[{R_B}:{R_B+3}], 0 offen")
E(f"buffer_store_dwordx2 {vr(XB+2,2)}, v{aXIO}, s[{R_B}:{R_B+3}], 0 offen offset:512")
E(f"v_mov_b32 v{TT}, s{sTAG}")
E(f"v_mov_b32 v{TT+1}, {W_EP}")
E("s_mov_b64 exec, 1")
E(f"buffer_store_dword v{TT}, v{TT+1}, {WSR}, 0 offen")
if AMP:
    E("s_memrealtime s[88:89]")
    E("s_waitcnt lgkmcnt(0)")
    if AMP == "end": E("s_mov_b32 s94, s88")
    E("s_sub_u32 s94, s94, s86")
    if AMP.startswith("x"):
        E(f"v_mov_b32 v253, {W_EP + 64}")
        E(f"buffer_load_dword v252, v253, {WSR}, 0 offen sc1")
        E("s_waitcnt vmcnt(0)")
        E("v_readfirstlane_b32 s94, v252")
        E("s_nop 3")
    E("s_lshl_b32 s94, s94, 2")
    E("s_min_u32 s94, s94, 20000")
    E("s_add_u32 s94, s94, s88")
    L("L_amp_spin")
    E("s_memrealtime s[88:89]")
    E("s_waitcnt lgkmcnt(0)")
    E("s_sub_u32 s89, s94, s88")
    E("s_cmp_gt_i32 s89, 0")
    E("s_cbranch_scc1 L_amp_spin")
if PROF:
    stamp(7)
    E("s_waitcnt vmcnt(0)")
    stamp(8)
L("L_D1_end")
stamp_flush(0, 0, (128, 4, [60, 2, 3, 4, 6, 20, 8]))
E("s_endpgm")
sec("help")
L("L_D1_help")
E(f"s_mul_i32 s{sT0}, s{sG}, {224*1024}")
E(f"s_lshl_b32 s{sT1}, s{sC}, 7")
E(f"s_add_u32 s{sT0}, s{sT0}, s{sT1}")
srd(R_B, sW2, f"s{sT0}", 224*1024 - 896)
E("v_lshlrev_b32 v244, 10, v242")
E("v_lshl_add_u32 v244, v243, 4, v244")
E(f"s_cmp_eq_u32 s{sWV}, 4")
E("s_cbranch_scc1 L_D1_ctl")
for u in range(3):
    E(f"s_cmp_lg_u32 s{sWV}, {5+u}")
    E(f"s_cbranch_scc1 L_D1_wm{u}")
    warm("d1", u, 3)
    L(f"L_D1_wm{u}")
E("s_branch L_D1_bq")
L("L_D1_ctl")
E(f"v_lshlrev_b32 v{cT}, 7, v2")
E(f"buffer_load_dword v240, v{cT}, {WSR}, s{sQ0} offen sc1")
ctl_head()
xc_publish()
L("L_D1_bq")
E("s_barrier")
E(f"s_cmp_lg_u32 s{sWV}, 4")
E("s_cbranch_scc1 L_D1_w2")
first_gather("d1x", False, None)
stamp(3)
E(f"v_lshlrev_b32 v{cT}, 3, v1")
E(f"s_cmp_eq_u32 s{sMODE}, 1")
E("s_cbranch_scc0 L_D1_b2")
L("L_D1_st")
E(f"buffer_load_dword v{cT+1}, v{cT}, {WSR}, s{sLOC} offen offset:{W_ST} sc1")
E("s_waitcnt vmcnt(0)")
E(f"v_cmp_ne_u32 vcc, -1, v{cT+1}")
E("s_cbranch_vccnz L_D1_b2")
E("s_sleep 8")
spin_check("L_D1_st")
L("L_D1_b2")
E("s_waitcnt lgkmcnt(0)")
L("L_D1_w2")
E("s_barrier")
E(f"s_sub_u32 s{sT0}, s{sWV}, 4")
E(f"s_mul_i32 s{sT1}, s{sT0}, 7168")
E(f"s_add_u32 m0, s{sT1}, {WB_LDS}")
E(f"s_mul_i32 s{sT1}, s{sT0}, {56*1024}")
for i in range(7):
    E(f"buffer_load_dwordx4 v244, s[{R_B}:{R_B+3}], s{sT1} offen{NTW} lds")
    if i < 6:
        E("s_add_u32 m0, m0, 1024")
        E(f"s_add_u32 s{sT1}, s{sT1}, 8192")
E("s_waitcnt vmcnt(0) lgkmcnt(0)")
stamp(4)
E("s_barrier")
stamp_flush(4, 1)
E("s_endpgm")

L("L_D2_init")
E(f"s_min_u32 s{sT1}, s{sC}, 6")
E(f"s_lshl_b32 s{sT1}, s{sT1}, 6")
E(f"s_mul_i32 s{sT0}, s{sG}, 448")
E(f"s_add_u32 s{sS1}, s{sT0}, s{sT1}")
E(f"s_sub_u32 s{sT3}, {1835008}, s{sS1}")
srd(R_B, sW1, f"s{sS1}", f"s{sT3}")
def d2_clear(sc, alt):
    for r in range(4): E(f"v_mov_b32 v{cG+r}, -1")
    E(f"s_lshl_b32 s{sT1}, s{sC}, 11")
    E(f"s_add_u32 s{sT1}, s{sT1}, s{sPoff}")
    if alt: E(f"s_add_u32 s{sT1}, s{sT1}, {ALT}")
    E(f"s_add_u32 s{sT2}, s{sT1}, {LS}")
    for so in (sT1, sT2):
        for o in range(2):
            E(f"buffer_store_dwordx4 {vr(cG,4)}, v{cL16}, {WSR}, s{so} offen offset:{1024*o}{sc}")
    E(f"s_mov_b32 s{sT1}, {LS}")
    E(f"v_lshrrev_b32 v{cT}, 5, v1")
    E(f"v_mul_lo_u32 v{cT}, v{cT}, s{sT1}")
    E(f"v_and_b32 v{cT+1}, 31, v1")
    E(f"v_lshl_add_u32 v{cT}, v{cT+1}, 4, v{cT}")
    E(f"s_lshl_b32 s{sT1}, s{sC}, 9")
    E(f"s_add_u32 s{sT1}, s{sT1}, s{sLOC}")
    if alt: E(f"s_add_u32 s{sT1}, s{sT1}, {ALT}")
    E(f"buffer_store_dwordx4 {vr(cG,4)}, v{cT}, {WSR}, s{sT1} offen{sc}")
srd(R_C, sDBG, None, 256)
E(f"s_cmp_lt_u32 s{sWV}, 4")
E("s_cbranch_scc1 L_D2_comp")
E(f"s_cmp_eq_u32 s{sWV}, 4")
E("s_cbranch_scc1 L_D2_ctl")
for u in range(3):
    E(f"s_cmp_lg_u32 s{sWV}, {5+u}")
    E(f"s_cbranch_scc1 L_D2_wm{u}")
    warm("d2", u, 3)
    L(f"L_D2_wm{u}")
if LATE0 == 2: E("s_barrier")
E("s_branch L_D2_bw")
L("L_D2_ctl")
d2_clear("", False)
clear_global()
ctl_head()
stamp(1)
xc_publish()
first_gather("d2x", False, lambda: d2_clear(" sc1", True))
stamp(2)
E(f"s_lshl_b32 s{sT1}, s{sG}, 5")
E(f"v_mov_b32 v{cT}, 1")
E(f"v_mov_b32 v{cT+1}, s{sT1}")
E(f"s_cmp_eq_u32 s{sC}, 0")
E("s_cselect_b32 exec_lo, 1, 0")
E("s_mov_b32 exec_hi, 0")
E(f"buffer_store_dword v{cT}, v{cT+1}, s[{R_C}:{R_C+3}], 0 offen sc1")
E("s_mov_b64 exec, -1")
if LATE0 == 2: E("s_barrier")
stamp(3)
E("s_waitcnt lgkmcnt(0)")
L("L_D2_bw")
E("v_lshrrev_b32 v245, 2, v1")
E("v_mul_u32_u24 v245, 3584, v245")
E("v_and_b32 v246, 3, v1")
E("v_and_b32 v247, 1, v3")
E("v_xor_b32 v246, v246, v247")
E("v_lshl_add_u32 v244, v246, 4, v245")
E("v_xor_b32 v246, 2, v246")
E("v_lshl_add_u32 v245, v246, 4, v245")
E(f"s_sub_u32 s{sT0}, s{sWV}, 4")
E(f"s_lshl_b32 s{sT1}, s{sT0}, 13")
E(f"s_add_u32 m0, s{sT1}, {WB_LDS}")
E(f"s_mul_i32 s{sT1}, s{sT0}, {128*3584}")
E("s_barrier")
E(f"s_cmp_lg_u32 s{sWV}, 4")
E("s_cbranch_scc1 L_D2_bo")
E(f"v_lshlrev_b32 v{cT+2}, 5, v1")
E("s_mov_b64 exec, 0xff")
L("L_D2_fpoll")
E(f"buffer_load_dword v{cT+3}, v{cT+2}, s[{R_C}:{R_C+3}], 0 offen sc1")
E("s_waitcnt vmcnt(0)")
E(f"v_cmp_ne_u32 vcc, 1, v{cT+3}")
E("s_cbranch_vccz L_D2_fok")
E("s_sleep 2")
spin_check("L_D2_fpoll")
L("L_D2_fok")
E("s_mov_b64 exec, -1")
L("L_D2_bo")
E("s_barrier")
for i in range(8):
    E(f"buffer_load_dwordx4 v{244 + i//4}, s[{R_B}:{R_B+3}], s{sT1} offen{NTW} lds")
    if i < 7:
        E("s_add_u32 m0, m0, 1024")
        E(f"s_add_u32 s{sT1}, s{sT1}, {16*3584}")
E("s_waitcnt vmcnt(0)")
stamp(4)
E("s_barrier")
stamp_flush(4, 1)
E("s_endpgm")
sec("d2")
L("L_D2_comp")
if LATE0: wo_issue()
srd(R_C, sB1, None, 3584)
E(f"v_and_b32 v{TT+5}, 7, v2")
E(f"v_lshlrev_b32 v{TT+5}, 1, v{TT+5}")
E(f"s_lshl_b32 s{sT1}, s{sWV}, 4")
E(f"s_add_u32 s{sT0}, s{sS1}, s{sT1}")
E(f"buffer_load_ushort v{vB1}, v{TT+5}, s[{R_C}:{R_C+3}], s{sT0} offen")
E(f"v_lshrrev_b32 v{TT+5}, 1, v{TT+2}")
E(f"v_lshl_add_u32 v{TT+5}, v{TT+1}, 1, v{TT+5}")
E(f"v_xor_b32 v{TT+5}, s{sWV}, v{TT+5}")
E(f"v_lshl_add_u32 v{aTA}, v3, 7, v{TT+2}")
E(f"v_lshlrev_b32 v{aTA}, 7, v{aTA}")
E(f"v_lshl_add_u32 v{aTA}, v{TT+3}, 3, v{aTA}")
E(f"v_lshl_add_u32 v{aTA}, v{TT+5}, 5, v{aTA}")
E(f"v_bfe_u32 v{TT+5}, v2, 1, 1")
E(f"v_lshl_add_u32 v{TT+6}, v{TT+5}, 6, v{TT+4}")
E(f"v_lshl_add_u32 v{TT+5}, v{TT+5}, 1, v{TT+1}")
E(f"v_xor_b32 v{TT+5}, s{sWV}, v{TT+5}")
E(f"v_lshlrev_b32 v{aTB}, 6, v{TT+6}")
E(f"v_lshl_add_u32 v{aTB}, v{TT+5}, 4, v{aTB}")
E(f"v_and_b32 v{TT+5}, 1, v2")
E(f"v_lshl_add_u32 v{aTB}, v{TT+5}, 3, v{aTB}")
E(f"v_add_u32 v{aTB}, {WB_LDS}, v{aTB}")
E(f"s_lshl_b32 s{sT1}, s{sWV}, 7")
E(f"v_lshlrev_b32 v{aST}, 5, v3")
E(f"v_add_u32 v{aST}, s{sT1}, v{aST}")
E(f"v_lshlrev_b32 v{aOS}, 4, v2")
E(f"v_lshl_add_u32 v{aOS}, v{TT+1}, 3, v{aOS}")
E(f"v_lshl_add_u32 v{aOS}, v{TT}, 2, v{aOS}")
E(f"s_lshl_b32 s{sT1}, s{sWV}, 8")
E(f"s_add_u32 s{sT1}, s{sT1}, {OS_LDS}")
E(f"v_add_u32 v{aOS}, s{sT1}, v{aOS}")
E(f"v_add_u32 v{aIN}, {OS_LDS}, v{vL16}")
E(f"v_lshlrev_b32 v{TT+5}, 4, v{TT+5}")
E(f"v_mov_b32 v{TT+6}, 0xffff")
E(f"v_lshlrev_b32 v{TT+6}, v{TT+5}, v{TT+6}")
E(f"v_bfe_u32 v{TT+7}, v2, 1, 2")
for d in range(4):
    E(f"v_cmp_eq_u32 vcc, {d}, v{TT+7}")
    E("s_nop 1")
    E(f"v_cndmask_b32 v{MK+d}, 0, v{TT+6}, vcc")
E(f"v_lshrrev_b32 v{vFLG}, 3, v2")
E(f"v_cmp_eq_u32 vcc, v{vFLG}, v{TT}")
E(f"v_cvt_f32_u32 v{vFLG}, v{vFLG}")
E("s_nop 0")
E(f"v_cndmask_b32 v{vVAL}, 0, -1, vcc")
E(f"s_lshl_b32 s{sT1}, s{sWV}, 12")
E(f"s_add_u32 s{sPoff}, s{sPoff}, s{sT1}")
E(f"s_lshl_b32 s{sT1}, s{sPJ}, 4")
E(f"s_add_u32 s{sPub}, s{sLOC}, s{sT1}")
E(f"s_add_u32 s{sPubG}, s{sPubG}, {W_Y}")
E(f"s_mov_b32 s{sYoff}, {W_Y}")
E(f"s_mov_b32 s{sC2}, 0")
E("s_waitcnt vmcnt(0)")
unpack_resid(XB)
E(f"v_lshlrev_b32 v{vB1}, 16, v{vB1}")
stamp(1)
E("s_barrier")
stamp(2)
for s in range(16):
    for e in range(2):
        E(f"ds_read_b64_tr_b16 {vr(WA+4*s+2*e,2)}, v{aTA} offset:{1024*s+512*e}")
read_mode("0xff")
E(f"s_cmp_lt_u32 s{sC}, 7")
E(f"s_cselect_b32 s{sMA_f}, s{sMA_f}, 0")
E(f"s_cselect_b32 s{sMA_s}, s{sMA_s}, 0")
L("L_D2_loop")
mark("d2")
def p_loads():
    for i in range(4):
        E(f"buffer_load_dwordx4 {vr(GB+4*i,4)}, v{vL16}, {WSR}, s{sPoff} offen offset:{1024*i} sc1")
arm(vST, 8)
p_loads()
L("L_gs_poll")
E(f"buffer_load_dwordx4 {vr(vST,4)}, v{aST}, {WSR}, s{sLOC} offen offset:{W_ST} sc1")
E(f"buffer_load_dwordx4 {vr(vST+4,4)}, v{aST}, {WSR}, s{sLOC} offen offset:{W_ST+16} sc1")
E(f"s_waitcnt vmcnt({2*(PD-1)})")
E(f"v_max3_u32 v{TT}, v{vST}, v{vST+1}, v{vST+2}")
E(f"v_max3_u32 v{TT+1}, v{vST+3}, v{vST+4}, v{vST+5}")
E(f"v_max3_u32 v{TT}, v{TT}, v{vST+6}, v{vST+7}")
E(f"v_max_u32 v{TT}, v{TT}, v{TT+1}")
E(f"v_cmp_eq_u32 vcc, -1, v{TT}")
E("s_cbranch_vccz L_gs_ok")
if SLP: E(f"s_sleep {SLP}")
spin_check("L_gs_poll")
L("L_gs_ok")
p_loads()
stamp(3, True)
vM, vU, vLs = TT, TT+1, TT+2
WT = TT + 3
AW = GB + 16
E(f"v_max3_f32 v{vM}, v{vST}, v{vST+2}, v{vST+4}")
E(f"v_max_f32 v{vM}, v{vM}, v{vST+6}")
for sw in ("16", "32"):
    E(f"v_mov_b32 v{vU}, v{vM}")
    E("s_nop 1")
    E(f"v_permlane{sw}_swap_b32 v{vM}, v{vU}")
    E(f"v_max_f32 v{vM}, v{vM}, v{vU}")
for t in range(4): E(f"v_sub_f32 v{WT+t}, v{vST+2*t}, v{vM}")
for t in range(4): E(f"v_exp_f32 v{WT+t}, v{WT+t}")
E("s_nop 0")
E(f"v_mul_f32 v{vLs}, v{WT}, v{vST+1}")
for t in range(1, 4): E(f"v_fmac_f32 v{vLs}, v{WT+t}, v{vST+2*t+1}")
for sw in ("16", "32"):
    E(f"v_mov_b32 v{vU}, v{vLs}")
    E("s_nop 1")
    E(f"v_permlane{sw}_swap_b32 v{vLs}, v{vU}")
    E(f"v_add_f32 v{vLs}, v{vLs}, v{vU}")
E(f"v_rcp_f32 v{vLs}, v{vLs}")
p_loads()
for t in range(4): E(f"v_mul_f32 v{WT+t}, v{WT+t}, v{vLs}")
for t in range(4): E(f"v_cvt_pk_bf16_f32 v{WT+4+t}, v{WT+t}, v{WT+t}")
for t in range(4): E(f"v_and_b32 v{WT+4+t}, 0xffff0000, v{WT+4+t}")
for t in range(4): E(f"v_fma_f32 v{WT+t}, -v{WT+4+t}, v{vFLG}, v{WT+t}")
for t in range(4): E(f"v_cvt_pk_bf16_f32 v{WT+t}, v{WT+t}, v{WT+t}")
for t in range(4):
    for d in range(4): E(f"v_and_b32 v{AW+4*t+d}, v{MK+d}, v{WT+t}")
E("s_branch L_gp_use")
L("L_gp_nan")
E(f"s_sub_u32 s{sSPIN}, s{sSPIN}, 1")
E("s_cbranch_scc1 L_exit")
E(f"s_and_b32 s{sT1}, s{sSPIN}, 15")
E("s_cbranch_scc0 L_gp_retry")
L("L_gp_again")
p_loads()
L("L_gp_use")
E("s_waitcnt vmcnt(4)")
for t in range(4):
    E(f"v_mfma_f32_16x16x32_bf16 {vr(CA,4)}, {vr(AW+4*t,4)}, {vr(GB+4*t,4)}, {'0' if t == 0 else vr(CA,4)}")
E("s_nop 7")
E(f"v_cmp_u_f32 vcc, v{CA}, v{CA}")
E(f"v_permlane32_swap_b32 v{CA}, v{CA+2}")
E(f"v_permlane32_swap_b32 v{CA+1}, v{CA+3}")
E("s_cbranch_vccnz L_gp_nan")
L("L_gp_ok")
E(f"v_add_f32 v{CA}, v{CA}, v{CA+2}")
E(f"v_add_f32 v{CA+1}, v{CA+1}, v{CA+3}")
E(f"v_cvt_pk_bf16_f32 v{CA}, v{CA}, v{CA+1}")
E(f"ds_write_b32 v{aOS}, v{CA}")
E(f"v_mov_b32 v{vT}, 0")
stamp(4, True)
mark("d2")
E("s_waitcnt lgkmcnt(0)")
E("s_barrier")
E(f"ds_read_b128 {vr(XB,4)}, v{aIN}")
E(f"buffer_load_dwordx4 {vr(CA,4)}, v{vL16}, {WSR}, s{sLOC} offen offset:{W_X2} sc1")
E("s_waitcnt lgkmcnt(0)")
matvec(16, XB, WA, [], per=1)
y_publish()
stamp(5, True)
mark("d2")
def w1_setup(tag):
    E(f"s_cmp_lg_u32 s{sC2}, 0")
    E(f"s_cbranch_scc1 L_D2_havew1{tag}")
    E(f"s_mov_b32 s{sC2}, 1")
    E("s_barrier")
    for s in range(8):
        for e in range(2):
            E(f"ds_read_b64_tr_b16 {vr(WB+4*s+2*e,2)}, v{aTB} offset:{16384*e+512*s}")
    for s in range(8):
        E(f"s_waitcnt lgkmcnt({14-2*s})")
        c = "0" if s == 0 else vr(ACC,4)
        E(f"v_mfma_f32_16x16x32_bf16 {vr(ACC,4)}, {vr(ONESB,4)}, {vr(WB+4*s,4)}, {c}")
    E("s_nop 7")
    E(f"v_add_f32_dpp v{vCS}, v{ACC}, v{ACC} row_ror:8 row_mask:0xf bank_mask:0xf")
    L(f"L_D2_havew1{tag}")
def pre_y():
    E(f"s_cmp_eq_u32 s{sLAY}, 0")
    E("s_cbranch_scc1 L_D2_havex")
    E("s_waitcnt vmcnt(1)")
    chk_bf16(CA, TT)
    E("s_cbranch_vccz L_gx2_have")
    gather1("gx2", CA, vL16, sLOC, W_X2, TT, pd=1, slp=0)
    L("L_gx2_have")
    unpack_resid(CA)
    L("L_D2_havex")
relay_X("gy", sYoff, pre_y)
stamp(6, True)
mark("d2")
matvec(8, XB, WB, stats_fillers(), rows=[(0x5, 0xf, [0,1,2,3]), (0xa, 0xf, [4,5,6,7])], per=PER+2)
mark("d2")
xgroup_sum(True)
h, u, a, b = vT, TT+5, TT+6, TT+7
E(f"v_add_f32 v{h}, v{h}, v{vB1}")
E(f"v_mul_f32 v{u}, s{sC3}, |v{h}|")
E(f"v_exp_f32 v{u}, v{u}")
E(f"v_cmp_le_f32 vcc, 0, v{h}")
E(f"v_add_f32 v{b}, 2.0, v{u}")
E(f"v_fma_f32 v{a}, v{u}, 2.0, 1.0")
E(f"v_mul_f32 v{b}, v{u}, v{b}")
E(f"v_mul_f32 v{u}, v{u}, v{u}")
E(f"v_cndmask_b32 v{a}, v{b}, v{a}, vcc")
E(f"v_cndmask_b32 v{u}, 1.0, v{u}, vcc")
E(f"v_fma_f32 v{b}, v{u}, 2.0, v{a}")
E(f"v_rcp_f32 v{b}, v{b}")
E(f"v_mul_f32 v{h}, v{h}, v{a}")
E(f"v_mul_f32 v{h}, v{h}, v{b}")
E(f"v_cvt_pk_bf16_f32 v{h}, v{h}, v{h}")
E(f"v_min_u32 v{h}, -2, v{h}")
pub2("buffer_store_short", f"v{h}", aP16, sPub, sMA_f, sMA_s, W_ACT)
stamp(7, True)
pub_resid(W_X1)
for s_ in (sLOC, sPoff, sPub, sPubG, sYoff):
    E(f"s_add_u32 s{s_}, s{s_}, {LS}")
E(f"s_add_u32 s{sLAY}, s{sLAY}, 1")
E(f"s_cmp_lt_u32 s{sLAY}, 2")
E("s_cbranch_scc1 L_D2_loop")
stamp_flush(0, 0)
E("s_endpgm")
sec("cold")
L("L_exit")
E("s_endpgm")
L("L_gp_retry")
for i in range(0, 16, 2): E(f"v_pk_max_u16 v{ACC+i//2}, v{GB+i}, v{GB+i+1}")
for i in range(0, 8, 2): E(f"v_pk_max_u16 v{ACC+i//2}, v{ACC+i}, v{ACC+i+1}")
chk_bf16(ACC, TT)
E("s_cbranch_vccnz L_gp_again")
for t in range(4):
    E(f"v_mfma_f32_16x16x32_bf16 {vr(CA,4)}, {vr(AW+4*t,4)}, {vr(GB+4*t,4)}, {'0' if t == 0 else vr(CA,4)}")
E("s_nop 9")
E(f"v_permlane32_swap_b32 v{CA}, v{CA+2}")
E(f"v_permlane32_swap_b32 v{CA+1}, v{CA+3}")
E("s_branch L_gp_ok")
for b_ in retry_blocks: b_()
L("L_wret")
E(f"s_setpc_b64 s[{sRET}:{sRET+1}]")
L("L_code_end")

out = [open("cdna_kernels/" + NAME + ".s.ref").read().split("; Override")[0].rstrip("\n"),
       f"; @launch grid=(256,1,1) block=(512,1,1) lds={LDS_BYTES}", '.amdgcn_target "amdgcn-amd-amdhsa--gfx950"', ".text",
       f".globl {NAME}_kernel", ".p2align 8", f".type {NAME}_kernel,@function"]
for k in ORDER:
    for x in secs[k]:
        if isinstance(x, tuple):
            _, role, first, step = x
            out.append("    s_mov_b64 exec, 0")
            out += [f"    s_call_b64 s[{sRET}:{sRET+1}], {m}" for m in marks[role][first::step]]
            out.append("    s_mov_b64 exec, -1")
        else: out.append(x)
out.append('.section .rodata,"a"')
out.append(".p2align 6")
out.append(f".amdhsa_kernel {NAME}_kernel")
out.append("  .amdhsa_next_free_vgpr 256")
out.append("  .amdhsa_next_free_sgpr 96")
out.append("  .amdhsa_accum_offset 256")
out.append("  .amdhsa_group_segment_fixed_size 0")
out.append("  .amdhsa_kernarg_size 96")
out.append("  .amdhsa_user_sgpr_count 2")
out.append("  .amdhsa_user_sgpr_kernarg_segment_ptr 1")
out.append("  .amdhsa_system_sgpr_workgroup_id_x 1")
out.append("  .amdhsa_float_denorm_mode_32 3")
out.append(".end_amdhsa_kernel")
open(sys.argv[1], "w").write("\n".join(out) + "\n")
```

```python
import sys, math, struct
PROF = int(sys.argv[2]) if len(sys.argv) > 2 else 0
OPT = dict(a.split("=") for a in sys.argv[3:])
THR = int(OPT.get("thr", 6))
ACK = int(OPT.get("ack", 1))
PER = int(OPT.get("per", 3))
PD = int(OPT.get("pd", 4))
SLP = int(OPT.get("slp", 1))
LATE0 = int(OPT.get("late0", 2))
GP = int(OPT.get("gp", 1))
GSL = int(OPT.get("gsl", 0))
THV = int(OPT.get("thv", 8))
GD = int(OPT.get("gd", 0))
fl = lambda k, d: {"0": "", "1": " nt", "2": " sc1", "3": " sc0 sc1", "4": " sc1 nt"}[OPT.get(k, d)]
NTQ, NTW, NTK, NTV = fl("ntq", "0"), fl("ntw", "0"), fl("ntk", "1"), fl("ntv", "0")
TQ = int(OPT.get("tq", 1))
MARKGAP = int(OPT.get("gap", 768))
CPF = int(OPT.get("cpf", 1))
W1L = int(OPT.get("w1l", 1))
STW = 1
REORD = int(OPT.get("reord", 0))
PAD = int(OPT.get("pad", 1))
PN = int(OPT.get("pn", 4))
WARM = int(OPT.get("warm", 0))
NTT = fl("ntt", "0")
GFL = fl("gfl", "2")
SFL = {"2": " sc1", "3": " sc0 sc1", "4": " sc1 nt"}[OPT.get("sfl", "2")]
NAME = "interleave_layers__sliding_block_cached__dense_activation_mish__decode"
import re
ORDER = ["entry", "dinit", "d1", "actl", "a", "d2", "help", "cold"]
secs = {k: [] for k in ORDER}
cur = ["entry"]
since = {k: 0 for k in ORDER}
unsafe = [False]
marks = {k: [] for k in ORDER}
WARMED = ("d1", "a", "d2")
BIG = ("v_mfma", "v_pk_", "v_fma_", "v_max3", "v_or3", "v_add3", "v_lshl_add", "v_bfe", "v_mul_lo", "v_cvt_pk", "v_readlane", "v_writelane",
       "ds_", "buffer_", "global_", "s_load", "s_memrealtime")
def isize(t):
    if t.startswith(BIG) or "_dpp" in t or "|v" in t or (t.startswith(("v_cmp", "v_cndmask")) and "s[" in t): return 8
    ops = t.split(None, 1)[1] if " " in t else ""
    if t.startswith(("s_waitcnt", "s_nop", "s_sleep", "s_branch", "s_cbranch", "s_call", "s_getreg", "s_setprio")): return 4
    for tok in re.split(r"[,\s]+", ops):
        if re.fullmatch(r"0x[0-9a-f]+|\d+", tok) and int(tok, 0) > 64: return 8
    return 4
def sec(name): cur[0] = name
def put_mark():
    k = cur[0]
    marks[k].append(f"L_wm_{k}{len(marks[k])}")
    secs[k].append(marks[k][-1] + ":")
    secs[k].append(("MARK", k, len(marks[k]) - 1))
    since[k] = 4
def E(s=""):
    k = cur[0]
    if WARM and k in WARMED and not unsafe[0] and (since[k] >= MARKGAP or not marks[k]): put_mark()
    secs[k].append("    " + s)
    since[k] += isize(s)
    if re.match(r"s_\w+ exec", s): unsafe[0] = s != "s_mov_b64 exec, -1"
def L(s): secs[cur[0]].append(s + ":")
def vr(a, n=1): return f"v{a}" if n == 1 else f"v[{a}:{a+n-1}]"
def f32(x): return hex(struct.unpack("<I", struct.pack("<f", x))[0])

K_LDS, V_LDS = 0, 65536
WA_LDS, WB_LDS = 0, 65536
QS_LDS, PX_LDS, SX_LDS, FL_LDS = 131072, 132608, 140800, 141312
OS_LDS, XS_LDS = QS_LDS, PX_LDS
LDS_BYTES = 141824
LS = 0x30000
W_Q, W_X2, W_X1, W_ST, W_ACT = 0, 1024, 2048, 3072, 3584
W_Y, W_Z, W_P = 32768, 40960, 65536
W_Q0 = 2 * LS
W_Q0B = 32768
W_EP = W_Q0 + 65536
ALT = 0x80000
WS_USED = ALT + 2 * LS
PROF_OFF = 0x300000
WS_REC = PROF_OFF + 256 * 1024

sX, sK, sV, sWQ, sWO, sBX, sW1, sB1 = 8, 10, 12, 14, 16, 18, 20, 22
sW2, sOUT, sDBG, sWS = 24, 26, 28, 30
sG, sJ, sWV, sC, sPJ = 3, 4, 5, 6, 7
R_WS, R_A, R_B, R_C = 32, 36, 40, 44
sT0, sT1, sT2, sT3 = 48, 49, 50, 51
sLOC, sLAY = 52, 53
sYoff, sZoff, sPoff = 54, 55, 56
sSPIN = 57
sRET = 58
sMA_f, sMA_s, sMB_f, sMB_s, sMC_f, sMC_s = 60, 62, 64, 66, 68, 70
sTAG, sXCC, sQ0, sQ0B = 72, 73, 74, 75
sFFFE = 76
sC1, sC2, sC3 = 77, 78, 79
sS1, sS2, sPIV = 80, 81, 82
sPub, sPubG = 83, 84
sST = 88
sPe, sLe, sMODE = 90, 91, 92
SPIN0 = 0x200000
WSR = f"s[{R_WS}:{R_WS+3}]"

def srd(r, base, add_lo=None, rec=None):
    if add_lo is None:
        E(f"s_mov_b32 s{r}, s{base}")
        E(f"s_and_b32 s{r+1}, s{base+1}, 0xffff")
    else:
        E(f"s_add_u32 s{r}, s{base}, {add_lo}")
        E(f"s_addc_u32 s{r+1}, s{base+1}, 0")
        E(f"s_and_b32 s{r+1}, s{r+1}, 0xffff")
    E(f"s_mov_b32 s{r+2}, {rec}")
    E(f"s_mov_b32 s{r+3}, 0x00020000")

V_STAMP = 254
ROLE = ["a"]
def stamp(idx, layer_dep=False):
    if not PROF: return
    if PROF == 9 and not (idx == 8 and not layer_dep) and not (idx == 6 and layer_dep and ROLE[0] == "a" and "pt" not in OPT) and OPT.get("pt") != f"{cur[0]}_{idx}": return
    E(f"s_memrealtime s[{sST}:{sST+1}]")
    E("s_waitcnt lgkmcnt(0)")
    if layer_dep:
        E(f"s_lshl_b32 s{sT3}, s{sLAY}, 4")
        E(f"s_add_u32 s{sT3}, s{sT3}, {idx}")
        E(f"s_mov_b32 m0, s{sT3}")
        E("s_nop 0")
        E(f"v_writelane_b32 v{V_STAMP}, s{sST}, m0")
    else:
        E(f"v_writelane_b32 v{V_STAMP}, s{sST}, {idx}")
AMP = OPT.get("amp")
def amp(name):
    if AMP != name: return
    E(f"s_cmp_eq_u32 s{sLAY}, {OPT.get('amplay', '0')}")
    E(f"s_cbranch_scc0 L_amp_{name}")
    E("s_memrealtime s[94:95]")
    E("s_waitcnt lgkmcnt(0)")
    L(f"L_amp_{name}")
def ampx(name, wave):
    if AMP != name: return
    E(f"s_cmp_eq_u32 s2, {OPT.get('ampwg', '0')}")
    E(f"s_cbranch_scc0 L_amp_{name}")
    E(f"s_cmp_eq_u32 s{sWV}, {wave}")
    E(f"s_cbranch_scc0 L_amp_{name}")
    E(f"s_cmp_eq_u32 s{sLAY}, 0")
    E(f"s_cbranch_scc0 L_amp_{name}")
    E("s_memrealtime s[94:95]")
    E("s_waitcnt lgkmcnt(0)")
    E("s_sub_u32 s94, s94, s86")
    E("v_mov_b32 v252, s94")
    E(f"v_mov_b32 v253, {W_EP + 64}")
    E(f"buffer_store_dword v252, v253, {WSR}, 0 offen sc1")
    L(f"L_amp_{name}")
def stamp_flush(wave, slot, dbg=None):
    if not PROF: return
    E(f"s_cmp_lg_u32 s{sWV}, {wave}")
    E("s_cbranch_scc1 L_exit")
    E("s_mov_b64 exec, -1")
    if dbg and "dbg" in OPT:
        wg, off, idx = dbg
        for i, x in enumerate(idx):
            E(f"v_readlane_b32 s{sT0}, v{V_STAMP}, {x}")
            E("s_nop 3")
            E(f"v_writelane_b32 v{V_STAMP-2}, s{sT0}, {i}")
        srd(R_A, sDBG, None, 256)
        E(f"v_lshlrev_b32 v{V_STAMP-1}, 2, v1")
        E(f"s_cmp_eq_u32 s2, {wg}")
        E(f"s_cselect_b32 exec_lo, {(1 << len(idx)) - 1}, 0")
        E("s_mov_b32 exec_hi, 0")
        E(f"buffer_store_dword v{V_STAMP-2}, v{V_STAMP-1}, s[{R_A}:{R_A+3}], 0 offen offset:{off}")
        E("s_mov_b64 exec, -1")
    E(f"s_lshl_b32 s{sT0}, s2, 10")
    E(f"s_add_u32 s{sT0}, s{sT0}, {PROF_OFF + slot*256}")
    E(f"v_lshlrev_b32 v{V_STAMP-1}, 2, v1")
    E(f"buffer_store_dword v{V_STAMP}, v{V_STAMP-1}, {WSR}, s{sT0} offen")

wstep = {}
def mark(role): pass
def warm(role, first=0, step=1):
    if WARM:
        secs[cur[0]].append(("WARM", role, first, step))
        assert wstep.setdefault(role, step) == step

def spin_check(fail_label):
    E(f"s_sub_u32 s{sSPIN}, s{sSPIN}, 1")
    E(f"s_cbranch_scc1 L_exit")
    E(f"s_branch {fail_label}")

def chk_bf16(v, t):
    E(f"v_pk_max_u16 v{t}, v{v}, v{v+1}")
    E(f"v_pk_max_u16 v{t+1}, v{v+2}, v{v+3}")
    E(f"v_pk_max_u16 v{t}, v{t}, v{t+1}")
    E(f"v_pk_max_u16 v{t}, v{t}, v{t} op_sel:[0,1] op_sel_hi:[1,0]")
    E(f"v_cmp_eq_u32 vcc, -1, v{t}")

def pub2(op, data, addr, soff, mf, ms, imm=0):
    o = f" offset:{imm}" if imm else ""
    E(f"s_mov_b64 exec, s[{mf}:{mf+1}]")
    E(f"{op} {data}, v{addr}, {WSR}, s{soff} offen{o}")
    E(f"s_mov_b64 exec, s[{ms}:{ms+1}]")
    E(f"{op} {data}, v{addr}, {WSR}, s{soff} offen{o} sc1")
    E("s_mov_b64 exec, -1")

def masks(mf, ms, lo, hi):
    E(f"s_cselect_b32 s{mf}, {lo}, 0")
    E(f"s_cselect_b32 s{mf+1}, {hi}, 0")
    E(f"s_cselect_b32 s{ms}, 0, {lo}")
    E(f"s_cselect_b32 s{ms+1}, 0, {hi}")

def arm(dst, n):
    for r in range(n): E(f"v_mov_b32 v{dst+r}, -1")

def gather1(tag, dst, addr, soff, imm, t, pd=None, slp=None):
    pd = PD if pd is None else pd
    slp = SLP if slp is None else slp
    L(f"L_{tag}_poll")
    E(f"buffer_load_dwordx4 {vr(dst,4)}, v{addr}, {WSR}, s{soff} offen offset:{imm} sc1")
    E(f"s_waitcnt vmcnt({pd-1})")
    chk_bf16(dst, t)
    E(f"s_cbranch_vccz L_{tag}_ok")
    if slp: E(f"s_sleep {slp}")
    spin_check(f"L_{tag}_poll")
    L(f"L_{tag}_ok")

cD, cA, cXa, cG, cT, cL16 = 208, 210, 211, 212, 224, 232
def xc_publish():
    E(f"s_getreg_b32 s{sXCC}, hwreg(HW_REG_XCC_ID, 0, 4)")
    E(f"v_mov_b32 v{cD+1}, s{sTAG}")
    E(f"s_lshl_b32 s{sT3}, s{sJ}, 3")
    E(f"v_mov_b32 v{cD}, s{sXCC}")
    E(f"v_mov_b32 v{cA}, s{sT3}")
    E("s_mov_b64 exec, 1")
    E(f"buffer_store_dwordx2 {vr(cD,2)}, v{cA}, {WSR}, s{sQ0} offen offset:2048")
    E("s_mov_b64 exec, -1")

def first_gather(tag, with_q, clear_alt, armed=False):
    regs = (1, 3, 5, 7) if with_q else (9,)
    nl = 3 if with_q else 1
    E(f"s_sub_u32 s{sS2}, s{sSPIN}, 160")
    if not armed:
        E(f"v_and_b32 v{cXa}, 31, v1")
        E(f"v_lshlrev_b32 v{cXa}, 3, v{cXa}")
        E(f"s_not_b32 s{sT1}, s{sTAG}")
        for r in regs + ((9,) if with_q else ()): E(f"v_mov_b32 v{cG+r}, s{sT1}")
    def loads(so):
        if with_q:
            E(f"buffer_load_dwordx4 {vr(cG,4)}, v{cL16}, {WSR}, s{so} offen sc1")
            E(f"buffer_load_dwordx4 {vr(cG+4,4)}, v{cL16}, {WSR}, s{so} offen offset:1024 sc1")
        E(f"buffer_load_dwordx2 {vr(cG+8,2)}, v{cXa}, {WSR}, s{so} offen offset:2048 sc1")
    def check():
        if with_q:
            for i, r in enumerate(regs): E(f"v_xor_b32 v{cT+i}, s{sTAG}, v{cG+r}")
            E(f"v_or3_b32 v{cT}, v{cT}, v{cT+1}, v{cT+2}")
            E(f"v_or_b32 v{cT}, v{cT}, v{cT+3}")
            E(f"v_cmp_ne_u32 vcc, 0, v{cT}")
        else:
            E(f"v_cmp_ne_u32 vcc, s{sTAG}, v{cG+9}")
    def copy_b():
        E("s_mov_b64 exec, 1")
        E(f"buffer_store_dwordx2 {vr(cD,2)}, v{cA}, {WSR}, s{sQ0B} offen offset:2048 sc1")
        E("s_mov_b64 exec, -1")
    L(f"L_{tag}_poll")
    loads(sQ0)
    E(f"s_waitcnt vmcnt({24 if armed else nl*6})")
    check()
    E(f"s_cbranch_vccz L_{tag}_seen")
    E("s_sleep 3")
    E(f"s_cmp_gt_u32 s{sSPIN}, s{sS2}")
    E(f"s_cbranch_scc0 L_{tag}_b")
    spin_check(f"L_{tag}_poll")
    home = cur[0]; sec("cold")
    L(f"L_{tag}_b")
    copy_b()
    L(f"L_{tag}_alt")
    for so in (sQ0B, sQ0):
        loads(so)
        E("s_waitcnt vmcnt(0)")
        check()
        E(f"s_cbranch_vccz L_{tag}_{'altok' if with_q else 'ok'}")
    spin_check(f"L_{tag}_alt")
    if with_q:
        L(f"L_{tag}_altok")
        E(f"s_not_b32 s{sT1}, s{sTAG}")
        E(f"v_mov_b32 v{cG+9}, s{sT1}")
        E(f"s_branch L_{tag}_ok")
    sec(home)
    L(f"L_{tag}_seen")
    E("s_nop 15")
    L(f"L_{tag}_ok")
    if with_q:
        E(f"ds_write2_b32 v{cT+5}, v{cG}, v{cG+2} offset0:0 offset1:1")
        E(f"ds_write2_b32 v{cT+5}, v{cG+4}, v{cG+6} offset0:160 offset1:161")
        return
    E(f"v_cmp_ne_u32 vcc, s{sXCC}, v{cG+8}")
    E("s_nop 3")
    if OPT.get("slow") == "1": E("s_mov_b64 vcc, -1")
    E("s_cmp_eq_u64 vcc, 0")
    E(f"s_cselect_b32 s{sMODE}, 1, 0")
    E(f"s_cbranch_scc0 L_{tag}_slow")
    sec("cold")
    L(f"L_{tag}_slow")
    E("s_waitcnt vmcnt(0) lgkmcnt(0)")
    copy_b()
    if clear_alt: clear_alt()
    if clear_alt:
        E("s_waitcnt vmcnt(0)")
        E("s_mov_b64 exec, 1")
        E(f"buffer_store_dwordx2 {vr(cD,2)}, v{cA}, {WSR}, s{sQ0B} offen offset:2560 sc1")
        E("s_mov_b64 exec, -1")
    E(f"v_and_b32 v{cXa}, 56, v{cXa}")
    E(f"v_add_u32 v{cXa}, 192, v{cXa}")
    L(f"L_{tag}_h")
    E(f"buffer_load_dwordx2 {vr(cG+8,2)}, v{cXa}, {WSR}, s{sQ0B} offen offset:2560 sc1")
    E("s_waitcnt vmcnt(0)")
    E(f"v_cmp_ne_u32 vcc, s{sTAG}, v{cG+9}")
    E(f"s_cbranch_vccz L_{tag}_done")
    spin_check(f"L_{tag}_h")
    sec(home)
    L(f"L_{tag}_done")
    E(f"v_mov_b32 v{cT+2}, {FL_LDS}")
    E(f"v_mov_b32 v{cT+3}, s{sMODE}")
    E(f"ds_write_b32 v{cT+2}, v{cT+3}")

L(f"{NAME}_kernel")
E("s_cmp_ge_u32 s2, 256")
E("s_cbranch_scc1 L_exit")
E("s_load_dwordx16 s[8:23], s[0:1], 0")
E("s_load_dwordx8 s[24:31], s[0:1], 64")
if PROF:
    E(f"v_mov_b32 v{V_STAMP}, 0")
    E(f"s_memrealtime s[{sST}:{sST+1}]")
if AMP: E("s_memrealtime s[86:87]")
E("s_getpc_b64 s[92:93]")
E("v_lshrrev_b32 v1, 6, v0")
E(f"s_and_b32 s{sG}, s2, 7")
E(f"v_readfirstlane_b32 s{sWV}, v1")
E(f"s_lshr_b32 s{sJ}, s2, 3")
E("v_and_b32 v1, 63, v0")
if CPF:
    E("s_and_b32 s92, s92, 0xffffff00")
    E("v_lshlrev_b32 v4, 7, v1")
    E("v_add_u32 v5, 0x2000, v4")
    E(f"v_min_u32 v5, L_code_end-{NAME}_kernel-4, v5")
    E(f"s_cmp_lg_u32 s{sWV}, 7")
    E("s_cbranch_scc1 L_nocpf")
    E("global_load_dword v239, v4, s[92:93]")
    E("global_load_dword v239, v5, s[92:93]")
    L("L_nocpf")
E("v_and_b32 v2, 15, v0")
E("v_lshrrev_b32 v3, 4, v1")
E(f"s_mov_b32 s{sSPIN}, {SPIN0}")
E(f"s_mov_b32 s{sLAY}, 0")
E(f"s_lshl_b32 s{sLOC}, s{sG}, 12")
E(f"s_lshl_b32 s{sPoff}, s{sG}, 14")
E(f"s_add_u32 s{sPoff}, s{sPoff}, {W_P}")
E(f"s_add_u32 s{sQ0}, s{sLOC}, {W_Q0}")
E(f"s_add_u32 s{sQ0B}, s{sQ0}, {W_Q0B}")
E("v_lshrrev_b32 v5, 3, v1")
E("v_and_b32 v6, 7, v1")
E("v_lshlrev_b32 v4, 13, v5")
E("v_lshl_add_u32 v4, v6, 7, v4")
E(f"s_lshl_b32 s{sT0}, s{sJ}, 17")
E(f"s_lshl_b32 s{sT1}, s{sG}, 10")
E(f"s_add_u32 s{sT0}, s{sT0}, s{sT1}")
E(f"s_sub_u32 s{sT1}, s{sWV}, 1")
E(f"s_lshl_b32 s{sT2}, s{sT1}, 16")
E(f"s_add_u32 s{sT0}, s{sT0}, s{sT2}")
E(f"s_mov_b32 s{sT2}, {W_EP}")
E("v_mov_b32 v7, 0")
E(f"s_cmp_lt_u32 s{sT1}, 2")
E("s_waitcnt lgkmcnt(0)")
E("s_cbranch_scc0 L_notouch")
srd(R_C, sWQ, None, 4194304)
if TQ: E(f"buffer_load_dword v240, v4, s[{R_C}:{R_C+3}], s{sT0} offen{NTQ}")
L("L_notouch")
srd(R_WS, sWS, None, WS_REC if PROF else WS_USED)
E(f"buffer_load_dword v241, v7, {WSR}, s{sT2} offen sc1")
if PROF: E(f"v_writelane_b32 v{V_STAMP}, s{sST}, 60")
E(f"v_mov_b32 v{cA}, 0")
E(f"v_lshlrev_b32 v{cL16}, 4, v1")
E(f"s_cmp_ge_u32 s{sJ}, 16")
E("s_cbranch_scc1 L_D_init")

E(f"s_lshl_b32 s{sT0}, s{sG}, 24")
E(f"s_lshl_b32 s{sT1}, s{sJ}, 16")
E(f"s_add_u32 s{sT0}, s{sT0}, s{sT1}")
E(f"s_add_u32 s{sT0}, s{sT0}, {61440*256}")
srd(R_A, sK, f"s{sT0}", 65536)
srd(R_B, sV, f"s{sT0}", 65536)
E("v_xor_b32 v4, v2, v3")
E("v_lshlrev_b32 v4, 4, v4")
E("v_lshl_add_u32 v4, v3, 8, v4")
E("v_lshlrev_b32 v5, 1, v3")
E("v_xor_b32 v5, v2, v5")
E("v_lshlrev_b32 v5, 4, v5")
E("v_lshl_add_u32 v5, v3, 8, v5")
E(f"s_add_u32 s{sC1}, s{sJ}, s{sG}")
E(f"s_cmp_eq_u32 s{sWV}, 4")
E("s_cbranch_scc1 L_A_ctl")
E(f"s_cmp_gt_u32 s{sWV}, 4")
E("s_cbranch_scc1 L_A_help")
E(f"s_lshl_b32 s{sT0}, s{sWV}, 14")
E(f"s_add_u32 s{sT3}, s{sC1}, 16")
L("L_A_kl")
E(f"s_and_b32 s{sT1}, s{sC1}, 15")
E(f"s_and_b32 s{sT2}, s{sT1}, 3")
E(f"s_lshl_b32 s{sT2}, s{sT2}, 6")
E(f"s_lshl_b32 s{sT1}, s{sT1}, 10")
E(f"s_add_u32 s{sT1}, s{sT1}, s{sT0}")
E(f"s_mov_b32 m0, s{sT1}")
E(f"v_xor_b32 v6, s{sT2}, v4")
E(f"s_waitcnt vmcnt({THR-1})")
E(f"buffer_load_dwordx4 v6, s[{R_A}:{R_A+3}], s{sT1} offen{NTK} lds")
E(f"s_add_u32 s{sC1}, s{sC1}, 1")
E(f"s_cmp_lt_u32 s{sC1}, s{sT3}")
E("s_cbranch_scc1 L_A_kl")
E("s_branch L_A_setup")
L("L_A_help")
E(f"s_sub_u32 s{sT0}, s{sWV}, 5")
E(f"s_lshl_b32 s{sC1}, s{sC1}, 2")
E(f"s_mov_b32 s{sT3}, 0")
THV1, NV1 = int(OPT.get("thv1", 0)), int(OPT.get("nv1", 15))
if THV1:
    L("L_A_vl1")
    E(f"s_add_u32 s{sT1}, s{sC1}, s{sT0}")
    E(f"s_and_b32 s{sT1}, s{sT1}, 63")
    E(f"s_and_b32 s{sT2}, s{sT1}, 1")
    E(f"s_lshl_b32 s{sT2}, s{sT2}, 7")
    E(f"s_lshl_b32 s{sT1}, s{sT1}, 10")
    E(f"s_add_u32 m0, s{sT1}, {V_LDS}")
    E(f"v_xor_b32 v6, s{sT2}, v5")
    E(f"s_waitcnt vmcnt({THV1-1})")
    E(f"buffer_load_dwordx4 v6, s[{R_B}:{R_B+3}], s{sT1} offen{NTV} lds")
    E(f"s_add_u32 s{sT0}, s{sT0}, 3")
    E(f"s_cmp_lt_u32 s{sT0}, {NV1}")
    E("s_cbranch_scc1 L_A_vl1")
L("L_A_vl")
E(f"s_add_u32 s{sT1}, s{sC1}, s{sT0}")
E(f"s_and_b32 s{sT1}, s{sT1}, 63")
E(f"s_and_b32 s{sT2}, s{sT1}, 1")
E(f"s_lshl_b32 s{sT2}, s{sT2}, 7")
E(f"s_lshl_b32 s{sT1}, s{sT1}, 10")
E(f"s_add_u32 m0, s{sT1}, {V_LDS}")
E(f"v_xor_b32 v6, s{sT2}, v5")
E(f"s_waitcnt vmcnt({THV-1})")
E(f"buffer_load_dwordx4 v6, s[{R_B}:{R_B+3}], s{sT1} offen{NTV} lds")
E(f"s_add_u32 s{sT0}, s{sT0}, 3")
E(f"s_cmp_lt_u32 s{sT0}, 64")
E("s_cbranch_scc1 L_A_vl")
stamp(1)
E("s_branch L_A_pf2")
sec("actl")
L("L_A_pf2")
E(f"s_mul_i32 s{sT1}, s{sG}, {224*1024}")
E(f"s_mul_i32 s{sT2}, s{sJ}, 14336")
E(f"s_add_u32 s{sT1}, s{sT1}, s{sT2}")
E(f"s_cmp_eq_u32 s{sWV}, 6")
E(f"s_cselect_b32 s{sT3}, 14336, 0")
srd(R_C, sW2, f"s{sT1}", f"s{sT3}")
E(f"s_mov_b32 s{sT1}, 0")
E(f"s_mov_b32 s{sT2}, 8192")
E("v_lshlrev_b32 v6, 7, v1")
E(f"buffer_load_dword v240, v6, s[{R_C}:{R_C+3}], s{sT1} offen{NTT}")
E(f"buffer_load_dword v240, v6, s[{R_C}:{R_C+3}], s{sT2} offen{NTT}")
E("s_barrier")
E("s_waitcnt vmcnt(2)")
stamp(2)
ampx("xv", 5)
E("s_barrier")
stamp_flush(5, 2)
E("s_endpgm")
sec("a")
L("L_A_setup")
stamp(1)
KF, VF, QF, SC, PB, OD, OUTV, PF, STT = 16, 80, 144, 160, 176, 144, 176, 184, 216
T = 224
E("v_xor_b32 v4, v2, v3")
E("v_lshlrev_b32 v4, 4, v4")
E("v_lshl_add_u32 v4, v2, 8, v4")
E(f"v_add_u32 v4, s{sT0}, v4")
E("v_xor_b32 v5, 64, v4")
E("v_xor_b32 v6, 0x80, v4")
E("v_xor_b32 v7, 0xc0, v4")
E("v_and_b32 v15, 3, v2")
E("v_mul_u32_u24 v8, 320, v15")
E("v_lshl_add_u32 v8, v3, 4, v8")
E(f"v_add_u32 v8, {QS_LDS}, v8")
E("v_lshlrev_b32 v10, 4, v1")
E(f"v_add_u32 v10, {PX_LDS}, v10")
E(f"s_lshl_b32 s{sT1}, s{sWV}, 11")
E(f"v_add_u32 v9, s{sT1}, v10")
E("v_lshlrev_b32 v12, 5, v2")
E(f"v_add_u32 v12, {SX_LDS}, v12")
E(f"s_lshl_b32 s{sT1}, s{sWV}, 3")
E(f"v_add_u32 v11, s{sT1}, v12")
E("v_lshlrev_b32 v13, 12, v15")
E("v_lshl_add_u32 v13, v3, 3, v13")
E("v_bfe_u32 v14, v2, 2, 1")
E("v_lshl_add_u32 v13, v14, 5, v13")
E(f"s_lshl_b32 s{sT1}, s{sWV}, 6")
E(f"v_add_u32 v13, s{sT1}, v13")
E(f"v_cmp_eq_u32 s[{sMC_f}:{sMC_f+1}], 1, v14")
E(f"v_lshlrev_b32 v14, 7, v15")
E(f"v_lshrrev_b32 v{T}, 2, v2")
E(f"v_lshl_add_u32 v{T}, v3, 2, v{T}")
E(f"v_and_b32 v{T+1}, 7, v{T}")
E(f"s_lshl_b32 s{sT1}, s{sWV}, 1")
E(f"v_xor_b32 v{T+1}, s{sT1}, v{T+1}")
E(f"v_lshlrev_b32 v{T}, 8, v{T}")
E(f"v_lshl_add_u32 v{T}, v{T+1}, 5, v{T}")
E(f"v_lshl_add_u32 v{T}, v15, 3, v{T}")
E(f"v_add_u32 v{T}, {V_LDS}, v{T}")
E(f"v_xor_b32 v{T+1}, 32, v{T}")
E(f"s_lshl_b32 s{sT1}, s{sJ}, 8")
E(f"s_add_u32 s{sPoff}, s{sPoff}, s{sT1}")
E(f"s_and_b32 s{sT1}, s{sJ}, 3")
E(f"s_lshl_b32 s{sT1}, s{sT1}, 5")
E(f"s_lshr_b32 s{sT2}, s{sJ}, 2")
E(f"s_lshl_b32 s{sT2}, s{sT2}, 3")
E(f"s_add_u32 s{sT1}, s{sT1}, s{sT2}")
E(f"s_add_u32 s{sPub}, s{sT1}, {W_ST}")
E(f"s_mov_b32 s{sC1}, {f32((128**-0.5)*math.log2(math.e))}")
E(f"s_mov_b32 s{sFFFE}, 0xfffefffe")
E(f"v_mov_b32 v{T+2}, {FL_LDS}")
E(f"v_mov_b32 v{T+8}, s{sC1}")
E(f"s_cmp_eq_u32 s{sWV}, 0")
E(f"s_cselect_b32 s{sC2}, 15, 0")
E(f"s_mov_b32 s{sMB_f+1}, 0")
E(f"s_mov_b32 s{sMB_s+1}, 0")
E("s_waitcnt vmcnt(0)")
stamp(2)
ampx("xk", 0)
for e in range(4):
    for s in range(4):
        E(f"ds_read_b128 {vr(KF+(e*4+s)*4,4)}, v{4+s} offset:{4096*e}")
L("L_A_b1")
mark("a")
E("s_barrier")
for s in range(4):
    E(f"ds_read_b128 {vr(QF+4*s,4)}, v8 offset:{64*s}")
stamp(3, True)
def qk(e, s):
    c = "0" if s == 0 else vr(SC+4*e,4)
    E(f"v_mfma_f32_16x16x32_bf16 {vr(SC+4*e,4)}, {vr(KF+(e*4+s)*4,4)}, {vr(QF+4*s,4)}, {c}")
for s in range(4):
    E(f"s_waitcnt lgkmcnt({3-s})")
    qk(0, s); qk(1, s)
for s in range(4):
    qk(2, s); qk(3, s)
E(f"v_max3_f32 v{T+4}, v{SC}, v{SC+1}, v{SC+2}")
E(f"v_max3_f32 v{T+5}, v{SC+3}, v{SC+4}, v{SC+5}")
E(f"v_max3_f32 v{T+4}, v{T+4}, v{SC+6}, v{SC+7}")
E("s_nop 3")
E(f"v_max3_f32 v{T+5}, v{T+5}, v{SC+8}, v{SC+9}")
E(f"v_max3_f32 v{T+4}, v{T+4}, v{SC+10}, v{SC+11}")
E(f"v_max3_f32 v{T+5}, v{T+5}, v{SC+12}, v{SC+13}")
E(f"v_max3_f32 v{T+4}, v{T+4}, v{SC+14}, v{SC+15}")
E(f"v_max_f32 v{T+4}, v{T+4}, v{T+5}")
E(f"v_mov_b32 v{T+5}, v{T+4}")
E("s_nop 1")
E(f"v_permlane16_swap_b32 v{T+4}, v{T+5}")
E(f"v_max_f32 v{T+4}, v{T+4}, v{T+5}")
E(f"v_mov_b32 v{T+5}, v{T+4}")
E("s_nop 1")
E(f"v_permlane32_swap_b32 v{T+4}, v{T+5}")
E(f"v_max_f32 v{T+4}, v{T+4}, v{T+5}")
E(f"v_mul_f32 v{T+6}, s{sC1}, v{T+4}")
for i in range(8):
    E(f"v_pk_fma_f32 {vr(SC+2*i,2)}, {vr(SC+2*i,2)}, {vr(T+8,2)}, {vr(T+6,2)} op_sel_hi:[1,0,0] neg_lo:[0,0,1] neg_hi:[0,0,1]")
for i in range(8):
    E(f"v_exp_f32 v{SC+i}, v{SC+i}")
E(f"v_exp_f32 v{SC+8}, v{SC+8}")
for i in range(4):
    E(f"v_cvt_pk_bf16_f32 v{PB+i}, v{SC+2*i}, v{SC+2*i+1}")
E(f"ds_write_b128 v9, {vr(PB,4)}")
for i in range(9, 16):
    E(f"v_exp_f32 v{SC+i}, v{SC+i}")
E(f"v_add_f32 v{T+7}, v{SC}, v{SC+1}")
for i in range(4, 8):
    E(f"v_cvt_pk_bf16_f32 v{PB+i}, v{SC+2*i}, v{SC+2*i+1}")
E(f"ds_write_b128 v9, {vr(PB+4,4)} offset:1024")
for i in range(4):
    E(f"v_pk_add_f32 {vr(SC+2+ 0,2) if False else vr(SC+4*i,2)}, {vr(SC+4*i,2)}, {vr(SC+4*i+2,2)}")
E(f"v_pk_add_f32 {vr(SC,2)}, {vr(SC,2)}, {vr(SC+4,2)}")
E(f"v_pk_add_f32 {vr(SC+8,2)}, {vr(SC+8,2)}, {vr(SC+12,2)}")
E(f"v_pk_add_f32 {vr(SC,2)}, {vr(SC,2)}, {vr(SC+8,2)}")
E(f"v_add_f32 v{T+7}, v{SC}, v{SC+1}")
E(f"v_mov_b32 v{T+5}, v{T+7}")
E("s_nop 1")
E(f"v_permlane16_swap_b32 v{T+7}, v{T+5}")
E(f"v_add_f32 v{T+7}, v{T+7}, v{T+5}")
E(f"v_mov_b32 v{T+5}, v{T+7}")
E("s_nop 1")
E(f"v_permlane32_swap_b32 v{T+7}, v{T+5}")
E(f"v_add_f32 v{T+7}, v{T+7}, v{T+5}")
E(f"ds_write_b64 v11, {vr(T+6,2)}")
stamp(4, True)
mark("a")
E("s_waitcnt lgkmcnt(0)")
E("s_barrier")
E(f"ds_read_b32 v{T+3}, v{T+2}")
for b in range(2):
    E(f"ds_read_b128 {vr(STT+4*b,4)}, v12 offset:{16*b}")
for b in range(8):
    E(f"ds_read_b128 {vr(PF+4*b,4)}, v10 offset:{1024*b}")
stamp(5, True)
E(f"s_cmp_lg_u32 s{sLAY}, 0")
E("s_cbranch_scc1 L_A_havev")
for tp in range(2):
    for b in range(8):
        for e in range(2):
            E(f"ds_read_b64_tr_b16 {vr(VF+(tp*8+b)*4+2*e,2)}, v{T+tp} offset:{(32*b+16*e)*256}")
E("s_waitcnt lgkmcnt(0)")
L("L_A_havev")
E("s_waitcnt lgkmcnt(8)")
F = STT
va = [f"v_max3_f32 v{T+4}, v{STT}, v{STT+2}, v{STT+4}", f"v_max_f32 v{T+6}, v{T+4}, v{STT+6}"]
va += [f"v_sub_f32 v{F+2*b}, v{STT+2*b}, v{T+6}" for b in range(4)]
va += [f"v_exp_f32 v{F+2*b}, v{F+2*b}" for b in range(4)]
va += [f"v_mul_f32 v{T+7}, v{F}, v{STT+1}"] + [f"v_fmac_f32 v{T+7}, v{F+2*b}, v{STT+2*b+1}" for b in range(1, 4)]
E(f"v_readfirstlane_b32 s{sMODE}, v{T+3}")
for x in va[:2]: E(x)
sa = [f"s_cmp_eq_u32 s{sMODE}, 1", f"s_cselect_b32 s{sMB_f}, s{sC2}, 0", f"s_cselect_b32 s{sMB_s}, 0, s{sC2}",
      f"s_cselect_b32 s{sMA_f}, 0x00ff00ff, 0", f"s_cselect_b32 s{sMA_f+1}, 0x00ff00ff, 0", f"s_cselect_b32 s{sMA_s}, 0, 0x00ff00ff",
      f"s_cselect_b32 s{sMA_s+1}, 0, 0x00ff00ff", f"s_cselect_b32 s{sT2}, 0, {ALT}", f"s_add_u32 s{sPe}, s{sPoff}, s{sT2}",
      f"s_add_u32 s{sT2}, s{sLOC}, s{sT2}", f"s_add_u32 s{sT2}, s{sT2}, s{sPub}"]
k = 2
for u in range(8):
    E(f"s_waitcnt lgkmcnt({7-u})")
    for tp in range(2):
        d = vr(OD+(tp*4+u//2)*4,4)
        E(f"v_mfma_f32_16x16x32_bf16 {d}, {vr(VF+(tp*8+u)*4,4)}, {vr(PF+4*u,4)}, {'0' if u % 2 == 0 else d}")
        if k < len(va): E(va[k]); k += 1
        if sa and u >= 1: E(sa.pop(0)); E(sa.pop(0)) if sa else None
    if u == 5:
        assert k == len(va)
        E(f"v_min_u32 v{T+6}, -2, v{T+6}")
        E(f"v_min_u32 v{T+7}, -2, v{T+7}")
        pub2("buffer_store_dwordx2", vr(T+6,2), 14, sT2, sMB_f, sMB_s)
def cb(b):
    for tp in range(2):
        for h in range(2):
            o = vr(OUTV+4*tp+2*h,2)
            if b == 0: E(f"v_pk_mul_f32 {o}, {vr(OD+tp*16+2*h,2)}, {vr(F,2)} op_sel_hi:[1,0]")
            else: E(f"v_pk_fma_f32 {o}, {vr(OD+(tp*4+b)*4+2*h,2)}, {vr(F+2*b,2)}, {o} op_sel_hi:[1,0,1]")
for b in range(4): cb(b)
for r in range(4):
    E(f"v_cndmask_b32 v{OUTV+r}, v{OUTV+r}, v{OUTV+4+r}, s[{sMC_f}:{sMC_f+1}]")
E(f"v_cvt_pk_bf16_f32 v{OUTV}, v{OUTV}, v{OUTV+1}")
E(f"v_cvt_pk_bf16_f32 v{OUTV+1}, v{OUTV+2}, v{OUTV+3}")
E(f"v_pk_min_u16 v{OUTV}, v{OUTV}, s{sFFFE}")
E(f"v_pk_min_u16 v{OUTV+1}, v{OUTV+1}, s{sFFFE}")
pub2("buffer_store_dwordx2", vr(OUTV,2), 13, sPe, sMA_f, sMA_s)
stamp(6, True)
ampx("xp", 0)
E(f"s_add_u32 s{sPoff}, s{sPoff}, {LS}")
E(f"s_add_u32 s{sLOC}, s{sLOC}, {LS}")
E(f"s_add_u32 s{sLAY}, s{sLAY}, 1")
E(f"s_cmp_lt_u32 s{sLAY}, 2")
E("s_cbranch_scc1 L_A_b1")
stamp_flush(0, 0, (int(OPT.get("dbg", 0)), 36, [60, 2, 3, 5, 6, 19, 22]))
E("s_endpgm")
sec("actl")
L("L_A_ctl")
E("s_waitcnt vmcnt(0)")
E(f"v_readfirstlane_b32 s{sTAG}, v241")
E("s_nop 3")
E(f"s_add_u32 s{sTAG}, s{sTAG}, 1")
ampx("xe", 4)
xc_publish()
warm("a")
E(f"v_lshrrev_b32 v{cT+5}, 5, v1")
E(f"v_lshlrev_b32 v{cT+5}, 6, v{cT+5}")
E(f"v_lshl_add_u32 v{cT+5}, v1, 3, v{cT+5}")
E(f"v_add_u32 v{cT+5}, {QS_LDS}, v{cT+5}")
first_gather("aq0", True, None)
stamp(2)
ampx("xq", 4)
E("s_waitcnt lgkmcnt(0)")
E("s_barrier")
first_gather("ax", False, None, armed=True)
stamp(3)
E("s_waitcnt lgkmcnt(0)")
E(f"s_cmp_eq_u32 s{sMODE}, 1")
E(f"s_cselect_b32 s{sT2}, 0, {ALT}")
E(f"s_add_u32 s{sLe}, s{sLOC}, s{sT2}")
E(f"s_add_u32 s{sLe}, s{sLe}, {LS}")
E(f"v_lshl_add_u32 v{cT+2}, v3, 6, v{cL16}")
E(f"v_add_u32 v{cT+2}, {QS_LDS}, v{cT+2}")
E("s_barrier")
E("s_waitcnt vmcnt(0)")
arm(cG, 4)
gather1("aq", cG, cL16, sLe, W_Q, cT)
E(f"ds_write_b128 v{cT+2}, {vr(cG,4)}")
stamp(18)
E("s_waitcnt lgkmcnt(0)")
E("s_barrier")
stamp_flush(4, 1)
E("s_endpgm")

vL16, aXIO, aTA, aTB, aIN, aST, aP16, aPY, vONE, aOS, aXS = 4, 5, 6, 7, 8, 9, 10, 11, 12, 13, 14
SEL0, ONESB, XR, XN, XB, vT = 16, 24, 28, 36, 44, 48
TT = 49
vB1, vCS, aGX, vINV, vVAL = 15, 0, 249, 250, 252
GB, WA, ACC, WB = 64, 96, 160, 192
vST, CA, MK, vFLG = 224, 232, 236, 248
NACC = 8

retry_blocks = []
def gather_X(tag, soff, role, hook=None):
    def loads():
        for i in range(8):
            so = soff if i < 4 else sT0
            E(f"buffer_load_dwordx4 {vr(GB+4*i,4)}, v{aGX}, {WSR}, s{so} offen offset:{256*(i%4)}{GFL}")
    def sums(wait):
        for i in range(8):
            if wait is not None: E(f"s_waitcnt vmcnt({wait + 7 - i})")
            e, w = (i % 4) // 2, i % 2
            c = vr(XR+4*e,4) if i in (0, 2) else vr(XN+4*e,4)
            E(f"v_mfma_f32_16x16x32_bf16 {vr(XN+4*e,4)}, {vr(SEL0+4*w,4)}, {vr(GB+4*i,4)}, {c}")
    E(f"s_add_u32 s{sT0}, s{soff}, 4096")
    if ACK: E("s_waitcnt vmcnt(0)")
    elif GD: E(f"s_sleep {GD}")
    if PROF in (2, 9): stamp(9, True)
    for _ in range(GP - 1):
        loads()
        if GSL: E(f"s_sleep {GSL}")
    E(f"s_branch L_{tag}_again")
    L(f"L_{tag}_nan")
    E(f"s_sub_u32 s{sSPIN}, s{sSPIN}, 1")
    E("s_cbranch_scc1 L_exit")
    E(f"s_and_b32 s{sT1}, s{sSPIN}, 15")
    E(f"s_cbranch_scc0 L_{tag}_retry")
    if GSL: E(f"s_sleep {GSL}")
    L(f"L_{tag}_again")
    loads()
    if hook: hook()
    mark(role)
    sums(8 * (GP - 1))
    E("s_nop 6")
    E(f"v_cmp_u_f32 vcc, v{XN}, v{XN}")
    E(f"v_cmp_u_f32 s[{sS1}:{sS1+1}], v{XN+4}, v{XN+4}")
    for d in range(4):
        E(f"v_cvt_pk_bf16_f32 v{XB+d}, v{XN+2*d}, v{XN+2*d+1}")
    E(f"s_or_b64 vcc, vcc, s[{sS1}:{sS1+1}]")
    E(f"s_cbranch_vccnz L_{tag}_nan")
    L(f"L_{tag}_ok")
    if PROF in (2, 9):
        stamp(11, True)
        E(f"s_mov_b32 s{sST}, s{sSPIN}")
    def blk():
        L(f"L_{tag}_retry")
        for i in range(16): E(f"v_pk_max_u16 v{ACC+i}, v{GB+2*i}, v{GB+2*i+1}")
        for i in range(8): E(f"v_pk_max_u16 v{ACC+i}, v{ACC+2*i}, v{ACC+2*i+1}")
        for i in range(4): E(f"v_pk_max_u16 v{ACC+i}, v{ACC+2*i}, v{ACC+2*i+1}")
        chk_bf16(ACC, TT)
        E(f"s_cbranch_vccnz L_{tag}_again")
        sums(None)
        E("s_nop 7")
        for d in range(4):
            E(f"v_cvt_pk_bf16_f32 v{XB+d}, v{XN+2*d}, v{XN+2*d+1}")
        E(f"s_branch L_{tag}_ok")
    retry_blocks.append(blk)

def relay_X(tag, soff, pre):
    E(f"v_mov_b32 v{vT}, 0")
    E(f"s_cmp_lg_u32 s{sWV}, 0")
    E(f"s_cbranch_scc1 L_{tag}_other")
    pre()
    gather_X(tag, soff, "d2")
    E(f"ds_write_b128 v{aXS}, {vr(XB,4)}")
    post = f"L_{tag}_join"
    E("s_waitcnt lgkmcnt(0)")
    E("s_barrier")
    E(f"s_branch {post}")
    L(f"L_{tag}_other")
    E("s_waitcnt vmcnt(0)")
    E("s_barrier")
    E(f"ds_read_b128 {vr(XB,4)}, v{aXS}")
    E("s_waitcnt lgkmcnt(0)")
    L(post)

def unpack_resid(src):
    for d in range(4):
        E(f"v_lshlrev_b32 v{XR+2*d}, 16, v{src+d}")
        E(f"v_and_b32 v{XR+2*d+1}, 0xffff0000, v{src+d}")

def matvec(nsteps, A, W, fillers, rows=None, per=PER, waits=False):
    if rows is None:
        rows = [(1 << G, 0xf, list(range(4*G, min(4*G+4, nsteps)))) for G in range((nsteps + 3) // 4)]
    acc = lambda s_: ACC + 4*(rank[s_] % NACC)
    order = [x for x in range(nsteps) if not any(x == st_[-1] for _, _, st_ in rows)] + [st_[-1] for _, _, st_ in rows]
    if waits or not REORD: order = list(range(nsteps))
    rank = {x: i for i, x in enumerate(order)}
    ext = []
    for (rm, bm, st_) in rows:
        dp = f"quad_perm:[0,1,2,3] row_mask:{hex(rm)} bank_mask:{hex(bm)}"
        a = lambda s_: f"v{acc(s_) + s_ % 4}"
        ext.append((st_[1], f"v_add_f32_dpp v{vT}, {a(st_[0])}, {a(st_[1])} {dp}"))
        for s_ in st_[2:]:
            ext.append((s_, f"v_add_f32_dpp v{vT}, {a(s_)}, v{vT} {dp}"))
    order = [x for x in range(nsteps) if not any(x == st_[-1] for _, _, st_ in rows)] + [st_[-1] for _, _, st_ in rows]
    if waits or not REORD: order = list(range(nsteps))
    rank = {x: i for i, x in enumerate(order)}
    ext.sort(key=lambda e: rank[e[0]])
    st = dict(pos=0, lastT=-1)
    pm = {}
    def put(x, n=1):
        E(x); st["pos"] += n
    def need(e):
        if e[0] not in pm: return 99
        return max(pm[e[0]] + 9 - st["pos"], st["lastT"] + 3 - st["pos"], 0)
    fl = list(fillers)
    for s_ in order:
        while ext and rank[ext[0][0]] <= rank[s_] - NACC + 1 and rank[s_] >= NACC:
            n = need(ext[0])
            if n: put(f"s_nop {n-1}", n)
            st["lastT"] = st["pos"]; put(ext.pop(0)[1])
        if waits and s_ >= 8 or waits and s_ == 0: put(f"s_waitcnt lgkmcnt({min(15, 30-2*s_)})")
        pm[s_] = st["pos"]
        put(f"v_mfma_f32_16x16x32_bf16 {vr(acc(s_),4)}, {vr(A,4)}, {vr(W+4*s_,4)}, 0")
        idle = 0
        for _ in range(per):
            if ext and need(ext[0]) - idle <= 0:
                if idle: put(f"s_nop {idle-1}", idle); idle = 0
                st["lastT"] = st["pos"]; put(ext.pop(0)[1])
            elif fl:
                if idle: put(f"s_nop {idle-1}", idle); idle = 0
                put(fl.pop(0))
            elif PAD and s_ != order[-1]: idle += 1
        if idle: put(f"s_nop {idle-1}", idle)
    while ext or fl:
        if ext and need(ext[0]) == 0:
            st["lastT"] = st["pos"]; put(ext.pop(0)[1])
        elif fl:
            put(fl.pop(0))
        else:
            n = need(ext[0]); put(f"s_nop {n-1}", n)

def stats_fillers():
    f = []
    for d in range(4):
        f.append(f"v_lshlrev_b32 v{XR+2*d}, 16, v{XB+d}")
        f.append(f"v_and_b32 v{XR+2*d+1}, 0xffff0000, v{XB+d}")
        if d == 0: f.append(f"v_readfirstlane_b32 s{sPIV}, v{XR}")
    D = XN
    for i in range(4):
        f.append(f"v_pk_add_f32 {vr(D+2*i,2)}, {vr(XR+2*i,2)}, s[{sPIV}:{sPIV+1}] op_sel_hi:[1,0] neg_lo:[0,1] neg_hi:[0,1]")
    a, b = TT+1, TT+3
    assert a % 2 == 0
    f.append(f"v_pk_add_f32 {vr(a,2)}, {vr(D,2)}, {vr(D+2,2)}")
    f.append(f"v_pk_mul_f32 {vr(b,2)}, {vr(D,2)}, {vr(D,2)}")
    for i in range(1, 4):
        f.append(f"v_pk_fma_f32 {vr(b,2)}, {vr(D+2*i,2)}, {vr(D+2*i,2)}, {vr(b,2)}")
        if i > 1: f.append(f"v_pk_add_f32 {vr(a,2)}, {vr(a,2)}, {vr(D+2*i,2)}")
    f.append(f"v_add_f32 v{b}, v{b}, v{b+1}")
    f.append(f"v_add_f32 v{a}, v{a}, v{a+1}")
    f.append("s_nop 0")
    for dp in ("quad_perm:[1,0,3,2] row_mask:0xf", "quad_perm:[2,3,0,1] row_mask:0xf", "row_half_mirror row_mask:0xf",
               "row_mirror row_mask:0xf", "row_bcast:15 row_mask:0xa", "row_bcast:31 row_mask:0xc"):
        f.append(f"v_add_f32_dpp v{b}, v{b}, v{b} {dp} bank_mask:0xf")
        f.append(f"v_add_f32_dpp v{a}, v{a}, v{a} {dp} bank_mask:0xf")
        f.append("s_nop 0")
    f.append(f"v_readlane_b32 s{sS2}, v{b}, 63")
    f.append(f"v_readlane_b32 s{sS1}, v{a}, 63")
    f.append(f"v_fma_f32 v{TT+3}, s{sS2}, v{vINV}, v{vINV+1}" if False else "s_nop 0")
    f.append(f"v_fma_f32 v{TT+3}, s{sS2}, v{vINV}, v{vINV+1}")
    f.append(f"v_mul_f32 v{TT+2}, s{sS1}, v{vINV}")
    f.append(f"v_fma_f32 v{TT+3}, -v{TT+2}, v{TT+2}, v{TT+3}")
    f.append(f"v_max_f32 v{TT+3}, v{vINV+1}, v{TT+3}")
    f.append(f"v_rsq_f32 v{TT+3}, v{TT+3}")
    f.append(f"v_add_f32 v{TT+2}, s{sPIV}, v{TT+2}")
    return f

def xgroup_sum(fold8=False, plain=False):
    if fold8: E(f"v_and_b32 v{vT}, v{vVAL}, v{vT}")
    E(f"v_mov_b32 v{TT+5}, v{vT}")
    E("s_nop 1")
    E(f"v_permlane16_swap_b32 v{vT}, v{TT+5}")
    E(f"v_add_f32 v{vT}, v{vT}, v{TT+5}")
    E(f"v_mov_b32 v{TT+5}, v{vT}")
    E("s_nop 1")
    E(f"v_permlane32_swap_b32 v{vT}, v{TT+5}")
    E(f"v_add_f32 v{vT}, v{vT}, v{TT+5}")
    if fold8:
        E("s_nop 1")
        E(f"v_add_f32_dpp v{vT}, v{vT}, v{vT} row_ror:8 row_mask:0xf bank_mask:0xf")
    if plain: return
    E(f"v_fma_f32 v{vT}, -v{TT+2}, v{vCS}, v{vT}")
    E(f"v_mul_f32 v{vT}, v{vT}, v{TT+3}")

def y_publish():
    xgroup_sum(plain=True)
    E("s_nop 1")
    E(f"v_mov_b32_dpp v{TT+5}, v{vT} quad_perm:[1,1,3,3] row_mask:0xf bank_mask:0xf")
    E("s_mov_b64 exec, 0x5555")
    E(f"v_cvt_pk_bf16_f32 v{vT}, v{vT}, v{TT+5}")
    E(f"v_pk_min_u16 v{vT}, v{vT}, s{sFFFE}")
    E(f"buffer_store_dword v{vT}, v{aP16}, {WSR}, s{sPubG} offen{SFL}")
    E("s_mov_b64 exec, -1")

def pub_resid(off):
    for d in range(4): E(f"v_pk_min_u16 v{TT+7+d}, v{XB+d}, s{sFFFE}")
    pub2("buffer_store_dwordx4", vr(TT+7,4), vL16, sLOC, sMB_f, sMB_s, off)

def read_mode(lo_a, pj=0):
    E(f"v_mov_b32 v{TT}, {FL_LDS}")
    E(f"ds_read_b32 v{TT+1}, v{TT}")
    E("s_waitcnt lgkmcnt(0)")
    E(f"v_readfirstlane_b32 s{sMODE}, v{TT+1}")
    E(f"s_cmp_eq_u32 s{sPJ}, {pj}")
    E(f"s_cselect_b32 s{sT1}, -1, 0")
    E("s_nop 2")
    E(f"s_cmp_eq_u32 s{sMODE}, 1")
    masks(sMA_f, sMA_s, lo_a, "0")
    masks(sMB_f, sMB_s, f"s{sT1}", f"s{sT1}")
    E(f"s_cselect_b32 s{sT1}, 0, {ALT}")
    for s_ in (sLOC, sPoff, sPub):
        E(f"s_add_u32 s{s_}, s{s_}, s{sT1}")

sec("entry")
L("L_D_init")
ROLE[0] = "d"
E(f"s_and_b32 s{sC}, s{sJ}, 7")
E(f"s_lshl_b32 s{sPJ}, s{sC}, 2")
E(f"s_add_u32 s{sPJ}, s{sPJ}, s{sWV}")
E("v_lshrrev_b32 v242, 3, v1")
E("v_and_b32 v243, 7, v1")
def wo_issue():
    E(f"s_lshl_b32 s{sT0}, s{sG}, 19")
    E(f"s_lshl_b32 s{sT1}, s{sC}, 7")
    E(f"s_add_u32 s{sT0}, s{sT0}, s{sT1}")
    E(f"s_sub_u32 s{sT3}, {4194304}, s{sT0}")
    srd(R_A, sWO, f"s{sT0}", f"s{sT3}")
    E("v_and_b32 v245, 2, v242")
    E("v_xor_b32 v245, v245, v243")
    E(f"s_and_b32 s{sT1}, s{sWV}, 1")
    E(f"s_lshl_b32 s{sT1}, s{sT1}, 2")
    E(f"v_xor_b32 v245, s{sT1}, v245")
    E("v_lshlrev_b32 v244, 10, v242")
    E("v_lshl_add_u32 v244, v245, 4, v244")
    E(f"s_lshl_b32 s{sT0}, s{sWV}, 14")
    E(f"s_mov_b32 m0, s{sT0}")
    E(f"s_lshl_b32 s{sT1}, s{sWV}, 17")
    if LATE0 == 1: E("s_waitcnt vmcnt(0)")
    if LATE0 >= 2: E("s_barrier")
    E(f"s_add_u32 s{sT2}, s{sT1}, {16*8192}")
    L("L_D2_wol")
    E(f"buffer_load_dwordx4 v244, s[{R_A}:{R_A+3}], s{sT1} offen{NTW} lds")
    E("s_add_u32 m0, m0, 1024")
    E(f"s_add_u32 s{sT1}, s{sT1}, 8192")
    E(f"s_cmp_lt_u32 s{sT1}, s{sT2}")
    E("s_cbranch_scc1 L_D2_wol")
def clear_global():
    for r in range(4): E(f"v_mov_b32 v{cG+r}, -1")
    E(f"s_mov_b32 s{sT1}, {LS}")
    E(f"v_lshrrev_b32 v{cT}, 3, v2")
    E(f"v_mul_lo_u32 v{cT}, v{cT}, s{sT1}")
    E(f"v_lshl_add_u32 v{cT}, v243, 4, v{cT}")
    E(f"v_lshl_add_u32 v{cT}, v3, 13, v{cT}")
    E(f"s_lshl_b32 s{sT1}, s{sG}, 10")
    E(f"s_lshl_b32 s{sT2}, s{sC}, 7")
    E(f"s_add_u32 s{sT1}, s{sT1}, s{sT2}")
    E(f"s_add_u32 s{sT1}, s{sT1}, {W_Y}")
    E("s_mov_b32 exec_hi, 0")
    E(f"buffer_store_dwordx4 {vr(cG,4)}, v{cT}, {WSR}, s{sT1} offen sc1")
    E("s_mov_b64 exec, -1")

def d2_clear(sc, alt):
    for r in range(4): E(f"v_mov_b32 v{cG+r}, -1")
    E(f"s_lshl_b32 s{sT1}, s{sC}, 11")
    E(f"s_add_u32 s{sT1}, s{sT1}, s{sPoff}")
    if alt: E(f"s_add_u32 s{sT1}, s{sT1}, {ALT}")
    E(f"s_add_u32 s{sT2}, s{sT1}, {LS}")
    for so in (sT1, sT2):
        for o in range(2):
            E(f"buffer_store_dwordx4 {vr(cG,4)}, v{cL16}, {WSR}, s{so} offen offset:{1024*o}{sc}")
    E(f"s_mov_b32 s{sT1}, {LS}")
    E(f"v_lshrrev_b32 v{cT}, 5, v1")
    E(f"v_mul_lo_u32 v{cT}, v{cT}, s{sT1}")
    E(f"v_and_b32 v{cT+1}, 31, v1")
    E(f"v_lshl_add_u32 v{cT}, v{cT+1}, 4, v{cT}")
    E(f"s_lshl_b32 s{sT1}, s{sC}, 9")
    E(f"s_add_u32 s{sT1}, s{sT1}, s{sLOC}")
    if alt: E(f"s_add_u32 s{sT1}, s{sT1}, {ALT}")
    E(f"buffer_store_dwordx4 {vr(cG,4)}, v{cT}, {WSR}, s{sT1} offen{sc}")
E(f"s_cmp_lt_u32 s{sJ}, 24")
E("s_cbranch_scc1 L_D_const")
E(f"s_cmp_lg_u32 s{sWV}, 4")
E("s_cbranch_scc1 L_D2_e1")
d2_clear("", False)
E("s_branch L_D2_init")
L("L_D2_e1")
E(f"s_cmp_lg_u32 s{sWV}, 5")
E("s_cbranch_scc1 L_D2_e2")
clear_global()
E("s_branch L_D2_init")
L("L_D2_e2")
E(f"s_cmp_ge_u32 s{sWV}, 4")
E("s_cbranch_scc1 L_D2_init")
if LATE0 == 0: wo_issue()
sec("dinit")
L("L_D_const")
E("v_mov_b32 v245, 0")
E("v_mov_b32 v244, 0")
srd(R_B, sX, None, 1024)
E(f"v_lshrrev_b32 v{TT}, 1, v3")
E(f"v_and_b32 v{TT+1}, 1, v3")
E(f"v_lshlrev_b32 v{aXIO}, 8, v{TT}")
E(f"v_lshl_add_u32 v{aXIO}, v2, 4, v{aXIO}")
E(f"v_lshl_add_u32 v{aXIO}, v{TT+1}, 3, v{aXIO}")
E(f"buffer_load_dwordx2 {vr(XB,2)}, v{aXIO}, s[{R_B}:{R_B+3}], 0 offen")
E(f"buffer_load_dwordx2 {vr(XB+2,2)}, v{aXIO}, s[{R_B}:{R_B+3}], 0 offen offset:512")
E(f"v_lshlrev_b32 v{vL16}, 4, v1")
E(f"v_lshrrev_b32 v{TT+2}, 2, v2")
E(f"v_and_b32 v{TT+3}, 3, v2")
E(f"v_lshl_add_u32 v{TT+4}, v{TT}, 7, v{TT+2}")
E(f"v_lshl_add_u32 v{TT+4}, v{TT+1}, 2, v{TT+4}")
E(f"v_lshlrev_b32 v{aP16}, 1, v2")
E(f"v_lshrrev_b32 v{aPY}, 5, v1")
E(f"v_lshlrev_b32 v{aPY}, 4, v{aPY}")
E(f"v_add_u32 v{aXS}, {XS_LDS}, v{vL16}")
E(f"v_mov_b32 v{vONE}, 1.0")
for d in range(4): E(f"v_mov_b32 v{ONESB+d}, 0x3f803f80")
E(f"v_and_b32 v{TT+5}, 1, v2")
E(f"v_lshlrev_b32 v{TT+5}, 4, v{TT+5}")
E(f"v_mov_b32 v{TT+6}, 0x3f80")
E(f"v_lshlrev_b32 v{TT+6}, v{TT+5}, v{TT+6}")
E(f"v_lshrrev_b32 v{TT+7}, 1, v2")
E(f"v_lshlrev_b32 v{aGX}, 10, v3")
E(f"v_lshl_add_u32 v{aGX}, v2, 4, v{aGX}")
for d in range(8):
    E(f"v_cmp_eq_u32 vcc, {d}, v{TT+7}")
    E("s_nop 1")
    E(f"v_cndmask_b32 v{SEL0+d}, 0, v{TT+6}, vcc")
E(f"s_mov_b32 s{sFFFE}, 0xfffefffe")
E(f"v_mov_b32 v{vINV}, {f32(1/512)}")
E(f"v_mov_b32 v{vINV+1}, {f32(1e-5)}")
E(f"s_mov_b32 s{sC3}, {f32(-math.log2(math.e))}")
E(f"s_lshl_b32 s{sT1}, s{sPJ}, 5")
E(f"s_lshl_b32 s{sPubG}, s{sG}, 10")
E(f"s_add_u32 s{sPubG}, s{sPubG}, s{sT1}")
E(f"s_lshl_b32 s{sT2}, s{sWV}, 5")
E(f"s_cmp_ge_u32 s{sJ}, 24")
E("s_cbranch_scc1 L_D2_comp")

def ctl_head():
    E("s_waitcnt vmcnt(0)")
    E(f"v_readfirstlane_b32 s{sTAG}, v241")
    for r in range(4): E(f"v_mov_b32 v{cG+r}, -1")
    E(f"s_add_u32 s{sTAG}, s{sTAG}, 1")
E(f"s_lshl_b32 s{sT0}, s{sG}, 10")
E(f"s_lshl_b32 s{sT1}, s{sC}, 7")
E(f"s_add_u32 s{sT0}, s{sT0}, s{sT1}")
E(f"s_sub_u32 s{sT3}, {4194304}, s{sT0}")
srd(R_A, sWQ, f"s{sT0}", f"s{sT3}")
E("v_and_b32 v245, 6, v242")
E("v_xor_b32 v245, v245, v243")
E("v_lshlrev_b32 v244, 13, v242")
E("v_lshl_add_u32 v244, v245, 4, v244")
E(f"s_cmp_ge_u32 s{sWV}, 4")
E("s_cbranch_scc1 L_D1_help")
if TQ: E("s_waitcnt vmcnt(0)")
stamp(1)
E(f"s_lshl_b32 s{sT0}, s{sWV}, 14")
E(f"s_mov_b32 m0, s{sT0}")
E(f"s_lshl_b32 s{sT1}, s{sWV}, 20")
E(f"s_add_u32 s{sT3}, s{sT1}, {16*65536}")
L("L_D1_wql")
E(f"buffer_load_dwordx4 v244, s[{R_A}:{R_A+3}], s{sT1} offen{NTW} lds")
E("s_add_u32 m0, m0, 1024")
E(f"s_add_u32 s{sT1}, s{sT1}, 65536")
E(f"s_cmp_lt_u32 s{sT1}, s{sT3}")
E("s_cbranch_scc1 L_D1_wql")
sec("d1")
E(f"v_bfe_u32 v{TT+5}, v{TT+4}, 1, 2")
E(f"v_xor_b32 v{TT+5}, s{sWV}, v{TT+5}")
E(f"v_lshlrev_b32 v{aTA}, 7, v{TT+4}")
E(f"v_lshl_add_u32 v{aTA}, v{TT+3}, 3, v{aTA}")
E(f"v_lshl_add_u32 v{aTA}, v{TT+5}, 5, v{aTA}")
if not TQ: E("s_waitcnt vmcnt(16)")
E(f"v_lshl_add_u32 v{aTB}, v3, 3, v{TT+2}")
E(f"v_lshlrev_b32 v{aTB}, 7, v{aTB}")
E(f"v_lshl_add_u32 v{aTB}, v{TT+3}, 3, v{aTB}")
E(f"s_add_u32 s{sT2}, s{sT2}, {WB_LDS}")
E(f"v_add_u32 v{aTB}, s{sT2}, v{aTB}")
E(f"v_min_u32 v{aIN}, 6, v2")
E(f"v_lshlrev_b32 v{aIN}, 6, v{aIN}")
E(f"v_lshl_add_u32 v{aIN}, v3, 4, v{aIN}")
E(f"v_readfirstlane_b32 s{sTAG}, v241")
E(f"s_add_u32 s{sPubG}, s{sPubG}, {W_Z}")
E(f"s_mov_b32 s{sZoff}, {W_Z}")
E(f"s_lshl_b32 s{sT1}, s{sPJ}, 5")
E(f"s_add_u32 s{sPub}, s{sLOC}, s{sT1}")
srd(R_B, sOUT, None, 1024)
E(f"s_add_u32 s{sTAG}, s{sTAG}, 1")
for x in stats_fillers(): E(x)
for i in range(8): E(f"v_sub_f32 v{XN+i}, v{XR+i}, v{TT+2}")
for i in range(8): E(f"v_mul_f32 v{XN+i}, v{XN+i}, v{TT+3}")
for d in range(4): E(f"v_cvt_pk_bf16_f32 v{GB+d}, v{XN+2*d}, v{XN+2*d+1}")
E(f"v_mov_b32 v{vT}, 0")
D0 = GB + 12
E(f"v_mov_b32 v{D0+1}, s{sTAG}")
E(f"s_lshl_b32 s{sT1}, s{sPJ}, 6")
E(f"v_lshl_add_u32 v{TT+6}, v2, 2, s{sT1}")
E("s_waitcnt vmcnt(0)")
E("s_barrier")
amp("wq")
stamp(2)
for s in range(16):
    for e in range(2):
        E(f"ds_read_b64_tr_b16 {vr(WA+4*s+2*e,2)}, v{aTA} offset:{32768*e+1024*s}")
matvec(16, GB, WA, [], per=PN, waits=True)
xgroup_sum(plain=True)
E("s_nop 1")
E(f"v_mov_b32_dpp v{TT+5}, v{vT} quad_perm:[1,1,3,3] row_mask:0xf bank_mask:0xf")
E(f"v_cvt_pk_bf16_f32 v{D0}, v{vT}, v{TT+5}")
E("s_mov_b64 exec, 0x5555")
E(f"buffer_store_dwordx2 {vr(D0,2)}, v{TT+6}, {WSR}, s{sQ0} offen")
E("s_mov_b64 exec, -1")
stamp(3, True)
E(f"v_mov_b32 v{TT+7}, 0")
E(f"buffer_load_dword v{GB+20}, v{TT+7}, s[{R_B}:{R_B+3}], 0 offen")
for s in range(16):
    c = "0" if s == 0 else vr(CA,4)
    E(f"v_mfma_f32_16x16x32_bf16 {vr(CA,4)}, {vr(ONESB,4)}, {vr(WA+4*s,4)}, {c}")
E("s_nop 7")
E(f"v_mov_b32 v{vCS}, v{CA}")
E("s_barrier")
amp("st")
read_mode("0xffff")
E(f"s_mov_b32 s{sT1}, 0x5555")
E(f"s_cmp_eq_u32 s{sMODE}, 1")
E(f"s_cselect_b32 exec_lo, 0, s{sT1}")
E("s_mov_b32 exec_hi, 0")
E(f"buffer_store_dwordx2 {vr(D0,2)}, v{TT+6}, {WSR}, s{sQ0B} offen sc1")
E("s_mov_b64 exec, -1")
E("s_barrier")
for s in range(7):
    for e in range(2):
        E(f"ds_read_b64_tr_b16 {vr(WB+4*s+2*e,2)}, v{aTB} offset:{4096*s+512*e}")
E("s_waitcnt lgkmcnt(0)")
E("s_branch L_D1_act")
L("L_D1_q")
mark("d1")
matvec(16, XB, WA, stats_fillers())
xgroup_sum()
E(f"v_cvt_pk_bf16_f32 v{vT}, v{vT}, v{vT}")
E(f"v_min_u32 v{vT}, -2, v{vT}")
pub2("buffer_store_short", f"v{vT}", aP16, sPub, sMA_f, sMA_s, W_Q)
stamp(3, True)
pub_resid(W_X2)
L("L_D1_act")
mark("d1")
AIN = vST
arm(AIN, 4)
E(f"buffer_load_dwordx4 {vr(CA,4)}, v{vL16}, {WSR}, s{sLOC} offen offset:{W_X1} sc1")
E(f"v_mov_b32 v{vT}, 0")
gather1("ga", AIN, aIN, sLOC, W_ACT, TT)
amp("act")
stamp(4, True)
E(f"buffer_load_dwordx4 {vr(CA,4)}, v{vL16}, {WSR}, s{sLOC} offen offset:{W_X1} sc1")
matvec(7, AIN, WB, [], per=PN)
y_publish()
stamp(5, True)
E(f"s_add_u32 s{sLAY}, s{sLAY}, 1")
E(f"s_cmp_lt_u32 s{sLAY}, 2")
E("s_cbranch_scc1 L_D1_z")
E(f"s_cmp_lg_u32 s2, 128")
E("s_cbranch_scc1 L_D1_end")
E(f"s_cmp_lg_u32 s{sWV}, 0")
E("s_cbranch_scc1 L_D1_end")
L("L_D1_z")
mark("d1")
def pre_z():
    E("s_waitcnt vmcnt(1)")
    chk_bf16(CA, TT)
    E("s_cbranch_vccz L_gx1_have")
    gather1("gx1", CA, vL16, sLOC, W_X1, TT, pd=1, slp=0)
    L("L_gx1_have")
    unpack_resid(CA)
def relay_z():
    E(f"v_mov_b32 v{vT}, 0")
    E(f"s_cmp_lg_u32 s{sWV}, 0")
    E(f"s_cbranch_scc1 L_gz_other")
    pre_z()
    gather_X("gz", sZoff, "d1")
    E(f"s_cmp_eq_u32 s{sLAY}, 2")
    E("s_cbranch_scc1 L_D1_out")
    E(f"ds_write_b128 v{aXS}, {vr(XB,4)}")
    E("s_waitcnt lgkmcnt(0)")
    E("s_barrier")
    E(f"s_branch L_gz_join")
    L(f"L_gz_other")
    E("s_waitcnt vmcnt(0)")
    E("s_barrier")
    E(f"ds_read_b128 {vr(XB,4)}, v{aXS}")
    E("s_waitcnt lgkmcnt(0)")
    L("L_gz_join")
relay_z()
stamp(6)
for s_ in (sLOC, sPub, sPubG, sZoff):
    E(f"s_add_u32 s{s_}, s{s_}, {LS}")
E("s_branch L_D1_q")
L("L_D1_out")
E(f"buffer_store_dwordx2 {vr(XB,2)}, v{aXIO}, s[{R_B}:{R_B+3}], 0 offen")
E(f"buffer_store_dwordx2 {vr(XB+2,2)}, v{aXIO}, s[{R_B}:{R_B+3}], 0 offen offset:512")
E(f"v_mov_b32 v{TT}, s{sTAG}")
E(f"v_mov_b32 v{TT+1}, {W_EP}")
E("s_mov_b64 exec, 1")
E(f"buffer_store_dword v{TT}, v{TT+1}, {WSR}, 0 offen")
if AMP:
    E("s_memrealtime s[88:89]")
    E("s_waitcnt lgkmcnt(0)")
    if AMP == "end": E("s_mov_b32 s94, s88")
    E("s_sub_u32 s94, s94, s86")
    if AMP.startswith("x"):
        E(f"v_mov_b32 v253, {W_EP + 64}")
        E(f"buffer_load_dword v252, v253, {WSR}, 0 offen sc1")
        E("s_waitcnt vmcnt(0)")
        E("v_readfirstlane_b32 s94, v252")
        E("s_nop 3")
    E("s_lshl_b32 s94, s94, 2")
    E("s_min_u32 s94, s94, 20000")
    E("s_add_u32 s94, s94, s88")
    L("L_amp_spin")
    E("s_memrealtime s[88:89]")
    E("s_waitcnt lgkmcnt(0)")
    E("s_sub_u32 s89, s94, s88")
    E("s_cmp_gt_i32 s89, 0")
    E("s_cbranch_scc1 L_amp_spin")
if PROF:
    stamp(7)
    E("s_waitcnt vmcnt(0)")
    stamp(8)
L("L_D1_end")
stamp_flush(0, 0, (128, 4, [60, 2, 3, 4, 6, 20, 8]))
E("s_endpgm")
sec("help")
L("L_D1_help")
E(f"s_mul_i32 s{sT0}, s{sG}, {224*1024}")
E(f"s_lshl_b32 s{sT1}, s{sC}, 7")
E(f"s_add_u32 s{sT0}, s{sT0}, s{sT1}")
srd(R_B, sW2, f"s{sT0}", 224*1024 - 896)
E("v_lshlrev_b32 v244, 10, v242")
E("v_lshl_add_u32 v244, v243, 4, v244")
E(f"s_cmp_eq_u32 s{sWV}, 4")
E("s_cbranch_scc1 L_D1_ctl")
for u in range(3):
    E(f"s_cmp_lg_u32 s{sWV}, {5+u}")
    E(f"s_cbranch_scc1 L_D1_wm{u}")
    warm("d1", u, 3)
    L(f"L_D1_wm{u}")
E("s_branch L_D1_bq")
L("L_D1_ctl")
E(f"v_lshlrev_b32 v{cT}, 7, v2")
E(f"buffer_load_dword v240, v{cT}, {WSR}, s{sQ0} offen sc1")
ctl_head()
xc_publish()
L("L_D1_bq")
E("s_barrier")
E(f"s_cmp_lg_u32 s{sWV}, 4")
E("s_cbranch_scc1 L_D1_w2")
first_gather("d1x", False, None)
stamp(3)
E(f"v_lshlrev_b32 v{cT}, 3, v1")
E(f"s_cmp_eq_u32 s{sMODE}, 1")
E("s_cbranch_scc0 L_D1_b2")
L("L_D1_st")
E(f"buffer_load_dword v{cT+1}, v{cT}, {WSR}, s{sLOC} offen offset:{W_ST} sc1")
E("s_waitcnt vmcnt(0)")
E(f"v_cmp_ne_u32 vcc, -1, v{cT+1}")
E("s_cbranch_vccnz L_D1_b2")
E("s_sleep 8")
spin_check("L_D1_st")
L("L_D1_b2")
E("s_waitcnt lgkmcnt(0)")
L("L_D1_w2")
E("s_barrier")
E(f"s_sub_u32 s{sT0}, s{sWV}, 4")
E(f"s_mul_i32 s{sT1}, s{sT0}, 7168")
E(f"s_add_u32 m0, s{sT1}, {WB_LDS}")
E(f"s_mul_i32 s{sT1}, s{sT0}, {56*1024}")
for i in range(7):
    E(f"buffer_load_dwordx4 v244, s[{R_B}:{R_B+3}], s{sT1} offen{NTW} lds")
    if i < 6:
        E("s_add_u32 m0, m0, 1024")
        E(f"s_add_u32 s{sT1}, s{sT1}, 8192")
E("s_waitcnt vmcnt(0) lgkmcnt(0)")
stamp(4)
E("s_barrier")
stamp_flush(4, 1)
E("s_endpgm")

L("L_D2_init")
E(f"s_min_u32 s{sT1}, s{sC}, 6")
E(f"s_lshl_b32 s{sT1}, s{sT1}, 6")
E(f"s_mul_i32 s{sT0}, s{sG}, 448")
E(f"s_add_u32 s{sS1}, s{sT0}, s{sT1}")
E(f"s_sub_u32 s{sT3}, {1835008}, s{sS1}")
srd(R_B, sW1, f"s{sS1}", f"s{sT3}")
srd(R_C, sDBG, None, 256)
E(f"s_cmp_eq_u32 s{sWV}, 4")
E("s_cbranch_scc1 L_D2_ctl")
E(f"s_cmp_eq_u32 s{sWV}, 5")
E("s_cbranch_scc1 L_D2_flag")
E("v_lshrrev_b32 v245, 2, v1")
E("v_mul_u32_u24 v245, 3584, v245")
E("v_and_b32 v246, 3, v1")
E("v_and_b32 v247, 1, v3")
E("v_xor_b32 v246, v246, v247")
E("v_lshl_add_u32 v244, v246, 4, v245")
E("v_xor_b32 v246, 2, v246")
E("v_lshl_add_u32 v245, v246, 4, v245")
E(f"s_sub_u32 s{sT0}, s{sWV}, 6")
E(f"s_lshl_b32 s{sT1}, s{sT0}, 14")
E(f"s_add_u32 m0, s{sT1}, {WB_LDS}")
E(f"s_mul_i32 s{sT1}, s{sT0}, {256*3584}")
if LATE0 >= 2 or W1L:
    for u in range(2):
        E(f"s_cmp_lg_u32 s{sWV}, {6+u}")
        E(f"s_cbranch_scc1 L_D2_wm{u}")
        warm("d2", u, 2)
        L(f"L_D2_wm{u}")
    E("s_barrier")
for i in range(16):
    E(f"buffer_load_dwordx4 v{244 + (i//4) % 2}, s[{R_B}:{R_B+3}], s{sT1} offen{NTW} lds")
    if i < 15:
        E("s_add_u32 m0, m0, 1024")
        E(f"s_add_u32 s{sT1}, s{sT1}, {16*3584}")
if not (LATE0 >= 2 or W1L):
    for u in range(2):
        E(f"s_cmp_lg_u32 s{sWV}, {6+u}")
        E(f"s_cbranch_scc1 L_D2_wm{u}")
        warm("d2", u, 2)
        L(f"L_D2_wm{u}")
E("s_waitcnt vmcnt(0)")
stamp(4)
E("s_barrier")
stamp_flush(6, 2)
E("s_endpgm")
L("L_D2_flag")
E(f"s_lshl_b32 s{sT1}, s{sG}, 5")
E(f"s_lshl_b32 s{sT2}, s{sC}, 2")
E(f"s_add_u32 s{sT1}, s{sT1}, s{sT2}")
E(f"v_mov_b32 v{cT}, 1")
E(f"v_mov_b32 v{cT+1}, s{sT1}")
E(f"v_lshlrev_b32 v{cT+2}, 2, v1")
E("s_waitcnt vmcnt(0)")
E("s_mov_b64 exec, 1")
E(f"buffer_store_dword v{cT}, v{cT+1}, s[{R_C}:{R_C+3}], 0 offen sc1")
E("s_mov_b64 exec, -1")
if LATE0 >= 2 or W1L: E("s_barrier")
E("s_waitcnt vmcnt(0)")
L("L_D2_fpoll")
E(f"buffer_load_dword v{cT+3}, v{cT+2}, s[{R_C}:{R_C+3}], 0 offen sc1")
E("s_waitcnt vmcnt(0)")
E(f"v_cmp_ne_u32 vcc, 1, v{cT+3}")
E("s_cbranch_vccz L_D2_fok")
E("s_sleep 8")
spin_check("L_D2_fpoll")
L("L_D2_fok")
E("s_barrier")
E("s_endpgm")
L("L_D2_ctl")
ctl_head()
stamp(1)
xc_publish()
first_gather("d2x", False, lambda: d2_clear(" sc1", True))
stamp(2)
if LATE0 == 3:
    E(f"v_lshlrev_b32 v{cT}, {'3' if STW else '2'}, v1")
    E(f"s_cmp_eq_u32 s{sMODE}, 1")
    E("s_cbranch_scc0 L_D2_go")
    L("L_D2_st")
    if STW:
        E(f"buffer_load_dword v{cT+1}, v{cT}, {WSR}, s{sLOC} offen offset:{W_ST} sc1")
        E("s_waitcnt vmcnt(0)")
        E(f"v_cmp_ne_u32 vcc, -1, v{cT+1}")
    E("s_cbranch_vccnz L_D2_go")
    E("s_sleep 2")
    spin_check("L_D2_st")
    L("L_D2_go")
    stamp(3)
E("s_waitcnt lgkmcnt(0)")
if LATE0 >= 2 or W1L: E("s_barrier")
E("s_barrier")
stamp_flush(4, 1)
E("s_endpgm")
sec("d2")
L("L_D2_comp")
E(f"s_min_u32 s{sT1}, s{sC}, 6")
E(f"s_lshl_b32 s{sT1}, s{sT1}, 6")
E(f"s_mul_i32 s{sT0}, s{sG}, 448")
E(f"s_add_u32 s{sS1}, s{sT0}, s{sT1}")
if LATE0: wo_issue()
if W1L and LATE0 < 2: E("s_barrier")
srd(R_C, sB1, None, 3584)
E(f"v_and_b32 v{TT+5}, 7, v2")
E(f"v_lshlrev_b32 v{TT+5}, 1, v{TT+5}")
E(f"s_lshl_b32 s{sT1}, s{sWV}, 4")
E(f"s_add_u32 s{sT0}, s{sS1}, s{sT1}")
E(f"buffer_load_ushort v{vB1}, v{TT+5}, s[{R_C}:{R_C+3}], s{sT0} offen")
E(f"v_lshrrev_b32 v{TT+5}, 1, v{TT+2}")
E(f"v_lshl_add_u32 v{TT+5}, v{TT+1}, 1, v{TT+5}")
E(f"v_xor_b32 v{TT+5}, s{sWV}, v{TT+5}")
E(f"v_lshl_add_u32 v{aTA}, v3, 7, v{TT+2}")
E(f"v_lshlrev_b32 v{aTA}, 7, v{aTA}")
E(f"v_lshl_add_u32 v{aTA}, v{TT+3}, 3, v{aTA}")
E(f"v_lshl_add_u32 v{aTA}, v{TT+5}, 5, v{aTA}")
E(f"v_bfe_u32 v{TT+5}, v2, 1, 1")
E(f"v_lshl_add_u32 v{TT+6}, v{TT+5}, 6, v{TT+4}")
E(f"v_lshl_add_u32 v{TT+5}, v{TT+5}, 1, v{TT+1}")
E(f"v_xor_b32 v{TT+5}, s{sWV}, v{TT+5}")
E(f"v_lshlrev_b32 v{aTB}, 6, v{TT+6}")
E(f"v_lshl_add_u32 v{aTB}, v{TT+5}, 4, v{aTB}")
E(f"v_and_b32 v{TT+5}, 1, v2")
E(f"v_lshl_add_u32 v{aTB}, v{TT+5}, 3, v{aTB}")
E(f"v_add_u32 v{aTB}, {WB_LDS}, v{aTB}")
E(f"s_lshl_b32 s{sT1}, s{sWV}, 7")
E(f"v_lshlrev_b32 v{aST}, 5, v3")
E(f"v_add_u32 v{aST}, s{sT1}, v{aST}")
E(f"v_lshlrev_b32 v{aOS}, 4, v2")
E(f"v_lshl_add_u32 v{aOS}, v{TT+1}, 3, v{aOS}")
E(f"v_lshl_add_u32 v{aOS}, v{TT}, 2, v{aOS}")
E(f"s_lshl_b32 s{sT1}, s{sWV}, 8")
E(f"s_add_u32 s{sT1}, s{sT1}, {OS_LDS}")
E(f"v_add_u32 v{aOS}, s{sT1}, v{aOS}")
E(f"v_add_u32 v{aIN}, {OS_LDS}, v{vL16}")
E(f"v_lshlrev_b32 v{TT+5}, 4, v{TT+5}")
E(f"v_mov_b32 v{TT+6}, 0xffff")
E(f"v_lshlrev_b32 v{TT+6}, v{TT+5}, v{TT+6}")
E(f"v_bfe_u32 v{TT+7}, v2, 1, 2")
for d in range(4):
    E(f"v_cmp_eq_u32 vcc, {d}, v{TT+7}")
    E("s_nop 1")
    E(f"v_cndmask_b32 v{MK+d}, 0, v{TT+6}, vcc")
E(f"v_lshrrev_b32 v{vFLG}, 3, v2")
E(f"v_cmp_eq_u32 vcc, v{vFLG}, v{TT}")
E(f"v_cvt_f32_u32 v{vFLG}, v{vFLG}")
E("s_nop 0")
E(f"v_cndmask_b32 v{vVAL}, 0, -1, vcc")
E(f"s_lshl_b32 s{sT1}, s{sWV}, 12")
E(f"s_add_u32 s{sPoff}, s{sPoff}, s{sT1}")
E(f"s_lshl_b32 s{sT1}, s{sPJ}, 4")
E(f"s_add_u32 s{sPub}, s{sLOC}, s{sT1}")
E(f"s_add_u32 s{sPubG}, s{sPubG}, {W_Y}")
E(f"s_mov_b32 s{sYoff}, {W_Y}")
E(f"s_mov_b32 s{sC2}, 0")
E("s_waitcnt vmcnt(0)")
unpack_resid(XB)
E(f"v_lshlrev_b32 v{vB1}, 16, v{vB1}")
stamp(1)
E("s_barrier")
stamp(2)
for s in range(16):
    for e in range(2):
        E(f"ds_read_b64_tr_b16 {vr(WA+4*s+2*e,2)}, v{aTA} offset:{1024*s+512*e}")
for s in range(8):
    for e in range(2):
        E(f"ds_read_b64_tr_b16 {vr(WB+4*s+2*e,2)}, v{aTB} offset:{16384*e+512*s}")
read_mode("0xff", 28)
for s in range(8):
    c = "0" if s == 0 else vr(ACC,4)
    E(f"v_mfma_f32_16x16x32_bf16 {vr(ACC,4)}, {vr(ONESB,4)}, {vr(WB+4*s,4)}, {c}")
E("s_nop 7")
E(f"v_add_f32_dpp v{vCS}, v{ACC}, v{ACC} row_ror:8 row_mask:0xf bank_mask:0xf")
L("L_D2_loop")
mark("d2")
def p_loads():
    for i in range(4):
        E(f"buffer_load_dwordx4 {vr(GB+4*i,4)}, v{vL16}, {WSR}, s{sPoff} offen offset:{1024*i} sc1")
arm(vST, 8)
p_loads()
L("L_gs_poll")
E(f"buffer_load_dwordx4 {vr(vST,4)}, v{aST}, {WSR}, s{sLOC} offen offset:{W_ST} sc1")
E(f"buffer_load_dwordx4 {vr(vST+4,4)}, v{aST}, {WSR}, s{sLOC} offen offset:{W_ST+16} sc1")
E(f"s_waitcnt vmcnt({2*(PD-1)})")
E(f"v_max3_u32 v{TT}, v{vST}, v{vST+1}, v{vST+2}")
E(f"v_max3_u32 v{TT+1}, v{vST+3}, v{vST+4}, v{vST+5}")
E(f"v_max3_u32 v{TT}, v{TT}, v{vST+6}, v{vST+7}")
E(f"v_max_u32 v{TT}, v{TT}, v{TT+1}")
E(f"v_cmp_eq_u32 vcc, -1, v{TT}")
E("s_cbranch_vccz L_gs_ok")
if SLP: E(f"s_sleep {SLP}")
spin_check("L_gs_poll")
L("L_gs_ok")
p_loads()
stamp(3, True)
vM, vU, vLs = TT, TT+1, TT+2
WT = TT + 3
AW = GB + 16
E(f"v_max3_f32 v{vM}, v{vST}, v{vST+2}, v{vST+4}")
E(f"v_max_f32 v{vM}, v{vM}, v{vST+6}")
for sw in ("16", "32"):
    E(f"v_mov_b32 v{vU}, v{vM}")
    E("s_nop 1")
    E(f"v_permlane{sw}_swap_b32 v{vM}, v{vU}")
    E(f"v_max_f32 v{vM}, v{vM}, v{vU}")
for t in range(4): E(f"v_sub_f32 v{WT+t}, v{vST+2*t}, v{vM}")
for t in range(4): E(f"v_exp_f32 v{WT+t}, v{WT+t}")
E("s_nop 0")
E(f"v_mul_f32 v{vLs}, v{WT}, v{vST+1}")
for t in range(1, 4): E(f"v_fmac_f32 v{vLs}, v{WT+t}, v{vST+2*t+1}")
for sw in ("16", "32"):
    E(f"v_mov_b32 v{vU}, v{vLs}")
    E("s_nop 1")
    E(f"v_permlane{sw}_swap_b32 v{vLs}, v{vU}")
    E(f"v_add_f32 v{vLs}, v{vLs}, v{vU}")
E(f"v_rcp_f32 v{vLs}, v{vLs}")
p_loads()
for t in range(4): E(f"v_mul_f32 v{WT+t}, v{WT+t}, v{vLs}")
for t in range(4): E(f"v_cvt_pk_bf16_f32 v{WT+4+t}, v{WT+t}, v{WT+t}")
for t in range(4): E(f"v_and_b32 v{WT+4+t}, 0xffff0000, v{WT+4+t}")
for t in range(4): E(f"v_fma_f32 v{WT+t}, -v{WT+4+t}, v{vFLG}, v{WT+t}")
for t in range(4): E(f"v_cvt_pk_bf16_f32 v{WT+t}, v{WT+t}, v{WT+t}")
for t in range(4):
    for d in range(4): E(f"v_and_b32 v{AW+4*t+d}, v{MK+d}, v{WT+t}")
E("s_branch L_gp_use")
L("L_gp_nan")
E(f"s_sub_u32 s{sSPIN}, s{sSPIN}, 1")
E("s_cbranch_scc1 L_exit")
E(f"s_and_b32 s{sT1}, s{sSPIN}, 15")
E("s_cbranch_scc0 L_gp_retry")
L("L_gp_again")
p_loads()
L("L_gp_use")
E("s_waitcnt vmcnt(4)")
for t in range(4):
    E(f"v_mfma_f32_16x16x32_bf16 {vr(CA,4)}, {vr(AW+4*t,4)}, {vr(GB+4*t,4)}, {'0' if t == 0 else vr(CA,4)}")
E("s_nop 7")
E(f"v_cmp_u_f32 vcc, v{CA}, v{CA}")
E(f"v_permlane32_swap_b32 v{CA}, v{CA+2}")
E(f"v_permlane32_swap_b32 v{CA+1}, v{CA+3}")
E("s_cbranch_vccnz L_gp_nan")
L("L_gp_ok")
E(f"v_add_f32 v{CA}, v{CA}, v{CA+2}")
E(f"v_add_f32 v{CA+1}, v{CA+1}, v{CA+3}")
E(f"v_cvt_pk_bf16_f32 v{CA}, v{CA}, v{CA+1}")
E(f"ds_write_b32 v{aOS}, v{CA}")
E(f"v_mov_b32 v{vT}, 0")
stamp(4, True)
mark("d2")
E("s_waitcnt lgkmcnt(0)")
E("s_barrier")
E(f"ds_read_b128 {vr(XB,4)}, v{aIN}")
E(f"buffer_load_dwordx4 {vr(CA,4)}, v{vL16}, {WSR}, s{sLOC} offen offset:{W_X2} sc1")
E("s_waitcnt lgkmcnt(0)")
matvec(16, XB, WA, [], per=PN)
y_publish()
stamp(5, True)
mark("d2")
def pre_y():
    E(f"s_cmp_eq_u32 s{sLAY}, 0")
    E("s_cbranch_scc1 L_D2_havex")
    E("s_waitcnt vmcnt(1)")
    chk_bf16(CA, TT)
    E("s_cbranch_vccz L_gx2_have")
    gather1("gx2", CA, vL16, sLOC, W_X2, TT, pd=1, slp=0)
    L("L_gx2_have")
    unpack_resid(CA)
    L("L_D2_havex")
relay_X("gy", sYoff, pre_y)
stamp(6, True)
E(f"s_cmp_eq_u32 s{sC}, 7")
E("s_cbranch_scc1 L_D2_x1")
matvec(8, XB, WB, stats_fillers(), rows=[(0x5, 0xf, [0,1,2,3]), (0xa, 0xf, [4,5,6,7])], per=PER+2)
mark("d2")
xgroup_sum(True)
h, u, a, b = vT, TT+5, TT+6, TT+7
E(f"v_add_f32 v{h}, v{h}, v{vB1}")
E(f"v_mul_f32 v{u}, s{sC3}, |v{h}|")
E(f"v_exp_f32 v{u}, v{u}")
E(f"v_cmp_le_f32 vcc, 0, v{h}")
E(f"v_add_f32 v{b}, 2.0, v{u}")
E(f"v_fma_f32 v{a}, v{u}, 2.0, 1.0")
E(f"v_mul_f32 v{b}, v{u}, v{b}")
E(f"v_mul_f32 v{u}, v{u}, v{u}")
E(f"v_cndmask_b32 v{a}, v{b}, v{a}, vcc")
E(f"v_cndmask_b32 v{u}, 1.0, v{u}, vcc")
E(f"v_fma_f32 v{b}, v{u}, 2.0, v{a}")
E(f"v_rcp_f32 v{b}, v{b}")
E(f"v_mul_f32 v{h}, v{h}, v{a}")
E(f"v_mul_f32 v{h}, v{h}, v{b}")
E(f"v_cvt_pk_bf16_f32 v{h}, v{h}, v{h}")
E(f"v_min_u32 v{h}, -2, v{h}")
pub2("buffer_store_short", f"v{h}", aP16, sPub, sMA_f, sMA_s, W_ACT)
stamp(7, True)
L("L_D2_next")
for s_ in (sLOC, sPoff, sPub, sPubG, sYoff):
    E(f"s_add_u32 s{s_}, s{s_}, {LS}")
E(f"s_add_u32 s{sLAY}, s{sLAY}, 1")
E(f"s_cmp_lt_u32 s{sLAY}, 2")
E("s_cbranch_scc1 L_D2_loop")
stamp_flush(0, 0)
E("s_endpgm")
L("L_D2_x1")
pub_resid(W_X1)
unpack_resid(XB)
E("s_branch L_D2_next")
sec("cold")
L("L_exit")
E("s_endpgm")
L("L_gp_retry")
for i in range(0, 16, 2): E(f"v_pk_max_u16 v{ACC+i//2}, v{GB+i}, v{GB+i+1}")
for i in range(0, 8, 2): E(f"v_pk_max_u16 v{ACC+i//2}, v{ACC+i}, v{ACC+i+1}")
chk_bf16(ACC, TT)
E("s_cbranch_vccnz L_gp_again")
for t in range(4):
    E(f"v_mfma_f32_16x16x32_bf16 {vr(CA,4)}, {vr(AW+4*t,4)}, {vr(GB+4*t,4)}, {'0' if t == 0 else vr(CA,4)}")
E("s_nop 9")
E(f"v_permlane32_swap_b32 v{CA}, v{CA+2}")
E(f"v_permlane32_swap_b32 v{CA+1}, v{CA+3}")
E("s_branch L_gp_ok")
for b_ in retry_blocks: b_()
L("L_code_end")

out = [open("cdna_kernels/" + NAME + ".s.ref").read().split("; Override")[0].rstrip("\n"),
       f"; @launch grid=(256,1,1) block=(512,1,1) lds={LDS_BYTES}", '.amdgcn_target "amdgcn-amd-amdhsa--gfx950"', ".text",
       f".globl {NAME}_kernel", ".p2align 8", f".type {NAME}_kernel,@function"]
for k in ORDER:
    for x in secs[k]:
        if isinstance(x, tuple) and x[0] == "MARK":
            _, role, i = x
            n = wstep[role]
            out.append("    s_cbranch_execz " + (marks[role][i + n] if i + n < len(marks[role]) else f"L_wd_{role}{i % n}"))
        elif isinstance(x, tuple):
            _, role, first, step = x
            assert first < len(marks[role])
            out += ["    s_mov_b64 exec, 0", f"    s_branch {marks[role][first]}", f"L_wd_{role}{first}:", "    s_mov_b64 exec, -1"]
        else: out.append(x)
out.append('.section .rodata,"a"')
out.append(".p2align 6")
out.append(f".amdhsa_kernel {NAME}_kernel")
out.append("  .amdhsa_next_free_vgpr 256")
out.append("  .amdhsa_next_free_sgpr 96")
out.append("  .amdhsa_accum_offset 256")
out.append("  .amdhsa_group_segment_fixed_size 0")
out.append("  .amdhsa_kernarg_size 96")
out.append("  .amdhsa_user_sgpr_count 2")
out.append("  .amdhsa_user_sgpr_kernarg_segment_ptr 1")
out.append("  .amdhsa_system_sgpr_workgroup_id_x 1")
out.append("  .amdhsa_float_denorm_mode_32 3")
out.append(".end_amdhsa_kernel")
open(sys.argv[1], "w").write("\n".join(out) + "\n")
```

```python
import sys, math, struct
PROF = int(sys.argv[2]) if len(sys.argv) > 2 else 0
OPT = dict(a.split("=") for a in sys.argv[3:])
THR = int(OPT.get("thr", 6))
ACK = int(OPT.get("ack", 1))
PER = int(OPT.get("per", 3))
PD = int(OPT.get("pd", 4))
SLP = int(OPT.get("slp", 1))
LATE0 = int(OPT.get("late0", 0))
GP = int(OPT.get("gp", 1))
GSL = int(OPT.get("gsl", 0))
THV = int(OPT.get("thv", 8))
GD = int(OPT.get("gd", 0))
fl = lambda k, d: {"0": "", "1": " nt", "2": " sc1", "3": " sc0 sc1", "4": " sc1 nt"}[OPT.get(k, d)]
NTQ, NTW, NTK, NTV = fl("ntq", "0"), fl("ntw", "0"), fl("ntk", "1"), fl("ntv", "0")
TQ = int(OPT.get("tq", 1))
MARKGAP = int(OPT.get("gap", 768))
CPF = int(OPT.get("cpf", 1))
W1L = int(OPT.get("w1l", 1))
STW = 1
REORD = int(OPT.get("reord", 0))
PAD = int(OPT.get("pad", 1))
PN = int(OPT.get("pn", 4))
WARM = int(OPT.get("warm", 0))
NTT = fl("ntt", "0")
GFL = fl("gfl", "2")
SFL = {"2": " sc1", "3": " sc0 sc1", "4": " sc1 nt"}[OPT.get("sfl", "2")]
NAME = "interleave_layers__sliding_block_cached__dense_activation_mish__decode"
import re
ORDER = ["entry", "dinit", "d1", "actl", "a", "d2", "help", "cold"]
secs = {k: [] for k in ORDER}
cur = ["entry"]
since = {k: 0 for k in ORDER}
unsafe = [False]
marks = {k: [] for k in ORDER}
WARMED = ("d1", "a", "d2")
BIG = ("v_mfma", "v_pk_", "v_fma_", "v_max3", "v_or3", "v_add3", "v_lshl_add", "v_bfe", "v_mul_lo", "v_cvt_pk", "v_readlane", "v_writelane",
       "ds_", "buffer_", "global_", "s_load", "s_memrealtime")
def isize(t):
    if t.startswith(BIG) or "_dpp" in t or "|v" in t or (t.startswith(("v_cmp", "v_cndmask")) and "s[" in t): return 8
    ops = t.split(None, 1)[1] if " " in t else ""
    if t.startswith(("s_waitcnt", "s_nop", "s_sleep", "s_branch", "s_cbranch", "s_call", "s_getreg", "s_setprio")): return 4
    for tok in re.split(r"[,\s]+", ops):
        if re.fullmatch(r"0x[0-9a-f]+|\d+", tok) and int(tok, 0) > 64: return 8
    return 4
def sec(name): cur[0] = name
def put_mark():
    k = cur[0]
    marks[k].append(f"L_wm_{k}{len(marks[k])}")
    secs[k].append(marks[k][-1] + ":")
    secs[k].append(("MARK", k, len(marks[k]) - 1))
    since[k] = 4
def E(s=""):
    k = cur[0]
    if WARM and k in WARMED and not unsafe[0] and (since[k] >= MARKGAP or not marks[k]): put_mark()
    secs[k].append("    " + s)
    since[k] += isize(s)
    if re.match(r"s_\w+ exec", s): unsafe[0] = s != "s_mov_b64 exec, -1"
def L(s): secs[cur[0]].append(s + ":")
def vr(a, n=1): return f"v{a}" if n == 1 else f"v[{a}:{a+n-1}]"
def f32(x): return hex(struct.unpack("<I", struct.pack("<f", x))[0])

K_LDS, V_LDS = 0, 65536
WA_LDS, WB_LDS = 0, 65536
QS_LDS, PX_LDS, SX_LDS, FL_LDS = 131072, 132608, 140800, 141312
OS_LDS, XS_LDS = QS_LDS, PX_LDS
LDS_BYTES = 141824
LS = 0x30000
W_Q, W_X2, W_X1, W_ST, W_ACT = 0, 1024, 2048, 3072, 3584
W_Y, W_Z, W_P = 32768, 40960, 65536
W_Q0 = 2 * LS
W_Q0B = 32768
W_EP = W_Q0 + 65536
ALT = 0x80000
WS_USED = ALT + 2 * LS
PROF_OFF = 0x300000
WS_REC = PROF_OFF + 256 * 1024

sX, sK, sV, sWQ, sWO, sBX, sW1, sB1 = 8, 10, 12, 14, 16, 18, 20, 22
sW2, sOUT, sDBG, sWS = 24, 26, 28, 30
sG, sJ, sWV, sC, sPJ = 3, 4, 5, 6, 7
R_WS, R_A, R_B, R_C = 32, 36, 40, 44
sT0, sT1, sT2, sT3 = 48, 49, 50, 51
sLOC, sLAY = 52, 53
sYoff, sZoff, sPoff = 54, 55, 56
sSPIN = 57
sRET = 58
sMA_f, sMA_s, sMB_f, sMB_s, sMC_f, sMC_s = 60, 62, 64, 66, 68, 70
sTAG, sXCC, sQ0, sQ0B = 72, 73, 74, 75
sFFFE = 76
sC1, sC2, sC3 = 77, 78, 79
sS1, sS2, sPIV = 80, 81, 82
sPub, sPubG = 83, 84
sST = 88
sPe, sLe, sMODE = 90, 91, 92
SPIN0 = 0x200000
WSR = f"s[{R_WS}:{R_WS+3}]"

def srd(r, base, add_lo=None, rec=None):
    if add_lo is None:
        E(f"s_mov_b32 s{r}, s{base}")
        E(f"s_and_b32 s{r+1}, s{base+1}, 0xffff")
    else:
        E(f"s_add_u32 s{r}, s{base}, {add_lo}")
        E(f"s_addc_u32 s{r+1}, s{base+1}, 0")
        E(f"s_and_b32 s{r+1}, s{r+1}, 0xffff")
    E(f"s_mov_b32 s{r+2}, {rec}")
    E(f"s_mov_b32 s{r+3}, 0x00020000")

V_STAMP = 254
ROLE = ["a"]
def stamp(idx, layer_dep=False):
    if not PROF: return
    if PROF == 9 and not (idx == 8 and not layer_dep) and not (idx == 6 and layer_dep and ROLE[0] == "a" and "pt" not in OPT) and OPT.get("pt") != f"{cur[0]}_{idx}": return
    E(f"s_memrealtime s[{sST}:{sST+1}]")
    E("s_waitcnt lgkmcnt(0)")
    if layer_dep:
        E(f"s_lshl_b32 s{sT3}, s{sLAY}, 4")
        E(f"s_add_u32 s{sT3}, s{sT3}, {idx}")
        E(f"s_mov_b32 m0, s{sT3}")
        E("s_nop 0")
        E(f"v_writelane_b32 v{V_STAMP}, s{sST}, m0")
    else:
        E(f"v_writelane_b32 v{V_STAMP}, s{sST}, {idx}")
AMP = OPT.get("amp")
def amp(name):
    if AMP != name: return
    E(f"s_cmp_eq_u32 s{sLAY}, {OPT.get('amplay', '0')}")
    E(f"s_cbranch_scc0 L_amp_{name}")
    E("s_memrealtime s[94:95]")
    E("s_waitcnt lgkmcnt(0)")
    L(f"L_amp_{name}")
def ampx(name, wave):
    if AMP != name: return
    E(f"s_cmp_eq_u32 s2, {OPT.get('ampwg', '0')}")
    E(f"s_cbranch_scc0 L_amp_{name}")
    E(f"s_cmp_eq_u32 s{sWV}, {wave}")
    E(f"s_cbranch_scc0 L_amp_{name}")
    E(f"s_cmp_eq_u32 s{sLAY}, 0")
    E(f"s_cbranch_scc0 L_amp_{name}")
    E("s_memrealtime s[94:95]")
    E("s_waitcnt lgkmcnt(0)")
    if name == "xs": E("s_mov_b32 s94, s86")
    E("v_mov_b32 v252, s94")
    E(f"v_mov_b32 v253, {W_EP + 64}")
    E(f"buffer_store_dword v252, v253, {WSR}, 0 offen sc1")
    L(f"L_amp_{name}")
def stamp_flush(wave, slot, dbg=None):
    if not PROF: return
    E(f"s_cmp_lg_u32 s{sWV}, {wave}")
    E("s_cbranch_scc1 L_exit")
    E("s_mov_b64 exec, -1")
    if dbg and "dbg" in OPT:
        wg, off, idx = dbg
        for i, x in enumerate(idx):
            E(f"v_readlane_b32 s{sT0}, v{V_STAMP}, {x}")
            E("s_nop 3")
            E(f"v_writelane_b32 v{V_STAMP-2}, s{sT0}, {i}")
        srd(R_A, sDBG, None, 256)
        E(f"v_lshlrev_b32 v{V_STAMP-1}, 2, v1")
        E(f"s_cmp_eq_u32 s2, {wg}")
        E(f"s_cselect_b32 exec_lo, {(1 << len(idx)) - 1}, 0")
        E("s_mov_b32 exec_hi, 0")
        E(f"buffer_store_dword v{V_STAMP-2}, v{V_STAMP-1}, s[{R_A}:{R_A+3}], 0 offen offset:{off}")
        E("s_mov_b64 exec, -1")
    E(f"s_lshl_b32 s{sT0}, s2, 10")
    E(f"s_add_u32 s{sT0}, s{sT0}, {PROF_OFF + slot*256}")
    E(f"v_lshlrev_b32 v{V_STAMP-1}, 2, v1")
    E(f"buffer_store_dword v{V_STAMP}, v{V_STAMP-1}, {WSR}, s{sT0} offen")

wstep = {}
def mark(role): pass
def warm(role, first=0, step=1):
    if WARM:
        secs[cur[0]].append(("WARM", role, first, step))
        assert wstep.setdefault(role, step) == step

def spin_check(fail_label):
    E(f"s_sub_u32 s{sSPIN}, s{sSPIN}, 1")
    E(f"s_cbranch_scc1 L_exit")
    E(f"s_branch {fail_label}")

def chk_bf16(v, t):
    E(f"v_pk_max_u16 v{t}, v{v}, v{v+1}")
    E(f"v_pk_max_u16 v{t+1}, v{v+2}, v{v+3}")
    E(f"v_pk_max_u16 v{t}, v{t}, v{t+1}")
    E(f"v_pk_max_u16 v{t}, v{t}, v{t} op_sel:[0,1] op_sel_hi:[1,0]")
    E(f"v_cmp_eq_u32 vcc, -1, v{t}")

def pub2(op, data, addr, soff, mf, ms, imm=0):
    o = f" offset:{imm}" if imm else ""
    E(f"s_mov_b64 exec, s[{mf}:{mf+1}]")
    E(f"{op} {data}, v{addr}, {WSR}, s{soff} offen{o}")
    E(f"s_mov_b64 exec, s[{ms}:{ms+1}]")
    E(f"{op} {data}, v{addr}, {WSR}, s{soff} offen{o} sc1")
    E("s_mov_b64 exec, -1")

def masks(mf, ms, lo, hi):
    E(f"s_cselect_b32 s{mf}, {lo}, 0")
    E(f"s_cselect_b32 s{mf+1}, {hi}, 0")
    E(f"s_cselect_b32 s{ms}, 0, {lo}")
    E(f"s_cselect_b32 s{ms+1}, 0, {hi}")

def arm(dst, n):
    for r in range(n): E(f"v_mov_b32 v{dst+r}, -1")

def gather1(tag, dst, addr, soff, imm, t, pd=None, slp=None):
    pd = PD if pd is None else pd
    slp = SLP if slp is None else slp
    L(f"L_{tag}_poll")
    E(f"buffer_load_dwordx4 {vr(dst,4)}, v{addr}, {WSR}, s{soff} offen offset:{imm} sc1")
    E(f"s_waitcnt vmcnt({pd-1})")
    chk_bf16(dst, t)
    E(f"s_cbranch_vccz L_{tag}_ok")
    if slp: E(f"s_sleep {slp}")
    spin_check(f"L_{tag}_poll")
    L(f"L_{tag}_ok")

cD, cA, cXa, cG, cT, cL16 = 208, 210, 211, 212, 224, 232
def xc_publish():
    E(f"s_getreg_b32 s{sXCC}, hwreg(HW_REG_XCC_ID, 0, 4)")
    E(f"v_mov_b32 v{cD+1}, s{sTAG}")
    E(f"s_lshl_b32 s{sT3}, s{sJ}, 3")
    E(f"v_mov_b32 v{cD}, s{sXCC}")
    E(f"v_mov_b32 v{cA}, s{sT3}")
    E("s_mov_b64 exec, 1")
    E(f"buffer_store_dwordx2 {vr(cD,2)}, v{cA}, {WSR}, s{sQ0} offen offset:2048")
    E("s_mov_b64 exec, -1")

def first_gather(tag, with_q, clear_alt, armed=False):
    regs = (1, 3, 5, 7) if with_q else (9,)
    nl = 3 if with_q else 1
    E(f"s_sub_u32 s{sS2}, s{sSPIN}, 160")
    if not armed:
        E(f"v_and_b32 v{cXa}, 31, v1")
        E(f"v_lshlrev_b32 v{cXa}, 3, v{cXa}")
        E(f"s_not_b32 s{sT1}, s{sTAG}")
        for r in regs + ((9,) if with_q else ()): E(f"v_mov_b32 v{cG+r}, s{sT1}")
    def loads(so):
        if with_q:
            E(f"buffer_load_dwordx4 {vr(cG,4)}, v{cL16}, {WSR}, s{so} offen sc1")
            E(f"buffer_load_dwordx4 {vr(cG+4,4)}, v{cL16}, {WSR}, s{so} offen offset:1024 sc1")
        E(f"buffer_load_dwordx2 {vr(cG+8,2)}, v{cXa}, {WSR}, s{so} offen offset:2048 sc1")
    def check():
        if with_q:
            for i, r in enumerate(regs): E(f"v_xor_b32 v{cT+i}, s{sTAG}, v{cG+r}")
            E(f"v_or3_b32 v{cT}, v{cT}, v{cT+1}, v{cT+2}")
            E(f"v_or_b32 v{cT}, v{cT}, v{cT+3}")
            E(f"v_cmp_ne_u32 vcc, 0, v{cT}")
        else:
            E(f"v_cmp_ne_u32 vcc, s{sTAG}, v{cG+9}")
    def copy_b():
        E("s_mov_b64 exec, 1")
        E(f"buffer_store_dwordx2 {vr(cD,2)}, v{cA}, {WSR}, s{sQ0B} offen offset:2048 sc1")
        E("s_mov_b64 exec, -1")
    L(f"L_{tag}_poll")
    loads(sQ0)
    E(f"s_waitcnt vmcnt({24 if armed else nl*6})")
    check()
    E(f"s_cbranch_vccz L_{tag}_seen")
    E("s_sleep 3")
    E(f"s_cmp_gt_u32 s{sSPIN}, s{sS2}")
    E(f"s_cbranch_scc0 L_{tag}_b")
    spin_check(f"L_{tag}_poll")
    home = cur[0]; sec("cold")
    L(f"L_{tag}_b")
    copy_b()
    L(f"L_{tag}_alt")
    for so in (sQ0B, sQ0):
        loads(so)
        E("s_waitcnt vmcnt(0)")
        check()
        E(f"s_cbranch_vccz L_{tag}_{'altok' if with_q else 'ok'}")
    spin_check(f"L_{tag}_alt")
    if with_q:
        L(f"L_{tag}_altok")
        E(f"s_not_b32 s{sT1}, s{sTAG}")
        E(f"v_mov_b32 v{cG+9}, s{sT1}")
        E(f"s_branch L_{tag}_ok")
    sec(home)
    L(f"L_{tag}_seen")
    E("s_nop 15")
    L(f"L_{tag}_ok")
    if with_q:
        E(f"ds_write2_b32 v{cT+5}, v{cG}, v{cG+2} offset0:0 offset1:1")
        E(f"ds_write2_b32 v{cT+5}, v{cG+4}, v{cG+6} offset0:160 offset1:161")
        return
    E(f"v_cmp_ne_u32 vcc, s{sXCC}, v{cG+8}")
    E("s_nop 3")
    if OPT.get("slow") == "1": E("s_mov_b64 vcc, -1")
    E("s_cmp_eq_u64 vcc, 0")
    E(f"s_cselect_b32 s{sMODE}, 1, 0")
    E(f"s_cbranch_scc0 L_{tag}_slow")
    sec("cold")
    L(f"L_{tag}_slow")
    E("s_waitcnt vmcnt(0) lgkmcnt(0)")
    copy_b()
    if clear_alt: clear_alt()
    if clear_alt:
        E("s_waitcnt vmcnt(0)")
        E("s_mov_b64 exec, 1")
        E(f"buffer_store_dwordx2 {vr(cD,2)}, v{cA}, {WSR}, s{sQ0B} offen offset:2560 sc1")
        E("s_mov_b64 exec, -1")
    E(f"v_and_b32 v{cXa}, 56, v{cXa}")
    E(f"v_add_u32 v{cXa}, 192, v{cXa}")
    L(f"L_{tag}_h")
    E(f"buffer_load_dwordx2 {vr(cG+8,2)}, v{cXa}, {WSR}, s{sQ0B} offen offset:2560 sc1")
    E("s_waitcnt vmcnt(0)")
    E(f"v_cmp_ne_u32 vcc, s{sTAG}, v{cG+9}")
    E(f"s_cbranch_vccz L_{tag}_done")
    spin_check(f"L_{tag}_h")
    sec(home)
    L(f"L_{tag}_done")
    E(f"v_mov_b32 v{cT+2}, {FL_LDS}")
    E(f"v_mov_b32 v{cT+3}, s{sMODE}")
    E(f"ds_write_b32 v{cT+2}, v{cT+3}")

L(f"{NAME}_kernel")
E("s_cmp_ge_u32 s2, 256")
E("s_cbranch_scc1 L_exit")
E("s_load_dwordx16 s[8:23], s[0:1], 0")
E("s_load_dwordx8 s[24:31], s[0:1], 64")
if PROF:
    E(f"v_mov_b32 v{V_STAMP}, 0")
    E(f"s_memrealtime s[{sST}:{sST+1}]")
if AMP: E("s_memrealtime s[86:87]")
E("s_getpc_b64 s[92:93]")
E("v_lshrrev_b32 v1, 6, v0")
E(f"s_and_b32 s{sG}, s2, 7")
E(f"v_readfirstlane_b32 s{sWV}, v1")
E(f"s_lshr_b32 s{sJ}, s2, 3")
E("v_and_b32 v1, 63, v0")
if CPF:
    E("s_and_b32 s92, s92, 0xffffff00")
    E("v_lshlrev_b32 v4, 7, v1")
    E("v_add_u32 v5, 0x2000, v4")
    E(f"v_min_u32 v5, L_code_end-{NAME}_kernel-4, v5")
    E(f"s_cmp_lg_u32 s{sWV}, 7")
    E("s_cbranch_scc1 L_nocpf")
    E("global_load_dword v239, v4, s[92:93]")
    E("global_load_dword v239, v5, s[92:93]")
    L("L_nocpf")
E("v_and_b32 v2, 15, v0")
E("v_lshrrev_b32 v3, 4, v1")
E(f"s_mov_b32 s{sSPIN}, {SPIN0}")
E(f"s_mov_b32 s{sLAY}, 0")
E(f"s_lshl_b32 s{sLOC}, s{sG}, 12")
E(f"s_lshl_b32 s{sPoff}, s{sG}, 14")
E(f"s_add_u32 s{sPoff}, s{sPoff}, {W_P}")
E(f"s_add_u32 s{sQ0}, s{sLOC}, {W_Q0}")
E(f"s_add_u32 s{sQ0B}, s{sQ0}, {W_Q0B}")
E("v_lshrrev_b32 v5, 3, v1")
E("v_and_b32 v6, 7, v1")
E("v_lshlrev_b32 v4, 13, v5")
E("v_lshl_add_u32 v4, v6, 7, v4")
E(f"s_lshl_b32 s{sT0}, s{sJ}, 17")
E(f"s_lshl_b32 s{sT1}, s{sG}, 10")
E(f"s_add_u32 s{sT0}, s{sT0}, s{sT1}")
E(f"s_sub_u32 s{sT1}, s{sWV}, 1")
E(f"s_lshl_b32 s{sT2}, s{sT1}, 16")
E(f"s_add_u32 s{sT0}, s{sT0}, s{sT2}")
E(f"s_mov_b32 s{sT2}, {W_EP}")
E("v_mov_b32 v7, 0")
E(f"s_cmp_lt_u32 s{sT1}, 2")
E("s_waitcnt lgkmcnt(0)")
E("s_cbranch_scc0 L_notouch")
srd(R_C, sWQ, None, 4194304)
if TQ: E(f"buffer_load_dword v240, v4, s[{R_C}:{R_C+3}], s{sT0} offen{NTQ}")
L("L_notouch")
srd(R_WS, sWS, None, WS_REC if PROF else WS_USED)
E(f"buffer_load_dword v241, v7, {WSR}, s{sT2} offen sc1")
if PROF: E(f"v_writelane_b32 v{V_STAMP}, s{sST}, 60")
E(f"v_mov_b32 v{cA}, 0")
E(f"v_lshlrev_b32 v{cL16}, 4, v1")
E(f"s_cmp_ge_u32 s{sJ}, 16")
E("s_cbranch_scc1 L_D_init")

E(f"s_lshl_b32 s{sT0}, s{sG}, 24")
E(f"s_lshl_b32 s{sT1}, s{sJ}, 16")
E(f"s_add_u32 s{sT0}, s{sT0}, s{sT1}")
E(f"s_add_u32 s{sT0}, s{sT0}, {61440*256}")
srd(R_A, sK, f"s{sT0}", 65536)
srd(R_B, sV, f"s{sT0}", 65536)
E("v_xor_b32 v4, v2, v3")
E("v_lshlrev_b32 v4, 4, v4")
E("v_lshl_add_u32 v4, v3, 8, v4")
E("v_lshlrev_b32 v5, 1, v3")
E("v_xor_b32 v5, v2, v5")
E("v_lshlrev_b32 v5, 4, v5")
E("v_lshl_add_u32 v5, v3, 8, v5")
E(f"s_add_u32 s{sC1}, s{sJ}, s{sG}")
E(f"s_cmp_eq_u32 s{sWV}, 4")
E("s_cbranch_scc1 L_A_ctl")
E(f"s_cmp_gt_u32 s{sWV}, 4")
E("s_cbranch_scc1 L_A_help")
E(f"s_lshl_b32 s{sT0}, s{sWV}, 14")
E(f"s_add_u32 s{sT3}, s{sC1}, 16")
L("L_A_kl")
E(f"s_and_b32 s{sT1}, s{sC1}, 15")
E(f"s_and_b32 s{sT2}, s{sT1}, 3")
E(f"s_lshl_b32 s{sT2}, s{sT2}, 6")
E(f"s_lshl_b32 s{sT1}, s{sT1}, 10")
E(f"s_add_u32 s{sT1}, s{sT1}, s{sT0}")
E(f"s_mov_b32 m0, s{sT1}")
E(f"v_xor_b32 v6, s{sT2}, v4")
E(f"s_waitcnt vmcnt({THR-1})")
E(f"buffer_load_dwordx4 v6, s[{R_A}:{R_A+3}], s{sT1} offen{NTK} lds")
E(f"s_add_u32 s{sC1}, s{sC1}, 1")
E(f"s_cmp_lt_u32 s{sC1}, s{sT3}")
E("s_cbranch_scc1 L_A_kl")
E("s_branch L_A_setup")
L("L_A_help")
E(f"s_sub_u32 s{sT0}, s{sWV}, 5")
E(f"s_lshl_b32 s{sC1}, s{sC1}, 2")
E(f"s_mov_b32 s{sT3}, 0")
THV1, NV1 = int(OPT.get("thv1", 0)), int(OPT.get("nv1", 15))
if THV1:
    L("L_A_vl1")
    E(f"s_add_u32 s{sT1}, s{sC1}, s{sT0}")
    E(f"s_and_b32 s{sT1}, s{sT1}, 63")
    E(f"s_and_b32 s{sT2}, s{sT1}, 1")
    E(f"s_lshl_b32 s{sT2}, s{sT2}, 7")
    E(f"s_lshl_b32 s{sT1}, s{sT1}, 10")
    E(f"s_add_u32 m0, s{sT1}, {V_LDS}")
    E(f"v_xor_b32 v6, s{sT2}, v5")
    E(f"s_waitcnt vmcnt({THV1-1})")
    E(f"buffer_load_dwordx4 v6, s[{R_B}:{R_B+3}], s{sT1} offen{NTV} lds")
    E(f"s_add_u32 s{sT0}, s{sT0}, 3")
    E(f"s_cmp_lt_u32 s{sT0}, {NV1}")
    E("s_cbranch_scc1 L_A_vl1")
L("L_A_vl")
E(f"s_add_u32 s{sT1}, s{sC1}, s{sT0}")
E(f"s_and_b32 s{sT1}, s{sT1}, 63")
E(f"s_and_b32 s{sT2}, s{sT1}, 1")
E(f"s_lshl_b32 s{sT2}, s{sT2}, 7")
E(f"s_lshl_b32 s{sT1}, s{sT1}, 10")
E(f"s_add_u32 m0, s{sT1}, {V_LDS}")
E(f"v_xor_b32 v6, s{sT2}, v5")
E(f"s_waitcnt vmcnt({THV-1})")
E(f"buffer_load_dwordx4 v6, s[{R_B}:{R_B+3}], s{sT1} offen{NTV} lds")
E(f"s_add_u32 s{sT0}, s{sT0}, 3")
E(f"s_cmp_lt_u32 s{sT0}, 64")
E("s_cbranch_scc1 L_A_vl")
stamp(1)
E("s_branch L_A_pf2")
sec("actl")
L("L_A_pf2")
E(f"s_mul_i32 s{sT1}, s{sG}, {224*1024}")
E(f"s_mul_i32 s{sT2}, s{sJ}, 14336")
E(f"s_add_u32 s{sT1}, s{sT1}, s{sT2}")
E(f"s_cmp_eq_u32 s{sWV}, 6")
E(f"s_cselect_b32 s{sT3}, 14336, 0")
srd(R_C, sW2, f"s{sT1}", f"s{sT3}")
E(f"s_mov_b32 s{sT1}, 0")
E(f"s_mov_b32 s{sT2}, 8192")
E("v_lshlrev_b32 v6, 7, v1")
E(f"buffer_load_dword v240, v6, s[{R_C}:{R_C+3}], s{sT1} offen{NTT}")
E(f"buffer_load_dword v240, v6, s[{R_C}:{R_C+3}], s{sT2} offen{NTT}")
E("s_barrier")
E("s_waitcnt vmcnt(2)")
stamp(2)
ampx("xv", 5)
E("s_barrier")
stamp_flush(5, 2)
E("s_endpgm")
sec("a")
L("L_A_setup")
stamp(1)
KF, VF, QF, SC, PB, OD, OUTV, PF, STT = 16, 80, 144, 160, 176, 144, 176, 184, 216
T = 224
E("v_xor_b32 v4, v2, v3")
E("v_lshlrev_b32 v4, 4, v4")
E("v_lshl_add_u32 v4, v2, 8, v4")
E(f"v_add_u32 v4, s{sT0}, v4")
E("v_xor_b32 v5, 64, v4")
E("v_xor_b32 v6, 0x80, v4")
E("v_xor_b32 v7, 0xc0, v4")
E("v_and_b32 v15, 3, v2")
E("v_mul_u32_u24 v8, 320, v15")
E("v_lshl_add_u32 v8, v3, 4, v8")
E(f"v_add_u32 v8, {QS_LDS}, v8")
E("v_lshlrev_b32 v10, 4, v1")
E(f"v_add_u32 v10, {PX_LDS}, v10")
E(f"s_lshl_b32 s{sT1}, s{sWV}, 11")
E(f"v_add_u32 v9, s{sT1}, v10")
E("v_lshlrev_b32 v12, 5, v2")
E(f"v_add_u32 v12, {SX_LDS}, v12")
E(f"s_lshl_b32 s{sT1}, s{sWV}, 3")
E(f"v_add_u32 v11, s{sT1}, v12")
E("v_lshlrev_b32 v13, 12, v15")
E("v_lshl_add_u32 v13, v3, 3, v13")
E("v_bfe_u32 v14, v2, 2, 1")
E("v_lshl_add_u32 v13, v14, 5, v13")
E(f"s_lshl_b32 s{sT1}, s{sWV}, 6")
E(f"v_add_u32 v13, s{sT1}, v13")
E(f"v_cmp_eq_u32 s[{sMC_f}:{sMC_f+1}], 1, v14")
E(f"v_lshlrev_b32 v14, 7, v15")
E(f"v_lshrrev_b32 v{T}, 2, v2")
E(f"v_lshl_add_u32 v{T}, v3, 2, v{T}")
E(f"v_and_b32 v{T+1}, 7, v{T}")
E(f"s_lshl_b32 s{sT1}, s{sWV}, 1")
E(f"v_xor_b32 v{T+1}, s{sT1}, v{T+1}")
E(f"v_lshlrev_b32 v{T}, 8, v{T}")
E(f"v_lshl_add_u32 v{T}, v{T+1}, 5, v{T}")
E(f"v_lshl_add_u32 v{T}, v15, 3, v{T}")
E(f"v_add_u32 v{T}, {V_LDS}, v{T}")
E(f"v_xor_b32 v{T+1}, 32, v{T}")
E(f"s_lshl_b32 s{sT1}, s{sJ}, 8")
E(f"s_add_u32 s{sPoff}, s{sPoff}, s{sT1}")
E(f"s_and_b32 s{sT1}, s{sJ}, 3")
E(f"s_lshl_b32 s{sT1}, s{sT1}, 5")
E(f"s_lshr_b32 s{sT2}, s{sJ}, 2")
E(f"s_lshl_b32 s{sT2}, s{sT2}, 3")
E(f"s_add_u32 s{sT1}, s{sT1}, s{sT2}")
E(f"s_add_u32 s{sPub}, s{sT1}, {W_ST}")
E(f"s_mov_b32 s{sC1}, {f32((128**-0.5)*math.log2(math.e))}")
E(f"s_mov_b32 s{sFFFE}, 0xfffefffe")
E(f"v_mov_b32 v{T+2}, {FL_LDS}")
E(f"v_mov_b32 v{T+8}, s{sC1}")
E(f"s_cmp_eq_u32 s{sWV}, 0")
E(f"s_cselect_b32 s{sC2}, 15, 0")
E(f"s_mov_b32 s{sMB_f+1}, 0")
E(f"s_mov_b32 s{sMB_s+1}, 0")
E("s_waitcnt vmcnt(0)")
stamp(2)
ampx("xk", 0)
for e in range(4):
    for s in range(4):
        E(f"ds_read_b128 {vr(KF+(e*4+s)*4,4)}, v{4+s} offset:{4096*e}")
L("L_A_b1")
mark("a")
E("s_barrier")
for s in range(4):
    E(f"ds_read_b128 {vr(QF+4*s,4)}, v8 offset:{64*s}")
stamp(3, True)
def qk(e, s):
    c = "0" if s == 0 else vr(SC+4*e,4)
    E(f"v_mfma_f32_16x16x32_bf16 {vr(SC+4*e,4)}, {vr(KF+(e*4+s)*4,4)}, {vr(QF+4*s,4)}, {c}")
for s in range(4):
    E(f"s_waitcnt lgkmcnt({3-s})")
    qk(0, s); qk(1, s)
for s in range(4):
    qk(2, s); qk(3, s)
E(f"v_max3_f32 v{T+4}, v{SC}, v{SC+1}, v{SC+2}")
E(f"v_max3_f32 v{T+5}, v{SC+3}, v{SC+4}, v{SC+5}")
E(f"v_max3_f32 v{T+4}, v{T+4}, v{SC+6}, v{SC+7}")
E("s_nop 3")
E(f"v_max3_f32 v{T+5}, v{T+5}, v{SC+8}, v{SC+9}")
E(f"v_max3_f32 v{T+4}, v{T+4}, v{SC+10}, v{SC+11}")
E(f"v_max3_f32 v{T+5}, v{T+5}, v{SC+12}, v{SC+13}")
E(f"v_max3_f32 v{T+4}, v{T+4}, v{SC+14}, v{SC+15}")
E(f"v_max_f32 v{T+4}, v{T+4}, v{T+5}")
E(f"v_mov_b32 v{T+5}, v{T+4}")
E("s_nop 1")
E(f"v_permlane16_swap_b32 v{T+4}, v{T+5}")
E(f"v_max_f32 v{T+4}, v{T+4}, v{T+5}")
E(f"v_mov_b32 v{T+5}, v{T+4}")
E("s_nop 1")
E(f"v_permlane32_swap_b32 v{T+4}, v{T+5}")
E(f"v_max_f32 v{T+4}, v{T+4}, v{T+5}")
E(f"v_mul_f32 v{T+6}, s{sC1}, v{T+4}")
for i in range(8):
    E(f"v_pk_fma_f32 {vr(SC+2*i,2)}, {vr(SC+2*i,2)}, {vr(T+8,2)}, {vr(T+6,2)} op_sel_hi:[1,0,0] neg_lo:[0,0,1] neg_hi:[0,0,1]")
for i in range(8):
    E(f"v_exp_f32 v{SC+i}, v{SC+i}")
E(f"v_exp_f32 v{SC+8}, v{SC+8}")
for i in range(4):
    E(f"v_cvt_pk_bf16_f32 v{PB+i}, v{SC+2*i}, v{SC+2*i+1}")
E(f"ds_write_b128 v9, {vr(PB,4)}")
for i in range(9, 16):
    E(f"v_exp_f32 v{SC+i}, v{SC+i}")
E(f"v_add_f32 v{T+7}, v{SC}, v{SC+1}")
for i in range(4, 8):
    E(f"v_cvt_pk_bf16_f32 v{PB+i}, v{SC+2*i}, v{SC+2*i+1}")
E(f"ds_write_b128 v9, {vr(PB+4,4)} offset:1024")
for i in range(4):
    E(f"v_pk_add_f32 {vr(SC+2+ 0,2) if False else vr(SC+4*i,2)}, {vr(SC+4*i,2)}, {vr(SC+4*i+2,2)}")
E(f"v_pk_add_f32 {vr(SC,2)}, {vr(SC,2)}, {vr(SC+4,2)}")
E(f"v_pk_add_f32 {vr(SC+8,2)}, {vr(SC+8,2)}, {vr(SC+12,2)}")
E(f"v_pk_add_f32 {vr(SC,2)}, {vr(SC,2)}, {vr(SC+8,2)}")
E(f"v_add_f32 v{T+7}, v{SC}, v{SC+1}")
E(f"v_mov_b32 v{T+5}, v{T+7}")
E("s_nop 1")
E(f"v_permlane16_swap_b32 v{T+7}, v{T+5}")
E(f"v_add_f32 v{T+7}, v{T+7}, v{T+5}")
E(f"v_mov_b32 v{T+5}, v{T+7}")
E("s_nop 1")
E(f"v_permlane32_swap_b32 v{T+7}, v{T+5}")
E(f"v_add_f32 v{T+7}, v{T+7}, v{T+5}")
E(f"ds_write_b64 v11, {vr(T+6,2)}")
stamp(4, True)
mark("a")
E("s_waitcnt lgkmcnt(0)")
E("s_barrier")
E(f"ds_read_b32 v{T+3}, v{T+2}")
for b in range(2):
    E(f"ds_read_b128 {vr(STT+4*b,4)}, v12 offset:{16*b}")
for b in range(8):
    E(f"ds_read_b128 {vr(PF+4*b,4)}, v10 offset:{1024*b}")
stamp(5, True)
E(f"s_cmp_lg_u32 s{sLAY}, 0")
E("s_cbranch_scc1 L_A_havev")
for tp in range(2):
    for b in range(8):
        for e in range(2):
            E(f"ds_read_b64_tr_b16 {vr(VF+(tp*8+b)*4+2*e,2)}, v{T+tp} offset:{(32*b+16*e)*256}")
E("s_waitcnt lgkmcnt(0)")
L("L_A_havev")
E("s_waitcnt lgkmcnt(8)")
F = STT
va = [f"v_max3_f32 v{T+4}, v{STT}, v{STT+2}, v{STT+4}", f"v_max_f32 v{T+6}, v{T+4}, v{STT+6}"]
va += [f"v_sub_f32 v{F+2*b}, v{STT+2*b}, v{T+6}" for b in range(4)]
va += [f"v_exp_f32 v{F+2*b}, v{F+2*b}" for b in range(4)]
va += [f"v_mul_f32 v{T+7}, v{F}, v{STT+1}"] + [f"v_fmac_f32 v{T+7}, v{F+2*b}, v{STT+2*b+1}" for b in range(1, 4)]
E(f"v_readfirstlane_b32 s{sMODE}, v{T+3}")
for x in va[:2]: E(x)
sa = [f"s_cmp_eq_u32 s{sMODE}, 1", f"s_cselect_b32 s{sMB_f}, s{sC2}, 0", f"s_cselect_b32 s{sMB_s}, 0, s{sC2}",
      f"s_cselect_b32 s{sMA_f}, 0x00ff00ff, 0", f"s_cselect_b32 s{sMA_f+1}, 0x00ff00ff, 0", f"s_cselect_b32 s{sMA_s}, 0, 0x00ff00ff",
      f"s_cselect_b32 s{sMA_s+1}, 0, 0x00ff00ff", f"s_cselect_b32 s{sT2}, 0, {ALT}", f"s_add_u32 s{sPe}, s{sPoff}, s{sT2}",
      f"s_add_u32 s{sT2}, s{sLOC}, s{sT2}", f"s_add_u32 s{sT2}, s{sT2}, s{sPub}"]
k = 2
for u in range(8):
    E(f"s_waitcnt lgkmcnt({7-u})")
    for tp in range(2):
        d = vr(OD+(tp*4+u//2)*4,4)
        E(f"v_mfma_f32_16x16x32_bf16 {d}, {vr(VF+(tp*8+u)*4,4)}, {vr(PF+4*u,4)}, {'0' if u % 2 == 0 else d}")
        if k < len(va): E(va[k]); k += 1
        if sa and u >= 1: E(sa.pop(0)); E(sa.pop(0)) if sa else None
    if u == 5:
        assert k == len(va)
        E(f"v_min_u32 v{T+6}, -2, v{T+6}")
        E(f"v_min_u32 v{T+7}, -2, v{T+7}")
        pub2("buffer_store_dwordx2", vr(T+6,2), 14, sT2, sMB_f, sMB_s)
def cb(b):
    for tp in range(2):
        for h in range(2):
            o = vr(OUTV+4*tp+2*h,2)
            if b == 0: E(f"v_pk_mul_f32 {o}, {vr(OD+tp*16+2*h,2)}, {vr(F,2)} op_sel_hi:[1,0]")
            else: E(f"v_pk_fma_f32 {o}, {vr(OD+(tp*4+b)*4+2*h,2)}, {vr(F+2*b,2)}, {o} op_sel_hi:[1,0,1]")
for b in range(4): cb(b)
for r in range(4):
    E(f"v_cndmask_b32 v{OUTV+r}, v{OUTV+r}, v{OUTV+4+r}, s[{sMC_f}:{sMC_f+1}]")
E(f"v_cvt_pk_bf16_f32 v{OUTV}, v{OUTV}, v{OUTV+1}")
E(f"v_cvt_pk_bf16_f32 v{OUTV+1}, v{OUTV+2}, v{OUTV+3}")
E(f"v_pk_min_u16 v{OUTV}, v{OUTV}, s{sFFFE}")
E(f"v_pk_min_u16 v{OUTV+1}, v{OUTV+1}, s{sFFFE}")
pub2("buffer_store_dwordx2", vr(OUTV,2), 13, sPe, sMA_f, sMA_s)
stamp(6, True)
ampx("xp", 0)
E(f"s_add_u32 s{sPoff}, s{sPoff}, {LS}")
E(f"s_add_u32 s{sLOC}, s{sLOC}, {LS}")
E(f"s_add_u32 s{sLAY}, s{sLAY}, 1")
E(f"s_cmp_lt_u32 s{sLAY}, 2")
E("s_cbranch_scc1 L_A_b1")
stamp_flush(0, 0, (int(OPT.get("dbg", 0)), 36, [60, 2, 3, 5, 6, 19, 22]))
E("s_endpgm")
sec("actl")
L("L_A_ctl")
E("s_waitcnt vmcnt(0)")
E(f"v_readfirstlane_b32 s{sTAG}, v241")
E("s_nop 3")
E(f"s_add_u32 s{sTAG}, s{sTAG}, 1")
ampx("xe", 4)
ampx("xs", 4)
xc_publish()
warm("a")
E(f"v_lshrrev_b32 v{cT+5}, 5, v1")
E(f"v_lshlrev_b32 v{cT+5}, 6, v{cT+5}")
E(f"v_lshl_add_u32 v{cT+5}, v1, 3, v{cT+5}")
E(f"v_add_u32 v{cT+5}, {QS_LDS}, v{cT+5}")
first_gather("aq0", True, None)
stamp(2)
ampx("xq", 4)
E("s_waitcnt lgkmcnt(0)")
E("s_barrier")
first_gather("ax", False, None, armed=True)
stamp(3)
E("s_waitcnt lgkmcnt(0)")
E(f"s_cmp_eq_u32 s{sMODE}, 1")
E(f"s_cselect_b32 s{sT2}, 0, {ALT}")
E(f"s_add_u32 s{sLe}, s{sLOC}, s{sT2}")
E(f"s_add_u32 s{sLe}, s{sLe}, {LS}")
E(f"v_lshl_add_u32 v{cT+2}, v3, 6, v{cL16}")
E(f"v_add_u32 v{cT+2}, {QS_LDS}, v{cT+2}")
E("s_barrier")
E("s_waitcnt vmcnt(0)")
arm(cG, 4)
gather1("aq", cG, cL16, sLe, W_Q, cT)
E(f"ds_write_b128 v{cT+2}, {vr(cG,4)}")
stamp(18)
E("s_waitcnt lgkmcnt(0)")
E("s_barrier")
stamp_flush(4, 1)
E("s_endpgm")

vL16, aXIO, aTA, aTB, aIN, aST, aP16, aPY, vONE, aOS, aXS = 4, 5, 6, 7, 8, 9, 10, 11, 12, 13, 14
SEL0, ONESB, XR, XN, XB, vT = 16, 24, 28, 36, 44, 48
TT = 49
vB1, vCS, aGX, vINV, vVAL = 15, 0, 249, 250, 252
GB, WA, ACC, WB = 64, 96, 160, 192
vST, CA, MK, vFLG = 224, 232, 236, 248
NACC = 8

retry_blocks = []
def gather_X(tag, soff, role, hook=None):
    def loads():
        for i in range(8):
            so = soff if i < 4 else sT0
            E(f"buffer_load_dwordx4 {vr(GB+4*i,4)}, v{aGX}, {WSR}, s{so} offen offset:{256*(i%4)}{GFL}")
    def sums(wait):
        for i in range(8):
            if wait is not None: E(f"s_waitcnt vmcnt({wait + 7 - i})")
            e, w = (i % 4) // 2, i % 2
            c = vr(XR+4*e,4) if i in (0, 2) else vr(XN+4*e,4)
            E(f"v_mfma_f32_16x16x32_bf16 {vr(XN+4*e,4)}, {vr(SEL0+4*w,4)}, {vr(GB+4*i,4)}, {c}")
    E(f"s_add_u32 s{sT0}, s{soff}, 4096")
    if ACK: E("s_waitcnt vmcnt(0)")
    elif GD: E(f"s_sleep {GD}")
    if PROF in (2, 9): stamp(9, True)
    for _ in range(GP - 1):
        loads()
        if GSL: E(f"s_sleep {GSL}")
    E(f"s_branch L_{tag}_again")
    L(f"L_{tag}_nan")
    E(f"s_sub_u32 s{sSPIN}, s{sSPIN}, 1")
    E("s_cbranch_scc1 L_exit")
    E(f"s_and_b32 s{sT1}, s{sSPIN}, 15")
    E(f"s_cbranch_scc0 L_{tag}_retry")
    if GSL: E(f"s_sleep {GSL}")
    L(f"L_{tag}_again")
    loads()
    if hook: hook()
    mark(role)
    sums(8 * (GP - 1))
    E("s_nop 6")
    E(f"v_cmp_u_f32 vcc, v{XN}, v{XN}")
    E(f"v_cmp_u_f32 s[{sS1}:{sS1+1}], v{XN+4}, v{XN+4}")
    for d in range(4):
        E(f"v_cvt_pk_bf16_f32 v{XB+d}, v{XN+2*d}, v{XN+2*d+1}")
    E(f"s_or_b64 vcc, vcc, s[{sS1}:{sS1+1}]")
    E(f"s_cbranch_vccnz L_{tag}_nan")
    L(f"L_{tag}_ok")
    if PROF in (2, 9):
        stamp(11, True)
        E(f"s_mov_b32 s{sST}, s{sSPIN}")
    def blk():
        L(f"L_{tag}_retry")
        for i in range(16): E(f"v_pk_max_u16 v{ACC+i}, v{GB+2*i}, v{GB+2*i+1}")
        for i in range(8): E(f"v_pk_max_u16 v{ACC+i}, v{ACC+2*i}, v{ACC+2*i+1}")
        for i in range(4): E(f"v_pk_max_u16 v{ACC+i}, v{ACC+2*i}, v{ACC+2*i+1}")
        chk_bf16(ACC, TT)
        E(f"s_cbranch_vccnz L_{tag}_again")
        sums(None)
        E("s_nop 7")
        for d in range(4):
            E(f"v_cvt_pk_bf16_f32 v{XB+d}, v{XN+2*d}, v{XN+2*d+1}")
        E(f"s_branch L_{tag}_ok")
    retry_blocks.append(blk)

def relay_X(tag, soff, pre):
    E(f"v_mov_b32 v{vT}, 0")
    E(f"s_cmp_lg_u32 s{sWV}, 0")
    E(f"s_cbranch_scc1 L_{tag}_other")
    pre()
    gather_X(tag, soff, "d2")
    E(f"ds_write_b128 v{aXS}, {vr(XB,4)}")
    post = f"L_{tag}_join"
    E("s_waitcnt lgkmcnt(0)")
    E("s_barrier")
    E(f"s_branch {post}")
    L(f"L_{tag}_other")
    E("s_waitcnt vmcnt(0)")
    E("s_barrier")
    E(f"ds_read_b128 {vr(XB,4)}, v{aXS}")
    E("s_waitcnt lgkmcnt(0)")
    L(post)

def unpack_resid(src):
    for d in range(4):
        E(f"v_lshlrev_b32 v{XR+2*d}, 16, v{src+d}")
        E(f"v_and_b32 v{XR+2*d+1}, 0xffff0000, v{src+d}")

def matvec(nsteps, A, W, fillers, rows=None, per=PER, waits=False):
    if rows is None:
        rows = [(1 << G, 0xf, list(range(4*G, min(4*G+4, nsteps)))) for G in range((nsteps + 3) // 4)]
    acc = lambda s_: ACC + 4*(rank[s_] % NACC)
    order = [x for x in range(nsteps) if not any(x == st_[-1] for _, _, st_ in rows)] + [st_[-1] for _, _, st_ in rows]
    if waits or not REORD: order = list(range(nsteps))
    rank = {x: i for i, x in enumerate(order)}
    ext = []
    for (rm, bm, st_) in rows:
        dp = f"quad_perm:[0,1,2,3] row_mask:{hex(rm)} bank_mask:{hex(bm)}"
        a = lambda s_: f"v{acc(s_) + s_ % 4}"
        ext.append((st_[1], f"v_add_f32_dpp v{vT}, {a(st_[0])}, {a(st_[1])} {dp}"))
        for s_ in st_[2:]:
            ext.append((s_, f"v_add_f32_dpp v{vT}, {a(s_)}, v{vT} {dp}"))
    order = [x for x in range(nsteps) if not any(x == st_[-1] for _, _, st_ in rows)] + [st_[-1] for _, _, st_ in rows]
    if waits or not REORD: order = list(range(nsteps))
    rank = {x: i for i, x in enumerate(order)}
    ext.sort(key=lambda e: rank[e[0]])
    st = dict(pos=0, lastT=-1)
    pm = {}
    def put(x, n=1):
        E(x); st["pos"] += n
    def need(e):
        if e[0] not in pm: return 99
        return max(pm[e[0]] + 9 - st["pos"], st["lastT"] + 3 - st["pos"], 0)
    fl = list(fillers)
    for s_ in order:
        while ext and rank[ext[0][0]] <= rank[s_] - NACC + 1 and rank[s_] >= NACC:
            n = need(ext[0])
            if n: put(f"s_nop {n-1}", n)
            st["lastT"] = st["pos"]; put(ext.pop(0)[1])
        if waits and s_ >= 8 or waits and s_ == 0: put(f"s_waitcnt lgkmcnt({min(15, 30-2*s_)})")
        pm[s_] = st["pos"]
        put(f"v_mfma_f32_16x16x32_bf16 {vr(acc(s_),4)}, {vr(A,4)}, {vr(W+4*s_,4)}, 0")
        idle = 0
        for _ in range(per):
            if ext and need(ext[0]) - idle <= 0:
                if idle: put(f"s_nop {idle-1}", idle); idle = 0
                st["lastT"] = st["pos"]; put(ext.pop(0)[1])
            elif fl:
                if idle: put(f"s_nop {idle-1}", idle); idle = 0
                put(fl.pop(0))
            elif PAD and s_ != order[-1]: idle += 1
        if idle: put(f"s_nop {idle-1}", idle)
    while ext or fl:
        if ext and need(ext[0]) == 0:
            st["lastT"] = st["pos"]; put(ext.pop(0)[1])
        elif fl:
            put(fl.pop(0))
        else:
            n = need(ext[0]); put(f"s_nop {n-1}", n)

def stats_fillers():
    f = []
    for d in range(4):
        f.append(f"v_lshlrev_b32 v{XR+2*d}, 16, v{XB+d}")
        f.append(f"v_and_b32 v{XR+2*d+1}, 0xffff0000, v{XB+d}")
        if d == 0: f.append(f"v_readfirstlane_b32 s{sPIV}, v{XR}")
    D = XN
    for i in range(4):
        f.append(f"v_pk_add_f32 {vr(D+2*i,2)}, {vr(XR+2*i,2)}, s[{sPIV}:{sPIV+1}] op_sel_hi:[1,0] neg_lo:[0,1] neg_hi:[0,1]")
    a, b = TT+1, TT+3
    assert a % 2 == 0
    f.append(f"v_pk_add_f32 {vr(a,2)}, {vr(D,2)}, {vr(D+2,2)}")
    f.append(f"v_pk_mul_f32 {vr(b,2)}, {vr(D,2)}, {vr(D,2)}")
    for i in range(1, 4):
        f.append(f"v_pk_fma_f32 {vr(b,2)}, {vr(D+2*i,2)}, {vr(D+2*i,2)}, {vr(b,2)}")
        if i > 1: f.append(f"v_pk_add_f32 {vr(a,2)}, {vr(a,2)}, {vr(D+2*i,2)}")
    f.append(f"v_add_f32 v{b}, v{b}, v{b+1}")
    f.append(f"v_add_f32 v{a}, v{a}, v{a+1}")
    f.append("s_nop 0")
    for dp in ("quad_perm:[1,0,3,2] row_mask:0xf", "quad_perm:[2,3,0,1] row_mask:0xf", "row_half_mirror row_mask:0xf",
               "row_mirror row_mask:0xf", "row_bcast:15 row_mask:0xa", "row_bcast:31 row_mask:0xc"):
        f.append(f"v_add_f32_dpp v{b}, v{b}, v{b} {dp} bank_mask:0xf")
        f.append(f"v_add_f32_dpp v{a}, v{a}, v{a} {dp} bank_mask:0xf")
        f.append("s_nop 0")
    f.append(f"v_readlane_b32 s{sS2}, v{b}, 63")
    f.append(f"v_readlane_b32 s{sS1}, v{a}, 63")
    f.append(f"v_fma_f32 v{TT+3}, s{sS2}, v{vINV}, v{vINV+1}" if False else "s_nop 0")
    f.append(f"v_fma_f32 v{TT+3}, s{sS2}, v{vINV}, v{vINV+1}")
    f.append(f"v_mul_f32 v{TT+2}, s{sS1}, v{vINV}")
    f.append(f"v_fma_f32 v{TT+3}, -v{TT+2}, v{TT+2}, v{TT+3}")
    f.append(f"v_max_f32 v{TT+3}, v{vINV+1}, v{TT+3}")
    f.append(f"v_rsq_f32 v{TT+3}, v{TT+3}")
    f.append(f"v_add_f32 v{TT+2}, s{sPIV}, v{TT+2}")
    return f

def xgroup_sum(fold8=False, plain=False):
    if fold8: E(f"v_and_b32 v{vT}, v{vVAL}, v{vT}")
    E(f"v_mov_b32 v{TT+5}, v{vT}")
    E("s_nop 1")
    E(f"v_permlane16_swap_b32 v{vT}, v{TT+5}")
    E(f"v_add_f32 v{vT}, v{vT}, v{TT+5}")
    E(f"v_mov_b32 v{TT+5}, v{vT}")
    E("s_nop 1")
    E(f"v_permlane32_swap_b32 v{vT}, v{TT+5}")
    E(f"v_add_f32 v{vT}, v{vT}, v{TT+5}")
    if fold8:
        E("s_nop 1")
        E(f"v_add_f32_dpp v{vT}, v{vT}, v{vT} row_ror:8 row_mask:0xf bank_mask:0xf")
    if plain: return
    E(f"v_fma_f32 v{vT}, -v{TT+2}, v{vCS}, v{vT}")
    E(f"v_mul_f32 v{vT}, v{vT}, v{TT+3}")

def y_publish():
    xgroup_sum(plain=True)
    E("s_nop 1")
    E(f"v_mov_b32_dpp v{TT+5}, v{vT} quad_perm:[1,1,3,3] row_mask:0xf bank_mask:0xf")
    E("s_mov_b64 exec, 0x5555")
    E(f"v_cvt_pk_bf16_f32 v{vT}, v{vT}, v{TT+5}")
    E(f"v_pk_min_u16 v{vT}, v{vT}, s{sFFFE}")
    E(f"buffer_store_dword v{vT}, v{aP16}, {WSR}, s{sPubG} offen{SFL}")
    E("s_mov_b64 exec, -1")

def pub_resid(off):
    for d in range(4): E(f"v_pk_min_u16 v{TT+7+d}, v{XB+d}, s{sFFFE}")
    pub2("buffer_store_dwordx4", vr(TT+7,4), vL16, sLOC, sMB_f, sMB_s, off)

def read_mode(lo_a, pj=0):
    E(f"v_mov_b32 v{TT}, {FL_LDS}")
    E(f"ds_read_b32 v{TT+1}, v{TT}")
    E("s_waitcnt lgkmcnt(0)")
    E(f"v_readfirstlane_b32 s{sMODE}, v{TT+1}")
    E(f"s_cmp_eq_u32 s{sPJ}, {pj}")
    E(f"s_cselect_b32 s{sT1}, -1, 0")
    E("s_nop 2")
    E(f"s_cmp_eq_u32 s{sMODE}, 1")
    masks(sMA_f, sMA_s, lo_a, "0")
    masks(sMB_f, sMB_s, f"s{sT1}", f"s{sT1}")
    E(f"s_cselect_b32 s{sT1}, 0, {ALT}")
    for s_ in (sLOC, sPoff, sPub):
        E(f"s_add_u32 s{s_}, s{s_}, s{sT1}")

sec("entry")
L("L_D_init")
ROLE[0] = "d"
E(f"s_and_b32 s{sC}, s{sJ}, 7")
E(f"s_lshl_b32 s{sPJ}, s{sC}, 2")
E(f"s_add_u32 s{sPJ}, s{sPJ}, s{sWV}")
E("v_lshrrev_b32 v242, 3, v1")
E("v_and_b32 v243, 7, v1")
def wo_issue():
    E(f"s_lshl_b32 s{sT0}, s{sG}, 19")
    E(f"s_lshl_b32 s{sT1}, s{sC}, 7")
    E(f"s_add_u32 s{sT0}, s{sT0}, s{sT1}")
    E(f"s_sub_u32 s{sT3}, {4194304}, s{sT0}")
    srd(R_A, sWO, f"s{sT0}", f"s{sT3}")
    E("v_and_b32 v245, 2, v242")
    E("v_xor_b32 v245, v245, v243")
    E(f"s_and_b32 s{sT1}, s{sWV}, 1")
    E(f"s_lshl_b32 s{sT1}, s{sT1}, 2")
    E(f"v_xor_b32 v245, s{sT1}, v245")
    E("v_lshlrev_b32 v244, 10, v242")
    E("v_lshl_add_u32 v244, v245, 4, v244")
    E(f"s_lshl_b32 s{sT0}, s{sWV}, 14")
    E(f"s_mov_b32 m0, s{sT0}")
    E(f"s_lshl_b32 s{sT1}, s{sWV}, 17")
    if LATE0 == 1: E("s_waitcnt vmcnt(0)")
    if LATE0 >= 2: E("s_barrier")
    E(f"s_add_u32 s{sT2}, s{sT1}, {16*8192}")
    L("L_D2_wol")
    E(f"buffer_load_dwordx4 v244, s[{R_A}:{R_A+3}], s{sT1} offen{NTW} lds")
    E("s_add_u32 m0, m0, 1024")
    E(f"s_add_u32 s{sT1}, s{sT1}, 8192")
    E(f"s_cmp_lt_u32 s{sT1}, s{sT2}")
    E("s_cbranch_scc1 L_D2_wol")
def clear_global():
    for r in range(4): E(f"v_mov_b32 v{cG+r}, -1")
    E(f"s_mov_b32 s{sT1}, {LS}")
    E(f"v_lshrrev_b32 v{cT}, 3, v2")
    E(f"v_mul_lo_u32 v{cT}, v{cT}, s{sT1}")
    E(f"v_lshl_add_u32 v{cT}, v243, 4, v{cT}")
    E(f"v_lshl_add_u32 v{cT}, v3, 13, v{cT}")
    E(f"s_lshl_b32 s{sT1}, s{sG}, 10")
    E(f"s_lshl_b32 s{sT2}, s{sC}, 7")
    E(f"s_add_u32 s{sT1}, s{sT1}, s{sT2}")
    E(f"s_add_u32 s{sT1}, s{sT1}, {W_Y}")
    E("s_mov_b32 exec_hi, 0")
    E(f"buffer_store_dwordx4 {vr(cG,4)}, v{cT}, {WSR}, s{sT1} offen sc1")
    E("s_mov_b64 exec, -1")

def d2_clear(sc, alt):
    for r in range(4): E(f"v_mov_b32 v{cG+r}, -1")
    E(f"s_lshl_b32 s{sT1}, s{sC}, 11")
    E(f"s_add_u32 s{sT1}, s{sT1}, s{sPoff}")
    if alt: E(f"s_add_u32 s{sT1}, s{sT1}, {ALT}")
    E(f"s_add_u32 s{sT2}, s{sT1}, {LS}")
    for so in (sT1, sT2):
        for o in range(2):
            E(f"buffer_store_dwordx4 {vr(cG,4)}, v{cL16}, {WSR}, s{so} offen offset:{1024*o}{sc}")
    E(f"s_mov_b32 s{sT1}, {LS}")
    E(f"v_lshrrev_b32 v{cT}, 5, v1")
    E(f"v_mul_lo_u32 v{cT}, v{cT}, s{sT1}")
    E(f"v_and_b32 v{cT+1}, 31, v1")
    E(f"v_lshl_add_u32 v{cT}, v{cT+1}, 4, v{cT}")
    E(f"s_lshl_b32 s{sT1}, s{sC}, 9")
    E(f"s_add_u32 s{sT1}, s{sT1}, s{sLOC}")
    if alt: E(f"s_add_u32 s{sT1}, s{sT1}, {ALT}")
    E(f"buffer_store_dwordx4 {vr(cG,4)}, v{cT}, {WSR}, s{sT1} offen{sc}")
E(f"s_cmp_lt_u32 s{sJ}, 24")
E("s_cbranch_scc1 L_D_const")
E(f"s_cmp_lg_u32 s{sWV}, 4")
E("s_cbranch_scc1 L_D2_e1")
d2_clear("", False)
E("s_branch L_D2_init")
L("L_D2_e1")
E(f"s_cmp_lg_u32 s{sWV}, 5")
E("s_cbranch_scc1 L_D2_e2")
clear_global()
E("s_branch L_D2_init")
L("L_D2_e2")
E(f"s_cmp_ge_u32 s{sWV}, 4")
E("s_cbranch_scc1 L_D2_init")
if LATE0 == 0: wo_issue()
sec("dinit")
L("L_D_const")
E("v_mov_b32 v245, 0")
E("v_mov_b32 v244, 0")
srd(R_B, sX, None, 1024)
E(f"v_lshrrev_b32 v{TT}, 1, v3")
E(f"v_and_b32 v{TT+1}, 1, v3")
E(f"v_lshlrev_b32 v{aXIO}, 8, v{TT}")
E(f"v_lshl_add_u32 v{aXIO}, v2, 4, v{aXIO}")
E(f"v_lshl_add_u32 v{aXIO}, v{TT+1}, 3, v{aXIO}")
E(f"buffer_load_dwordx2 {vr(XB,2)}, v{aXIO}, s[{R_B}:{R_B+3}], 0 offen")
E(f"buffer_load_dwordx2 {vr(XB+2,2)}, v{aXIO}, s[{R_B}:{R_B+3}], 0 offen offset:512")
E(f"v_lshlrev_b32 v{vL16}, 4, v1")
E(f"v_lshrrev_b32 v{TT+2}, 2, v2")
E(f"v_and_b32 v{TT+3}, 3, v2")
E(f"v_lshl_add_u32 v{TT+4}, v{TT}, 7, v{TT+2}")
E(f"v_lshl_add_u32 v{TT+4}, v{TT+1}, 2, v{TT+4}")
E(f"v_lshlrev_b32 v{aP16}, 1, v2")
E(f"v_lshrrev_b32 v{aPY}, 5, v1")
E(f"v_lshlrev_b32 v{aPY}, 4, v{aPY}")
E(f"v_add_u32 v{aXS}, {XS_LDS}, v{vL16}")
E(f"v_mov_b32 v{vONE}, 1.0")
for d in range(4): E(f"v_mov_b32 v{ONESB+d}, 0x3f803f80")
E(f"v_and_b32 v{TT+5}, 1, v2")
E(f"v_lshlrev_b32 v{TT+5}, 4, v{TT+5}")
E(f"v_mov_b32 v{TT+6}, 0x3f80")
E(f"v_lshlrev_b32 v{TT+6}, v{TT+5}, v{TT+6}")
E(f"v_lshrrev_b32 v{TT+7}, 1, v2")
E(f"v_lshlrev_b32 v{aGX}, 10, v3")
E(f"v_lshl_add_u32 v{aGX}, v2, 4, v{aGX}")
for d in range(8):
    E(f"v_cmp_eq_u32 vcc, {d}, v{TT+7}")
    E("s_nop 1")
    E(f"v_cndmask_b32 v{SEL0+d}, 0, v{TT+6}, vcc")
E(f"s_mov_b32 s{sFFFE}, 0xfffefffe")
E(f"v_mov_b32 v{vINV}, {f32(1/512)}")
E(f"v_mov_b32 v{vINV+1}, {f32(1e-5)}")
E(f"s_mov_b32 s{sC3}, {f32(-math.log2(math.e))}")
E(f"s_lshl_b32 s{sT1}, s{sPJ}, 5")
E(f"s_lshl_b32 s{sPubG}, s{sG}, 10")
E(f"s_add_u32 s{sPubG}, s{sPubG}, s{sT1}")
E(f"s_lshl_b32 s{sT2}, s{sWV}, 5")
E(f"s_cmp_ge_u32 s{sJ}, 24")
E("s_cbranch_scc1 L_D2_comp")

def ctl_head():
    E("s_waitcnt vmcnt(0)")
    E(f"v_readfirstlane_b32 s{sTAG}, v241")
    for r in range(4): E(f"v_mov_b32 v{cG+r}, -1")
    E(f"s_add_u32 s{sTAG}, s{sTAG}, 1")
E(f"s_lshl_b32 s{sT0}, s{sG}, 10")
E(f"s_lshl_b32 s{sT1}, s{sC}, 7")
E(f"s_add_u32 s{sT0}, s{sT0}, s{sT1}")
E(f"s_sub_u32 s{sT3}, {4194304}, s{sT0}")
srd(R_A, sWQ, f"s{sT0}", f"s{sT3}")
E("v_and_b32 v245, 6, v242")
E("v_xor_b32 v245, v245, v243")
E("v_lshlrev_b32 v244, 13, v242")
E("v_lshl_add_u32 v244, v245, 4, v244")
E(f"s_cmp_ge_u32 s{sWV}, 4")
E("s_cbranch_scc1 L_D1_help")
if TQ: E("s_waitcnt vmcnt(0)")
stamp(1)
E(f"s_lshl_b32 s{sT0}, s{sWV}, 14")
E(f"s_mov_b32 m0, s{sT0}")
E(f"s_lshl_b32 s{sT1}, s{sWV}, 20")
E(f"s_add_u32 s{sT3}, s{sT1}, {16*65536}")
L("L_D1_wql")
E(f"buffer_load_dwordx4 v244, s[{R_A}:{R_A+3}], s{sT1} offen{NTW} lds")
E("s_add_u32 m0, m0, 1024")
E(f"s_add_u32 s{sT1}, s{sT1}, 65536")
E(f"s_cmp_lt_u32 s{sT1}, s{sT3}")
E("s_cbranch_scc1 L_D1_wql")
sec("d1")
E(f"v_bfe_u32 v{TT+5}, v{TT+4}, 1, 2")
E(f"v_xor_b32 v{TT+5}, s{sWV}, v{TT+5}")
E(f"v_lshlrev_b32 v{aTA}, 7, v{TT+4}")
E(f"v_lshl_add_u32 v{aTA}, v{TT+3}, 3, v{aTA}")
E(f"v_lshl_add_u32 v{aTA}, v{TT+5}, 5, v{aTA}")
if not TQ: E("s_waitcnt vmcnt(16)")
E(f"v_lshl_add_u32 v{aTB}, v3, 3, v{TT+2}")
E(f"v_lshlrev_b32 v{aTB}, 7, v{aTB}")
E(f"v_lshl_add_u32 v{aTB}, v{TT+3}, 3, v{aTB}")
E(f"s_add_u32 s{sT2}, s{sT2}, {WB_LDS}")
E(f"v_add_u32 v{aTB}, s{sT2}, v{aTB}")
E(f"v_min_u32 v{aIN}, 6, v2")
E(f"v_lshlrev_b32 v{aIN}, 6, v{aIN}")
E(f"v_lshl_add_u32 v{aIN}, v3, 4, v{aIN}")
E(f"v_readfirstlane_b32 s{sTAG}, v241")
E(f"s_add_u32 s{sPubG}, s{sPubG}, {W_Z}")
E(f"s_mov_b32 s{sZoff}, {W_Z}")
E(f"s_lshl_b32 s{sT1}, s{sPJ}, 5")
E(f"s_add_u32 s{sPub}, s{sLOC}, s{sT1}")
srd(R_B, sOUT, None, 1024)
E(f"s_add_u32 s{sTAG}, s{sTAG}, 1")
for x in stats_fillers(): E(x)
for i in range(8): E(f"v_sub_f32 v{XN+i}, v{XR+i}, v{TT+2}")
for i in range(8): E(f"v_mul_f32 v{XN+i}, v{XN+i}, v{TT+3}")
for d in range(4): E(f"v_cvt_pk_bf16_f32 v{GB+d}, v{XN+2*d}, v{XN+2*d+1}")
E(f"v_mov_b32 v{vT}, 0")
D0 = GB + 12
E(f"v_mov_b32 v{D0+1}, s{sTAG}")
E(f"s_lshl_b32 s{sT1}, s{sPJ}, 6")
E(f"v_lshl_add_u32 v{TT+6}, v2, 2, s{sT1}")
E("s_waitcnt vmcnt(0)")
E("s_barrier")
amp("wq")
stamp(2)
for s in range(16):
    for e in range(2):
        E(f"ds_read_b64_tr_b16 {vr(WA+4*s+2*e,2)}, v{aTA} offset:{32768*e+1024*s}")
matvec(16, GB, WA, [], per=PN, waits=True)
xgroup_sum(plain=True)
E("s_nop 1")
E(f"v_mov_b32_dpp v{TT+5}, v{vT} quad_perm:[1,1,3,3] row_mask:0xf bank_mask:0xf")
E(f"v_cvt_pk_bf16_f32 v{D0}, v{vT}, v{TT+5}")
E("s_mov_b64 exec, 0x5555")
E(f"buffer_store_dwordx2 {vr(D0,2)}, v{TT+6}, {WSR}, s{sQ0} offen")
E("s_mov_b64 exec, -1")
stamp(3, True)
E(f"v_mov_b32 v{TT+7}, 0")
E(f"buffer_load_dword v{GB+20}, v{TT+7}, s[{R_B}:{R_B+3}], 0 offen")
for s in range(16):
    c = "0" if s == 0 else vr(CA,4)
    E(f"v_mfma_f32_16x16x32_bf16 {vr(CA,4)}, {vr(ONESB,4)}, {vr(WA+4*s,4)}, {c}")
E("s_nop 7")
E(f"v_mov_b32 v{vCS}, v{CA}")
E("s_barrier")
amp("st")
read_mode("0xffff")
E(f"s_mov_b32 s{sT1}, 0x5555")
E(f"s_cmp_eq_u32 s{sMODE}, 1")
E(f"s_cselect_b32 exec_lo, 0, s{sT1}")
E("s_mov_b32 exec_hi, 0")
E(f"buffer_store_dwordx2 {vr(D0,2)}, v{TT+6}, {WSR}, s{sQ0B} offen sc1")
E("s_mov_b64 exec, -1")
E("s_barrier")
for s in range(7):
    for e in range(2):
        E(f"ds_read_b64_tr_b16 {vr(WB+4*s+2*e,2)}, v{aTB} offset:{4096*s+512*e}")
E("s_waitcnt lgkmcnt(0)")
E("s_branch L_D1_act")
L("L_D1_q")
mark("d1")
matvec(16, XB, WA, stats_fillers())
xgroup_sum()
E(f"v_cvt_pk_bf16_f32 v{vT}, v{vT}, v{vT}")
E(f"v_min_u32 v{vT}, -2, v{vT}")
pub2("buffer_store_short", f"v{vT}", aP16, sPub, sMA_f, sMA_s, W_Q)
stamp(3, True)
pub_resid(W_X2)
L("L_D1_act")
mark("d1")
AIN = vST
arm(AIN, 4)
E(f"buffer_load_dwordx4 {vr(CA,4)}, v{vL16}, {WSR}, s{sLOC} offen offset:{W_X1} sc1")
E(f"v_mov_b32 v{vT}, 0")
gather1("ga", AIN, aIN, sLOC, W_ACT, TT)
amp("act")
stamp(4, True)
E(f"buffer_load_dwordx4 {vr(CA,4)}, v{vL16}, {WSR}, s{sLOC} offen offset:{W_X1} sc1")
matvec(7, AIN, WB, [], per=PN)
y_publish()
stamp(5, True)
E(f"s_add_u32 s{sLAY}, s{sLAY}, 1")
E(f"s_cmp_lt_u32 s{sLAY}, 2")
E("s_cbranch_scc1 L_D1_z")
E(f"s_cmp_lg_u32 s2, 128")
E("s_cbranch_scc1 L_D1_end")
E(f"s_cmp_lg_u32 s{sWV}, 0")
E("s_cbranch_scc1 L_D1_end")
L("L_D1_z")
mark("d1")
def pre_z():
    E("s_waitcnt vmcnt(1)")
    chk_bf16(CA, TT)
    E("s_cbranch_vccz L_gx1_have")
    gather1("gx1", CA, vL16, sLOC, W_X1, TT, pd=1, slp=0)
    L("L_gx1_have")
    unpack_resid(CA)
def relay_z():
    E(f"v_mov_b32 v{vT}, 0")
    E(f"s_cmp_lg_u32 s{sWV}, 0")
    E(f"s_cbranch_scc1 L_gz_other")
    pre_z()
    gather_X("gz", sZoff, "d1")
    E(f"s_cmp_eq_u32 s{sLAY}, 2")
    E("s_cbranch_scc1 L_D1_out")
    E(f"ds_write_b128 v{aXS}, {vr(XB,4)}")
    E("s_waitcnt lgkmcnt(0)")
    E("s_barrier")
    E(f"s_branch L_gz_join")
    L(f"L_gz_other")
    E("s_waitcnt vmcnt(0)")
    E("s_barrier")
    E(f"ds_read_b128 {vr(XB,4)}, v{aXS}")
    E("s_waitcnt lgkmcnt(0)")
    L("L_gz_join")
relay_z()
stamp(6)
for s_ in (sLOC, sPub, sPubG, sZoff):
    E(f"s_add_u32 s{s_}, s{s_}, {LS}")
E("s_branch L_D1_q")
L("L_D1_out")
E(f"buffer_store_dwordx2 {vr(XB,2)}, v{aXIO}, s[{R_B}:{R_B+3}], 0 offen")
E(f"buffer_store_dwordx2 {vr(XB+2,2)}, v{aXIO}, s[{R_B}:{R_B+3}], 0 offen offset:512")
E(f"v_mov_b32 v{TT}, s{sTAG}")
E(f"v_mov_b32 v{TT+1}, {W_EP}")
E("s_mov_b64 exec, 1")
E(f"buffer_store_dword v{TT}, v{TT+1}, {WSR}, 0 offen")
if AMP:
    E("s_memrealtime s[88:89]")
    E("s_waitcnt lgkmcnt(0)")
    if AMP == "end": E("s_mov_b32 s94, s88")
    E("s_sub_u32 s94, s94, s86")
    if AMP.startswith("x"):
        E(f"v_mov_b32 v253, {W_EP + 64}")
        E(f"buffer_load_dword v252, v253, {WSR}, 0 offen sc1")
        E("s_waitcnt vmcnt(0)")
        E("v_readfirstlane_b32 s94, v252")
        E("s_nop 3")
        E("s_sub_u32 s94, s94, s86")
        E("s_add_u32 s94, s94, 100")
        E("s_max_i32 s94, s94, 0")
    E("s_lshl_b32 s94, s94, 2")
    E("s_min_u32 s94, s94, 20000")
    E("s_add_u32 s94, s94, s88")
    L("L_amp_spin")
    E("s_memrealtime s[88:89]")
    E("s_waitcnt lgkmcnt(0)")
    E("s_sub_u32 s89, s94, s88")
    E("s_cmp_gt_i32 s89, 0")
    E("s_cbranch_scc1 L_amp_spin")
if PROF:
    stamp(7)
    E("s_waitcnt vmcnt(0)")
    stamp(8)
L("L_D1_end")
stamp_flush(0, 0, (128, 4, [60, 2, 3, 4, 6, 20, 8]))
E("s_endpgm")
sec("help")
L("L_D1_help")
E(f"s_mul_i32 s{sT0}, s{sG}, {224*1024}")
E(f"s_lshl_b32 s{sT1}, s{sC}, 7")
E(f"s_add_u32 s{sT0}, s{sT0}, s{sT1}")
srd(R_B, sW2, f"s{sT0}", 224*1024 - 896)
E("v_lshlrev_b32 v244, 10, v242")
E("v_lshl_add_u32 v244, v243, 4, v244")
E(f"s_cmp_eq_u32 s{sWV}, 4")
E("s_cbranch_scc1 L_D1_ctl")
for u in range(3):
    E(f"s_cmp_lg_u32 s{sWV}, {5+u}")
    E(f"s_cbranch_scc1 L_D1_wm{u}")
    warm("d1", u, 3)
    L(f"L_D1_wm{u}")
E("s_branch L_D1_bq")
L("L_D1_ctl")
E(f"v_lshlrev_b32 v{cT}, 7, v2")
E(f"buffer_load_dword v240, v{cT}, {WSR}, s{sQ0} offen sc1")
ctl_head()
xc_publish()
L("L_D1_bq")
E("s_barrier")
E(f"s_cmp_lg_u32 s{sWV}, 4")
E("s_cbranch_scc1 L_D1_w2")
first_gather("d1x", False, None)
stamp(3)
E(f"v_lshlrev_b32 v{cT}, 3, v1")
E(f"s_cmp_eq_u32 s{sMODE}, 1")
E("s_cbranch_scc0 L_D1_b2")
L("L_D1_st")
E(f"buffer_load_dword v{cT+1}, v{cT}, {WSR}, s{sLOC} offen offset:{W_ST} sc1")
E("s_waitcnt vmcnt(0)")
E(f"v_cmp_ne_u32 vcc, -1, v{cT+1}")
E("s_cbranch_vccnz L_D1_b2")
E("s_sleep 8")
spin_check("L_D1_st")
L("L_D1_b2")
E("s_waitcnt lgkmcnt(0)")
L("L_D1_w2")
E("s_barrier")
E(f"s_sub_u32 s{sT0}, s{sWV}, 4")
E(f"s_mul_i32 s{sT1}, s{sT0}, 7168")
E(f"s_add_u32 m0, s{sT1}, {WB_LDS}")
E(f"s_mul_i32 s{sT1}, s{sT0}, {56*1024}")
for i in range(7):
    E(f"buffer_load_dwordx4 v244, s[{R_B}:{R_B+3}], s{sT1} offen{NTW} lds")
    if i < 6:
        E("s_add_u32 m0, m0, 1024")
        E(f"s_add_u32 s{sT1}, s{sT1}, 8192")
E("s_waitcnt vmcnt(0) lgkmcnt(0)")
stamp(4)
E("s_barrier")
stamp_flush(4, 1)
E("s_endpgm")

L("L_D2_init")
E(f"s_min_u32 s{sT1}, s{sC}, 6")
E(f"s_lshl_b32 s{sT1}, s{sT1}, 6")
E(f"s_mul_i32 s{sT0}, s{sG}, 448")
E(f"s_add_u32 s{sS1}, s{sT0}, s{sT1}")
E(f"s_sub_u32 s{sT3}, {1835008}, s{sS1}")
srd(R_B, sW1, f"s{sS1}", f"s{sT3}")
srd(R_C, sDBG, None, 256)
E(f"s_cmp_eq_u32 s{sWV}, 4")
E("s_cbranch_scc1 L_D2_ctl")
E(f"s_cmp_eq_u32 s{sWV}, 5")
E("s_cbranch_scc1 L_D2_flag")
E("v_lshrrev_b32 v245, 2, v1")
E("v_mul_u32_u24 v245, 3584, v245")
E("v_and_b32 v246, 3, v1")
E("v_and_b32 v247, 1, v3")
E("v_xor_b32 v246, v246, v247")
E("v_lshl_add_u32 v244, v246, 4, v245")
E("v_xor_b32 v246, 2, v246")
E("v_lshl_add_u32 v245, v246, 4, v245")
E(f"s_sub_u32 s{sT0}, s{sWV}, 6")
E(f"s_lshl_b32 s{sT1}, s{sT0}, 14")
E(f"s_add_u32 m0, s{sT1}, {WB_LDS}")
E(f"s_mul_i32 s{sT1}, s{sT0}, {256*3584}")
if LATE0 >= 2 or W1L:
    for u in range(2):
        E(f"s_cmp_lg_u32 s{sWV}, {6+u}")
        E(f"s_cbranch_scc1 L_D2_wm{u}")
        warm("d2", u, 2)
        L(f"L_D2_wm{u}")
    E("s_barrier")
for i in range(16):
    E(f"buffer_load_dwordx4 v{244 + (i//4) % 2}, s[{R_B}:{R_B+3}], s{sT1} offen{NTW} lds")
    if i < 15:
        E("s_add_u32 m0, m0, 1024")
        E(f"s_add_u32 s{sT1}, s{sT1}, {16*3584}")
if not (LATE0 >= 2 or W1L):
    for u in range(2):
        E(f"s_cmp_lg_u32 s{sWV}, {6+u}")
        E(f"s_cbranch_scc1 L_D2_wm{u}")
        warm("d2", u, 2)
        L(f"L_D2_wm{u}")
E("s_waitcnt vmcnt(0)")
stamp(4)
E("s_barrier")
stamp_flush(6, 2)
E("s_endpgm")
L("L_D2_flag")
E(f"s_lshl_b32 s{sT1}, s{sG}, 5")
E(f"s_lshl_b32 s{sT2}, s{sC}, 2")
E(f"s_add_u32 s{sT1}, s{sT1}, s{sT2}")
E(f"v_mov_b32 v{cT}, 1")
E(f"v_mov_b32 v{cT+1}, s{sT1}")
E(f"v_lshlrev_b32 v{cT+2}, 2, v1")
E("s_waitcnt vmcnt(0)")
E("s_mov_b64 exec, 1")
E(f"buffer_store_dword v{cT}, v{cT+1}, s[{R_C}:{R_C+3}], 0 offen sc1")
E("s_mov_b64 exec, -1")
if LATE0 >= 2 or W1L: E("s_barrier")
E("s_waitcnt vmcnt(0)")
L("L_D2_fpoll")
E(f"buffer_load_dword v{cT+3}, v{cT+2}, s[{R_C}:{R_C+3}], 0 offen sc1")
E("s_waitcnt vmcnt(0)")
E(f"v_cmp_ne_u32 vcc, 1, v{cT+3}")
E("s_cbranch_vccz L_D2_fok")
E("s_sleep 8")
spin_check("L_D2_fpoll")
L("L_D2_fok")
E("s_barrier")
E("s_endpgm")
L("L_D2_ctl")
ctl_head()
stamp(1)
xc_publish()
first_gather("d2x", False, lambda: d2_clear(" sc1", True))
stamp(2)
if LATE0 == 3:
    E(f"v_lshlrev_b32 v{cT}, {'3' if STW else '2'}, v1")
    E(f"s_cmp_eq_u32 s{sMODE}, 1")
    E("s_cbranch_scc0 L_D2_go")
    L("L_D2_st")
    if STW:
        E(f"buffer_load_dword v{cT+1}, v{cT}, {WSR}, s{sLOC} offen offset:{W_ST} sc1")
        E("s_waitcnt vmcnt(0)")
        E(f"v_cmp_ne_u32 vcc, -1, v{cT+1}")
    E("s_cbranch_vccnz L_D2_go")
    E("s_sleep 2")
    spin_check("L_D2_st")
    L("L_D2_go")
    stamp(3)
E("s_waitcnt lgkmcnt(0)")
if LATE0 >= 2 or W1L: E("s_barrier")
E("s_barrier")
stamp_flush(4, 1)
E("s_endpgm")
sec("d2")
L("L_D2_comp")
E(f"s_min_u32 s{sT1}, s{sC}, 6")
E(f"s_lshl_b32 s{sT1}, s{sT1}, 6")
E(f"s_mul_i32 s{sT0}, s{sG}, 448")
E(f"s_add_u32 s{sS1}, s{sT0}, s{sT1}")
if LATE0: wo_issue()
if W1L and LATE0 < 2: E("s_barrier")
srd(R_C, sB1, None, 3584)
E(f"v_and_b32 v{TT+5}, 7, v2")
E(f"v_lshlrev_b32 v{TT+5}, 1, v{TT+5}")
E(f"s_lshl_b32 s{sT1}, s{sWV}, 4")
E(f"s_add_u32 s{sT0}, s{sS1}, s{sT1}")
E(f"buffer_load_ushort v{vB1}, v{TT+5}, s[{R_C}:{R_C+3}], s{sT0} offen")
E(f"v_lshrrev_b32 v{TT+5}, 1, v{TT+2}")
E(f"v_lshl_add_u32 v{TT+5}, v{TT+1}, 1, v{TT+5}")
E(f"v_xor_b32 v{TT+5}, s{sWV}, v{TT+5}")
E(f"v_lshl_add_u32 v{aTA}, v3, 7, v{TT+2}")
E(f"v_lshlrev_b32 v{aTA}, 7, v{aTA}")
E(f"v_lshl_add_u32 v{aTA}, v{TT+3}, 3, v{aTA}")
E(f"v_lshl_add_u32 v{aTA}, v{TT+5}, 5, v{aTA}")
E(f"v_bfe_u32 v{TT+5}, v2, 1, 1")
E(f"v_lshl_add_u32 v{TT+6}, v{TT+5}, 6, v{TT+4}")
E(f"v_lshl_add_u32 v{TT+5}, v{TT+5}, 1, v{TT+1}")
E(f"v_xor_b32 v{TT+5}, s{sWV}, v{TT+5}")
E(f"v_lshlrev_b32 v{aTB}, 6, v{TT+6}")
E(f"v_lshl_add_u32 v{aTB}, v{TT+5}, 4, v{aTB}")
E(f"v_and_b32 v{TT+5}, 1, v2")
E(f"v_lshl_add_u32 v{aTB}, v{TT+5}, 3, v{aTB}")
E(f"v_add_u32 v{aTB}, {WB_LDS}, v{aTB}")
E(f"s_lshl_b32 s{sT1}, s{sWV}, 7")
E(f"v_lshlrev_b32 v{aST}, 5, v3")
E(f"v_add_u32 v{aST}, s{sT1}, v{aST}")
E(f"v_lshlrev_b32 v{aOS}, 4, v2")
E(f"v_lshl_add_u32 v{aOS}, v{TT+1}, 3, v{aOS}")
E(f"v_lshl_add_u32 v{aOS}, v{TT}, 2, v{aOS}")
E(f"s_lshl_b32 s{sT1}, s{sWV}, 8")
E(f"s_add_u32 s{sT1}, s{sT1}, {OS_LDS}")
E(f"v_add_u32 v{aOS}, s{sT1}, v{aOS}")
E(f"v_add_u32 v{aIN}, {OS_LDS}, v{vL16}")
E(f"v_lshlrev_b32 v{TT+5}, 4, v{TT+5}")
E(f"v_mov_b32 v{TT+6}, 0xffff")
E(f"v_lshlrev_b32 v{TT+6}, v{TT+5}, v{TT+6}")
E(f"v_bfe_u32 v{TT+7}, v2, 1, 2")
for d in range(4):
    E(f"v_cmp_eq_u32 vcc, {d}, v{TT+7}")
    E("s_nop 1")
    E(f"v_cndmask_b32 v{MK+d}, 0, v{TT+6}, vcc")
E(f"v_lshrrev_b32 v{vFLG}, 3, v2")
E(f"v_cmp_eq_u32 vcc, v{vFLG}, v{TT}")
E(f"v_cvt_f32_u32 v{vFLG}, v{vFLG}")
E("s_nop 0")
E(f"v_cndmask_b32 v{vVAL}, 0, -1, vcc")
E(f"s_lshl_b32 s{sT1}, s{sWV}, 12")
E(f"s_add_u32 s{sPoff}, s{sPoff}, s{sT1}")
E(f"s_lshl_b32 s{sT1}, s{sPJ}, 4")
E(f"s_add_u32 s{sPub}, s{sLOC}, s{sT1}")
E(f"s_add_u32 s{sPubG}, s{sPubG}, {W_Y}")
E(f"s_mov_b32 s{sYoff}, {W_Y}")
E(f"s_mov_b32 s{sC2}, 0")
E("s_waitcnt vmcnt(0)")
unpack_resid(XB)
E(f"v_lshlrev_b32 v{vB1}, 16, v{vB1}")
stamp(1)
E("s_barrier")
stamp(2)
for s in range(16):
    for e in range(2):
        E(f"ds_read_b64_tr_b16 {vr(WA+4*s+2*e,2)}, v{aTA} offset:{1024*s+512*e}")
for s in range(8):
    for e in range(2):
        E(f"ds_read_b64_tr_b16 {vr(WB+4*s+2*e,2)}, v{aTB} offset:{16384*e+512*s}")
read_mode("0xff", 28)
for s in range(8):
    c = "0" if s == 0 else vr(ACC,4)
    E(f"v_mfma_f32_16x16x32_bf16 {vr(ACC,4)}, {vr(ONESB,4)}, {vr(WB+4*s,4)}, {c}")
E("s_nop 7")
E(f"v_add_f32_dpp v{vCS}, v{ACC}, v{ACC} row_ror:8 row_mask:0xf bank_mask:0xf")
L("L_D2_loop")
mark("d2")
def p_loads():
    for i in range(4):
        E(f"buffer_load_dwordx4 {vr(GB+4*i,4)}, v{vL16}, {WSR}, s{sPoff} offen offset:{1024*i} sc1")
arm(vST, 8)
p_loads()
L("L_gs_poll")
E(f"buffer_load_dwordx4 {vr(vST,4)}, v{aST}, {WSR}, s{sLOC} offen offset:{W_ST} sc1")
E(f"buffer_load_dwordx4 {vr(vST+4,4)}, v{aST}, {WSR}, s{sLOC} offen offset:{W_ST+16} sc1")
E(f"s_waitcnt vmcnt({2*(PD-1)})")
E(f"v_max3_u32 v{TT}, v{vST}, v{vST+1}, v{vST+2}")
E(f"v_max3_u32 v{TT+1}, v{vST+3}, v{vST+4}, v{vST+5}")
E(f"v_max3_u32 v{TT}, v{TT}, v{vST+6}, v{vST+7}")
E(f"v_max_u32 v{TT}, v{TT}, v{TT+1}")
E(f"v_cmp_eq_u32 vcc, -1, v{TT}")
E("s_cbranch_vccz L_gs_ok")
if SLP: E(f"s_sleep {SLP}")
spin_check("L_gs_poll")
L("L_gs_ok")
p_loads()
stamp(3, True)
vM, vU, vLs = TT, TT+1, TT+2
WT = TT + 3
AW = GB + 16
E(f"v_max3_f32 v{vM}, v{vST}, v{vST+2}, v{vST+4}")
E(f"v_max_f32 v{vM}, v{vM}, v{vST+6}")
for sw in ("16", "32"):
    E(f"v_mov_b32 v{vU}, v{vM}")
    E("s_nop 1")
    E(f"v_permlane{sw}_swap_b32 v{vM}, v{vU}")
    E(f"v_max_f32 v{vM}, v{vM}, v{vU}")
for t in range(4): E(f"v_sub_f32 v{WT+t}, v{vST+2*t}, v{vM}")
for t in range(4): E(f"v_exp_f32 v{WT+t}, v{WT+t}")
E("s_nop 0")
E(f"v_mul_f32 v{vLs}, v{WT}, v{vST+1}")
for t in range(1, 4): E(f"v_fmac_f32 v{vLs}, v{WT+t}, v{vST+2*t+1}")
for sw in ("16", "32"):
    E(f"v_mov_b32 v{vU}, v{vLs}")
    E("s_nop 1")
    E(f"v_permlane{sw}_swap_b32 v{vLs}, v{vU}")
    E(f"v_add_f32 v{vLs}, v{vLs}, v{vU}")
E(f"v_rcp_f32 v{vLs}, v{vLs}")
p_loads()
for t in range(4): E(f"v_mul_f32 v{WT+t}, v{WT+t}, v{vLs}")
for t in range(4): E(f"v_cvt_pk_bf16_f32 v{WT+4+t}, v{WT+t}, v{WT+t}")
for t in range(4): E(f"v_and_b32 v{WT+4+t}, 0xffff0000, v{WT+4+t}")
for t in range(4): E(f"v_fma_f32 v{WT+t}, -v{WT+4+t}, v{vFLG}, v{WT+t}")
for t in range(4): E(f"v_cvt_pk_bf16_f32 v{WT+t}, v{WT+t}, v{WT+t}")
for t in range(4):
    for d in range(4): E(f"v_and_b32 v{AW+4*t+d}, v{MK+d}, v{WT+t}")
E("s_branch L_gp_use")
L("L_gp_nan")
E(f"s_sub_u32 s{sSPIN}, s{sSPIN}, 1")
E("s_cbranch_scc1 L_exit")
E(f"s_and_b32 s{sT1}, s{sSPIN}, 15")
E("s_cbranch_scc0 L_gp_retry")
L("L_gp_again")
p_loads()
L("L_gp_use")
E("s_waitcnt vmcnt(4)")
for t in range(4):
    E(f"v_mfma_f32_16x16x32_bf16 {vr(CA,4)}, {vr(AW+4*t,4)}, {vr(GB+4*t,4)}, {'0' if t == 0 else vr(CA,4)}")
E("s_nop 7")
E(f"v_cmp_u_f32 vcc, v{CA}, v{CA}")
E(f"v_permlane32_swap_b32 v{CA}, v{CA+2}")
E(f"v_permlane32_swap_b32 v{CA+1}, v{CA+3}")
E("s_cbranch_vccnz L_gp_nan")
L("L_gp_ok")
E(f"v_add_f32 v{CA}, v{CA}, v{CA+2}")
E(f"v_add_f32 v{CA+1}, v{CA+1}, v{CA+3}")
E(f"v_cvt_pk_bf16_f32 v{CA}, v{CA}, v{CA+1}")
E(f"ds_write_b32 v{aOS}, v{CA}")
E(f"v_mov_b32 v{vT}, 0")
stamp(4, True)
mark("d2")
E("s_waitcnt lgkmcnt(0)")
E("s_barrier")
E(f"ds_read_b128 {vr(XB,4)}, v{aIN}")
E(f"buffer_load_dwordx4 {vr(CA,4)}, v{vL16}, {WSR}, s{sLOC} offen offset:{W_X2} sc1")
E("s_waitcnt lgkmcnt(0)")
matvec(16, XB, WA, [], per=PN)
y_publish()
stamp(5, True)
mark("d2")
def pre_y():
    E(f"s_cmp_eq_u32 s{sLAY}, 0")
    E("s_cbranch_scc1 L_D2_havex")
    E("s_waitcnt vmcnt(1)")
    chk_bf16(CA, TT)
    E("s_cbranch_vccz L_gx2_have")
    gather1("gx2", CA, vL16, sLOC, W_X2, TT, pd=1, slp=0)
    L("L_gx2_have")
    unpack_resid(CA)
    L("L_D2_havex")
relay_X("gy", sYoff, pre_y)
stamp(6, True)
E(f"s_cmp_eq_u32 s{sC}, 7")
E("s_cbranch_scc1 L_D2_x1")
matvec(8, XB, WB, stats_fillers(), rows=[(0x5, 0xf, [0,1,2,3]), (0xa, 0xf, [4,5,6,7])], per=PER+2)
mark("d2")
xgroup_sum(True)
h, u, a, b = vT, TT+5, TT+6, TT+7
E(f"v_add_f32 v{h}, v{h}, v{vB1}")
E(f"v_mul_f32 v{u}, s{sC3}, |v{h}|")
E(f"v_exp_f32 v{u}, v{u}")
E(f"v_cmp_le_f32 vcc, 0, v{h}")
E(f"v_add_f32 v{b}, 2.0, v{u}")
E(f"v_fma_f32 v{a}, v{u}, 2.0, 1.0")
E(f"v_mul_f32 v{b}, v{u}, v{b}")
E(f"v_mul_f32 v{u}, v{u}, v{u}")
E(f"v_cndmask_b32 v{a}, v{b}, v{a}, vcc")
E(f"v_cndmask_b32 v{u}, 1.0, v{u}, vcc")
E(f"v_fma_f32 v{b}, v{u}, 2.0, v{a}")
E(f"v_rcp_f32 v{b}, v{b}")
E(f"v_mul_f32 v{h}, v{h}, v{a}")
E(f"v_mul_f32 v{h}, v{h}, v{b}")
E(f"v_cvt_pk_bf16_f32 v{h}, v{h}, v{h}")
E(f"v_min_u32 v{h}, -2, v{h}")
pub2("buffer_store_short", f"v{h}", aP16, sPub, sMA_f, sMA_s, W_ACT)
stamp(7, True)
L("L_D2_next")
for s_ in (sLOC, sPoff, sPub, sPubG, sYoff):
    E(f"s_add_u32 s{s_}, s{s_}, {LS}")
E(f"s_add_u32 s{sLAY}, s{sLAY}, 1")
E(f"s_cmp_lt_u32 s{sLAY}, 2")
E("s_cbranch_scc1 L_D2_loop")
stamp_flush(0, 0)
E("s_endpgm")
L("L_D2_x1")
pub_resid(W_X1)
unpack_resid(XB)
E("s_branch L_D2_next")
sec("cold")
L("L_exit")
E("s_endpgm")
L("L_gp_retry")
for i in range(0, 16, 2): E(f"v_pk_max_u16 v{ACC+i//2}, v{GB+i}, v{GB+i+1}")
for i in range(0, 8, 2): E(f"v_pk_max_u16 v{ACC+i//2}, v{ACC+i}, v{ACC+i+1}")
chk_bf16(ACC, TT)
E("s_cbranch_vccnz L_gp_again")
for t in range(4):
    E(f"v_mfma_f32_16x16x32_bf16 {vr(CA,4)}, {vr(AW+4*t,4)}, {vr(GB+4*t,4)}, {'0' if t == 0 else vr(CA,4)}")
E("s_nop 9")
E(f"v_permlane32_swap_b32 v{CA}, v{CA+2}")
E(f"v_permlane32_swap_b32 v{CA+1}, v{CA+3}")
E("s_branch L_gp_ok")
for b_ in retry_blocks: b_()
L("L_code_end")

out = [open("cdna_kernels/" + NAME + ".s.ref").read().split("; Override")[0].rstrip("\n"),
       f"; @launch grid=(256,1,1) block=(512,1,1) lds={LDS_BYTES}", '.amdgcn_target "amdgcn-amd-amdhsa--gfx950"', ".text",
       f".globl {NAME}_kernel", ".p2align 8", f".type {NAME}_kernel,@function"]
for k in ORDER:
    for x in secs[k]:
        if isinstance(x, tuple) and x[0] == "MARK":
            _, role, i = x
            n = wstep[role]
            out.append("    s_cbranch_execz " + (marks[role][i + n] if i + n < len(marks[role]) else f"L_wd_{role}{i % n}"))
        elif isinstance(x, tuple):
            _, role, first, step = x
            assert first < len(marks[role])
            out += ["    s_mov_b64 exec, 0", f"    s_branch {marks[role][first]}", f"L_wd_{role}{first}:", "    s_mov_b64 exec, -1"]
        else: out.append(x)
out.append('.section .rodata,"a"')
out.append(".p2align 6")
out.append(f".amdhsa_kernel {NAME}_kernel")
out.append("  .amdhsa_next_free_vgpr 256")
out.append("  .amdhsa_next_free_sgpr 96")
out.append("  .amdhsa_accum_offset 256")
out.append("  .amdhsa_group_segment_fixed_size 0")
out.append("  .amdhsa_kernarg_size 96")
out.append("  .amdhsa_user_sgpr_count 2")
out.append("  .amdhsa_user_sgpr_kernarg_segment_ptr 1")
out.append("  .amdhsa_system_sgpr_workgroup_id_x 1")
out.append("  .amdhsa_float_denorm_mode_32 3")
out.append(".end_amdhsa_kernel")
open(sys.argv[1], "w").write("\n".join(out) + "\n")
```

```python
import sys, math, struct
PROF = int(sys.argv[2]) if len(sys.argv) > 2 else 0
OPT = dict(a.split("=") for a in sys.argv[3:])
THR = int(OPT.get("thr", 6))
ACK = int(OPT.get("ack", 1))
PER = int(OPT.get("per", 3))
PD = int(OPT.get("pd", 4))
SLP = int(OPT.get("slp", 1))
LATE0 = int(OPT.get("late0", 0))
GP = int(OPT.get("gp", 1))
GSL = int(OPT.get("gsl", 0))
THV = int(OPT.get("thv", 8))
GD = int(OPT.get("gd", 0))
fl = lambda k, d: {"0": "", "1": " nt", "2": " sc1", "3": " sc0 sc1", "4": " sc1 nt"}[OPT.get(k, d)]
NTQ, NTW, NTK, NTV = fl("ntq", "0"), fl("ntw", "0"), fl("ntk", "1"), fl("ntv", "0")
TQ = int(OPT.get("tq", 1))
MARKGAP = int(OPT.get("gap", 768))
CPF = int(OPT.get("cpf", 1))
W1L = int(OPT.get("w1l", 1))
STW = 1
REORD = int(OPT.get("reord", 0))
PAD = int(OPT.get("pad", 1))
PN = int(OPT.get("pn", 4))
W2P = int(OPT.get("w2p", 1))
WARM = int(OPT.get("warm", 0))
NTT = fl("ntt", "0")
GFL = fl("gfl", "2")
SFL = {"2": " sc1", "3": " sc0 sc1", "4": " sc1 nt"}[OPT.get("sfl", "2")]
NAME = "interleave_layers__sliding_block_cached__dense_activation_mish__decode"
import re
ORDER = ["entry", "dinit", "d1", "actl", "a", "d2", "help", "cold"]
secs = {k: [] for k in ORDER}
cur = ["entry"]
since = {k: 0 for k in ORDER}
unsafe = [False]
marks = {k: [] for k in ORDER}
WARMED = ("d1", "a", "d2")
BIG = ("v_mfma", "v_pk_", "v_fma_", "v_max3", "v_or3", "v_add3", "v_lshl_add", "v_bfe", "v_mul_lo", "v_cvt_pk", "v_readlane", "v_writelane",
       "ds_", "buffer_", "global_", "s_load", "s_memrealtime")
def isize(t):
    if t.startswith(BIG) or "_dpp" in t or "|v" in t or (t.startswith(("v_cmp", "v_cndmask")) and "s[" in t): return 8
    ops = t.split(None, 1)[1] if " " in t else ""
    if t.startswith(("s_waitcnt", "s_nop", "s_sleep", "s_branch", "s_cbranch", "s_call", "s_getreg", "s_setprio")): return 4
    for tok in re.split(r"[,\s]+", ops):
        if re.fullmatch(r"0x[0-9a-f]+|\d+", tok) and int(tok, 0) > 64: return 8
    return 4
def sec(name): cur[0] = name
def put_mark():
    k = cur[0]
    marks[k].append(f"L_wm_{k}{len(marks[k])}")
    secs[k].append(marks[k][-1] + ":")
    secs[k].append(("MARK", k, len(marks[k]) - 1))
    since[k] = 4
def E(s=""):
    k = cur[0]
    if WARM and k in WARMED and not unsafe[0] and (since[k] >= MARKGAP or not marks[k]): put_mark()
    secs[k].append("    " + s)
    since[k] += isize(s)
    if re.match(r"s_\w+ exec", s): unsafe[0] = s != "s_mov_b64 exec, -1"
def L(s): secs[cur[0]].append(s + ":")
def vr(a, n=1): return f"v{a}" if n == 1 else f"v[{a}:{a+n-1}]"
def f32(x): return hex(struct.unpack("<I", struct.pack("<f", x))[0])

K_LDS, V_LDS = 0, 65536
WA_LDS, WB_LDS = 0, 65536
QS_LDS, PX_LDS, SX_LDS, FL_LDS = 131072, 132608, 140800, 141312
OS_LDS, XS_LDS = QS_LDS, PX_LDS
LDS_BYTES = 141824
LS = 0x30000
W_Q, W_X2, W_X1, W_ST, W_ACT = 0, 1024, 2048, 3072, 3584
W_Y, W_Z, W_P = 32768, 40960, 65536
W_Q0 = 2 * LS
W_Q0B = 32768
W_EP = W_Q0 + 65536
ALT = 0x80000
WS_USED = ALT + 2 * LS
PROF_OFF = 0x300000
WS_REC = PROF_OFF + 256 * 1024

sX, sK, sV, sWQ, sWO, sBX, sW1, sB1 = 8, 10, 12, 14, 16, 18, 20, 22
sW2, sOUT, sDBG, sWS = 24, 26, 28, 30
sG, sJ, sWV, sC, sPJ = 3, 4, 5, 6, 7
R_WS, R_A, R_B, R_C = 32, 36, 40, 44
sT0, sT1, sT2, sT3 = 48, 49, 50, 51
sLOC, sLAY = 52, 53
sYoff, sZoff, sPoff = 54, 55, 56
sSPIN = 57
sRET = 58
sMA_f, sMA_s, sMB_f, sMB_s, sMC_f, sMC_s = 60, 62, 64, 66, 68, 70
sTAG, sXCC, sQ0, sQ0B = 72, 73, 74, 75
sFFFE = 76
sC1, sC2, sC3 = 77, 78, 79
sS1, sS2, sPIV = 80, 81, 82
sPub, sPubG = 83, 84
sST = 88
sPe, sLe, sMODE = 90, 91, 92
SPIN0 = 0x200000
WSR = f"s[{R_WS}:{R_WS+3}]"

def srd(r, base, add_lo=None, rec=None):
    if add_lo is None:
        E(f"s_mov_b32 s{r}, s{base}")
        E(f"s_and_b32 s{r+1}, s{base+1}, 0xffff")
    else:
        E(f"s_add_u32 s{r}, s{base}, {add_lo}")
        E(f"s_addc_u32 s{r+1}, s{base+1}, 0")
        E(f"s_and_b32 s{r+1}, s{r+1}, 0xffff")
    E(f"s_mov_b32 s{r+2}, {rec}")
    E(f"s_mov_b32 s{r+3}, 0x00020000")

V_STAMP = 254
ROLE = ["a"]
def stamp(idx, layer_dep=False):
    if not PROF: return
    if PROF == 9 and not (idx == 8 and not layer_dep) and not (idx == 6 and layer_dep and ROLE[0] == "a" and "pt" not in OPT) and OPT.get("pt") != f"{cur[0]}_{idx}": return
    E(f"s_memrealtime s[{sST}:{sST+1}]")
    E("s_waitcnt lgkmcnt(0)")
    if layer_dep:
        E(f"s_lshl_b32 s{sT3}, s{sLAY}, 4")
        E(f"s_add_u32 s{sT3}, s{sT3}, {idx}")
        E(f"s_mov_b32 m0, s{sT3}")
        E("s_nop 0")
        E(f"v_writelane_b32 v{V_STAMP}, s{sST}, m0")
    else:
        E(f"v_writelane_b32 v{V_STAMP}, s{sST}, {idx}")
AMP = OPT.get("amp")
def amp(name):
    if AMP != name: return
    E(f"s_cmp_eq_u32 s{sLAY}, {OPT.get('amplay', '0')}")
    E(f"s_cbranch_scc0 L_amp_{name}")
    E("s_memrealtime s[94:95]")
    E("s_waitcnt lgkmcnt(0)")
    L(f"L_amp_{name}")
def ampx(name, wave):
    if AMP != name: return
    E(f"s_cmp_eq_u32 s2, {OPT.get('ampwg', '0')}")
    E(f"s_cbranch_scc0 L_amp_{name}")
    E(f"s_cmp_eq_u32 s{sWV}, {wave}")
    E(f"s_cbranch_scc0 L_amp_{name}")
    E(f"s_cmp_eq_u32 s{sLAY}, 0")
    E(f"s_cbranch_scc0 L_amp_{name}")
    E("s_memrealtime s[94:95]")
    E("s_waitcnt lgkmcnt(0)")
    if name == "xs": E("s_mov_b32 s94, s86")
    if name == "xa": E("s_mov_b32 s94, s88")
    E("v_mov_b32 v246, s94")
    E(f"v_mov_b32 v247, {W_EP + 64}")
    E(f"buffer_store_dword v246, v247, {WSR}, 0 offen sc1")
    L(f"L_amp_{name}")
def stamp_flush(wave, slot, dbg=None):
    if not PROF: return
    E(f"s_cmp_lg_u32 s{sWV}, {wave}")
    E("s_cbranch_scc1 L_exit")
    E("s_mov_b64 exec, -1")
    if dbg and "dbg" in OPT:
        wg, off, idx = dbg
        for i, x in enumerate(idx):
            E(f"v_readlane_b32 s{sT0}, v{V_STAMP}, {x}")
            E("s_nop 3")
            E(f"v_writelane_b32 v{V_STAMP-2}, s{sT0}, {i}")
        srd(R_A, sDBG, None, 256)
        E(f"v_lshlrev_b32 v{V_STAMP-1}, 2, v1")
        E(f"s_cmp_eq_u32 s2, {wg}")
        E(f"s_cselect_b32 exec_lo, {(1 << len(idx)) - 1}, 0")
        E("s_mov_b32 exec_hi, 0")
        E(f"buffer_store_dword v{V_STAMP-2}, v{V_STAMP-1}, s[{R_A}:{R_A+3}], 0 offen offset:{off}")
        E("s_mov_b64 exec, -1")
    E(f"s_lshl_b32 s{sT0}, s2, 10")
    E(f"s_add_u32 s{sT0}, s{sT0}, {PROF_OFF + slot*256}")
    E(f"v_lshlrev_b32 v{V_STAMP-1}, 2, v1")
    E(f"buffer_store_dword v{V_STAMP}, v{V_STAMP-1}, {WSR}, s{sT0} offen")

wstep = {}
def mark(role): pass
def warm(role, first=0, step=1):
    if WARM:
        secs[cur[0]].append(("WARM", role, first, step))
        assert wstep.setdefault(role, step) == step

def spin_check(fail_label):
    E(f"s_sub_u32 s{sSPIN}, s{sSPIN}, 1")
    E(f"s_cbranch_scc1 L_exit")
    E(f"s_branch {fail_label}")

def chk_bf16(v, t):
    E(f"v_pk_max_u16 v{t}, v{v}, v{v+1}")
    E(f"v_pk_max_u16 v{t+1}, v{v+2}, v{v+3}")
    E(f"v_pk_max_u16 v{t}, v{t}, v{t+1}")
    E(f"v_pk_max_u16 v{t}, v{t}, v{t} op_sel:[0,1] op_sel_hi:[1,0]")
    E(f"v_cmp_eq_u32 vcc, -1, v{t}")

def pub2(op, data, addr, soff, mf, ms, imm=0):
    o = f" offset:{imm}" if imm else ""
    E(f"s_mov_b64 exec, s[{mf}:{mf+1}]")
    E(f"{op} {data}, v{addr}, {WSR}, s{soff} offen{o}")
    E(f"s_mov_b64 exec, s[{ms}:{ms+1}]")
    E(f"{op} {data}, v{addr}, {WSR}, s{soff} offen{o} sc1")
    E("s_mov_b64 exec, -1")

def masks(mf, ms, lo, hi):
    E(f"s_cselect_b32 s{mf}, {lo}, 0")
    E(f"s_cselect_b32 s{mf+1}, {hi}, 0")
    E(f"s_cselect_b32 s{ms}, 0, {lo}")
    E(f"s_cselect_b32 s{ms+1}, 0, {hi}")

def arm(dst, n):
    for r in range(n): E(f"v_mov_b32 v{dst+r}, -1")

def gather1(tag, dst, addr, soff, imm, t, pd=None, slp=None):
    pd = PD if pd is None else pd
    slp = SLP if slp is None else slp
    L(f"L_{tag}_poll")
    E(f"buffer_load_dwordx4 {vr(dst,4)}, v{addr}, {WSR}, s{soff} offen offset:{imm} sc1")
    E(f"s_waitcnt vmcnt({pd-1})")
    chk_bf16(dst, t)
    E(f"s_cbranch_vccz L_{tag}_ok")
    if slp: E(f"s_sleep {slp}")
    spin_check(f"L_{tag}_poll")
    L(f"L_{tag}_ok")

cD, cA, cXa, cG, cT, cL16 = 208, 210, 211, 212, 224, 232
def xc_publish():
    E(f"s_getreg_b32 s{sXCC}, hwreg(HW_REG_XCC_ID, 0, 4)")
    E(f"v_mov_b32 v{cD+1}, s{sTAG}")
    E(f"s_lshl_b32 s{sT3}, s{sJ}, 3")
    E(f"v_mov_b32 v{cD}, s{sXCC}")
    E(f"v_mov_b32 v{cA}, s{sT3}")
    E("s_mov_b64 exec, 1")
    E(f"buffer_store_dwordx2 {vr(cD,2)}, v{cA}, {WSR}, s{sQ0} offen offset:2048")
    E("s_mov_b64 exec, -1")

def first_gather(tag, with_q, clear_alt, armed=False):
    regs = (1, 3, 5, 7) if with_q else (9,)
    nl = 3 if with_q else 1
    E(f"s_sub_u32 s{sS2}, s{sSPIN}, 160")
    if not armed:
        E(f"v_and_b32 v{cXa}, 31, v1")
        E(f"v_lshlrev_b32 v{cXa}, 3, v{cXa}")
        E(f"s_not_b32 s{sT1}, s{sTAG}")
        for r in regs + ((9,) if with_q else ()): E(f"v_mov_b32 v{cG+r}, s{sT1}")
    def loads(so):
        if with_q:
            E(f"buffer_load_dwordx4 {vr(cG,4)}, v{cL16}, {WSR}, s{so} offen sc1")
            E(f"buffer_load_dwordx4 {vr(cG+4,4)}, v{cL16}, {WSR}, s{so} offen offset:1024 sc1")
        E(f"buffer_load_dwordx2 {vr(cG+8,2)}, v{cXa}, {WSR}, s{so} offen offset:2048 sc1")
    def check():
        if with_q:
            for i, r in enumerate(regs): E(f"v_xor_b32 v{cT+i}, s{sTAG}, v{cG+r}")
            E(f"v_or3_b32 v{cT}, v{cT}, v{cT+1}, v{cT+2}")
            E(f"v_or_b32 v{cT}, v{cT}, v{cT+3}")
            E(f"v_cmp_ne_u32 vcc, 0, v{cT}")
        else:
            E(f"v_cmp_ne_u32 vcc, s{sTAG}, v{cG+9}")
    def copy_b():
        E("s_mov_b64 exec, 1")
        E(f"buffer_store_dwordx2 {vr(cD,2)}, v{cA}, {WSR}, s{sQ0B} offen offset:2048 sc1")
        E("s_mov_b64 exec, -1")
    L(f"L_{tag}_poll")
    loads(sQ0)
    E(f"s_waitcnt vmcnt({24 if armed else nl*6})")
    check()
    E(f"s_cbranch_vccz L_{tag}_seen")
    E("s_sleep 3")
    E(f"s_cmp_gt_u32 s{sSPIN}, s{sS2}")
    E(f"s_cbranch_scc0 L_{tag}_b")
    spin_check(f"L_{tag}_poll")
    home = cur[0]; sec("cold")
    L(f"L_{tag}_b")
    copy_b()
    L(f"L_{tag}_alt")
    for so in (sQ0B, sQ0):
        loads(so)
        E("s_waitcnt vmcnt(0)")
        check()
        E(f"s_cbranch_vccz L_{tag}_{'altok' if with_q else 'ok'}")
    spin_check(f"L_{tag}_alt")
    if with_q:
        L(f"L_{tag}_altok")
        E(f"s_not_b32 s{sT1}, s{sTAG}")
        E(f"v_mov_b32 v{cG+9}, s{sT1}")
        E(f"s_branch L_{tag}_ok")
    sec(home)
    L(f"L_{tag}_seen")
    E("s_nop 15")
    L(f"L_{tag}_ok")
    if with_q:
        E(f"ds_write2_b32 v{cT+5}, v{cG}, v{cG+2} offset0:0 offset1:1")
        E(f"ds_write2_b32 v{cT+5}, v{cG+4}, v{cG+6} offset0:160 offset1:161")
        return
    E(f"v_cmp_ne_u32 vcc, s{sXCC}, v{cG+8}")
    E("s_nop 3")
    if OPT.get("slow") == "1": E("s_mov_b64 vcc, -1")
    E("s_cmp_eq_u64 vcc, 0")
    E(f"s_cselect_b32 s{sMODE}, 1, 0")
    E(f"s_cbranch_scc0 L_{tag}_slow")
    sec("cold")
    L(f"L_{tag}_slow")
    E("s_waitcnt vmcnt(0) lgkmcnt(0)")
    copy_b()
    if clear_alt: clear_alt()
    if clear_alt:
        E("s_waitcnt vmcnt(0)")
        E("s_mov_b64 exec, 1")
        E(f"buffer_store_dwordx2 {vr(cD,2)}, v{cA}, {WSR}, s{sQ0B} offen offset:2560 sc1")
        E("s_mov_b64 exec, -1")
    E(f"v_and_b32 v{cXa}, 56, v{cXa}")
    E(f"v_add_u32 v{cXa}, 192, v{cXa}")
    L(f"L_{tag}_h")
    E(f"buffer_load_dwordx2 {vr(cG+8,2)}, v{cXa}, {WSR}, s{sQ0B} offen offset:2560 sc1")
    E("s_waitcnt vmcnt(0)")
    E(f"v_cmp_ne_u32 vcc, s{sTAG}, v{cG+9}")
    E(f"s_cbranch_vccz L_{tag}_done")
    spin_check(f"L_{tag}_h")
    sec(home)
    L(f"L_{tag}_done")
    E(f"v_mov_b32 v{cT+2}, {FL_LDS}")
    E(f"v_mov_b32 v{cT+3}, s{sMODE}")
    E(f"ds_write_b32 v{cT+2}, v{cT+3}")

L(f"{NAME}_kernel")
E("s_cmp_ge_u32 s2, 256")
E("s_cbranch_scc1 L_exit")
E("s_load_dwordx16 s[8:23], s[0:1], 0")
E("s_load_dwordx8 s[24:31], s[0:1], 64")
if PROF:
    E(f"v_mov_b32 v{V_STAMP}, 0")
    E(f"s_memrealtime s[{sST}:{sST+1}]")
if AMP: E("s_memrealtime s[86:87]")
E("s_getpc_b64 s[92:93]")
E("v_lshrrev_b32 v1, 6, v0")
E(f"s_and_b32 s{sG}, s2, 7")
E(f"v_readfirstlane_b32 s{sWV}, v1")
E(f"s_lshr_b32 s{sJ}, s2, 3")
E("v_and_b32 v1, 63, v0")
if CPF:
    E("s_and_b32 s92, s92, 0xffffff00")
    E("v_lshlrev_b32 v4, 7, v1")
    E("v_add_u32 v5, 0x2000, v4")
    E(f"v_min_u32 v5, L_code_end-{NAME}_kernel-4, v5")
    E(f"s_cmp_lg_u32 s{sWV}, 7")
    E("s_cbranch_scc1 L_nocpf")
    E("global_load_dword v239, v4, s[92:93]")
    E("global_load_dword v239, v5, s[92:93]")
    L("L_nocpf")
E("v_and_b32 v2, 15, v0")
E("v_lshrrev_b32 v3, 4, v1")
E(f"s_mov_b32 s{sSPIN}, {SPIN0}")
E(f"s_mov_b32 s{sLAY}, 0")
E(f"s_lshl_b32 s{sLOC}, s{sG}, 12")
E(f"s_lshl_b32 s{sPoff}, s{sG}, 14")
E(f"s_add_u32 s{sPoff}, s{sPoff}, {W_P}")
E(f"s_add_u32 s{sQ0}, s{sLOC}, {W_Q0}")
E(f"s_add_u32 s{sQ0B}, s{sQ0}, {W_Q0B}")
E("v_lshrrev_b32 v5, 3, v1")
E("v_and_b32 v6, 7, v1")
E("v_lshlrev_b32 v4, 13, v5")
E("v_lshl_add_u32 v4, v6, 7, v4")
E(f"s_lshl_b32 s{sT0}, s{sJ}, 17")
E(f"s_lshl_b32 s{sT1}, s{sG}, 10")
E(f"s_add_u32 s{sT0}, s{sT0}, s{sT1}")
E(f"s_sub_u32 s{sT1}, s{sWV}, 1")
E(f"s_lshl_b32 s{sT2}, s{sT1}, 16")
E(f"s_add_u32 s{sT0}, s{sT0}, s{sT2}")
E(f"s_mov_b32 s{sT2}, {W_EP}")
E("v_mov_b32 v7, 0")
E(f"s_cmp_lt_u32 s{sT1}, 2")
E("s_waitcnt lgkmcnt(0)")
E("s_cbranch_scc0 L_notouch")
srd(R_C, sWQ, None, 4194304)
if TQ: E(f"buffer_load_dword v240, v4, s[{R_C}:{R_C+3}], s{sT0} offen{NTQ}")
L("L_notouch")
if AMP == "xa":
    E("s_memrealtime s[88:89]")
    E("s_waitcnt lgkmcnt(0)")
srd(R_WS, sWS, None, WS_REC if PROF else WS_USED)
E(f"buffer_load_dword v241, v7, {WSR}, s{sT2} offen sc1")
if PROF: E(f"v_writelane_b32 v{V_STAMP}, s{sST}, 60")
E(f"v_mov_b32 v{cA}, 0")
E(f"v_lshlrev_b32 v{cL16}, 4, v1")
E(f"s_cmp_ge_u32 s{sJ}, 16")
E("s_cbranch_scc1 L_D_init")

E(f"s_lshl_b32 s{sT0}, s{sG}, 24")
E(f"s_lshl_b32 s{sT1}, s{sJ}, 16")
E(f"s_add_u32 s{sT0}, s{sT0}, s{sT1}")
E(f"s_add_u32 s{sT0}, s{sT0}, {61440*256}")
srd(R_A, sK, f"s{sT0}", 65536)
srd(R_B, sV, f"s{sT0}", 65536)
E("v_xor_b32 v4, v2, v3")
E("v_lshlrev_b32 v4, 4, v4")
E("v_lshl_add_u32 v4, v3, 8, v4")
E("v_lshlrev_b32 v5, 1, v3")
E("v_xor_b32 v5, v2, v5")
E("v_lshlrev_b32 v5, 4, v5")
E("v_lshl_add_u32 v5, v3, 8, v5")
E(f"s_add_u32 s{sC1}, s{sJ}, s{sG}")
E(f"s_cmp_eq_u32 s{sWV}, 4")
E("s_cbranch_scc1 L_A_ctl")
E(f"s_cmp_gt_u32 s{sWV}, 4")
E("s_cbranch_scc1 L_A_help")
E(f"s_lshl_b32 s{sT0}, s{sWV}, 14")
E(f"s_add_u32 s{sT3}, s{sC1}, 16")
L("L_A_kl")
E(f"s_and_b32 s{sT1}, s{sC1}, 15")
E(f"s_and_b32 s{sT2}, s{sT1}, 3")
E(f"s_lshl_b32 s{sT2}, s{sT2}, 6")
E(f"s_lshl_b32 s{sT1}, s{sT1}, 10")
E(f"s_add_u32 s{sT1}, s{sT1}, s{sT0}")
E(f"s_mov_b32 m0, s{sT1}")
E(f"v_xor_b32 v6, s{sT2}, v4")
E(f"s_waitcnt vmcnt({THR-1})")
E(f"buffer_load_dwordx4 v6, s[{R_A}:{R_A+3}], s{sT1} offen{NTK} lds")
E(f"s_add_u32 s{sC1}, s{sC1}, 1")
E(f"s_cmp_lt_u32 s{sC1}, s{sT3}")
E("s_cbranch_scc1 L_A_kl")
E("s_branch L_A_setup")
L("L_A_help")
E(f"s_sub_u32 s{sT0}, s{sWV}, 5")
E(f"s_lshl_b32 s{sC1}, s{sC1}, 2")
E(f"s_mov_b32 s{sT3}, 0")
THV1, NV1 = int(OPT.get("thv1", 0)), int(OPT.get("nv1", 15))
if THV1:
    L("L_A_vl1")
    E(f"s_add_u32 s{sT1}, s{sC1}, s{sT0}")
    E(f"s_and_b32 s{sT1}, s{sT1}, 63")
    E(f"s_and_b32 s{sT2}, s{sT1}, 1")
    E(f"s_lshl_b32 s{sT2}, s{sT2}, 7")
    E(f"s_lshl_b32 s{sT1}, s{sT1}, 10")
    E(f"s_add_u32 m0, s{sT1}, {V_LDS}")
    E(f"v_xor_b32 v6, s{sT2}, v5")
    E(f"s_waitcnt vmcnt({THV1-1})")
    E(f"buffer_load_dwordx4 v6, s[{R_B}:{R_B+3}], s{sT1} offen{NTV} lds")
    E(f"s_add_u32 s{sT0}, s{sT0}, 3")
    E(f"s_cmp_lt_u32 s{sT0}, {NV1}")
    E("s_cbranch_scc1 L_A_vl1")
L("L_A_vl")
E(f"s_add_u32 s{sT1}, s{sC1}, s{sT0}")
E(f"s_and_b32 s{sT1}, s{sT1}, 63")
E(f"s_and_b32 s{sT2}, s{sT1}, 1")
E(f"s_lshl_b32 s{sT2}, s{sT2}, 7")
E(f"s_lshl_b32 s{sT1}, s{sT1}, 10")
E(f"s_add_u32 m0, s{sT1}, {V_LDS}")
E(f"v_xor_b32 v6, s{sT2}, v5")
E(f"s_waitcnt vmcnt({THV-1})")
E(f"buffer_load_dwordx4 v6, s[{R_B}:{R_B+3}], s{sT1} offen{NTV} lds")
E(f"s_add_u32 s{sT0}, s{sT0}, 3")
E(f"s_cmp_lt_u32 s{sT0}, 64")
E("s_cbranch_scc1 L_A_vl")
stamp(1)
E("s_branch L_A_pf2")
sec("actl")
L("L_A_pf2")
E(f"s_mul_i32 s{sT1}, s{sG}, {224*1024}")
E(f"s_mul_i32 s{sT2}, s{sJ}, 14336")
E(f"s_add_u32 s{sT1}, s{sT1}, s{sT2}")
E(f"s_cmp_eq_u32 s{sWV}, 6")
E(f"s_cselect_b32 s{sT3}, {14336 if W2P else 0}, 0")
srd(R_C, sW2, f"s{sT1}", f"s{sT3}")
E(f"s_mov_b32 s{sT1}, 0")
E(f"s_mov_b32 s{sT2}, 8192")
E("v_lshlrev_b32 v6, 7, v1")
E(f"buffer_load_dword v240, v6, s[{R_C}:{R_C+3}], s{sT1} offen{NTT}")
E(f"buffer_load_dword v240, v6, s[{R_C}:{R_C+3}], s{sT2} offen{NTT}")
E("s_barrier")
E("s_waitcnt vmcnt(2)")
stamp(2)
ampx("xv", 5)
E("s_barrier")
stamp_flush(5, 2)
E("s_endpgm")
sec("a")
L("L_A_setup")
stamp(1)
KF, VF, QF, SC, PB, OD, OUTV, PF, STT = 16, 80, 144, 160, 176, 144, 176, 184, 216
T = 224
E("v_xor_b32 v4, v2, v3")
E("v_lshlrev_b32 v4, 4, v4")
E("v_lshl_add_u32 v4, v2, 8, v4")
E(f"v_add_u32 v4, s{sT0}, v4")
E("v_xor_b32 v5, 64, v4")
E("v_xor_b32 v6, 0x80, v4")
E("v_xor_b32 v7, 0xc0, v4")
E("v_and_b32 v15, 3, v2")
E("v_mul_u32_u24 v8, 320, v15")
E("v_lshl_add_u32 v8, v3, 4, v8")
E(f"v_add_u32 v8, {QS_LDS}, v8")
E("v_lshlrev_b32 v10, 4, v1")
E(f"v_add_u32 v10, {PX_LDS}, v10")
E(f"s_lshl_b32 s{sT1}, s{sWV}, 11")
E(f"v_add_u32 v9, s{sT1}, v10")
E("v_lshlrev_b32 v12, 5, v2")
E(f"v_add_u32 v12, {SX_LDS}, v12")
E(f"s_lshl_b32 s{sT1}, s{sWV}, 3")
E(f"v_add_u32 v11, s{sT1}, v12")
E("v_lshlrev_b32 v13, 12, v15")
E("v_lshl_add_u32 v13, v3, 3, v13")
E("v_bfe_u32 v14, v2, 2, 1")
E("v_lshl_add_u32 v13, v14, 5, v13")
E(f"s_lshl_b32 s{sT1}, s{sWV}, 6")
E(f"v_add_u32 v13, s{sT1}, v13")
E(f"v_cmp_eq_u32 s[{sMC_f}:{sMC_f+1}], 1, v14")
E(f"v_lshlrev_b32 v14, 7, v15")
E(f"v_lshrrev_b32 v{T}, 2, v2")
E(f"v_lshl_add_u32 v{T}, v3, 2, v{T}")
E(f"v_and_b32 v{T+1}, 7, v{T}")
E(f"s_lshl_b32 s{sT1}, s{sWV}, 1")
E(f"v_xor_b32 v{T+1}, s{sT1}, v{T+1}")
E(f"v_lshlrev_b32 v{T}, 8, v{T}")
E(f"v_lshl_add_u32 v{T}, v{T+1}, 5, v{T}")
E(f"v_lshl_add_u32 v{T}, v15, 3, v{T}")
E(f"v_add_u32 v{T}, {V_LDS}, v{T}")
E(f"v_xor_b32 v{T+1}, 32, v{T}")
E(f"s_lshl_b32 s{sT1}, s{sJ}, 8")
E(f"s_add_u32 s{sPoff}, s{sPoff}, s{sT1}")
E(f"s_and_b32 s{sT1}, s{sJ}, 3")
E(f"s_lshl_b32 s{sT1}, s{sT1}, 5")
E(f"s_lshr_b32 s{sT2}, s{sJ}, 2")
E(f"s_lshl_b32 s{sT2}, s{sT2}, 3")
E(f"s_add_u32 s{sT1}, s{sT1}, s{sT2}")
E(f"s_add_u32 s{sPub}, s{sT1}, {W_ST}")
E(f"s_mov_b32 s{sC1}, {f32((128**-0.5)*math.log2(math.e))}")
E(f"s_mov_b32 s{sFFFE}, 0xfffefffe")
E(f"v_mov_b32 v{T+2}, {FL_LDS}")
E(f"v_mov_b32 v{T+8}, s{sC1}")
E(f"s_cmp_eq_u32 s{sWV}, 0")
E(f"s_cselect_b32 s{sC2}, 15, 0")
E(f"s_mov_b32 s{sMB_f+1}, 0")
E(f"s_mov_b32 s{sMB_s+1}, 0")
E("s_waitcnt vmcnt(0)")
stamp(2)
ampx("xk", 0)
for e in range(4):
    for s in range(4):
        E(f"ds_read_b128 {vr(KF+(e*4+s)*4,4)}, v{4+s} offset:{4096*e}")
L("L_A_b1")
mark("a")
E("s_barrier")
for s in range(4):
    E(f"ds_read_b128 {vr(QF+4*s,4)}, v8 offset:{64*s}")
stamp(3, True)
def qk(e, s):
    c = "0" if s == 0 else vr(SC+4*e,4)
    E(f"v_mfma_f32_16x16x32_bf16 {vr(SC+4*e,4)}, {vr(KF+(e*4+s)*4,4)}, {vr(QF+4*s,4)}, {c}")
for s in range(4):
    E(f"s_waitcnt lgkmcnt({3-s})")
    qk(0, s); qk(1, s)
for s in range(4):
    qk(2, s); qk(3, s)
E(f"v_max3_f32 v{T+4}, v{SC}, v{SC+1}, v{SC+2}")
E(f"v_max3_f32 v{T+5}, v{SC+3}, v{SC+4}, v{SC+5}")
E(f"v_max3_f32 v{T+4}, v{T+4}, v{SC+6}, v{SC+7}")
E("s_nop 3")
E(f"v_max3_f32 v{T+5}, v{T+5}, v{SC+8}, v{SC+9}")
E(f"v_max3_f32 v{T+4}, v{T+4}, v{SC+10}, v{SC+11}")
E(f"v_max3_f32 v{T+5}, v{T+5}, v{SC+12}, v{SC+13}")
E(f"v_max3_f32 v{T+4}, v{T+4}, v{SC+14}, v{SC+15}")
E(f"v_max_f32 v{T+4}, v{T+4}, v{T+5}")
E(f"v_mov_b32 v{T+5}, v{T+4}")
E("s_nop 1")
E(f"v_permlane16_swap_b32 v{T+4}, v{T+5}")
E(f"v_max_f32 v{T+4}, v{T+4}, v{T+5}")
E(f"v_mov_b32 v{T+5}, v{T+4}")
E("s_nop 1")
E(f"v_permlane32_swap_b32 v{T+4}, v{T+5}")
E(f"v_max_f32 v{T+4}, v{T+4}, v{T+5}")
E(f"v_mul_f32 v{T+6}, s{sC1}, v{T+4}")
for i in range(8):
    E(f"v_pk_fma_f32 {vr(SC+2*i,2)}, {vr(SC+2*i,2)}, {vr(T+8,2)}, {vr(T+6,2)} op_sel_hi:[1,0,0] neg_lo:[0,0,1] neg_hi:[0,0,1]")
for i in range(8):
    E(f"v_exp_f32 v{SC+i}, v{SC+i}")
E(f"v_exp_f32 v{SC+8}, v{SC+8}")
for i in range(4):
    E(f"v_cvt_pk_bf16_f32 v{PB+i}, v{SC+2*i}, v{SC+2*i+1}")
E(f"ds_write_b128 v9, {vr(PB,4)}")
for i in range(9, 16):
    E(f"v_exp_f32 v{SC+i}, v{SC+i}")
E(f"v_add_f32 v{T+7}, v{SC}, v{SC+1}")
for i in range(4, 8):
    E(f"v_cvt_pk_bf16_f32 v{PB+i}, v{SC+2*i}, v{SC+2*i+1}")
E(f"ds_write_b128 v9, {vr(PB+4,4)} offset:1024")
for i in range(4):
    E(f"v_pk_add_f32 {vr(SC+2+ 0,2) if False else vr(SC+4*i,2)}, {vr(SC+4*i,2)}, {vr(SC+4*i+2,2)}")
E(f"v_pk_add_f32 {vr(SC,2)}, {vr(SC,2)}, {vr(SC+4,2)}")
E(f"v_pk_add_f32 {vr(SC+8,2)}, {vr(SC+8,2)}, {vr(SC+12,2)}")
E(f"v_pk_add_f32 {vr(SC,2)}, {vr(SC,2)}, {vr(SC+8,2)}")
E(f"v_add_f32 v{T+7}, v{SC}, v{SC+1}")
E(f"v_mov_b32 v{T+5}, v{T+7}")
E("s_nop 1")
E(f"v_permlane16_swap_b32 v{T+7}, v{T+5}")
E(f"v_add_f32 v{T+7}, v{T+7}, v{T+5}")
E(f"v_mov_b32 v{T+5}, v{T+7}")
E("s_nop 1")
E(f"v_permlane32_swap_b32 v{T+7}, v{T+5}")
E(f"v_add_f32 v{T+7}, v{T+7}, v{T+5}")
E(f"ds_write_b64 v11, {vr(T+6,2)}")
stamp(4, True)
mark("a")
E("s_waitcnt lgkmcnt(0)")
E("s_barrier")
ampx("xb", 0)
E(f"ds_read_b32 v{T+3}, v{T+2}")
for b in range(2):
    E(f"ds_read_b128 {vr(STT+4*b,4)}, v12 offset:{16*b}")
for b in range(8):
    E(f"ds_read_b128 {vr(PF+4*b,4)}, v10 offset:{1024*b}")
stamp(5, True)
E(f"s_cmp_lg_u32 s{sLAY}, 0")
E("s_cbranch_scc1 L_A_havev")
for tp in range(2):
    for b in range(8):
        for e in range(2):
            E(f"ds_read_b64_tr_b16 {vr(VF+(tp*8+b)*4+2*e,2)}, v{T+tp} offset:{(32*b+16*e)*256}")
E("s_waitcnt lgkmcnt(0)")
L("L_A_havev")
E("s_waitcnt lgkmcnt(8)")
F = STT
va = [f"v_max3_f32 v{T+4}, v{STT}, v{STT+2}, v{STT+4}", f"v_max_f32 v{T+6}, v{T+4}, v{STT+6}"]
va += [f"v_sub_f32 v{F+2*b}, v{STT+2*b}, v{T+6}" for b in range(4)]
va += [f"v_exp_f32 v{F+2*b}, v{F+2*b}" for b in range(4)]
va += [f"v_mul_f32 v{T+7}, v{F}, v{STT+1}"] + [f"v_fmac_f32 v{T+7}, v{F+2*b}, v{STT+2*b+1}" for b in range(1, 4)]
E(f"v_readfirstlane_b32 s{sMODE}, v{T+3}")
for x in va[:2]: E(x)
sa = [f"s_cmp_eq_u32 s{sMODE}, 1", f"s_cselect_b32 s{sMB_f}, s{sC2}, 0", f"s_cselect_b32 s{sMB_s}, 0, s{sC2}",
      f"s_cselect_b32 s{sMA_f}, 0x00ff00ff, 0", f"s_cselect_b32 s{sMA_f+1}, 0x00ff00ff, 0", f"s_cselect_b32 s{sMA_s}, 0, 0x00ff00ff",
      f"s_cselect_b32 s{sMA_s+1}, 0, 0x00ff00ff", f"s_cselect_b32 s{sT2}, 0, {ALT}", f"s_add_u32 s{sPe}, s{sPoff}, s{sT2}",
      f"s_add_u32 s{sT2}, s{sLOC}, s{sT2}", f"s_add_u32 s{sT2}, s{sT2}, s{sPub}"]
k = 2
for u in range(8):
    E(f"s_waitcnt lgkmcnt({7-u})")
    for tp in range(2):
        d = vr(OD+(tp*4+u//2)*4,4)
        E(f"v_mfma_f32_16x16x32_bf16 {d}, {vr(VF+(tp*8+u)*4,4)}, {vr(PF+4*u,4)}, {'0' if u % 2 == 0 else d}")
        if k < len(va): E(va[k]); k += 1
        if sa and u >= 1: E(sa.pop(0)); E(sa.pop(0)) if sa else None
    if u == 5:
        assert k == len(va)
        E(f"v_min_u32 v{T+6}, -2, v{T+6}")
        E(f"v_min_u32 v{T+7}, -2, v{T+7}")
        pub2("buffer_store_dwordx2", vr(T+6,2), 14, sT2, sMB_f, sMB_s)
def cb(b):
    for tp in range(2):
        for h in range(2):
            o = vr(OUTV+4*tp+2*h,2)
            if b == 0: E(f"v_pk_mul_f32 {o}, {vr(OD+tp*16+2*h,2)}, {vr(F,2)} op_sel_hi:[1,0]")
            else: E(f"v_pk_fma_f32 {o}, {vr(OD+(tp*4+b)*4+2*h,2)}, {vr(F+2*b,2)}, {o} op_sel_hi:[1,0,1]")
for b in range(4): cb(b)
for r in range(4):
    E(f"v_cndmask_b32 v{OUTV+r}, v{OUTV+r}, v{OUTV+4+r}, s[{sMC_f}:{sMC_f+1}]")
E(f"v_cvt_pk_bf16_f32 v{OUTV}, v{OUTV}, v{OUTV+1}")
E(f"v_cvt_pk_bf16_f32 v{OUTV+1}, v{OUTV+2}, v{OUTV+3}")
E(f"v_pk_min_u16 v{OUTV}, v{OUTV}, s{sFFFE}")
E(f"v_pk_min_u16 v{OUTV+1}, v{OUTV+1}, s{sFFFE}")
pub2("buffer_store_dwordx2", vr(OUTV,2), 13, sPe, sMA_f, sMA_s)
stamp(6, True)
ampx("xp", 0)
E(f"s_add_u32 s{sPoff}, s{sPoff}, {LS}")
E(f"s_add_u32 s{sLOC}, s{sLOC}, {LS}")
E(f"s_add_u32 s{sLAY}, s{sLAY}, 1")
E(f"s_cmp_lt_u32 s{sLAY}, 2")
E("s_cbranch_scc1 L_A_b1")
stamp_flush(0, 0, (int(OPT.get("dbg", 0)), 36, [60, 2, 3, 5, 6, 19, 22]))
E("s_endpgm")
sec("actl")
L("L_A_ctl")
E("s_waitcnt vmcnt(0)")
E(f"v_readfirstlane_b32 s{sTAG}, v241")
E("s_nop 3")
E(f"s_add_u32 s{sTAG}, s{sTAG}, 1")
ampx("xe", 4)
ampx("xs", 4)
ampx("xa", 4)
xc_publish()
warm("a")
E(f"v_lshrrev_b32 v{cT+5}, 5, v1")
E(f"v_lshlrev_b32 v{cT+5}, 6, v{cT+5}")
E(f"v_lshl_add_u32 v{cT+5}, v1, 3, v{cT+5}")
E(f"v_add_u32 v{cT+5}, {QS_LDS}, v{cT+5}")
first_gather("aq0", True, None)
stamp(2)
ampx("xq", 4)
E("s_waitcnt lgkmcnt(0)")
E("s_barrier")
first_gather("ax", False, None, armed=True)
stamp(3)
E("s_waitcnt lgkmcnt(0)")
E(f"s_cmp_eq_u32 s{sMODE}, 1")
E(f"s_cselect_b32 s{sT2}, 0, {ALT}")
E(f"s_add_u32 s{sLe}, s{sLOC}, s{sT2}")
E(f"s_add_u32 s{sLe}, s{sLe}, {LS}")
E(f"v_lshl_add_u32 v{cT+2}, v3, 6, v{cL16}")
E(f"v_add_u32 v{cT+2}, {QS_LDS}, v{cT+2}")
E("s_barrier")
E("s_waitcnt vmcnt(0)")
arm(cG, 4)
gather1("aq", cG, cL16, sLe, W_Q, cT)
E(f"ds_write_b128 v{cT+2}, {vr(cG,4)}")
stamp(18)
E("s_waitcnt lgkmcnt(0)")
E("s_barrier")
stamp_flush(4, 1)
E("s_endpgm")

vL16, aXIO, aTA, aTB, aIN, aST, aP16, aPY, vONE, aOS, aXS = 4, 5, 6, 7, 8, 9, 10, 11, 12, 13, 14
SEL0, ONESB, XR, XN, XB, vT = 16, 24, 28, 36, 44, 48
TT = 49
vB1, vCS, aGX, vINV, vVAL = 15, 0, 249, 250, 252
GB, WA, ACC, WB = 64, 96, 160, 192
vST, CA, MK, vFLG = 224, 232, 236, 248
NACC = 8

retry_blocks = []
def gather_X(tag, soff, role, hook=None):
    def loads():
        for i in range(8):
            so = soff if i < 4 else sT0
            E(f"buffer_load_dwordx4 {vr(GB+4*i,4)}, v{aGX}, {WSR}, s{so} offen offset:{256*(i%4)}{GFL}")
    def sums(wait):
        for i in range(8):
            if wait is not None: E(f"s_waitcnt vmcnt({wait + 7 - i})")
            e, w = (i % 4) // 2, i % 2
            c = vr(XR+4*e,4) if i in (0, 2) else vr(XN+4*e,4)
            E(f"v_mfma_f32_16x16x32_bf16 {vr(XN+4*e,4)}, {vr(SEL0+4*w,4)}, {vr(GB+4*i,4)}, {c}")
    E(f"s_add_u32 s{sT0}, s{soff}, 4096")
    if ACK: E("s_waitcnt vmcnt(0)")
    elif GD: E(f"s_sleep {GD}")
    if PROF in (2, 9): stamp(9, True)
    for _ in range(GP - 1):
        loads()
        if GSL: E(f"s_sleep {GSL}")
    E(f"s_branch L_{tag}_again")
    L(f"L_{tag}_nan")
    E(f"s_sub_u32 s{sSPIN}, s{sSPIN}, 1")
    E("s_cbranch_scc1 L_exit")
    E(f"s_and_b32 s{sT1}, s{sSPIN}, 15")
    E(f"s_cbranch_scc0 L_{tag}_retry")
    if GSL: E(f"s_sleep {GSL}")
    L(f"L_{tag}_again")
    loads()
    if hook: hook()
    mark(role)
    sums(8 * (GP - 1))
    E("s_nop 6")
    E(f"v_cmp_u_f32 vcc, v{XN}, v{XN}")
    E(f"v_cmp_u_f32 s[{sS1}:{sS1+1}], v{XN+4}, v{XN+4}")
    for d in range(4):
        E(f"v_cvt_pk_bf16_f32 v{XB+d}, v{XN+2*d}, v{XN+2*d+1}")
    E(f"s_or_b64 vcc, vcc, s[{sS1}:{sS1+1}]")
    E(f"s_cbranch_vccnz L_{tag}_nan")
    L(f"L_{tag}_ok")
    if PROF in (2, 9):
        stamp(11, True)
        E(f"s_mov_b32 s{sST}, s{sSPIN}")
    def blk():
        L(f"L_{tag}_retry")
        for i in range(16): E(f"v_pk_max_u16 v{ACC+i}, v{GB+2*i}, v{GB+2*i+1}")
        for i in range(8): E(f"v_pk_max_u16 v{ACC+i}, v{ACC+2*i}, v{ACC+2*i+1}")
        for i in range(4): E(f"v_pk_max_u16 v{ACC+i}, v{ACC+2*i}, v{ACC+2*i+1}")
        chk_bf16(ACC, TT)
        E(f"s_cbranch_vccnz L_{tag}_again")
        sums(None)
        E("s_nop 7")
        for d in range(4):
            E(f"v_cvt_pk_bf16_f32 v{XB+d}, v{XN+2*d}, v{XN+2*d+1}")
        E(f"s_branch L_{tag}_ok")
    retry_blocks.append(blk)

def relay_X(tag, soff, pre):
    E(f"v_mov_b32 v{vT}, 0")
    E(f"s_cmp_lg_u32 s{sWV}, 0")
    E(f"s_cbranch_scc1 L_{tag}_other")
    pre()
    gather_X(tag, soff, "d2")
    E(f"ds_write_b128 v{aXS}, {vr(XB,4)}")
    post = f"L_{tag}_join"
    E("s_waitcnt lgkmcnt(0)")
    E("s_barrier")
    E(f"s_branch {post}")
    L(f"L_{tag}_other")
    E("s_waitcnt vmcnt(0)")
    E("s_barrier")
    E(f"ds_read_b128 {vr(XB,4)}, v{aXS}")
    E("s_waitcnt lgkmcnt(0)")
    L(post)

def unpack_resid(src):
    for d in range(4):
        E(f"v_lshlrev_b32 v{XR+2*d}, 16, v{src+d}")
        E(f"v_and_b32 v{XR+2*d+1}, 0xffff0000, v{src+d}")

def matvec(nsteps, A, W, fillers, rows=None, per=PER, waits=False):
    if rows is None:
        rows = [(1 << G, 0xf, list(range(4*G, min(4*G+4, nsteps)))) for G in range((nsteps + 3) // 4)]
    acc = lambda s_: ACC + 4*(rank[s_] % NACC)
    order = [x for x in range(nsteps) if not any(x == st_[-1] for _, _, st_ in rows)] + [st_[-1] for _, _, st_ in rows]
    if waits or not REORD: order = list(range(nsteps))
    rank = {x: i for i, x in enumerate(order)}
    ext = []
    for (rm, bm, st_) in rows:
        dp = f"quad_perm:[0,1,2,3] row_mask:{hex(rm)} bank_mask:{hex(bm)}"
        a = lambda s_: f"v{acc(s_) + s_ % 4}"
        ext.append((st_[1], f"v_add_f32_dpp v{vT}, {a(st_[0])}, {a(st_[1])} {dp}"))
        for s_ in st_[2:]:
            ext.append((s_, f"v_add_f32_dpp v{vT}, {a(s_)}, v{vT} {dp}"))
    order = [x for x in range(nsteps) if not any(x == st_[-1] for _, _, st_ in rows)] + [st_[-1] for _, _, st_ in rows]
    if waits or not REORD: order = list(range(nsteps))
    rank = {x: i for i, x in enumerate(order)}
    ext.sort(key=lambda e: rank[e[0]])
    st = dict(pos=0, lastT=-1)
    pm = {}
    def put(x, n=1):
        E(x); st["pos"] += n
    def need(e):
        if e[0] not in pm: return 99
        return max(pm[e[0]] + 9 - st["pos"], st["lastT"] + 3 - st["pos"], 0)
    fl = list(fillers)
    for s_ in order:
        while ext and rank[ext[0][0]] <= rank[s_] - NACC + 1 and rank[s_] >= NACC:
            n = need(ext[0])
            if n: put(f"s_nop {n-1}", n)
            st["lastT"] = st["pos"]; put(ext.pop(0)[1])
        if waits and s_ >= 8 or waits and s_ == 0: put(f"s_waitcnt lgkmcnt({min(15, 30-2*s_)})")
        pm[s_] = st["pos"]
        put(f"v_mfma_f32_16x16x32_bf16 {vr(acc(s_),4)}, {vr(A,4)}, {vr(W+4*s_,4)}, 0")
        idle = 0
        for _ in range(per):
            if ext and need(ext[0]) - idle <= 0:
                if idle: put(f"s_nop {idle-1}", idle); idle = 0
                st["lastT"] = st["pos"]; put(ext.pop(0)[1])
            elif fl:
                if idle: put(f"s_nop {idle-1}", idle); idle = 0
                put(fl.pop(0))
            elif PAD and s_ != order[-1]: idle += 1
        if idle: put(f"s_nop {idle-1}", idle)
    while ext or fl:
        if ext and need(ext[0]) == 0:
            st["lastT"] = st["pos"]; put(ext.pop(0)[1])
        elif fl:
            put(fl.pop(0))
        else:
            n = need(ext[0]); put(f"s_nop {n-1}", n)

def stats_fillers():
    f = []
    for d in range(4):
        f.append(f"v_lshlrev_b32 v{XR+2*d}, 16, v{XB+d}")
        f.append(f"v_and_b32 v{XR+2*d+1}, 0xffff0000, v{XB+d}")
        if d == 0: f.append(f"v_readfirstlane_b32 s{sPIV}, v{XR}")
    D = XN
    for i in range(4):
        f.append(f"v_pk_add_f32 {vr(D+2*i,2)}, {vr(XR+2*i,2)}, s[{sPIV}:{sPIV+1}] op_sel_hi:[1,0] neg_lo:[0,1] neg_hi:[0,1]")
    a, b = TT+1, TT+3
    assert a % 2 == 0
    f.append(f"v_pk_add_f32 {vr(a,2)}, {vr(D,2)}, {vr(D+2,2)}")
    f.append(f"v_pk_mul_f32 {vr(b,2)}, {vr(D,2)}, {vr(D,2)}")
    for i in range(1, 4):
        f.append(f"v_pk_fma_f32 {vr(b,2)}, {vr(D+2*i,2)}, {vr(D+2*i,2)}, {vr(b,2)}")
        if i > 1: f.append(f"v_pk_add_f32 {vr(a,2)}, {vr(a,2)}, {vr(D+2*i,2)}")
    f.append(f"v_add_f32 v{b}, v{b}, v{b+1}")
    f.append(f"v_add_f32 v{a}, v{a}, v{a+1}")
    f.append("s_nop 0")
    for dp in ("quad_perm:[1,0,3,2] row_mask:0xf", "quad_perm:[2,3,0,1] row_mask:0xf", "row_half_mirror row_mask:0xf",
               "row_mirror row_mask:0xf", "row_bcast:15 row_mask:0xa", "row_bcast:31 row_mask:0xc"):
        f.append(f"v_add_f32_dpp v{b}, v{b}, v{b} {dp} bank_mask:0xf")
        f.append(f"v_add_f32_dpp v{a}, v{a}, v{a} {dp} bank_mask:0xf")
        f.append("s_nop 0")
    f.append(f"v_readlane_b32 s{sS2}, v{b}, 63")
    f.append(f"v_readlane_b32 s{sS1}, v{a}, 63")
    f.append(f"v_fma_f32 v{TT+3}, s{sS2}, v{vINV}, v{vINV+1}" if False else "s_nop 0")
    f.append(f"v_fma_f32 v{TT+3}, s{sS2}, v{vINV}, v{vINV+1}")
    f.append(f"v_mul_f32 v{TT+2}, s{sS1}, v{vINV}")
    f.append(f"v_fma_f32 v{TT+3}, -v{TT+2}, v{TT+2}, v{TT+3}")
    f.append(f"v_max_f32 v{TT+3}, v{vINV+1}, v{TT+3}")
    f.append(f"v_rsq_f32 v{TT+3}, v{TT+3}")
    f.append(f"v_add_f32 v{TT+2}, s{sPIV}, v{TT+2}")
    return f

def xgroup_sum(fold8=False, plain=False):
    if fold8: E(f"v_and_b32 v{vT}, v{vVAL}, v{vT}")
    E(f"v_mov_b32 v{TT+5}, v{vT}")
    E("s_nop 1")
    E(f"v_permlane16_swap_b32 v{vT}, v{TT+5}")
    E(f"v_add_f32 v{vT}, v{vT}, v{TT+5}")
    E(f"v_mov_b32 v{TT+5}, v{vT}")
    E("s_nop 1")
    E(f"v_permlane32_swap_b32 v{vT}, v{TT+5}")
    E(f"v_add_f32 v{vT}, v{vT}, v{TT+5}")
    if fold8:
        E("s_nop 1")
        E(f"v_add_f32_dpp v{vT}, v{vT}, v{vT} row_ror:8 row_mask:0xf bank_mask:0xf")
    if plain: return
    E(f"v_fma_f32 v{vT}, -v{TT+2}, v{vCS}, v{vT}")
    E(f"v_mul_f32 v{vT}, v{vT}, v{TT+3}")

def y_publish():
    xgroup_sum(plain=True)
    E("s_nop 1")
    E(f"v_mov_b32_dpp v{TT+5}, v{vT} quad_perm:[1,1,3,3] row_mask:0xf bank_mask:0xf")
    E("s_mov_b64 exec, 0x5555")
    E(f"v_cvt_pk_bf16_f32 v{vT}, v{vT}, v{TT+5}")
    E(f"v_pk_min_u16 v{vT}, v{vT}, s{sFFFE}")
    E(f"buffer_store_dword v{vT}, v{aP16}, {WSR}, s{sPubG} offen{SFL}")
    E("s_mov_b64 exec, -1")

def pub_resid(off):
    for d in range(4): E(f"v_pk_min_u16 v{TT+7+d}, v{XB+d}, s{sFFFE}")
    pub2("buffer_store_dwordx4", vr(TT+7,4), vL16, sLOC, sMB_f, sMB_s, off)

def read_mode(lo_a, pj=0):
    E(f"v_mov_b32 v{TT}, {FL_LDS}")
    E(f"ds_read_b32 v{TT+1}, v{TT}")
    E("s_waitcnt lgkmcnt(0)")
    E(f"v_readfirstlane_b32 s{sMODE}, v{TT+1}")
    E(f"s_cmp_eq_u32 s{sPJ}, {pj}")
    E(f"s_cselect_b32 s{sT1}, -1, 0")
    E("s_nop 2")
    E(f"s_cmp_eq_u32 s{sMODE}, 1")
    masks(sMA_f, sMA_s, lo_a, "0")
    masks(sMB_f, sMB_s, f"s{sT1}", f"s{sT1}")
    E(f"s_cselect_b32 s{sT1}, 0, {ALT}")
    for s_ in (sLOC, sPoff, sPub):
        E(f"s_add_u32 s{s_}, s{s_}, s{sT1}")

sec("entry")
L("L_D_init")
ROLE[0] = "d"
E(f"s_and_b32 s{sC}, s{sJ}, 7")
E(f"s_lshl_b32 s{sPJ}, s{sC}, 2")
E(f"s_add_u32 s{sPJ}, s{sPJ}, s{sWV}")
E("v_lshrrev_b32 v242, 3, v1")
E("v_and_b32 v243, 7, v1")
def wo_issue():
    E(f"s_lshl_b32 s{sT0}, s{sG}, 19")
    E(f"s_lshl_b32 s{sT1}, s{sC}, 7")
    E(f"s_add_u32 s{sT0}, s{sT0}, s{sT1}")
    E(f"s_sub_u32 s{sT3}, {4194304}, s{sT0}")
    srd(R_A, sWO, f"s{sT0}", f"s{sT3}")
    E("v_and_b32 v245, 2, v242")
    E("v_xor_b32 v245, v245, v243")
    E(f"s_and_b32 s{sT1}, s{sWV}, 1")
    E(f"s_lshl_b32 s{sT1}, s{sT1}, 2")
    E(f"v_xor_b32 v245, s{sT1}, v245")
    E("v_lshlrev_b32 v244, 10, v242")
    E("v_lshl_add_u32 v244, v245, 4, v244")
    E(f"s_lshl_b32 s{sT0}, s{sWV}, 14")
    E(f"s_mov_b32 m0, s{sT0}")
    E(f"s_lshl_b32 s{sT1}, s{sWV}, 17")
    if LATE0 == 1: E("s_waitcnt vmcnt(0)")
    if LATE0 >= 2: E("s_barrier")
    E(f"s_add_u32 s{sT2}, s{sT1}, {16*8192}")
    L("L_D2_wol")
    E(f"buffer_load_dwordx4 v244, s[{R_A}:{R_A+3}], s{sT1} offen{NTW} lds")
    E("s_add_u32 m0, m0, 1024")
    E(f"s_add_u32 s{sT1}, s{sT1}, 8192")
    E(f"s_cmp_lt_u32 s{sT1}, s{sT2}")
    E("s_cbranch_scc1 L_D2_wol")
def clear_global():
    for r in range(4): E(f"v_mov_b32 v{cG+r}, -1")
    E(f"s_mov_b32 s{sT1}, {LS}")
    E(f"v_lshrrev_b32 v{cT}, 3, v2")
    E(f"v_mul_lo_u32 v{cT}, v{cT}, s{sT1}")
    E(f"v_lshl_add_u32 v{cT}, v243, 4, v{cT}")
    E(f"v_lshl_add_u32 v{cT}, v3, 13, v{cT}")
    E(f"s_lshl_b32 s{sT1}, s{sG}, 10")
    E(f"s_lshl_b32 s{sT2}, s{sC}, 7")
    E(f"s_add_u32 s{sT1}, s{sT1}, s{sT2}")
    E(f"s_add_u32 s{sT1}, s{sT1}, {W_Y}")
    E("s_mov_b32 exec_hi, 0")
    E(f"buffer_store_dwordx4 {vr(cG,4)}, v{cT}, {WSR}, s{sT1} offen sc1")
    E("s_mov_b64 exec, -1")

def d2_clear(sc, alt):
    for r in range(4): E(f"v_mov_b32 v{cG+r}, -1")
    E(f"s_lshl_b32 s{sT1}, s{sC}, 11")
    E(f"s_add_u32 s{sT1}, s{sT1}, s{sPoff}")
    if alt: E(f"s_add_u32 s{sT1}, s{sT1}, {ALT}")
    E(f"s_add_u32 s{sT2}, s{sT1}, {LS}")
    for so in (sT1, sT2):
        for o in range(2):
            E(f"buffer_store_dwordx4 {vr(cG,4)}, v{cL16}, {WSR}, s{so} offen offset:{1024*o}{sc}")
    E(f"s_mov_b32 s{sT1}, {LS}")
    E(f"v_lshrrev_b32 v{cT}, 5, v1")
    E(f"v_mul_lo_u32 v{cT}, v{cT}, s{sT1}")
    E(f"v_and_b32 v{cT+1}, 31, v1")
    E(f"v_lshl_add_u32 v{cT}, v{cT+1}, 4, v{cT}")
    E(f"s_lshl_b32 s{sT1}, s{sC}, 9")
    E(f"s_add_u32 s{sT1}, s{sT1}, s{sLOC}")
    if alt: E(f"s_add_u32 s{sT1}, s{sT1}, {ALT}")
    E(f"buffer_store_dwordx4 {vr(cG,4)}, v{cT}, {WSR}, s{sT1} offen{sc}")
E(f"s_cmp_lt_u32 s{sJ}, 24")
E("s_cbranch_scc1 L_D_const")
E(f"s_cmp_lg_u32 s{sWV}, 4")
E("s_cbranch_scc1 L_D2_e1")
d2_clear("", False)
E("s_branch L_D2_init")
L("L_D2_e1")
E(f"s_cmp_lg_u32 s{sWV}, 5")
E("s_cbranch_scc1 L_D2_e2")
clear_global()
E("s_branch L_D2_init")
L("L_D2_e2")
E(f"s_cmp_ge_u32 s{sWV}, 4")
E("s_cbranch_scc1 L_D2_init")
if LATE0 == 0: wo_issue()
sec("dinit")
L("L_D_const")
E("v_mov_b32 v245, 0")
E("v_mov_b32 v244, 0")
srd(R_B, sX, None, 1024)
E(f"v_lshrrev_b32 v{TT}, 1, v3")
E(f"v_and_b32 v{TT+1}, 1, v3")
E(f"v_lshlrev_b32 v{aXIO}, 8, v{TT}")
E(f"v_lshl_add_u32 v{aXIO}, v2, 4, v{aXIO}")
E(f"v_lshl_add_u32 v{aXIO}, v{TT+1}, 3, v{aXIO}")
E(f"buffer_load_dwordx2 {vr(XB,2)}, v{aXIO}, s[{R_B}:{R_B+3}], 0 offen")
E(f"buffer_load_dwordx2 {vr(XB+2,2)}, v{aXIO}, s[{R_B}:{R_B+3}], 0 offen offset:512")
E(f"v_lshlrev_b32 v{vL16}, 4, v1")
E(f"v_lshrrev_b32 v{TT+2}, 2, v2")
E(f"v_and_b32 v{TT+3}, 3, v2")
E(f"v_lshl_add_u32 v{TT+4}, v{TT}, 7, v{TT+2}")
E(f"v_lshl_add_u32 v{TT+4}, v{TT+1}, 2, v{TT+4}")
E(f"v_lshlrev_b32 v{aP16}, 1, v2")
E(f"v_lshrrev_b32 v{aPY}, 5, v1")
E(f"v_lshlrev_b32 v{aPY}, 4, v{aPY}")
E(f"v_add_u32 v{aXS}, {XS_LDS}, v{vL16}")
E(f"v_mov_b32 v{vONE}, 1.0")
for d in range(4): E(f"v_mov_b32 v{ONESB+d}, 0x3f803f80")
E(f"v_and_b32 v{TT+5}, 1, v2")
E(f"v_lshlrev_b32 v{TT+5}, 4, v{TT+5}")
E(f"v_mov_b32 v{TT+6}, 0x3f80")
E(f"v_lshlrev_b32 v{TT+6}, v{TT+5}, v{TT+6}")
E(f"v_lshrrev_b32 v{TT+7}, 1, v2")
E(f"v_lshlrev_b32 v{aGX}, 10, v3")
E(f"v_lshl_add_u32 v{aGX}, v2, 4, v{aGX}")
for d in range(8):
    E(f"v_cmp_eq_u32 vcc, {d}, v{TT+7}")
    E("s_nop 1")
    E(f"v_cndmask_b32 v{SEL0+d}, 0, v{TT+6}, vcc")
E(f"s_mov_b32 s{sFFFE}, 0xfffefffe")
E(f"v_mov_b32 v{vINV}, {f32(1/512)}")
E(f"v_mov_b32 v{vINV+1}, {f32(1e-5)}")
E(f"s_mov_b32 s{sC3}, {f32(-math.log2(math.e))}")
E(f"s_lshl_b32 s{sT1}, s{sPJ}, 5")
E(f"s_lshl_b32 s{sPubG}, s{sG}, 10")
E(f"s_add_u32 s{sPubG}, s{sPubG}, s{sT1}")
E(f"s_lshl_b32 s{sT2}, s{sWV}, 5")
E(f"s_cmp_ge_u32 s{sJ}, 24")
E("s_cbranch_scc1 L_D2_comp")

def ctl_head():
    E("s_waitcnt vmcnt(0)")
    E(f"v_readfirstlane_b32 s{sTAG}, v241")
    for r in range(4): E(f"v_mov_b32 v{cG+r}, -1")
    E(f"s_add_u32 s{sTAG}, s{sTAG}, 1")
E(f"s_lshl_b32 s{sT0}, s{sG}, 10")
E(f"s_lshl_b32 s{sT1}, s{sC}, 7")
E(f"s_add_u32 s{sT0}, s{sT0}, s{sT1}")
E(f"s_sub_u32 s{sT3}, {4194304}, s{sT0}")
srd(R_A, sWQ, f"s{sT0}", f"s{sT3}")
E("v_and_b32 v245, 6, v242")
E("v_xor_b32 v245, v245, v243")
E("v_lshlrev_b32 v244, 13, v242")
E("v_lshl_add_u32 v244, v245, 4, v244")
E(f"s_cmp_ge_u32 s{sWV}, 4")
E("s_cbranch_scc1 L_D1_help")
if TQ: E("s_waitcnt vmcnt(0)")
stamp(1)
E(f"s_lshl_b32 s{sT0}, s{sWV}, 14")
E(f"s_mov_b32 m0, s{sT0}")
E(f"s_lshl_b32 s{sT1}, s{sWV}, 20")
E(f"s_add_u32 s{sT3}, s{sT1}, {16*65536}")
L("L_D1_wql")
E(f"buffer_load_dwordx4 v244, s[{R_A}:{R_A+3}], s{sT1} offen{NTW} lds")
E("s_add_u32 m0, m0, 1024")
E(f"s_add_u32 s{sT1}, s{sT1}, 65536")
E(f"s_cmp_lt_u32 s{sT1}, s{sT3}")
E("s_cbranch_scc1 L_D1_wql")
sec("d1")
E(f"v_bfe_u32 v{TT+5}, v{TT+4}, 1, 2")
E(f"v_xor_b32 v{TT+5}, s{sWV}, v{TT+5}")
E(f"v_lshlrev_b32 v{aTA}, 7, v{TT+4}")
E(f"v_lshl_add_u32 v{aTA}, v{TT+3}, 3, v{aTA}")
E(f"v_lshl_add_u32 v{aTA}, v{TT+5}, 5, v{aTA}")
if not TQ: E("s_waitcnt vmcnt(16)")
E(f"v_lshl_add_u32 v{aTB}, v3, 3, v{TT+2}")
E(f"v_lshlrev_b32 v{aTB}, 7, v{aTB}")
E(f"v_lshl_add_u32 v{aTB}, v{TT+3}, 3, v{aTB}")
E(f"s_add_u32 s{sT2}, s{sT2}, {WB_LDS}")
E(f"v_add_u32 v{aTB}, s{sT2}, v{aTB}")
E(f"v_min_u32 v{aIN}, 6, v2")
E(f"v_lshlrev_b32 v{aIN}, 6, v{aIN}")
E(f"v_lshl_add_u32 v{aIN}, v3, 4, v{aIN}")
E(f"v_readfirstlane_b32 s{sTAG}, v241")
E(f"s_add_u32 s{sPubG}, s{sPubG}, {W_Z}")
E(f"s_mov_b32 s{sZoff}, {W_Z}")
E(f"s_lshl_b32 s{sT1}, s{sPJ}, 5")
E(f"s_add_u32 s{sPub}, s{sLOC}, s{sT1}")
srd(R_B, sOUT, None, 1024)
E(f"s_add_u32 s{sTAG}, s{sTAG}, 1")
for x in stats_fillers(): E(x)
for i in range(8): E(f"v_sub_f32 v{XN+i}, v{XR+i}, v{TT+2}")
for i in range(8): E(f"v_mul_f32 v{XN+i}, v{XN+i}, v{TT+3}")
for d in range(4): E(f"v_cvt_pk_bf16_f32 v{GB+d}, v{XN+2*d}, v{XN+2*d+1}")
E(f"v_mov_b32 v{vT}, 0")
D0 = GB + 12
E(f"v_mov_b32 v{D0+1}, s{sTAG}")
E(f"s_lshl_b32 s{sT1}, s{sPJ}, 6")
E(f"v_lshl_add_u32 v{TT+6}, v2, 2, s{sT1}")
E("s_waitcnt vmcnt(0)")
E("s_barrier")
amp("wq")
stamp(2)
for s in range(16):
    for e in range(2):
        E(f"ds_read_b64_tr_b16 {vr(WA+4*s+2*e,2)}, v{aTA} offset:{32768*e+1024*s}")
matvec(16, GB, WA, [], per=PN, waits=True)
xgroup_sum(plain=True)
E("s_nop 1")
E(f"v_mov_b32_dpp v{TT+5}, v{vT} quad_perm:[1,1,3,3] row_mask:0xf bank_mask:0xf")
E(f"v_cvt_pk_bf16_f32 v{D0}, v{vT}, v{TT+5}")
E("s_mov_b64 exec, 0x5555")
E(f"buffer_store_dwordx2 {vr(D0,2)}, v{TT+6}, {WSR}, s{sQ0} offen")
E("s_mov_b64 exec, -1")
stamp(3, True)
E(f"v_mov_b32 v{TT+7}, 0")
E(f"buffer_load_dword v{GB+20}, v{TT+7}, s[{R_B}:{R_B+3}], 0 offen")
for s in range(16):
    c = "0" if s == 0 else vr(CA,4)
    E(f"v_mfma_f32_16x16x32_bf16 {vr(CA,4)}, {vr(ONESB,4)}, {vr(WA+4*s,4)}, {c}")
E("s_nop 7")
E(f"v_mov_b32 v{vCS}, v{CA}")
E("s_barrier")
amp("st")
read_mode("0xffff")
E(f"s_mov_b32 s{sT1}, 0x5555")
E(f"s_cmp_eq_u32 s{sMODE}, 1")
E(f"s_cselect_b32 exec_lo, 0, s{sT1}")
E("s_mov_b32 exec_hi, 0")
E(f"buffer_store_dwordx2 {vr(D0,2)}, v{TT+6}, {WSR}, s{sQ0B} offen sc1")
E("s_mov_b64 exec, -1")
E("s_barrier")
for s in range(7):
    for e in range(2):
        E(f"ds_read_b64_tr_b16 {vr(WB+4*s+2*e,2)}, v{aTB} offset:{4096*s+512*e}")
E("s_waitcnt lgkmcnt(0)")
E("s_branch L_D1_act")
L("L_D1_q")
mark("d1")
matvec(16, XB, WA, stats_fillers())
xgroup_sum()
E(f"v_cvt_pk_bf16_f32 v{vT}, v{vT}, v{vT}")
E(f"v_min_u32 v{vT}, -2, v{vT}")
pub2("buffer_store_short", f"v{vT}", aP16, sPub, sMA_f, sMA_s, W_Q)
stamp(3, True)
pub_resid(W_X2)
L("L_D1_act")
mark("d1")
AIN = vST
arm(AIN, 4)
E(f"buffer_load_dwordx4 {vr(CA,4)}, v{vL16}, {WSR}, s{sLOC} offen offset:{W_X1} sc1")
E(f"v_mov_b32 v{vT}, 0")
gather1("ga", AIN, aIN, sLOC, W_ACT, TT)
amp("act")
stamp(4, True)
E(f"buffer_load_dwordx4 {vr(CA,4)}, v{vL16}, {WSR}, s{sLOC} offen offset:{W_X1} sc1")
matvec(7, AIN, WB, [], per=PN)
y_publish()
stamp(5, True)
E(f"s_add_u32 s{sLAY}, s{sLAY}, 1")
E(f"s_cmp_lt_u32 s{sLAY}, 2")
E("s_cbranch_scc1 L_D1_z")
E(f"s_cmp_lg_u32 s2, 128")
E("s_cbranch_scc1 L_D1_end")
E(f"s_cmp_lg_u32 s{sWV}, 0")
E("s_cbranch_scc1 L_D1_end")
L("L_D1_z")
mark("d1")
def pre_z():
    E("s_waitcnt vmcnt(1)")
    chk_bf16(CA, TT)
    E("s_cbranch_vccz L_gx1_have")
    gather1("gx1", CA, vL16, sLOC, W_X1, TT, pd=1, slp=0)
    L("L_gx1_have")
    unpack_resid(CA)
def relay_z():
    E(f"v_mov_b32 v{vT}, 0")
    E(f"s_cmp_lg_u32 s{sWV}, 0")
    E(f"s_cbranch_scc1 L_gz_other")
    pre_z()
    gather_X("gz", sZoff, "d1")
    E(f"s_cmp_eq_u32 s{sLAY}, 2")
    E("s_cbranch_scc1 L_D1_out")
    E(f"ds_write_b128 v{aXS}, {vr(XB,4)}")
    E("s_waitcnt lgkmcnt(0)")
    E("s_barrier")
    E(f"s_branch L_gz_join")
    L(f"L_gz_other")
    E("s_waitcnt vmcnt(0)")
    E("s_barrier")
    E(f"ds_read_b128 {vr(XB,4)}, v{aXS}")
    E("s_waitcnt lgkmcnt(0)")
    L("L_gz_join")
relay_z()
stamp(6)
for s_ in (sLOC, sPub, sPubG, sZoff):
    E(f"s_add_u32 s{s_}, s{s_}, {LS}")
E("s_branch L_D1_q")
L("L_D1_out")
E(f"buffer_store_dwordx2 {vr(XB,2)}, v{aXIO}, s[{R_B}:{R_B+3}], 0 offen")
E(f"buffer_store_dwordx2 {vr(XB+2,2)}, v{aXIO}, s[{R_B}:{R_B+3}], 0 offen offset:512")
E(f"v_mov_b32 v{TT}, s{sTAG}")
E(f"v_mov_b32 v{TT+1}, {W_EP}")
E("s_mov_b64 exec, 1")
E(f"buffer_store_dword v{TT}, v{TT+1}, {WSR}, 0 offen")
if AMP:
    E("s_memrealtime s[88:89]")
    E("s_waitcnt lgkmcnt(0)")
    if AMP == "end": E("s_mov_b32 s94, s88")
    E("s_sub_u32 s94, s94, s86")
    if AMP.startswith("x"):
        E(f"v_mov_b32 v253, {W_EP + 64}")
        E(f"buffer_load_dword v252, v253, {WSR}, 0 offen sc1")
        E("s_waitcnt vmcnt(0)")
        E("v_readfirstlane_b32 s94, v252")
        E("s_nop 3")
        E("s_sub_u32 s94, s94, s86")
        E("s_add_u32 s94, s94, 100")
        E("s_max_i32 s94, s94, 0")
    E("s_lshl_b32 s94, s94, 2")
    E("s_min_u32 s94, s94, 20000")
    E("s_add_u32 s94, s94, s88")
    L("L_amp_spin")
    E("s_memrealtime s[88:89]")
    E("s_waitcnt lgkmcnt(0)")
    E("s_sub_u32 s89, s94, s88")
    E("s_cmp_gt_i32 s89, 0")
    E("s_cbranch_scc1 L_amp_spin")
if PROF:
    stamp(7)
    E("s_waitcnt vmcnt(0)")
    stamp(8)
L("L_D1_end")
stamp_flush(0, 0, (128, 4, [60, 2, 3, 4, 6, 20, 8]))
E("s_endpgm")
sec("help")
L("L_D1_help")
E(f"s_mul_i32 s{sT0}, s{sG}, {224*1024}")
E(f"s_lshl_b32 s{sT1}, s{sC}, 7")
E(f"s_add_u32 s{sT0}, s{sT0}, s{sT1}")
srd(R_B, sW2, f"s{sT0}", 224*1024 - 896)
E("v_lshlrev_b32 v244, 10, v242")
E("v_lshl_add_u32 v244, v243, 4, v244")
E(f"s_cmp_eq_u32 s{sWV}, 4")
E("s_cbranch_scc1 L_D1_ctl")
if not W2P: E(f"buffer_load_dword v255, v244, s[{R_B}:{R_B+3}], 0 offen")
for u in range(3):
    E(f"s_cmp_lg_u32 s{sWV}, {5+u}")
    E(f"s_cbranch_scc1 L_D1_wm{u}")
    warm("d1", u, 3)
    L(f"L_D1_wm{u}")
E("s_branch L_D1_bq")
L("L_D1_ctl")
E(f"v_lshlrev_b32 v{cT}, 7, v2")
E(f"buffer_load_dword v240, v{cT}, {WSR}, s{sQ0} offen sc1")
ctl_head()
xc_publish()
L("L_D1_bq")
E("s_barrier")
E(f"s_cmp_lg_u32 s{sWV}, 4")
E("s_cbranch_scc1 L_D1_w2")
first_gather("d1x", False, None)
stamp(3)
E(f"v_lshlrev_b32 v{cT}, 3, v1")
E(f"s_cmp_eq_u32 s{sMODE}, 1")
E("s_cbranch_scc0 L_D1_b2")
L("L_D1_st")
E(f"buffer_load_dword v{cT+1}, v{cT}, {WSR}, s{sLOC} offen offset:{W_ST} sc1")
E("s_waitcnt vmcnt(0)")
E(f"v_cmp_ne_u32 vcc, -1, v{cT+1}")
E("s_cbranch_vccnz L_D1_b2")
E("s_sleep 8")
spin_check("L_D1_st")
L("L_D1_b2")
E("s_waitcnt lgkmcnt(0)")
L("L_D1_w2")
E("s_barrier")
E(f"s_sub_u32 s{sT0}, s{sWV}, 4")
E(f"s_mul_i32 s{sT1}, s{sT0}, 7168")
E(f"s_add_u32 m0, s{sT1}, {WB_LDS}")
E(f"s_mul_i32 s{sT1}, s{sT0}, {56*1024}")
for i in range(7):
    E(f"buffer_load_dwordx4 v244, s[{R_B}:{R_B+3}], s{sT1} offen{NTW} lds")
    if i < 6:
        E("s_add_u32 m0, m0, 1024")
        E(f"s_add_u32 s{sT1}, s{sT1}, 8192")
E("s_waitcnt vmcnt(0) lgkmcnt(0)")
stamp(4)
E("s_barrier")
stamp_flush(4, 1)
E("s_endpgm")

L("L_D2_init")
E(f"s_min_u32 s{sT1}, s{sC}, 6")
E(f"s_lshl_b32 s{sT1}, s{sT1}, 6")
E(f"s_mul_i32 s{sT0}, s{sG}, 448")
E(f"s_add_u32 s{sS1}, s{sT0}, s{sT1}")
E(f"s_sub_u32 s{sT3}, {1835008}, s{sS1}")
srd(R_B, sW1, f"s{sS1}", f"s{sT3}")
srd(R_C, sDBG, None, 256)
E(f"s_cmp_eq_u32 s{sWV}, 4")
E("s_cbranch_scc1 L_D2_ctl")
E(f"s_cmp_eq_u32 s{sWV}, 5")
E("s_cbranch_scc1 L_D2_flag")
E("v_lshrrev_b32 v245, 2, v1")
E("v_mul_u32_u24 v245, 3584, v245")
E("v_and_b32 v246, 3, v1")
E("v_and_b32 v247, 1, v3")
E("v_xor_b32 v246, v246, v247")
E("v_lshl_add_u32 v244, v246, 4, v245")
E("v_xor_b32 v246, 2, v246")
E("v_lshl_add_u32 v245, v246, 4, v245")
E(f"s_sub_u32 s{sT0}, s{sWV}, 6")
E(f"s_lshl_b32 s{sT1}, s{sT0}, 14")
E(f"s_add_u32 m0, s{sT1}, {WB_LDS}")
E(f"s_mul_i32 s{sT1}, s{sT0}, {256*3584}")
if LATE0 >= 2 or W1L:
    for u in range(2):
        E(f"s_cmp_lg_u32 s{sWV}, {6+u}")
        E(f"s_cbranch_scc1 L_D2_wm{u}")
        warm("d2", u, 2)
        L(f"L_D2_wm{u}")
    E("s_barrier")
for i in range(16):
    E(f"buffer_load_dwordx4 v{244 + (i//4) % 2}, s[{R_B}:{R_B+3}], s{sT1} offen{NTW} lds")
    if i < 15:
        E("s_add_u32 m0, m0, 1024")
        E(f"s_add_u32 s{sT1}, s{sT1}, {16*3584}")
if not (LATE0 >= 2 or W1L):
    for u in range(2):
        E(f"s_cmp_lg_u32 s{sWV}, {6+u}")
        E(f"s_cbranch_scc1 L_D2_wm{u}")
        warm("d2", u, 2)
        L(f"L_D2_wm{u}")
E("s_waitcnt vmcnt(0)")
stamp(4)
E("s_barrier")
stamp_flush(6, 2)
E("s_endpgm")
L("L_D2_flag")
E(f"s_lshl_b32 s{sT1}, s{sG}, 5")
E(f"s_lshl_b32 s{sT2}, s{sC}, 2")
E(f"s_add_u32 s{sT1}, s{sT1}, s{sT2}")
E(f"v_mov_b32 v{cT}, 1")
E(f"v_mov_b32 v{cT+1}, s{sT1}")
E(f"v_lshlrev_b32 v{cT+2}, 2, v1")
E("s_waitcnt vmcnt(0)")
E("s_mov_b64 exec, 1")
E(f"buffer_store_dword v{cT}, v{cT+1}, s[{R_C}:{R_C+3}], 0 offen sc1")
E("s_mov_b64 exec, -1")
if LATE0 >= 2 or W1L: E("s_barrier")
E("s_waitcnt vmcnt(0)")
L("L_D2_fpoll")
E(f"buffer_load_dword v{cT+3}, v{cT+2}, s[{R_C}:{R_C+3}], 0 offen sc1")
E("s_waitcnt vmcnt(0)")
E(f"v_cmp_ne_u32 vcc, 1, v{cT+3}")
E("s_cbranch_vccz L_D2_fok")
E("s_sleep 8")
spin_check("L_D2_fpoll")
L("L_D2_fok")
E("s_barrier")
E("s_endpgm")
L("L_D2_ctl")
ctl_head()
stamp(1)
xc_publish()
first_gather("d2x", False, lambda: d2_clear(" sc1", True))
stamp(2)
if LATE0 == 3:
    E(f"v_lshlrev_b32 v{cT}, {'3' if STW else '2'}, v1")
    E(f"s_cmp_eq_u32 s{sMODE}, 1")
    E("s_cbranch_scc0 L_D2_go")
    L("L_D2_st")
    if STW:
        E(f"buffer_load_dword v{cT+1}, v{cT}, {WSR}, s{sLOC} offen offset:{W_ST} sc1")
        E("s_waitcnt vmcnt(0)")
        E(f"v_cmp_ne_u32 vcc, -1, v{cT+1}")
    E("s_cbranch_vccnz L_D2_go")
    E("s_sleep 2")
    spin_check("L_D2_st")
    L("L_D2_go")
    stamp(3)
E("s_waitcnt lgkmcnt(0)")
if LATE0 >= 2 or W1L: E("s_barrier")
E("s_barrier")
stamp_flush(4, 1)
E("s_endpgm")
sec("d2")
L("L_D2_comp")
E(f"s_min_u32 s{sT1}, s{sC}, 6")
E(f"s_lshl_b32 s{sT1}, s{sT1}, 6")
E(f"s_mul_i32 s{sT0}, s{sG}, 448")
E(f"s_add_u32 s{sS1}, s{sT0}, s{sT1}")
if LATE0: wo_issue()
if W1L and LATE0 < 2: E("s_barrier")
srd(R_C, sB1, None, 3584)
E(f"v_and_b32 v{TT+5}, 7, v2")
E(f"v_lshlrev_b32 v{TT+5}, 1, v{TT+5}")
E(f"s_lshl_b32 s{sT1}, s{sWV}, 4")
E(f"s_add_u32 s{sT0}, s{sS1}, s{sT1}")
E(f"buffer_load_ushort v{vB1}, v{TT+5}, s[{R_C}:{R_C+3}], s{sT0} offen")
E(f"v_lshrrev_b32 v{TT+5}, 1, v{TT+2}")
E(f"v_lshl_add_u32 v{TT+5}, v{TT+1}, 1, v{TT+5}")
E(f"v_xor_b32 v{TT+5}, s{sWV}, v{TT+5}")
E(f"v_lshl_add_u32 v{aTA}, v3, 7, v{TT+2}")
E(f"v_lshlrev_b32 v{aTA}, 7, v{aTA}")
E(f"v_lshl_add_u32 v{aTA}, v{TT+3}, 3, v{aTA}")
E(f"v_lshl_add_u32 v{aTA}, v{TT+5}, 5, v{aTA}")
E(f"v_bfe_u32 v{TT+5}, v2, 1, 1")
E(f"v_lshl_add_u32 v{TT+6}, v{TT+5}, 6, v{TT+4}")
E(f"v_lshl_add_u32 v{TT+5}, v{TT+5}, 1, v{TT+1}")
E(f"v_xor_b32 v{TT+5}, s{sWV}, v{TT+5}")
E(f"v_lshlrev_b32 v{aTB}, 6, v{TT+6}")
E(f"v_lshl_add_u32 v{aTB}, v{TT+5}, 4, v{aTB}")
E(f"v_and_b32 v{TT+5}, 1, v2")
E(f"v_lshl_add_u32 v{aTB}, v{TT+5}, 3, v{aTB}")
E(f"v_add_u32 v{aTB}, {WB_LDS}, v{aTB}")
E(f"s_lshl_b32 s{sT1}, s{sWV}, 7")
E(f"v_lshlrev_b32 v{aST}, 5, v3")
E(f"v_add_u32 v{aST}, s{sT1}, v{aST}")
E(f"v_lshlrev_b32 v{aOS}, 4, v2")
E(f"v_lshl_add_u32 v{aOS}, v{TT+1}, 3, v{aOS}")
E(f"v_lshl_add_u32 v{aOS}, v{TT}, 2, v{aOS}")
E(f"s_lshl_b32 s{sT1}, s{sWV}, 8")
E(f"s_add_u32 s{sT1}, s{sT1}, {OS_LDS}")
E(f"v_add_u32 v{aOS}, s{sT1}, v{aOS}")
E(f"v_add_u32 v{aIN}, {OS_LDS}, v{vL16}")
E(f"v_lshlrev_b32 v{TT+5}, 4, v{TT+5}")
E(f"v_mov_b32 v{TT+6}, 0xffff")
E(f"v_lshlrev_b32 v{TT+6}, v{TT+5}, v{TT+6}")
E(f"v_bfe_u32 v{TT+7}, v2, 1, 2")
for d in range(4):
    E(f"v_cmp_eq_u32 vcc, {d}, v{TT+7}")
    E("s_nop 1")
    E(f"v_cndmask_b32 v{MK+d}, 0, v{TT+6}, vcc")
E(f"v_lshrrev_b32 v{vFLG}, 3, v2")
E(f"v_cmp_eq_u32 vcc, v{vFLG}, v{TT}")
E(f"v_cvt_f32_u32 v{vFLG}, v{vFLG}")
E("s_nop 0")
E(f"v_cndmask_b32 v{vVAL}, 0, -1, vcc")
E(f"s_lshl_b32 s{sT1}, s{sWV}, 12")
E(f"s_add_u32 s{sPoff}, s{sPoff}, s{sT1}")
E(f"s_lshl_b32 s{sT1}, s{sPJ}, 4")
E(f"s_add_u32 s{sPub}, s{sLOC}, s{sT1}")
E(f"s_add_u32 s{sPubG}, s{sPubG}, {W_Y}")
E(f"s_mov_b32 s{sYoff}, {W_Y}")
E(f"s_mov_b32 s{sC2}, 0")
E("s_waitcnt vmcnt(0)")
unpack_resid(XB)
E(f"v_lshlrev_b32 v{vB1}, 16, v{vB1}")
stamp(1)
E("s_barrier")
stamp(2)
ampx("xw", 0)
for s in range(16):
    for e in range(2):
        E(f"ds_read_b64_tr_b16 {vr(WA+4*s+2*e,2)}, v{aTA} offset:{1024*s+512*e}")
for s in range(8):
    for e in range(2):
        E(f"ds_read_b64_tr_b16 {vr(WB+4*s+2*e,2)}, v{aTB} offset:{16384*e+512*s}")
read_mode("0xff", 28)
for s in range(8):
    c = "0" if s == 0 else vr(ACC,4)
    E(f"v_mfma_f32_16x16x32_bf16 {vr(ACC,4)}, {vr(ONESB,4)}, {vr(WB+4*s,4)}, {c}")
E("s_nop 7")
E(f"v_add_f32_dpp v{vCS}, v{ACC}, v{ACC} row_ror:8 row_mask:0xf bank_mask:0xf")
L("L_D2_loop")
mark("d2")
def p_loads():
    for i in range(4):
        E(f"buffer_load_dwordx4 {vr(GB+4*i,4)}, v{vL16}, {WSR}, s{sPoff} offen offset:{1024*i} sc1")
arm(vST, 8)
p_loads()
L("L_gs_poll")
E(f"buffer_load_dwordx4 {vr(vST,4)}, v{aST}, {WSR}, s{sLOC} offen offset:{W_ST} sc1")
E(f"buffer_load_dwordx4 {vr(vST+4,4)}, v{aST}, {WSR}, s{sLOC} offen offset:{W_ST+16} sc1")
E(f"s_waitcnt vmcnt({2*(PD-1)})")
E(f"v_max3_u32 v{TT}, v{vST}, v{vST+1}, v{vST+2}")
E(f"v_max3_u32 v{TT+1}, v{vST+3}, v{vST+4}, v{vST+5}")
E(f"v_max3_u32 v{TT}, v{TT}, v{vST+6}, v{vST+7}")
E(f"v_max_u32 v{TT}, v{TT}, v{TT+1}")
E(f"v_cmp_eq_u32 vcc, -1, v{TT}")
E("s_cbranch_vccz L_gs_ok")
if SLP: E(f"s_sleep {SLP}")
spin_check("L_gs_poll")
L("L_gs_ok")
p_loads()
stamp(3, True)
vM, vU, vLs = TT, TT+1, TT+2
WT = TT + 3
AW = GB + 16
E(f"v_max3_f32 v{vM}, v{vST}, v{vST+2}, v{vST+4}")
E(f"v_max_f32 v{vM}, v{vM}, v{vST+6}")
for sw in ("16", "32"):
    E(f"v_mov_b32 v{vU}, v{vM}")
    E("s_nop 1")
    E(f"v_permlane{sw}_swap_b32 v{vM}, v{vU}")
    E(f"v_max_f32 v{vM}, v{vM}, v{vU}")
for t in range(4): E(f"v_sub_f32 v{WT+t}, v{vST+2*t}, v{vM}")
for t in range(4): E(f"v_exp_f32 v{WT+t}, v{WT+t}")
E("s_nop 0")
E(f"v_mul_f32 v{vLs}, v{WT}, v{vST+1}")
for t in range(1, 4): E(f"v_fmac_f32 v{vLs}, v{WT+t}, v{vST+2*t+1}")
for sw in ("16", "32"):
    E(f"v_mov_b32 v{vU}, v{vLs}")
    E("s_nop 1")
    E(f"v_permlane{sw}_swap_b32 v{vLs}, v{vU}")
    E(f"v_add_f32 v{vLs}, v{vLs}, v{vU}")
E(f"v_rcp_f32 v{vLs}, v{vLs}")
p_loads()
for t in range(4): E(f"v_mul_f32 v{WT+t}, v{WT+t}, v{vLs}")
for t in range(4): E(f"v_cvt_pk_bf16_f32 v{WT+4+t}, v{WT+t}, v{WT+t}")
for t in range(4): E(f"v_and_b32 v{WT+4+t}, 0xffff0000, v{WT+4+t}")
for t in range(4): E(f"v_fma_f32 v{WT+t}, -v{WT+4+t}, v{vFLG}, v{WT+t}")
for t in range(4): E(f"v_cvt_pk_bf16_f32 v{WT+t}, v{WT+t}, v{WT+t}")
for t in range(4):
    for d in range(4): E(f"v_and_b32 v{AW+4*t+d}, v{MK+d}, v{WT+t}")
E("s_branch L_gp_use")
L("L_gp_nan")
E(f"s_sub_u32 s{sSPIN}, s{sSPIN}, 1")
E("s_cbranch_scc1 L_exit")
E(f"s_and_b32 s{sT1}, s{sSPIN}, 15")
E("s_cbranch_scc0 L_gp_retry")
L("L_gp_again")
p_loads()
L("L_gp_use")
E("s_waitcnt vmcnt(4)")
for t in range(4):
    E(f"v_mfma_f32_16x16x32_bf16 {vr(CA,4)}, {vr(AW+4*t,4)}, {vr(GB+4*t,4)}, {'0' if t == 0 else vr(CA,4)}")
E("s_nop 7")
E(f"v_cmp_u_f32 vcc, v{CA}, v{CA}")
E(f"v_permlane32_swap_b32 v{CA}, v{CA+2}")
E(f"v_permlane32_swap_b32 v{CA+1}, v{CA+3}")
E("s_cbranch_vccnz L_gp_nan")
L("L_gp_ok")
E(f"v_add_f32 v{CA}, v{CA}, v{CA+2}")
E(f"v_add_f32 v{CA+1}, v{CA+1}, v{CA+3}")
E(f"v_cvt_pk_bf16_f32 v{CA}, v{CA}, v{CA+1}")
E(f"ds_write_b32 v{aOS}, v{CA}")
E(f"v_mov_b32 v{vT}, 0")
stamp(4, True)
mark("d2")
E("s_waitcnt lgkmcnt(0)")
E("s_barrier")
E(f"ds_read_b128 {vr(XB,4)}, v{aIN}")
E(f"buffer_load_dwordx4 {vr(CA,4)}, v{vL16}, {WSR}, s{sLOC} offen offset:{W_X2} sc1")
E("s_waitcnt lgkmcnt(0)")
matvec(16, XB, WA, [], per=PN)
y_publish()
stamp(5, True)
ampx("xy", 0)
def pre_y():
    E(f"s_cmp_eq_u32 s{sLAY}, 0")
    E("s_cbranch_scc1 L_D2_havex")
    E("s_waitcnt vmcnt(1)")
    chk_bf16(CA, TT)
    E("s_cbranch_vccz L_gx2_have")
    gather1("gx2", CA, vL16, sLOC, W_X2, TT, pd=1, slp=0)
    L("L_gx2_have")
    unpack_resid(CA)
    L("L_D2_havex")
relay_X("gy", sYoff, pre_y)
stamp(6, True)
ampx("xz", 0)
E(f"s_cmp_eq_u32 s{sC}, 7")
E("s_cbranch_scc1 L_D2_x1")
matvec(8, XB, WB, stats_fillers(), rows=[(0x5, 0xf, [0,1,2,3]), (0xa, 0xf, [4,5,6,7])], per=PER+2)
mark("d2")
xgroup_sum(True)
h, u, a, b = vT, TT+5, TT+6, TT+7
E(f"v_add_f32 v{h}, v{h}, v{vB1}")
E(f"v_mul_f32 v{u}, s{sC3}, |v{h}|")
E(f"v_exp_f32 v{u}, v{u}")
E(f"v_cmp_le_f32 vcc, 0, v{h}")
E(f"v_add_f32 v{b}, 2.0, v{u}")
E(f"v_fma_f32 v{a}, v{u}, 2.0, 1.0")
E(f"v_mul_f32 v{b}, v{u}, v{b}")
E(f"v_mul_f32 v{u}, v{u}, v{u}")
E(f"v_cndmask_b32 v{a}, v{b}, v{a}, vcc")
E(f"v_cndmask_b32 v{u}, 1.0, v{u}, vcc")
E(f"v_fma_f32 v{b}, v{u}, 2.0, v{a}")
E(f"v_rcp_f32 v{b}, v{b}")
E(f"v_mul_f32 v{h}, v{h}, v{a}")
E(f"v_mul_f32 v{h}, v{h}, v{b}")
E(f"v_cvt_pk_bf16_f32 v{h}, v{h}, v{h}")
E(f"v_min_u32 v{h}, -2, v{h}")
pub2("buffer_store_short", f"v{h}", aP16, sPub, sMA_f, sMA_s, W_ACT)
stamp(7, True)
L("L_D2_next")
for s_ in (sLOC, sPoff, sPub, sPubG, sYoff):
    E(f"s_add_u32 s{s_}, s{s_}, {LS}")
E(f"s_add_u32 s{sLAY}, s{sLAY}, 1")
E(f"s_cmp_lt_u32 s{sLAY}, 2")
E("s_cbranch_scc1 L_D2_loop")
stamp_flush(0, 0)
E("s_endpgm")
L("L_D2_x1")
pub_resid(W_X1)
unpack_resid(XB)
E("s_branch L_D2_next")
sec("cold")
L("L_exit")
E("s_endpgm")
L("L_gp_retry")
for i in range(0, 16, 2): E(f"v_pk_max_u16 v{ACC+i//2}, v{GB+i}, v{GB+i+1}")
for i in range(0, 8, 2): E(f"v_pk_max_u16 v{ACC+i//2}, v{ACC+i}, v{ACC+i+1}")
chk_bf16(ACC, TT)
E("s_cbranch_vccnz L_gp_again")
for t in range(4):
    E(f"v_mfma_f32_16x16x32_bf16 {vr(CA,4)}, {vr(AW+4*t,4)}, {vr(GB+4*t,4)}, {'0' if t == 0 else vr(CA,4)}")
E("s_nop 9")
E(f"v_permlane32_swap_b32 v{CA}, v{CA+2}")
E(f"v_permlane32_swap_b32 v{CA+1}, v{CA+3}")
E("s_branch L_gp_ok")
for b_ in retry_blocks: b_()
L("L_code_end")

out = [open("cdna_kernels/" + NAME + ".s.ref").read().split("; Override")[0].rstrip("\n"),
       f"; @launch grid=(256,1,1) block=(512,1,1) lds={LDS_BYTES}", '.amdgcn_target "amdgcn-amd-amdhsa--gfx950"', ".text",
       f".globl {NAME}_kernel", ".p2align 8", f".type {NAME}_kernel,@function"]
for k in ORDER:
    for x in secs[k]:
        if isinstance(x, tuple) and x[0] == "MARK":
            _, role, i = x
            n = wstep[role]
            out.append("    s_cbranch_execz " + (marks[role][i + n] if i + n < len(marks[role]) else f"L_wd_{role}{i % n}"))
        elif isinstance(x, tuple):
            _, role, first, step = x
            assert first < len(marks[role])
            out += ["    s_mov_b64 exec, 0", f"    s_branch {marks[role][first]}", f"L_wd_{role}{first}:", "    s_mov_b64 exec, -1"]
        else: out.append(x)
out.append('.section .rodata,"a"')
out.append(".p2align 6")
out.append(f".amdhsa_kernel {NAME}_kernel")
out.append("  .amdhsa_next_free_vgpr 256")
out.append("  .amdhsa_next_free_sgpr 96")
out.append("  .amdhsa_accum_offset 256")
out.append("  .amdhsa_group_segment_fixed_size 0")
out.append("  .amdhsa_kernarg_size 96")
out.append("  .amdhsa_user_sgpr_count 2")
out.append("  .amdhsa_user_sgpr_kernarg_segment_ptr 1")
out.append("  .amdhsa_system_sgpr_workgroup_id_x 1")
out.append("  .amdhsa_float_denorm_mode_32 3")
out.append(".end_amdhsa_kernel")
open(sys.argv[1], "w").write("\n".join(out) + "\n")
```

```python
import sys, math, struct
PROF = int(sys.argv[2]) if len(sys.argv) > 2 else 0
OPT = dict(a.split("=") for a in sys.argv[3:])
THR = int(OPT.get("thr", 6))
ACK = int(OPT.get("ack", 1))
PER = int(OPT.get("per", 3))
PD = int(OPT.get("pd", 4))
SLP = int(OPT.get("slp", 0))
LATE0 = int(OPT.get("late0", 0))
GP = int(OPT.get("gp", 1))
GSL = int(OPT.get("gsl", 0))
THV = int(OPT.get("thv", 8))
GD = int(OPT.get("gd", 0))
fl = lambda k, d: {"0": "", "1": " nt", "2": " sc1", "3": " sc0 sc1", "4": " sc1 nt"}[OPT.get(k, d)]
NTQ, NTW, NTK, NTV = fl("ntq", "0"), fl("ntw", "0"), fl("ntk", "1"), fl("ntv", "0")
TQ = int(OPT.get("tq", 1))
MARKGAP = int(OPT.get("gap", 768))
CPF = int(OPT.get("cpf", 1))
W1L = int(OPT.get("w1l", 2))
STW = 1
REORD = int(OPT.get("reord", 0))
PAD = int(OPT.get("pad", 1))
PN = int(OPT.get("pn", 4))
W2P = int(OPT.get("w2p", 0))
W1N = int(OPT.get("w1n", 1))
WARM = int(OPT.get("warm", 0))
NTT = fl("ntt", "0")
GFL = fl("gfl", "2")
SFL = {"2": " sc1", "3": " sc0 sc1", "4": " sc1 nt"}[OPT.get("sfl", "2")]
NAME = "interleave_layers__sliding_block_cached__dense_activation_mish__decode"
import re
ORDER = ["entry", "dinit", "d1", "actl", "a", "d2", "help", "cold"]
secs = {k: [] for k in ORDER}
cur = ["entry"]
since = {k: 0 for k in ORDER}
unsafe = [False]
marks = {k: [] for k in ORDER}
WARMED = ("d1", "a", "d2")
BIG = ("v_mfma", "v_pk_", "v_fma_", "v_max3", "v_or3", "v_add3", "v_lshl_add", "v_bfe", "v_mul_lo", "v_cvt_pk", "v_readlane", "v_writelane",
       "ds_", "buffer_", "global_", "s_load", "s_memrealtime")
def isize(t):
    if t.startswith(BIG) or "_dpp" in t or "|v" in t or (t.startswith(("v_cmp", "v_cndmask")) and "s[" in t): return 8
    ops = t.split(None, 1)[1] if " " in t else ""
    if t.startswith(("s_waitcnt", "s_nop", "s_sleep", "s_branch", "s_cbranch", "s_call", "s_getreg", "s_setprio")): return 4
    for tok in re.split(r"[,\s]+", ops):
        if re.fullmatch(r"0x[0-9a-f]+|\d+", tok) and int(tok, 0) > 64: return 8
    return 4
def sec(name): cur[0] = name
def put_mark():
    k = cur[0]
    marks[k].append(f"L_wm_{k}{len(marks[k])}")
    secs[k].append(marks[k][-1] + ":")
    secs[k].append(("MARK", k, len(marks[k]) - 1))
    since[k] = 4
def E(s=""):
    k = cur[0]
    if WARM and k in WARMED and not unsafe[0] and (since[k] >= MARKGAP or not marks[k]): put_mark()
    secs[k].append("    " + s)
    since[k] += isize(s)
    if re.match(r"s_\w+ exec", s): unsafe[0] = s != "s_mov_b64 exec, -1"
def L(s): secs[cur[0]].append(s + ":")
def vr(a, n=1): return f"v{a}" if n == 1 else f"v[{a}:{a+n-1}]"
def f32(x): return hex(struct.unpack("<I", struct.pack("<f", x))[0])

K_LDS, V_LDS = 0, 65536
WA_LDS, WB_LDS = 0, 65536
QS_LDS, PX_LDS, SX_LDS, FL_LDS = 131072, 132608, 140800, 141312
OS_LDS, XS_LDS = QS_LDS, PX_LDS
LDS_BYTES = 141824
LS = 0x30000
W_Q, W_X2, W_X1, W_ST, W_ACT = 0, 1024, 2048, 3072, 3584
W_Y, W_Z, W_P = 32768, 40960, 65536
W_Q0 = 2 * LS
W_Q0B = 32768
W_EP = W_Q0 + 65536
ALT = 0x80000
WS_USED = ALT + 2 * LS
PROF_OFF = 0x300000
WS_REC = PROF_OFF + 256 * 1024

sX, sK, sV, sWQ, sWO, sBX, sW1, sB1 = 8, 10, 12, 14, 16, 18, 20, 22
sW2, sOUT, sDBG, sWS = 24, 26, 28, 30
sG, sJ, sWV, sC, sPJ = 3, 4, 5, 6, 7
R_WS, R_A, R_B, R_C = 32, 36, 40, 44
sT0, sT1, sT2, sT3 = 48, 49, 50, 51
sLOC, sLAY = 52, 53
sYoff, sZoff, sPoff = 54, 55, 56
sSPIN = 57
sRET = 58
sMA_f, sMA_s, sMB_f, sMB_s, sMC_f, sMC_s = 60, 62, 64, 66, 68, 70
sTAG, sXCC, sQ0, sQ0B = 72, 73, 74, 75
sFFFE = 76
sC1, sC2, sC3 = 77, 78, 79
sS1, sS2, sPIV = 80, 81, 82
sPub, sPubG = 83, 84
sST = 88
sPe, sLe, sMODE = 90, 91, 92
SPIN0 = 0x200000
WSR = f"s[{R_WS}:{R_WS+3}]"

def srd(r, base, add_lo=None, rec=None):
    if add_lo is None:
        E(f"s_mov_b32 s{r}, s{base}")
        E(f"s_and_b32 s{r+1}, s{base+1}, 0xffff")
    else:
        E(f"s_add_u32 s{r}, s{base}, {add_lo}")
        E(f"s_addc_u32 s{r+1}, s{base+1}, 0")
        E(f"s_and_b32 s{r+1}, s{r+1}, 0xffff")
    E(f"s_mov_b32 s{r+2}, {rec}")
    E(f"s_mov_b32 s{r+3}, 0x00020000")

V_STAMP = 254
ROLE = ["a"]
def stamp(idx, layer_dep=False):
    if not PROF: return
    if PROF == 9 and not (idx == 8 and not layer_dep) and not (idx == 6 and layer_dep and ROLE[0] == "a" and "pt" not in OPT) and OPT.get("pt") != f"{cur[0]}_{idx}": return
    E(f"s_memrealtime s[{sST}:{sST+1}]")
    E("s_waitcnt lgkmcnt(0)")
    if layer_dep:
        E(f"s_lshl_b32 s{sT3}, s{sLAY}, 4")
        E(f"s_add_u32 s{sT3}, s{sT3}, {idx}")
        E(f"s_mov_b32 m0, s{sT3}")
        E("s_nop 0")
        E(f"v_writelane_b32 v{V_STAMP}, s{sST}, m0")
    else:
        E(f"v_writelane_b32 v{V_STAMP}, s{sST}, {idx}")
AMP = OPT.get("amp")
def amp(name):
    if AMP != name: return
    E(f"s_cmp_eq_u32 s{sLAY}, {OPT.get('amplay', '0')}")
    E(f"s_cbranch_scc0 L_amp_{name}")
    E("s_memrealtime s[94:95]")
    E("s_waitcnt lgkmcnt(0)")
    L(f"L_amp_{name}")
def ampx(name, wave):
    if AMP != name: return
    E(f"s_cmp_eq_u32 s2, {OPT.get('ampwg', '0')}")
    E(f"s_cbranch_scc0 L_amp_{name}")
    E(f"s_cmp_eq_u32 s{sWV}, {wave}")
    E(f"s_cbranch_scc0 L_amp_{name}")
    E(f"s_cmp_eq_u32 s{sLAY}, 0")
    E(f"s_cbranch_scc0 L_amp_{name}")
    E("s_memrealtime s[94:95]")
    E("s_waitcnt lgkmcnt(0)")
    if name == "xs": E("s_mov_b32 s94, s86")
    if name == "xa": E("s_mov_b32 s94, s88")
    E("v_mov_b32 v246, s94")
    E(f"v_mov_b32 v247, {W_EP + 64}")
    E(f"buffer_store_dword v246, v247, {WSR}, 0 offen sc1")
    L(f"L_amp_{name}")
def stamp_flush(wave, slot, dbg=None):
    if not PROF: return
    E(f"s_cmp_lg_u32 s{sWV}, {wave}")
    E("s_cbranch_scc1 L_exit")
    E("s_mov_b64 exec, -1")
    if dbg and "dbg" in OPT:
        wg, off, idx = dbg
        for i, x in enumerate(idx):
            E(f"v_readlane_b32 s{sT0}, v{V_STAMP}, {x}")
            E("s_nop 3")
            E(f"v_writelane_b32 v{V_STAMP-2}, s{sT0}, {i}")
        srd(R_A, sDBG, None, 256)
        E(f"v_lshlrev_b32 v{V_STAMP-1}, 2, v1")
        E(f"s_cmp_eq_u32 s2, {wg}")
        E(f"s_cselect_b32 exec_lo, {(1 << len(idx)) - 1}, 0")
        E("s_mov_b32 exec_hi, 0")
        E(f"buffer_store_dword v{V_STAMP-2}, v{V_STAMP-1}, s[{R_A}:{R_A+3}], 0 offen offset:{off}")
        E("s_mov_b64 exec, -1")
    E(f"s_lshl_b32 s{sT0}, s2, 10")
    E(f"s_add_u32 s{sT0}, s{sT0}, {PROF_OFF + slot*256}")
    E(f"v_lshlrev_b32 v{V_STAMP-1}, 2, v1")
    E(f"buffer_store_dword v{V_STAMP}, v{V_STAMP-1}, {WSR}, s{sT0} offen")

wstep = {}
def mark(role): pass
def warm(role, first=0, step=1):
    if WARM:
        secs[cur[0]].append(("WARM", role, first, step))
        assert wstep.setdefault(role, step) == step

def spin_check(fail_label):
    E(f"s_sub_u32 s{sSPIN}, s{sSPIN}, 1")
    E(f"s_cbranch_scc1 L_exit")
    E(f"s_branch {fail_label}")

def chk_bf16(v, t):
    E(f"v_pk_max_u16 v{t}, v{v}, v{v+1}")
    E(f"v_pk_max_u16 v{t+1}, v{v+2}, v{v+3}")
    E(f"v_pk_max_u16 v{t}, v{t}, v{t+1}")
    E(f"v_pk_max_u16 v{t}, v{t}, v{t} op_sel:[0,1] op_sel_hi:[1,0]")
    E(f"v_cmp_eq_u32 vcc, -1, v{t}")

def pub2(op, data, addr, soff, mf, ms, imm=0):
    o = f" offset:{imm}" if imm else ""
    E(f"s_mov_b64 exec, s[{mf}:{mf+1}]")
    E(f"{op} {data}, v{addr}, {WSR}, s{soff} offen{o}")
    E(f"s_mov_b64 exec, s[{ms}:{ms+1}]")
    E(f"{op} {data}, v{addr}, {WSR}, s{soff} offen{o} sc1")
    E("s_mov_b64 exec, -1")

def masks(mf, ms, lo, hi):
    E(f"s_cselect_b32 s{mf}, {lo}, 0")
    E(f"s_cselect_b32 s{mf+1}, {hi}, 0")
    E(f"s_cselect_b32 s{ms}, 0, {lo}")
    E(f"s_cselect_b32 s{ms+1}, 0, {hi}")

def arm(dst, n):
    for r in range(n): E(f"v_mov_b32 v{dst+r}, -1")

def gather1(tag, dst, addr, soff, imm, t, pd=None, slp=None):
    pd = PD if pd is None else pd
    slp = SLP if slp is None else slp
    L(f"L_{tag}_poll")
    E(f"buffer_load_dwordx4 {vr(dst,4)}, v{addr}, {WSR}, s{soff} offen offset:{imm} sc1")
    E(f"s_waitcnt vmcnt({pd-1})")
    chk_bf16(dst, t)
    E(f"s_cbranch_vccz L_{tag}_ok")
    if slp: E(f"s_sleep {slp}")
    spin_check(f"L_{tag}_poll")
    L(f"L_{tag}_ok")

cD, cA, cXa, cG, cT, cL16 = 208, 210, 211, 212, 224, 232
def xc_publish():
    E(f"s_getreg_b32 s{sXCC}, hwreg(HW_REG_XCC_ID, 0, 4)")
    E(f"v_mov_b32 v{cD+1}, s{sTAG}")
    E(f"s_lshl_b32 s{sT3}, s{sJ}, 3")
    E(f"v_mov_b32 v{cD}, s{sXCC}")
    E(f"v_mov_b32 v{cA}, s{sT3}")
    E("s_mov_b64 exec, 1")
    E(f"buffer_store_dwordx2 {vr(cD,2)}, v{cA}, {WSR}, s{sQ0} offen offset:2048")
    E("s_mov_b64 exec, -1")

def first_gather(tag, with_q, clear_alt, armed=False):
    regs = (1, 3, 5, 7) if with_q else (9,)
    nl = 3 if with_q else 1
    E(f"s_sub_u32 s{sS2}, s{sSPIN}, 160")
    if not armed:
        E(f"v_and_b32 v{cXa}, 31, v1")
        E(f"v_lshlrev_b32 v{cXa}, 3, v{cXa}")
        E(f"s_not_b32 s{sT1}, s{sTAG}")
        for r in regs + ((9,) if with_q else ()): E(f"v_mov_b32 v{cG+r}, s{sT1}")
    def loads(so):
        if with_q:
            E(f"buffer_load_dwordx4 {vr(cG,4)}, v{cL16}, {WSR}, s{so} offen sc1")
            E(f"buffer_load_dwordx4 {vr(cG+4,4)}, v{cL16}, {WSR}, s{so} offen offset:1024 sc1")
        E(f"buffer_load_dwordx2 {vr(cG+8,2)}, v{cXa}, {WSR}, s{so} offen offset:2048 sc1")
    def check():
        if with_q:
            for i, r in enumerate(regs): E(f"v_xor_b32 v{cT+i}, s{sTAG}, v{cG+r}")
            E(f"v_or3_b32 v{cT}, v{cT}, v{cT+1}, v{cT+2}")
            E(f"v_or_b32 v{cT}, v{cT}, v{cT+3}")
            E(f"v_cmp_ne_u32 vcc, 0, v{cT}")
        else:
            E(f"v_cmp_ne_u32 vcc, s{sTAG}, v{cG+9}")
    def copy_b():
        E("s_mov_b64 exec, 1")
        E(f"buffer_store_dwordx2 {vr(cD,2)}, v{cA}, {WSR}, s{sQ0B} offen offset:2048 sc1")
        E("s_mov_b64 exec, -1")
    L(f"L_{tag}_poll")
    loads(sQ0)
    E(f"s_waitcnt vmcnt({24 if armed else nl*6})")
    check()
    E(f"s_cbranch_vccz L_{tag}_seen")
    E("s_sleep 3")
    E(f"s_cmp_gt_u32 s{sSPIN}, s{sS2}")
    E(f"s_cbranch_scc0 L_{tag}_b")
    spin_check(f"L_{tag}_poll")
    home = cur[0]; sec("cold")
    L(f"L_{tag}_b")
    copy_b()
    L(f"L_{tag}_alt")
    for so in (sQ0B, sQ0):
        loads(so)
        E("s_waitcnt vmcnt(0)")
        check()
        E(f"s_cbranch_vccz L_{tag}_{'altok' if with_q else 'ok'}")
    spin_check(f"L_{tag}_alt")
    if with_q:
        L(f"L_{tag}_altok")
        E(f"s_not_b32 s{sT1}, s{sTAG}")
        E(f"v_mov_b32 v{cG+9}, s{sT1}")
        E(f"s_branch L_{tag}_ok")
    sec(home)
    L(f"L_{tag}_seen")
    E("s_nop 15")
    L(f"L_{tag}_ok")
    if with_q:
        E(f"ds_write2_b32 v{cT+5}, v{cG}, v{cG+2} offset0:0 offset1:1")
        E(f"ds_write2_b32 v{cT+5}, v{cG+4}, v{cG+6} offset0:160 offset1:161")
        return
    E(f"v_cmp_ne_u32 vcc, s{sXCC}, v{cG+8}")
    E("s_nop 3")
    if OPT.get("slow") == "1": E("s_mov_b64 vcc, -1")
    E("s_cmp_eq_u64 vcc, 0")
    E(f"s_cselect_b32 s{sMODE}, 1, 0")
    E(f"s_cbranch_scc0 L_{tag}_slow")
    sec("cold")
    L(f"L_{tag}_slow")
    E("s_waitcnt vmcnt(0) lgkmcnt(0)")
    copy_b()
    if clear_alt: clear_alt()
    if clear_alt:
        E("s_waitcnt vmcnt(0)")
        E("s_mov_b64 exec, 1")
        E(f"buffer_store_dwordx2 {vr(cD,2)}, v{cA}, {WSR}, s{sQ0B} offen offset:2560 sc1")
        E("s_mov_b64 exec, -1")
    E(f"v_and_b32 v{cXa}, 56, v{cXa}")
    E(f"v_add_u32 v{cXa}, 192, v{cXa}")
    L(f"L_{tag}_h")
    E(f"buffer_load_dwordx2 {vr(cG+8,2)}, v{cXa}, {WSR}, s{sQ0B} offen offset:2560 sc1")
    E("s_waitcnt vmcnt(0)")
    E(f"v_cmp_ne_u32 vcc, s{sTAG}, v{cG+9}")
    E(f"s_cbranch_vccz L_{tag}_done")
    spin_check(f"L_{tag}_h")
    sec(home)
    L(f"L_{tag}_done")
    E(f"v_mov_b32 v{cT+2}, {FL_LDS}")
    E(f"v_mov_b32 v{cT+3}, s{sMODE}")
    E(f"ds_write_b32 v{cT+2}, v{cT+3}")

L(f"{NAME}_kernel")
E("s_cmp_ge_u32 s2, 256")
E("s_cbranch_scc1 L_exit")
E("s_load_dwordx16 s[8:23], s[0:1], 0")
E("s_load_dwordx8 s[24:31], s[0:1], 64")
if PROF:
    E(f"v_mov_b32 v{V_STAMP}, 0")
    E(f"s_memrealtime s[{sST}:{sST+1}]")
if AMP: E("s_memrealtime s[86:87]")
E("s_getpc_b64 s[92:93]")
E("v_lshrrev_b32 v1, 6, v0")
E(f"s_and_b32 s{sG}, s2, 7")
E(f"v_readfirstlane_b32 s{sWV}, v1")
E(f"s_lshr_b32 s{sJ}, s2, 3")
E("v_and_b32 v1, 63, v0")
if CPF:
    E("s_and_b32 s92, s92, 0xffffff00")
    E("v_lshlrev_b32 v4, 7, v1")
    E("v_add_u32 v5, 0x2000, v4")
    E(f"v_min_u32 v5, L_code_end-{NAME}_kernel-4, v5")
    E(f"s_cmp_lg_u32 s{sWV}, 7")
    E("s_cbranch_scc1 L_nocpf")
    E("global_load_dword v239, v4, s[92:93]")
    E("global_load_dword v239, v5, s[92:93]")
    L("L_nocpf")
E("v_and_b32 v2, 15, v0")
E("v_lshrrev_b32 v3, 4, v1")
E(f"s_mov_b32 s{sSPIN}, {SPIN0}")
E(f"s_mov_b32 s{sLAY}, 0")
E(f"s_lshl_b32 s{sLOC}, s{sG}, 12")
E(f"s_lshl_b32 s{sPoff}, s{sG}, 14")
E(f"s_add_u32 s{sPoff}, s{sPoff}, {W_P}")
E(f"s_add_u32 s{sQ0}, s{sLOC}, {W_Q0}")
E(f"s_add_u32 s{sQ0B}, s{sQ0}, {W_Q0B}")
E("v_lshrrev_b32 v5, 3, v1")
E("v_and_b32 v6, 7, v1")
E("v_lshlrev_b32 v4, 13, v5")
E("v_lshl_add_u32 v4, v6, 7, v4")
E(f"s_lshl_b32 s{sT0}, s{sJ}, 17")
E(f"s_lshl_b32 s{sT1}, s{sG}, 10")
E(f"s_add_u32 s{sT0}, s{sT0}, s{sT1}")
E(f"s_sub_u32 s{sT1}, s{sWV}, 1")
E(f"s_lshl_b32 s{sT2}, s{sT1}, 16")
E(f"s_add_u32 s{sT0}, s{sT0}, s{sT2}")
E(f"s_mov_b32 s{sT2}, {W_EP}")
E("v_mov_b32 v7, 0")
E(f"s_cmp_lt_u32 s{sT1}, 2")
E("s_waitcnt lgkmcnt(0)")
E("s_cbranch_scc0 L_notouch")
srd(R_C, sWQ, None, 4194304)
if TQ: E(f"buffer_load_dword v240, v4, s[{R_C}:{R_C+3}], s{sT0} offen{NTQ}")
L("L_notouch")
if AMP == "xa":
    E("s_memrealtime s[88:89]")
    E("s_waitcnt lgkmcnt(0)")
srd(R_WS, sWS, None, WS_REC if PROF else WS_USED)
E(f"buffer_load_dword v241, v7, {WSR}, s{sT2} offen sc1")
if PROF: E(f"v_writelane_b32 v{V_STAMP}, s{sST}, 60")
E(f"v_mov_b32 v{cA}, 0")
E(f"v_lshlrev_b32 v{cL16}, 4, v1")
E(f"s_cmp_ge_u32 s{sJ}, 16")
E("s_cbranch_scc1 L_D_init")

E(f"s_lshl_b32 s{sT0}, s{sG}, 24")
E(f"s_lshl_b32 s{sT1}, s{sJ}, 16")
E(f"s_add_u32 s{sT0}, s{sT0}, s{sT1}")
E(f"s_add_u32 s{sT0}, s{sT0}, {61440*256}")
srd(R_A, sK, f"s{sT0}", 65536)
srd(R_B, sV, f"s{sT0}", 65536)
E("v_xor_b32 v4, v2, v3")
E("v_lshlrev_b32 v4, 4, v4")
E("v_lshl_add_u32 v4, v3, 8, v4")
E("v_lshlrev_b32 v5, 1, v3")
E("v_xor_b32 v5, v2, v5")
E("v_lshlrev_b32 v5, 4, v5")
E("v_lshl_add_u32 v5, v3, 8, v5")
E(f"s_add_u32 s{sC1}, s{sJ}, s{sG}")
E(f"s_cmp_eq_u32 s{sWV}, 4")
E("s_cbranch_scc1 L_A_ctl")
E(f"s_cmp_gt_u32 s{sWV}, 4")
E("s_cbranch_scc1 L_A_help")
E(f"s_lshl_b32 s{sT0}, s{sWV}, 14")
E(f"s_add_u32 s{sT3}, s{sC1}, 16")
L("L_A_kl")
E(f"s_and_b32 s{sT1}, s{sC1}, 15")
E(f"s_and_b32 s{sT2}, s{sT1}, 3")
E(f"s_lshl_b32 s{sT2}, s{sT2}, 6")
E(f"s_lshl_b32 s{sT1}, s{sT1}, 10")
E(f"s_add_u32 s{sT1}, s{sT1}, s{sT0}")
E(f"s_mov_b32 m0, s{sT1}")
E(f"v_xor_b32 v6, s{sT2}, v4")
E(f"s_waitcnt vmcnt({THR-1})")
E(f"buffer_load_dwordx4 v6, s[{R_A}:{R_A+3}], s{sT1} offen{NTK} lds")
E(f"s_add_u32 s{sC1}, s{sC1}, 1")
E(f"s_cmp_lt_u32 s{sC1}, s{sT3}")
E("s_cbranch_scc1 L_A_kl")
E("s_branch L_A_setup")
L("L_A_help")
E(f"s_sub_u32 s{sT0}, s{sWV}, 5")
E(f"s_lshl_b32 s{sC1}, s{sC1}, 2")
E(f"s_mov_b32 s{sT3}, 0")
THV1, NV1 = int(OPT.get("thv1", 0)), int(OPT.get("nv1", 15))
if THV1:
    L("L_A_vl1")
    E(f"s_add_u32 s{sT1}, s{sC1}, s{sT0}")
    E(f"s_and_b32 s{sT1}, s{sT1}, 63")
    E(f"s_and_b32 s{sT2}, s{sT1}, 1")
    E(f"s_lshl_b32 s{sT2}, s{sT2}, 7")
    E(f"s_lshl_b32 s{sT1}, s{sT1}, 10")
    E(f"s_add_u32 m0, s{sT1}, {V_LDS}")
    E(f"v_xor_b32 v6, s{sT2}, v5")
    E(f"s_waitcnt vmcnt({THV1-1})")
    E(f"buffer_load_dwordx4 v6, s[{R_B}:{R_B+3}], s{sT1} offen{NTV} lds")
    E(f"s_add_u32 s{sT0}, s{sT0}, 3")
    E(f"s_cmp_lt_u32 s{sT0}, {NV1}")
    E("s_cbranch_scc1 L_A_vl1")
L("L_A_vl")
E(f"s_add_u32 s{sT1}, s{sC1}, s{sT0}")
E(f"s_and_b32 s{sT1}, s{sT1}, 63")
E(f"s_and_b32 s{sT2}, s{sT1}, 1")
E(f"s_lshl_b32 s{sT2}, s{sT2}, 7")
E(f"s_lshl_b32 s{sT1}, s{sT1}, 10")
E(f"s_add_u32 m0, s{sT1}, {V_LDS}")
E(f"v_xor_b32 v6, s{sT2}, v5")
E(f"s_waitcnt vmcnt({THV-1})")
E(f"buffer_load_dwordx4 v6, s[{R_B}:{R_B+3}], s{sT1} offen{NTV} lds")
E(f"s_add_u32 s{sT0}, s{sT0}, 3")
E(f"s_cmp_lt_u32 s{sT0}, 64")
E("s_cbranch_scc1 L_A_vl")
stamp(1)
E("s_branch L_A_pf2")
sec("actl")
L("L_A_pf2")
E(f"s_mul_i32 s{sT1}, s{sG}, {224*1024}")
E(f"s_mul_i32 s{sT2}, s{sJ}, 14336")
E(f"s_add_u32 s{sT1}, s{sT1}, s{sT2}")
E(f"s_cmp_eq_u32 s{sWV}, 6")
E(f"s_cselect_b32 s{sT3}, {14336 if W2P else 0}, 0")
srd(R_C, sW2, f"s{sT1}", f"s{sT3}")
E(f"s_mov_b32 s{sT1}, 0")
E(f"s_mov_b32 s{sT2}, 8192")
E("v_lshlrev_b32 v6, 7, v1")
E(f"buffer_load_dword v240, v6, s[{R_C}:{R_C+3}], s{sT1} offen{NTT}")
E(f"buffer_load_dword v240, v6, s[{R_C}:{R_C+3}], s{sT2} offen{NTT}")
E("s_barrier")
E("s_waitcnt vmcnt(2)")
stamp(2)
ampx("xv", 5)
E("s_barrier")
stamp_flush(5, 2)
E("s_endpgm")
sec("a")
L("L_A_setup")
stamp(1)
KF, VF, QF, SC, PB, OD, OUTV, PF, STT = 16, 80, 144, 160, 176, 144, 176, 184, 216
T = 224
E("v_xor_b32 v4, v2, v3")
E("v_lshlrev_b32 v4, 4, v4")
E("v_lshl_add_u32 v4, v2, 8, v4")
E(f"v_add_u32 v4, s{sT0}, v4")
E("v_xor_b32 v5, 64, v4")
E("v_xor_b32 v6, 0x80, v4")
E("v_xor_b32 v7, 0xc0, v4")
E("v_and_b32 v15, 3, v2")
E("v_mul_u32_u24 v8, 320, v15")
E("v_lshl_add_u32 v8, v3, 4, v8")
E(f"v_add_u32 v8, {QS_LDS}, v8")
E("v_lshlrev_b32 v10, 4, v1")
E(f"v_add_u32 v10, {PX_LDS}, v10")
E(f"s_lshl_b32 s{sT1}, s{sWV}, 11")
E(f"v_add_u32 v9, s{sT1}, v10")
E("v_lshlrev_b32 v12, 5, v2")
E(f"v_add_u32 v12, {SX_LDS}, v12")
E(f"s_lshl_b32 s{sT1}, s{sWV}, 3")
E(f"v_add_u32 v11, s{sT1}, v12")
E("v_lshlrev_b32 v13, 12, v15")
E("v_lshl_add_u32 v13, v3, 3, v13")
E("v_bfe_u32 v14, v2, 2, 1")
E("v_lshl_add_u32 v13, v14, 5, v13")
E(f"s_lshl_b32 s{sT1}, s{sWV}, 6")
E(f"v_add_u32 v13, s{sT1}, v13")
E(f"v_cmp_eq_u32 s[{sMC_f}:{sMC_f+1}], 1, v14")
E(f"v_lshlrev_b32 v14, 7, v15")
E(f"v_lshrrev_b32 v{T}, 2, v2")
E(f"v_lshl_add_u32 v{T}, v3, 2, v{T}")
E(f"v_and_b32 v{T+1}, 7, v{T}")
E(f"s_lshl_b32 s{sT1}, s{sWV}, 1")
E(f"v_xor_b32 v{T+1}, s{sT1}, v{T+1}")
E(f"v_lshlrev_b32 v{T}, 8, v{T}")
E(f"v_lshl_add_u32 v{T}, v{T+1}, 5, v{T}")
E(f"v_lshl_add_u32 v{T}, v15, 3, v{T}")
E(f"v_add_u32 v{T}, {V_LDS}, v{T}")
E(f"v_xor_b32 v{T+1}, 32, v{T}")
E(f"s_lshl_b32 s{sT1}, s{sJ}, 8")
E(f"s_add_u32 s{sPoff}, s{sPoff}, s{sT1}")
E(f"s_and_b32 s{sT1}, s{sJ}, 3")
E(f"s_lshl_b32 s{sT1}, s{sT1}, 5")
E(f"s_lshr_b32 s{sT2}, s{sJ}, 2")
E(f"s_lshl_b32 s{sT2}, s{sT2}, 3")
E(f"s_add_u32 s{sT1}, s{sT1}, s{sT2}")
E(f"s_add_u32 s{sPub}, s{sT1}, {W_ST}")
E(f"s_mov_b32 s{sC1}, {f32((128**-0.5)*math.log2(math.e))}")
E(f"s_mov_b32 s{sFFFE}, 0xfffefffe")
E(f"v_mov_b32 v{T+2}, {FL_LDS}")
E(f"v_mov_b32 v{T+8}, s{sC1}")
E(f"s_cmp_eq_u32 s{sWV}, 0")
E(f"s_cselect_b32 s{sC2}, 15, 0")
E(f"s_mov_b32 s{sMB_f+1}, 0")
E(f"s_mov_b32 s{sMB_s+1}, 0")
E("s_waitcnt vmcnt(0)")
stamp(2)
ampx("xk", 0)
for e in range(4):
    for s in range(4):
        E(f"ds_read_b128 {vr(KF+(e*4+s)*4,4)}, v{4+s} offset:{4096*e}")
L("L_A_b1")
mark("a")
E("s_barrier")
for s in range(4):
    E(f"ds_read_b128 {vr(QF+4*s,4)}, v8 offset:{64*s}")
stamp(3, True)
def qk(e, s):
    c = "0" if s == 0 else vr(SC+4*e,4)
    E(f"v_mfma_f32_16x16x32_bf16 {vr(SC+4*e,4)}, {vr(KF+(e*4+s)*4,4)}, {vr(QF+4*s,4)}, {c}")
for s in range(4):
    E(f"s_waitcnt lgkmcnt({3-s})")
    qk(0, s); qk(1, s)
for s in range(4):
    qk(2, s); qk(3, s)
E(f"v_max3_f32 v{T+4}, v{SC}, v{SC+1}, v{SC+2}")
E(f"v_max3_f32 v{T+5}, v{SC+3}, v{SC+4}, v{SC+5}")
E(f"v_max3_f32 v{T+4}, v{T+4}, v{SC+6}, v{SC+7}")
E("s_nop 3")
E(f"v_max3_f32 v{T+5}, v{T+5}, v{SC+8}, v{SC+9}")
E(f"v_max3_f32 v{T+4}, v{T+4}, v{SC+10}, v{SC+11}")
E(f"v_max3_f32 v{T+5}, v{T+5}, v{SC+12}, v{SC+13}")
E(f"v_max3_f32 v{T+4}, v{T+4}, v{SC+14}, v{SC+15}")
E(f"v_max_f32 v{T+4}, v{T+4}, v{T+5}")
E(f"v_mov_b32 v{T+5}, v{T+4}")
E("s_nop 1")
E(f"v_permlane16_swap_b32 v{T+4}, v{T+5}")
E(f"v_max_f32 v{T+4}, v{T+4}, v{T+5}")
E(f"v_mov_b32 v{T+5}, v{T+4}")
E("s_nop 1")
E(f"v_permlane32_swap_b32 v{T+4}, v{T+5}")
E(f"v_max_f32 v{T+4}, v{T+4}, v{T+5}")
E(f"v_mul_f32 v{T+6}, s{sC1}, v{T+4}")
for i in range(8):
    E(f"v_pk_fma_f32 {vr(SC+2*i,2)}, {vr(SC+2*i,2)}, {vr(T+8,2)}, {vr(T+6,2)} op_sel_hi:[1,0,0] neg_lo:[0,0,1] neg_hi:[0,0,1]")
for i in range(8):
    E(f"v_exp_f32 v{SC+i}, v{SC+i}")
E(f"v_exp_f32 v{SC+8}, v{SC+8}")
for i in range(4):
    E(f"v_cvt_pk_bf16_f32 v{PB+i}, v{SC+2*i}, v{SC+2*i+1}")
E(f"ds_write_b128 v9, {vr(PB,4)}")
for i in range(9, 16):
    E(f"v_exp_f32 v{SC+i}, v{SC+i}")
E(f"v_add_f32 v{T+7}, v{SC}, v{SC+1}")
for i in range(4, 8):
    E(f"v_cvt_pk_bf16_f32 v{PB+i}, v{SC+2*i}, v{SC+2*i+1}")
E(f"ds_write_b128 v9, {vr(PB+4,4)} offset:1024")
for i in range(4):
    E(f"v_pk_add_f32 {vr(SC+2+ 0,2) if False else vr(SC+4*i,2)}, {vr(SC+4*i,2)}, {vr(SC+4*i+2,2)}")
E(f"v_pk_add_f32 {vr(SC,2)}, {vr(SC,2)}, {vr(SC+4,2)}")
E(f"v_pk_add_f32 {vr(SC+8,2)}, {vr(SC+8,2)}, {vr(SC+12,2)}")
E(f"v_pk_add_f32 {vr(SC,2)}, {vr(SC,2)}, {vr(SC+8,2)}")
E(f"v_add_f32 v{T+7}, v{SC}, v{SC+1}")
E(f"v_mov_b32 v{T+5}, v{T+7}")
E("s_nop 1")
E(f"v_permlane16_swap_b32 v{T+7}, v{T+5}")
E(f"v_add_f32 v{T+7}, v{T+7}, v{T+5}")
E(f"v_mov_b32 v{T+5}, v{T+7}")
E("s_nop 1")
E(f"v_permlane32_swap_b32 v{T+7}, v{T+5}")
E(f"v_add_f32 v{T+7}, v{T+7}, v{T+5}")
E(f"ds_write_b64 v11, {vr(T+6,2)}")
stamp(4, True)
mark("a")
E("s_waitcnt lgkmcnt(0)")
E("s_barrier")
ampx("xb", 0)
E(f"ds_read_b32 v{T+3}, v{T+2}")
for b in range(2):
    E(f"ds_read_b128 {vr(STT+4*b,4)}, v12 offset:{16*b}")
for b in range(8):
    E(f"ds_read_b128 {vr(PF+4*b,4)}, v10 offset:{1024*b}")
stamp(5, True)
E(f"s_cmp_lg_u32 s{sLAY}, 0")
E("s_cbranch_scc1 L_A_havev")
for tp in range(2):
    for b in range(8):
        for e in range(2):
            E(f"ds_read_b64_tr_b16 {vr(VF+(tp*8+b)*4+2*e,2)}, v{T+tp} offset:{(32*b+16*e)*256}")
E("s_waitcnt lgkmcnt(0)")
L("L_A_havev")
E("s_waitcnt lgkmcnt(8)")
F = STT
va = [f"v_max3_f32 v{T+4}, v{STT}, v{STT+2}, v{STT+4}", f"v_max_f32 v{T+6}, v{T+4}, v{STT+6}"]
va += [f"v_sub_f32 v{F+2*b}, v{STT+2*b}, v{T+6}" for b in range(4)]
va += [f"v_exp_f32 v{F+2*b}, v{F+2*b}" for b in range(4)]
va += [f"v_mul_f32 v{T+7}, v{F}, v{STT+1}"] + [f"v_fmac_f32 v{T+7}, v{F+2*b}, v{STT+2*b+1}" for b in range(1, 4)]
E(f"v_readfirstlane_b32 s{sMODE}, v{T+3}")
for x in va[:2]: E(x)
sa = [f"s_cmp_eq_u32 s{sMODE}, 1", f"s_cselect_b32 s{sMB_f}, s{sC2}, 0", f"s_cselect_b32 s{sMB_s}, 0, s{sC2}",
      f"s_cselect_b32 s{sMA_f}, 0x00ff00ff, 0", f"s_cselect_b32 s{sMA_f+1}, 0x00ff00ff, 0", f"s_cselect_b32 s{sMA_s}, 0, 0x00ff00ff",
      f"s_cselect_b32 s{sMA_s+1}, 0, 0x00ff00ff", f"s_cselect_b32 s{sT2}, 0, {ALT}", f"s_add_u32 s{sPe}, s{sPoff}, s{sT2}",
      f"s_add_u32 s{sT2}, s{sLOC}, s{sT2}", f"s_add_u32 s{sT2}, s{sT2}, s{sPub}"]
k = 2
for u in range(8):
    E(f"s_waitcnt lgkmcnt({7-u})")
    for tp in range(2):
        d = vr(OD+(tp*4+u//2)*4,4)
        E(f"v_mfma_f32_16x16x32_bf16 {d}, {vr(VF+(tp*8+u)*4,4)}, {vr(PF+4*u,4)}, {'0' if u % 2 == 0 else d}")
        if k < len(va): E(va[k]); k += 1
        if sa and u >= 1: E(sa.pop(0)); E(sa.pop(0)) if sa else None
    if u == 5:
        assert k == len(va)
        E(f"v_min_u32 v{T+6}, -2, v{T+6}")
        E(f"v_min_u32 v{T+7}, -2, v{T+7}")
        pub2("buffer_store_dwordx2", vr(T+6,2), 14, sT2, sMB_f, sMB_s)
def cb(b):
    for tp in range(2):
        for h in range(2):
            o = vr(OUTV+4*tp+2*h,2)
            if b == 0: E(f"v_pk_mul_f32 {o}, {vr(OD+tp*16+2*h,2)}, {vr(F,2)} op_sel_hi:[1,0]")
            else: E(f"v_pk_fma_f32 {o}, {vr(OD+(tp*4+b)*4+2*h,2)}, {vr(F+2*b,2)}, {o} op_sel_hi:[1,0,1]")
for b in range(4): cb(b)
for r in range(4):
    E(f"v_cndmask_b32 v{OUTV+r}, v{OUTV+r}, v{OUTV+4+r}, s[{sMC_f}:{sMC_f+1}]")
E(f"v_cvt_pk_bf16_f32 v{OUTV}, v{OUTV}, v{OUTV+1}")
E(f"v_cvt_pk_bf16_f32 v{OUTV+1}, v{OUTV+2}, v{OUTV+3}")
E(f"v_pk_min_u16 v{OUTV}, v{OUTV}, s{sFFFE}")
E(f"v_pk_min_u16 v{OUTV+1}, v{OUTV+1}, s{sFFFE}")
pub2("buffer_store_dwordx2", vr(OUTV,2), 13, sPe, sMA_f, sMA_s)
stamp(6, True)
ampx("xp", 0)
E(f"s_add_u32 s{sPoff}, s{sPoff}, {LS}")
E(f"s_add_u32 s{sLOC}, s{sLOC}, {LS}")
E(f"s_add_u32 s{sLAY}, s{sLAY}, 1")
E(f"s_cmp_lt_u32 s{sLAY}, 2")
E("s_cbranch_scc1 L_A_b1")
stamp_flush(0, 0, (int(OPT.get("dbg", 0)), 36, [60, 2, 3, 5, 6, 19, 22]))
E("s_endpgm")
sec("actl")
L("L_A_ctl")
E("s_waitcnt vmcnt(0)")
E(f"v_readfirstlane_b32 s{sTAG}, v241")
E("s_nop 3")
E(f"s_add_u32 s{sTAG}, s{sTAG}, 1")
ampx("xe", 4)
ampx("xs", 4)
ampx("xa", 4)
xc_publish()
warm("a")
E(f"v_lshrrev_b32 v{cT+5}, 5, v1")
E(f"v_lshlrev_b32 v{cT+5}, 6, v{cT+5}")
E(f"v_lshl_add_u32 v{cT+5}, v1, 3, v{cT+5}")
E(f"v_add_u32 v{cT+5}, {QS_LDS}, v{cT+5}")
first_gather("aq0", True, None)
stamp(2)
ampx("xq", 4)
E("s_waitcnt lgkmcnt(0)")
E("s_barrier")
first_gather("ax", False, None, armed=True)
stamp(3)
E("s_waitcnt lgkmcnt(0)")
E(f"s_cmp_eq_u32 s{sMODE}, 1")
E(f"s_cselect_b32 s{sT2}, 0, {ALT}")
E(f"s_add_u32 s{sLe}, s{sLOC}, s{sT2}")
E(f"s_add_u32 s{sLe}, s{sLe}, {LS}")
E(f"v_lshl_add_u32 v{cT+2}, v3, 6, v{cL16}")
E(f"v_add_u32 v{cT+2}, {QS_LDS}, v{cT+2}")
E("s_barrier")
E("s_waitcnt vmcnt(0)")
arm(cG, 4)
gather1("aq", cG, cL16, sLe, W_Q, cT)
E(f"ds_write_b128 v{cT+2}, {vr(cG,4)}")
stamp(18)
E("s_waitcnt lgkmcnt(0)")
E("s_barrier")
stamp_flush(4, 1)
E("s_endpgm")

vL16, aXIO, aTA, aTB, aIN, aST, aP16, aPY, vONE, aOS, aXS = 4, 5, 6, 7, 8, 9, 10, 11, 12, 13, 14
SEL0, ONESB, XR, XN, XB, vT = 16, 24, 28, 36, 44, 48
TT = 49
vB1, vCS, aGX, vINV, vVAL = 15, 0, 249, 250, 252
GB, WA, ACC, WB = 64, 96, 160, 192
vST, CA, MK, vFLG = 224, 232, 236, 248
NACC = 8

retry_blocks = []
def gather_X(tag, soff, role, hook=None):
    def loads():
        for i in range(8):
            so = soff if i < 4 else sT0
            E(f"buffer_load_dwordx4 {vr(GB+4*i,4)}, v{aGX}, {WSR}, s{so} offen offset:{256*(i%4)}{GFL}")
    def sums(wait):
        for i in range(8):
            if wait is not None: E(f"s_waitcnt vmcnt({wait + 7 - i})")
            e, w = (i % 4) // 2, i % 2
            c = vr(XR+4*e,4) if i in (0, 2) else vr(XN+4*e,4)
            E(f"v_mfma_f32_16x16x32_bf16 {vr(XN+4*e,4)}, {vr(SEL0+4*w,4)}, {vr(GB+4*i,4)}, {c}")
    E(f"s_add_u32 s{sT0}, s{soff}, 4096")
    if ACK: E("s_waitcnt vmcnt(0)")
    elif GD: E(f"s_sleep {GD}")
    if PROF in (2, 9): stamp(9, True)
    for _ in range(GP - 1):
        loads()
        if GSL: E(f"s_sleep {GSL}")
    E(f"s_branch L_{tag}_again")
    L(f"L_{tag}_nan")
    E(f"s_sub_u32 s{sSPIN}, s{sSPIN}, 1")
    E("s_cbranch_scc1 L_exit")
    E(f"s_and_b32 s{sT1}, s{sSPIN}, 15")
    E(f"s_cbranch_scc0 L_{tag}_retry")
    if GSL: E(f"s_sleep {GSL}")
    L(f"L_{tag}_again")
    loads()
    if hook: hook()
    mark(role)
    sums(8 * (GP - 1))
    E("s_nop 6")
    E(f"v_cmp_u_f32 vcc, v{XN}, v{XN}")
    E(f"v_cmp_u_f32 s[{sS1}:{sS1+1}], v{XN+4}, v{XN+4}")
    for d in range(4):
        E(f"v_cvt_pk_bf16_f32 v{XB+d}, v{XN+2*d}, v{XN+2*d+1}")
    E(f"s_or_b64 vcc, vcc, s[{sS1}:{sS1+1}]")
    E(f"s_cbranch_vccnz L_{tag}_nan")
    L(f"L_{tag}_ok")
    if PROF in (2, 9):
        stamp(11, True)
        E(f"s_mov_b32 s{sST}, s{sSPIN}")
    def blk():
        L(f"L_{tag}_retry")
        for i in range(16): E(f"v_pk_max_u16 v{ACC+i}, v{GB+2*i}, v{GB+2*i+1}")
        for i in range(8): E(f"v_pk_max_u16 v{ACC+i}, v{ACC+2*i}, v{ACC+2*i+1}")
        for i in range(4): E(f"v_pk_max_u16 v{ACC+i}, v{ACC+2*i}, v{ACC+2*i+1}")
        chk_bf16(ACC, TT)
        E(f"s_cbranch_vccnz L_{tag}_again")
        sums(None)
        E("s_nop 7")
        for d in range(4):
            E(f"v_cvt_pk_bf16_f32 v{XB+d}, v{XN+2*d}, v{XN+2*d+1}")
        E(f"s_branch L_{tag}_ok")
    retry_blocks.append(blk)

def relay_X(tag, soff, pre):
    E(f"v_mov_b32 v{vT}, 0")
    E(f"s_cmp_lg_u32 s{sWV}, 0")
    E(f"s_cbranch_scc1 L_{tag}_other")
    pre()
    gather_X(tag, soff, "d2")
    E(f"ds_write_b128 v{aXS}, {vr(XB,4)}")
    post = f"L_{tag}_join"
    E("s_waitcnt lgkmcnt(0)")
    E("s_barrier")
    E(f"s_branch {post}")
    L(f"L_{tag}_other")
    E("s_waitcnt vmcnt(0)")
    E("s_barrier")
    E(f"ds_read_b128 {vr(XB,4)}, v{aXS}")
    E("s_waitcnt lgkmcnt(0)")
    L(post)

def unpack_resid(src):
    for d in range(4):
        E(f"v_lshlrev_b32 v{XR+2*d}, 16, v{src+d}")
        E(f"v_and_b32 v{XR+2*d+1}, 0xffff0000, v{src+d}")

def matvec(nsteps, A, W, fillers, rows=None, per=PER, waits=False):
    if rows is None:
        rows = [(1 << G, 0xf, list(range(4*G, min(4*G+4, nsteps)))) for G in range((nsteps + 3) // 4)]
    acc = lambda s_: ACC + 4*(rank[s_] % NACC)
    order = [x for x in range(nsteps) if not any(x == st_[-1] for _, _, st_ in rows)] + [st_[-1] for _, _, st_ in rows]
    if waits or not REORD: order = list(range(nsteps))
    rank = {x: i for i, x in enumerate(order)}
    ext = []
    for (rm, bm, st_) in rows:
        dp = f"quad_perm:[0,1,2,3] row_mask:{hex(rm)} bank_mask:{hex(bm)}"
        a = lambda s_: f"v{acc(s_) + s_ % 4}"
        ext.append((st_[1], f"v_add_f32_dpp v{vT}, {a(st_[0])}, {a(st_[1])} {dp}"))
        for s_ in st_[2:]:
            ext.append((s_, f"v_add_f32_dpp v{vT}, {a(s_)}, v{vT} {dp}"))
    order = [x for x in range(nsteps) if not any(x == st_[-1] for _, _, st_ in rows)] + [st_[-1] for _, _, st_ in rows]
    if waits or not REORD: order = list(range(nsteps))
    rank = {x: i for i, x in enumerate(order)}
    ext.sort(key=lambda e: rank[e[0]])
    st = dict(pos=0, lastT=-1)
    pm = {}
    def put(x, n=1):
        E(x); st["pos"] += n
    def need(e):
        if e[0] not in pm: return 99
        return max(pm[e[0]] + 9 - st["pos"], st["lastT"] + 3 - st["pos"], 0)
    fl = list(fillers)
    for s_ in order:
        while ext and rank[ext[0][0]] <= rank[s_] - NACC + 1 and rank[s_] >= NACC:
            n = need(ext[0])
            if n: put(f"s_nop {n-1}", n)
            st["lastT"] = st["pos"]; put(ext.pop(0)[1])
        if waits and s_ >= 8 or waits and s_ == 0: put(f"s_waitcnt lgkmcnt({min(15, 30-2*s_)})")
        pm[s_] = st["pos"]
        put(f"v_mfma_f32_16x16x32_bf16 {vr(acc(s_),4)}, {vr(A,4)}, {vr(W+4*s_,4)}, 0")
        idle = 0
        for _ in range(per):
            if ext and need(ext[0]) - idle <= 0:
                if idle: put(f"s_nop {idle-1}", idle); idle = 0
                st["lastT"] = st["pos"]; put(ext.pop(0)[1])
            elif fl:
                if idle: put(f"s_nop {idle-1}", idle); idle = 0
                put(fl.pop(0))
            elif PAD and s_ != order[-1]: idle += 1
        if idle: put(f"s_nop {idle-1}", idle)
    while ext or fl:
        if ext and need(ext[0]) == 0:
            st["lastT"] = st["pos"]; put(ext.pop(0)[1])
        elif fl:
            put(fl.pop(0))
        else:
            n = need(ext[0]); put(f"s_nop {n-1}", n)

def stats_fillers():
    f = []
    for d in range(4):
        f.append(f"v_lshlrev_b32 v{XR+2*d}, 16, v{XB+d}")
        f.append(f"v_and_b32 v{XR+2*d+1}, 0xffff0000, v{XB+d}")
        if d == 0: f.append(f"v_readfirstlane_b32 s{sPIV}, v{XR}")
    D = XN
    for i in range(4):
        f.append(f"v_pk_add_f32 {vr(D+2*i,2)}, {vr(XR+2*i,2)}, s[{sPIV}:{sPIV+1}] op_sel_hi:[1,0] neg_lo:[0,1] neg_hi:[0,1]")
    a, b = TT+1, TT+3
    assert a % 2 == 0
    f.append(f"v_pk_add_f32 {vr(a,2)}, {vr(D,2)}, {vr(D+2,2)}")
    f.append(f"v_pk_mul_f32 {vr(b,2)}, {vr(D,2)}, {vr(D,2)}")
    for i in range(1, 4):
        f.append(f"v_pk_fma_f32 {vr(b,2)}, {vr(D+2*i,2)}, {vr(D+2*i,2)}, {vr(b,2)}")
        if i > 1: f.append(f"v_pk_add_f32 {vr(a,2)}, {vr(a,2)}, {vr(D+2*i,2)}")
    f.append(f"v_add_f32 v{b}, v{b}, v{b+1}")
    f.append(f"v_add_f32 v{a}, v{a}, v{a+1}")
    f.append("s_nop 0")
    for dp in ("quad_perm:[1,0,3,2] row_mask:0xf", "quad_perm:[2,3,0,1] row_mask:0xf", "row_half_mirror row_mask:0xf",
               "row_mirror row_mask:0xf", "row_bcast:15 row_mask:0xa", "row_bcast:31 row_mask:0xc"):
        f.append(f"v_add_f32_dpp v{b}, v{b}, v{b} {dp} bank_mask:0xf")
        f.append(f"v_add_f32_dpp v{a}, v{a}, v{a} {dp} bank_mask:0xf")
        f.append("s_nop 0")
    f.append(f"v_readlane_b32 s{sS2}, v{b}, 63")
    f.append(f"v_readlane_b32 s{sS1}, v{a}, 63")
    f.append(f"v_fma_f32 v{TT+3}, s{sS2}, v{vINV}, v{vINV+1}" if False else "s_nop 0")
    f.append(f"v_fma_f32 v{TT+3}, s{sS2}, v{vINV}, v{vINV+1}")
    f.append(f"v_mul_f32 v{TT+2}, s{sS1}, v{vINV}")
    f.append(f"v_fma_f32 v{TT+3}, -v{TT+2}, v{TT+2}, v{TT+3}")
    f.append(f"v_max_f32 v{TT+3}, v{vINV+1}, v{TT+3}")
    f.append(f"v_rsq_f32 v{TT+3}, v{TT+3}")
    f.append(f"v_add_f32 v{TT+2}, s{sPIV}, v{TT+2}")
    return f

def xgroup_sum(fold8=False, plain=False):
    if fold8: E(f"v_and_b32 v{vT}, v{vVAL}, v{vT}")
    E(f"v_mov_b32 v{TT+5}, v{vT}")
    E("s_nop 1")
    E(f"v_permlane16_swap_b32 v{vT}, v{TT+5}")
    E(f"v_add_f32 v{vT}, v{vT}, v{TT+5}")
    E(f"v_mov_b32 v{TT+5}, v{vT}")
    E("s_nop 1")
    E(f"v_permlane32_swap_b32 v{vT}, v{TT+5}")
    E(f"v_add_f32 v{vT}, v{vT}, v{TT+5}")
    if fold8:
        E("s_nop 1")
        E(f"v_add_f32_dpp v{vT}, v{vT}, v{vT} row_ror:8 row_mask:0xf bank_mask:0xf")
    if plain: return
    E(f"v_fma_f32 v{vT}, -v{TT+2}, v{vCS}, v{vT}")
    E(f"v_mul_f32 v{vT}, v{vT}, v{TT+3}")

def y_publish():
    xgroup_sum(plain=True)
    E("s_nop 1")
    E(f"v_mov_b32_dpp v{TT+5}, v{vT} quad_perm:[1,1,3,3] row_mask:0xf bank_mask:0xf")
    E("s_mov_b64 exec, 0x5555")
    E(f"v_cvt_pk_bf16_f32 v{vT}, v{vT}, v{TT+5}")
    E(f"v_pk_min_u16 v{vT}, v{vT}, s{sFFFE}")
    E(f"buffer_store_dword v{vT}, v{aP16}, {WSR}, s{sPubG} offen{SFL}")
    E("s_mov_b64 exec, -1")

def pub_resid(off):
    for d in range(4): E(f"v_pk_min_u16 v{TT+7+d}, v{XB+d}, s{sFFFE}")
    pub2("buffer_store_dwordx4", vr(TT+7,4), vL16, sLOC, sMB_f, sMB_s, off)

def read_mode(lo_a, pj=0):
    E(f"v_mov_b32 v{TT}, {FL_LDS}")
    E(f"ds_read_b32 v{TT+1}, v{TT}")
    E("s_waitcnt lgkmcnt(0)")
    E(f"v_readfirstlane_b32 s{sMODE}, v{TT+1}")
    E(f"s_cmp_eq_u32 s{sPJ}, {pj}")
    E(f"s_cselect_b32 s{sT1}, -1, 0")
    E("s_nop 2")
    E(f"s_cmp_eq_u32 s{sMODE}, 1")
    masks(sMA_f, sMA_s, lo_a, "0")
    masks(sMB_f, sMB_s, f"s{sT1}", f"s{sT1}")
    E(f"s_cselect_b32 s{sT1}, 0, {ALT}")
    for s_ in (sLOC, sPoff, sPub):
        E(f"s_add_u32 s{s_}, s{s_}, s{sT1}")

sec("entry")
L("L_D_init")
ROLE[0] = "d"
E(f"s_and_b32 s{sC}, s{sJ}, 7")
E(f"s_lshl_b32 s{sPJ}, s{sC}, 2")
E(f"s_add_u32 s{sPJ}, s{sPJ}, s{sWV}")
E("v_lshrrev_b32 v242, 3, v1")
E("v_and_b32 v243, 7, v1")
def wo_issue():
    E(f"s_lshl_b32 s{sT0}, s{sG}, 19")
    E(f"s_lshl_b32 s{sT1}, s{sC}, 7")
    E(f"s_add_u32 s{sT0}, s{sT0}, s{sT1}")
    E(f"s_sub_u32 s{sT3}, {4194304}, s{sT0}")
    srd(R_A, sWO, f"s{sT0}", f"s{sT3}")
    E("v_and_b32 v245, 2, v242")
    E("v_xor_b32 v245, v245, v243")
    E(f"s_and_b32 s{sT1}, s{sWV}, 1")
    E(f"s_lshl_b32 s{sT1}, s{sT1}, 2")
    E(f"v_xor_b32 v245, s{sT1}, v245")
    E("v_lshlrev_b32 v244, 10, v242")
    E("v_lshl_add_u32 v244, v245, 4, v244")
    E(f"s_lshl_b32 s{sT0}, s{sWV}, 14")
    E(f"s_mov_b32 m0, s{sT0}")
    E(f"s_lshl_b32 s{sT1}, s{sWV}, 17")
    if LATE0 == 1: E("s_waitcnt vmcnt(0)")
    if LATE0 >= 2: E("s_barrier")
    E(f"s_add_u32 s{sT2}, s{sT1}, {16*8192}")
    L("L_D2_wol")
    E(f"buffer_load_dwordx4 v244, s[{R_A}:{R_A+3}], s{sT1} offen{NTW} lds")
    E("s_add_u32 m0, m0, 1024")
    E(f"s_add_u32 s{sT1}, s{sT1}, 8192")
    E(f"s_cmp_lt_u32 s{sT1}, s{sT2}")
    E("s_cbranch_scc1 L_D2_wol")
def clear_global():
    for r in range(4): E(f"v_mov_b32 v{cG+r}, -1")
    E(f"s_mov_b32 s{sT1}, {LS}")
    E(f"v_lshrrev_b32 v{cT}, 3, v2")
    E(f"v_mul_lo_u32 v{cT}, v{cT}, s{sT1}")
    E(f"v_lshl_add_u32 v{cT}, v243, 4, v{cT}")
    E(f"v_lshl_add_u32 v{cT}, v3, 13, v{cT}")
    E(f"s_lshl_b32 s{sT1}, s{sG}, 10")
    E(f"s_lshl_b32 s{sT2}, s{sC}, 7")
    E(f"s_add_u32 s{sT1}, s{sT1}, s{sT2}")
    E(f"s_add_u32 s{sT1}, s{sT1}, {W_Y}")
    E("s_mov_b32 exec_hi, 0")
    E(f"buffer_store_dwordx4 {vr(cG,4)}, v{cT}, {WSR}, s{sT1} offen sc1")
    E("s_mov_b64 exec, -1")

def d2_clear(sc, alt):
    for r in range(4): E(f"v_mov_b32 v{cG+r}, -1")
    E(f"s_lshl_b32 s{sT1}, s{sC}, 11")
    E(f"s_add_u32 s{sT1}, s{sT1}, s{sPoff}")
    if alt: E(f"s_add_u32 s{sT1}, s{sT1}, {ALT}")
    E(f"s_add_u32 s{sT2}, s{sT1}, {LS}")
    for so in (sT1, sT2):
        for o in range(2):
            E(f"buffer_store_dwordx4 {vr(cG,4)}, v{cL16}, {WSR}, s{so} offen offset:{1024*o}{sc}")
    E(f"s_mov_b32 s{sT1}, {LS}")
    E(f"v_lshrrev_b32 v{cT}, 5, v1")
    E(f"v_mul_lo_u32 v{cT}, v{cT}, s{sT1}")
    E(f"v_and_b32 v{cT+1}, 31, v1")
    E(f"v_lshl_add_u32 v{cT}, v{cT+1}, 4, v{cT}")
    E(f"s_lshl_b32 s{sT1}, s{sC}, 9")
    E(f"s_add_u32 s{sT1}, s{sT1}, s{sLOC}")
    if alt: E(f"s_add_u32 s{sT1}, s{sT1}, {ALT}")
    E(f"buffer_store_dwordx4 {vr(cG,4)}, v{cT}, {WSR}, s{sT1} offen{sc}")
E(f"s_cmp_lt_u32 s{sJ}, 24")
E("s_cbranch_scc1 L_D_const")
E(f"s_cmp_lg_u32 s{sWV}, 4")
E("s_cbranch_scc1 L_D2_e1")
d2_clear("", False)
E("s_branch L_D2_init")
L("L_D2_e1")
E(f"s_cmp_lg_u32 s{sWV}, 5")
E("s_cbranch_scc1 L_D2_e2")
clear_global()
E("s_branch L_D2_init")
L("L_D2_e2")
E(f"s_cmp_ge_u32 s{sWV}, 4")
E("s_cbranch_scc1 L_D2_init")
if LATE0 == 0: wo_issue()
else:
    E(f"s_lshl_b32 s{sT0}, s{sG}, 19")
    srd(R_A, sWO, f"s{sT0}", 1 << 19)
    E(f"buffer_load_dword v255, v{cL16}, s[{R_A}:{R_A+3}], 0 offen")
sec("dinit")
L("L_D_const")
E("v_mov_b32 v245, 0")
E("v_mov_b32 v244, 0")
srd(R_B, sX, None, 1024)
E(f"v_lshrrev_b32 v{TT}, 1, v3")
E(f"v_and_b32 v{TT+1}, 1, v3")
E(f"v_lshlrev_b32 v{aXIO}, 8, v{TT}")
E(f"v_lshl_add_u32 v{aXIO}, v2, 4, v{aXIO}")
E(f"v_lshl_add_u32 v{aXIO}, v{TT+1}, 3, v{aXIO}")
E(f"buffer_load_dwordx2 {vr(XB,2)}, v{aXIO}, s[{R_B}:{R_B+3}], 0 offen")
E(f"buffer_load_dwordx2 {vr(XB+2,2)}, v{aXIO}, s[{R_B}:{R_B+3}], 0 offen offset:512")
E(f"v_lshlrev_b32 v{vL16}, 4, v1")
E(f"v_lshrrev_b32 v{TT+2}, 2, v2")
E(f"v_and_b32 v{TT+3}, 3, v2")
E(f"v_lshl_add_u32 v{TT+4}, v{TT}, 7, v{TT+2}")
E(f"v_lshl_add_u32 v{TT+4}, v{TT+1}, 2, v{TT+4}")
E(f"v_lshlrev_b32 v{aP16}, 1, v2")
E(f"v_lshrrev_b32 v{aPY}, 5, v1")
E(f"v_lshlrev_b32 v{aPY}, 4, v{aPY}")
E(f"v_add_u32 v{aXS}, {XS_LDS}, v{vL16}")
E(f"v_mov_b32 v{vONE}, 1.0")
for d in range(4): E(f"v_mov_b32 v{ONESB+d}, 0x3f803f80")
E(f"v_and_b32 v{TT+5}, 1, v2")
E(f"v_lshlrev_b32 v{TT+5}, 4, v{TT+5}")
E(f"v_mov_b32 v{TT+6}, 0x3f80")
E(f"v_lshlrev_b32 v{TT+6}, v{TT+5}, v{TT+6}")
E(f"v_lshrrev_b32 v{TT+7}, 1, v2")
E(f"v_lshlrev_b32 v{aGX}, 10, v3")
E(f"v_lshl_add_u32 v{aGX}, v2, 4, v{aGX}")
for d in range(8):
    E(f"v_cmp_eq_u32 vcc, {d}, v{TT+7}")
    E("s_nop 1")
    E(f"v_cndmask_b32 v{SEL0+d}, 0, v{TT+6}, vcc")
E(f"s_mov_b32 s{sFFFE}, 0xfffefffe")
E(f"v_mov_b32 v{vINV}, {f32(1/512)}")
E(f"v_mov_b32 v{vINV+1}, {f32(1e-5)}")
E(f"s_mov_b32 s{sC3}, {f32(-math.log2(math.e))}")
E(f"s_lshl_b32 s{sT1}, s{sPJ}, 5")
E(f"s_lshl_b32 s{sPubG}, s{sG}, 10")
E(f"s_add_u32 s{sPubG}, s{sPubG}, s{sT1}")
E(f"s_lshl_b32 s{sT2}, s{sWV}, 5")
E(f"s_cmp_ge_u32 s{sJ}, 24")
E("s_cbranch_scc1 L_D2_comp")

def ctl_head():
    E("s_waitcnt vmcnt(0)")
    E(f"v_readfirstlane_b32 s{sTAG}, v241")
    for r in range(4): E(f"v_mov_b32 v{cG+r}, -1")
    E(f"s_add_u32 s{sTAG}, s{sTAG}, 1")
E(f"s_lshl_b32 s{sT0}, s{sG}, 10")
E(f"s_lshl_b32 s{sT1}, s{sC}, 7")
E(f"s_add_u32 s{sT0}, s{sT0}, s{sT1}")
E(f"s_sub_u32 s{sT3}, {4194304}, s{sT0}")
srd(R_A, sWQ, f"s{sT0}", f"s{sT3}")
E("v_and_b32 v245, 6, v242")
E("v_xor_b32 v245, v245, v243")
E("v_lshlrev_b32 v244, 13, v242")
E("v_lshl_add_u32 v244, v245, 4, v244")
E(f"s_cmp_ge_u32 s{sWV}, 4")
E("s_cbranch_scc1 L_D1_help")
if TQ: E("s_waitcnt vmcnt(0)")
stamp(1)
E(f"s_lshl_b32 s{sT0}, s{sWV}, 14")
E(f"s_mov_b32 m0, s{sT0}")
E(f"s_lshl_b32 s{sT1}, s{sWV}, 20")
E(f"s_add_u32 s{sT3}, s{sT1}, {16*65536}")
L("L_D1_wql")
E(f"buffer_load_dwordx4 v244, s[{R_A}:{R_A+3}], s{sT1} offen{NTW} lds")
E("s_add_u32 m0, m0, 1024")
E(f"s_add_u32 s{sT1}, s{sT1}, 65536")
E(f"s_cmp_lt_u32 s{sT1}, s{sT3}")
E("s_cbranch_scc1 L_D1_wql")
sec("d1")
E(f"v_bfe_u32 v{TT+5}, v{TT+4}, 1, 2")
E(f"v_xor_b32 v{TT+5}, s{sWV}, v{TT+5}")
E(f"v_lshlrev_b32 v{aTA}, 7, v{TT+4}")
E(f"v_lshl_add_u32 v{aTA}, v{TT+3}, 3, v{aTA}")
E(f"v_lshl_add_u32 v{aTA}, v{TT+5}, 5, v{aTA}")
if not TQ: E("s_waitcnt vmcnt(16)")
E(f"v_lshl_add_u32 v{aTB}, v3, 3, v{TT+2}")
E(f"v_lshlrev_b32 v{aTB}, 7, v{aTB}")
E(f"v_lshl_add_u32 v{aTB}, v{TT+3}, 3, v{aTB}")
E(f"s_add_u32 s{sT2}, s{sT2}, {WB_LDS}")
E(f"v_add_u32 v{aTB}, s{sT2}, v{aTB}")
E(f"v_min_u32 v{aIN}, 6, v2")
E(f"v_lshlrev_b32 v{aIN}, 6, v{aIN}")
E(f"v_lshl_add_u32 v{aIN}, v3, 4, v{aIN}")
E(f"v_readfirstlane_b32 s{sTAG}, v241")
E(f"s_add_u32 s{sPubG}, s{sPubG}, {W_Z}")
E(f"s_mov_b32 s{sZoff}, {W_Z}")
E(f"s_lshl_b32 s{sT1}, s{sPJ}, 5")
E(f"s_add_u32 s{sPub}, s{sLOC}, s{sT1}")
srd(R_B, sOUT, None, 1024)
E(f"s_add_u32 s{sTAG}, s{sTAG}, 1")
for x in stats_fillers(): E(x)
for i in range(8): E(f"v_sub_f32 v{XN+i}, v{XR+i}, v{TT+2}")
for i in range(8): E(f"v_mul_f32 v{XN+i}, v{XN+i}, v{TT+3}")
for d in range(4): E(f"v_cvt_pk_bf16_f32 v{GB+d}, v{XN+2*d}, v{XN+2*d+1}")
E(f"v_mov_b32 v{vT}, 0")
D0 = GB + 12
E(f"v_mov_b32 v{D0+1}, s{sTAG}")
E(f"s_lshl_b32 s{sT1}, s{sPJ}, 6")
E(f"v_lshl_add_u32 v{TT+6}, v2, 2, s{sT1}")
E("s_waitcnt vmcnt(0)")
E("s_barrier")
amp("wq")
stamp(2)
for s in range(16):
    for e in range(2):
        E(f"ds_read_b64_tr_b16 {vr(WA+4*s+2*e,2)}, v{aTA} offset:{32768*e+1024*s}")
matvec(16, GB, WA, [], per=PN, waits=True)
xgroup_sum(plain=True)
E("s_nop 1")
E(f"v_mov_b32_dpp v{TT+5}, v{vT} quad_perm:[1,1,3,3] row_mask:0xf bank_mask:0xf")
E(f"v_cvt_pk_bf16_f32 v{D0}, v{vT}, v{TT+5}")
E("s_mov_b64 exec, 0x5555")
E(f"buffer_store_dwordx2 {vr(D0,2)}, v{TT+6}, {WSR}, s{sQ0} offen")
E("s_mov_b64 exec, -1")
stamp(3, True)
E(f"v_mov_b32 v{TT+7}, 0")
E(f"buffer_load_dword v{GB+20}, v{TT+7}, s[{R_B}:{R_B+3}], 0 offen")
for s in range(16):
    c = "0" if s == 0 else vr(CA,4)
    E(f"v_mfma_f32_16x16x32_bf16 {vr(CA,4)}, {vr(ONESB,4)}, {vr(WA+4*s,4)}, {c}")
E("s_nop 7")
E(f"v_mov_b32 v{vCS}, v{CA}")
E("s_barrier")
amp("st")
read_mode("0xffff")
E(f"s_mov_b32 s{sT1}, 0x5555")
E(f"s_cmp_eq_u32 s{sMODE}, 1")
E(f"s_cselect_b32 exec_lo, 0, s{sT1}")
E("s_mov_b32 exec_hi, 0")
E(f"buffer_store_dwordx2 {vr(D0,2)}, v{TT+6}, {WSR}, s{sQ0B} offen sc1")
E("s_mov_b64 exec, -1")
E("s_barrier")
for s in range(7):
    for e in range(2):
        E(f"ds_read_b64_tr_b16 {vr(WB+4*s+2*e,2)}, v{aTB} offset:{4096*s+512*e}")
E("s_waitcnt lgkmcnt(0)")
E("s_branch L_D1_act")
L("L_D1_q")
mark("d1")
matvec(16, XB, WA, stats_fillers())
xgroup_sum()
E(f"v_cvt_pk_bf16_f32 v{vT}, v{vT}, v{vT}")
E(f"v_min_u32 v{vT}, -2, v{vT}")
pub2("buffer_store_short", f"v{vT}", aP16, sPub, sMA_f, sMA_s, W_Q)
stamp(3, True)
pub_resid(W_X2)
L("L_D1_act")
mark("d1")
AIN = vST
arm(AIN, 4)
E(f"buffer_load_dwordx4 {vr(CA,4)}, v{vL16}, {WSR}, s{sLOC} offen offset:{W_X1} sc1")
E(f"v_mov_b32 v{vT}, 0")
gather1("ga", AIN, aIN, sLOC, W_ACT, TT)
amp("act")
stamp(4, True)
E(f"buffer_load_dwordx4 {vr(CA,4)}, v{vL16}, {WSR}, s{sLOC} offen offset:{W_X1} sc1")
matvec(7, AIN, WB, [], per=PN)
y_publish()
stamp(5, True)
E(f"s_add_u32 s{sLAY}, s{sLAY}, 1")
E(f"s_cmp_lt_u32 s{sLAY}, 2")
E("s_cbranch_scc1 L_D1_z")
E(f"s_cmp_lg_u32 s2, 128")
E("s_cbranch_scc1 L_D1_end")
E(f"s_cmp_lg_u32 s{sWV}, 0")
E("s_cbranch_scc1 L_D1_end")
L("L_D1_z")
mark("d1")
def pre_z():
    E("s_waitcnt vmcnt(1)")
    chk_bf16(CA, TT)
    E("s_cbranch_vccz L_gx1_have")
    gather1("gx1", CA, vL16, sLOC, W_X1, TT, pd=1, slp=0)
    L("L_gx1_have")
    unpack_resid(CA)
def relay_z():
    E(f"v_mov_b32 v{vT}, 0")
    E(f"s_cmp_lg_u32 s{sWV}, 0")
    E(f"s_cbranch_scc1 L_gz_other")
    pre_z()
    gather_X("gz", sZoff, "d1")
    E(f"s_cmp_eq_u32 s{sLAY}, 2")
    E("s_cbranch_scc1 L_D1_out")
    E(f"ds_write_b128 v{aXS}, {vr(XB,4)}")
    E("s_waitcnt lgkmcnt(0)")
    E("s_barrier")
    E(f"s_branch L_gz_join")
    L(f"L_gz_other")
    E("s_waitcnt vmcnt(0)")
    E("s_barrier")
    E(f"ds_read_b128 {vr(XB,4)}, v{aXS}")
    E("s_waitcnt lgkmcnt(0)")
    L("L_gz_join")
relay_z()
stamp(6)
for s_ in (sLOC, sPub, sPubG, sZoff):
    E(f"s_add_u32 s{s_}, s{s_}, {LS}")
E("s_branch L_D1_q")
L("L_D1_out")
E(f"buffer_store_dwordx2 {vr(XB,2)}, v{aXIO}, s[{R_B}:{R_B+3}], 0 offen")
E(f"buffer_store_dwordx2 {vr(XB+2,2)}, v{aXIO}, s[{R_B}:{R_B+3}], 0 offen offset:512")
E(f"v_mov_b32 v{TT}, s{sTAG}")
E(f"v_mov_b32 v{TT+1}, {W_EP}")
E("s_mov_b64 exec, 1")
E(f"buffer_store_dword v{TT}, v{TT+1}, {WSR}, 0 offen")
if AMP:
    E("s_memrealtime s[88:89]")
    E("s_waitcnt lgkmcnt(0)")
    if AMP == "end": E("s_mov_b32 s94, s88")
    E("s_sub_u32 s94, s94, s86")
    if AMP.startswith("x"):
        E(f"v_mov_b32 v253, {W_EP + 64}")
        E(f"buffer_load_dword v252, v253, {WSR}, 0 offen sc1")
        E("s_waitcnt vmcnt(0)")
        E("v_readfirstlane_b32 s94, v252")
        E("s_nop 3")
        E("s_sub_u32 s94, s94, s86")
        E("s_add_u32 s94, s94, 100")
        E("s_max_i32 s94, s94, 0")
    E("s_lshl_b32 s94, s94, 2")
    E("s_min_u32 s94, s94, 20000")
    E("s_add_u32 s94, s94, s88")
    L("L_amp_spin")
    E("s_memrealtime s[88:89]")
    E("s_waitcnt lgkmcnt(0)")
    E("s_sub_u32 s89, s94, s88")
    E("s_cmp_gt_i32 s89, 0")
    E("s_cbranch_scc1 L_amp_spin")
if PROF:
    stamp(7)
    E("s_waitcnt vmcnt(0)")
    stamp(8)
L("L_D1_end")
stamp_flush(0, 0, (128, 4, [60, 2, 3, 4, 6, 20, 8]))
E("s_endpgm")
sec("help")
L("L_D1_help")
E(f"s_mul_i32 s{sT0}, s{sG}, {224*1024}")
E(f"s_lshl_b32 s{sT1}, s{sC}, 7")
E(f"s_add_u32 s{sT0}, s{sT0}, s{sT1}")
srd(R_B, sW2, f"s{sT0}", 224*1024 - 896)
E("v_lshlrev_b32 v244, 10, v242")
E("v_lshl_add_u32 v244, v243, 4, v244")
E(f"s_cmp_eq_u32 s{sWV}, 4")
E("s_cbranch_scc1 L_D1_ctl")
if not W2P: E(f"buffer_load_dword v255, v244, s[{R_B}:{R_B+3}], 0 offen")
for u in range(3):
    E(f"s_cmp_lg_u32 s{sWV}, {5+u}")
    E(f"s_cbranch_scc1 L_D1_wm{u}")
    warm("d1", u, 3)
    L(f"L_D1_wm{u}")
E("s_branch L_D1_bq")
L("L_D1_ctl")
E(f"v_lshlrev_b32 v{cT}, 7, v2")
E(f"buffer_load_dword v240, v{cT}, {WSR}, s{sQ0} offen sc1")
ctl_head()
xc_publish()
L("L_D1_bq")
E("s_barrier")
E(f"s_cmp_lg_u32 s{sWV}, 4")
E("s_cbranch_scc1 L_D1_w2")
first_gather("d1x", False, None)
stamp(3)
E(f"v_lshlrev_b32 v{cT}, 3, v1")
E(f"s_cmp_eq_u32 s{sMODE}, 1")
E("s_cbranch_scc0 L_D1_b2")
L("L_D1_st")
E(f"buffer_load_dword v{cT+1}, v{cT}, {WSR}, s{sLOC} offen offset:{W_ST} sc1")
E("s_waitcnt vmcnt(0)")
E(f"v_cmp_ne_u32 vcc, -1, v{cT+1}")
E("s_cbranch_vccnz L_D1_b2")
E("s_sleep 8")
spin_check("L_D1_st")
L("L_D1_b2")
E("s_waitcnt lgkmcnt(0)")
L("L_D1_w2")
E("s_barrier")
E(f"s_sub_u32 s{sT0}, s{sWV}, 4")
E(f"s_mul_i32 s{sT1}, s{sT0}, 7168")
E(f"s_add_u32 m0, s{sT1}, {WB_LDS}")
E(f"s_mul_i32 s{sT1}, s{sT0}, {56*1024}")
for i in range(7):
    E(f"buffer_load_dwordx4 v244, s[{R_B}:{R_B+3}], s{sT1} offen{NTW} lds")
    if i < 6:
        E("s_add_u32 m0, m0, 1024")
        E(f"s_add_u32 s{sT1}, s{sT1}, 8192")
E("s_waitcnt vmcnt(0) lgkmcnt(0)")
stamp(4)
E("s_barrier")
stamp_flush(4, 1)
E("s_endpgm")

L("L_D2_init")
E(f"s_min_u32 s{sT1}, s{sC}, 6")
E(f"s_lshl_b32 s{sT1}, s{sT1}, 6")
E(f"s_mul_i32 s{sT0}, s{sG}, 448")
E(f"s_add_u32 s{sS1}, s{sT0}, s{sT1}")
E(f"s_sub_u32 s{sT3}, {1835008}, s{sS1}")
srd(R_B, sW1, f"s{sS1}", f"s{sT3}")
srd(R_C, sDBG, None, 256)
E(f"s_cmp_eq_u32 s{sWV}, 4")
E("s_cbranch_scc1 L_D2_ctl")
E(f"s_cmp_eq_u32 s{sWV}, 5")
E("s_cbranch_scc1 L_D2_flag")
E("v_lshrrev_b32 v245, 2, v1")
E("v_mul_u32_u24 v245, 3584, v245")
E("v_and_b32 v246, 3, v1")
E("v_and_b32 v247, 1, v3")
E("v_xor_b32 v246, v246, v247")
E("v_lshl_add_u32 v244, v246, 4, v245")
E("v_xor_b32 v246, 2, v246")
E("v_lshl_add_u32 v245, v246, 4, v245")
E(f"s_sub_u32 s{sT0}, s{sWV}, 6")
E(f"s_lshl_b32 s{sT1}, s{sT0}, 14")
E(f"s_add_u32 m0, s{sT1}, {WB_LDS}")
E(f"s_mul_i32 s{sT1}, s{sT0}, {256*3584}")
if W1L == 2:
    E(f"buffer_load_dword v255, v244, s[{R_B}:{R_B+3}], s{sT1} offen")
    E(f"s_add_u32 s{sT2}, s{sT1}, {240*3584}")
    E(f"buffer_load_dword v255, v244, s[{R_B}:{R_B+3}], s{sT2} offen")
for u in range(2):
    E(f"s_cmp_lg_u32 s{sWV}, {6+u}")
    E(f"s_cbranch_scc1 L_D2_wm{u}")
    warm("d2", u, 2)
    L(f"L_D2_wm{u}")
if LATE0 >= 2 or W1L == 1: E("s_barrier")
if W1L == 2:
    E("s_barrier")
    E(f"v_mov_b32 v{cT}, {FL_LDS}")
    E(f"ds_read_b32 v{cT+1}, v{cT}")
    E(f"v_lshlrev_b32 v{cT}, 3, v1")
    E("s_waitcnt lgkmcnt(0)")
    E(f"v_cmp_ne_u32 vcc, 1, v{cT+1}")
    E("s_cbranch_vccnz L_D2_w1go")
    L("L_D2_w1st")
    E(f"buffer_load_dword v{cT+1}, v{cT}, {WSR}, s{sLOC} offen offset:{W_ST} sc1")
    E("s_waitcnt vmcnt(0)")
    E(f"v_cmp_ne_u32 vcc, -1, v{cT+1}")
    if W1N > 1:
        E(f"s_bcnt1_i32_b64 s{sT2}, vcc")
        E(f"s_cmp_ge_u32 s{sT2}, {4*W1N}")
        E("s_cbranch_scc1 L_D2_w1go")
    else: E("s_cbranch_vccnz L_D2_w1go")
    E("s_sleep 2")
    spin_check("L_D2_w1st")
    L("L_D2_w1go")
for i in range(16):
    E(f"buffer_load_dwordx4 v{244 + (i//4) % 2}, s[{R_B}:{R_B+3}], s{sT1} offen{NTW} lds")
    if i < 15:
        E("s_add_u32 m0, m0, 1024")
        E(f"s_add_u32 s{sT1}, s{sT1}, {16*3584}")
E("s_waitcnt vmcnt(0)")
stamp(4)
E("s_barrier")
stamp_flush(6, 2)
E("s_endpgm")
L("L_D2_flag")
E(f"s_lshl_b32 s{sT1}, s{sG}, 5")
E(f"s_lshl_b32 s{sT2}, s{sC}, 2")
E(f"s_add_u32 s{sT1}, s{sT1}, s{sT2}")
E(f"v_mov_b32 v{cT}, 1")
E(f"v_mov_b32 v{cT+1}, s{sT1}")
E(f"v_lshlrev_b32 v{cT+2}, 2, v1")
E("s_waitcnt vmcnt(0)")
E("s_mov_b64 exec, 1")
E(f"buffer_store_dword v{cT}, v{cT+1}, s[{R_C}:{R_C+3}], 0 offen sc1")
E("s_mov_b64 exec, -1")
if LATE0 >= 2 or W1L == 1: E("s_barrier")
E("s_waitcnt vmcnt(0)")
L("L_D2_fpoll")
E(f"buffer_load_dword v{cT+3}, v{cT+2}, s[{R_C}:{R_C+3}], 0 offen sc1")
E("s_waitcnt vmcnt(0)")
E(f"v_cmp_ne_u32 vcc, 1, v{cT+3}")
E("s_cbranch_vccz L_D2_fok")
E("s_sleep 8")
spin_check("L_D2_fpoll")
L("L_D2_fok")
E("s_barrier")
E("s_endpgm")
L("L_D2_ctl")
ctl_head()
stamp(1)
xc_publish()
first_gather("d2x", False, lambda: d2_clear(" sc1", True))
stamp(2)
if LATE0 == 3:
    E(f"v_lshlrev_b32 v{cT}, {'3' if STW else '2'}, v1")
    E(f"s_cmp_eq_u32 s{sMODE}, 1")
    E("s_cbranch_scc0 L_D2_go")
    L("L_D2_st")
    if STW:
        E(f"buffer_load_dword v{cT+1}, v{cT}, {WSR}, s{sLOC} offen offset:{W_ST} sc1")
        E("s_waitcnt vmcnt(0)")
        E(f"v_cmp_ne_u32 vcc, -1, v{cT+1}")
    E("s_cbranch_vccnz L_D2_go")
    E("s_sleep 2")
    spin_check("L_D2_st")
    L("L_D2_go")
    stamp(3)
E("s_waitcnt lgkmcnt(0)")
if LATE0 >= 2 or W1L == 1: E("s_barrier")
E("s_barrier")
stamp_flush(4, 1)
E("s_endpgm")
sec("d2")
L("L_D2_comp")
E(f"s_min_u32 s{sT1}, s{sC}, 6")
E(f"s_lshl_b32 s{sT1}, s{sT1}, 6")
E(f"s_mul_i32 s{sT0}, s{sG}, 448")
E(f"s_add_u32 s{sS1}, s{sT0}, s{sT1}")
if LATE0: wo_issue()
if W1L == 1 and LATE0 < 2: E("s_barrier")
srd(R_C, sB1, None, 3584)
E(f"v_and_b32 v{TT+5}, 7, v2")
E(f"v_lshlrev_b32 v{TT+5}, 1, v{TT+5}")
E(f"s_lshl_b32 s{sT1}, s{sWV}, 4")
E(f"s_add_u32 s{sT0}, s{sS1}, s{sT1}")
E(f"buffer_load_ushort v{vB1}, v{TT+5}, s[{R_C}:{R_C+3}], s{sT0} offen")
E(f"v_lshrrev_b32 v{TT+5}, 1, v{TT+2}")
E(f"v_lshl_add_u32 v{TT+5}, v{TT+1}, 1, v{TT+5}")
E(f"v_xor_b32 v{TT+5}, s{sWV}, v{TT+5}")
E(f"v_lshl_add_u32 v{aTA}, v3, 7, v{TT+2}")
E(f"v_lshlrev_b32 v{aTA}, 7, v{aTA}")
E(f"v_lshl_add_u32 v{aTA}, v{TT+3}, 3, v{aTA}")
E(f"v_lshl_add_u32 v{aTA}, v{TT+5}, 5, v{aTA}")
E(f"v_bfe_u32 v{TT+5}, v2, 1, 1")
E(f"v_lshl_add_u32 v{TT+6}, v{TT+5}, 6, v{TT+4}")
E(f"v_lshl_add_u32 v{TT+5}, v{TT+5}, 1, v{TT+1}")
E(f"v_xor_b32 v{TT+5}, s{sWV}, v{TT+5}")
E(f"v_lshlrev_b32 v{aTB}, 6, v{TT+6}")
E(f"v_lshl_add_u32 v{aTB}, v{TT+5}, 4, v{aTB}")
E(f"v_and_b32 v{TT+5}, 1, v2")
E(f"v_lshl_add_u32 v{aTB}, v{TT+5}, 3, v{aTB}")
E(f"v_add_u32 v{aTB}, {WB_LDS}, v{aTB}")
E(f"s_lshl_b32 s{sT1}, s{sWV}, 7")
E(f"v_lshlrev_b32 v{aST}, 5, v3")
E(f"v_add_u32 v{aST}, s{sT1}, v{aST}")
E(f"v_lshlrev_b32 v{aOS}, 4, v2")
E(f"v_lshl_add_u32 v{aOS}, v{TT+1}, 3, v{aOS}")
E(f"v_lshl_add_u32 v{aOS}, v{TT}, 2, v{aOS}")
E(f"s_lshl_b32 s{sT1}, s{sWV}, 8")
E(f"s_add_u32 s{sT1}, s{sT1}, {OS_LDS}")
E(f"v_add_u32 v{aOS}, s{sT1}, v{aOS}")
E(f"v_add_u32 v{aIN}, {OS_LDS}, v{vL16}")
E(f"v_lshlrev_b32 v{TT+5}, 4, v{TT+5}")
E(f"v_mov_b32 v{TT+6}, 0xffff")
E(f"v_lshlrev_b32 v{TT+6}, v{TT+5}, v{TT+6}")
E(f"v_bfe_u32 v{TT+7}, v2, 1, 2")
for d in range(4):
    E(f"v_cmp_eq_u32 vcc, {d}, v{TT+7}")
    E("s_nop 1")
    E(f"v_cndmask_b32 v{MK+d}, 0, v{TT+6}, vcc")
E(f"v_lshrrev_b32 v{vFLG}, 3, v2")
E(f"v_cmp_eq_u32 vcc, v{vFLG}, v{TT}")
E(f"v_cvt_f32_u32 v{vFLG}, v{vFLG}")
E("s_nop 0")
E(f"v_cndmask_b32 v{vVAL}, 0, -1, vcc")
E(f"s_lshl_b32 s{sT1}, s{sWV}, 12")
E(f"s_add_u32 s{sPoff}, s{sPoff}, s{sT1}")
E(f"s_lshl_b32 s{sT1}, s{sPJ}, 4")
E(f"s_add_u32 s{sPub}, s{sLOC}, s{sT1}")
E(f"s_add_u32 s{sPubG}, s{sPubG}, {W_Y}")
E(f"s_mov_b32 s{sYoff}, {W_Y}")
E(f"s_mov_b32 s{sC2}, 0")
E("s_waitcnt vmcnt(0)")
unpack_resid(XB)
E(f"v_lshlrev_b32 v{vB1}, 16, v{vB1}")
stamp(1)
E("s_barrier")
stamp(2)
ampx("xw", 0)
for s in range(16):
    for e in range(2):
        E(f"ds_read_b64_tr_b16 {vr(WA+4*s+2*e,2)}, v{aTA} offset:{1024*s+512*e}")
def w1_frags():
    for s in range(8):
        for e in range(2):
            E(f"ds_read_b64_tr_b16 {vr(WB+4*s+2*e,2)}, v{aTB} offset:{16384*e+512*s}")
def w1_sums():
    for s in range(8):
        c = "0" if s == 0 else vr(ACC,4)
        E(f"v_mfma_f32_16x16x32_bf16 {vr(ACC,4)}, {vr(ONESB,4)}, {vr(WB+4*s,4)}, {c}")
    E("s_nop 7")
    E(f"v_add_f32_dpp v{vCS}, v{ACC}, v{ACC} row_ror:8 row_mask:0xf bank_mask:0xf")
if W1L != 2: w1_frags()
read_mode("0xff", 28)
if W1L != 2: w1_sums()
L("L_D2_loop")
mark("d2")
def p_loads():
    for i in range(4):
        E(f"buffer_load_dwordx4 {vr(GB+4*i,4)}, v{vL16}, {WSR}, s{sPoff} offen offset:{1024*i} sc1")
arm(vST, 8)
p_loads()
L("L_gs_poll")
E(f"buffer_load_dwordx4 {vr(vST,4)}, v{aST}, {WSR}, s{sLOC} offen offset:{W_ST} sc1")
E(f"buffer_load_dwordx4 {vr(vST+4,4)}, v{aST}, {WSR}, s{sLOC} offen offset:{W_ST+16} sc1")
E(f"s_waitcnt vmcnt({2*(PD-1)})")
E(f"v_max3_u32 v{TT}, v{vST}, v{vST+1}, v{vST+2}")
E(f"v_max3_u32 v{TT+1}, v{vST+3}, v{vST+4}, v{vST+5}")
E(f"v_max3_u32 v{TT}, v{TT}, v{vST+6}, v{vST+7}")
E(f"v_max_u32 v{TT}, v{TT}, v{TT+1}")
E(f"v_cmp_eq_u32 vcc, -1, v{TT}")
E("s_cbranch_vccz L_gs_ok")
if SLP: E(f"s_sleep {SLP}")
spin_check("L_gs_poll")
L("L_gs_ok")
p_loads()
stamp(3, True)
vM, vU, vLs = TT, TT+1, TT+2
WT = TT + 3
AW = GB + 16
E(f"v_max3_f32 v{vM}, v{vST}, v{vST+2}, v{vST+4}")
E(f"v_max_f32 v{vM}, v{vM}, v{vST+6}")
for sw in ("16", "32"):
    E(f"v_mov_b32 v{vU}, v{vM}")
    E("s_nop 1")
    E(f"v_permlane{sw}_swap_b32 v{vM}, v{vU}")
    E(f"v_max_f32 v{vM}, v{vM}, v{vU}")
for t in range(4): E(f"v_sub_f32 v{WT+t}, v{vST+2*t}, v{vM}")
for t in range(4): E(f"v_exp_f32 v{WT+t}, v{WT+t}")
E("s_nop 0")
E(f"v_mul_f32 v{vLs}, v{WT}, v{vST+1}")
for t in range(1, 4): E(f"v_fmac_f32 v{vLs}, v{WT+t}, v{vST+2*t+1}")
for sw in ("16", "32"):
    E(f"v_mov_b32 v{vU}, v{vLs}")
    E("s_nop 1")
    E(f"v_permlane{sw}_swap_b32 v{vLs}, v{vU}")
    E(f"v_add_f32 v{vLs}, v{vLs}, v{vU}")
E(f"v_rcp_f32 v{vLs}, v{vLs}")
p_loads()
for t in range(4): E(f"v_mul_f32 v{WT+t}, v{WT+t}, v{vLs}")
for t in range(4): E(f"v_cvt_pk_bf16_f32 v{WT+4+t}, v{WT+t}, v{WT+t}")
for t in range(4): E(f"v_and_b32 v{WT+4+t}, 0xffff0000, v{WT+4+t}")
for t in range(4): E(f"v_fma_f32 v{WT+t}, -v{WT+4+t}, v{vFLG}, v{WT+t}")
for t in range(4): E(f"v_cvt_pk_bf16_f32 v{WT+t}, v{WT+t}, v{WT+t}")
for t in range(4):
    for d in range(4): E(f"v_and_b32 v{AW+4*t+d}, v{MK+d}, v{WT+t}")
E("s_branch L_gp_use")
L("L_gp_nan")
E(f"s_sub_u32 s{sSPIN}, s{sSPIN}, 1")
E("s_cbranch_scc1 L_exit")
E(f"s_and_b32 s{sT1}, s{sSPIN}, 15")
E("s_cbranch_scc0 L_gp_retry")
L("L_gp_again")
p_loads()
L("L_gp_use")
E("s_waitcnt vmcnt(4)")
for t in range(4):
    E(f"v_mfma_f32_16x16x32_bf16 {vr(CA,4)}, {vr(AW+4*t,4)}, {vr(GB+4*t,4)}, {'0' if t == 0 else vr(CA,4)}")
E("s_nop 7")
E(f"v_cmp_u_f32 vcc, v{CA}, v{CA}")
E(f"v_permlane32_swap_b32 v{CA}, v{CA+2}")
E(f"v_permlane32_swap_b32 v{CA+1}, v{CA+3}")
E("s_cbranch_vccnz L_gp_nan")
L("L_gp_ok")
E(f"v_add_f32 v{CA}, v{CA}, v{CA+2}")
E(f"v_add_f32 v{CA+1}, v{CA+1}, v{CA+3}")
E(f"v_cvt_pk_bf16_f32 v{CA}, v{CA}, v{CA+1}")
E(f"ds_write_b32 v{aOS}, v{CA}")
E(f"v_mov_b32 v{vT}, 0")
stamp(4, True)
mark("d2")
E("s_waitcnt lgkmcnt(0)")
E("s_barrier")
E(f"ds_read_b128 {vr(XB,4)}, v{aIN}")
E(f"buffer_load_dwordx4 {vr(CA,4)}, v{vL16}, {WSR}, s{sLOC} offen offset:{W_X2} sc1")
E("s_waitcnt lgkmcnt(0)")
matvec(16, XB, WA, [], per=PN)
y_publish()
stamp(5, True)
ampx("xy", 0)
if W1L == 2:
    E(f"s_cmp_lg_u32 s{sLAY}, 0")
    E("s_cbranch_scc1 L_D2_havew1")
    w1_frags()
    E("s_waitcnt lgkmcnt(0)")
    w1_sums()
    L("L_D2_havew1")
def pre_y():
    E(f"s_cmp_eq_u32 s{sLAY}, 0")
    E("s_cbranch_scc1 L_D2_havex")
    E("s_waitcnt vmcnt(1)")
    chk_bf16(CA, TT)
    E("s_cbranch_vccz L_gx2_have")
    gather1("gx2", CA, vL16, sLOC, W_X2, TT, pd=1, slp=0)
    L("L_gx2_have")
    unpack_resid(CA)
    L("L_D2_havex")
relay_X("gy", sYoff, pre_y)
stamp(6, True)
ampx("xz", 0)
E(f"s_cmp_eq_u32 s{sC}, 7")
E("s_cbranch_scc1 L_D2_x1")
matvec(8, XB, WB, stats_fillers(), rows=[(0x5, 0xf, [0,1,2,3]), (0xa, 0xf, [4,5,6,7])], per=PER+2)
mark("d2")
xgroup_sum(True)
h, u, a, b = vT, TT+5, TT+6, TT+7
E(f"v_add_f32 v{h}, v{h}, v{vB1}")
E(f"v_mul_f32 v{u}, s{sC3}, |v{h}|")
E(f"v_exp_f32 v{u}, v{u}")
E(f"v_cmp_le_f32 vcc, 0, v{h}")
E(f"v_add_f32 v{b}, 2.0, v{u}")
E(f"v_fma_f32 v{a}, v{u}, 2.0, 1.0")
E(f"v_mul_f32 v{b}, v{u}, v{b}")
E(f"v_mul_f32 v{u}, v{u}, v{u}")
E(f"v_cndmask_b32 v{a}, v{b}, v{a}, vcc")
E(f"v_cndmask_b32 v{u}, 1.0, v{u}, vcc")
E(f"v_fma_f32 v{b}, v{u}, 2.0, v{a}")
E(f"v_rcp_f32 v{b}, v{b}")
E(f"v_mul_f32 v{h}, v{h}, v{a}")
E(f"v_mul_f32 v{h}, v{h}, v{b}")
E(f"v_cvt_pk_bf16_f32 v{h}, v{h}, v{h}")
E(f"v_min_u32 v{h}, -2, v{h}")
pub2("buffer_store_short", f"v{h}", aP16, sPub, sMA_f, sMA_s, W_ACT)
stamp(7, True)
L("L_D2_next")
for s_ in (sLOC, sPoff, sPub, sPubG, sYoff):
    E(f"s_add_u32 s{s_}, s{s_}, {LS}")
E(f"s_add_u32 s{sLAY}, s{sLAY}, 1")
E(f"s_cmp_lt_u32 s{sLAY}, 2")
E("s_cbranch_scc1 L_D2_loop")
stamp_flush(0, 0)
E("s_endpgm")
L("L_D2_x1")
pub_resid(W_X1)
unpack_resid(XB)
E("s_branch L_D2_next")
sec("cold")
L("L_exit")
E("s_endpgm")
L("L_gp_retry")
for i in range(0, 16, 2): E(f"v_pk_max_u16 v{ACC+i//2}, v{GB+i}, v{GB+i+1}")
for i in range(0, 8, 2): E(f"v_pk_max_u16 v{ACC+i//2}, v{ACC+i}, v{ACC+i+1}")
chk_bf16(ACC, TT)
E("s_cbranch_vccnz L_gp_again")
for t in range(4):
    E(f"v_mfma_f32_16x16x32_bf16 {vr(CA,4)}, {vr(AW+4*t,4)}, {vr(GB+4*t,4)}, {'0' if t == 0 else vr(CA,4)}")
E("s_nop 9")
E(f"v_permlane32_swap_b32 v{CA}, v{CA+2}")
E(f"v_permlane32_swap_b32 v{CA+1}, v{CA+3}")
E("s_branch L_gp_ok")
for b_ in retry_blocks: b_()
L("L_code_end")

out = [open("cdna_kernels/" + NAME + ".s.ref").read().split("; Override")[0].rstrip("\n"),
       f"; @launch grid=(256,1,1) block=(512,1,1) lds={LDS_BYTES}", '.amdgcn_target "amdgcn-amd-amdhsa--gfx950"', ".text",
       f".globl {NAME}_kernel", ".p2align 8", f".type {NAME}_kernel,@function"]
for k in ORDER:
    for x in secs[k]:
        if isinstance(x, tuple) and x[0] == "MARK":
            _, role, i = x
            n = wstep[role]
            out.append("    s_cbranch_execz " + (marks[role][i + n] if i + n < len(marks[role]) else f"L_wd_{role}{i % n}"))
        elif isinstance(x, tuple):
            _, role, first, step = x
            assert first < len(marks[role])
            out += ["    s_mov_b64 exec, 0", f"    s_branch {marks[role][first]}", f"L_wd_{role}{first}:", "    s_mov_b64 exec, -1"]
        else: out.append(x)
out.append('.section .rodata,"a"')
out.append(".p2align 6")
out.append(f".amdhsa_kernel {NAME}_kernel")
out.append("  .amdhsa_next_free_vgpr 256")
out.append("  .amdhsa_next_free_sgpr 96")
out.append("  .amdhsa_accum_offset 256")
out.append("  .amdhsa_group_segment_fixed_size 0")
out.append("  .amdhsa_kernarg_size 96")
out.append("  .amdhsa_user_sgpr_count 2")
out.append("  .amdhsa_user_sgpr_kernarg_segment_ptr 1")
out.append("  .amdhsa_system_sgpr_workgroup_id_x 1")
out.append("  .amdhsa_float_denorm_mode_32 3")
out.append(".end_amdhsa_kernel")
open(sys.argv[1], "w").write("\n".join(out) + "\n")
```

```python
import sys, math, struct
PROF = int(sys.argv[2]) if len(sys.argv) > 2 else 0
OPT = dict(a.split("=") for a in sys.argv[3:])
THR = int(OPT.get("thr", 6))
ACK = int(OPT.get("ack", 1))
PER = int(OPT.get("per", 3))
PD = int(OPT.get("pd", 4))
SLP = int(OPT.get("slp", 0))
LATE0 = int(OPT.get("late0", 1))
GP = int(OPT.get("gp", 1))
GSL = int(OPT.get("gsl", 0))
THV = int(OPT.get("thv", 10))
GD = int(OPT.get("gd", 0))
fl = lambda k, d: {"0": "", "1": " nt", "2": " sc1", "3": " sc0 sc1", "4": " sc1 nt"}[OPT.get(k, d)]
NTQ, NTW, NTK, NTV = fl("ntq", "0"), fl("ntw", "0"), fl("ntk", "1"), fl("ntv", "0")
TQ = int(OPT.get("tq", 1))
MARKGAP = int(OPT.get("gap", 768))
CPF = int(OPT.get("cpf", 1))
W1L = int(OPT.get("w1l", 1))
STW = 1
REORD = int(OPT.get("reord", 0))
PAD = int(OPT.get("pad", 1))
PN = int(OPT.get("pn", 4))
W2P = int(OPT.get("w2p", 0))
W1N = int(OPT.get("w1n", 1))
FSL = int(OPT.get("fsl", 3))
WARM = int(OPT.get("warm", 0))
NTT = fl("ntt", "0")
GFL = fl("gfl", "2")
SFL = {"2": " sc1", "3": " sc0 sc1", "4": " sc1 nt"}[OPT.get("sfl", "2")]
NAME = "interleave_layers__sliding_block_cached__dense_activation_mish__decode"
import re
ORDER = ["entry", "dinit", "d1", "actl", "a", "d2", "help", "cold"]
secs = {k: [] for k in ORDER}
cur = ["entry"]
since = {k: 0 for k in ORDER}
unsafe = [False]
marks = {k: [] for k in ORDER}
WARMED = ("d1", "a", "d2")
BIG = ("v_mfma", "v_pk_", "v_fma_", "v_max3", "v_or3", "v_add3", "v_lshl_add", "v_bfe", "v_mul_lo", "v_cvt_pk", "v_readlane", "v_writelane",
       "ds_", "buffer_", "global_", "s_load", "s_memrealtime")
def isize(t):
    if t.startswith(BIG) or "_dpp" in t or "|v" in t or (t.startswith(("v_cmp", "v_cndmask")) and "s[" in t): return 8
    ops = t.split(None, 1)[1] if " " in t else ""
    if t.startswith(("s_waitcnt", "s_nop", "s_sleep", "s_branch", "s_cbranch", "s_call", "s_getreg", "s_setprio")): return 4
    for tok in re.split(r"[,\s]+", ops):
        if re.fullmatch(r"0x[0-9a-f]+|\d+", tok) and int(tok, 0) > 64: return 8
    return 4
def sec(name): cur[0] = name
def put_mark():
    k = cur[0]
    marks[k].append(f"L_wm_{k}{len(marks[k])}")
    secs[k].append(marks[k][-1] + ":")
    secs[k].append(("MARK", k, len(marks[k]) - 1))
    since[k] = 4
def E(s=""):
    k = cur[0]
    if WARM and k in WARMED and not unsafe[0] and (since[k] >= MARKGAP or not marks[k]): put_mark()
    secs[k].append("    " + s)
    since[k] += isize(s)
    if re.match(r"s_\w+ exec", s): unsafe[0] = s != "s_mov_b64 exec, -1"
def L(s): secs[cur[0]].append(s + ":")
def vr(a, n=1): return f"v{a}" if n == 1 else f"v[{a}:{a+n-1}]"
def f32(x): return hex(struct.unpack("<I", struct.pack("<f", x))[0])

K_LDS, V_LDS = 0, 65536
WA_LDS, WB_LDS = 0, 65536
QS_LDS, PX_LDS, SX_LDS, FL_LDS = 131072, 132608, 140800, 141312
OS_LDS, XS_LDS = QS_LDS, PX_LDS
LDS_BYTES = 141824
LS = 0x30000
W_Q, W_X2, W_X1, W_ST, W_ACT = 0, 1024, 2048, 3072, 3584
W_Y, W_Z, W_P = 32768, 40960, 65536
W_Q0 = 2 * LS
W_Q0B = 32768
W_EP = W_Q0 + 65536
ALT = 0x80000
WS_USED = ALT + 2 * LS
PROF_OFF = 0x300000
WS_REC = PROF_OFF + 256 * 1024

sX, sK, sV, sWQ, sWO, sBX, sW1, sB1 = 8, 10, 12, 14, 16, 18, 20, 22
sW2, sOUT, sDBG, sWS = 24, 26, 28, 30
sG, sJ, sWV, sC, sPJ = 3, 4, 5, 6, 7
R_WS, R_A, R_B, R_C = 32, 36, 40, 44
sT0, sT1, sT2, sT3 = 48, 49, 50, 51
sLOC, sLAY = 52, 53
sYoff, sZoff, sPoff = 54, 55, 56
sSPIN = 57
sRET = 58
sMA_f, sMA_s, sMB_f, sMB_s, sMC_f, sMC_s = 60, 62, 64, 66, 68, 70
sTAG, sXCC, sQ0, sQ0B = 72, 73, 74, 75
sFFFE = 76
sC1, sC2, sC3 = 77, 78, 79
sS1, sS2, sPIV = 80, 81, 82
sPub, sPubG = 83, 84
sST = 88
sPe, sLe, sMODE = 90, 91, 92
SPIN0 = 0x200000
WSR = f"s[{R_WS}:{R_WS+3}]"

def srd(r, base, add_lo=None, rec=None):
    if add_lo is None:
        E(f"s_mov_b32 s{r}, s{base}")
        E(f"s_and_b32 s{r+1}, s{base+1}, 0xffff")
    else:
        E(f"s_add_u32 s{r}, s{base}, {add_lo}")
        E(f"s_addc_u32 s{r+1}, s{base+1}, 0")
        E(f"s_and_b32 s{r+1}, s{r+1}, 0xffff")
    E(f"s_mov_b32 s{r+2}, {rec}")
    E(f"s_mov_b32 s{r+3}, 0x00020000")

V_STAMP = 254
ROLE = ["a"]
def stamp(idx, layer_dep=False):
    if not PROF: return
    if PROF == 9 and not (idx == 8 and not layer_dep) and not (idx == 6 and layer_dep and ROLE[0] == "a" and "pt" not in OPT) and OPT.get("pt") != f"{cur[0]}_{idx}": return
    E(f"s_memrealtime s[{sST}:{sST+1}]")
    E("s_waitcnt lgkmcnt(0)")
    if layer_dep:
        E(f"s_lshl_b32 s{sT3}, s{sLAY}, 4")
        E(f"s_add_u32 s{sT3}, s{sT3}, {idx}")
        E(f"s_mov_b32 m0, s{sT3}")
        E("s_nop 0")
        E(f"v_writelane_b32 v{V_STAMP}, s{sST}, m0")
    else:
        E(f"v_writelane_b32 v{V_STAMP}, s{sST}, {idx}")
AMP = OPT.get("amp")
def amp(name):
    if AMP != name: return
    E(f"s_cmp_eq_u32 s{sLAY}, {OPT.get('amplay', '0')}")
    E(f"s_cbranch_scc0 L_amp_{name}")
    E("s_memrealtime s[94:95]")
    E("s_waitcnt lgkmcnt(0)")
    L(f"L_amp_{name}")
def ampx(name, wave):
    if AMP != name: return
    E(f"s_cmp_eq_u32 s2, {OPT.get('ampwg', '0')}")
    E(f"s_cbranch_scc0 L_amp_{name}")
    E(f"s_cmp_eq_u32 s{sWV}, {wave}")
    E(f"s_cbranch_scc0 L_amp_{name}")
    E(f"s_cmp_eq_u32 s{sLAY}, 0")
    E(f"s_cbranch_scc0 L_amp_{name}")
    E("s_memrealtime s[94:95]")
    E("s_waitcnt lgkmcnt(0)")
    if name == "xs": E("s_mov_b32 s94, s86")
    if name == "xa": E("s_mov_b32 s94, s88")
    E("v_mov_b32 v246, s94")
    E(f"v_mov_b32 v247, {W_EP + 64}")
    E(f"buffer_store_dword v246, v247, {WSR}, 0 offen sc1")
    L(f"L_amp_{name}")
def stamp_flush(wave, slot, dbg=None):
    if not PROF: return
    E(f"s_cmp_lg_u32 s{sWV}, {wave}")
    E("s_cbranch_scc1 L_exit")
    E("s_mov_b64 exec, -1")
    if dbg and "dbg" in OPT:
        wg, off, idx = dbg
        for i, x in enumerate(idx):
            E(f"v_readlane_b32 s{sT0}, v{V_STAMP}, {x}")
            E("s_nop 3")
            E(f"v_writelane_b32 v{V_STAMP-2}, s{sT0}, {i}")
        srd(R_A, sDBG, None, 256)
        E(f"v_lshlrev_b32 v{V_STAMP-1}, 2, v1")
        E(f"s_cmp_eq_u32 s2, {wg}")
        E(f"s_cselect_b32 exec_lo, {(1 << len(idx)) - 1}, 0")
        E("s_mov_b32 exec_hi, 0")
        E(f"buffer_store_dword v{V_STAMP-2}, v{V_STAMP-1}, s[{R_A}:{R_A+3}], 0 offen offset:{off}")
        E("s_mov_b64 exec, -1")
    E(f"s_lshl_b32 s{sT0}, s2, 10")
    E(f"s_add_u32 s{sT0}, s{sT0}, {PROF_OFF + slot*256}")
    E(f"v_lshlrev_b32 v{V_STAMP-1}, 2, v1")
    E(f"buffer_store_dword v{V_STAMP}, v{V_STAMP-1}, {WSR}, s{sT0} offen")

wstep = {}
def mark(role): pass
def warm(role, first=0, step=1):
    if WARM:
        secs[cur[0]].append(("WARM", role, first, step))
        assert wstep.setdefault(role, step) == step

def spin_check(fail_label):
    E(f"s_sub_u32 s{sSPIN}, s{sSPIN}, 1")
    E(f"s_cbranch_scc1 L_exit")
    E(f"s_branch {fail_label}")

def chk_bf16(v, t):
    E(f"v_pk_max_u16 v{t}, v{v}, v{v+1}")
    E(f"v_pk_max_u16 v{t+1}, v{v+2}, v{v+3}")
    E(f"v_pk_max_u16 v{t}, v{t}, v{t+1}")
    E(f"v_pk_max_u16 v{t}, v{t}, v{t} op_sel:[0,1] op_sel_hi:[1,0]")
    E(f"v_cmp_eq_u32 vcc, -1, v{t}")

def pub2(op, data, addr, soff, mf, ms, imm=0):
    o = f" offset:{imm}" if imm else ""
    E(f"s_mov_b64 exec, s[{mf}:{mf+1}]")
    E(f"{op} {data}, v{addr}, {WSR}, s{soff} offen{o}")
    E(f"s_mov_b64 exec, s[{ms}:{ms+1}]")
    E(f"{op} {data}, v{addr}, {WSR}, s{soff} offen{o} sc1")
    E("s_mov_b64 exec, -1")

def masks(mf, ms, lo, hi):
    E(f"s_cselect_b32 s{mf}, {lo}, 0")
    E(f"s_cselect_b32 s{mf+1}, {hi}, 0")
    E(f"s_cselect_b32 s{ms}, 0, {lo}")
    E(f"s_cselect_b32 s{ms+1}, 0, {hi}")

def arm(dst, n):
    for r in range(n): E(f"v_mov_b32 v{dst+r}, -1")

def gather1(tag, dst, addr, soff, imm, t, pd=None, slp=None):
    pd = PD if pd is None else pd
    slp = SLP if slp is None else slp
    L(f"L_{tag}_poll")
    E(f"buffer_load_dwordx4 {vr(dst,4)}, v{addr}, {WSR}, s{soff} offen offset:{imm} sc1")
    E(f"s_waitcnt vmcnt({pd-1})")
    chk_bf16(dst, t)
    E(f"s_cbranch_vccz L_{tag}_ok")
    if slp: E(f"s_sleep {slp}")
    spin_check(f"L_{tag}_poll")
    L(f"L_{tag}_ok")

cD, cA, cXa, cG, cT, cL16 = 208, 210, 211, 212, 224, 232
def xc_publish():
    E(f"s_getreg_b32 s{sXCC}, hwreg(HW_REG_XCC_ID, 0, 4)")
    E(f"v_mov_b32 v{cD+1}, s{sTAG}")
    E(f"s_lshl_b32 s{sT3}, s{sJ}, 3")
    E(f"v_mov_b32 v{cD}, s{sXCC}")
    E(f"v_mov_b32 v{cA}, s{sT3}")
    E("s_mov_b64 exec, 1")
    E(f"buffer_store_dwordx2 {vr(cD,2)}, v{cA}, {WSR}, s{sQ0} offen offset:2048")
    E("s_mov_b64 exec, -1")

def first_gather(tag, with_q, clear_alt, armed=False):
    regs = (1, 3, 5, 7) if with_q else (9,)
    nl = 3 if with_q else 1
    E(f"s_sub_u32 s{sS2}, s{sSPIN}, {480 // FSL}")
    if not armed:
        E(f"v_and_b32 v{cXa}, 31, v1")
        E(f"v_lshlrev_b32 v{cXa}, 3, v{cXa}")
        E(f"s_not_b32 s{sT1}, s{sTAG}")
        for r in regs + ((9,) if with_q else ()): E(f"v_mov_b32 v{cG+r}, s{sT1}")
    def loads(so):
        if with_q:
            E(f"buffer_load_dwordx4 {vr(cG,4)}, v{cL16}, {WSR}, s{so} offen sc1")
            E(f"buffer_load_dwordx4 {vr(cG+4,4)}, v{cL16}, {WSR}, s{so} offen offset:1024 sc1")
        E(f"buffer_load_dwordx2 {vr(cG+8,2)}, v{cXa}, {WSR}, s{so} offen offset:2048 sc1")
    def check():
        if with_q:
            for i, r in enumerate(regs): E(f"v_xor_b32 v{cT+i}, s{sTAG}, v{cG+r}")
            E(f"v_or3_b32 v{cT}, v{cT}, v{cT+1}, v{cT+2}")
            E(f"v_or_b32 v{cT}, v{cT}, v{cT+3}")
            E(f"v_cmp_ne_u32 vcc, 0, v{cT}")
        else:
            E(f"v_cmp_ne_u32 vcc, s{sTAG}, v{cG+9}")
    def copy_b():
        E("s_mov_b64 exec, 1")
        E(f"buffer_store_dwordx2 {vr(cD,2)}, v{cA}, {WSR}, s{sQ0B} offen offset:2048 sc1")
        E("s_mov_b64 exec, -1")
    L(f"L_{tag}_poll")
    loads(sQ0)
    E(f"s_waitcnt vmcnt({24 if armed else nl*6})")
    check()
    E(f"s_cbranch_vccz L_{tag}_seen")
    E(f"s_sleep {FSL}")
    E(f"s_cmp_gt_u32 s{sSPIN}, s{sS2}")
    E(f"s_cbranch_scc0 L_{tag}_b")
    spin_check(f"L_{tag}_poll")
    home = cur[0]; sec("cold")
    L(f"L_{tag}_b")
    copy_b()
    L(f"L_{tag}_alt")
    for so in (sQ0B, sQ0):
        loads(so)
        E("s_waitcnt vmcnt(0)")
        check()
        E(f"s_cbranch_vccz L_{tag}_{'altok' if with_q else 'ok'}")
    spin_check(f"L_{tag}_alt")
    if with_q:
        L(f"L_{tag}_altok")
        E(f"s_not_b32 s{sT1}, s{sTAG}")
        E(f"v_mov_b32 v{cG+9}, s{sT1}")
        E(f"s_branch L_{tag}_ok")
    sec(home)
    L(f"L_{tag}_seen")
    E("s_nop 15")
    L(f"L_{tag}_ok")
    if with_q:
        E(f"ds_write2_b32 v{cT+5}, v{cG}, v{cG+2} offset0:0 offset1:1")
        E(f"ds_write2_b32 v{cT+5}, v{cG+4}, v{cG+6} offset0:160 offset1:161")
        return
    E(f"v_cmp_ne_u32 vcc, s{sXCC}, v{cG+8}")
    E("s_nop 3")
    if OPT.get("slow") == "1": E("s_mov_b64 vcc, -1")
    E("s_cmp_eq_u64 vcc, 0")
    E(f"s_cselect_b32 s{sMODE}, 1, 0")
    E(f"s_cbranch_scc0 L_{tag}_slow")
    sec("cold")
    L(f"L_{tag}_slow")
    E("s_waitcnt vmcnt(0) lgkmcnt(0)")
    copy_b()
    if clear_alt: clear_alt()
    if clear_alt:
        E("s_waitcnt vmcnt(0)")
        E("s_mov_b64 exec, 1")
        E(f"buffer_store_dwordx2 {vr(cD,2)}, v{cA}, {WSR}, s{sQ0B} offen offset:2560 sc1")
        E("s_mov_b64 exec, -1")
    E(f"v_and_b32 v{cXa}, 56, v{cXa}")
    E(f"v_add_u32 v{cXa}, 192, v{cXa}")
    L(f"L_{tag}_h")
    E(f"buffer_load_dwordx2 {vr(cG+8,2)}, v{cXa}, {WSR}, s{sQ0B} offen offset:2560 sc1")
    E("s_waitcnt vmcnt(0)")
    E(f"v_cmp_ne_u32 vcc, s{sTAG}, v{cG+9}")
    E(f"s_cbranch_vccz L_{tag}_done")
    spin_check(f"L_{tag}_h")
    sec(home)
    L(f"L_{tag}_done")
    E(f"v_mov_b32 v{cT+2}, {FL_LDS}")
    E(f"v_mov_b32 v{cT+3}, s{sMODE}")
    E(f"ds_write_b32 v{cT+2}, v{cT+3}")

L(f"{NAME}_kernel")
E("s_cmp_ge_u32 s2, 256")
E("s_cbranch_scc1 L_exit")
E("s_load_dwordx16 s[8:23], s[0:1], 0")
E("s_load_dwordx8 s[24:31], s[0:1], 64")
if PROF:
    E(f"v_mov_b32 v{V_STAMP}, 0")
    E(f"s_memrealtime s[{sST}:{sST+1}]")
if AMP: E("s_memrealtime s[86:87]")
E("s_getpc_b64 s[92:93]")
E("v_lshrrev_b32 v1, 6, v0")
E(f"s_and_b32 s{sG}, s2, 7")
E(f"v_readfirstlane_b32 s{sWV}, v1")
E(f"s_lshr_b32 s{sJ}, s2, 3")
E("v_and_b32 v1, 63, v0")
if CPF:
    E("s_and_b32 s92, s92, 0xffffff00")
    E("v_lshlrev_b32 v4, 7, v1")
    E("v_add_u32 v5, 0x2000, v4")
    E(f"v_min_u32 v5, L_code_end-{NAME}_kernel-4, v5")
    E(f"s_cmp_lg_u32 s{sWV}, 7")
    E("s_cbranch_scc1 L_nocpf")
    E("global_load_dword v239, v4, s[92:93]")
    E("global_load_dword v239, v5, s[92:93]")
    L("L_nocpf")
E("v_and_b32 v2, 15, v0")
E("v_lshrrev_b32 v3, 4, v1")
E(f"s_mov_b32 s{sSPIN}, {SPIN0}")
E(f"s_mov_b32 s{sLAY}, 0")
E(f"s_lshl_b32 s{sLOC}, s{sG}, 12")
E(f"s_lshl_b32 s{sPoff}, s{sG}, 14")
E(f"s_add_u32 s{sPoff}, s{sPoff}, {W_P}")
E(f"s_add_u32 s{sQ0}, s{sLOC}, {W_Q0}")
E(f"s_add_u32 s{sQ0B}, s{sQ0}, {W_Q0B}")
E("v_lshrrev_b32 v5, 3, v1")
E("v_and_b32 v6, 7, v1")
E("v_lshlrev_b32 v4, 13, v5")
E("v_lshl_add_u32 v4, v6, 7, v4")
E(f"s_lshl_b32 s{sT0}, s{sJ}, 17")
E(f"s_lshl_b32 s{sT1}, s{sG}, 10")
E(f"s_add_u32 s{sT0}, s{sT0}, s{sT1}")
E(f"s_sub_u32 s{sT1}, s{sWV}, 1")
E(f"s_lshl_b32 s{sT2}, s{sT1}, 16")
E(f"s_add_u32 s{sT0}, s{sT0}, s{sT2}")
E(f"s_mov_b32 s{sT2}, {W_EP}")
E("v_mov_b32 v7, 0")
E(f"s_cmp_lt_u32 s{sT1}, 2")
E("s_waitcnt lgkmcnt(0)")
E("s_cbranch_scc0 L_notouch")
srd(R_C, sWQ, None, 4194304)
if TQ: E(f"buffer_load_dword v240, v4, s[{R_C}:{R_C+3}], s{sT0} offen{NTQ}")
L("L_notouch")
if AMP == "xa":
    E("s_memrealtime s[88:89]")
    E("s_waitcnt lgkmcnt(0)")
srd(R_WS, sWS, None, WS_REC if PROF else WS_USED)
E(f"buffer_load_dword v241, v7, {WSR}, s{sT2} offen sc1")
if PROF: E(f"v_writelane_b32 v{V_STAMP}, s{sST}, 60")
E(f"v_mov_b32 v{cA}, 0")
E(f"v_lshlrev_b32 v{cL16}, 4, v1")
E(f"s_cmp_ge_u32 s{sJ}, 16")
E("s_cbranch_scc1 L_D_init")

E(f"s_lshl_b32 s{sT0}, s{sG}, 24")
E(f"s_lshl_b32 s{sT1}, s{sJ}, 16")
E(f"s_add_u32 s{sT0}, s{sT0}, s{sT1}")
E(f"s_add_u32 s{sT0}, s{sT0}, {61440*256}")
srd(R_A, sK, f"s{sT0}", 65536)
srd(R_B, sV, f"s{sT0}", 65536)
E("v_xor_b32 v4, v2, v3")
E("v_lshlrev_b32 v4, 4, v4")
E("v_lshl_add_u32 v4, v3, 8, v4")
E("v_lshlrev_b32 v5, 1, v3")
E("v_xor_b32 v5, v2, v5")
E("v_lshlrev_b32 v5, 4, v5")
E("v_lshl_add_u32 v5, v3, 8, v5")
E(f"s_add_u32 s{sC1}, s{sJ}, s{sG}")
E(f"s_cmp_eq_u32 s{sWV}, 4")
E("s_cbranch_scc1 L_A_ctl")
E(f"s_cmp_gt_u32 s{sWV}, 4")
E("s_cbranch_scc1 L_A_help")
E(f"s_lshl_b32 s{sT0}, s{sWV}, 14")
E(f"s_add_u32 s{sT3}, s{sC1}, 16")
L("L_A_kl")
E(f"s_and_b32 s{sT1}, s{sC1}, 15")
E(f"s_and_b32 s{sT2}, s{sT1}, 3")
E(f"s_lshl_b32 s{sT2}, s{sT2}, 6")
E(f"s_lshl_b32 s{sT1}, s{sT1}, 10")
E(f"s_add_u32 s{sT1}, s{sT1}, s{sT0}")
E(f"s_mov_b32 m0, s{sT1}")
E(f"v_xor_b32 v6, s{sT2}, v4")
E(f"s_waitcnt vmcnt({THR-1})")
E(f"buffer_load_dwordx4 v6, s[{R_A}:{R_A+3}], s{sT1} offen{NTK} lds")
E(f"s_add_u32 s{sC1}, s{sC1}, 1")
E(f"s_cmp_lt_u32 s{sC1}, s{sT3}")
E("s_cbranch_scc1 L_A_kl")
E("s_branch L_A_setup")
L("L_A_help")
E(f"s_sub_u32 s{sT0}, s{sWV}, 5")
E(f"s_lshl_b32 s{sC1}, s{sC1}, 2")
E(f"s_mov_b32 s{sT3}, 0")
THV1, NV1 = int(OPT.get("thv1", 0)), int(OPT.get("nv1", 15))
if THV1:
    L("L_A_vl1")
    E(f"s_add_u32 s{sT1}, s{sC1}, s{sT0}")
    E(f"s_and_b32 s{sT1}, s{sT1}, 63")
    E(f"s_and_b32 s{sT2}, s{sT1}, 1")
    E(f"s_lshl_b32 s{sT2}, s{sT2}, 7")
    E(f"s_lshl_b32 s{sT1}, s{sT1}, 10")
    E(f"s_add_u32 m0, s{sT1}, {V_LDS}")
    E(f"v_xor_b32 v6, s{sT2}, v5")
    E(f"s_waitcnt vmcnt({THV1-1})")
    E(f"buffer_load_dwordx4 v6, s[{R_B}:{R_B+3}], s{sT1} offen{NTV} lds")
    E(f"s_add_u32 s{sT0}, s{sT0}, 3")
    E(f"s_cmp_lt_u32 s{sT0}, {NV1}")
    E("s_cbranch_scc1 L_A_vl1")
L("L_A_vl")
E(f"s_add_u32 s{sT1}, s{sC1}, s{sT0}")
E(f"s_and_b32 s{sT1}, s{sT1}, 63")
E(f"s_and_b32 s{sT2}, s{sT1}, 1")
E(f"s_lshl_b32 s{sT2}, s{sT2}, 7")
E(f"s_lshl_b32 s{sT1}, s{sT1}, 10")
E(f"s_add_u32 m0, s{sT1}, {V_LDS}")
E(f"v_xor_b32 v6, s{sT2}, v5")
E(f"s_waitcnt vmcnt({THV-1})")
E(f"buffer_load_dwordx4 v6, s[{R_B}:{R_B+3}], s{sT1} offen{NTV} lds")
E(f"s_add_u32 s{sT0}, s{sT0}, 3")
E(f"s_cmp_lt_u32 s{sT0}, 64")
E("s_cbranch_scc1 L_A_vl")
stamp(1)
E("s_branch L_A_pf2")
sec("actl")
L("L_A_pf2")
E(f"s_mul_i32 s{sT1}, s{sG}, {224*1024}")
E(f"s_mul_i32 s{sT2}, s{sJ}, 14336")
E(f"s_add_u32 s{sT1}, s{sT1}, s{sT2}")
E(f"s_cmp_eq_u32 s{sWV}, 6")
E(f"s_cselect_b32 s{sT3}, {14336 if W2P else 0}, 0")
srd(R_C, sW2, f"s{sT1}", f"s{sT3}")
E(f"s_mov_b32 s{sT1}, 0")
E(f"s_mov_b32 s{sT2}, 8192")
E("v_lshlrev_b32 v6, 7, v1")
E(f"buffer_load_dword v240, v6, s[{R_C}:{R_C+3}], s{sT1} offen{NTT}")
E(f"buffer_load_dword v240, v6, s[{R_C}:{R_C+3}], s{sT2} offen{NTT}")
E("s_barrier")
E("s_waitcnt vmcnt(2)")
stamp(2)
ampx("xv", 5)
E("s_barrier")
stamp_flush(5, 2)
E("s_endpgm")
sec("a")
L("L_A_setup")
stamp(1)
KF, VF, QF, SC, PB, OD, OUTV, PF, STT = 16, 80, 144, 160, 176, 144, 176, 184, 216
T = 224
E("v_xor_b32 v4, v2, v3")
E("v_lshlrev_b32 v4, 4, v4")
E("v_lshl_add_u32 v4, v2, 8, v4")
E(f"v_add_u32 v4, s{sT0}, v4")
E("v_xor_b32 v5, 64, v4")
E("v_xor_b32 v6, 0x80, v4")
E("v_xor_b32 v7, 0xc0, v4")
E("v_and_b32 v15, 3, v2")
E("v_mul_u32_u24 v8, 320, v15")
E("v_lshl_add_u32 v8, v3, 4, v8")
E(f"v_add_u32 v8, {QS_LDS}, v8")
E("v_lshlrev_b32 v10, 4, v1")
E(f"v_add_u32 v10, {PX_LDS}, v10")
E(f"s_lshl_b32 s{sT1}, s{sWV}, 11")
E(f"v_add_u32 v9, s{sT1}, v10")
E("v_lshlrev_b32 v12, 5, v2")
E(f"v_add_u32 v12, {SX_LDS}, v12")
E(f"s_lshl_b32 s{sT1}, s{sWV}, 3")
E(f"v_add_u32 v11, s{sT1}, v12")
E("v_lshlrev_b32 v13, 12, v15")
E("v_lshl_add_u32 v13, v3, 3, v13")
E("v_bfe_u32 v14, v2, 2, 1")
E("v_lshl_add_u32 v13, v14, 5, v13")
E(f"s_lshl_b32 s{sT1}, s{sWV}, 6")
E(f"v_add_u32 v13, s{sT1}, v13")
E(f"v_cmp_eq_u32 s[{sMC_f}:{sMC_f+1}], 1, v14")
E(f"v_lshlrev_b32 v14, 7, v15")
E(f"v_lshrrev_b32 v{T}, 2, v2")
E(f"v_lshl_add_u32 v{T}, v3, 2, v{T}")
E(f"v_and_b32 v{T+1}, 7, v{T}")
E(f"s_lshl_b32 s{sT1}, s{sWV}, 1")
E(f"v_xor_b32 v{T+1}, s{sT1}, v{T+1}")
E(f"v_lshlrev_b32 v{T}, 8, v{T}")
E(f"v_lshl_add_u32 v{T}, v{T+1}, 5, v{T}")
E(f"v_lshl_add_u32 v{T}, v15, 3, v{T}")
E(f"v_add_u32 v{T}, {V_LDS}, v{T}")
E(f"v_xor_b32 v{T+1}, 32, v{T}")
E(f"s_lshl_b32 s{sT1}, s{sJ}, 8")
E(f"s_add_u32 s{sPoff}, s{sPoff}, s{sT1}")
E(f"s_and_b32 s{sT1}, s{sJ}, 3")
E(f"s_lshl_b32 s{sT1}, s{sT1}, 5")
E(f"s_lshr_b32 s{sT2}, s{sJ}, 2")
E(f"s_lshl_b32 s{sT2}, s{sT2}, 3")
E(f"s_add_u32 s{sT1}, s{sT1}, s{sT2}")
E(f"s_add_u32 s{sPub}, s{sT1}, {W_ST}")
E(f"s_mov_b32 s{sC1}, {f32((128**-0.5)*math.log2(math.e))}")
E(f"s_mov_b32 s{sFFFE}, 0xfffefffe")
E(f"v_mov_b32 v{T+2}, {FL_LDS}")
E(f"v_mov_b32 v{T+8}, s{sC1}")
E(f"s_cmp_eq_u32 s{sWV}, 0")
E(f"s_cselect_b32 s{sC2}, 15, 0")
E(f"s_mov_b32 s{sMB_f+1}, 0")
E(f"s_mov_b32 s{sMB_s+1}, 0")
E("s_waitcnt vmcnt(0)")
stamp(2)
ampx("xk", 0)
for e in range(4):
    for s in range(4):
        E(f"ds_read_b128 {vr(KF+(e*4+s)*4,4)}, v{4+s} offset:{4096*e}")
L("L_A_b1")
mark("a")
E("s_barrier")
for s in range(4):
    E(f"ds_read_b128 {vr(QF+4*s,4)}, v8 offset:{64*s}")
stamp(3, True)
def qk(e, s):
    c = "0" if s == 0 else vr(SC+4*e,4)
    E(f"v_mfma_f32_16x16x32_bf16 {vr(SC+4*e,4)}, {vr(KF+(e*4+s)*4,4)}, {vr(QF+4*s,4)}, {c}")
for s in range(4):
    E(f"s_waitcnt lgkmcnt({3-s})")
    qk(0, s); qk(1, s)
for s in range(4):
    qk(2, s); qk(3, s)
E(f"v_max3_f32 v{T+4}, v{SC}, v{SC+1}, v{SC+2}")
E(f"v_max3_f32 v{T+5}, v{SC+3}, v{SC+4}, v{SC+5}")
E(f"v_max3_f32 v{T+4}, v{T+4}, v{SC+6}, v{SC+7}")
E("s_nop 3")
E(f"v_max3_f32 v{T+5}, v{T+5}, v{SC+8}, v{SC+9}")
E(f"v_max3_f32 v{T+4}, v{T+4}, v{SC+10}, v{SC+11}")
E(f"v_max3_f32 v{T+5}, v{T+5}, v{SC+12}, v{SC+13}")
E(f"v_max3_f32 v{T+4}, v{T+4}, v{SC+14}, v{SC+15}")
E(f"v_max_f32 v{T+4}, v{T+4}, v{T+5}")
E(f"v_mov_b32 v{T+5}, v{T+4}")
E("s_nop 1")
E(f"v_permlane16_swap_b32 v{T+4}, v{T+5}")
E(f"v_max_f32 v{T+4}, v{T+4}, v{T+5}")
E(f"v_mov_b32 v{T+5}, v{T+4}")
E("s_nop 1")
E(f"v_permlane32_swap_b32 v{T+4}, v{T+5}")
E(f"v_max_f32 v{T+4}, v{T+4}, v{T+5}")
E(f"v_mul_f32 v{T+6}, s{sC1}, v{T+4}")
for i in range(8):
    E(f"v_pk_fma_f32 {vr(SC+2*i,2)}, {vr(SC+2*i,2)}, {vr(T+8,2)}, {vr(T+6,2)} op_sel_hi:[1,0,0] neg_lo:[0,0,1] neg_hi:[0,0,1]")
for i in range(8):
    E(f"v_exp_f32 v{SC+i}, v{SC+i}")
E(f"v_exp_f32 v{SC+8}, v{SC+8}")
for i in range(4):
    E(f"v_cvt_pk_bf16_f32 v{PB+i}, v{SC+2*i}, v{SC+2*i+1}")
E(f"ds_write_b128 v9, {vr(PB,4)}")
for i in range(9, 16):
    E(f"v_exp_f32 v{SC+i}, v{SC+i}")
E(f"v_add_f32 v{T+7}, v{SC}, v{SC+1}")
for i in range(4, 8):
    E(f"v_cvt_pk_bf16_f32 v{PB+i}, v{SC+2*i}, v{SC+2*i+1}")
E(f"ds_write_b128 v9, {vr(PB+4,4)} offset:1024")
for i in range(4):
    E(f"v_pk_add_f32 {vr(SC+2+ 0,2) if False else vr(SC+4*i,2)}, {vr(SC+4*i,2)}, {vr(SC+4*i+2,2)}")
E(f"v_pk_add_f32 {vr(SC,2)}, {vr(SC,2)}, {vr(SC+4,2)}")
E(f"v_pk_add_f32 {vr(SC+8,2)}, {vr(SC+8,2)}, {vr(SC+12,2)}")
E(f"v_pk_add_f32 {vr(SC,2)}, {vr(SC,2)}, {vr(SC+8,2)}")
E(f"v_add_f32 v{T+7}, v{SC}, v{SC+1}")
E(f"v_mov_b32 v{T+5}, v{T+7}")
E("s_nop 1")
E(f"v_permlane16_swap_b32 v{T+7}, v{T+5}")
E(f"v_add_f32 v{T+7}, v{T+7}, v{T+5}")
E(f"v_mov_b32 v{T+5}, v{T+7}")
E("s_nop 1")
E(f"v_permlane32_swap_b32 v{T+7}, v{T+5}")
E(f"v_add_f32 v{T+7}, v{T+7}, v{T+5}")
E(f"ds_write_b64 v11, {vr(T+6,2)}")
stamp(4, True)
mark("a")
E("s_waitcnt lgkmcnt(0)")
E("s_barrier")
ampx("xb", 0)
E(f"ds_read_b32 v{T+3}, v{T+2}")
for b in range(2):
    E(f"ds_read_b128 {vr(STT+4*b,4)}, v12 offset:{16*b}")
for b in range(8):
    E(f"ds_read_b128 {vr(PF+4*b,4)}, v10 offset:{1024*b}")
stamp(5, True)
E(f"s_cmp_lg_u32 s{sLAY}, 0")
E("s_cbranch_scc1 L_A_havev")
for tp in range(2):
    for b in range(8):
        for e in range(2):
            E(f"ds_read_b64_tr_b16 {vr(VF+(tp*8+b)*4+2*e,2)}, v{T+tp} offset:{(32*b+16*e)*256}")
E("s_waitcnt lgkmcnt(0)")
L("L_A_havev")
E("s_waitcnt lgkmcnt(8)")
F = STT
va = [f"v_max3_f32 v{T+4}, v{STT}, v{STT+2}, v{STT+4}", f"v_max_f32 v{T+6}, v{T+4}, v{STT+6}"]
va += [f"v_sub_f32 v{F+2*b}, v{STT+2*b}, v{T+6}" for b in range(4)]
va += [f"v_exp_f32 v{F+2*b}, v{F+2*b}" for b in range(4)]
va += [f"v_mul_f32 v{T+7}, v{F}, v{STT+1}"] + [f"v_fmac_f32 v{T+7}, v{F+2*b}, v{STT+2*b+1}" for b in range(1, 4)]
E(f"v_readfirstlane_b32 s{sMODE}, v{T+3}")
for x in va[:2]: E(x)
sa = [f"s_cmp_eq_u32 s{sMODE}, 1", f"s_cselect_b32 s{sMB_f}, s{sC2}, 0", f"s_cselect_b32 s{sMB_s}, 0, s{sC2}",
      f"s_cselect_b32 s{sMA_f}, 0x00ff00ff, 0", f"s_cselect_b32 s{sMA_f+1}, 0x00ff00ff, 0", f"s_cselect_b32 s{sMA_s}, 0, 0x00ff00ff",
      f"s_cselect_b32 s{sMA_s+1}, 0, 0x00ff00ff", f"s_cselect_b32 s{sT2}, 0, {ALT}", f"s_add_u32 s{sPe}, s{sPoff}, s{sT2}",
      f"s_add_u32 s{sT2}, s{sLOC}, s{sT2}", f"s_add_u32 s{sT2}, s{sT2}, s{sPub}"]
k = 2
for u in range(8):
    E(f"s_waitcnt lgkmcnt({7-u})")
    for tp in range(2):
        d = vr(OD+(tp*4+u//2)*4,4)
        E(f"v_mfma_f32_16x16x32_bf16 {d}, {vr(VF+(tp*8+u)*4,4)}, {vr(PF+4*u,4)}, {'0' if u % 2 == 0 else d}")
        if k < len(va): E(va[k]); k += 1
        if sa and u >= 1: E(sa.pop(0)); E(sa.pop(0)) if sa else None
    if u == 5:
        assert k == len(va)
        E(f"v_min_u32 v{T+6}, -2, v{T+6}")
        E(f"v_min_u32 v{T+7}, -2, v{T+7}")
        pub2("buffer_store_dwordx2", vr(T+6,2), 14, sT2, sMB_f, sMB_s)
def cb(b):
    for tp in range(2):
        for h in range(2):
            o = vr(OUTV+4*tp+2*h,2)
            if b == 0: E(f"v_pk_mul_f32 {o}, {vr(OD+tp*16+2*h,2)}, {vr(F,2)} op_sel_hi:[1,0]")
            else: E(f"v_pk_fma_f32 {o}, {vr(OD+(tp*4+b)*4+2*h,2)}, {vr(F+2*b,2)}, {o} op_sel_hi:[1,0,1]")
for b in range(4): cb(b)
for r in range(4):
    E(f"v_cndmask_b32 v{OUTV+r}, v{OUTV+r}, v{OUTV+4+r}, s[{sMC_f}:{sMC_f+1}]")
E(f"v_cvt_pk_bf16_f32 v{OUTV}, v{OUTV}, v{OUTV+1}")
E(f"v_cvt_pk_bf16_f32 v{OUTV+1}, v{OUTV+2}, v{OUTV+3}")
E(f"v_pk_min_u16 v{OUTV}, v{OUTV}, s{sFFFE}")
E(f"v_pk_min_u16 v{OUTV+1}, v{OUTV+1}, s{sFFFE}")
pub2("buffer_store_dwordx2", vr(OUTV,2), 13, sPe, sMA_f, sMA_s)
stamp(6, True)
ampx("xp", 0)
E(f"s_add_u32 s{sPoff}, s{sPoff}, {LS}")
E(f"s_add_u32 s{sLOC}, s{sLOC}, {LS}")
E(f"s_add_u32 s{sLAY}, s{sLAY}, 1")
E(f"s_cmp_lt_u32 s{sLAY}, 2")
E("s_cbranch_scc1 L_A_b1")
stamp_flush(0, 0, (int(OPT.get("dbg", 0)), 36, [60, 2, 3, 5, 6, 19, 22]))
E("s_endpgm")
sec("actl")
L("L_A_ctl")
E("s_waitcnt vmcnt(0)")
E(f"v_readfirstlane_b32 s{sTAG}, v241")
E("s_nop 3")
E(f"s_add_u32 s{sTAG}, s{sTAG}, 1")
ampx("xe", 4)
ampx("xs", 4)
ampx("xa", 4)
xc_publish()
warm("a")
E(f"v_lshrrev_b32 v{cT+5}, 5, v1")
E(f"v_lshlrev_b32 v{cT+5}, 6, v{cT+5}")
E(f"v_lshl_add_u32 v{cT+5}, v1, 3, v{cT+5}")
E(f"v_add_u32 v{cT+5}, {QS_LDS}, v{cT+5}")
first_gather("aq0", True, None)
stamp(2)
ampx("xq", 4)
E("s_waitcnt lgkmcnt(0)")
E("s_barrier")
first_gather("ax", False, None, armed=True)
stamp(3)
E("s_waitcnt lgkmcnt(0)")
E(f"s_cmp_eq_u32 s{sMODE}, 1")
E(f"s_cselect_b32 s{sT2}, 0, {ALT}")
E(f"s_add_u32 s{sLe}, s{sLOC}, s{sT2}")
E(f"s_add_u32 s{sLe}, s{sLe}, {LS}")
E(f"v_lshl_add_u32 v{cT+2}, v3, 6, v{cL16}")
E(f"v_add_u32 v{cT+2}, {QS_LDS}, v{cT+2}")
E("s_barrier")
E("s_waitcnt vmcnt(0)")
arm(cG, 4)
gather1("aq", cG, cL16, sLe, W_Q, cT)
E(f"ds_write_b128 v{cT+2}, {vr(cG,4)}")
stamp(18)
E("s_waitcnt lgkmcnt(0)")
E("s_barrier")
stamp_flush(4, 1)
E("s_endpgm")

vL16, aXIO, aTA, aTB, aIN, aST, aP16, aPY, vONE, aOS, aXS = 4, 5, 6, 7, 8, 9, 10, 11, 12, 13, 14
SEL0, ONESB, XR, XN, XB, vT = 16, 24, 28, 36, 44, 48
TT = 49
vB1, vCS, aGX, vINV, vVAL = 15, 0, 249, 250, 252
GB, WA, ACC, WB = 64, 96, 160, 192
vST, CA, MK, vFLG = 224, 232, 236, 248
NACC = 8

retry_blocks = []
def gather_X(tag, soff, role, hook=None):
    def loads():
        for i in range(8):
            so = soff if i < 4 else sT0
            E(f"buffer_load_dwordx4 {vr(GB+4*i,4)}, v{aGX}, {WSR}, s{so} offen offset:{256*(i%4)}{GFL}")
    def sums(wait):
        for i in range(8):
            if wait is not None: E(f"s_waitcnt vmcnt({wait + 7 - i})")
            e, w = (i % 4) // 2, i % 2
            c = vr(XR+4*e,4) if i in (0, 2) else vr(XN+4*e,4)
            E(f"v_mfma_f32_16x16x32_bf16 {vr(XN+4*e,4)}, {vr(SEL0+4*w,4)}, {vr(GB+4*i,4)}, {c}")
    E(f"s_add_u32 s{sT0}, s{soff}, 4096")
    if ACK: E("s_waitcnt vmcnt(0)")
    elif GD: E(f"s_sleep {GD}")
    if PROF in (2, 9): stamp(9, True)
    for _ in range(GP - 1):
        loads()
        if GSL: E(f"s_sleep {GSL}")
    E(f"s_branch L_{tag}_again")
    L(f"L_{tag}_nan")
    E(f"s_sub_u32 s{sSPIN}, s{sSPIN}, 1")
    E("s_cbranch_scc1 L_exit")
    E(f"s_and_b32 s{sT1}, s{sSPIN}, 15")
    E(f"s_cbranch_scc0 L_{tag}_retry")
    if GSL: E(f"s_sleep {GSL}")
    L(f"L_{tag}_again")
    loads()
    if hook: hook()
    mark(role)
    sums(8 * (GP - 1))
    E("s_nop 6")
    E(f"v_cmp_u_f32 vcc, v{XN}, v{XN}")
    E(f"v_cmp_u_f32 s[{sS1}:{sS1+1}], v{XN+4}, v{XN+4}")
    for d in range(4):
        E(f"v_cvt_pk_bf16_f32 v{XB+d}, v{XN+2*d}, v{XN+2*d+1}")
    E(f"s_or_b64 vcc, vcc, s[{sS1}:{sS1+1}]")
    E(f"s_cbranch_vccnz L_{tag}_nan")
    L(f"L_{tag}_ok")
    if PROF in (2, 9):
        stamp(11, True)
        E(f"s_mov_b32 s{sST}, s{sSPIN}")
    def blk():
        L(f"L_{tag}_retry")
        for i in range(16): E(f"v_pk_max_u16 v{ACC+i}, v{GB+2*i}, v{GB+2*i+1}")
        for i in range(8): E(f"v_pk_max_u16 v{ACC+i}, v{ACC+2*i}, v{ACC+2*i+1}")
        for i in range(4): E(f"v_pk_max_u16 v{ACC+i}, v{ACC+2*i}, v{ACC+2*i+1}")
        chk_bf16(ACC, TT)
        E(f"s_cbranch_vccnz L_{tag}_again")
        sums(None)
        E("s_nop 7")
        for d in range(4):
            E(f"v_cvt_pk_bf16_f32 v{XB+d}, v{XN+2*d}, v{XN+2*d+1}")
        E(f"s_branch L_{tag}_ok")
    retry_blocks.append(blk)

def relay_X(tag, soff, pre):
    E(f"v_mov_b32 v{vT}, 0")
    E(f"s_cmp_lg_u32 s{sWV}, 0")
    E(f"s_cbranch_scc1 L_{tag}_other")
    pre()
    gather_X(tag, soff, "d2")
    E(f"ds_write_b128 v{aXS}, {vr(XB,4)}")
    post = f"L_{tag}_join"
    E("s_waitcnt lgkmcnt(0)")
    E("s_barrier")
    E(f"s_branch {post}")
    L(f"L_{tag}_other")
    E("s_waitcnt vmcnt(0)")
    E("s_barrier")
    E(f"ds_read_b128 {vr(XB,4)}, v{aXS}")
    E("s_waitcnt lgkmcnt(0)")
    L(post)

def unpack_resid(src):
    for d in range(4):
        E(f"v_lshlrev_b32 v{XR+2*d}, 16, v{src+d}")
        E(f"v_and_b32 v{XR+2*d+1}, 0xffff0000, v{src+d}")

def matvec(nsteps, A, W, fillers, rows=None, per=PER, waits=False):
    if rows is None:
        rows = [(1 << G, 0xf, list(range(4*G, min(4*G+4, nsteps)))) for G in range((nsteps + 3) // 4)]
    acc = lambda s_: ACC + 4*(rank[s_] % NACC)
    order = [x for x in range(nsteps) if not any(x == st_[-1] for _, _, st_ in rows)] + [st_[-1] for _, _, st_ in rows]
    if waits or not REORD: order = list(range(nsteps))
    rank = {x: i for i, x in enumerate(order)}
    ext = []
    for (rm, bm, st_) in rows:
        dp = f"quad_perm:[0,1,2,3] row_mask:{hex(rm)} bank_mask:{hex(bm)}"
        a = lambda s_: f"v{acc(s_) + s_ % 4}"
        ext.append((st_[1], f"v_add_f32_dpp v{vT}, {a(st_[0])}, {a(st_[1])} {dp}"))
        for s_ in st_[2:]:
            ext.append((s_, f"v_add_f32_dpp v{vT}, {a(s_)}, v{vT} {dp}"))
    order = [x for x in range(nsteps) if not any(x == st_[-1] for _, _, st_ in rows)] + [st_[-1] for _, _, st_ in rows]
    if waits or not REORD: order = list(range(nsteps))
    rank = {x: i for i, x in enumerate(order)}
    ext.sort(key=lambda e: rank[e[0]])
    st = dict(pos=0, lastT=-1)
    pm = {}
    def put(x, n=1):
        E(x); st["pos"] += n
    def need(e):
        if e[0] not in pm: return 99
        return max(pm[e[0]] + 9 - st["pos"], st["lastT"] + 3 - st["pos"], 0)
    fl = list(fillers)
    for s_ in order:
        while ext and rank[ext[0][0]] <= rank[s_] - NACC + 1 and rank[s_] >= NACC:
            n = need(ext[0])
            if n: put(f"s_nop {n-1}", n)
            st["lastT"] = st["pos"]; put(ext.pop(0)[1])
        if waits and s_ >= 8 or waits and s_ == 0: put(f"s_waitcnt lgkmcnt({min(15, 30-2*s_)})")
        pm[s_] = st["pos"]
        put(f"v_mfma_f32_16x16x32_bf16 {vr(acc(s_),4)}, {vr(A,4)}, {vr(W+4*s_,4)}, 0")
        idle = 0
        for _ in range(per):
            if ext and need(ext[0]) - idle <= 0:
                if idle: put(f"s_nop {idle-1}", idle); idle = 0
                st["lastT"] = st["pos"]; put(ext.pop(0)[1])
            elif fl:
                if idle: put(f"s_nop {idle-1}", idle); idle = 0
                put(fl.pop(0))
            elif PAD and s_ != order[-1]: idle += 1
        if idle: put(f"s_nop {idle-1}", idle)
    while ext or fl:
        if ext and need(ext[0]) == 0:
            st["lastT"] = st["pos"]; put(ext.pop(0)[1])
        elif fl:
            put(fl.pop(0))
        else:
            n = need(ext[0]); put(f"s_nop {n-1}", n)

def stats_fillers():
    f = []
    for d in range(4):
        f.append(f"v_lshlrev_b32 v{XR+2*d}, 16, v{XB+d}")
        f.append(f"v_and_b32 v{XR+2*d+1}, 0xffff0000, v{XB+d}")
        if d == 0: f.append(f"v_readfirstlane_b32 s{sPIV}, v{XR}")
    D = XN
    for i in range(4):
        f.append(f"v_pk_add_f32 {vr(D+2*i,2)}, {vr(XR+2*i,2)}, s[{sPIV}:{sPIV+1}] op_sel_hi:[1,0] neg_lo:[0,1] neg_hi:[0,1]")
    a, b = TT+1, TT+3
    assert a % 2 == 0
    f.append(f"v_pk_add_f32 {vr(a,2)}, {vr(D,2)}, {vr(D+2,2)}")
    f.append(f"v_pk_mul_f32 {vr(b,2)}, {vr(D,2)}, {vr(D,2)}")
    for i in range(1, 4):
        f.append(f"v_pk_fma_f32 {vr(b,2)}, {vr(D+2*i,2)}, {vr(D+2*i,2)}, {vr(b,2)}")
        if i > 1: f.append(f"v_pk_add_f32 {vr(a,2)}, {vr(a,2)}, {vr(D+2*i,2)}")
    f.append(f"v_add_f32 v{b}, v{b}, v{b+1}")
    f.append(f"v_add_f32 v{a}, v{a}, v{a+1}")
    f.append("s_nop 0")
    for dp in ("quad_perm:[1,0,3,2] row_mask:0xf", "quad_perm:[2,3,0,1] row_mask:0xf", "row_half_mirror row_mask:0xf",
               "row_mirror row_mask:0xf", "row_bcast:15 row_mask:0xa", "row_bcast:31 row_mask:0xc"):
        f.append(f"v_add_f32_dpp v{b}, v{b}, v{b} {dp} bank_mask:0xf")
        f.append(f"v_add_f32_dpp v{a}, v{a}, v{a} {dp} bank_mask:0xf")
        f.append("s_nop 0")
    f.append(f"v_readlane_b32 s{sS2}, v{b}, 63")
    f.append(f"v_readlane_b32 s{sS1}, v{a}, 63")
    f.append(f"v_fma_f32 v{TT+3}, s{sS2}, v{vINV}, v{vINV+1}" if False else "s_nop 0")
    f.append(f"v_fma_f32 v{TT+3}, s{sS2}, v{vINV}, v{vINV+1}")
    f.append(f"v_mul_f32 v{TT+2}, s{sS1}, v{vINV}")
    f.append(f"v_fma_f32 v{TT+3}, -v{TT+2}, v{TT+2}, v{TT+3}")
    f.append(f"v_max_f32 v{TT+3}, v{vINV+1}, v{TT+3}")
    f.append(f"v_rsq_f32 v{TT+3}, v{TT+3}")
    f.append(f"v_add_f32 v{TT+2}, s{sPIV}, v{TT+2}")
    return f

def xgroup_sum(fold8=False, plain=False):
    if fold8: E(f"v_and_b32 v{vT}, v{vVAL}, v{vT}")
    E(f"v_mov_b32 v{TT+5}, v{vT}")
    E("s_nop 1")
    E(f"v_permlane16_swap_b32 v{vT}, v{TT+5}")
    E(f"v_add_f32 v{vT}, v{vT}, v{TT+5}")
    E(f"v_mov_b32 v{TT+5}, v{vT}")
    E("s_nop 1")
    E(f"v_permlane32_swap_b32 v{vT}, v{TT+5}")
    E(f"v_add_f32 v{vT}, v{vT}, v{TT+5}")
    if fold8:
        E("s_nop 1")
        E(f"v_add_f32_dpp v{vT}, v{vT}, v{vT} row_ror:8 row_mask:0xf bank_mask:0xf")
    if plain: return
    E(f"v_fma_f32 v{vT}, -v{TT+2}, v{vCS}, v{vT}")
    E(f"v_mul_f32 v{vT}, v{vT}, v{TT+3}")

def y_publish():
    xgroup_sum(plain=True)
    E("s_nop 1")
    E(f"v_mov_b32_dpp v{TT+5}, v{vT} quad_perm:[1,1,3,3] row_mask:0xf bank_mask:0xf")
    E("s_mov_b64 exec, 0x5555")
    E(f"v_cvt_pk_bf16_f32 v{vT}, v{vT}, v{TT+5}")
    E(f"v_pk_min_u16 v{vT}, v{vT}, s{sFFFE}")
    E(f"buffer_store_dword v{vT}, v{aP16}, {WSR}, s{sPubG} offen{SFL}")
    E("s_mov_b64 exec, -1")

def pub_resid(off):
    for d in range(4): E(f"v_pk_min_u16 v{TT+7+d}, v{XB+d}, s{sFFFE}")
    pub2("buffer_store_dwordx4", vr(TT+7,4), vL16, sLOC, sMB_f, sMB_s, off)

def read_mode(lo_a, pj=0):
    E(f"v_mov_b32 v{TT}, {FL_LDS}")
    E(f"ds_read_b32 v{TT+1}, v{TT}")
    E("s_waitcnt lgkmcnt(0)")
    E(f"v_readfirstlane_b32 s{sMODE}, v{TT+1}")
    E(f"s_cmp_eq_u32 s{sPJ}, {pj}")
    E(f"s_cselect_b32 s{sT1}, -1, 0")
    E("s_nop 2")
    E(f"s_cmp_eq_u32 s{sMODE}, 1")
    masks(sMA_f, sMA_s, lo_a, "0")
    masks(sMB_f, sMB_s, f"s{sT1}", f"s{sT1}")
    E(f"s_cselect_b32 s{sT1}, 0, {ALT}")
    for s_ in (sLOC, sPoff, sPub):
        E(f"s_add_u32 s{s_}, s{s_}, s{sT1}")

sec("entry")
L("L_D_init")
ROLE[0] = "d"
E(f"s_and_b32 s{sC}, s{sJ}, 7")
E(f"s_lshl_b32 s{sPJ}, s{sC}, 2")
E(f"s_add_u32 s{sPJ}, s{sPJ}, s{sWV}")
E("v_lshrrev_b32 v242, 3, v1")
E("v_and_b32 v243, 7, v1")
def wo_issue():
    E(f"s_lshl_b32 s{sT0}, s{sG}, 19")
    E(f"s_lshl_b32 s{sT1}, s{sC}, 7")
    E(f"s_add_u32 s{sT0}, s{sT0}, s{sT1}")
    E(f"s_sub_u32 s{sT3}, {4194304}, s{sT0}")
    srd(R_A, sWO, f"s{sT0}", f"s{sT3}")
    E("v_and_b32 v245, 2, v242")
    E("v_xor_b32 v245, v245, v243")
    E(f"s_and_b32 s{sT1}, s{sWV}, 1")
    E(f"s_lshl_b32 s{sT1}, s{sT1}, 2")
    E(f"v_xor_b32 v245, s{sT1}, v245")
    E("v_lshlrev_b32 v244, 10, v242")
    E("v_lshl_add_u32 v244, v245, 4, v244")
    E(f"s_lshl_b32 s{sT0}, s{sWV}, 14")
    E(f"s_mov_b32 m0, s{sT0}")
    E(f"s_lshl_b32 s{sT1}, s{sWV}, 17")
    if LATE0 == 1: E("s_waitcnt vmcnt(0)")
    if LATE0 >= 2: E("s_barrier")
    E(f"s_add_u32 s{sT2}, s{sT1}, {16*8192}")
    L("L_D2_wol")
    E(f"buffer_load_dwordx4 v244, s[{R_A}:{R_A+3}], s{sT1} offen{NTW} lds")
    E("s_add_u32 m0, m0, 1024")
    E(f"s_add_u32 s{sT1}, s{sT1}, 8192")
    E(f"s_cmp_lt_u32 s{sT1}, s{sT2}")
    E("s_cbranch_scc1 L_D2_wol")
def clear_global():
    for r in range(4): E(f"v_mov_b32 v{cG+r}, -1")
    E(f"s_mov_b32 s{sT1}, {LS}")
    E(f"v_lshrrev_b32 v{cT}, 3, v2")
    E(f"v_mul_lo_u32 v{cT}, v{cT}, s{sT1}")
    E(f"v_lshl_add_u32 v{cT}, v243, 4, v{cT}")
    E(f"v_lshl_add_u32 v{cT}, v3, 13, v{cT}")
    E(f"s_lshl_b32 s{sT1}, s{sG}, 10")
    E(f"s_lshl_b32 s{sT2}, s{sC}, 7")
    E(f"s_add_u32 s{sT1}, s{sT1}, s{sT2}")
    E(f"s_add_u32 s{sT1}, s{sT1}, {W_Y}")
    E("s_mov_b32 exec_hi, 0")
    E(f"buffer_store_dwordx4 {vr(cG,4)}, v{cT}, {WSR}, s{sT1} offen sc1")
    E("s_mov_b64 exec, -1")

def d2_clear(sc, alt):
    for r in range(4): E(f"v_mov_b32 v{cG+r}, -1")
    E(f"s_lshl_b32 s{sT1}, s{sC}, 11")
    E(f"s_add_u32 s{sT1}, s{sT1}, s{sPoff}")
    if alt: E(f"s_add_u32 s{sT1}, s{sT1}, {ALT}")
    E(f"s_add_u32 s{sT2}, s{sT1}, {LS}")
    for so in (sT1, sT2):
        for o in range(2):
            E(f"buffer_store_dwordx4 {vr(cG,4)}, v{cL16}, {WSR}, s{so} offen offset:{1024*o}{sc}")
    E(f"s_mov_b32 s{sT1}, {LS}")
    E(f"v_lshrrev_b32 v{cT}, 5, v1")
    E(f"v_mul_lo_u32 v{cT}, v{cT}, s{sT1}")
    E(f"v_and_b32 v{cT+1}, 31, v1")
    E(f"v_lshl_add_u32 v{cT}, v{cT+1}, 4, v{cT}")
    E(f"s_lshl_b32 s{sT1}, s{sC}, 9")
    E(f"s_add_u32 s{sT1}, s{sT1}, s{sLOC}")
    if alt: E(f"s_add_u32 s{sT1}, s{sT1}, {ALT}")
    E(f"buffer_store_dwordx4 {vr(cG,4)}, v{cT}, {WSR}, s{sT1} offen{sc}")
E(f"s_cmp_lt_u32 s{sJ}, 24")
E("s_cbranch_scc1 L_D_const")
E(f"s_cmp_lg_u32 s{sWV}, 4")
E("s_cbranch_scc1 L_D2_e1")
d2_clear("", False)
E("s_branch L_D2_init")
L("L_D2_e1")
E(f"s_cmp_lg_u32 s{sWV}, 5")
E("s_cbranch_scc1 L_D2_e2")
clear_global()
E("s_branch L_D2_init")
L("L_D2_e2")
E(f"s_cmp_ge_u32 s{sWV}, 4")
E("s_cbranch_scc1 L_D2_init")
if LATE0 == 0: wo_issue()
else:
    E(f"s_lshl_b32 s{sT0}, s{sG}, 19")
    srd(R_A, sWO, f"s{sT0}", 1 << 19)
    E(f"buffer_load_dword v255, v{cL16}, s[{R_A}:{R_A+3}], 0 offen")
sec("dinit")
L("L_D_const")
E("v_mov_b32 v245, 0")
E("v_mov_b32 v244, 0")
srd(R_B, sX, None, 1024)
E(f"v_lshrrev_b32 v{TT}, 1, v3")
E(f"v_and_b32 v{TT+1}, 1, v3")
E(f"v_lshlrev_b32 v{aXIO}, 8, v{TT}")
E(f"v_lshl_add_u32 v{aXIO}, v2, 4, v{aXIO}")
E(f"v_lshl_add_u32 v{aXIO}, v{TT+1}, 3, v{aXIO}")
E(f"buffer_load_dwordx2 {vr(XB,2)}, v{aXIO}, s[{R_B}:{R_B+3}], 0 offen")
E(f"buffer_load_dwordx2 {vr(XB+2,2)}, v{aXIO}, s[{R_B}:{R_B+3}], 0 offen offset:512")
E(f"v_lshlrev_b32 v{vL16}, 4, v1")
E(f"v_lshrrev_b32 v{TT+2}, 2, v2")
E(f"v_and_b32 v{TT+3}, 3, v2")
E(f"v_lshl_add_u32 v{TT+4}, v{TT}, 7, v{TT+2}")
E(f"v_lshl_add_u32 v{TT+4}, v{TT+1}, 2, v{TT+4}")
E(f"v_lshlrev_b32 v{aP16}, 1, v2")
E(f"v_lshrrev_b32 v{aPY}, 5, v1")
E(f"v_lshlrev_b32 v{aPY}, 4, v{aPY}")
E(f"v_add_u32 v{aXS}, {XS_LDS}, v{vL16}")
E(f"v_mov_b32 v{vONE}, 1.0")
for d in range(4): E(f"v_mov_b32 v{ONESB+d}, 0x3f803f80")
E(f"v_and_b32 v{TT+5}, 1, v2")
E(f"v_lshlrev_b32 v{TT+5}, 4, v{TT+5}")
E(f"v_mov_b32 v{TT+6}, 0x3f80")
E(f"v_lshlrev_b32 v{TT+6}, v{TT+5}, v{TT+6}")
E(f"v_lshrrev_b32 v{TT+7}, 1, v2")
E(f"v_lshlrev_b32 v{aGX}, 10, v3")
E(f"v_lshl_add_u32 v{aGX}, v2, 4, v{aGX}")
for d in range(8):
    E(f"v_cmp_eq_u32 vcc, {d}, v{TT+7}")
    E("s_nop 1")
    E(f"v_cndmask_b32 v{SEL0+d}, 0, v{TT+6}, vcc")
E(f"s_mov_b32 s{sFFFE}, 0xfffefffe")
E(f"v_mov_b32 v{vINV}, {f32(1/512)}")
E(f"v_mov_b32 v{vINV+1}, {f32(1e-5)}")
E(f"s_mov_b32 s{sC3}, {f32(-math.log2(math.e))}")
E(f"s_lshl_b32 s{sT1}, s{sPJ}, 5")
E(f"s_lshl_b32 s{sPubG}, s{sG}, 10")
E(f"s_add_u32 s{sPubG}, s{sPubG}, s{sT1}")
E(f"s_lshl_b32 s{sT2}, s{sWV}, 5")
E(f"s_cmp_ge_u32 s{sJ}, 24")
E("s_cbranch_scc1 L_D2_comp")

def ctl_head():
    E("s_waitcnt vmcnt(0)")
    E(f"v_readfirstlane_b32 s{sTAG}, v241")
    for r in range(4): E(f"v_mov_b32 v{cG+r}, -1")
    E(f"s_add_u32 s{sTAG}, s{sTAG}, 1")
E(f"s_lshl_b32 s{sT0}, s{sG}, 10")
E(f"s_lshl_b32 s{sT1}, s{sC}, 7")
E(f"s_add_u32 s{sT0}, s{sT0}, s{sT1}")
E(f"s_sub_u32 s{sT3}, {4194304}, s{sT0}")
srd(R_A, sWQ, f"s{sT0}", f"s{sT3}")
E("v_and_b32 v245, 6, v242")
E("v_xor_b32 v245, v245, v243")
E("v_lshlrev_b32 v244, 13, v242")
E("v_lshl_add_u32 v244, v245, 4, v244")
E(f"s_cmp_ge_u32 s{sWV}, 4")
E("s_cbranch_scc1 L_D1_help")
if TQ: E("s_waitcnt vmcnt(0)")
stamp(1)
E(f"s_lshl_b32 s{sT0}, s{sWV}, 14")
E(f"s_mov_b32 m0, s{sT0}")
E(f"s_lshl_b32 s{sT1}, s{sWV}, 20")
E(f"s_add_u32 s{sT3}, s{sT1}, {16*65536}")
L("L_D1_wql")
E(f"buffer_load_dwordx4 v244, s[{R_A}:{R_A+3}], s{sT1} offen{NTW} lds")
E("s_add_u32 m0, m0, 1024")
E(f"s_add_u32 s{sT1}, s{sT1}, 65536")
E(f"s_cmp_lt_u32 s{sT1}, s{sT3}")
E("s_cbranch_scc1 L_D1_wql")
sec("d1")
E(f"v_bfe_u32 v{TT+5}, v{TT+4}, 1, 2")
E(f"v_xor_b32 v{TT+5}, s{sWV}, v{TT+5}")
E(f"v_lshlrev_b32 v{aTA}, 7, v{TT+4}")
E(f"v_lshl_add_u32 v{aTA}, v{TT+3}, 3, v{aTA}")
E(f"v_lshl_add_u32 v{aTA}, v{TT+5}, 5, v{aTA}")
if not TQ: E("s_waitcnt vmcnt(16)")
E(f"v_lshl_add_u32 v{aTB}, v3, 3, v{TT+2}")
E(f"v_lshlrev_b32 v{aTB}, 7, v{aTB}")
E(f"v_lshl_add_u32 v{aTB}, v{TT+3}, 3, v{aTB}")
E(f"s_add_u32 s{sT2}, s{sT2}, {WB_LDS}")
E(f"v_add_u32 v{aTB}, s{sT2}, v{aTB}")
E(f"v_min_u32 v{aIN}, 6, v2")
E(f"v_lshlrev_b32 v{aIN}, 6, v{aIN}")
E(f"v_lshl_add_u32 v{aIN}, v3, 4, v{aIN}")
E(f"v_readfirstlane_b32 s{sTAG}, v241")
E(f"s_add_u32 s{sPubG}, s{sPubG}, {W_Z}")
E(f"s_mov_b32 s{sZoff}, {W_Z}")
E(f"s_lshl_b32 s{sT1}, s{sPJ}, 5")
E(f"s_add_u32 s{sPub}, s{sLOC}, s{sT1}")
srd(R_B, sOUT, None, 1024)
E(f"s_add_u32 s{sTAG}, s{sTAG}, 1")
for x in stats_fillers(): E(x)
for i in range(8): E(f"v_sub_f32 v{XN+i}, v{XR+i}, v{TT+2}")
for i in range(8): E(f"v_mul_f32 v{XN+i}, v{XN+i}, v{TT+3}")
for d in range(4): E(f"v_cvt_pk_bf16_f32 v{GB+d}, v{XN+2*d}, v{XN+2*d+1}")
E(f"v_mov_b32 v{vT}, 0")
D0 = GB + 12
E(f"v_mov_b32 v{D0+1}, s{sTAG}")
E(f"s_lshl_b32 s{sT1}, s{sPJ}, 6")
E(f"v_lshl_add_u32 v{TT+6}, v2, 2, s{sT1}")
E("s_waitcnt vmcnt(0)")
E("s_barrier")
amp("wq")
stamp(2)
for s in range(16):
    for e in range(2):
        E(f"ds_read_b64_tr_b16 {vr(WA+4*s+2*e,2)}, v{aTA} offset:{32768*e+1024*s}")
matvec(16, GB, WA, [], per=PN, waits=True)
xgroup_sum(plain=True)
E("s_nop 1")
E(f"v_mov_b32_dpp v{TT+5}, v{vT} quad_perm:[1,1,3,3] row_mask:0xf bank_mask:0xf")
E(f"v_cvt_pk_bf16_f32 v{D0}, v{vT}, v{TT+5}")
E("s_mov_b64 exec, 0x5555")
E(f"buffer_store_dwordx2 {vr(D0,2)}, v{TT+6}, {WSR}, s{sQ0} offen")
E("s_mov_b64 exec, -1")
stamp(3, True)
E(f"v_mov_b32 v{TT+7}, 0")
E(f"buffer_load_dword v{GB+20}, v{TT+7}, s[{R_B}:{R_B+3}], 0 offen")
for s in range(16):
    c = "0" if s == 0 else vr(CA,4)
    E(f"v_mfma_f32_16x16x32_bf16 {vr(CA,4)}, {vr(ONESB,4)}, {vr(WA+4*s,4)}, {c}")
E("s_nop 7")
E(f"v_mov_b32 v{vCS}, v{CA}")
E("s_barrier")
amp("st")
read_mode("0xffff")
E(f"s_mov_b32 s{sT1}, 0x5555")
E(f"s_cmp_eq_u32 s{sMODE}, 1")
E(f"s_cselect_b32 exec_lo, 0, s{sT1}")
E("s_mov_b32 exec_hi, 0")
E(f"buffer_store_dwordx2 {vr(D0,2)}, v{TT+6}, {WSR}, s{sQ0B} offen sc1")
E("s_mov_b64 exec, -1")
E("s_barrier")
for s in range(7):
    for e in range(2):
        E(f"ds_read_b64_tr_b16 {vr(WB+4*s+2*e,2)}, v{aTB} offset:{4096*s+512*e}")
E("s_waitcnt lgkmcnt(0)")
E("s_branch L_D1_act")
L("L_D1_q")
mark("d1")
matvec(16, XB, WA, stats_fillers())
xgroup_sum()
E(f"v_cvt_pk_bf16_f32 v{vT}, v{vT}, v{vT}")
E(f"v_min_u32 v{vT}, -2, v{vT}")
pub2("buffer_store_short", f"v{vT}", aP16, sPub, sMA_f, sMA_s, W_Q)
stamp(3, True)
pub_resid(W_X2)
L("L_D1_act")
mark("d1")
AIN = vST
arm(AIN, 4)
E(f"buffer_load_dwordx4 {vr(CA,4)}, v{vL16}, {WSR}, s{sLOC} offen offset:{W_X1} sc1")
E(f"v_mov_b32 v{vT}, 0")
gather1("ga", AIN, aIN, sLOC, W_ACT, TT)
amp("act")
stamp(4, True)
E(f"buffer_load_dwordx4 {vr(CA,4)}, v{vL16}, {WSR}, s{sLOC} offen offset:{W_X1} sc1")
matvec(7, AIN, WB, [], per=PN)
y_publish()
stamp(5, True)
E(f"s_add_u32 s{sLAY}, s{sLAY}, 1")
E(f"s_cmp_lt_u32 s{sLAY}, 2")
E("s_cbranch_scc1 L_D1_z")
E(f"s_cmp_lg_u32 s2, 128")
E("s_cbranch_scc1 L_D1_end")
E(f"s_cmp_lg_u32 s{sWV}, 0")
E("s_cbranch_scc1 L_D1_end")
L("L_D1_z")
mark("d1")
def pre_z():
    E("s_waitcnt vmcnt(1)")
    chk_bf16(CA, TT)
    E("s_cbranch_vccz L_gx1_have")
    gather1("gx1", CA, vL16, sLOC, W_X1, TT, pd=1, slp=0)
    L("L_gx1_have")
    unpack_resid(CA)
def relay_z():
    E(f"v_mov_b32 v{vT}, 0")
    E(f"s_cmp_lg_u32 s{sWV}, 0")
    E(f"s_cbranch_scc1 L_gz_other")
    pre_z()
    gather_X("gz", sZoff, "d1")
    E(f"s_cmp_eq_u32 s{sLAY}, 2")
    E("s_cbranch_scc1 L_D1_out")
    E(f"ds_write_b128 v{aXS}, {vr(XB,4)}")
    E("s_waitcnt lgkmcnt(0)")
    E("s_barrier")
    E(f"s_branch L_gz_join")
    L(f"L_gz_other")
    E("s_waitcnt vmcnt(0)")
    E("s_barrier")
    E(f"ds_read_b128 {vr(XB,4)}, v{aXS}")
    E("s_waitcnt lgkmcnt(0)")
    L("L_gz_join")
relay_z()
stamp(6)
for s_ in (sLOC, sPub, sPubG, sZoff):
    E(f"s_add_u32 s{s_}, s{s_}, {LS}")
E("s_branch L_D1_q")
L("L_D1_out")
E(f"buffer_store_dwordx2 {vr(XB,2)}, v{aXIO}, s[{R_B}:{R_B+3}], 0 offen")
E(f"buffer_store_dwordx2 {vr(XB+2,2)}, v{aXIO}, s[{R_B}:{R_B+3}], 0 offen offset:512")
E(f"v_mov_b32 v{TT}, s{sTAG}")
E(f"v_mov_b32 v{TT+1}, {W_EP}")
E("s_mov_b64 exec, 1")
E(f"buffer_store_dword v{TT}, v{TT+1}, {WSR}, 0 offen")
if AMP:
    E("s_memrealtime s[88:89]")
    E("s_waitcnt lgkmcnt(0)")
    if AMP == "end": E("s_mov_b32 s94, s88")
    E("s_sub_u32 s94, s94, s86")
    if AMP.startswith("x"):
        E(f"v_mov_b32 v253, {W_EP + 64}")
        E(f"buffer_load_dword v252, v253, {WSR}, 0 offen sc1")
        E("s_waitcnt vmcnt(0)")
        E("v_readfirstlane_b32 s94, v252")
        E("s_nop 3")
        E("s_sub_u32 s94, s94, s86")
        E("s_add_u32 s94, s94, 100")
        E("s_max_i32 s94, s94, 0")
    E("s_lshl_b32 s94, s94, 2")
    E("s_min_u32 s94, s94, 20000")
    E("s_add_u32 s94, s94, s88")
    L("L_amp_spin")
    E("s_memrealtime s[88:89]")
    E("s_waitcnt lgkmcnt(0)")
    E("s_sub_u32 s89, s94, s88")
    E("s_cmp_gt_i32 s89, 0")
    E("s_cbranch_scc1 L_amp_spin")
if PROF:
    stamp(7)
    E("s_waitcnt vmcnt(0)")
    stamp(8)
L("L_D1_end")
stamp_flush(0, 0, (128, 4, [60, 2, 3, 4, 6, 20, 8]))
E("s_endpgm")
sec("help")
L("L_D1_help")
E(f"s_mul_i32 s{sT0}, s{sG}, {224*1024}")
E(f"s_lshl_b32 s{sT1}, s{sC}, 7")
E(f"s_add_u32 s{sT0}, s{sT0}, s{sT1}")
srd(R_B, sW2, f"s{sT0}", 224*1024 - 896)
E("v_lshlrev_b32 v244, 10, v242")
E("v_lshl_add_u32 v244, v243, 4, v244")
E(f"s_cmp_eq_u32 s{sWV}, 4")
E("s_cbranch_scc1 L_D1_ctl")
if not W2P: E(f"buffer_load_dword v255, v244, s[{R_B}:{R_B+3}], 0 offen")
for u in range(3):
    E(f"s_cmp_lg_u32 s{sWV}, {5+u}")
    E(f"s_cbranch_scc1 L_D1_wm{u}")
    warm("d1", u, 3)
    L(f"L_D1_wm{u}")
E("s_branch L_D1_bq")
L("L_D1_ctl")
E(f"v_lshlrev_b32 v{cT}, 7, v2")
E(f"buffer_load_dword v240, v{cT}, {WSR}, s{sQ0} offen sc1")
ctl_head()
xc_publish()
L("L_D1_bq")
E("s_barrier")
E(f"s_cmp_lg_u32 s{sWV}, 4")
E("s_cbranch_scc1 L_D1_w2")
first_gather("d1x", False, None)
stamp(3)
E(f"v_lshlrev_b32 v{cT}, 3, v1")
E(f"s_cmp_eq_u32 s{sMODE}, 1")
E("s_cbranch_scc0 L_D1_b2")
L("L_D1_st")
E(f"buffer_load_dword v{cT+1}, v{cT}, {WSR}, s{sLOC} offen offset:{W_ST} sc1")
E("s_waitcnt vmcnt(0)")
E(f"v_cmp_ne_u32 vcc, -1, v{cT+1}")
E("s_cbranch_vccnz L_D1_b2")
E("s_sleep 8")
spin_check("L_D1_st")
L("L_D1_b2")
E("s_waitcnt lgkmcnt(0)")
L("L_D1_w2")
E("s_barrier")
E(f"s_sub_u32 s{sT0}, s{sWV}, 4")
E(f"s_mul_i32 s{sT1}, s{sT0}, 7168")
E(f"s_add_u32 m0, s{sT1}, {WB_LDS}")
E(f"s_mul_i32 s{sT1}, s{sT0}, {56*1024}")
for i in range(7):
    E(f"buffer_load_dwordx4 v244, s[{R_B}:{R_B+3}], s{sT1} offen{NTW} lds")
    if i < 6:
        E("s_add_u32 m0, m0, 1024")
        E(f"s_add_u32 s{sT1}, s{sT1}, 8192")
E("s_waitcnt vmcnt(0) lgkmcnt(0)")
stamp(4)
E("s_barrier")
stamp_flush(4, 1)
E("s_endpgm")

L("L_D2_init")
E(f"s_min_u32 s{sT1}, s{sC}, 6")
E(f"s_lshl_b32 s{sT1}, s{sT1}, 6")
E(f"s_mul_i32 s{sT0}, s{sG}, 448")
E(f"s_add_u32 s{sS1}, s{sT0}, s{sT1}")
E(f"s_sub_u32 s{sT3}, {1835008}, s{sS1}")
srd(R_B, sW1, f"s{sS1}", f"s{sT3}")
srd(R_C, sDBG, None, 256)
E(f"s_cmp_eq_u32 s{sWV}, 4")
E("s_cbranch_scc1 L_D2_ctl")
E(f"s_cmp_eq_u32 s{sWV}, 5")
E("s_cbranch_scc1 L_D2_flag")
E("v_lshrrev_b32 v245, 2, v1")
E("v_mul_u32_u24 v245, 3584, v245")
E("v_and_b32 v246, 3, v1")
E("v_and_b32 v247, 1, v3")
E("v_xor_b32 v246, v246, v247")
E("v_lshl_add_u32 v244, v246, 4, v245")
E("v_xor_b32 v246, 2, v246")
E("v_lshl_add_u32 v245, v246, 4, v245")
E(f"s_sub_u32 s{sT0}, s{sWV}, 6")
E(f"s_lshl_b32 s{sT1}, s{sT0}, 14")
E(f"s_add_u32 m0, s{sT1}, {WB_LDS}")
E(f"s_mul_i32 s{sT1}, s{sT0}, {256*3584}")
if W1L == 2:
    E(f"buffer_load_dword v255, v244, s[{R_B}:{R_B+3}], s{sT1} offen")
    E(f"s_add_u32 s{sT2}, s{sT1}, {240*3584}")
    E(f"buffer_load_dword v255, v244, s[{R_B}:{R_B+3}], s{sT2} offen")
for u in range(2):
    E(f"s_cmp_lg_u32 s{sWV}, {6+u}")
    E(f"s_cbranch_scc1 L_D2_wm{u}")
    warm("d2", u, 2)
    L(f"L_D2_wm{u}")
if LATE0 >= 2 or W1L == 1: E("s_barrier")
if W1L == 2:
    E("s_barrier")
    E(f"v_mov_b32 v{cT}, {FL_LDS}")
    E(f"ds_read_b32 v{cT+1}, v{cT}")
    E(f"v_lshlrev_b32 v{cT}, 3, v1")
    E("s_waitcnt lgkmcnt(0)")
    E(f"v_cmp_ne_u32 vcc, 1, v{cT+1}")
    E("s_cbranch_vccnz L_D2_w1go")
    L("L_D2_w1st")
    E(f"buffer_load_dword v{cT+1}, v{cT}, {WSR}, s{sLOC} offen offset:{W_ST} sc1")
    E("s_waitcnt vmcnt(0)")
    E(f"v_cmp_ne_u32 vcc, -1, v{cT+1}")
    if W1N > 1:
        E(f"s_bcnt1_i32_b64 s{sT2}, vcc")
        E(f"s_cmp_ge_u32 s{sT2}, {4*W1N}")
        E("s_cbranch_scc1 L_D2_w1go")
    else: E("s_cbranch_vccnz L_D2_w1go")
    E("s_sleep 2")
    spin_check("L_D2_w1st")
    L("L_D2_w1go")
for i in range(16):
    E(f"buffer_load_dwordx4 v{244 + (i//4) % 2}, s[{R_B}:{R_B+3}], s{sT1} offen{NTW} lds")
    if i < 15:
        E("s_add_u32 m0, m0, 1024")
        E(f"s_add_u32 s{sT1}, s{sT1}, {16*3584}")
E("s_waitcnt vmcnt(0)")
stamp(4)
E("s_barrier")
stamp_flush(6, 2)
E("s_endpgm")
L("L_D2_flag")
E(f"s_lshl_b32 s{sT1}, s{sG}, 5")
E(f"s_lshl_b32 s{sT2}, s{sC}, 2")
E(f"s_add_u32 s{sT1}, s{sT1}, s{sT2}")
E(f"v_mov_b32 v{cT}, 1")
E(f"v_mov_b32 v{cT+1}, s{sT1}")
E(f"v_lshlrev_b32 v{cT+2}, 2, v1")
E("s_waitcnt vmcnt(0)")
E("s_mov_b64 exec, 1")
E(f"buffer_store_dword v{cT}, v{cT+1}, s[{R_C}:{R_C+3}], 0 offen sc1")
E("s_mov_b64 exec, -1")
if LATE0 >= 2 or W1L == 1: E("s_barrier")
E("s_waitcnt vmcnt(0)")
L("L_D2_fpoll")
E(f"buffer_load_dword v{cT+3}, v{cT+2}, s[{R_C}:{R_C+3}], 0 offen sc1")
E("s_waitcnt vmcnt(0)")
E(f"v_cmp_ne_u32 vcc, 1, v{cT+3}")
E("s_cbranch_vccz L_D2_fok")
E("s_sleep 8")
spin_check("L_D2_fpoll")
L("L_D2_fok")
E("s_barrier")
E("s_endpgm")
L("L_D2_ctl")
ctl_head()
stamp(1)
xc_publish()
first_gather("d2x", False, lambda: d2_clear(" sc1", True))
stamp(2)
if LATE0 == 3:
    E(f"v_lshlrev_b32 v{cT}, {'3' if STW else '2'}, v1")
    E(f"s_cmp_eq_u32 s{sMODE}, 1")
    E("s_cbranch_scc0 L_D2_go")
    L("L_D2_st")
    if STW:
        E(f"buffer_load_dword v{cT+1}, v{cT}, {WSR}, s{sLOC} offen offset:{W_ST} sc1")
        E("s_waitcnt vmcnt(0)")
        E(f"v_cmp_ne_u32 vcc, -1, v{cT+1}")
    E("s_cbranch_vccnz L_D2_go")
    E("s_sleep 2")
    spin_check("L_D2_st")
    L("L_D2_go")
    stamp(3)
E("s_waitcnt lgkmcnt(0)")
if LATE0 >= 2 or W1L == 1: E("s_barrier")
E("s_barrier")
stamp_flush(4, 1)
E("s_endpgm")
sec("d2")
L("L_D2_comp")
E(f"s_min_u32 s{sT1}, s{sC}, 6")
E(f"s_lshl_b32 s{sT1}, s{sT1}, 6")
E(f"s_mul_i32 s{sT0}, s{sG}, 448")
E(f"s_add_u32 s{sS1}, s{sT0}, s{sT1}")
if LATE0: wo_issue()
if W1L == 1 and LATE0 < 2: E("s_barrier")
srd(R_C, sB1, None, 3584)
E(f"v_and_b32 v{TT+5}, 7, v2")
E(f"v_lshlrev_b32 v{TT+5}, 1, v{TT+5}")
E(f"s_lshl_b32 s{sT1}, s{sWV}, 4")
E(f"s_add_u32 s{sT0}, s{sS1}, s{sT1}")
E(f"buffer_load_ushort v{vB1}, v{TT+5}, s[{R_C}:{R_C+3}], s{sT0} offen")
E(f"v_lshrrev_b32 v{TT+5}, 1, v{TT+2}")
E(f"v_lshl_add_u32 v{TT+5}, v{TT+1}, 1, v{TT+5}")
E(f"v_xor_b32 v{TT+5}, s{sWV}, v{TT+5}")
E(f"v_lshl_add_u32 v{aTA}, v3, 7, v{TT+2}")
E(f"v_lshlrev_b32 v{aTA}, 7, v{aTA}")
E(f"v_lshl_add_u32 v{aTA}, v{TT+3}, 3, v{aTA}")
E(f"v_lshl_add_u32 v{aTA}, v{TT+5}, 5, v{aTA}")
E(f"v_bfe_u32 v{TT+5}, v2, 1, 1")
E(f"v_lshl_add_u32 v{TT+6}, v{TT+5}, 6, v{TT+4}")
E(f"v_lshl_add_u32 v{TT+5}, v{TT+5}, 1, v{TT+1}")
E(f"v_xor_b32 v{TT+5}, s{sWV}, v{TT+5}")
E(f"v_lshlrev_b32 v{aTB}, 6, v{TT+6}")
E(f"v_lshl_add_u32 v{aTB}, v{TT+5}, 4, v{aTB}")
E(f"v_and_b32 v{TT+5}, 1, v2")
E(f"v_lshl_add_u32 v{aTB}, v{TT+5}, 3, v{aTB}")
E(f"v_add_u32 v{aTB}, {WB_LDS}, v{aTB}")
E(f"s_lshl_b32 s{sT1}, s{sWV}, 7")
E(f"v_lshlrev_b32 v{aST}, 5, v3")
E(f"v_add_u32 v{aST}, s{sT1}, v{aST}")
E(f"v_lshlrev_b32 v{aOS}, 4, v2")
E(f"v_lshl_add_u32 v{aOS}, v{TT+1}, 3, v{aOS}")
E(f"v_lshl_add_u32 v{aOS}, v{TT}, 2, v{aOS}")
E(f"s_lshl_b32 s{sT1}, s{sWV}, 8")
E(f"s_add_u32 s{sT1}, s{sT1}, {OS_LDS}")
E(f"v_add_u32 v{aOS}, s{sT1}, v{aOS}")
E(f"v_add_u32 v{aIN}, {OS_LDS}, v{vL16}")
E(f"v_lshlrev_b32 v{TT+5}, 4, v{TT+5}")
E(f"v_mov_b32 v{TT+6}, 0xffff")
E(f"v_lshlrev_b32 v{TT+6}, v{TT+5}, v{TT+6}")
E(f"v_bfe_u32 v{TT+7}, v2, 1, 2")
for d in range(4):
    E(f"v_cmp_eq_u32 vcc, {d}, v{TT+7}")
    E("s_nop 1")
    E(f"v_cndmask_b32 v{MK+d}, 0, v{TT+6}, vcc")
E(f"v_lshrrev_b32 v{vFLG}, 3, v2")
E(f"v_cmp_eq_u32 vcc, v{vFLG}, v{TT}")
E(f"v_cvt_f32_u32 v{vFLG}, v{vFLG}")
E("s_nop 0")
E(f"v_cndmask_b32 v{vVAL}, 0, -1, vcc")
E(f"s_lshl_b32 s{sT1}, s{sWV}, 12")
E(f"s_add_u32 s{sPoff}, s{sPoff}, s{sT1}")
E(f"s_lshl_b32 s{sT1}, s{sPJ}, 4")
E(f"s_add_u32 s{sPub}, s{sLOC}, s{sT1}")
E(f"s_add_u32 s{sPubG}, s{sPubG}, {W_Y}")
E(f"s_mov_b32 s{sYoff}, {W_Y}")
E(f"s_mov_b32 s{sC2}, 0")
E("s_waitcnt vmcnt(0)")
unpack_resid(XB)
E(f"v_lshlrev_b32 v{vB1}, 16, v{vB1}")
stamp(1)
E("s_barrier")
stamp(2)
ampx("xw", 0)
for s in range(16):
    for e in range(2):
        E(f"ds_read_b64_tr_b16 {vr(WA+4*s+2*e,2)}, v{aTA} offset:{1024*s+512*e}")
def w1_frags():
    for s in range(8):
        for e in range(2):
            E(f"ds_read_b64_tr_b16 {vr(WB+4*s+2*e,2)}, v{aTB} offset:{16384*e+512*s}")
def w1_sums():
    for s in range(8):
        c = "0" if s == 0 else vr(ACC,4)
        E(f"v_mfma_f32_16x16x32_bf16 {vr(ACC,4)}, {vr(ONESB,4)}, {vr(WB+4*s,4)}, {c}")
    E("s_nop 7")
    E(f"v_add_f32_dpp v{vCS}, v{ACC}, v{ACC} row_ror:8 row_mask:0xf bank_mask:0xf")
if W1L != 2: w1_frags()
read_mode("0xff", 28)
if W1L != 2: w1_sums()
L("L_D2_loop")
mark("d2")
def p_loads():
    for i in range(4):
        E(f"buffer_load_dwordx4 {vr(GB+4*i,4)}, v{vL16}, {WSR}, s{sPoff} offen offset:{1024*i} sc1")
arm(vST, 8)
p_loads()
L("L_gs_poll")
E(f"buffer_load_dwordx4 {vr(vST,4)}, v{aST}, {WSR}, s{sLOC} offen offset:{W_ST} sc1")
E(f"buffer_load_dwordx4 {vr(vST+4,4)}, v{aST}, {WSR}, s{sLOC} offen offset:{W_ST+16} sc1")
E(f"s_waitcnt vmcnt({2*(PD-1)})")
E(f"v_max3_u32 v{TT}, v{vST}, v{vST+1}, v{vST+2}")
E(f"v_max3_u32 v{TT+1}, v{vST+3}, v{vST+4}, v{vST+5}")
E(f"v_max3_u32 v{TT}, v{TT}, v{vST+6}, v{vST+7}")
E(f"v_max_u32 v{TT}, v{TT}, v{TT+1}")
E(f"v_cmp_eq_u32 vcc, -1, v{TT}")
E("s_cbranch_vccz L_gs_ok")
if SLP: E(f"s_sleep {SLP}")
spin_check("L_gs_poll")
L("L_gs_ok")
p_loads()
stamp(3, True)
vM, vU, vLs = TT, TT+1, TT+2
WT = TT + 3
AW = GB + 16
E(f"v_max3_f32 v{vM}, v{vST}, v{vST+2}, v{vST+4}")
E(f"v_max_f32 v{vM}, v{vM}, v{vST+6}")
for sw in ("16", "32"):
    E(f"v_mov_b32 v{vU}, v{vM}")
    E("s_nop 1")
    E(f"v_permlane{sw}_swap_b32 v{vM}, v{vU}")
    E(f"v_max_f32 v{vM}, v{vM}, v{vU}")
for t in range(4): E(f"v_sub_f32 v{WT+t}, v{vST+2*t}, v{vM}")
for t in range(4): E(f"v_exp_f32 v{WT+t}, v{WT+t}")
E("s_nop 0")
E(f"v_mul_f32 v{vLs}, v{WT}, v{vST+1}")
for t in range(1, 4): E(f"v_fmac_f32 v{vLs}, v{WT+t}, v{vST+2*t+1}")
for sw in ("16", "32"):
    E(f"v_mov_b32 v{vU}, v{vLs}")
    E("s_nop 1")
    E(f"v_permlane{sw}_swap_b32 v{vLs}, v{vU}")
    E(f"v_add_f32 v{vLs}, v{vLs}, v{vU}")
E(f"v_rcp_f32 v{vLs}, v{vLs}")
p_loads()
for t in range(4): E(f"v_mul_f32 v{WT+t}, v{WT+t}, v{vLs}")
for t in range(4): E(f"v_cvt_pk_bf16_f32 v{WT+4+t}, v{WT+t}, v{WT+t}")
for t in range(4): E(f"v_and_b32 v{WT+4+t}, 0xffff0000, v{WT+4+t}")
for t in range(4): E(f"v_fma_f32 v{WT+t}, -v{WT+4+t}, v{vFLG}, v{WT+t}")
for t in range(4): E(f"v_cvt_pk_bf16_f32 v{WT+t}, v{WT+t}, v{WT+t}")
for t in range(4):
    for d in range(4): E(f"v_and_b32 v{AW+4*t+d}, v{MK+d}, v{WT+t}")
E("s_branch L_gp_use")
L("L_gp_nan")
E(f"s_sub_u32 s{sSPIN}, s{sSPIN}, 1")
E("s_cbranch_scc1 L_exit")
E(f"s_and_b32 s{sT1}, s{sSPIN}, 15")
E("s_cbranch_scc0 L_gp_retry")
L("L_gp_again")
p_loads()
L("L_gp_use")
E("s_waitcnt vmcnt(4)")
for t in range(4):
    E(f"v_mfma_f32_16x16x32_bf16 {vr(CA,4)}, {vr(AW+4*t,4)}, {vr(GB+4*t,4)}, {'0' if t == 0 else vr(CA,4)}")
E("s_nop 7")
E(f"v_cmp_u_f32 vcc, v{CA}, v{CA}")
E(f"v_permlane32_swap_b32 v{CA}, v{CA+2}")
E(f"v_permlane32_swap_b32 v{CA+1}, v{CA+3}")
E("s_cbranch_vccnz L_gp_nan")
L("L_gp_ok")
E(f"v_add_f32 v{CA}, v{CA}, v{CA+2}")
E(f"v_add_f32 v{CA+1}, v{CA+1}, v{CA+3}")
E(f"v_cvt_pk_bf16_f32 v{CA}, v{CA}, v{CA+1}")
E(f"ds_write_b32 v{aOS}, v{CA}")
E(f"v_mov_b32 v{vT}, 0")
stamp(4, True)
mark("d2")
E("s_waitcnt lgkmcnt(0)")
E("s_barrier")
E(f"ds_read_b128 {vr(XB,4)}, v{aIN}")
E(f"buffer_load_dwordx4 {vr(CA,4)}, v{vL16}, {WSR}, s{sLOC} offen offset:{W_X2} sc1")
E("s_waitcnt lgkmcnt(0)")
matvec(16, XB, WA, [], per=PN)
y_publish()
stamp(5, True)
ampx("xy", 0)
if W1L == 2:
    E(f"s_cmp_lg_u32 s{sLAY}, 0")
    E("s_cbranch_scc1 L_D2_havew1")
    w1_frags()
    E("s_waitcnt lgkmcnt(0)")
    w1_sums()
    L("L_D2_havew1")
def pre_y():
    E(f"s_cmp_eq_u32 s{sLAY}, 0")
    E("s_cbranch_scc1 L_D2_havex")
    E("s_waitcnt vmcnt(1)")
    chk_bf16(CA, TT)
    E("s_cbranch_vccz L_gx2_have")
    gather1("gx2", CA, vL16, sLOC, W_X2, TT, pd=1, slp=0)
    L("L_gx2_have")
    unpack_resid(CA)
    L("L_D2_havex")
relay_X("gy", sYoff, pre_y)
stamp(6, True)
ampx("xz", 0)
E(f"s_cmp_eq_u32 s{sC}, 7")
E("s_cbranch_scc1 L_D2_x1")
matvec(8, XB, WB, stats_fillers(), rows=[(0x5, 0xf, [0,1,2,3]), (0xa, 0xf, [4,5,6,7])], per=PER+2)
mark("d2")
xgroup_sum(True)
h, u, a, b = vT, TT+5, TT+6, TT+7
E(f"v_add_f32 v{h}, v{h}, v{vB1}")
E(f"v_mul_f32 v{u}, s{sC3}, |v{h}|")
E(f"v_exp_f32 v{u}, v{u}")
E(f"v_cmp_le_f32 vcc, 0, v{h}")
E(f"v_add_f32 v{b}, 2.0, v{u}")
E(f"v_fma_f32 v{a}, v{u}, 2.0, 1.0")
E(f"v_mul_f32 v{b}, v{u}, v{b}")
E(f"v_mul_f32 v{u}, v{u}, v{u}")
E(f"v_cndmask_b32 v{a}, v{b}, v{a}, vcc")
E(f"v_cndmask_b32 v{u}, 1.0, v{u}, vcc")
E(f"v_fma_f32 v{b}, v{u}, 2.0, v{a}")
E(f"v_rcp_f32 v{b}, v{b}")
E(f"v_mul_f32 v{h}, v{h}, v{a}")
E(f"v_mul_f32 v{h}, v{h}, v{b}")
E(f"v_cvt_pk_bf16_f32 v{h}, v{h}, v{h}")
E(f"v_min_u32 v{h}, -2, v{h}")
pub2("buffer_store_short", f"v{h}", aP16, sPub, sMA_f, sMA_s, W_ACT)
stamp(7, True)
L("L_D2_next")
for s_ in (sLOC, sPoff, sPub, sPubG, sYoff):
    E(f"s_add_u32 s{s_}, s{s_}, {LS}")
E(f"s_add_u32 s{sLAY}, s{sLAY}, 1")
E(f"s_cmp_lt_u32 s{sLAY}, 2")
E("s_cbranch_scc1 L_D2_loop")
stamp_flush(0, 0)
E("s_endpgm")
L("L_D2_x1")
pub_resid(W_X1)
unpack_resid(XB)
E("s_branch L_D2_next")
sec("cold")
L("L_exit")
E("s_endpgm")
L("L_gp_retry")
for i in range(0, 16, 2): E(f"v_pk_max_u16 v{ACC+i//2}, v{GB+i}, v{GB+i+1}")
for i in range(0, 8, 2): E(f"v_pk_max_u16 v{ACC+i//2}, v{ACC+i}, v{ACC+i+1}")
chk_bf16(ACC, TT)
E("s_cbranch_vccnz L_gp_again")
for t in range(4):
    E(f"v_mfma_f32_16x16x32_bf16 {vr(CA,4)}, {vr(AW+4*t,4)}, {vr(GB+4*t,4)}, {'0' if t == 0 else vr(CA,4)}")
E("s_nop 9")
E(f"v_permlane32_swap_b32 v{CA}, v{CA+2}")
E(f"v_permlane32_swap_b32 v{CA+1}, v{CA+3}")
E("s_branch L_gp_ok")
for b_ in retry_blocks: b_()
L("L_code_end")

out = [open("cdna_kernels/" + NAME + ".s.ref").read().split("; Override")[0].rstrip("\n"),
       f"; @launch grid=(256,1,1) block=(512,1,1) lds={LDS_BYTES}", '.amdgcn_target "amdgcn-amd-amdhsa--gfx950"', ".text",
       f".globl {NAME}_kernel", ".p2align 8", f".type {NAME}_kernel,@function"]
for k in ORDER:
    for x in secs[k]:
        if isinstance(x, tuple) and x[0] == "MARK":
            _, role, i = x
            n = wstep[role]
            out.append("    s_cbranch_execz " + (marks[role][i + n] if i + n < len(marks[role]) else f"L_wd_{role}{i % n}"))
        elif isinstance(x, tuple):
            _, role, first, step = x
            assert first < len(marks[role])
            out += ["    s_mov_b64 exec, 0", f"    s_branch {marks[role][first]}", f"L_wd_{role}{first}:", "    s_mov_b64 exec, -1"]
        else: out.append(x)
out.append('.section .rodata,"a"')
out.append(".p2align 6")
out.append(f".amdhsa_kernel {NAME}_kernel")
out.append("  .amdhsa_next_free_vgpr 256")
out.append("  .amdhsa_next_free_sgpr 96")
out.append("  .amdhsa_accum_offset 256")
out.append("  .amdhsa_group_segment_fixed_size 0")
out.append("  .amdhsa_kernarg_size 96")
out.append("  .amdhsa_user_sgpr_count 2")
out.append("  .amdhsa_user_sgpr_kernarg_segment_ptr 1")
out.append("  .amdhsa_system_sgpr_workgroup_id_x 1")
out.append("  .amdhsa_float_denorm_mode_32 3")
out.append(".end_amdhsa_kernel")
open(sys.argv[1], "w").write("\n".join(out) + "\n")
```

```python
import sys, math, struct
PROF = int(sys.argv[2]) if len(sys.argv) > 2 else 0
OPT = dict(a.split("=") for a in sys.argv[3:])
THR = int(OPT.get("thr", 6))
ACK = int(OPT.get("ack", 1))
PER = int(OPT.get("per", 3))
PD = int(OPT.get("pd", 3))
SLP = int(OPT.get("slp", 0))
LATE0 = int(OPT.get("late0", 1))
GP = int(OPT.get("gp", 1))
GSL = int(OPT.get("gsl", 0))
THV = int(OPT.get("thv", 10))
GD = int(OPT.get("gd", 0))
fl = lambda k, d: {"0": "", "1": " nt", "2": " sc1", "3": " sc0 sc1", "4": " sc1 nt"}[OPT.get(k, d)]
NTQ, NTW, NTK, NTV = fl("ntq", "0"), fl("ntw", "0"), fl("ntk", "1"), fl("ntv", "0")
TQ = int(OPT.get("tq", 1))
MARKGAP = int(OPT.get("gap", 768))
CPF = int(OPT.get("cpf", 1))
W1L = int(OPT.get("w1l", 1))
STW = 1
REORD = int(OPT.get("reord", 0))
PAD = int(OPT.get("pad", 1))
PN = int(OPT.get("pn", 4))
W2P = int(OPT.get("w2p", 0))
W1N = int(OPT.get("w1n", 1))
FSL = int(OPT.get("fsl", 3))
PSL = int(OPT.get("psl", 3))
TP = int(OPT.get("tp", 0))
WARM = int(OPT.get("warm", 0))
NTT = fl("ntt", "0")
GFL = fl("gfl", "2")
SFL = {"2": " sc1", "3": " sc0 sc1", "4": " sc1 nt"}[OPT.get("sfl", "2")]
NAME = "interleave_layers__sliding_block_cached__dense_activation_mish__decode"
import re
ORDER = ["entry", "dinit", "d1", "actl", "a", "d2", "help", "cold"]
secs = {k: [] for k in ORDER}
cur = ["entry"]
since = {k: 0 for k in ORDER}
unsafe = [False]
marks = {k: [] for k in ORDER}
WARMED = ("d1", "a", "d2")
BIG = ("v_mfma", "v_pk_", "v_fma_", "v_max3", "v_or3", "v_add3", "v_lshl_add", "v_bfe", "v_mul_lo", "v_cvt_pk", "v_readlane", "v_writelane",
       "ds_", "buffer_", "global_", "s_load", "s_memrealtime")
def isize(t):
    if t.startswith(BIG) or "_dpp" in t or "|v" in t or (t.startswith(("v_cmp", "v_cndmask")) and "s[" in t): return 8
    ops = t.split(None, 1)[1] if " " in t else ""
    if t.startswith(("s_waitcnt", "s_nop", "s_sleep", "s_branch", "s_cbranch", "s_call", "s_getreg", "s_setprio")): return 4
    for tok in re.split(r"[,\s]+", ops):
        if re.fullmatch(r"0x[0-9a-f]+|\d+", tok) and int(tok, 0) > 64: return 8
    return 4
def sec(name): cur[0] = name
def put_mark():
    k = cur[0]
    marks[k].append(f"L_wm_{k}{len(marks[k])}")
    secs[k].append(marks[k][-1] + ":")
    secs[k].append(("MARK", k, len(marks[k]) - 1))
    since[k] = 4
def E(s=""):
    k = cur[0]
    if WARM and k in WARMED and not unsafe[0] and (since[k] >= MARKGAP or not marks[k]): put_mark()
    secs[k].append("    " + s)
    since[k] += isize(s)
    if re.match(r"s_\w+ exec", s): unsafe[0] = s != "s_mov_b64 exec, -1"
def L(s): secs[cur[0]].append(s + ":")
def vr(a, n=1): return f"v{a}" if n == 1 else f"v[{a}:{a+n-1}]"
def f32(x): return hex(struct.unpack("<I", struct.pack("<f", x))[0])

K_LDS, V_LDS = 0, 65536
WA_LDS, WB_LDS = 0, 65536
QS_LDS, PX_LDS, SX_LDS, FL_LDS = 131072, 132608, 140800, 141312
OS_LDS, XS_LDS = QS_LDS, PX_LDS
LDS_BYTES = 141824
LS = 0x30000
W_Q, W_X2, W_X1, W_ST, W_ACT = 0, 1024, 2048, 3072, 3584
W_Y, W_Z, W_P = 32768, 40960, 65536
W_Q0 = 2 * LS
W_Q0B = 32768
W_EP = W_Q0 + 65536
ALT = 0x80000
WS_USED = ALT + 2 * LS
PROF_OFF = 0x300000
WS_REC = PROF_OFF + 256 * 1024

sX, sK, sV, sWQ, sWO, sBX, sW1, sB1 = 8, 10, 12, 14, 16, 18, 20, 22
sW2, sOUT, sDBG, sWS = 24, 26, 28, 30
sG, sJ, sWV, sC, sPJ = 3, 4, 5, 6, 7
R_WS, R_A, R_B, R_C = 32, 36, 40, 44
sT0, sT1, sT2, sT3 = 48, 49, 50, 51
sLOC, sLAY = 52, 53
sYoff, sZoff, sPoff = 54, 55, 56
sSPIN = 57
sRET = 58
sMA_f, sMA_s, sMB_f, sMB_s, sMC_f, sMC_s = 60, 62, 64, 66, 68, 70
sTAG, sXCC, sQ0, sQ0B = 72, 73, 74, 75
sFFFE = 76
sC1, sC2, sC3 = 77, 78, 79
sS1, sS2, sPIV = 80, 81, 82
sPub, sPubG = 83, 84
sST = 88
sPe, sLe, sMODE = 90, 91, 92
SPIN0 = 0x200000
WSR = f"s[{R_WS}:{R_WS+3}]"

def srd(r, base, add_lo=None, rec=None):
    if add_lo is None:
        E(f"s_mov_b32 s{r}, s{base}")
        E(f"s_and_b32 s{r+1}, s{base+1}, 0xffff")
    else:
        E(f"s_add_u32 s{r}, s{base}, {add_lo}")
        E(f"s_addc_u32 s{r+1}, s{base+1}, 0")
        E(f"s_and_b32 s{r+1}, s{r+1}, 0xffff")
    E(f"s_mov_b32 s{r+2}, {rec}")
    E(f"s_mov_b32 s{r+3}, 0x00020000")

V_STAMP = 254
ROLE = ["a"]
def stamp(idx, layer_dep=False):
    if not PROF: return
    if PROF == 9 and not (idx == 8 and not layer_dep) and not (idx == 6 and layer_dep and ROLE[0] == "a" and "pt" not in OPT) and OPT.get("pt") != f"{cur[0]}_{idx}": return
    E(f"s_memrealtime s[{sST}:{sST+1}]")
    E("s_waitcnt lgkmcnt(0)")
    if layer_dep:
        E(f"s_lshl_b32 s{sT3}, s{sLAY}, 4")
        E(f"s_add_u32 s{sT3}, s{sT3}, {idx}")
        E(f"s_mov_b32 m0, s{sT3}")
        E("s_nop 0")
        E(f"v_writelane_b32 v{V_STAMP}, s{sST}, m0")
    else:
        E(f"v_writelane_b32 v{V_STAMP}, s{sST}, {idx}")
AMP = OPT.get("amp")
def amp(name):
    if AMP != name: return
    E(f"s_cmp_eq_u32 s{sLAY}, {OPT.get('amplay', '0')}")
    E(f"s_cbranch_scc0 L_amp_{name}")
    E("s_memrealtime s[94:95]")
    E("s_waitcnt lgkmcnt(0)")
    L(f"L_amp_{name}")
def ampx(name, wave):
    if AMP != name: return
    E(f"s_cmp_eq_u32 s2, {OPT.get('ampwg', '0')}")
    E(f"s_cbranch_scc0 L_amp_{name}")
    E(f"s_cmp_eq_u32 s{sWV}, {wave}")
    E(f"s_cbranch_scc0 L_amp_{name}")
    E(f"s_cmp_eq_u32 s{sLAY}, 0")
    E(f"s_cbranch_scc0 L_amp_{name}")
    E("s_memrealtime s[94:95]")
    E("s_waitcnt lgkmcnt(0)")
    if name == "xs": E("s_mov_b32 s94, s86")
    if name == "xa": E("s_mov_b32 s94, s88")
    E("v_mov_b32 v246, s94")
    E(f"v_mov_b32 v247, {W_EP + 64}")
    E(f"buffer_store_dword v246, v247, {WSR}, 0 offen sc1")
    L(f"L_amp_{name}")
def stamp_flush(wave, slot, dbg=None):
    if not PROF: return
    E(f"s_cmp_lg_u32 s{sWV}, {wave}")
    E("s_cbranch_scc1 L_exit")
    E("s_mov_b64 exec, -1")
    if dbg and "dbg" in OPT:
        wg, off, idx = dbg
        for i, x in enumerate(idx):
            E(f"v_readlane_b32 s{sT0}, v{V_STAMP}, {x}")
            E("s_nop 3")
            E(f"v_writelane_b32 v{V_STAMP-2}, s{sT0}, {i}")
        srd(R_A, sDBG, None, 256)
        E(f"v_lshlrev_b32 v{V_STAMP-1}, 2, v1")
        E(f"s_cmp_eq_u32 s2, {wg}")
        E(f"s_cselect_b32 exec_lo, {(1 << len(idx)) - 1}, 0")
        E("s_mov_b32 exec_hi, 0")
        E(f"buffer_store_dword v{V_STAMP-2}, v{V_STAMP-1}, s[{R_A}:{R_A+3}], 0 offen offset:{off}")
        E("s_mov_b64 exec, -1")
    E(f"s_lshl_b32 s{sT0}, s2, 10")
    E(f"s_add_u32 s{sT0}, s{sT0}, {PROF_OFF + slot*256}")
    E(f"v_lshlrev_b32 v{V_STAMP-1}, 2, v1")
    E(f"buffer_store_dword v{V_STAMP}, v{V_STAMP-1}, {WSR}, s{sT0} offen")

wstep = {}
def mark(role): pass
def warm(role, first=0, step=1):
    if WARM:
        secs[cur[0]].append(("WARM", role, first, step))
        assert wstep.setdefault(role, step) == step

def spin_check(fail_label):
    E(f"s_sub_u32 s{sSPIN}, s{sSPIN}, 1")
    E(f"s_cbranch_scc1 L_exit")
    E(f"s_branch {fail_label}")

def chk_bf16(v, t):
    E(f"v_pk_max_u16 v{t}, v{v}, v{v+1}")
    E(f"v_pk_max_u16 v{t+1}, v{v+2}, v{v+3}")
    E(f"v_pk_max_u16 v{t}, v{t}, v{t+1}")
    E(f"v_pk_max_u16 v{t}, v{t}, v{t} op_sel:[0,1] op_sel_hi:[1,0]")
    E(f"v_cmp_eq_u32 vcc, -1, v{t}")

def pub2(op, data, addr, soff, mf, ms, imm=0):
    o = f" offset:{imm}" if imm else ""
    E(f"s_mov_b64 exec, s[{mf}:{mf+1}]")
    E(f"{op} {data}, v{addr}, {WSR}, s{soff} offen{o}")
    E(f"s_mov_b64 exec, s[{ms}:{ms+1}]")
    E(f"{op} {data}, v{addr}, {WSR}, s{soff} offen{o} sc1")
    E("s_mov_b64 exec, -1")

def masks(mf, ms, lo, hi):
    E(f"s_cselect_b32 s{mf}, {lo}, 0")
    E(f"s_cselect_b32 s{mf+1}, {hi}, 0")
    E(f"s_cselect_b32 s{ms}, 0, {lo}")
    E(f"s_cselect_b32 s{ms+1}, 0, {hi}")

def arm(dst, n):
    for r in range(n): E(f"v_mov_b32 v{dst+r}, -1")

def gather1(tag, dst, addr, soff, imm, t, pd=None, slp=None):
    pd = PD if pd is None else pd
    slp = SLP if slp is None else slp
    L(f"L_{tag}_poll")
    E(f"buffer_load_dwordx4 {vr(dst,4)}, v{addr}, {WSR}, s{soff} offen offset:{imm} sc1")
    E(f"s_waitcnt vmcnt({pd-1})")
    chk_bf16(dst, t)
    E(f"s_cbranch_vccz L_{tag}_ok")
    if slp: E(f"s_sleep {slp}")
    spin_check(f"L_{tag}_poll")
    L(f"L_{tag}_ok")

cD, cA, cXa, cG, cT, cL16 = 208, 210, 211, 212, 224, 232
def xc_publish():
    E(f"s_getreg_b32 s{sXCC}, hwreg(HW_REG_XCC_ID, 0, 4)")
    E(f"v_mov_b32 v{cD+1}, s{sTAG}")
    E(f"s_lshl_b32 s{sT3}, s{sJ}, 3")
    E(f"v_mov_b32 v{cD}, s{sXCC}")
    E(f"v_mov_b32 v{cA}, s{sT3}")
    E("s_mov_b64 exec, 1")
    E(f"buffer_store_dwordx2 {vr(cD,2)}, v{cA}, {WSR}, s{sQ0} offen offset:2048")
    E("s_mov_b64 exec, -1")

def first_gather(tag, with_q, clear_alt, armed=False):
    regs = (1, 3, 5, 7) if with_q else (9,)
    nl = 3 if with_q else 1
    E(f"s_sub_u32 s{sS2}, s{sSPIN}, {480 // FSL}")
    if not armed:
        E(f"v_and_b32 v{cXa}, 31, v1")
        E(f"v_lshlrev_b32 v{cXa}, 3, v{cXa}")
        E(f"s_not_b32 s{sT1}, s{sTAG}")
        for r in regs + ((9,) if with_q else ()): E(f"v_mov_b32 v{cG+r}, s{sT1}")
    def loads(so):
        if with_q:
            E(f"buffer_load_dwordx4 {vr(cG,4)}, v{cL16}, {WSR}, s{so} offen sc1")
            E(f"buffer_load_dwordx4 {vr(cG+4,4)}, v{cL16}, {WSR}, s{so} offen offset:1024 sc1")
        E(f"buffer_load_dwordx2 {vr(cG+8,2)}, v{cXa}, {WSR}, s{so} offen offset:2048 sc1")
    def check():
        if with_q:
            for i, r in enumerate(regs): E(f"v_xor_b32 v{cT+i}, s{sTAG}, v{cG+r}")
            E(f"v_or3_b32 v{cT}, v{cT}, v{cT+1}, v{cT+2}")
            E(f"v_or_b32 v{cT}, v{cT}, v{cT+3}")
            E(f"v_cmp_ne_u32 vcc, 0, v{cT}")
        else:
            E(f"v_cmp_ne_u32 vcc, s{sTAG}, v{cG+9}")
    def copy_b():
        E("s_mov_b64 exec, 1")
        E(f"buffer_store_dwordx2 {vr(cD,2)}, v{cA}, {WSR}, s{sQ0B} offen offset:2048 sc1")
        E("s_mov_b64 exec, -1")
    L(f"L_{tag}_poll")
    loads(sQ0)
    E(f"s_waitcnt vmcnt({24 if armed else nl*6})")
    check()
    E(f"s_cbranch_vccz L_{tag}_seen")
    E(f"s_sleep {FSL}")
    E(f"s_cmp_gt_u32 s{sSPIN}, s{sS2}")
    E(f"s_cbranch_scc0 L_{tag}_b")
    spin_check(f"L_{tag}_poll")
    home = cur[0]; sec("cold")
    L(f"L_{tag}_b")
    copy_b()
    L(f"L_{tag}_alt")
    for so in (sQ0B, sQ0):
        loads(so)
        E("s_waitcnt vmcnt(0)")
        check()
        E(f"s_cbranch_vccz L_{tag}_{'altok' if with_q else 'ok'}")
    spin_check(f"L_{tag}_alt")
    if with_q:
        L(f"L_{tag}_altok")
        E(f"s_not_b32 s{sT1}, s{sTAG}")
        E(f"v_mov_b32 v{cG+9}, s{sT1}")
        E(f"s_branch L_{tag}_ok")
    sec(home)
    L(f"L_{tag}_seen")
    E("s_nop 15")
    L(f"L_{tag}_ok")
    if with_q:
        E(f"ds_write2_b32 v{cT+5}, v{cG}, v{cG+2} offset0:0 offset1:1")
        E(f"ds_write2_b32 v{cT+5}, v{cG+4}, v{cG+6} offset0:160 offset1:161")
        return
    E(f"v_cmp_ne_u32 vcc, s{sXCC}, v{cG+8}")
    E("s_nop 3")
    if OPT.get("slow") == "1": E("s_mov_b64 vcc, -1")
    E("s_cmp_eq_u64 vcc, 0")
    E(f"s_cselect_b32 s{sMODE}, 1, 0")
    E(f"s_cbranch_scc0 L_{tag}_slow")
    sec("cold")
    L(f"L_{tag}_slow")
    E("s_waitcnt vmcnt(0) lgkmcnt(0)")
    copy_b()
    if clear_alt: clear_alt()
    if clear_alt:
        E("s_waitcnt vmcnt(0)")
        E("s_mov_b64 exec, 1")
        E(f"buffer_store_dwordx2 {vr(cD,2)}, v{cA}, {WSR}, s{sQ0B} offen offset:2560 sc1")
        E("s_mov_b64 exec, -1")
    E(f"v_and_b32 v{cXa}, 56, v{cXa}")
    E(f"v_add_u32 v{cXa}, 192, v{cXa}")
    L(f"L_{tag}_h")
    E(f"buffer_load_dwordx2 {vr(cG+8,2)}, v{cXa}, {WSR}, s{sQ0B} offen offset:2560 sc1")
    E("s_waitcnt vmcnt(0)")
    E(f"v_cmp_ne_u32 vcc, s{sTAG}, v{cG+9}")
    E(f"s_cbranch_vccz L_{tag}_done")
    spin_check(f"L_{tag}_h")
    sec(home)
    L(f"L_{tag}_done")
    E(f"v_mov_b32 v{cT+2}, {FL_LDS}")
    E(f"v_mov_b32 v{cT+3}, s{sMODE}")
    E(f"ds_write_b32 v{cT+2}, v{cT+3}")

L(f"{NAME}_kernel")
E("s_cmp_ge_u32 s2, 256")
E("s_cbranch_scc1 L_exit")
E("s_load_dwordx16 s[8:23], s[0:1], 0")
E("s_load_dwordx8 s[24:31], s[0:1], 64")
if PROF:
    E(f"v_mov_b32 v{V_STAMP}, 0")
    E(f"s_memrealtime s[{sST}:{sST+1}]")
if AMP: E("s_memrealtime s[86:87]")
E("s_getpc_b64 s[92:93]")
E("v_lshrrev_b32 v1, 6, v0")
E(f"s_and_b32 s{sG}, s2, 7")
E(f"v_readfirstlane_b32 s{sWV}, v1")
E(f"s_lshr_b32 s{sJ}, s2, 3")
E("v_and_b32 v1, 63, v0")
if CPF:
    E("s_and_b32 s92, s92, 0xffffff00")
    E("v_lshlrev_b32 v4, 7, v1")
    E("v_add_u32 v5, 0x2000, v4")
    E(f"v_min_u32 v5, L_code_end-{NAME}_kernel-4, v5")
    E(f"s_cmp_lg_u32 s{sWV}, 7")
    E("s_cbranch_scc1 L_nocpf")
    E("global_load_dword v239, v4, s[92:93]")
    E("global_load_dword v239, v5, s[92:93]")
    L("L_nocpf")
E("v_and_b32 v2, 15, v0")
E("v_lshrrev_b32 v3, 4, v1")
E(f"s_mov_b32 s{sSPIN}, {SPIN0}")
E(f"s_mov_b32 s{sLAY}, 0")
E(f"s_lshl_b32 s{sLOC}, s{sG}, 12")
E(f"s_lshl_b32 s{sPoff}, s{sG}, 14")
E(f"s_add_u32 s{sPoff}, s{sPoff}, {W_P}")
E(f"s_add_u32 s{sQ0}, s{sLOC}, {W_Q0}")
E(f"s_add_u32 s{sQ0B}, s{sQ0}, {W_Q0B}")
E("v_lshrrev_b32 v5, 3, v1")
E("v_and_b32 v6, 7, v1")
E("v_lshlrev_b32 v4, 13, v5")
E("v_lshl_add_u32 v4, v6, 7, v4")
E(f"s_lshl_b32 s{sT0}, s{sJ}, 17")
E(f"s_lshl_b32 s{sT1}, s{sG}, 10")
E(f"s_add_u32 s{sT0}, s{sT0}, s{sT1}")
E(f"s_sub_u32 s{sT1}, s{sWV}, 1")
E(f"s_lshl_b32 s{sT2}, s{sT1}, 16")
E(f"s_add_u32 s{sT0}, s{sT0}, s{sT2}")
E(f"s_mov_b32 s{sT2}, {W_EP}")
E("v_mov_b32 v7, 0")
E(f"s_cmp_lt_u32 s{sT1}, 2")
E("s_waitcnt lgkmcnt(0)")
E("s_cbranch_scc0 L_notouch")
srd(R_C, sWQ, None, 4194304)
if TQ: E(f"buffer_load_dword v240, v4, s[{R_C}:{R_C+3}], s{sT0} offen{NTQ}")
L("L_notouch")
if AMP == "xa":
    E("s_memrealtime s[88:89]")
    E("s_waitcnt lgkmcnt(0)")
srd(R_WS, sWS, None, WS_REC if PROF else WS_USED)
E(f"buffer_load_dword v241, v7, {WSR}, s{sT2} offen sc1")
if PROF: E(f"v_writelane_b32 v{V_STAMP}, s{sST}, 60")
E(f"v_mov_b32 v{cA}, 0")
E(f"v_lshlrev_b32 v{cL16}, 4, v1")
E(f"s_cmp_ge_u32 s{sJ}, 16")
E("s_cbranch_scc1 L_D_init")

E(f"s_lshl_b32 s{sT0}, s{sG}, 24")
E(f"s_lshl_b32 s{sT1}, s{sJ}, 16")
E(f"s_add_u32 s{sT0}, s{sT0}, s{sT1}")
E(f"s_add_u32 s{sT0}, s{sT0}, {61440*256}")
srd(R_A, sK, f"s{sT0}", 65536)
srd(R_B, sV, f"s{sT0}", 65536)
E("v_xor_b32 v4, v2, v3")
E("v_lshlrev_b32 v4, 4, v4")
E("v_lshl_add_u32 v4, v3, 8, v4")
E("v_lshlrev_b32 v5, 1, v3")
E("v_xor_b32 v5, v2, v5")
E("v_lshlrev_b32 v5, 4, v5")
E("v_lshl_add_u32 v5, v3, 8, v5")
E(f"s_add_u32 s{sC1}, s{sJ}, s{sG}")
E(f"s_cmp_eq_u32 s{sWV}, 4")
E("s_cbranch_scc1 L_A_ctl")
E(f"s_cmp_gt_u32 s{sWV}, 4")
E("s_cbranch_scc1 L_A_help")
E(f"s_lshl_b32 s{sT0}, s{sWV}, 14")
E(f"s_add_u32 s{sT3}, s{sC1}, 16")
L("L_A_kl")
E(f"s_and_b32 s{sT1}, s{sC1}, 15")
E(f"s_and_b32 s{sT2}, s{sT1}, 3")
E(f"s_lshl_b32 s{sT2}, s{sT2}, 6")
E(f"s_lshl_b32 s{sT1}, s{sT1}, 10")
E(f"s_add_u32 s{sT1}, s{sT1}, s{sT0}")
E(f"s_mov_b32 m0, s{sT1}")
E(f"v_xor_b32 v6, s{sT2}, v4")
E(f"s_waitcnt vmcnt({THR-1})")
E(f"buffer_load_dwordx4 v6, s[{R_A}:{R_A+3}], s{sT1} offen{NTK} lds")
E(f"s_add_u32 s{sC1}, s{sC1}, 1")
E(f"s_cmp_lt_u32 s{sC1}, s{sT3}")
E("s_cbranch_scc1 L_A_kl")
E("s_branch L_A_setup")
L("L_A_help")
E(f"s_sub_u32 s{sT0}, s{sWV}, 5")
E(f"s_lshl_b32 s{sC1}, s{sC1}, 2")
E(f"s_mov_b32 s{sT3}, 0")
THV1, NV1 = int(OPT.get("thv1", 0)), int(OPT.get("nv1", 15))
if THV1:
    L("L_A_vl1")
    E(f"s_add_u32 s{sT1}, s{sC1}, s{sT0}")
    E(f"s_and_b32 s{sT1}, s{sT1}, 63")
    E(f"s_and_b32 s{sT2}, s{sT1}, 1")
    E(f"s_lshl_b32 s{sT2}, s{sT2}, 7")
    E(f"s_lshl_b32 s{sT1}, s{sT1}, 10")
    E(f"s_add_u32 m0, s{sT1}, {V_LDS}")
    E(f"v_xor_b32 v6, s{sT2}, v5")
    E(f"s_waitcnt vmcnt({THV1-1})")
    E(f"buffer_load_dwordx4 v6, s[{R_B}:{R_B+3}], s{sT1} offen{NTV} lds")
    E(f"s_add_u32 s{sT0}, s{sT0}, 3")
    E(f"s_cmp_lt_u32 s{sT0}, {NV1}")
    E("s_cbranch_scc1 L_A_vl1")
L("L_A_vl")
E(f"s_add_u32 s{sT1}, s{sC1}, s{sT0}")
E(f"s_and_b32 s{sT1}, s{sT1}, 63")
E(f"s_and_b32 s{sT2}, s{sT1}, 1")
E(f"s_lshl_b32 s{sT2}, s{sT2}, 7")
E(f"s_lshl_b32 s{sT1}, s{sT1}, 10")
E(f"s_add_u32 m0, s{sT1}, {V_LDS}")
E(f"v_xor_b32 v6, s{sT2}, v5")
E(f"s_waitcnt vmcnt({THV-1})")
E(f"buffer_load_dwordx4 v6, s[{R_B}:{R_B+3}], s{sT1} offen{NTV} lds")
E(f"s_add_u32 s{sT0}, s{sT0}, 3")
E(f"s_cmp_lt_u32 s{sT0}, 64")
E("s_cbranch_scc1 L_A_vl")
stamp(1)
E("s_branch L_A_pf2")
sec("actl")
L("L_A_pf2")
E(f"s_mul_i32 s{sT1}, s{sG}, {224*1024}")
E(f"s_mul_i32 s{sT2}, s{sJ}, 14336")
E(f"s_add_u32 s{sT1}, s{sT1}, s{sT2}")
E(f"s_cmp_eq_u32 s{sWV}, 6")
E(f"s_cselect_b32 s{sT3}, {14336 if W2P else 0}, 0")
srd(R_C, sW2, f"s{sT1}", f"s{sT3}")
E(f"s_mov_b32 s{sT1}, 0")
E(f"s_mov_b32 s{sT2}, 8192")
E("v_lshlrev_b32 v6, 7, v1")
E(f"buffer_load_dword v240, v6, s[{R_C}:{R_C+3}], s{sT1} offen{NTT}")
E(f"buffer_load_dword v240, v6, s[{R_C}:{R_C+3}], s{sT2} offen{NTT}")
E("s_barrier")
E("s_waitcnt vmcnt(2)")
stamp(2)
ampx("xv", 5)
E("s_barrier")
stamp_flush(5, 2)
E("s_endpgm")
sec("a")
L("L_A_setup")
stamp(1)
KF, VF, QF, SC, PB, OD, OUTV, PF, STT = 16, 80, 144, 160, 176, 144, 176, 184, 216
T = 224
E("v_xor_b32 v4, v2, v3")
E("v_lshlrev_b32 v4, 4, v4")
E("v_lshl_add_u32 v4, v2, 8, v4")
E(f"v_add_u32 v4, s{sT0}, v4")
E("v_xor_b32 v5, 64, v4")
E("v_xor_b32 v6, 0x80, v4")
E("v_xor_b32 v7, 0xc0, v4")
E("v_and_b32 v15, 3, v2")
E("v_mul_u32_u24 v8, 320, v15")
E("v_lshl_add_u32 v8, v3, 4, v8")
E(f"v_add_u32 v8, {QS_LDS}, v8")
E("v_lshlrev_b32 v10, 4, v1")
E(f"v_add_u32 v10, {PX_LDS}, v10")
E(f"s_lshl_b32 s{sT1}, s{sWV}, 11")
E(f"v_add_u32 v9, s{sT1}, v10")
E("v_lshlrev_b32 v12, 5, v2")
E(f"v_add_u32 v12, {SX_LDS}, v12")
E(f"s_lshl_b32 s{sT1}, s{sWV}, 3")
E(f"v_add_u32 v11, s{sT1}, v12")
E("v_lshlrev_b32 v13, 12, v15")
E("v_lshl_add_u32 v13, v3, 3, v13")
E("v_bfe_u32 v14, v2, 2, 1")
E("v_lshl_add_u32 v13, v14, 5, v13")
E(f"s_lshl_b32 s{sT1}, s{sWV}, 6")
E(f"v_add_u32 v13, s{sT1}, v13")
E(f"v_cmp_eq_u32 s[{sMC_f}:{sMC_f+1}], 1, v14")
E(f"v_lshlrev_b32 v14, 7, v15")
E(f"v_lshrrev_b32 v{T}, 2, v2")
E(f"v_lshl_add_u32 v{T}, v3, 2, v{T}")
E(f"v_and_b32 v{T+1}, 7, v{T}")
E(f"s_lshl_b32 s{sT1}, s{sWV}, 1")
E(f"v_xor_b32 v{T+1}, s{sT1}, v{T+1}")
E(f"v_lshlrev_b32 v{T}, 8, v{T}")
E(f"v_lshl_add_u32 v{T}, v{T+1}, 5, v{T}")
E(f"v_lshl_add_u32 v{T}, v15, 3, v{T}")
E(f"v_add_u32 v{T}, {V_LDS}, v{T}")
E(f"v_xor_b32 v{T+1}, 32, v{T}")
E(f"s_lshl_b32 s{sT1}, s{sJ}, 8")
E(f"s_add_u32 s{sPoff}, s{sPoff}, s{sT1}")
E(f"s_and_b32 s{sT1}, s{sJ}, 3")
E(f"s_lshl_b32 s{sT1}, s{sT1}, 5")
E(f"s_lshr_b32 s{sT2}, s{sJ}, 2")
E(f"s_lshl_b32 s{sT2}, s{sT2}, 3")
E(f"s_add_u32 s{sT1}, s{sT1}, s{sT2}")
E(f"s_add_u32 s{sPub}, s{sT1}, {W_ST}")
E(f"s_mov_b32 s{sC1}, {f32((128**-0.5)*math.log2(math.e))}")
E(f"s_mov_b32 s{sFFFE}, 0xfffefffe")
E(f"v_mov_b32 v{T+2}, {FL_LDS}")
E(f"v_mov_b32 v{T+8}, s{sC1}")
E(f"s_cmp_eq_u32 s{sWV}, 0")
E(f"s_cselect_b32 s{sC2}, 15, 0")
E(f"s_mov_b32 s{sMB_f+1}, 0")
E(f"s_mov_b32 s{sMB_s+1}, 0")
E("s_waitcnt vmcnt(0)")
stamp(2)
ampx("xk", 0)
for e in range(4):
    for s in range(4):
        E(f"ds_read_b128 {vr(KF+(e*4+s)*4,4)}, v{4+s} offset:{4096*e}")
L("L_A_b1")
mark("a")
E("s_barrier")
for s in range(4):
    E(f"ds_read_b128 {vr(QF+4*s,4)}, v8 offset:{64*s}")
stamp(3, True)
def qk(e, s):
    c = "0" if s == 0 else vr(SC+4*e,4)
    E(f"v_mfma_f32_16x16x32_bf16 {vr(SC+4*e,4)}, {vr(KF+(e*4+s)*4,4)}, {vr(QF+4*s,4)}, {c}")
for s in range(4):
    E(f"s_waitcnt lgkmcnt({3-s})")
    qk(0, s); qk(1, s)
for s in range(4):
    qk(2, s); qk(3, s)
E(f"v_max3_f32 v{T+4}, v{SC}, v{SC+1}, v{SC+2}")
E(f"v_max3_f32 v{T+5}, v{SC+3}, v{SC+4}, v{SC+5}")
E(f"v_max3_f32 v{T+4}, v{T+4}, v{SC+6}, v{SC+7}")
E("s_nop 3")
E(f"v_max3_f32 v{T+5}, v{T+5}, v{SC+8}, v{SC+9}")
E(f"v_max3_f32 v{T+4}, v{T+4}, v{SC+10}, v{SC+11}")
E(f"v_max3_f32 v{T+5}, v{T+5}, v{SC+12}, v{SC+13}")
E(f"v_max3_f32 v{T+4}, v{T+4}, v{SC+14}, v{SC+15}")
E(f"v_max_f32 v{T+4}, v{T+4}, v{T+5}")
E(f"v_mov_b32 v{T+5}, v{T+4}")
E("s_nop 1")
E(f"v_permlane16_swap_b32 v{T+4}, v{T+5}")
E(f"v_max_f32 v{T+4}, v{T+4}, v{T+5}")
E(f"v_mov_b32 v{T+5}, v{T+4}")
E("s_nop 1")
E(f"v_permlane32_swap_b32 v{T+4}, v{T+5}")
E(f"v_max_f32 v{T+4}, v{T+4}, v{T+5}")
E(f"v_mul_f32 v{T+6}, s{sC1}, v{T+4}")
for i in range(8):
    E(f"v_pk_fma_f32 {vr(SC+2*i,2)}, {vr(SC+2*i,2)}, {vr(T+8,2)}, {vr(T+6,2)} op_sel_hi:[1,0,0] neg_lo:[0,0,1] neg_hi:[0,0,1]")
for i in range(8):
    E(f"v_exp_f32 v{SC+i}, v{SC+i}")
E(f"v_exp_f32 v{SC+8}, v{SC+8}")
for i in range(4):
    E(f"v_cvt_pk_bf16_f32 v{PB+i}, v{SC+2*i}, v{SC+2*i+1}")
E(f"ds_write_b128 v9, {vr(PB,4)}")
for i in range(9, 16):
    E(f"v_exp_f32 v{SC+i}, v{SC+i}")
E(f"v_add_f32 v{T+7}, v{SC}, v{SC+1}")
for i in range(4, 8):
    E(f"v_cvt_pk_bf16_f32 v{PB+i}, v{SC+2*i}, v{SC+2*i+1}")
E(f"ds_write_b128 v9, {vr(PB+4,4)} offset:1024")
for i in range(4):
    E(f"v_pk_add_f32 {vr(SC+2+ 0,2) if False else vr(SC+4*i,2)}, {vr(SC+4*i,2)}, {vr(SC+4*i+2,2)}")
E(f"v_pk_add_f32 {vr(SC,2)}, {vr(SC,2)}, {vr(SC+4,2)}")
E(f"v_pk_add_f32 {vr(SC+8,2)}, {vr(SC+8,2)}, {vr(SC+12,2)}")
E(f"v_pk_add_f32 {vr(SC,2)}, {vr(SC,2)}, {vr(SC+8,2)}")
E(f"v_add_f32 v{T+7}, v{SC}, v{SC+1}")
E(f"v_mov_b32 v{T+5}, v{T+7}")
E("s_nop 1")
E(f"v_permlane16_swap_b32 v{T+7}, v{T+5}")
E(f"v_add_f32 v{T+7}, v{T+7}, v{T+5}")
E(f"v_mov_b32 v{T+5}, v{T+7}")
E("s_nop 1")
E(f"v_permlane32_swap_b32 v{T+7}, v{T+5}")
E(f"v_add_f32 v{T+7}, v{T+7}, v{T+5}")
E(f"ds_write_b64 v11, {vr(T+6,2)}")
stamp(4, True)
mark("a")
E("s_waitcnt lgkmcnt(0)")
E("s_barrier")
ampx("xb", 0)
E(f"ds_read_b32 v{T+3}, v{T+2}")
for b in range(2):
    E(f"ds_read_b128 {vr(STT+4*b,4)}, v12 offset:{16*b}")
for b in range(8):
    E(f"ds_read_b128 {vr(PF+4*b,4)}, v10 offset:{1024*b}")
stamp(5, True)
E(f"s_cmp_lg_u32 s{sLAY}, 0")
E("s_cbranch_scc1 L_A_havev")
for tp in range(2):
    for b in range(8):
        for e in range(2):
            E(f"ds_read_b64_tr_b16 {vr(VF+(tp*8+b)*4+2*e,2)}, v{T+tp} offset:{(32*b+16*e)*256}")
E("s_waitcnt lgkmcnt(0)")
L("L_A_havev")
E("s_waitcnt lgkmcnt(8)")
F = STT
va = [f"v_max3_f32 v{T+4}, v{STT}, v{STT+2}, v{STT+4}", f"v_max_f32 v{T+6}, v{T+4}, v{STT+6}"]
va += [f"v_sub_f32 v{F+2*b}, v{STT+2*b}, v{T+6}" for b in range(4)]
va += [f"v_exp_f32 v{F+2*b}, v{F+2*b}" for b in range(4)]
va += [f"v_mul_f32 v{T+7}, v{F}, v{STT+1}"] + [f"v_fmac_f32 v{T+7}, v{F+2*b}, v{STT+2*b+1}" for b in range(1, 4)]
E(f"v_readfirstlane_b32 s{sMODE}, v{T+3}")
for x in va[:2]: E(x)
sa = [f"s_cmp_eq_u32 s{sMODE}, 1", f"s_cselect_b32 s{sMB_f}, s{sC2}, 0", f"s_cselect_b32 s{sMB_s}, 0, s{sC2}",
      f"s_cselect_b32 s{sMA_f}, 0x00ff00ff, 0", f"s_cselect_b32 s{sMA_f+1}, 0x00ff00ff, 0", f"s_cselect_b32 s{sMA_s}, 0, 0x00ff00ff",
      f"s_cselect_b32 s{sMA_s+1}, 0, 0x00ff00ff", f"s_cselect_b32 s{sT2}, 0, {ALT}", f"s_add_u32 s{sPe}, s{sPoff}, s{sT2}",
      f"s_add_u32 s{sT2}, s{sLOC}, s{sT2}", f"s_add_u32 s{sT2}, s{sT2}, s{sPub}"]
k = 2
for u in range(8):
    E(f"s_waitcnt lgkmcnt({7-u})")
    for tp in range(2):
        d = vr(OD+(tp*4+u//2)*4,4)
        E(f"v_mfma_f32_16x16x32_bf16 {d}, {vr(VF+(tp*8+u)*4,4)}, {vr(PF+4*u,4)}, {'0' if u % 2 == 0 else d}")
        if k < len(va): E(va[k]); k += 1
        if sa and u >= 1: E(sa.pop(0)); E(sa.pop(0)) if sa else None
    if u == 5:
        assert k == len(va)
        E(f"v_min_u32 v{T+6}, -2, v{T+6}")
        E(f"v_min_u32 v{T+7}, -2, v{T+7}")
        pub2("buffer_store_dwordx2", vr(T+6,2), 14, sT2, sMB_f, sMB_s)
def cb(b):
    for tp in range(2):
        for h in range(2):
            o = vr(OUTV+4*tp+2*h,2)
            if b == 0: E(f"v_pk_mul_f32 {o}, {vr(OD+tp*16+2*h,2)}, {vr(F,2)} op_sel_hi:[1,0]")
            else: E(f"v_pk_fma_f32 {o}, {vr(OD+(tp*4+b)*4+2*h,2)}, {vr(F+2*b,2)}, {o} op_sel_hi:[1,0,1]")
for b in range(4): cb(b)
for r in range(4):
    E(f"v_cndmask_b32 v{OUTV+r}, v{OUTV+r}, v{OUTV+4+r}, s[{sMC_f}:{sMC_f+1}]")
E(f"v_cvt_pk_bf16_f32 v{OUTV}, v{OUTV}, v{OUTV+1}")
E(f"v_cvt_pk_bf16_f32 v{OUTV+1}, v{OUTV+2}, v{OUTV+3}")
E(f"v_pk_min_u16 v{OUTV}, v{OUTV}, s{sFFFE}")
E(f"v_pk_min_u16 v{OUTV+1}, v{OUTV+1}, s{sFFFE}")
pub2("buffer_store_dwordx2", vr(OUTV,2), 13, sPe, sMA_f, sMA_s)
stamp(6, True)
ampx("xp", 0)
E(f"s_add_u32 s{sPoff}, s{sPoff}, {LS}")
E(f"s_add_u32 s{sLOC}, s{sLOC}, {LS}")
E(f"s_add_u32 s{sLAY}, s{sLAY}, 1")
E(f"s_cmp_lt_u32 s{sLAY}, 2")
E("s_cbranch_scc1 L_A_b1")
stamp_flush(0, 0, (int(OPT.get("dbg", 0)), 36, [60, 2, 3, 5, 6, 19, 22]))
E("s_endpgm")
sec("actl")
L("L_A_ctl")
E("s_waitcnt vmcnt(0)")
E(f"v_readfirstlane_b32 s{sTAG}, v241")
E("s_nop 3")
E(f"s_add_u32 s{sTAG}, s{sTAG}, 1")
ampx("xe", 4)
ampx("xs", 4)
ampx("xa", 4)
xc_publish()
warm("a")
E(f"v_lshrrev_b32 v{cT+5}, 5, v1")
E(f"v_lshlrev_b32 v{cT+5}, 6, v{cT+5}")
E(f"v_lshl_add_u32 v{cT+5}, v1, 3, v{cT+5}")
E(f"v_add_u32 v{cT+5}, {QS_LDS}, v{cT+5}")
first_gather("aq0", True, None)
stamp(2)
ampx("xq", 4)
E("s_waitcnt lgkmcnt(0)")
E("s_barrier")
first_gather("ax", False, None, armed=True)
stamp(3)
E("s_waitcnt lgkmcnt(0)")
E(f"s_cmp_eq_u32 s{sMODE}, 1")
E(f"s_cselect_b32 s{sT2}, 0, {ALT}")
E(f"s_add_u32 s{sLe}, s{sLOC}, s{sT2}")
E(f"s_add_u32 s{sLe}, s{sLe}, {LS}")
E(f"v_lshl_add_u32 v{cT+2}, v3, 6, v{cL16}")
E(f"v_add_u32 v{cT+2}, {QS_LDS}, v{cT+2}")
E("s_barrier")
E("s_waitcnt vmcnt(0)")
if TP & 4:
    E(f"s_sub_u32 s{sT1}, s{sLe}, {LS}")
    gather1("ax1", cG+4, cL16, sT1, W_X1, cT, pd=1, slp=2*PSL)
arm(cG, 4)
gather1("aq", cG, cL16, sLe, W_Q, cT)
E(f"ds_write_b128 v{cT+2}, {vr(cG,4)}")
stamp(18)
E("s_waitcnt lgkmcnt(0)")
E("s_barrier")
stamp_flush(4, 1)
E("s_endpgm")

vL16, aXIO, aTA, aTB, aIN, aST, aP16, aPY, vONE, aOS, aXS = 4, 5, 6, 7, 8, 9, 10, 11, 12, 13, 14
SEL0, ONESB, XR, XN, XB, vT = 16, 24, 28, 36, 44, 48
TT = 49
vB1, vCS, aGX, vINV, vVAL = 15, 0, 249, 250, 252
GB, WA, ACC, WB = 64, 96, 160, 192
vST, CA, MK, vFLG = 224, 232, 236, 248
NACC = 8

retry_blocks = []
def gather_X(tag, soff, role, hook=None):
    def loads():
        for i in range(8):
            so = soff if i < 4 else sT0
            E(f"buffer_load_dwordx4 {vr(GB+4*i,4)}, v{aGX}, {WSR}, s{so} offen offset:{256*(i%4)}{GFL}")
    def sums(wait):
        for i in range(8):
            if wait is not None: E(f"s_waitcnt vmcnt({wait + 7 - i})")
            e, w = (i % 4) // 2, i % 2
            c = vr(XR+4*e,4) if i in (0, 2) else vr(XN+4*e,4)
            E(f"v_mfma_f32_16x16x32_bf16 {vr(XN+4*e,4)}, {vr(SEL0+4*w,4)}, {vr(GB+4*i,4)}, {c}")
    E(f"s_add_u32 s{sT0}, s{soff}, 4096")
    if ACK: E("s_waitcnt vmcnt(0)")
    elif GD: E(f"s_sleep {GD}")
    if PROF in (2, 9): stamp(9, True)
    for _ in range(GP - 1):
        loads()
        if GSL: E(f"s_sleep {GSL}")
    E(f"s_branch L_{tag}_again")
    L(f"L_{tag}_nan")
    E(f"s_sub_u32 s{sSPIN}, s{sSPIN}, 1")
    E("s_cbranch_scc1 L_exit")
    E(f"s_and_b32 s{sT1}, s{sSPIN}, 15")
    E(f"s_cbranch_scc0 L_{tag}_retry")
    if GSL: E(f"s_sleep {GSL}")
    L(f"L_{tag}_again")
    loads()
    if hook: hook()
    mark(role)
    sums(8 * (GP - 1))
    E("s_nop 6")
    E(f"v_cmp_u_f32 vcc, v{XN}, v{XN}")
    E(f"v_cmp_u_f32 s[{sS1}:{sS1+1}], v{XN+4}, v{XN+4}")
    for d in range(4):
        E(f"v_cvt_pk_bf16_f32 v{XB+d}, v{XN+2*d}, v{XN+2*d+1}")
    E(f"s_or_b64 vcc, vcc, s[{sS1}:{sS1+1}]")
    E(f"s_cbranch_vccnz L_{tag}_nan")
    L(f"L_{tag}_ok")
    if PROF in (2, 9):
        stamp(11, True)
        E(f"s_mov_b32 s{sST}, s{sSPIN}")
    def blk():
        L(f"L_{tag}_retry")
        for i in range(16): E(f"v_pk_max_u16 v{ACC+i}, v{GB+2*i}, v{GB+2*i+1}")
        for i in range(8): E(f"v_pk_max_u16 v{ACC+i}, v{ACC+2*i}, v{ACC+2*i+1}")
        for i in range(4): E(f"v_pk_max_u16 v{ACC+i}, v{ACC+2*i}, v{ACC+2*i+1}")
        chk_bf16(ACC, TT)
        E(f"s_cbranch_vccnz L_{tag}_again")
        sums(None)
        E("s_nop 7")
        for d in range(4):
            E(f"v_cvt_pk_bf16_f32 v{XB+d}, v{XN+2*d}, v{XN+2*d+1}")
        E(f"s_branch L_{tag}_ok")
    retry_blocks.append(blk)

def relay_X(tag, soff, pre):
    E(f"v_mov_b32 v{vT}, 0")
    E(f"s_cmp_lg_u32 s{sWV}, 0")
    E(f"s_cbranch_scc1 L_{tag}_other")
    pre()
    gather_X(tag, soff, "d2")
    E(f"ds_write_b128 v{aXS}, {vr(XB,4)}")
    post = f"L_{tag}_join"
    E("s_waitcnt lgkmcnt(0)")
    E("s_barrier")
    E(f"s_branch {post}")
    L(f"L_{tag}_other")
    E("s_waitcnt vmcnt(0)")
    E("s_barrier")
    E(f"ds_read_b128 {vr(XB,4)}, v{aXS}")
    E("s_waitcnt lgkmcnt(0)")
    L(post)

def unpack_resid(src):
    for d in range(4):
        E(f"v_lshlrev_b32 v{XR+2*d}, 16, v{src+d}")
        E(f"v_and_b32 v{XR+2*d+1}, 0xffff0000, v{src+d}")

def matvec(nsteps, A, W, fillers, rows=None, per=PER, waits=False):
    if rows is None:
        rows = [(1 << G, 0xf, list(range(4*G, min(4*G+4, nsteps)))) for G in range((nsteps + 3) // 4)]
    acc = lambda s_: ACC + 4*(rank[s_] % NACC)
    order = [x for x in range(nsteps) if not any(x == st_[-1] for _, _, st_ in rows)] + [st_[-1] for _, _, st_ in rows]
    if waits or not REORD: order = list(range(nsteps))
    rank = {x: i for i, x in enumerate(order)}
    ext = []
    for (rm, bm, st_) in rows:
        dp = f"quad_perm:[0,1,2,3] row_mask:{hex(rm)} bank_mask:{hex(bm)}"
        a = lambda s_: f"v{acc(s_) + s_ % 4}"
        ext.append((st_[1], f"v_add_f32_dpp v{vT}, {a(st_[0])}, {a(st_[1])} {dp}"))
        for s_ in st_[2:]:
            ext.append((s_, f"v_add_f32_dpp v{vT}, {a(s_)}, v{vT} {dp}"))
    order = [x for x in range(nsteps) if not any(x == st_[-1] for _, _, st_ in rows)] + [st_[-1] for _, _, st_ in rows]
    if waits or not REORD: order = list(range(nsteps))
    rank = {x: i for i, x in enumerate(order)}
    ext.sort(key=lambda e: rank[e[0]])
    st = dict(pos=0, lastT=-1)
    pm = {}
    def put(x, n=1):
        E(x); st["pos"] += n
    def need(e):
        if e[0] not in pm: return 99
        return max(pm[e[0]] + 9 - st["pos"], st["lastT"] + 3 - st["pos"], 0)
    fl = list(fillers)
    for s_ in order:
        while ext and rank[ext[0][0]] <= rank[s_] - NACC + 1 and rank[s_] >= NACC:
            n = need(ext[0])
            if n: put(f"s_nop {n-1}", n)
            st["lastT"] = st["pos"]; put(ext.pop(0)[1])
        if waits and s_ >= 8 or waits and s_ == 0: put(f"s_waitcnt lgkmcnt({min(15, 30-2*s_)})")
        pm[s_] = st["pos"]
        put(f"v_mfma_f32_16x16x32_bf16 {vr(acc(s_),4)}, {vr(A,4)}, {vr(W+4*s_,4)}, 0")
        idle = 0
        for _ in range(per):
            if ext and need(ext[0]) - idle <= 0:
                if idle: put(f"s_nop {idle-1}", idle); idle = 0
                st["lastT"] = st["pos"]; put(ext.pop(0)[1])
            elif fl:
                if idle: put(f"s_nop {idle-1}", idle); idle = 0
                put(fl.pop(0))
            elif PAD and s_ != order[-1]: idle += 1
        if idle: put(f"s_nop {idle-1}", idle)
    while ext or fl:
        if ext and need(ext[0]) == 0:
            st["lastT"] = st["pos"]; put(ext.pop(0)[1])
        elif fl:
            put(fl.pop(0))
        else:
            n = need(ext[0]); put(f"s_nop {n-1}", n)

def stats_fillers():
    f = []
    for d in range(4):
        f.append(f"v_lshlrev_b32 v{XR+2*d}, 16, v{XB+d}")
        f.append(f"v_and_b32 v{XR+2*d+1}, 0xffff0000, v{XB+d}")
        if d == 0: f.append(f"v_readfirstlane_b32 s{sPIV}, v{XR}")
    D = XN
    for i in range(4):
        f.append(f"v_pk_add_f32 {vr(D+2*i,2)}, {vr(XR+2*i,2)}, s[{sPIV}:{sPIV+1}] op_sel_hi:[1,0] neg_lo:[0,1] neg_hi:[0,1]")
    a, b = TT+1, TT+3
    assert a % 2 == 0
    f.append(f"v_pk_add_f32 {vr(a,2)}, {vr(D,2)}, {vr(D+2,2)}")
    f.append(f"v_pk_mul_f32 {vr(b,2)}, {vr(D,2)}, {vr(D,2)}")
    for i in range(1, 4):
        f.append(f"v_pk_fma_f32 {vr(b,2)}, {vr(D+2*i,2)}, {vr(D+2*i,2)}, {vr(b,2)}")
        if i > 1: f.append(f"v_pk_add_f32 {vr(a,2)}, {vr(a,2)}, {vr(D+2*i,2)}")
    f.append(f"v_add_f32 v{b}, v{b}, v{b+1}")
    f.append(f"v_add_f32 v{a}, v{a}, v{a+1}")
    f.append("s_nop 0")
    for dp in ("quad_perm:[1,0,3,2] row_mask:0xf", "quad_perm:[2,3,0,1] row_mask:0xf", "row_half_mirror row_mask:0xf",
               "row_mirror row_mask:0xf", "row_bcast:15 row_mask:0xa", "row_bcast:31 row_mask:0xc"):
        f.append(f"v_add_f32_dpp v{b}, v{b}, v{b} {dp} bank_mask:0xf")
        f.append(f"v_add_f32_dpp v{a}, v{a}, v{a} {dp} bank_mask:0xf")
        f.append("s_nop 0")
    f.append(f"v_readlane_b32 s{sS2}, v{b}, 63")
    f.append(f"v_readlane_b32 s{sS1}, v{a}, 63")
    f.append(f"v_fma_f32 v{TT+3}, s{sS2}, v{vINV}, v{vINV+1}" if False else "s_nop 0")
    f.append(f"v_fma_f32 v{TT+3}, s{sS2}, v{vINV}, v{vINV+1}")
    f.append(f"v_mul_f32 v{TT+2}, s{sS1}, v{vINV}")
    f.append(f"v_fma_f32 v{TT+3}, -v{TT+2}, v{TT+2}, v{TT+3}")
    f.append(f"v_max_f32 v{TT+3}, v{vINV+1}, v{TT+3}")
    f.append(f"v_rsq_f32 v{TT+3}, v{TT+3}")
    f.append(f"v_add_f32 v{TT+2}, s{sPIV}, v{TT+2}")
    return f

def xgroup_sum(fold8=False, plain=False):
    if fold8: E(f"v_and_b32 v{vT}, v{vVAL}, v{vT}")
    E(f"v_mov_b32 v{TT+5}, v{vT}")
    E("s_nop 1")
    E(f"v_permlane16_swap_b32 v{vT}, v{TT+5}")
    E(f"v_add_f32 v{vT}, v{vT}, v{TT+5}")
    E(f"v_mov_b32 v{TT+5}, v{vT}")
    E("s_nop 1")
    E(f"v_permlane32_swap_b32 v{vT}, v{TT+5}")
    E(f"v_add_f32 v{vT}, v{vT}, v{TT+5}")
    if fold8:
        E("s_nop 1")
        E(f"v_add_f32_dpp v{vT}, v{vT}, v{vT} row_ror:8 row_mask:0xf bank_mask:0xf")
    if plain: return
    E(f"v_fma_f32 v{vT}, -v{TT+2}, v{vCS}, v{vT}")
    E(f"v_mul_f32 v{vT}, v{vT}, v{TT+3}")

def y_publish():
    xgroup_sum(plain=True)
    E("s_nop 1")
    E(f"v_mov_b32_dpp v{TT+5}, v{vT} quad_perm:[1,1,3,3] row_mask:0xf bank_mask:0xf")
    E("s_mov_b64 exec, 0x5555")
    E(f"v_cvt_pk_bf16_f32 v{vT}, v{vT}, v{TT+5}")
    E(f"v_pk_min_u16 v{vT}, v{vT}, s{sFFFE}")
    E(f"buffer_store_dword v{vT}, v{aP16}, {WSR}, s{sPubG} offen{SFL}")
    E("s_mov_b64 exec, -1")

def pub_resid(off):
    for d in range(4): E(f"v_pk_min_u16 v{TT+7+d}, v{XB+d}, s{sFFFE}")
    pub2("buffer_store_dwordx4", vr(TT+7,4), vL16, sLOC, sMB_f, sMB_s, off)

def read_mode(lo_a, pj=0):
    E(f"v_mov_b32 v{TT}, {FL_LDS}")
    E(f"ds_read_b32 v{TT+1}, v{TT}")
    E("s_waitcnt lgkmcnt(0)")
    E(f"v_readfirstlane_b32 s{sMODE}, v{TT+1}")
    E(f"s_cmp_eq_u32 s{sPJ}, {pj}")
    E(f"s_cselect_b32 s{sT1}, -1, 0")
    E("s_nop 2")
    E(f"s_cmp_eq_u32 s{sMODE}, 1")
    masks(sMA_f, sMA_s, lo_a, "0")
    masks(sMB_f, sMB_s, f"s{sT1}", f"s{sT1}")
    E(f"s_cselect_b32 s{sT1}, 0, {ALT}")
    for s_ in (sLOC, sPoff, sPub):
        E(f"s_add_u32 s{s_}, s{s_}, s{sT1}")

sec("entry")
L("L_D_init")
ROLE[0] = "d"
E(f"s_and_b32 s{sC}, s{sJ}, 7")
E(f"s_lshl_b32 s{sPJ}, s{sC}, 2")
E(f"s_add_u32 s{sPJ}, s{sPJ}, s{sWV}")
E("v_lshrrev_b32 v242, 3, v1")
E("v_and_b32 v243, 7, v1")
def wo_issue():
    E(f"s_lshl_b32 s{sT0}, s{sG}, 19")
    E(f"s_lshl_b32 s{sT1}, s{sC}, 7")
    E(f"s_add_u32 s{sT0}, s{sT0}, s{sT1}")
    E(f"s_sub_u32 s{sT3}, {4194304}, s{sT0}")
    srd(R_A, sWO, f"s{sT0}", f"s{sT3}")
    E("v_and_b32 v245, 2, v242")
    E("v_xor_b32 v245, v245, v243")
    E(f"s_and_b32 s{sT1}, s{sWV}, 1")
    E(f"s_lshl_b32 s{sT1}, s{sT1}, 2")
    E(f"v_xor_b32 v245, s{sT1}, v245")
    E("v_lshlrev_b32 v244, 10, v242")
    E("v_lshl_add_u32 v244, v245, 4, v244")
    E(f"s_lshl_b32 s{sT0}, s{sWV}, 14")
    E(f"s_mov_b32 m0, s{sT0}")
    E(f"s_lshl_b32 s{sT1}, s{sWV}, 17")
    if LATE0 == 1: E("s_waitcnt vmcnt(0)")
    if LATE0 >= 2: E("s_barrier")
    E(f"s_add_u32 s{sT2}, s{sT1}, {16*8192}")
    L("L_D2_wol")
    E(f"buffer_load_dwordx4 v244, s[{R_A}:{R_A+3}], s{sT1} offen{NTW} lds")
    E("s_add_u32 m0, m0, 1024")
    E(f"s_add_u32 s{sT1}, s{sT1}, 8192")
    E(f"s_cmp_lt_u32 s{sT1}, s{sT2}")
    E("s_cbranch_scc1 L_D2_wol")
def clear_global():
    for r in range(4): E(f"v_mov_b32 v{cG+r}, -1")
    E(f"s_mov_b32 s{sT1}, {LS}")
    E(f"v_lshrrev_b32 v{cT}, 3, v2")
    E(f"v_mul_lo_u32 v{cT}, v{cT}, s{sT1}")
    E(f"v_lshl_add_u32 v{cT}, v243, 4, v{cT}")
    E(f"v_lshl_add_u32 v{cT}, v3, 13, v{cT}")
    E(f"s_lshl_b32 s{sT1}, s{sG}, 10")
    E(f"s_lshl_b32 s{sT2}, s{sC}, 7")
    E(f"s_add_u32 s{sT1}, s{sT1}, s{sT2}")
    E(f"s_add_u32 s{sT1}, s{sT1}, {W_Y}")
    E("s_mov_b32 exec_hi, 0")
    E(f"buffer_store_dwordx4 {vr(cG,4)}, v{cT}, {WSR}, s{sT1} offen sc1")
    E("s_mov_b64 exec, -1")

def d2_clear(sc, alt):
    for r in range(4): E(f"v_mov_b32 v{cG+r}, -1")
    E(f"s_lshl_b32 s{sT1}, s{sC}, 11")
    E(f"s_add_u32 s{sT1}, s{sT1}, s{sPoff}")
    if alt: E(f"s_add_u32 s{sT1}, s{sT1}, {ALT}")
    E(f"s_add_u32 s{sT2}, s{sT1}, {LS}")
    for so in (sT1, sT2):
        for o in range(2):
            E(f"buffer_store_dwordx4 {vr(cG,4)}, v{cL16}, {WSR}, s{so} offen offset:{1024*o}{sc}")
    E(f"s_mov_b32 s{sT1}, {LS}")
    E(f"v_lshrrev_b32 v{cT}, 5, v1")
    E(f"v_mul_lo_u32 v{cT}, v{cT}, s{sT1}")
    E(f"v_and_b32 v{cT+1}, 31, v1")
    E(f"v_lshl_add_u32 v{cT}, v{cT+1}, 4, v{cT}")
    E(f"s_lshl_b32 s{sT1}, s{sC}, 9")
    E(f"s_add_u32 s{sT1}, s{sT1}, s{sLOC}")
    if alt: E(f"s_add_u32 s{sT1}, s{sT1}, {ALT}")
    E(f"buffer_store_dwordx4 {vr(cG,4)}, v{cT}, {WSR}, s{sT1} offen{sc}")
E(f"s_cmp_lt_u32 s{sJ}, 24")
E("s_cbranch_scc1 L_D_const")
E(f"s_cmp_lg_u32 s{sWV}, 4")
E("s_cbranch_scc1 L_D2_e1")
d2_clear("", False)
E("s_branch L_D2_init")
L("L_D2_e1")
E(f"s_cmp_lg_u32 s{sWV}, 5")
E("s_cbranch_scc1 L_D2_e2")
clear_global()
E("s_branch L_D2_init")
L("L_D2_e2")
E(f"s_cmp_ge_u32 s{sWV}, 4")
E("s_cbranch_scc1 L_D2_init")
if LATE0 == 0: wo_issue()
else:
    E(f"s_lshl_b32 s{sT0}, s{sG}, 19")
    srd(R_A, sWO, f"s{sT0}", 1 << 19)
    E(f"buffer_load_dword v255, v{cL16}, s[{R_A}:{R_A+3}], 0 offen")
sec("dinit")
L("L_D_const")
E("v_mov_b32 v245, 0")
E("v_mov_b32 v244, 0")
srd(R_B, sX, None, 1024)
E(f"v_lshrrev_b32 v{TT}, 1, v3")
E(f"v_and_b32 v{TT+1}, 1, v3")
E(f"v_lshlrev_b32 v{aXIO}, 8, v{TT}")
E(f"v_lshl_add_u32 v{aXIO}, v2, 4, v{aXIO}")
E(f"v_lshl_add_u32 v{aXIO}, v{TT+1}, 3, v{aXIO}")
E(f"buffer_load_dwordx2 {vr(XB,2)}, v{aXIO}, s[{R_B}:{R_B+3}], 0 offen")
E(f"buffer_load_dwordx2 {vr(XB+2,2)}, v{aXIO}, s[{R_B}:{R_B+3}], 0 offen offset:512")
E(f"v_lshlrev_b32 v{vL16}, 4, v1")
E(f"v_lshrrev_b32 v{TT+2}, 2, v2")
E(f"v_and_b32 v{TT+3}, 3, v2")
E(f"v_lshl_add_u32 v{TT+4}, v{TT}, 7, v{TT+2}")
E(f"v_lshl_add_u32 v{TT+4}, v{TT+1}, 2, v{TT+4}")
E(f"v_lshlrev_b32 v{aP16}, 1, v2")
E(f"v_lshrrev_b32 v{aPY}, 5, v1")
E(f"v_lshlrev_b32 v{aPY}, 4, v{aPY}")
E(f"v_add_u32 v{aXS}, {XS_LDS}, v{vL16}")
E(f"v_mov_b32 v{vONE}, 1.0")
for d in range(4): E(f"v_mov_b32 v{ONESB+d}, 0x3f803f80")
E(f"v_and_b32 v{TT+5}, 1, v2")
E(f"v_lshlrev_b32 v{TT+5}, 4, v{TT+5}")
E(f"v_mov_b32 v{TT+6}, 0x3f80")
E(f"v_lshlrev_b32 v{TT+6}, v{TT+5}, v{TT+6}")
E(f"v_lshrrev_b32 v{TT+7}, 1, v2")
E(f"v_lshlrev_b32 v{aGX}, 10, v3")
E(f"v_lshl_add_u32 v{aGX}, v2, 4, v{aGX}")
for d in range(8):
    E(f"v_cmp_eq_u32 vcc, {d}, v{TT+7}")
    E("s_nop 1")
    E(f"v_cndmask_b32 v{SEL0+d}, 0, v{TT+6}, vcc")
E(f"s_mov_b32 s{sFFFE}, 0xfffefffe")
E(f"v_mov_b32 v{vINV}, {f32(1/512)}")
E(f"v_mov_b32 v{vINV+1}, {f32(1e-5)}")
E(f"s_mov_b32 s{sC3}, {f32(-math.log2(math.e))}")
E(f"s_lshl_b32 s{sT1}, s{sPJ}, 5")
E(f"s_lshl_b32 s{sPubG}, s{sG}, 10")
E(f"s_add_u32 s{sPubG}, s{sPubG}, s{sT1}")
E(f"s_lshl_b32 s{sT2}, s{sWV}, 5")
E(f"s_cmp_ge_u32 s{sJ}, 24")
E("s_cbranch_scc1 L_D2_comp")

def ctl_head():
    E("s_waitcnt vmcnt(0)")
    E(f"v_readfirstlane_b32 s{sTAG}, v241")
    for r in range(4): E(f"v_mov_b32 v{cG+r}, -1")
    E(f"s_add_u32 s{sTAG}, s{sTAG}, 1")
E(f"s_lshl_b32 s{sT0}, s{sG}, 10")
E(f"s_lshl_b32 s{sT1}, s{sC}, 7")
E(f"s_add_u32 s{sT0}, s{sT0}, s{sT1}")
E(f"s_sub_u32 s{sT3}, {4194304}, s{sT0}")
srd(R_A, sWQ, f"s{sT0}", f"s{sT3}")
E("v_and_b32 v245, 6, v242")
E("v_xor_b32 v245, v245, v243")
E("v_lshlrev_b32 v244, 13, v242")
E("v_lshl_add_u32 v244, v245, 4, v244")
E(f"s_cmp_ge_u32 s{sWV}, 4")
E("s_cbranch_scc1 L_D1_help")
if TQ: E("s_waitcnt vmcnt(0)")
stamp(1)
E(f"s_lshl_b32 s{sT0}, s{sWV}, 14")
E(f"s_mov_b32 m0, s{sT0}")
E(f"s_lshl_b32 s{sT1}, s{sWV}, 20")
E(f"s_add_u32 s{sT3}, s{sT1}, {16*65536}")
L("L_D1_wql")
E(f"buffer_load_dwordx4 v244, s[{R_A}:{R_A+3}], s{sT1} offen{NTW} lds")
E("s_add_u32 m0, m0, 1024")
E(f"s_add_u32 s{sT1}, s{sT1}, 65536")
E(f"s_cmp_lt_u32 s{sT1}, s{sT3}")
E("s_cbranch_scc1 L_D1_wql")
sec("d1")
E(f"v_bfe_u32 v{TT+5}, v{TT+4}, 1, 2")
E(f"v_xor_b32 v{TT+5}, s{sWV}, v{TT+5}")
E(f"v_lshlrev_b32 v{aTA}, 7, v{TT+4}")
E(f"v_lshl_add_u32 v{aTA}, v{TT+3}, 3, v{aTA}")
E(f"v_lshl_add_u32 v{aTA}, v{TT+5}, 5, v{aTA}")
if not TQ: E("s_waitcnt vmcnt(16)")
E(f"v_lshl_add_u32 v{aTB}, v3, 3, v{TT+2}")
E(f"v_lshlrev_b32 v{aTB}, 7, v{aTB}")
E(f"v_lshl_add_u32 v{aTB}, v{TT+3}, 3, v{aTB}")
E(f"s_add_u32 s{sT2}, s{sT2}, {WB_LDS}")
E(f"v_add_u32 v{aTB}, s{sT2}, v{aTB}")
E(f"v_min_u32 v{aIN}, 6, v2")
E(f"v_lshlrev_b32 v{aIN}, 6, v{aIN}")
E(f"v_lshl_add_u32 v{aIN}, v3, 4, v{aIN}")
E(f"v_readfirstlane_b32 s{sTAG}, v241")
E(f"s_add_u32 s{sPubG}, s{sPubG}, {W_Z}")
E(f"s_mov_b32 s{sZoff}, {W_Z}")
E(f"s_lshl_b32 s{sT1}, s{sPJ}, 5")
E(f"s_add_u32 s{sPub}, s{sLOC}, s{sT1}")
srd(R_B, sOUT, None, 1024)
E(f"s_add_u32 s{sTAG}, s{sTAG}, 1")
for x in stats_fillers(): E(x)
for i in range(8): E(f"v_sub_f32 v{XN+i}, v{XR+i}, v{TT+2}")
for i in range(8): E(f"v_mul_f32 v{XN+i}, v{XN+i}, v{TT+3}")
for d in range(4): E(f"v_cvt_pk_bf16_f32 v{GB+d}, v{XN+2*d}, v{XN+2*d+1}")
E(f"v_mov_b32 v{vT}, 0")
D0 = GB + 12
E(f"v_mov_b32 v{D0+1}, s{sTAG}")
E(f"s_lshl_b32 s{sT1}, s{sPJ}, 6")
E(f"v_lshl_add_u32 v{TT+6}, v2, 2, s{sT1}")
E("s_waitcnt vmcnt(0)")
E("s_barrier")
amp("wq")
stamp(2)
for s in range(16):
    for e in range(2):
        E(f"ds_read_b64_tr_b16 {vr(WA+4*s+2*e,2)}, v{aTA} offset:{32768*e+1024*s}")
matvec(16, GB, WA, [], per=PN, waits=True)
xgroup_sum(plain=True)
E("s_nop 1")
E(f"v_mov_b32_dpp v{TT+5}, v{vT} quad_perm:[1,1,3,3] row_mask:0xf bank_mask:0xf")
E(f"v_cvt_pk_bf16_f32 v{D0}, v{vT}, v{TT+5}")
E("s_mov_b64 exec, 0x5555")
E(f"buffer_store_dwordx2 {vr(D0,2)}, v{TT+6}, {WSR}, s{sQ0} offen")
E("s_mov_b64 exec, -1")
stamp(3, True)
E(f"v_mov_b32 v{TT+7}, 0")
E(f"buffer_load_dword v{GB+20}, v{TT+7}, s[{R_B}:{R_B+3}], 0 offen")
for s in range(16):
    c = "0" if s == 0 else vr(CA,4)
    E(f"v_mfma_f32_16x16x32_bf16 {vr(CA,4)}, {vr(ONESB,4)}, {vr(WA+4*s,4)}, {c}")
E("s_nop 7")
E(f"v_mov_b32 v{vCS}, v{CA}")
E("s_barrier")
amp("st")
read_mode("0xffff")
E(f"s_mov_b32 s{sT1}, 0x5555")
E(f"s_cmp_eq_u32 s{sMODE}, 1")
E(f"s_cselect_b32 exec_lo, 0, s{sT1}")
E("s_mov_b32 exec_hi, 0")
E(f"buffer_store_dwordx2 {vr(D0,2)}, v{TT+6}, {WSR}, s{sQ0B} offen sc1")
E("s_mov_b64 exec, -1")
E("s_barrier")
for s in range(7):
    for e in range(2):
        E(f"ds_read_b64_tr_b16 {vr(WB+4*s+2*e,2)}, v{aTB} offset:{4096*s+512*e}")
E("s_waitcnt lgkmcnt(0)")
E("s_branch L_D1_act")
L("L_D1_q")
mark("d1")
matvec(16, XB, WA, stats_fillers())
xgroup_sum()
E(f"v_cvt_pk_bf16_f32 v{vT}, v{vT}, v{vT}")
E(f"v_min_u32 v{vT}, -2, v{vT}")
pub2("buffer_store_short", f"v{vT}", aP16, sPub, sMA_f, sMA_s, W_Q)
stamp(3, True)
pub_resid(W_X2)
L("L_D1_act")
mark("d1")
AIN = vST
arm(AIN, 4)
E(f"buffer_load_dwordx4 {vr(CA,4)}, v{vL16}, {WSR}, s{sLOC} offen offset:{W_X1} sc1")
E(f"v_mov_b32 v{vT}, 0")
if TP & 1:
    E(f"v_lshlrev_b32 v{TT+2}, 3, v1")
    L("L_D1_far")
    E(f"buffer_load_dword v{TT+3}, v{TT+2}, {WSR}, s{sLOC} offen offset:{W_ST} sc1")
    E("s_waitcnt vmcnt(0)")
    E(f"v_cmp_eq_u32 vcc, -1, v{TT+3}")
    E("s_cbranch_vccz L_D1_near")
    E(f"s_sleep {2*PSL}")
    spin_check("L_D1_far")
    L("L_D1_near")
gather1("ga", AIN, aIN, sLOC, W_ACT, TT)
amp("act")
stamp(4, True)
E(f"buffer_load_dwordx4 {vr(CA,4)}, v{vL16}, {WSR}, s{sLOC} offen offset:{W_X1} sc1")
matvec(7, AIN, WB, [], per=PN)
y_publish()
stamp(5, True)
E(f"s_add_u32 s{sLAY}, s{sLAY}, 1")
E(f"s_cmp_lt_u32 s{sLAY}, 2")
E("s_cbranch_scc1 L_D1_z")
E(f"s_cmp_lg_u32 s2, 128")
E("s_cbranch_scc1 L_D1_end")
E(f"s_cmp_lg_u32 s{sWV}, 0")
E("s_cbranch_scc1 L_D1_end")
L("L_D1_z")
mark("d1")
def pre_z():
    E("s_waitcnt vmcnt(1)")
    chk_bf16(CA, TT)
    E("s_cbranch_vccz L_gx1_have")
    gather1("gx1", CA, vL16, sLOC, W_X1, TT, pd=1, slp=0)
    L("L_gx1_have")
    unpack_resid(CA)
def relay_z():
    E(f"v_mov_b32 v{vT}, 0")
    E(f"s_cmp_lg_u32 s{sWV}, 0")
    E(f"s_cbranch_scc1 L_gz_other")
    pre_z()
    gather_X("gz", sZoff, "d1")
    E(f"s_cmp_eq_u32 s{sLAY}, 2")
    E("s_cbranch_scc1 L_D1_out")
    E(f"ds_write_b128 v{aXS}, {vr(XB,4)}")
    E("s_waitcnt lgkmcnt(0)")
    E("s_barrier")
    E(f"s_branch L_gz_join")
    L(f"L_gz_other")
    E("s_waitcnt vmcnt(0)")
    E("s_barrier")
    E(f"ds_read_b128 {vr(XB,4)}, v{aXS}")
    E("s_waitcnt lgkmcnt(0)")
    L("L_gz_join")
relay_z()
stamp(6)
for s_ in (sLOC, sPub, sPubG, sZoff):
    E(f"s_add_u32 s{s_}, s{s_}, {LS}")
E("s_branch L_D1_q")
L("L_D1_out")
E(f"buffer_store_dwordx2 {vr(XB,2)}, v{aXIO}, s[{R_B}:{R_B+3}], 0 offen")
E(f"buffer_store_dwordx2 {vr(XB+2,2)}, v{aXIO}, s[{R_B}:{R_B+3}], 0 offen offset:512")
E(f"v_mov_b32 v{TT}, s{sTAG}")
E(f"v_mov_b32 v{TT+1}, {W_EP}")
E("s_mov_b64 exec, 1")
E(f"buffer_store_dword v{TT}, v{TT+1}, {WSR}, 0 offen")
if AMP:
    E("s_memrealtime s[88:89]")
    E("s_waitcnt lgkmcnt(0)")
    if AMP == "end": E("s_mov_b32 s94, s88")
    E("s_sub_u32 s94, s94, s86")
    if AMP.startswith("x"):
        E(f"v_mov_b32 v253, {W_EP + 64}")
        E(f"buffer_load_dword v252, v253, {WSR}, 0 offen sc1")
        E("s_waitcnt vmcnt(0)")
        E("v_readfirstlane_b32 s94, v252")
        E("s_nop 3")
        E("s_sub_u32 s94, s94, s86")
        E("s_add_u32 s94, s94, 100")
        E("s_max_i32 s94, s94, 0")
    E("s_lshl_b32 s94, s94, 2")
    E("s_min_u32 s94, s94, 20000")
    E("s_add_u32 s94, s94, s88")
    L("L_amp_spin")
    E("s_memrealtime s[88:89]")
    E("s_waitcnt lgkmcnt(0)")
    E("s_sub_u32 s89, s94, s88")
    E("s_cmp_gt_i32 s89, 0")
    E("s_cbranch_scc1 L_amp_spin")
if PROF:
    stamp(7)
    E("s_waitcnt vmcnt(0)")
    stamp(8)
L("L_D1_end")
stamp_flush(0, 0, (128, 4, [60, 2, 3, 4, 6, 20, 8]))
E("s_endpgm")
sec("help")
L("L_D1_help")
E(f"s_mul_i32 s{sT0}, s{sG}, {224*1024}")
E(f"s_lshl_b32 s{sT1}, s{sC}, 7")
E(f"s_add_u32 s{sT0}, s{sT0}, s{sT1}")
srd(R_B, sW2, f"s{sT0}", 224*1024 - 896)
E("v_lshlrev_b32 v244, 10, v242")
E("v_lshl_add_u32 v244, v243, 4, v244")
E(f"s_cmp_eq_u32 s{sWV}, 4")
E("s_cbranch_scc1 L_D1_ctl")
if not W2P: E(f"buffer_load_dword v255, v244, s[{R_B}:{R_B+3}], 0 offen")
for u in range(3):
    E(f"s_cmp_lg_u32 s{sWV}, {5+u}")
    E(f"s_cbranch_scc1 L_D1_wm{u}")
    warm("d1", u, 3)
    L(f"L_D1_wm{u}")
E("s_branch L_D1_bq")
L("L_D1_ctl")
E(f"v_lshlrev_b32 v{cT}, 7, v2")
E(f"buffer_load_dword v240, v{cT}, {WSR}, s{sQ0} offen sc1")
ctl_head()
xc_publish()
L("L_D1_bq")
E("s_barrier")
E(f"s_cmp_lg_u32 s{sWV}, 4")
E("s_cbranch_scc1 L_D1_w2")
first_gather("d1x", False, None)
stamp(3)
E(f"v_lshlrev_b32 v{cT}, 3, v1")
E(f"s_cmp_eq_u32 s{sMODE}, 1")
E("s_cbranch_scc0 L_D1_b2")
L("L_D1_st")
E(f"buffer_load_dword v{cT+1}, v{cT}, {WSR}, s{sLOC} offen offset:{W_ST} sc1")
E("s_waitcnt vmcnt(0)")
E(f"v_cmp_ne_u32 vcc, -1, v{cT+1}")
E("s_cbranch_vccnz L_D1_b2")
E("s_sleep 8")
spin_check("L_D1_st")
L("L_D1_b2")
E("s_waitcnt lgkmcnt(0)")
L("L_D1_w2")
E("s_barrier")
E(f"s_sub_u32 s{sT0}, s{sWV}, 4")
E(f"s_mul_i32 s{sT1}, s{sT0}, 7168")
E(f"s_add_u32 m0, s{sT1}, {WB_LDS}")
E(f"s_mul_i32 s{sT1}, s{sT0}, {56*1024}")
for i in range(7):
    E(f"buffer_load_dwordx4 v244, s[{R_B}:{R_B+3}], s{sT1} offen{NTW} lds")
    if i < 6:
        E("s_add_u32 m0, m0, 1024")
        E(f"s_add_u32 s{sT1}, s{sT1}, 8192")
E("s_waitcnt vmcnt(0) lgkmcnt(0)")
stamp(4)
E("s_barrier")
stamp_flush(4, 1)
E("s_endpgm")

L("L_D2_init")
E(f"s_min_u32 s{sT1}, s{sC}, 6")
E(f"s_lshl_b32 s{sT1}, s{sT1}, 6")
E(f"s_mul_i32 s{sT0}, s{sG}, 448")
E(f"s_add_u32 s{sS1}, s{sT0}, s{sT1}")
E(f"s_sub_u32 s{sT3}, {1835008}, s{sS1}")
srd(R_B, sW1, f"s{sS1}", f"s{sT3}")
srd(R_C, sDBG, None, 256)
E(f"s_cmp_eq_u32 s{sWV}, 4")
E("s_cbranch_scc1 L_D2_ctl")
E(f"s_cmp_eq_u32 s{sWV}, 5")
E("s_cbranch_scc1 L_D2_flag")
E("v_lshrrev_b32 v245, 2, v1")
E("v_mul_u32_u24 v245, 3584, v245")
E("v_and_b32 v246, 3, v1")
E("v_and_b32 v247, 1, v3")
E("v_xor_b32 v246, v246, v247")
E("v_lshl_add_u32 v244, v246, 4, v245")
E("v_xor_b32 v246, 2, v246")
E("v_lshl_add_u32 v245, v246, 4, v245")
E(f"s_sub_u32 s{sT0}, s{sWV}, 6")
E(f"s_lshl_b32 s{sT1}, s{sT0}, 14")
E(f"s_add_u32 m0, s{sT1}, {WB_LDS}")
E(f"s_mul_i32 s{sT1}, s{sT0}, {256*3584}")
if W1L == 2:
    E(f"buffer_load_dword v255, v244, s[{R_B}:{R_B+3}], s{sT1} offen")
    E(f"s_add_u32 s{sT2}, s{sT1}, {240*3584}")
    E(f"buffer_load_dword v255, v244, s[{R_B}:{R_B+3}], s{sT2} offen")
for u in range(2):
    E(f"s_cmp_lg_u32 s{sWV}, {6+u}")
    E(f"s_cbranch_scc1 L_D2_wm{u}")
    warm("d2", u, 2)
    L(f"L_D2_wm{u}")
if LATE0 >= 2 or W1L == 1: E("s_barrier")
if W1L == 2:
    E("s_barrier")
    E(f"v_mov_b32 v{cT}, {FL_LDS}")
    E(f"ds_read_b32 v{cT+1}, v{cT}")
    E(f"v_lshlrev_b32 v{cT}, 3, v1")
    E("s_waitcnt lgkmcnt(0)")
    E(f"v_cmp_ne_u32 vcc, 1, v{cT+1}")
    E("s_cbranch_vccnz L_D2_w1go")
    L("L_D2_w1st")
    E(f"buffer_load_dword v{cT+1}, v{cT}, {WSR}, s{sLOC} offen offset:{W_ST} sc1")
    E("s_waitcnt vmcnt(0)")
    E(f"v_cmp_ne_u32 vcc, -1, v{cT+1}")
    if W1N > 1:
        E(f"s_bcnt1_i32_b64 s{sT2}, vcc")
        E(f"s_cmp_ge_u32 s{sT2}, {4*W1N}")
        E("s_cbranch_scc1 L_D2_w1go")
    else: E("s_cbranch_vccnz L_D2_w1go")
    E("s_sleep 2")
    spin_check("L_D2_w1st")
    L("L_D2_w1go")
for i in range(16):
    E(f"buffer_load_dwordx4 v{244 + (i//4) % 2}, s[{R_B}:{R_B+3}], s{sT1} offen{NTW} lds")
    if i < 15:
        E("s_add_u32 m0, m0, 1024")
        E(f"s_add_u32 s{sT1}, s{sT1}, {16*3584}")
E("s_waitcnt vmcnt(0)")
stamp(4)
E("s_barrier")
stamp_flush(6, 2)
E("s_endpgm")
L("L_D2_flag")
E(f"s_lshl_b32 s{sT1}, s{sG}, 5")
E(f"s_lshl_b32 s{sT2}, s{sC}, 2")
E(f"s_add_u32 s{sT1}, s{sT1}, s{sT2}")
E(f"v_mov_b32 v{cT}, 1")
E(f"v_mov_b32 v{cT+1}, s{sT1}")
E(f"v_lshlrev_b32 v{cT+2}, 2, v1")
E("s_waitcnt vmcnt(0)")
E("s_mov_b64 exec, 1")
E(f"buffer_store_dword v{cT}, v{cT+1}, s[{R_C}:{R_C+3}], 0 offen sc1")
E("s_mov_b64 exec, -1")
if LATE0 >= 2 or W1L == 1: E("s_barrier")
E("s_waitcnt vmcnt(0)")
L("L_D2_fpoll")
E(f"buffer_load_dword v{cT+3}, v{cT+2}, s[{R_C}:{R_C+3}], 0 offen sc1")
E("s_waitcnt vmcnt(0)")
E(f"v_cmp_ne_u32 vcc, 1, v{cT+3}")
E("s_cbranch_vccz L_D2_fok")
E("s_sleep 8")
spin_check("L_D2_fpoll")
L("L_D2_fok")
E("s_barrier")
E("s_endpgm")
L("L_D2_ctl")
ctl_head()
stamp(1)
xc_publish()
first_gather("d2x", False, lambda: d2_clear(" sc1", True))
stamp(2)
if LATE0 == 3:
    E(f"v_lshlrev_b32 v{cT}, {'3' if STW else '2'}, v1")
    E(f"s_cmp_eq_u32 s{sMODE}, 1")
    E("s_cbranch_scc0 L_D2_go")
    L("L_D2_st")
    if STW:
        E(f"buffer_load_dword v{cT+1}, v{cT}, {WSR}, s{sLOC} offen offset:{W_ST} sc1")
        E("s_waitcnt vmcnt(0)")
        E(f"v_cmp_ne_u32 vcc, -1, v{cT+1}")
    E("s_cbranch_vccnz L_D2_go")
    E("s_sleep 2")
    spin_check("L_D2_st")
    L("L_D2_go")
    stamp(3)
E("s_waitcnt lgkmcnt(0)")
if LATE0 >= 2 or W1L == 1: E("s_barrier")
E("s_barrier")
stamp_flush(4, 1)
E("s_endpgm")
sec("d2")
L("L_D2_comp")
E(f"s_min_u32 s{sT1}, s{sC}, 6")
E(f"s_lshl_b32 s{sT1}, s{sT1}, 6")
E(f"s_mul_i32 s{sT0}, s{sG}, 448")
E(f"s_add_u32 s{sS1}, s{sT0}, s{sT1}")
if LATE0: wo_issue()
if W1L == 1 and LATE0 < 2: E("s_barrier")
srd(R_C, sB1, None, 3584)
E(f"v_and_b32 v{TT+5}, 7, v2")
E(f"v_lshlrev_b32 v{TT+5}, 1, v{TT+5}")
E(f"s_lshl_b32 s{sT1}, s{sWV}, 4")
E(f"s_add_u32 s{sT0}, s{sS1}, s{sT1}")
E(f"buffer_load_ushort v{vB1}, v{TT+5}, s[{R_C}:{R_C+3}], s{sT0} offen")
E(f"v_lshrrev_b32 v{TT+5}, 1, v{TT+2}")
E(f"v_lshl_add_u32 v{TT+5}, v{TT+1}, 1, v{TT+5}")
E(f"v_xor_b32 v{TT+5}, s{sWV}, v{TT+5}")
E(f"v_lshl_add_u32 v{aTA}, v3, 7, v{TT+2}")
E(f"v_lshlrev_b32 v{aTA}, 7, v{aTA}")
E(f"v_lshl_add_u32 v{aTA}, v{TT+3}, 3, v{aTA}")
E(f"v_lshl_add_u32 v{aTA}, v{TT+5}, 5, v{aTA}")
E(f"v_bfe_u32 v{TT+5}, v2, 1, 1")
E(f"v_lshl_add_u32 v{TT+6}, v{TT+5}, 6, v{TT+4}")
E(f"v_lshl_add_u32 v{TT+5}, v{TT+5}, 1, v{TT+1}")
E(f"v_xor_b32 v{TT+5}, s{sWV}, v{TT+5}")
E(f"v_lshlrev_b32 v{aTB}, 6, v{TT+6}")
E(f"v_lshl_add_u32 v{aTB}, v{TT+5}, 4, v{aTB}")
E(f"v_and_b32 v{TT+5}, 1, v2")
E(f"v_lshl_add_u32 v{aTB}, v{TT+5}, 3, v{aTB}")
E(f"v_add_u32 v{aTB}, {WB_LDS}, v{aTB}")
E(f"s_lshl_b32 s{sT1}, s{sWV}, 7")
E(f"v_lshlrev_b32 v{aST}, 5, v3")
E(f"v_add_u32 v{aST}, s{sT1}, v{aST}")
E(f"v_lshlrev_b32 v{aOS}, 4, v2")
E(f"v_lshl_add_u32 v{aOS}, v{TT+1}, 3, v{aOS}")
E(f"v_lshl_add_u32 v{aOS}, v{TT}, 2, v{aOS}")
E(f"s_lshl_b32 s{sT1}, s{sWV}, 8")
E(f"s_add_u32 s{sT1}, s{sT1}, {OS_LDS}")
E(f"v_add_u32 v{aOS}, s{sT1}, v{aOS}")
E(f"v_add_u32 v{aIN}, {OS_LDS}, v{vL16}")
E(f"v_lshlrev_b32 v{TT+5}, 4, v{TT+5}")
E(f"v_mov_b32 v{TT+6}, 0xffff")
E(f"v_lshlrev_b32 v{TT+6}, v{TT+5}, v{TT+6}")
E(f"v_bfe_u32 v{TT+7}, v2, 1, 2")
for d in range(4):
    E(f"v_cmp_eq_u32 vcc, {d}, v{TT+7}")
    E("s_nop 1")
    E(f"v_cndmask_b32 v{MK+d}, 0, v{TT+6}, vcc")
E(f"v_lshrrev_b32 v{vFLG}, 3, v2")
E(f"v_cmp_eq_u32 vcc, v{vFLG}, v{TT}")
E(f"v_cvt_f32_u32 v{vFLG}, v{vFLG}")
E("s_nop 0")
E(f"v_cndmask_b32 v{vVAL}, 0, -1, vcc")
E(f"s_lshl_b32 s{sT1}, s{sWV}, 12")
E(f"s_add_u32 s{sPoff}, s{sPoff}, s{sT1}")
E(f"s_lshl_b32 s{sT1}, s{sPJ}, 4")
E(f"s_add_u32 s{sPub}, s{sLOC}, s{sT1}")
E(f"s_add_u32 s{sPubG}, s{sPubG}, {W_Y}")
E(f"s_mov_b32 s{sYoff}, {W_Y}")
E(f"s_mov_b32 s{sC2}, 0")
E("s_waitcnt vmcnt(0)")
unpack_resid(XB)
E(f"v_lshlrev_b32 v{vB1}, 16, v{vB1}")
stamp(1)
E("s_barrier")
stamp(2)
ampx("xw", 0)
for s in range(16):
    for e in range(2):
        E(f"ds_read_b64_tr_b16 {vr(WA+4*s+2*e,2)}, v{aTA} offset:{1024*s+512*e}")
def w1_frags():
    for s in range(8):
        for e in range(2):
            E(f"ds_read_b64_tr_b16 {vr(WB+4*s+2*e,2)}, v{aTB} offset:{16384*e+512*s}")
def w1_sums():
    for s in range(8):
        c = "0" if s == 0 else vr(ACC,4)
        E(f"v_mfma_f32_16x16x32_bf16 {vr(ACC,4)}, {vr(ONESB,4)}, {vr(WB+4*s,4)}, {c}")
    E("s_nop 7")
    E(f"v_add_f32_dpp v{vCS}, v{ACC}, v{ACC} row_ror:8 row_mask:0xf bank_mask:0xf")
if W1L != 2: w1_frags()
read_mode("0xff", 28)
if W1L != 2: w1_sums()
L("L_D2_loop")
mark("d2")
def p_loads():
    for i in range(4):
        E(f"buffer_load_dwordx4 {vr(GB+4*i,4)}, v{vL16}, {WSR}, s{sPoff} offen offset:{1024*i} sc1")
arm(vST, 8)
p_loads()
if TP & 2:
    E(f"s_cmp_eq_u32 s{sLAY}, 0")
    E("s_cbranch_scc1 L_D2_near")
    gather1("gx2s", CA, vL16, sLOC, W_X2, TT, pd=1, slp=PSL)
    L("L_D2_near")
L("L_gs_poll")
E(f"buffer_load_dwordx4 {vr(vST,4)}, v{aST}, {WSR}, s{sLOC} offen offset:{W_ST} sc1")
E(f"buffer_load_dwordx4 {vr(vST+4,4)}, v{aST}, {WSR}, s{sLOC} offen offset:{W_ST+16} sc1")
E(f"s_waitcnt vmcnt({2*(PD-1)})")
E(f"v_max3_u32 v{TT}, v{vST}, v{vST+1}, v{vST+2}")
E(f"v_max3_u32 v{TT+1}, v{vST+3}, v{vST+4}, v{vST+5}")
E(f"v_max3_u32 v{TT}, v{TT}, v{vST+6}, v{vST+7}")
E(f"v_max_u32 v{TT}, v{TT}, v{TT+1}")
E(f"v_cmp_eq_u32 vcc, -1, v{TT}")
E("s_cbranch_vccz L_gs_ok")
if SLP: E(f"s_sleep {SLP}")
spin_check("L_gs_poll")
L("L_gs_ok")
p_loads()
stamp(3, True)
vM, vU, vLs = TT, TT+1, TT+2
WT = TT + 3
AW = GB + 16
E(f"v_max3_f32 v{vM}, v{vST}, v{vST+2}, v{vST+4}")
E(f"v_max_f32 v{vM}, v{vM}, v{vST+6}")
for sw in ("16", "32"):
    E(f"v_mov_b32 v{vU}, v{vM}")
    E("s_nop 1")
    E(f"v_permlane{sw}_swap_b32 v{vM}, v{vU}")
    E(f"v_max_f32 v{vM}, v{vM}, v{vU}")
for t in range(4): E(f"v_sub_f32 v{WT+t}, v{vST+2*t}, v{vM}")
for t in range(4): E(f"v_exp_f32 v{WT+t}, v{WT+t}")
E("s_nop 0")
E(f"v_mul_f32 v{vLs}, v{WT}, v{vST+1}")
for t in range(1, 4): E(f"v_fmac_f32 v{vLs}, v{WT+t}, v{vST+2*t+1}")
for sw in ("16", "32"):
    E(f"v_mov_b32 v{vU}, v{vLs}")
    E("s_nop 1")
    E(f"v_permlane{sw}_swap_b32 v{vLs}, v{vU}")
    E(f"v_add_f32 v{vLs}, v{vLs}, v{vU}")
E(f"v_rcp_f32 v{vLs}, v{vLs}")
p_loads()
for t in range(4): E(f"v_mul_f32 v{WT+t}, v{WT+t}, v{vLs}")
for t in range(4): E(f"v_cvt_pk_bf16_f32 v{WT+4+t}, v{WT+t}, v{WT+t}")
for t in range(4): E(f"v_and_b32 v{WT+4+t}, 0xffff0000, v{WT+4+t}")
for t in range(4): E(f"v_fma_f32 v{WT+t}, -v{WT+4+t}, v{vFLG}, v{WT+t}")
for t in range(4): E(f"v_cvt_pk_bf16_f32 v{WT+t}, v{WT+t}, v{WT+t}")
for t in range(4):
    for d in range(4): E(f"v_and_b32 v{AW+4*t+d}, v{MK+d}, v{WT+t}")
E("s_branch L_gp_use")
L("L_gp_nan")
E(f"s_sub_u32 s{sSPIN}, s{sSPIN}, 1")
E("s_cbranch_scc1 L_exit")
E(f"s_and_b32 s{sT1}, s{sSPIN}, 15")
E("s_cbranch_scc0 L_gp_retry")
L("L_gp_again")
p_loads()
L("L_gp_use")
E("s_waitcnt vmcnt(4)")
for t in range(4):
    E(f"v_mfma_f32_16x16x32_bf16 {vr(CA,4)}, {vr(AW+4*t,4)}, {vr(GB+4*t,4)}, {'0' if t == 0 else vr(CA,4)}")
E("s_nop 7")
E(f"v_cmp_u_f32 vcc, v{CA}, v{CA}")
E(f"v_permlane32_swap_b32 v{CA}, v{CA+2}")
E(f"v_permlane32_swap_b32 v{CA+1}, v{CA+3}")
E("s_cbranch_vccnz L_gp_nan")
L("L_gp_ok")
E(f"v_add_f32 v{CA}, v{CA}, v{CA+2}")
E(f"v_add_f32 v{CA+1}, v{CA+1}, v{CA+3}")
E(f"v_cvt_pk_bf16_f32 v{CA}, v{CA}, v{CA+1}")
E(f"ds_write_b32 v{aOS}, v{CA}")
E(f"v_mov_b32 v{vT}, 0")
stamp(4, True)
mark("d2")
E("s_waitcnt lgkmcnt(0)")
E("s_barrier")
E(f"ds_read_b128 {vr(XB,4)}, v{aIN}")
E(f"buffer_load_dwordx4 {vr(CA,4)}, v{vL16}, {WSR}, s{sLOC} offen offset:{W_X2} sc1")
E("s_waitcnt lgkmcnt(0)")
matvec(16, XB, WA, [], per=PN)
y_publish()
stamp(5, True)
ampx("xy", 0)
if W1L == 2:
    E(f"s_cmp_lg_u32 s{sLAY}, 0")
    E("s_cbranch_scc1 L_D2_havew1")
    w1_frags()
    E("s_waitcnt lgkmcnt(0)")
    w1_sums()
    L("L_D2_havew1")
def pre_y():
    E(f"s_cmp_eq_u32 s{sLAY}, 0")
    E("s_cbranch_scc1 L_D2_havex")
    E("s_waitcnt vmcnt(1)")
    chk_bf16(CA, TT)
    E("s_cbranch_vccz L_gx2_have")
    gather1("gx2", CA, vL16, sLOC, W_X2, TT, pd=1, slp=0)
    L("L_gx2_have")
    unpack_resid(CA)
    L("L_D2_havex")
relay_X("gy", sYoff, pre_y)
stamp(6, True)
ampx("xz", 0)
E(f"s_cmp_eq_u32 s{sC}, 7")
E("s_cbranch_scc1 L_D2_x1")
matvec(8, XB, WB, stats_fillers(), rows=[(0x5, 0xf, [0,1,2,3]), (0xa, 0xf, [4,5,6,7])], per=PER+2)
mark("d2")
xgroup_sum(True)
h, u, a, b = vT, TT+5, TT+6, TT+7
E(f"v_add_f32 v{h}, v{h}, v{vB1}")
E(f"v_mul_f32 v{u}, s{sC3}, |v{h}|")
E(f"v_exp_f32 v{u}, v{u}")
E(f"v_cmp_le_f32 vcc, 0, v{h}")
E(f"v_add_f32 v{b}, 2.0, v{u}")
E(f"v_fma_f32 v{a}, v{u}, 2.0, 1.0")
E(f"v_mul_f32 v{b}, v{u}, v{b}")
E(f"v_mul_f32 v{u}, v{u}, v{u}")
E(f"v_cndmask_b32 v{a}, v{b}, v{a}, vcc")
E(f"v_cndmask_b32 v{u}, 1.0, v{u}, vcc")
E(f"v_fma_f32 v{b}, v{u}, 2.0, v{a}")
E(f"v_rcp_f32 v{b}, v{b}")
E(f"v_mul_f32 v{h}, v{h}, v{a}")
E(f"v_mul_f32 v{h}, v{h}, v{b}")
E(f"v_cvt_pk_bf16_f32 v{h}, v{h}, v{h}")
E(f"v_min_u32 v{h}, -2, v{h}")
pub2("buffer_store_short", f"v{h}", aP16, sPub, sMA_f, sMA_s, W_ACT)
stamp(7, True)
L("L_D2_next")
for s_ in (sLOC, sPoff, sPub, sPubG, sYoff):
    E(f"s_add_u32 s{s_}, s{s_}, {LS}")
E(f"s_add_u32 s{sLAY}, s{sLAY}, 1")
E(f"s_cmp_lt_u32 s{sLAY}, 2")
E("s_cbranch_scc1 L_D2_loop")
stamp_flush(0, 0)
E("s_endpgm")
L("L_D2_x1")
pub_resid(W_X1)
unpack_resid(XB)
E("s_branch L_D2_next")
sec("cold")
L("L_exit")
E("s_endpgm")
L("L_gp_retry")
for i in range(0, 16, 2): E(f"v_pk_max_u16 v{ACC+i//2}, v{GB+i}, v{GB+i+1}")
for i in range(0, 8, 2): E(f"v_pk_max_u16 v{ACC+i//2}, v{ACC+i}, v{ACC+i+1}")
chk_bf16(ACC, TT)
E("s_cbranch_vccnz L_gp_again")
for t in range(4):
    E(f"v_mfma_f32_16x16x32_bf16 {vr(CA,4)}, {vr(AW+4*t,4)}, {vr(GB+4*t,4)}, {'0' if t == 0 else vr(CA,4)}")
E("s_nop 9")
E(f"v_permlane32_swap_b32 v{CA}, v{CA+2}")
E(f"v_permlane32_swap_b32 v{CA+1}, v{CA+3}")
E("s_branch L_gp_ok")
for b_ in retry_blocks: b_()
L("L_code_end")

out = [open("cdna_kernels/" + NAME + ".s.ref").read().split("; Override")[0].rstrip("\n"),
       f"; @launch grid=(256,1,1) block=(512,1,1) lds={LDS_BYTES}", '.amdgcn_target "amdgcn-amd-amdhsa--gfx950"', ".text",
       f".globl {NAME}_kernel", ".p2align 8", f".type {NAME}_kernel,@function"]
for k in ORDER:
    for x in secs[k]:
        if isinstance(x, tuple) and x[0] == "MARK":
            _, role, i = x
            n = wstep[role]
            out.append("    s_cbranch_execz " + (marks[role][i + n] if i + n < len(marks[role]) else f"L_wd_{role}{i % n}"))
        elif isinstance(x, tuple):
            _, role, first, step = x
            assert first < len(marks[role])
            out += ["    s_mov_b64 exec, 0", f"    s_branch {marks[role][first]}", f"L_wd_{role}{first}:", "    s_mov_b64 exec, -1"]
        else: out.append(x)
out.append('.section .rodata,"a"')
out.append(".p2align 6")
out.append(f".amdhsa_kernel {NAME}_kernel")
out.append("  .amdhsa_next_free_vgpr 256")
out.append("  .amdhsa_next_free_sgpr 96")
out.append("  .amdhsa_accum_offset 256")
out.append("  .amdhsa_group_segment_fixed_size 0")
out.append("  .amdhsa_kernarg_size 96")
out.append("  .amdhsa_user_sgpr_count 2")
out.append("  .amdhsa_user_sgpr_kernarg_segment_ptr 1")
out.append("  .amdhsa_system_sgpr_workgroup_id_x 1")
out.append("  .amdhsa_float_denorm_mode_32 3")
out.append(".end_amdhsa_kernel")
open(sys.argv[1], "w").write("\n".join(out) + "\n")
```

```python
import sys, math, struct
PROF = int(sys.argv[2]) if len(sys.argv) > 2 else 0
OPT = dict(a.split("=") for a in sys.argv[3:])
THR = int(OPT.get("thr", 6))
ACK = int(OPT.get("ack", 1))
PER = int(OPT.get("per", 3))
PD = int(OPT.get("pd", 3))
SLP = int(OPT.get("slp", 0))
LATE0 = int(OPT.get("late0", 1))
GP = int(OPT.get("gp", 1))
GSL = int(OPT.get("gsl", 0))
THV = int(OPT.get("thv", 10))
GD = int(OPT.get("gd", 0))
fl = lambda k, d: {"0": "", "1": " nt", "2": " sc1", "3": " sc0 sc1", "4": " sc1 nt"}[OPT.get(k, d)]
NTQ, NTW, NTK, NTV = fl("ntq", "0"), fl("ntw", "0"), fl("ntk", "1"), fl("ntv", "0")
TQ = int(OPT.get("tq", 1))
MARKGAP = int(OPT.get("gap", 768))
CPF = int(OPT.get("cpf", 1))
W1L = int(OPT.get("w1l", 1))
STW = 1
REORD = int(OPT.get("reord", 0))
PAD = int(OPT.get("pad", 1))
PN = int(OPT.get("pn", 4))
W2P = int(OPT.get("w2p", 0))
W1N = int(OPT.get("w1n", 1))
FSL = int(OPT.get("fsl", 3))
PSL = int(OPT.get("psl", 3))
TP = int(OPT.get("tp", 0))
WARM = int(OPT.get("warm", 0))
NTT = fl("ntt", "0")
GFL = fl("gfl", "2")
SFL = {"2": " sc1", "3": " sc0 sc1", "4": " sc1 nt"}[OPT.get("sfl", "2")]
NAME = "interleave_layers__sliding_block_cached__dense_activation_mish__decode"
import re
ORDER = ["entry", "dinit", "d1", "actl", "a", "d2", "help", "cold"]
secs = {k: [] for k in ORDER}
cur = ["entry"]
since = {k: 0 for k in ORDER}
unsafe = [False]
marks = {k: [] for k in ORDER}
WARMED = ("d1", "a", "d2")
BIG = ("v_mfma", "v_pk_", "v_fma_", "v_max3", "v_or3", "v_add3", "v_lshl_add", "v_bfe", "v_mul_lo", "v_cvt_pk", "v_readlane", "v_writelane",
       "ds_", "buffer_", "global_", "s_load", "s_memrealtime")
def isize(t):
    if t.startswith(BIG) or "_dpp" in t or "|v" in t or (t.startswith(("v_cmp", "v_cndmask")) and "s[" in t): return 8
    ops = t.split(None, 1)[1] if " " in t else ""
    if t.startswith(("s_waitcnt", "s_nop", "s_sleep", "s_branch", "s_cbranch", "s_call", "s_getreg", "s_setprio")): return 4
    for tok in re.split(r"[,\s]+", ops):
        if re.fullmatch(r"0x[0-9a-f]+|\d+", tok) and int(tok, 0) > 64: return 8
    return 4
def sec(name): cur[0] = name
def put_mark():
    k = cur[0]
    marks[k].append(f"L_wm_{k}{len(marks[k])}")
    secs[k].append(marks[k][-1] + ":")
    secs[k].append(("MARK", k, len(marks[k]) - 1))
    since[k] = 4
def E(s=""):
    k = cur[0]
    if WARM and k in WARMED and not unsafe[0] and (since[k] >= MARKGAP or not marks[k]): put_mark()
    secs[k].append("    " + s)
    since[k] += isize(s)
    if re.match(r"s_\w+ exec", s): unsafe[0] = s != "s_mov_b64 exec, -1"
def L(s): secs[cur[0]].append(s + ":")
def vr(a, n=1): return f"v{a}" if n == 1 else f"v[{a}:{a+n-1}]"
def f32(x): return hex(struct.unpack("<I", struct.pack("<f", x))[0])

K_LDS, V_LDS = 0, 65536
WA_LDS, WB_LDS = 0, 65536
QS_LDS, PX_LDS, SX_LDS, FL_LDS = 131072, 132608, 140800, 141312
OS_LDS, XS_LDS = QS_LDS, PX_LDS
LDS_BYTES = 141824
LS = 0x30000
W_Q, W_X2, W_X1, W_ST, W_ACT = 0, 1024, 2048, 3072, 3584
W_Y, W_Z, W_P = 32768, 40960, 65536
W_Q0 = 2 * LS
W_Q0B = 32768
W_EP = W_Q0 + 65536
ALT = 0x80000
WS_USED = ALT + 2 * LS
PROF_OFF = 0x300000
WS_REC = PROF_OFF + 256 * 1024

sX, sK, sV, sWQ, sWO, sBX, sW1, sB1 = 8, 10, 12, 14, 16, 18, 20, 22
sW2, sOUT, sDBG, sWS = 24, 26, 28, 30
sG, sJ, sWV, sC, sPJ = 3, 4, 5, 6, 7
R_WS, R_A, R_B, R_C = 32, 36, 40, 44
sT0, sT1, sT2, sT3 = 48, 49, 50, 51
sLOC, sLAY = 52, 53
sYoff, sZoff, sPoff = 54, 55, 56
sSPIN = 57
sRET = 58
sMA_f, sMA_s, sMB_f, sMB_s, sMC_f, sMC_s = 60, 62, 64, 66, 68, 70
sTAG, sXCC, sQ0, sQ0B = 72, 73, 74, 75
sFFFE = 76
sC1, sC2, sC3 = 77, 78, 79
sS1, sS2, sPIV = 80, 81, 82
sPub, sPubG = 83, 84
sST = 88
sPe, sLe, sMODE = 90, 91, 92
SPIN0 = 0x200000
WSR = f"s[{R_WS}:{R_WS+3}]"

def srd(r, base, add_lo=None, rec=None):
    if add_lo is None:
        E(f"s_mov_b32 s{r}, s{base}")
        E(f"s_and_b32 s{r+1}, s{base+1}, 0xffff")
    else:
        E(f"s_add_u32 s{r}, s{base}, {add_lo}")
        E(f"s_addc_u32 s{r+1}, s{base+1}, 0")
        E(f"s_and_b32 s{r+1}, s{r+1}, 0xffff")
    E(f"s_mov_b32 s{r+2}, {rec}")
    E(f"s_mov_b32 s{r+3}, 0x00020000")

V_STAMP = 254
ROLE = ["a"]
def stamp(idx, layer_dep=False):
    if not PROF: return
    if PROF == 9 and not (idx == 8 and not layer_dep) and not (idx == 6 and layer_dep and ROLE[0] == "a" and "pt" not in OPT) and OPT.get("pt") != f"{cur[0]}_{idx}": return
    E(f"s_memrealtime s[{sST}:{sST+1}]")
    E("s_waitcnt lgkmcnt(0)")
    if layer_dep:
        E(f"s_lshl_b32 s{sT3}, s{sLAY}, 4")
        E(f"s_add_u32 s{sT3}, s{sT3}, {idx}")
        E(f"s_mov_b32 m0, s{sT3}")
        E("s_nop 0")
        E(f"v_writelane_b32 v{V_STAMP}, s{sST}, m0")
    else:
        E(f"v_writelane_b32 v{V_STAMP}, s{sST}, {idx}")
AMP = OPT.get("amp")
def amp(name):
    if AMP != name: return
    E(f"s_cmp_eq_u32 s{sLAY}, {OPT.get('amplay', '0')}")
    E(f"s_cbranch_scc0 L_amp_{name}")
    E("s_memrealtime s[94:95]")
    E("s_waitcnt lgkmcnt(0)")
    L(f"L_amp_{name}")
def ampx(name, wave):
    if AMP != name: return
    E(f"s_cmp_eq_u32 s2, {OPT.get('ampwg', '0')}")
    E(f"s_cbranch_scc0 L_amp_{name}")
    E(f"s_cmp_eq_u32 s{sWV}, {wave}")
    E(f"s_cbranch_scc0 L_amp_{name}")
    E(f"s_cmp_eq_u32 s{sLAY}, 0")
    E(f"s_cbranch_scc0 L_amp_{name}")
    E("s_memrealtime s[94:95]")
    E("s_waitcnt lgkmcnt(0)")
    if name == "xs": E("s_mov_b32 s94, s86")
    if name == "xa": E("s_mov_b32 s94, s88")
    E("v_mov_b32 v246, s94")
    E(f"v_mov_b32 v247, {W_EP + 64}")
    E(f"buffer_store_dword v246, v247, {WSR}, 0 offen sc1")
    L(f"L_amp_{name}")
def stamp_flush(wave, slot, dbg=None):
    if not PROF: return
    E(f"s_cmp_lg_u32 s{sWV}, {wave}")
    E("s_cbranch_scc1 L_exit")
    E("s_mov_b64 exec, -1")
    if dbg and "dbg" in OPT:
        wg, off, idx = dbg
        for i, x in enumerate(idx):
            E(f"v_readlane_b32 s{sT0}, v{V_STAMP}, {x}")
            E("s_nop 3")
            E(f"v_writelane_b32 v{V_STAMP-2}, s{sT0}, {i}")
        srd(R_A, sDBG, None, 256)
        E(f"v_lshlrev_b32 v{V_STAMP-1}, 2, v1")
        E(f"s_cmp_eq_u32 s2, {wg}")
        E(f"s_cselect_b32 exec_lo, {(1 << len(idx)) - 1}, 0")
        E("s_mov_b32 exec_hi, 0")
        E(f"buffer_store_dword v{V_STAMP-2}, v{V_STAMP-1}, s[{R_A}:{R_A+3}], 0 offen offset:{off}")
        E("s_mov_b64 exec, -1")
    E(f"s_lshl_b32 s{sT0}, s2, 10")
    E(f"s_add_u32 s{sT0}, s{sT0}, {PROF_OFF + slot*256}")
    E(f"v_lshlrev_b32 v{V_STAMP-1}, 2, v1")
    E(f"buffer_store_dword v{V_STAMP}, v{V_STAMP-1}, {WSR}, s{sT0} offen")

wstep = {}
def mark(role): pass
def warm(role, first=0, step=1):
    if WARM:
        secs[cur[0]].append(("WARM", role, first, step))
        assert wstep.setdefault(role, step) == step

def spin_check(fail_label):
    E(f"s_sub_u32 s{sSPIN}, s{sSPIN}, 1")
    E(f"s_cbranch_scc1 L_exit")
    E(f"s_branch {fail_label}")

def chk_bf16(v, t):
    E(f"v_pk_max_u16 v{t}, v{v}, v{v+1}")
    E(f"v_pk_max_u16 v{t+1}, v{v+2}, v{v+3}")
    E(f"v_pk_max_u16 v{t}, v{t}, v{t+1}")
    E(f"v_pk_max_u16 v{t}, v{t}, v{t} op_sel:[0,1] op_sel_hi:[1,0]")
    E(f"v_cmp_eq_u32 vcc, -1, v{t}")

def pub2(op, data, addr, soff, mf, ms, imm=0):
    o = f" offset:{imm}" if imm else ""
    E(f"s_mov_b64 exec, s[{mf}:{mf+1}]")
    E(f"{op} {data}, v{addr}, {WSR}, s{soff} offen{o}")
    E(f"s_mov_b64 exec, s[{ms}:{ms+1}]")
    E(f"{op} {data}, v{addr}, {WSR}, s{soff} offen{o} sc1")
    E("s_mov_b64 exec, -1")

def masks(mf, ms, lo, hi):
    E(f"s_cselect_b32 s{mf}, {lo}, 0")
    E(f"s_cselect_b32 s{mf+1}, {hi}, 0")
    E(f"s_cselect_b32 s{ms}, 0, {lo}")
    E(f"s_cselect_b32 s{ms+1}, 0, {hi}")

def arm(dst, n):
    for r in range(n): E(f"v_mov_b32 v{dst+r}, -1")

def gather1(tag, dst, addr, soff, imm, t, pd=None, slp=None):
    pd = PD if pd is None else pd
    slp = SLP if slp is None else slp
    L(f"L_{tag}_poll")
    E(f"buffer_load_dwordx4 {vr(dst,4)}, v{addr}, {WSR}, s{soff} offen offset:{imm} sc1")
    E(f"s_waitcnt vmcnt({pd-1})")
    chk_bf16(dst, t)
    E(f"s_cbranch_vccz L_{tag}_ok")
    if slp: E(f"s_sleep {slp}")
    spin_check(f"L_{tag}_poll")
    L(f"L_{tag}_ok")

cD, cA, cXa, cG, cT, cL16 = 208, 210, 211, 212, 224, 232
def xc_publish():
    E(f"s_getreg_b32 s{sXCC}, hwreg(HW_REG_XCC_ID, 0, 4)")
    E(f"v_mov_b32 v{cD+1}, s{sTAG}")
    E(f"s_lshl_b32 s{sT3}, s{sJ}, 3")
    E(f"v_mov_b32 v{cD}, s{sXCC}")
    E(f"v_mov_b32 v{cA}, s{sT3}")
    E("s_mov_b64 exec, 1")
    E(f"buffer_store_dwordx2 {vr(cD,2)}, v{cA}, {WSR}, s{sQ0} offen offset:2048")
    E("s_mov_b64 exec, -1")

def first_gather(tag, with_q, clear_alt, armed=False):
    regs = (1, 3, 5, 7) if with_q else (9,)
    nl = 3 if with_q else 1
    E(f"s_sub_u32 s{sS2}, s{sSPIN}, {480 // FSL}")
    if not armed:
        E(f"v_and_b32 v{cXa}, 31, v1")
        E(f"v_lshlrev_b32 v{cXa}, 3, v{cXa}")
        E(f"s_not_b32 s{sT1}, s{sTAG}")
        for r in regs + ((9,) if with_q else ()): E(f"v_mov_b32 v{cG+r}, s{sT1}")
    def loads(so):
        if with_q:
            E(f"buffer_load_dwordx4 {vr(cG,4)}, v{cL16}, {WSR}, s{so} offen sc1")
            E(f"buffer_load_dwordx4 {vr(cG+4,4)}, v{cL16}, {WSR}, s{so} offen offset:1024 sc1")
        E(f"buffer_load_dwordx2 {vr(cG+8,2)}, v{cXa}, {WSR}, s{so} offen offset:2048 sc1")
    def check():
        if with_q:
            for i, r in enumerate(regs): E(f"v_xor_b32 v{cT+i}, s{sTAG}, v{cG+r}")
            E(f"v_or3_b32 v{cT}, v{cT}, v{cT+1}, v{cT+2}")
            E(f"v_or_b32 v{cT}, v{cT}, v{cT+3}")
            E(f"v_cmp_ne_u32 vcc, 0, v{cT}")
        else:
            E(f"v_cmp_ne_u32 vcc, s{sTAG}, v{cG+9}")
    def copy_b():
        E("s_mov_b64 exec, 1")
        E(f"buffer_store_dwordx2 {vr(cD,2)}, v{cA}, {WSR}, s{sQ0B} offen offset:2048 sc1")
        E("s_mov_b64 exec, -1")
    L(f"L_{tag}_poll")
    loads(sQ0)
    E(f"s_waitcnt vmcnt({24 if armed else nl*6})")
    check()
    E(f"s_cbranch_vccz L_{tag}_seen")
    E(f"s_sleep {FSL}")
    E(f"s_cmp_gt_u32 s{sSPIN}, s{sS2}")
    E(f"s_cbranch_scc0 L_{tag}_b")
    spin_check(f"L_{tag}_poll")
    home = cur[0]; sec("cold")
    L(f"L_{tag}_b")
    copy_b()
    L(f"L_{tag}_alt")
    for so in (sQ0B, sQ0):
        loads(so)
        E("s_waitcnt vmcnt(0)")
        check()
        E(f"s_cbranch_vccz L_{tag}_{'altok' if with_q else 'ok'}")
    spin_check(f"L_{tag}_alt")
    if with_q:
        L(f"L_{tag}_altok")
        E(f"s_not_b32 s{sT1}, s{sTAG}")
        E(f"v_mov_b32 v{cG+9}, s{sT1}")
        E(f"s_branch L_{tag}_ok")
    sec(home)
    L(f"L_{tag}_seen")
    E("s_nop 15")
    L(f"L_{tag}_ok")
    if with_q:
        E(f"ds_write2_b32 v{cT+5}, v{cG}, v{cG+2} offset0:0 offset1:1")
        E(f"ds_write2_b32 v{cT+5}, v{cG+4}, v{cG+6} offset0:160 offset1:161")
        return
    E(f"v_cmp_ne_u32 vcc, s{sXCC}, v{cG+8}")
    E("s_nop 3")
    if OPT.get("slow") == "1": E("s_mov_b64 vcc, -1")
    E("s_cmp_eq_u64 vcc, 0")
    E(f"s_cselect_b32 s{sMODE}, 1, 0")
    E(f"s_cbranch_scc0 L_{tag}_slow")
    sec("cold")
    L(f"L_{tag}_slow")
    E("s_waitcnt vmcnt(0) lgkmcnt(0)")
    copy_b()
    if clear_alt: clear_alt()
    if clear_alt:
        E("s_waitcnt vmcnt(0)")
        E("s_mov_b64 exec, 1")
        E(f"buffer_store_dwordx2 {vr(cD,2)}, v{cA}, {WSR}, s{sQ0B} offen offset:2560 sc1")
        E("s_mov_b64 exec, -1")
    E(f"v_and_b32 v{cXa}, 56, v{cXa}")
    E(f"v_add_u32 v{cXa}, 192, v{cXa}")
    L(f"L_{tag}_h")
    E(f"buffer_load_dwordx2 {vr(cG+8,2)}, v{cXa}, {WSR}, s{sQ0B} offen offset:2560 sc1")
    E("s_waitcnt vmcnt(0)")
    E(f"v_cmp_ne_u32 vcc, s{sTAG}, v{cG+9}")
    E(f"s_cbranch_vccz L_{tag}_done")
    spin_check(f"L_{tag}_h")
    sec(home)
    L(f"L_{tag}_done")
    E(f"v_mov_b32 v{cT+2}, {FL_LDS}")
    E(f"v_mov_b32 v{cT+3}, s{sMODE}")
    E(f"ds_write_b32 v{cT+2}, v{cT+3}")

L(f"{NAME}_kernel")
E("s_cmp_ge_u32 s2, 256")
E("s_cbranch_scc1 L_exit")
E("s_load_dwordx16 s[8:23], s[0:1], 0")
E("s_load_dwordx8 s[24:31], s[0:1], 64")
if PROF:
    E(f"v_mov_b32 v{V_STAMP}, 0")
    E(f"s_memrealtime s[{sST}:{sST+1}]")
if AMP: E("s_memrealtime s[86:87]")
E("s_getpc_b64 s[92:93]")
E("v_lshrrev_b32 v1, 6, v0")
E(f"s_and_b32 s{sG}, s2, 7")
E(f"v_readfirstlane_b32 s{sWV}, v1")
E(f"s_lshr_b32 s{sJ}, s2, 3")
E("v_and_b32 v1, 63, v0")
if CPF:
    E("s_and_b32 s92, s92, 0xffffff00")
    E("v_lshlrev_b32 v4, 7, v1")
    E("v_add_u32 v5, 0x2000, v4")
    E(f"v_min_u32 v5, L_code_end-{NAME}_kernel-4, v5")
    E(f"s_cmp_lg_u32 s{sWV}, 7")
    E("s_cbranch_scc1 L_nocpf")
    E("global_load_dword v239, v4, s[92:93]")
    E("global_load_dword v239, v5, s[92:93]")
    L("L_nocpf")
E("v_and_b32 v2, 15, v0")
E("v_lshrrev_b32 v3, 4, v1")
E(f"s_mov_b32 s{sSPIN}, {SPIN0}")
E(f"s_mov_b32 s{sLAY}, 0")
E(f"s_lshl_b32 s{sLOC}, s{sG}, 12")
E(f"s_lshl_b32 s{sPoff}, s{sG}, 14")
E(f"s_add_u32 s{sPoff}, s{sPoff}, {W_P}")
E(f"s_add_u32 s{sQ0}, s{sLOC}, {W_Q0}")
E(f"s_add_u32 s{sQ0B}, s{sQ0}, {W_Q0B}")
E("v_lshrrev_b32 v5, 3, v1")
E("v_and_b32 v6, 7, v1")
E("v_lshlrev_b32 v4, 13, v5")
E("v_lshl_add_u32 v4, v6, 7, v4")
E(f"s_lshl_b32 s{sT0}, s{sJ}, 17")
E(f"s_lshl_b32 s{sT1}, s{sG}, 10")
E(f"s_add_u32 s{sT0}, s{sT0}, s{sT1}")
E(f"s_sub_u32 s{sT1}, s{sWV}, 1")
E(f"s_lshl_b32 s{sT2}, s{sT1}, 16")
E(f"s_add_u32 s{sT0}, s{sT0}, s{sT2}")
E(f"s_mov_b32 s{sT2}, {W_EP}")
E("v_mov_b32 v7, 0")
E(f"s_cmp_lt_u32 s{sT1}, 2")
E("s_waitcnt lgkmcnt(0)")
E("s_cbranch_scc0 L_notouch")
srd(R_C, sWQ, None, 4194304)
if TQ: E(f"buffer_load_dword v240, v4, s[{R_C}:{R_C+3}], s{sT0} offen{NTQ}")
L("L_notouch")
if AMP == "xa":
    E("s_memrealtime s[88:89]")
    E("s_waitcnt lgkmcnt(0)")
srd(R_WS, sWS, None, WS_REC if PROF else WS_USED)
E(f"buffer_load_dword v241, v7, {WSR}, s{sT2} offen sc1")
if PROF: E(f"v_writelane_b32 v{V_STAMP}, s{sST}, 60")
E(f"v_mov_b32 v{cA}, 0")
E(f"v_lshlrev_b32 v{cL16}, 4, v1")
E(f"s_cmp_ge_u32 s{sJ}, 16")
E("s_cbranch_scc1 L_D_init")

E(f"s_lshl_b32 s{sT0}, s{sG}, 24")
E(f"s_lshl_b32 s{sT1}, s{sJ}, 16")
E(f"s_add_u32 s{sT0}, s{sT0}, s{sT1}")
E(f"s_add_u32 s{sT0}, s{sT0}, {61440*256}")
srd(R_A, sK, f"s{sT0}", 65536)
srd(R_B, sV, f"s{sT0}", 65536)
E("v_xor_b32 v4, v2, v3")
E("v_lshlrev_b32 v4, 4, v4")
E("v_lshl_add_u32 v4, v3, 8, v4")
E("v_lshlrev_b32 v5, 1, v3")
E("v_xor_b32 v5, v2, v5")
E("v_lshlrev_b32 v5, 4, v5")
E("v_lshl_add_u32 v5, v3, 8, v5")
E(f"s_add_u32 s{sC1}, s{sJ}, s{sG}")
E(f"s_cmp_eq_u32 s{sWV}, 4")
E("s_cbranch_scc1 L_A_ctl")
E(f"s_cmp_gt_u32 s{sWV}, 4")
E("s_cbranch_scc1 L_A_help")
E(f"s_lshl_b32 s{sT0}, s{sWV}, 14")
E(f"s_add_u32 s{sT3}, s{sC1}, 16")
L("L_A_kl")
E(f"s_and_b32 s{sT1}, s{sC1}, 15")
E(f"s_and_b32 s{sT2}, s{sT1}, 3")
E(f"s_lshl_b32 s{sT2}, s{sT2}, 6")
E(f"s_lshl_b32 s{sT1}, s{sT1}, 10")
E(f"s_add_u32 s{sT1}, s{sT1}, s{sT0}")
E(f"s_mov_b32 m0, s{sT1}")
E(f"v_xor_b32 v6, s{sT2}, v4")
E(f"s_waitcnt vmcnt({THR-1})")
E(f"buffer_load_dwordx4 v6, s[{R_A}:{R_A+3}], s{sT1} offen{NTK} lds")
E(f"s_add_u32 s{sC1}, s{sC1}, 1")
E(f"s_cmp_lt_u32 s{sC1}, s{sT3}")
E("s_cbranch_scc1 L_A_kl")
E("s_branch L_A_setup")
L("L_A_help")
E(f"s_sub_u32 s{sT0}, s{sWV}, 5")
E(f"s_lshl_b32 s{sC1}, s{sC1}, 2")
E(f"s_mov_b32 s{sT3}, 0")
THV1, NV1 = int(OPT.get("thv1", 0)), int(OPT.get("nv1", 15))
if THV1:
    L("L_A_vl1")
    E(f"s_add_u32 s{sT1}, s{sC1}, s{sT0}")
    E(f"s_and_b32 s{sT1}, s{sT1}, 63")
    E(f"s_and_b32 s{sT2}, s{sT1}, 1")
    E(f"s_lshl_b32 s{sT2}, s{sT2}, 7")
    E(f"s_lshl_b32 s{sT1}, s{sT1}, 10")
    E(f"s_add_u32 m0, s{sT1}, {V_LDS}")
    E(f"v_xor_b32 v6, s{sT2}, v5")
    E(f"s_waitcnt vmcnt({THV1-1})")
    E(f"buffer_load_dwordx4 v6, s[{R_B}:{R_B+3}], s{sT1} offen{NTV} lds")
    E(f"s_add_u32 s{sT0}, s{sT0}, 3")
    E(f"s_cmp_lt_u32 s{sT0}, {NV1}")
    E("s_cbranch_scc1 L_A_vl1")
L("L_A_vl")
E(f"s_add_u32 s{sT1}, s{sC1}, s{sT0}")
E(f"s_and_b32 s{sT1}, s{sT1}, 63")
E(f"s_and_b32 s{sT2}, s{sT1}, 1")
E(f"s_lshl_b32 s{sT2}, s{sT2}, 7")
E(f"s_lshl_b32 s{sT1}, s{sT1}, 10")
E(f"s_add_u32 m0, s{sT1}, {V_LDS}")
E(f"v_xor_b32 v6, s{sT2}, v5")
E(f"s_waitcnt vmcnt({THV-1})")
E(f"buffer_load_dwordx4 v6, s[{R_B}:{R_B+3}], s{sT1} offen{NTV} lds")
E(f"s_add_u32 s{sT0}, s{sT0}, 3")
E(f"s_cmp_lt_u32 s{sT0}, 64")
E("s_cbranch_scc1 L_A_vl")
stamp(1)
E("s_branch L_A_pf2")
sec("actl")
L("L_A_pf2")
E(f"s_mul_i32 s{sT1}, s{sG}, {224*1024}")
E(f"s_mul_i32 s{sT2}, s{sJ}, 14336")
E(f"s_add_u32 s{sT1}, s{sT1}, s{sT2}")
E(f"s_cmp_eq_u32 s{sWV}, 6")
E(f"s_cselect_b32 s{sT3}, {14336 if W2P else 0}, 0")
srd(R_C, sW2, f"s{sT1}", f"s{sT3}")
E(f"s_mov_b32 s{sT1}, 0")
E(f"s_mov_b32 s{sT2}, 8192")
E("v_lshlrev_b32 v6, 7, v1")
E(f"buffer_load_dword v240, v6, s[{R_C}:{R_C+3}], s{sT1} offen{NTT}")
E(f"buffer_load_dword v240, v6, s[{R_C}:{R_C+3}], s{sT2} offen{NTT}")
E("s_barrier")
E("s_waitcnt vmcnt(2)")
stamp(2)
ampx("xv", 5)
E("s_barrier")
stamp_flush(5, 2)
E("s_endpgm")
sec("a")
L("L_A_setup")
stamp(1)
KF, VF, QF, SC, PB, OD, OUTV, PF, STT = 16, 80, 144, 160, 176, 144, 176, 184, 216
T = 224
E("v_xor_b32 v4, v2, v3")
E("v_lshlrev_b32 v4, 4, v4")
E("v_lshl_add_u32 v4, v2, 8, v4")
E(f"v_add_u32 v4, s{sT0}, v4")
E("v_xor_b32 v5, 64, v4")
E("v_xor_b32 v6, 0x80, v4")
E("v_xor_b32 v7, 0xc0, v4")
E("v_and_b32 v15, 3, v2")
E("v_mul_u32_u24 v8, 320, v15")
E("v_lshl_add_u32 v8, v3, 4, v8")
E(f"v_add_u32 v8, {QS_LDS}, v8")
E("v_lshlrev_b32 v10, 4, v1")
E(f"v_add_u32 v10, {PX_LDS}, v10")
E(f"s_lshl_b32 s{sT1}, s{sWV}, 11")
E(f"v_add_u32 v9, s{sT1}, v10")
E("v_lshlrev_b32 v12, 5, v2")
E(f"v_add_u32 v12, {SX_LDS}, v12")
E(f"s_lshl_b32 s{sT1}, s{sWV}, 3")
E(f"v_add_u32 v11, s{sT1}, v12")
E("v_lshlrev_b32 v13, 12, v15")
E("v_lshl_add_u32 v13, v3, 3, v13")
E("v_bfe_u32 v14, v2, 2, 1")
E("v_lshl_add_u32 v13, v14, 5, v13")
E(f"s_lshl_b32 s{sT1}, s{sWV}, 6")
E(f"v_add_u32 v13, s{sT1}, v13")
E(f"v_cmp_eq_u32 s[{sMC_f}:{sMC_f+1}], 1, v14")
E(f"v_lshlrev_b32 v14, 7, v15")
E(f"v_lshrrev_b32 v{T}, 2, v2")
E(f"v_lshl_add_u32 v{T}, v3, 2, v{T}")
E(f"v_and_b32 v{T+1}, 7, v{T}")
E(f"s_lshl_b32 s{sT1}, s{sWV}, 1")
E(f"v_xor_b32 v{T+1}, s{sT1}, v{T+1}")
E(f"v_lshlrev_b32 v{T}, 8, v{T}")
E(f"v_lshl_add_u32 v{T}, v{T+1}, 5, v{T}")
E(f"v_lshl_add_u32 v{T}, v15, 3, v{T}")
E(f"v_add_u32 v{T}, {V_LDS}, v{T}")
E(f"v_xor_b32 v{T+1}, 32, v{T}")
E(f"s_lshl_b32 s{sT1}, s{sJ}, 8")
E(f"s_add_u32 s{sPoff}, s{sPoff}, s{sT1}")
E(f"s_and_b32 s{sT1}, s{sJ}, 3")
E(f"s_lshl_b32 s{sT1}, s{sT1}, 5")
E(f"s_lshr_b32 s{sT2}, s{sJ}, 2")
E(f"s_lshl_b32 s{sT2}, s{sT2}, 3")
E(f"s_add_u32 s{sT1}, s{sT1}, s{sT2}")
E(f"s_add_u32 s{sPub}, s{sT1}, {W_ST}")
E(f"s_mov_b32 s{sC1}, {f32((128**-0.5)*math.log2(math.e))}")
E(f"s_mov_b32 s{sFFFE}, 0xfffefffe")
E(f"v_mov_b32 v{T+2}, {FL_LDS}")
E(f"v_mov_b32 v{T+8}, s{sC1}")
E(f"s_cmp_eq_u32 s{sWV}, 0")
E(f"s_cselect_b32 s{sC2}, 15, 0")
E(f"s_mov_b32 s{sMB_f+1}, 0")
E(f"s_mov_b32 s{sMB_s+1}, 0")
E("s_waitcnt vmcnt(0)")
stamp(2)
ampx("xk", 0)
for e in range(4):
    for s in range(4):
        E(f"ds_read_b128 {vr(KF+(e*4+s)*4,4)}, v{4+s} offset:{4096*e}")
L("L_A_b1")
mark("a")
E("s_barrier")
for s in range(4):
    E(f"ds_read_b128 {vr(QF+4*s,4)}, v8 offset:{64*s}")
stamp(3, True)
def qk(e, s):
    c = "0" if s == 0 else vr(SC+4*e,4)
    E(f"v_mfma_f32_16x16x32_bf16 {vr(SC+4*e,4)}, {vr(KF+(e*4+s)*4,4)}, {vr(QF+4*s,4)}, {c}")
for s in range(4):
    E(f"s_waitcnt lgkmcnt({3-s})")
    qk(0, s); qk(1, s)
for s in range(4):
    qk(2, s); qk(3, s)
E(f"v_max3_f32 v{T+4}, v{SC}, v{SC+1}, v{SC+2}")
E(f"v_max3_f32 v{T+5}, v{SC+3}, v{SC+4}, v{SC+5}")
E(f"v_max3_f32 v{T+4}, v{T+4}, v{SC+6}, v{SC+7}")
E("s_nop 3")
E(f"v_max3_f32 v{T+5}, v{T+5}, v{SC+8}, v{SC+9}")
E(f"v_max3_f32 v{T+4}, v{T+4}, v{SC+10}, v{SC+11}")
E(f"v_max3_f32 v{T+5}, v{T+5}, v{SC+12}, v{SC+13}")
E(f"v_max3_f32 v{T+4}, v{T+4}, v{SC+14}, v{SC+15}")
E(f"v_max_f32 v{T+4}, v{T+4}, v{T+5}")
E(f"v_mov_b32 v{T+5}, v{T+4}")
E("s_nop 1")
E(f"v_permlane16_swap_b32 v{T+4}, v{T+5}")
E(f"v_max_f32 v{T+4}, v{T+4}, v{T+5}")
E(f"v_mov_b32 v{T+5}, v{T+4}")
E("s_nop 1")
E(f"v_permlane32_swap_b32 v{T+4}, v{T+5}")
E(f"v_max_f32 v{T+4}, v{T+4}, v{T+5}")
E(f"v_mul_f32 v{T+6}, s{sC1}, v{T+4}")
for i in range(8):
    E(f"v_pk_fma_f32 {vr(SC+2*i,2)}, {vr(SC+2*i,2)}, {vr(T+8,2)}, {vr(T+6,2)} op_sel_hi:[1,0,0] neg_lo:[0,0,1] neg_hi:[0,0,1]")
for i in range(8):
    E(f"v_exp_f32 v{SC+i}, v{SC+i}")
E(f"v_exp_f32 v{SC+8}, v{SC+8}")
for i in range(4):
    E(f"v_cvt_pk_bf16_f32 v{PB+i}, v{SC+2*i}, v{SC+2*i+1}")
E(f"ds_write_b128 v9, {vr(PB,4)}")
for i in range(9, 16):
    E(f"v_exp_f32 v{SC+i}, v{SC+i}")
E(f"v_add_f32 v{T+7}, v{SC}, v{SC+1}")
for i in range(4, 8):
    E(f"v_cvt_pk_bf16_f32 v{PB+i}, v{SC+2*i}, v{SC+2*i+1}")
E(f"ds_write_b128 v9, {vr(PB+4,4)} offset:1024")
for i in range(4):
    E(f"v_pk_add_f32 {vr(SC+2+ 0,2) if False else vr(SC+4*i,2)}, {vr(SC+4*i,2)}, {vr(SC+4*i+2,2)}")
E(f"v_pk_add_f32 {vr(SC,2)}, {vr(SC,2)}, {vr(SC+4,2)}")
E(f"v_pk_add_f32 {vr(SC+8,2)}, {vr(SC+8,2)}, {vr(SC+12,2)}")
E(f"v_pk_add_f32 {vr(SC,2)}, {vr(SC,2)}, {vr(SC+8,2)}")
E(f"v_add_f32 v{T+7}, v{SC}, v{SC+1}")
E(f"v_mov_b32 v{T+5}, v{T+7}")
E("s_nop 1")
E(f"v_permlane16_swap_b32 v{T+7}, v{T+5}")
E(f"v_add_f32 v{T+7}, v{T+7}, v{T+5}")
E(f"v_mov_b32 v{T+5}, v{T+7}")
E("s_nop 1")
E(f"v_permlane32_swap_b32 v{T+7}, v{T+5}")
E(f"v_add_f32 v{T+7}, v{T+7}, v{T+5}")
E(f"ds_write_b64 v11, {vr(T+6,2)}")
stamp(4, True)
mark("a")
E("s_waitcnt lgkmcnt(0)")
E("s_barrier")
ampx("xb", 0)
E(f"ds_read_b32 v{T+3}, v{T+2}")
for b in range(2):
    E(f"ds_read_b128 {vr(STT+4*b,4)}, v12 offset:{16*b}")
stamp(5, True)
F = STT
def pv(first):
    def reads(u):
        E(f"ds_read_b128 {vr(PF+4*u,4)}, v10 offset:{1024*u}")
        if first:
            for tp in range(2):
                for e in range(2):
                    E(f"ds_read_b64_tr_b16 {vr(VF+(tp*8+u)*4+2*e,2)}, v{T+tp} offset:{(32*u+16*e)*256}")
    ahead = 2 if first else 8
    per_u = 5 if first else 1
    for u in range(ahead): reads(u)
    E(f"s_waitcnt lgkmcnt({ahead*per_u})")
    va = [f"v_max3_f32 v{T+4}, v{STT}, v{STT+2}, v{STT+4}", f"v_max_f32 v{T+6}, v{T+4}, v{STT+6}"]
    va += [f"v_sub_f32 v{F+2*b}, v{STT+2*b}, v{T+6}" for b in range(4)]
    va += [f"v_exp_f32 v{F+2*b}, v{F+2*b}" for b in range(4)]
    va += [f"v_mul_f32 v{T+7}, v{F}, v{STT+1}"] + [f"v_fmac_f32 v{T+7}, v{F+2*b}, v{STT+2*b+1}" for b in range(1, 4)]
    E(f"v_readfirstlane_b32 s{sMODE}, v{T+3}")
    for x in va[:2]: E(x)
    sa = [f"s_cmp_eq_u32 s{sMODE}, 1", f"s_cselect_b32 s{sMB_f}, s{sC2}, 0", f"s_cselect_b32 s{sMB_s}, 0, s{sC2}",
          f"s_cselect_b32 s{sMA_f}, 0x00ff00ff, 0", f"s_cselect_b32 s{sMA_f+1}, 0x00ff00ff, 0", f"s_cselect_b32 s{sMA_s}, 0, 0x00ff00ff",
          f"s_cselect_b32 s{sMA_s+1}, 0, 0x00ff00ff", f"s_cselect_b32 s{sT2}, 0, {ALT}", f"s_add_u32 s{sPe}, s{sPoff}, s{sT2}",
          f"s_add_u32 s{sT2}, s{sLOC}, s{sT2}", f"s_add_u32 s{sT2}, s{sT2}, s{sPub}"]
    k = 2
    for u in range(8):
        if u + ahead < 8: reads(u + ahead)
        E(f"s_waitcnt lgkmcnt({(min(8, u + ahead + 1) - u - 1) * per_u})")
        for tp in range(2):
            d = vr(OD+(tp*4+u//2)*4,4)
            E(f"v_mfma_f32_16x16x32_bf16 {d}, {vr(VF+(tp*8+u)*4,4)}, {vr(PF+4*u,4)}, {'0' if u % 2 == 0 else d}")
            if k < len(va): E(va[k]); k += 1
            if sa and u >= 1: E(sa.pop(0)); E(sa.pop(0)) if sa else None
        if u == 5:
            assert k == len(va)
            E(f"v_min_u32 v{T+6}, -2, v{T+6}")
            E(f"v_min_u32 v{T+7}, -2, v{T+7}")
            pub2("buffer_store_dwordx2", vr(T+6,2), 14, sT2, sMB_f, sMB_s)
E(f"s_cmp_lg_u32 s{sLAY}, 0")
E("s_cbranch_scc1 L_A_havev")
pv(True)
E("s_branch L_A_comb")
L("L_A_havev")
pv(False)
L("L_A_comb")
def cb(b):
    for tp in range(2):
        for h in range(2):
            o = vr(OUTV+4*tp+2*h,2)
            if b == 0: E(f"v_pk_mul_f32 {o}, {vr(OD+tp*16+2*h,2)}, {vr(F,2)} op_sel_hi:[1,0]")
            else: E(f"v_pk_fma_f32 {o}, {vr(OD+(tp*4+b)*4+2*h,2)}, {vr(F+2*b,2)}, {o} op_sel_hi:[1,0,1]")
for b in range(4): cb(b)
for r in range(4):
    E(f"v_cndmask_b32 v{OUTV+r}, v{OUTV+r}, v{OUTV+4+r}, s[{sMC_f}:{sMC_f+1}]")
E(f"v_cvt_pk_bf16_f32 v{OUTV}, v{OUTV}, v{OUTV+1}")
E(f"v_cvt_pk_bf16_f32 v{OUTV+1}, v{OUTV+2}, v{OUTV+3}")
E(f"v_pk_min_u16 v{OUTV}, v{OUTV}, s{sFFFE}")
E(f"v_pk_min_u16 v{OUTV+1}, v{OUTV+1}, s{sFFFE}")
pub2("buffer_store_dwordx2", vr(OUTV,2), 13, sPe, sMA_f, sMA_s)
stamp(6, True)
ampx("xp", 0)
E(f"s_add_u32 s{sPoff}, s{sPoff}, {LS}")
E(f"s_add_u32 s{sLOC}, s{sLOC}, {LS}")
E(f"s_add_u32 s{sLAY}, s{sLAY}, 1")
E(f"s_cmp_lt_u32 s{sLAY}, 2")
E("s_cbranch_scc1 L_A_b1")
stamp_flush(0, 0, (int(OPT.get("dbg", 0)), 36, [60, 2, 3, 5, 6, 19, 22]))
E("s_endpgm")
sec("actl")
L("L_A_ctl")
E("s_waitcnt vmcnt(0)")
E(f"v_readfirstlane_b32 s{sTAG}, v241")
E("s_nop 3")
E(f"s_add_u32 s{sTAG}, s{sTAG}, 1")
ampx("xe", 4)
ampx("xs", 4)
ampx("xa", 4)
xc_publish()
warm("a")
E(f"v_lshrrev_b32 v{cT+5}, 5, v1")
E(f"v_lshlrev_b32 v{cT+5}, 6, v{cT+5}")
E(f"v_lshl_add_u32 v{cT+5}, v1, 3, v{cT+5}")
E(f"v_add_u32 v{cT+5}, {QS_LDS}, v{cT+5}")
first_gather("aq0", True, None)
stamp(2)
ampx("xq", 4)
E("s_waitcnt lgkmcnt(0)")
E("s_barrier")
first_gather("ax", False, None, armed=True)
stamp(3)
E("s_waitcnt lgkmcnt(0)")
E(f"s_cmp_eq_u32 s{sMODE}, 1")
E(f"s_cselect_b32 s{sT2}, 0, {ALT}")
E(f"s_add_u32 s{sLe}, s{sLOC}, s{sT2}")
E(f"s_add_u32 s{sLe}, s{sLe}, {LS}")
E(f"v_lshl_add_u32 v{cT+2}, v3, 6, v{cL16}")
E(f"v_add_u32 v{cT+2}, {QS_LDS}, v{cT+2}")
E("s_barrier")
E("s_waitcnt vmcnt(0)")
if TP & 4:
    E(f"s_sub_u32 s{sT1}, s{sLe}, {LS}")
    gather1("ax1", cG+4, cL16, sT1, W_X1, cT, pd=1, slp=2*PSL)
arm(cG, 4)
gather1("aq", cG, cL16, sLe, W_Q, cT)
E(f"ds_write_b128 v{cT+2}, {vr(cG,4)}")
stamp(18)
E("s_waitcnt lgkmcnt(0)")
E("s_barrier")
stamp_flush(4, 1)
E("s_endpgm")

vL16, aXIO, aTA, aTB, aIN, aST, aP16, aPY, vONE, aOS, aXS = 4, 5, 6, 7, 8, 9, 10, 11, 12, 13, 14
SEL0, ONESB, XR, XN, XB, vT = 16, 24, 28, 36, 44, 48
TT = 49
vB1, vCS, aGX, vINV, vVAL = 15, 0, 249, 250, 252
GB, WA, ACC, WB = 64, 96, 160, 192
vST, CA, MK, vFLG = 224, 232, 236, 248
NACC = 8

retry_blocks = []
def gather_X(tag, soff, role, hook=None):
    def loads():
        for i in range(8):
            so = soff if i < 4 else sT0
            E(f"buffer_load_dwordx4 {vr(GB+4*i,4)}, v{aGX}, {WSR}, s{so} offen offset:{256*(i%4)}{GFL}")
    def sums(wait):
        for i in range(8):
            if wait is not None: E(f"s_waitcnt vmcnt({wait + 7 - i})")
            e, w = (i % 4) // 2, i % 2
            c = vr(XR+4*e,4) if i in (0, 2) else vr(XN+4*e,4)
            E(f"v_mfma_f32_16x16x32_bf16 {vr(XN+4*e,4)}, {vr(SEL0+4*w,4)}, {vr(GB+4*i,4)}, {c}")
    E(f"s_add_u32 s{sT0}, s{soff}, 4096")
    if ACK: E("s_waitcnt vmcnt(0)")
    elif GD: E(f"s_sleep {GD}")
    if PROF in (2, 9): stamp(9, True)
    for _ in range(GP - 1):
        loads()
        if GSL: E(f"s_sleep {GSL}")
    E(f"s_branch L_{tag}_again")
    L(f"L_{tag}_nan")
    E(f"s_sub_u32 s{sSPIN}, s{sSPIN}, 1")
    E("s_cbranch_scc1 L_exit")
    E(f"s_and_b32 s{sT1}, s{sSPIN}, 15")
    E(f"s_cbranch_scc0 L_{tag}_retry")
    if GSL: E(f"s_sleep {GSL}")
    L(f"L_{tag}_again")
    loads()
    if hook: hook()
    mark(role)
    sums(8 * (GP - 1))
    E("s_nop 6")
    E(f"v_cmp_u_f32 vcc, v{XN}, v{XN}")
    E(f"v_cmp_u_f32 s[{sS1}:{sS1+1}], v{XN+4}, v{XN+4}")
    for d in range(4):
        E(f"v_cvt_pk_bf16_f32 v{XB+d}, v{XN+2*d}, v{XN+2*d+1}")
    E(f"s_or_b64 vcc, vcc, s[{sS1}:{sS1+1}]")
    E(f"s_cbranch_vccnz L_{tag}_nan")
    L(f"L_{tag}_ok")
    if PROF in (2, 9):
        stamp(11, True)
        E(f"s_mov_b32 s{sST}, s{sSPIN}")
    def blk():
        L(f"L_{tag}_retry")
        for i in range(16): E(f"v_pk_max_u16 v{ACC+i}, v{GB+2*i}, v{GB+2*i+1}")
        for i in range(8): E(f"v_pk_max_u16 v{ACC+i}, v{ACC+2*i}, v{ACC+2*i+1}")
        for i in range(4): E(f"v_pk_max_u16 v{ACC+i}, v{ACC+2*i}, v{ACC+2*i+1}")
        chk_bf16(ACC, TT)
        E(f"s_cbranch_vccnz L_{tag}_again")
        sums(None)
        E("s_nop 7")
        for d in range(4):
            E(f"v_cvt_pk_bf16_f32 v{XB+d}, v{XN+2*d}, v{XN+2*d+1}")
        E(f"s_branch L_{tag}_ok")
    retry_blocks.append(blk)

def relay_X(tag, soff, pre):
    E(f"v_mov_b32 v{vT}, 0")
    E(f"s_cmp_lg_u32 s{sWV}, 0")
    E(f"s_cbranch_scc1 L_{tag}_other")
    pre()
    gather_X(tag, soff, "d2")
    E(f"ds_write_b128 v{aXS}, {vr(XB,4)}")
    post = f"L_{tag}_join"
    E("s_waitcnt lgkmcnt(0)")
    E("s_barrier")
    E(f"s_branch {post}")
    L(f"L_{tag}_other")
    E("s_waitcnt vmcnt(0)")
    E("s_barrier")
    E(f"ds_read_b128 {vr(XB,4)}, v{aXS}")
    E("s_waitcnt lgkmcnt(0)")
    L(post)

def unpack_resid(src):
    for d in range(4):
        E(f"v_lshlrev_b32 v{XR+2*d}, 16, v{src+d}")
        E(f"v_and_b32 v{XR+2*d+1}, 0xffff0000, v{src+d}")

def matvec(nsteps, A, W, fillers, rows=None, per=PER, waits=False):
    if rows is None:
        rows = [(1 << G, 0xf, list(range(4*G, min(4*G+4, nsteps)))) for G in range((nsteps + 3) // 4)]
    acc = lambda s_: ACC + 4*(rank[s_] % NACC)
    order = [x for x in range(nsteps) if not any(x == st_[-1] for _, _, st_ in rows)] + [st_[-1] for _, _, st_ in rows]
    if waits or not REORD: order = list(range(nsteps))
    rank = {x: i for i, x in enumerate(order)}
    ext = []
    for (rm, bm, st_) in rows:
        dp = f"quad_perm:[0,1,2,3] row_mask:{hex(rm)} bank_mask:{hex(bm)}"
        a = lambda s_: f"v{acc(s_) + s_ % 4}"
        ext.append((st_[1], f"v_add_f32_dpp v{vT}, {a(st_[0])}, {a(st_[1])} {dp}"))
        for s_ in st_[2:]:
            ext.append((s_, f"v_add_f32_dpp v{vT}, {a(s_)}, v{vT} {dp}"))
    order = [x for x in range(nsteps) if not any(x == st_[-1] for _, _, st_ in rows)] + [st_[-1] for _, _, st_ in rows]
    if waits or not REORD: order = list(range(nsteps))
    rank = {x: i for i, x in enumerate(order)}
    ext.sort(key=lambda e: rank[e[0]])
    st = dict(pos=0, lastT=-1)
    pm = {}
    def put(x, n=1):
        E(x); st["pos"] += n
    def need(e):
        if e[0] not in pm: return 99
        return max(pm[e[0]] + 9 - st["pos"], st["lastT"] + 3 - st["pos"], 0)
    fl = list(fillers)
    for s_ in order:
        while ext and rank[ext[0][0]] <= rank[s_] - NACC + 1 and rank[s_] >= NACC:
            n = need(ext[0])
            if n: put(f"s_nop {n-1}", n)
            st["lastT"] = st["pos"]; put(ext.pop(0)[1])
        if waits and s_ >= 8 or waits and s_ == 0: put(f"s_waitcnt lgkmcnt({min(15, 30-2*s_)})")
        pm[s_] = st["pos"]
        put(f"v_mfma_f32_16x16x32_bf16 {vr(acc(s_),4)}, {vr(A,4)}, {vr(W+4*s_,4)}, 0")
        idle = 0
        for _ in range(per):
            if ext and need(ext[0]) - idle <= 0:
                if idle: put(f"s_nop {idle-1}", idle); idle = 0
                st["lastT"] = st["pos"]; put(ext.pop(0)[1])
            elif fl:
                if idle: put(f"s_nop {idle-1}", idle); idle = 0
                put(fl.pop(0))
            elif PAD and s_ != order[-1]: idle += 1
        if idle: put(f"s_nop {idle-1}", idle)
    while ext or fl:
        if ext and need(ext[0]) == 0:
            st["lastT"] = st["pos"]; put(ext.pop(0)[1])
        elif fl:
            put(fl.pop(0))
        else:
            n = need(ext[0]); put(f"s_nop {n-1}", n)

def stats_fillers():
    f = []
    for d in range(4):
        f.append(f"v_lshlrev_b32 v{XR+2*d}, 16, v{XB+d}")
        f.append(f"v_and_b32 v{XR+2*d+1}, 0xffff0000, v{XB+d}")
        if d == 0: f.append(f"v_readfirstlane_b32 s{sPIV}, v{XR}")
    D = XN
    for i in range(4):
        f.append(f"v_pk_add_f32 {vr(D+2*i,2)}, {vr(XR+2*i,2)}, s[{sPIV}:{sPIV+1}] op_sel_hi:[1,0] neg_lo:[0,1] neg_hi:[0,1]")
    a, b = TT+1, TT+3
    assert a % 2 == 0
    f.append(f"v_pk_add_f32 {vr(a,2)}, {vr(D,2)}, {vr(D+2,2)}")
    f.append(f"v_pk_mul_f32 {vr(b,2)}, {vr(D,2)}, {vr(D,2)}")
    for i in range(1, 4):
        f.append(f"v_pk_fma_f32 {vr(b,2)}, {vr(D+2*i,2)}, {vr(D+2*i,2)}, {vr(b,2)}")
        if i > 1: f.append(f"v_pk_add_f32 {vr(a,2)}, {vr(a,2)}, {vr(D+2*i,2)}")
    f.append(f"v_add_f32 v{b}, v{b}, v{b+1}")
    f.append(f"v_add_f32 v{a}, v{a}, v{a+1}")
    f.append("s_nop 0")
    for dp in ("quad_perm:[1,0,3,2] row_mask:0xf", "quad_perm:[2,3,0,1] row_mask:0xf", "row_half_mirror row_mask:0xf",
               "row_mirror row_mask:0xf", "row_bcast:15 row_mask:0xa", "row_bcast:31 row_mask:0xc"):
        f.append(f"v_add_f32_dpp v{b}, v{b}, v{b} {dp} bank_mask:0xf")
        f.append(f"v_add_f32_dpp v{a}, v{a}, v{a} {dp} bank_mask:0xf")
        f.append("s_nop 0")
    f.append(f"v_readlane_b32 s{sS2}, v{b}, 63")
    f.append(f"v_readlane_b32 s{sS1}, v{a}, 63")
    f.append(f"v_fma_f32 v{TT+3}, s{sS2}, v{vINV}, v{vINV+1}" if False else "s_nop 0")
    f.append(f"v_fma_f32 v{TT+3}, s{sS2}, v{vINV}, v{vINV+1}")
    f.append(f"v_mul_f32 v{TT+2}, s{sS1}, v{vINV}")
    f.append(f"v_fma_f32 v{TT+3}, -v{TT+2}, v{TT+2}, v{TT+3}")
    f.append(f"v_max_f32 v{TT+3}, v{vINV+1}, v{TT+3}")
    f.append(f"v_rsq_f32 v{TT+3}, v{TT+3}")
    f.append(f"v_add_f32 v{TT+2}, s{sPIV}, v{TT+2}")
    return f

def xgroup_sum(fold8=False, plain=False):
    if fold8: E(f"v_and_b32 v{vT}, v{vVAL}, v{vT}")
    E(f"v_mov_b32 v{TT+5}, v{vT}")
    E("s_nop 1")
    E(f"v_permlane16_swap_b32 v{vT}, v{TT+5}")
    E(f"v_add_f32 v{vT}, v{vT}, v{TT+5}")
    E(f"v_mov_b32 v{TT+5}, v{vT}")
    E("s_nop 1")
    E(f"v_permlane32_swap_b32 v{vT}, v{TT+5}")
    E(f"v_add_f32 v{vT}, v{vT}, v{TT+5}")
    if fold8:
        E("s_nop 1")
        E(f"v_add_f32_dpp v{vT}, v{vT}, v{vT} row_ror:8 row_mask:0xf bank_mask:0xf")
    if plain: return
    E(f"v_fma_f32 v{vT}, -v{TT+2}, v{vCS}, v{vT}")
    E(f"v_mul_f32 v{vT}, v{vT}, v{TT+3}")

def y_publish():
    xgroup_sum(plain=True)
    E("s_nop 1")
    E(f"v_mov_b32_dpp v{TT+5}, v{vT} quad_perm:[1,1,3,3] row_mask:0xf bank_mask:0xf")
    E("s_mov_b64 exec, 0x5555")
    E(f"v_cvt_pk_bf16_f32 v{vT}, v{vT}, v{TT+5}")
    E(f"v_pk_min_u16 v{vT}, v{vT}, s{sFFFE}")
    E(f"buffer_store_dword v{vT}, v{aP16}, {WSR}, s{sPubG} offen{SFL}")
    E("s_mov_b64 exec, -1")

def pub_resid(off):
    for d in range(4): E(f"v_pk_min_u16 v{TT+7+d}, v{XB+d}, s{sFFFE}")
    pub2("buffer_store_dwordx4", vr(TT+7,4), vL16, sLOC, sMB_f, sMB_s, off)

def read_mode(lo_a, pj=0):
    E(f"v_mov_b32 v{TT}, {FL_LDS}")
    E(f"ds_read_b32 v{TT+1}, v{TT}")
    E("s_waitcnt lgkmcnt(0)")
    E(f"v_readfirstlane_b32 s{sMODE}, v{TT+1}")
    E(f"s_cmp_eq_u32 s{sPJ}, {pj}")
    E(f"s_cselect_b32 s{sT1}, -1, 0")
    E("s_nop 2")
    E(f"s_cmp_eq_u32 s{sMODE}, 1")
    masks(sMA_f, sMA_s, lo_a, "0")
    masks(sMB_f, sMB_s, f"s{sT1}", f"s{sT1}")
    E(f"s_cselect_b32 s{sT1}, 0, {ALT}")
    for s_ in (sLOC, sPoff, sPub):
        E(f"s_add_u32 s{s_}, s{s_}, s{sT1}")

sec("entry")
L("L_D_init")
ROLE[0] = "d"
E(f"s_and_b32 s{sC}, s{sJ}, 7")
E(f"s_lshl_b32 s{sPJ}, s{sC}, 2")
E(f"s_add_u32 s{sPJ}, s{sPJ}, s{sWV}")
E("v_lshrrev_b32 v242, 3, v1")
E("v_and_b32 v243, 7, v1")
def wo_issue():
    E(f"s_lshl_b32 s{sT0}, s{sG}, 19")
    E(f"s_lshl_b32 s{sT1}, s{sC}, 7")
    E(f"s_add_u32 s{sT0}, s{sT0}, s{sT1}")
    E(f"s_sub_u32 s{sT3}, {4194304}, s{sT0}")
    srd(R_A, sWO, f"s{sT0}", f"s{sT3}")
    E("v_and_b32 v245, 2, v242")
    E("v_xor_b32 v245, v245, v243")
    E(f"s_and_b32 s{sT1}, s{sWV}, 1")
    E(f"s_lshl_b32 s{sT1}, s{sT1}, 2")
    E(f"v_xor_b32 v245, s{sT1}, v245")
    E("v_lshlrev_b32 v244, 10, v242")
    E("v_lshl_add_u32 v244, v245, 4, v244")
    E(f"s_lshl_b32 s{sT0}, s{sWV}, 14")
    E(f"s_mov_b32 m0, s{sT0}")
    E(f"s_lshl_b32 s{sT1}, s{sWV}, 17")
    if LATE0 == 1: E("s_waitcnt vmcnt(0)")
    if LATE0 >= 2: E("s_barrier")
    E(f"s_add_u32 s{sT2}, s{sT1}, {16*8192}")
    L("L_D2_wol")
    E(f"buffer_load_dwordx4 v244, s[{R_A}:{R_A+3}], s{sT1} offen{NTW} lds")
    E("s_add_u32 m0, m0, 1024")
    E(f"s_add_u32 s{sT1}, s{sT1}, 8192")
    E(f"s_cmp_lt_u32 s{sT1}, s{sT2}")
    E("s_cbranch_scc1 L_D2_wol")
def clear_global():
    for r in range(4): E(f"v_mov_b32 v{cG+r}, -1")
    E(f"s_mov_b32 s{sT1}, {LS}")
    E(f"v_lshrrev_b32 v{cT}, 3, v2")
    E(f"v_mul_lo_u32 v{cT}, v{cT}, s{sT1}")
    E(f"v_lshl_add_u32 v{cT}, v243, 4, v{cT}")
    E(f"v_lshl_add_u32 v{cT}, v3, 13, v{cT}")
    E(f"s_lshl_b32 s{sT1}, s{sG}, 10")
    E(f"s_lshl_b32 s{sT2}, s{sC}, 7")
    E(f"s_add_u32 s{sT1}, s{sT1}, s{sT2}")
    E(f"s_add_u32 s{sT1}, s{sT1}, {W_Y}")
    E("s_mov_b32 exec_hi, 0")
    E(f"buffer_store_dwordx4 {vr(cG,4)}, v{cT}, {WSR}, s{sT1} offen sc1")
    E("s_mov_b64 exec, -1")

def d2_clear(sc, alt):
    for r in range(4): E(f"v_mov_b32 v{cG+r}, -1")
    E(f"s_lshl_b32 s{sT1}, s{sC}, 11")
    E(f"s_add_u32 s{sT1}, s{sT1}, s{sPoff}")
    if alt: E(f"s_add_u32 s{sT1}, s{sT1}, {ALT}")
    E(f"s_add_u32 s{sT2}, s{sT1}, {LS}")
    for so in (sT1, sT2):
        for o in range(2):
            E(f"buffer_store_dwordx4 {vr(cG,4)}, v{cL16}, {WSR}, s{so} offen offset:{1024*o}{sc}")
    E(f"s_mov_b32 s{sT1}, {LS}")
    E(f"v_lshrrev_b32 v{cT}, 5, v1")
    E(f"v_mul_lo_u32 v{cT}, v{cT}, s{sT1}")
    E(f"v_and_b32 v{cT+1}, 31, v1")
    E(f"v_lshl_add_u32 v{cT}, v{cT+1}, 4, v{cT}")
    E(f"s_lshl_b32 s{sT1}, s{sC}, 9")
    E(f"s_add_u32 s{sT1}, s{sT1}, s{sLOC}")
    if alt: E(f"s_add_u32 s{sT1}, s{sT1}, {ALT}")
    E(f"buffer_store_dwordx4 {vr(cG,4)}, v{cT}, {WSR}, s{sT1} offen{sc}")
E(f"s_cmp_lt_u32 s{sJ}, 24")
E("s_cbranch_scc1 L_D_const")
E(f"s_cmp_lg_u32 s{sWV}, 4")
E("s_cbranch_scc1 L_D2_e1")
d2_clear("", False)
E("s_branch L_D2_init")
L("L_D2_e1")
E(f"s_cmp_lg_u32 s{sWV}, 5")
E("s_cbranch_scc1 L_D2_e2")
clear_global()
E("s_branch L_D2_init")
L("L_D2_e2")
E(f"s_cmp_ge_u32 s{sWV}, 4")
E("s_cbranch_scc1 L_D2_init")
if LATE0 == 0: wo_issue()
else:
    E(f"s_lshl_b32 s{sT0}, s{sG}, 19")
    srd(R_A, sWO, f"s{sT0}", 1 << 19)
    E(f"buffer_load_dword v255, v{cL16}, s[{R_A}:{R_A+3}], 0 offen")
sec("dinit")
L("L_D_const")
E("v_mov_b32 v245, 0")
E("v_mov_b32 v244, 0")
srd(R_B, sX, None, 1024)
E(f"v_lshrrev_b32 v{TT}, 1, v3")
E(f"v_and_b32 v{TT+1}, 1, v3")
E(f"v_lshlrev_b32 v{aXIO}, 8, v{TT}")
E(f"v_lshl_add_u32 v{aXIO}, v2, 4, v{aXIO}")
E(f"v_lshl_add_u32 v{aXIO}, v{TT+1}, 3, v{aXIO}")
E(f"buffer_load_dwordx2 {vr(XB,2)}, v{aXIO}, s[{R_B}:{R_B+3}], 0 offen")
E(f"buffer_load_dwordx2 {vr(XB+2,2)}, v{aXIO}, s[{R_B}:{R_B+3}], 0 offen offset:512")
E(f"v_lshlrev_b32 v{vL16}, 4, v1")
E(f"v_lshrrev_b32 v{TT+2}, 2, v2")
E(f"v_and_b32 v{TT+3}, 3, v2")
E(f"v_lshl_add_u32 v{TT+4}, v{TT}, 7, v{TT+2}")
E(f"v_lshl_add_u32 v{TT+4}, v{TT+1}, 2, v{TT+4}")
E(f"v_lshlrev_b32 v{aP16}, 1, v2")
E(f"v_lshrrev_b32 v{aPY}, 5, v1")
E(f"v_lshlrev_b32 v{aPY}, 4, v{aPY}")
E(f"v_add_u32 v{aXS}, {XS_LDS}, v{vL16}")
E(f"v_mov_b32 v{vONE}, 1.0")
for d in range(4): E(f"v_mov_b32 v{ONESB+d}, 0x3f803f80")
E(f"v_and_b32 v{TT+5}, 1, v2")
E(f"v_lshlrev_b32 v{TT+5}, 4, v{TT+5}")
E(f"v_mov_b32 v{TT+6}, 0x3f80")
E(f"v_lshlrev_b32 v{TT+6}, v{TT+5}, v{TT+6}")
E(f"v_lshrrev_b32 v{TT+7}, 1, v2")
E(f"v_lshlrev_b32 v{aGX}, 10, v3")
E(f"v_lshl_add_u32 v{aGX}, v2, 4, v{aGX}")
for d in range(8):
    E(f"v_cmp_eq_u32 vcc, {d}, v{TT+7}")
    E("s_nop 1")
    E(f"v_cndmask_b32 v{SEL0+d}, 0, v{TT+6}, vcc")
E(f"s_mov_b32 s{sFFFE}, 0xfffefffe")
E(f"v_mov_b32 v{vINV}, {f32(1/512)}")
E(f"v_mov_b32 v{vINV+1}, {f32(1e-5)}")
E(f"s_mov_b32 s{sC3}, {f32(-math.log2(math.e))}")
E(f"s_lshl_b32 s{sT1}, s{sPJ}, 5")
E(f"s_lshl_b32 s{sPubG}, s{sG}, 10")
E(f"s_add_u32 s{sPubG}, s{sPubG}, s{sT1}")
E(f"s_lshl_b32 s{sT2}, s{sWV}, 5")
E(f"s_cmp_ge_u32 s{sJ}, 24")
E("s_cbranch_scc1 L_D2_comp")

def ctl_head():
    E("s_waitcnt vmcnt(0)")
    E(f"v_readfirstlane_b32 s{sTAG}, v241")
    for r in range(4): E(f"v_mov_b32 v{cG+r}, -1")
    E(f"s_add_u32 s{sTAG}, s{sTAG}, 1")
E(f"s_lshl_b32 s{sT0}, s{sG}, 10")
E(f"s_lshl_b32 s{sT1}, s{sC}, 7")
E(f"s_add_u32 s{sT0}, s{sT0}, s{sT1}")
E(f"s_sub_u32 s{sT3}, {4194304}, s{sT0}")
srd(R_A, sWQ, f"s{sT0}", f"s{sT3}")
E("v_and_b32 v245, 6, v242")
E("v_xor_b32 v245, v245, v243")
E("v_lshlrev_b32 v244, 13, v242")
E("v_lshl_add_u32 v244, v245, 4, v244")
E(f"s_cmp_ge_u32 s{sWV}, 4")
E("s_cbranch_scc1 L_D1_help")
if TQ: E("s_waitcnt vmcnt(0)")
stamp(1)
E(f"s_lshl_b32 s{sT0}, s{sWV}, 14")
E(f"s_mov_b32 m0, s{sT0}")
E(f"s_lshl_b32 s{sT1}, s{sWV}, 20")
E(f"s_add_u32 s{sT3}, s{sT1}, {16*65536}")
L("L_D1_wql")
E(f"buffer_load_dwordx4 v244, s[{R_A}:{R_A+3}], s{sT1} offen{NTW} lds")
E("s_add_u32 m0, m0, 1024")
E(f"s_add_u32 s{sT1}, s{sT1}, 65536")
E(f"s_cmp_lt_u32 s{sT1}, s{sT3}")
E("s_cbranch_scc1 L_D1_wql")
sec("d1")
E(f"v_bfe_u32 v{TT+5}, v{TT+4}, 1, 2")
E(f"v_xor_b32 v{TT+5}, s{sWV}, v{TT+5}")
E(f"v_lshlrev_b32 v{aTA}, 7, v{TT+4}")
E(f"v_lshl_add_u32 v{aTA}, v{TT+3}, 3, v{aTA}")
E(f"v_lshl_add_u32 v{aTA}, v{TT+5}, 5, v{aTA}")
if not TQ: E("s_waitcnt vmcnt(16)")
E(f"v_lshl_add_u32 v{aTB}, v3, 3, v{TT+2}")
E(f"v_lshlrev_b32 v{aTB}, 7, v{aTB}")
E(f"v_lshl_add_u32 v{aTB}, v{TT+3}, 3, v{aTB}")
E(f"s_add_u32 s{sT2}, s{sT2}, {WB_LDS}")
E(f"v_add_u32 v{aTB}, s{sT2}, v{aTB}")
E(f"v_min_u32 v{aIN}, 6, v2")
E(f"v_lshlrev_b32 v{aIN}, 6, v{aIN}")
E(f"v_lshl_add_u32 v{aIN}, v3, 4, v{aIN}")
E(f"v_readfirstlane_b32 s{sTAG}, v241")
E(f"s_add_u32 s{sPubG}, s{sPubG}, {W_Z}")
E(f"s_mov_b32 s{sZoff}, {W_Z}")
E(f"s_lshl_b32 s{sT1}, s{sPJ}, 5")
E(f"s_add_u32 s{sPub}, s{sLOC}, s{sT1}")
srd(R_B, sOUT, None, 1024)
E(f"s_add_u32 s{sTAG}, s{sTAG}, 1")
for x in stats_fillers(): E(x)
for i in range(8): E(f"v_sub_f32 v{XN+i}, v{XR+i}, v{TT+2}")
for i in range(8): E(f"v_mul_f32 v{XN+i}, v{XN+i}, v{TT+3}")
for d in range(4): E(f"v_cvt_pk_bf16_f32 v{GB+d}, v{XN+2*d}, v{XN+2*d+1}")
E(f"v_mov_b32 v{vT}, 0")
D0 = GB + 12
E(f"v_mov_b32 v{D0+1}, s{sTAG}")
E(f"s_lshl_b32 s{sT1}, s{sPJ}, 6")
E(f"v_lshl_add_u32 v{TT+6}, v2, 2, s{sT1}")
E("s_waitcnt vmcnt(0)")
E("s_barrier")
amp("wq")
stamp(2)
for s in range(16):
    for e in range(2):
        E(f"ds_read_b64_tr_b16 {vr(WA+4*s+2*e,2)}, v{aTA} offset:{32768*e+1024*s}")
matvec(16, GB, WA, [], per=PN, waits=True)
xgroup_sum(plain=True)
E("s_nop 1")
E(f"v_mov_b32_dpp v{TT+5}, v{vT} quad_perm:[1,1,3,3] row_mask:0xf bank_mask:0xf")
E(f"v_cvt_pk_bf16_f32 v{D0}, v{vT}, v{TT+5}")
E("s_mov_b64 exec, 0x5555")
E(f"buffer_store_dwordx2 {vr(D0,2)}, v{TT+6}, {WSR}, s{sQ0} offen")
E("s_mov_b64 exec, -1")
stamp(3, True)
E(f"v_mov_b32 v{TT+7}, 0")
E(f"buffer_load_dword v{GB+20}, v{TT+7}, s[{R_B}:{R_B+3}], 0 offen")
for s in range(16):
    c = "0" if s == 0 else vr(CA,4)
    E(f"v_mfma_f32_16x16x32_bf16 {vr(CA,4)}, {vr(ONESB,4)}, {vr(WA+4*s,4)}, {c}")
E("s_nop 7")
E(f"v_mov_b32 v{vCS}, v{CA}")
E("s_barrier")
amp("st")
read_mode("0xffff")
E(f"s_mov_b32 s{sT1}, 0x5555")
E(f"s_cmp_eq_u32 s{sMODE}, 1")
E(f"s_cselect_b32 exec_lo, 0, s{sT1}")
E("s_mov_b32 exec_hi, 0")
E(f"buffer_store_dwordx2 {vr(D0,2)}, v{TT+6}, {WSR}, s{sQ0B} offen sc1")
E("s_mov_b64 exec, -1")
E("s_barrier")
for s in range(7):
    for e in range(2):
        E(f"ds_read_b64_tr_b16 {vr(WB+4*s+2*e,2)}, v{aTB} offset:{4096*s+512*e}")
E("s_waitcnt lgkmcnt(0)")
E("s_branch L_D1_act")
L("L_D1_q")
mark("d1")
matvec(16, XB, WA, stats_fillers())
xgroup_sum()
E(f"v_cvt_pk_bf16_f32 v{vT}, v{vT}, v{vT}")
E(f"v_min_u32 v{vT}, -2, v{vT}")
pub2("buffer_store_short", f"v{vT}", aP16, sPub, sMA_f, sMA_s, W_Q)
stamp(3, True)
pub_resid(W_X2)
L("L_D1_act")
mark("d1")
AIN = vST
arm(AIN, 4)
E(f"buffer_load_dwordx4 {vr(CA,4)}, v{vL16}, {WSR}, s{sLOC} offen offset:{W_X1} sc1")
E(f"v_mov_b32 v{vT}, 0")
if TP & 1:
    E(f"v_lshlrev_b32 v{TT+2}, 3, v1")
    L("L_D1_far")
    E(f"buffer_load_dword v{TT+3}, v{TT+2}, {WSR}, s{sLOC} offen offset:{W_ST} sc1")
    E("s_waitcnt vmcnt(0)")
    E(f"v_cmp_eq_u32 vcc, -1, v{TT+3}")
    E("s_cbranch_vccz L_D1_near")
    E(f"s_sleep {2*PSL}")
    spin_check("L_D1_far")
    L("L_D1_near")
gather1("ga", AIN, aIN, sLOC, W_ACT, TT)
amp("act")
stamp(4, True)
E(f"buffer_load_dwordx4 {vr(CA,4)}, v{vL16}, {WSR}, s{sLOC} offen offset:{W_X1} sc1")
matvec(7, AIN, WB, [], per=PN)
y_publish()
stamp(5, True)
E(f"s_add_u32 s{sLAY}, s{sLAY}, 1")
E(f"s_cmp_lt_u32 s{sLAY}, 2")
E("s_cbranch_scc1 L_D1_z")
E(f"s_cmp_lg_u32 s2, 128")
E("s_cbranch_scc1 L_D1_end")
E(f"s_cmp_lg_u32 s{sWV}, 0")
E("s_cbranch_scc1 L_D1_end")
L("L_D1_z")
mark("d1")
def pre_z():
    E("s_waitcnt vmcnt(1)")
    chk_bf16(CA, TT)
    E("s_cbranch_vccz L_gx1_have")
    gather1("gx1", CA, vL16, sLOC, W_X1, TT, pd=1, slp=0)
    L("L_gx1_have")
    unpack_resid(CA)
def relay_z():
    E(f"v_mov_b32 v{vT}, 0")
    E(f"s_cmp_lg_u32 s{sWV}, 0")
    E(f"s_cbranch_scc1 L_gz_other")
    pre_z()
    gather_X("gz", sZoff, "d1")
    E(f"s_cmp_eq_u32 s{sLAY}, 2")
    E("s_cbranch_scc1 L_D1_out")
    E(f"ds_write_b128 v{aXS}, {vr(XB,4)}")
    E("s_waitcnt lgkmcnt(0)")
    E("s_barrier")
    E(f"s_branch L_gz_join")
    L(f"L_gz_other")
    E("s_waitcnt vmcnt(0)")
    E("s_barrier")
    E(f"ds_read_b128 {vr(XB,4)}, v{aXS}")
    E("s_waitcnt lgkmcnt(0)")
    L("L_gz_join")
relay_z()
stamp(6)
for s_ in (sLOC, sPub, sPubG, sZoff):
    E(f"s_add_u32 s{s_}, s{s_}, {LS}")
E("s_branch L_D1_q")
L("L_D1_out")
E(f"buffer_store_dwordx2 {vr(XB,2)}, v{aXIO}, s[{R_B}:{R_B+3}], 0 offen")
E(f"buffer_store_dwordx2 {vr(XB+2,2)}, v{aXIO}, s[{R_B}:{R_B+3}], 0 offen offset:512")
E(f"v_mov_b32 v{TT}, s{sTAG}")
E(f"v_mov_b32 v{TT+1}, {W_EP}")
E("s_mov_b64 exec, 1")
E(f"buffer_store_dword v{TT}, v{TT+1}, {WSR}, 0 offen")
if AMP:
    E("s_memrealtime s[88:89]")
    E("s_waitcnt lgkmcnt(0)")
    if AMP == "end": E("s_mov_b32 s94, s88")
    E("s_sub_u32 s94, s94, s86")
    if AMP.startswith("x"):
        E(f"v_mov_b32 v253, {W_EP + 64}")
        E(f"buffer_load_dword v252, v253, {WSR}, 0 offen sc1")
        E("s_waitcnt vmcnt(0)")
        E("v_readfirstlane_b32 s94, v252")
        E("s_nop 3")
        E("s_sub_u32 s94, s94, s86")
        E("s_add_u32 s94, s94, 100")
        E("s_max_i32 s94, s94, 0")
    E("s_lshl_b32 s94, s94, 2")
    E("s_min_u32 s94, s94, 20000")
    E("s_add_u32 s94, s94, s88")
    L("L_amp_spin")
    E("s_memrealtime s[88:89]")
    E("s_waitcnt lgkmcnt(0)")
    E("s_sub_u32 s89, s94, s88")
    E("s_cmp_gt_i32 s89, 0")
    E("s_cbranch_scc1 L_amp_spin")
if PROF:
    stamp(7)
    E("s_waitcnt vmcnt(0)")
    stamp(8)
L("L_D1_end")
stamp_flush(0, 0, (128, 4, [60, 2, 3, 4, 6, 20, 8]))
E("s_endpgm")
sec("help")
L("L_D1_help")
E(f"s_mul_i32 s{sT0}, s{sG}, {224*1024}")
E(f"s_lshl_b32 s{sT1}, s{sC}, 7")
E(f"s_add_u32 s{sT0}, s{sT0}, s{sT1}")
srd(R_B, sW2, f"s{sT0}", 224*1024 - 896)
E("v_lshlrev_b32 v244, 10, v242")
E("v_lshl_add_u32 v244, v243, 4, v244")
E(f"s_cmp_eq_u32 s{sWV}, 4")
E("s_cbranch_scc1 L_D1_ctl")
if not W2P: E(f"buffer_load_dword v255, v244, s[{R_B}:{R_B+3}], 0 offen")
for u in range(3):
    E(f"s_cmp_lg_u32 s{sWV}, {5+u}")
    E(f"s_cbranch_scc1 L_D1_wm{u}")
    warm("d1", u, 3)
    L(f"L_D1_wm{u}")
E("s_branch L_D1_bq")
L("L_D1_ctl")
E(f"v_lshlrev_b32 v{cT}, 7, v2")
E(f"buffer_load_dword v240, v{cT}, {WSR}, s{sQ0} offen sc1")
ctl_head()
xc_publish()
L("L_D1_bq")
E("s_barrier")
E(f"s_cmp_lg_u32 s{sWV}, 4")
E("s_cbranch_scc1 L_D1_w2")
first_gather("d1x", False, None)
stamp(3)
E(f"v_lshlrev_b32 v{cT}, 3, v1")
E(f"s_cmp_eq_u32 s{sMODE}, 1")
E("s_cbranch_scc0 L_D1_b2")
L("L_D1_st")
E(f"buffer_load_dword v{cT+1}, v{cT}, {WSR}, s{sLOC} offen offset:{W_ST} sc1")
E("s_waitcnt vmcnt(0)")
E(f"v_cmp_ne_u32 vcc, -1, v{cT+1}")
E("s_cbranch_vccnz L_D1_b2")
E("s_sleep 8")
spin_check("L_D1_st")
L("L_D1_b2")
E("s_waitcnt lgkmcnt(0)")
L("L_D1_w2")
E("s_barrier")
E(f"s_sub_u32 s{sT0}, s{sWV}, 4")
E(f"s_mul_i32 s{sT1}, s{sT0}, 7168")
E(f"s_add_u32 m0, s{sT1}, {WB_LDS}")
E(f"s_mul_i32 s{sT1}, s{sT0}, {56*1024}")
for i in range(7):
    E(f"buffer_load_dwordx4 v244, s[{R_B}:{R_B+3}], s{sT1} offen{NTW} lds")
    if i < 6:
        E("s_add_u32 m0, m0, 1024")
        E(f"s_add_u32 s{sT1}, s{sT1}, 8192")
E("s_waitcnt vmcnt(0) lgkmcnt(0)")
stamp(4)
E("s_barrier")
stamp_flush(4, 1)
E("s_endpgm")

L("L_D2_init")
E(f"s_min_u32 s{sT1}, s{sC}, 6")
E(f"s_lshl_b32 s{sT1}, s{sT1}, 6")
E(f"s_mul_i32 s{sT0}, s{sG}, 448")
E(f"s_add_u32 s{sS1}, s{sT0}, s{sT1}")
E(f"s_sub_u32 s{sT3}, {1835008}, s{sS1}")
srd(R_B, sW1, f"s{sS1}", f"s{sT3}")
srd(R_C, sDBG, None, 256)
E(f"s_cmp_eq_u32 s{sWV}, 4")
E("s_cbranch_scc1 L_D2_ctl")
E(f"s_cmp_eq_u32 s{sWV}, 5")
E("s_cbranch_scc1 L_D2_flag")
E("v_lshrrev_b32 v245, 2, v1")
E("v_mul_u32_u24 v245, 3584, v245")
E("v_and_b32 v246, 3, v1")
E("v_and_b32 v247, 1, v3")
E("v_xor_b32 v246, v246, v247")
E("v_lshl_add_u32 v244, v246, 4, v245")
E("v_xor_b32 v246, 2, v246")
E("v_lshl_add_u32 v245, v246, 4, v245")
E(f"s_sub_u32 s{sT0}, s{sWV}, 6")
E(f"s_lshl_b32 s{sT1}, s{sT0}, 14")
E(f"s_add_u32 m0, s{sT1}, {WB_LDS}")
E(f"s_mul_i32 s{sT1}, s{sT0}, {256*3584}")
if W1L == 2:
    E(f"buffer_load_dword v255, v244, s[{R_B}:{R_B+3}], s{sT1} offen")
    E(f"s_add_u32 s{sT2}, s{sT1}, {240*3584}")
    E(f"buffer_load_dword v255, v244, s[{R_B}:{R_B+3}], s{sT2} offen")
for u in range(2):
    E(f"s_cmp_lg_u32 s{sWV}, {6+u}")
    E(f"s_cbranch_scc1 L_D2_wm{u}")
    warm("d2", u, 2)
    L(f"L_D2_wm{u}")
if LATE0 >= 2 or W1L == 1: E("s_barrier")
if W1L == 2:
    E("s_barrier")
    E(f"v_mov_b32 v{cT}, {FL_LDS}")
    E(f"ds_read_b32 v{cT+1}, v{cT}")
    E(f"v_lshlrev_b32 v{cT}, 3, v1")
    E("s_waitcnt lgkmcnt(0)")
    E(f"v_cmp_ne_u32 vcc, 1, v{cT+1}")
    E("s_cbranch_vccnz L_D2_w1go")
    L("L_D2_w1st")
    E(f"buffer_load_dword v{cT+1}, v{cT}, {WSR}, s{sLOC} offen offset:{W_ST} sc1")
    E("s_waitcnt vmcnt(0)")
    E(f"v_cmp_ne_u32 vcc, -1, v{cT+1}")
    if W1N > 1:
        E(f"s_bcnt1_i32_b64 s{sT2}, vcc")
        E(f"s_cmp_ge_u32 s{sT2}, {4*W1N}")
        E("s_cbranch_scc1 L_D2_w1go")
    else: E("s_cbranch_vccnz L_D2_w1go")
    E("s_sleep 2")
    spin_check("L_D2_w1st")
    L("L_D2_w1go")
for i in range(16):
    E(f"buffer_load_dwordx4 v{244 + (i//4) % 2}, s[{R_B}:{R_B+3}], s{sT1} offen{NTW} lds")
    if i < 15:
        E("s_add_u32 m0, m0, 1024")
        E(f"s_add_u32 s{sT1}, s{sT1}, {16*3584}")
E("s_waitcnt vmcnt(0)")
stamp(4)
E("s_barrier")
stamp_flush(6, 2)
E("s_endpgm")
L("L_D2_flag")
E(f"s_lshl_b32 s{sT1}, s{sG}, 5")
E(f"s_lshl_b32 s{sT2}, s{sC}, 2")
E(f"s_add_u32 s{sT1}, s{sT1}, s{sT2}")
E(f"v_mov_b32 v{cT}, 1")
E(f"v_mov_b32 v{cT+1}, s{sT1}")
E(f"v_lshlrev_b32 v{cT+2}, 2, v1")
E("s_waitcnt vmcnt(0)")
E("s_mov_b64 exec, 1")
E(f"buffer_store_dword v{cT}, v{cT+1}, s[{R_C}:{R_C+3}], 0 offen sc1")
E("s_mov_b64 exec, -1")
if LATE0 >= 2 or W1L == 1: E("s_barrier")
E("s_waitcnt vmcnt(0)")
L("L_D2_fpoll")
E(f"buffer_load_dword v{cT+3}, v{cT+2}, s[{R_C}:{R_C+3}], 0 offen sc1")
E("s_waitcnt vmcnt(0)")
E(f"v_cmp_ne_u32 vcc, 1, v{cT+3}")
E("s_cbranch_vccz L_D2_fok")
E("s_sleep 8")
spin_check("L_D2_fpoll")
L("L_D2_fok")
E("s_barrier")
E("s_endpgm")
L("L_D2_ctl")
ctl_head()
stamp(1)
xc_publish()
first_gather("d2x", False, lambda: d2_clear(" sc1", True))
stamp(2)
if LATE0 == 3:
    E(f"v_lshlrev_b32 v{cT}, {'3' if STW else '2'}, v1")
    E(f"s_cmp_eq_u32 s{sMODE}, 1")
    E("s_cbranch_scc0 L_D2_go")
    L("L_D2_st")
    if STW:
        E(f"buffer_load_dword v{cT+1}, v{cT}, {WSR}, s{sLOC} offen offset:{W_ST} sc1")
        E("s_waitcnt vmcnt(0)")
        E(f"v_cmp_ne_u32 vcc, -1, v{cT+1}")
    E("s_cbranch_vccnz L_D2_go")
    E("s_sleep 2")
    spin_check("L_D2_st")
    L("L_D2_go")
    stamp(3)
E("s_waitcnt lgkmcnt(0)")
if LATE0 >= 2 or W1L == 1: E("s_barrier")
E("s_barrier")
stamp_flush(4, 1)
E("s_endpgm")
sec("d2")
L("L_D2_comp")
E(f"s_min_u32 s{sT1}, s{sC}, 6")
E(f"s_lshl_b32 s{sT1}, s{sT1}, 6")
E(f"s_mul_i32 s{sT0}, s{sG}, 448")
E(f"s_add_u32 s{sS1}, s{sT0}, s{sT1}")
if LATE0: wo_issue()
if W1L == 1 and LATE0 < 2: E("s_barrier")
srd(R_C, sB1, None, 3584)
E(f"v_and_b32 v{TT+5}, 7, v2")
E(f"v_lshlrev_b32 v{TT+5}, 1, v{TT+5}")
E(f"s_lshl_b32 s{sT1}, s{sWV}, 4")
E(f"s_add_u32 s{sT0}, s{sS1}, s{sT1}")
E(f"buffer_load_ushort v{vB1}, v{TT+5}, s[{R_C}:{R_C+3}], s{sT0} offen")
E(f"v_lshrrev_b32 v{TT+5}, 1, v{TT+2}")
E(f"v_lshl_add_u32 v{TT+5}, v{TT+1}, 1, v{TT+5}")
E(f"v_xor_b32 v{TT+5}, s{sWV}, v{TT+5}")
E(f"v_lshl_add_u32 v{aTA}, v3, 7, v{TT+2}")
E(f"v_lshlrev_b32 v{aTA}, 7, v{aTA}")
E(f"v_lshl_add_u32 v{aTA}, v{TT+3}, 3, v{aTA}")
E(f"v_lshl_add_u32 v{aTA}, v{TT+5}, 5, v{aTA}")
E(f"v_bfe_u32 v{TT+5}, v2, 1, 1")
E(f"v_lshl_add_u32 v{TT+6}, v{TT+5}, 6, v{TT+4}")
E(f"v_lshl_add_u32 v{TT+5}, v{TT+5}, 1, v{TT+1}")
E(f"v_xor_b32 v{TT+5}, s{sWV}, v{TT+5}")
E(f"v_lshlrev_b32 v{aTB}, 6, v{TT+6}")
E(f"v_lshl_add_u32 v{aTB}, v{TT+5}, 4, v{aTB}")
E(f"v_and_b32 v{TT+5}, 1, v2")
E(f"v_lshl_add_u32 v{aTB}, v{TT+5}, 3, v{aTB}")
E(f"v_add_u32 v{aTB}, {WB_LDS}, v{aTB}")
E(f"s_lshl_b32 s{sT1}, s{sWV}, 7")
E(f"v_lshlrev_b32 v{aST}, 5, v3")
E(f"v_add_u32 v{aST}, s{sT1}, v{aST}")
E(f"v_lshlrev_b32 v{aOS}, 4, v2")
E(f"v_lshl_add_u32 v{aOS}, v{TT+1}, 3, v{aOS}")
E(f"v_lshl_add_u32 v{aOS}, v{TT}, 2, v{aOS}")
E(f"s_lshl_b32 s{sT1}, s{sWV}, 8")
E(f"s_add_u32 s{sT1}, s{sT1}, {OS_LDS}")
E(f"v_add_u32 v{aOS}, s{sT1}, v{aOS}")
E(f"v_add_u32 v{aIN}, {OS_LDS}, v{vL16}")
E(f"v_lshlrev_b32 v{TT+5}, 4, v{TT+5}")
E(f"v_mov_b32 v{TT+6}, 0xffff")
E(f"v_lshlrev_b32 v{TT+6}, v{TT+5}, v{TT+6}")
E(f"v_bfe_u32 v{TT+7}, v2, 1, 2")
for d in range(4):
    E(f"v_cmp_eq_u32 vcc, {d}, v{TT+7}")
    E("s_nop 1")
    E(f"v_cndmask_b32 v{MK+d}, 0, v{TT+6}, vcc")
E(f"v_lshrrev_b32 v{vFLG}, 3, v2")
E(f"v_cmp_eq_u32 vcc, v{vFLG}, v{TT}")
E(f"v_cvt_f32_u32 v{vFLG}, v{vFLG}")
E("s_nop 0")
E(f"v_cndmask_b32 v{vVAL}, 0, -1, vcc")
E(f"s_lshl_b32 s{sT1}, s{sWV}, 12")
E(f"s_add_u32 s{sPoff}, s{sPoff}, s{sT1}")
E(f"s_lshl_b32 s{sT1}, s{sPJ}, 4")
E(f"s_add_u32 s{sPub}, s{sLOC}, s{sT1}")
E(f"s_add_u32 s{sPubG}, s{sPubG}, {W_Y}")
E(f"s_mov_b32 s{sYoff}, {W_Y}")
E(f"s_mov_b32 s{sC2}, 0")
E("s_waitcnt vmcnt(0)")
unpack_resid(XB)
E(f"v_lshlrev_b32 v{vB1}, 16, v{vB1}")
stamp(1)
E("s_barrier")
stamp(2)
ampx("xw", 0)
for s in range(16):
    for e in range(2):
        E(f"ds_read_b64_tr_b16 {vr(WA+4*s+2*e,2)}, v{aTA} offset:{1024*s+512*e}")
def w1_frags():
    for s in range(8):
        for e in range(2):
            E(f"ds_read_b64_tr_b16 {vr(WB+4*s+2*e,2)}, v{aTB} offset:{16384*e+512*s}")
def w1_sums():
    for s in range(8):
        c = "0" if s == 0 else vr(ACC,4)
        E(f"v_mfma_f32_16x16x32_bf16 {vr(ACC,4)}, {vr(ONESB,4)}, {vr(WB+4*s,4)}, {c}")
    E("s_nop 7")
    E(f"v_add_f32_dpp v{vCS}, v{ACC}, v{ACC} row_ror:8 row_mask:0xf bank_mask:0xf")
if W1L != 2: w1_frags()
read_mode("0xff", 28)
if W1L != 2: w1_sums()
L("L_D2_loop")
mark("d2")
def p_loads():
    for i in range(4):
        E(f"buffer_load_dwordx4 {vr(GB+4*i,4)}, v{vL16}, {WSR}, s{sPoff} offen offset:{1024*i} sc1")
arm(vST, 8)
p_loads()
if TP & 2:
    E(f"s_cmp_eq_u32 s{sLAY}, 0")
    E("s_cbranch_scc1 L_D2_near")
    gather1("gx2s", CA, vL16, sLOC, W_X2, TT, pd=1, slp=PSL)
    L("L_D2_near")
L("L_gs_poll")
E(f"buffer_load_dwordx4 {vr(vST,4)}, v{aST}, {WSR}, s{sLOC} offen offset:{W_ST} sc1")
E(f"buffer_load_dwordx4 {vr(vST+4,4)}, v{aST}, {WSR}, s{sLOC} offen offset:{W_ST+16} sc1")
E(f"s_waitcnt vmcnt({2*(PD-1)})")
E(f"v_max3_u32 v{TT}, v{vST}, v{vST+1}, v{vST+2}")
E(f"v_max3_u32 v{TT+1}, v{vST+3}, v{vST+4}, v{vST+5}")
E(f"v_max3_u32 v{TT}, v{TT}, v{vST+6}, v{vST+7}")
E(f"v_max_u32 v{TT}, v{TT}, v{TT+1}")
E(f"v_cmp_eq_u32 vcc, -1, v{TT}")
E("s_cbranch_vccz L_gs_ok")
if SLP: E(f"s_sleep {SLP}")
spin_check("L_gs_poll")
L("L_gs_ok")
p_loads()
stamp(3, True)
vM, vU, vLs = TT, TT+1, TT+2
WT = TT + 3
AW = GB + 16
E(f"v_max3_f32 v{vM}, v{vST}, v{vST+2}, v{vST+4}")
E(f"v_max_f32 v{vM}, v{vM}, v{vST+6}")
for sw in ("16", "32"):
    E(f"v_mov_b32 v{vU}, v{vM}")
    E("s_nop 1")
    E(f"v_permlane{sw}_swap_b32 v{vM}, v{vU}")
    E(f"v_max_f32 v{vM}, v{vM}, v{vU}")
for t in range(4): E(f"v_sub_f32 v{WT+t}, v{vST+2*t}, v{vM}")
for t in range(4): E(f"v_exp_f32 v{WT+t}, v{WT+t}")
E("s_nop 0")
E(f"v_mul_f32 v{vLs}, v{WT}, v{vST+1}")
for t in range(1, 4): E(f"v_fmac_f32 v{vLs}, v{WT+t}, v{vST+2*t+1}")
for sw in ("16", "32"):
    E(f"v_mov_b32 v{vU}, v{vLs}")
    E("s_nop 1")
    E(f"v_permlane{sw}_swap_b32 v{vLs}, v{vU}")
    E(f"v_add_f32 v{vLs}, v{vLs}, v{vU}")
E(f"v_rcp_f32 v{vLs}, v{vLs}")
p_loads()
for t in range(4): E(f"v_mul_f32 v{WT+t}, v{WT+t}, v{vLs}")
for t in range(4): E(f"v_cvt_pk_bf16_f32 v{WT+4+t}, v{WT+t}, v{WT+t}")
for t in range(4): E(f"v_and_b32 v{WT+4+t}, 0xffff0000, v{WT+4+t}")
for t in range(4): E(f"v_fma_f32 v{WT+t}, -v{WT+4+t}, v{vFLG}, v{WT+t}")
for t in range(4): E(f"v_cvt_pk_bf16_f32 v{WT+t}, v{WT+t}, v{WT+t}")
for t in range(4):
    for d in range(4): E(f"v_and_b32 v{AW+4*t+d}, v{MK+d}, v{WT+t}")
E("s_branch L_gp_use")
L("L_gp_nan")
E(f"s_sub_u32 s{sSPIN}, s{sSPIN}, 1")
E("s_cbranch_scc1 L_exit")
E(f"s_and_b32 s{sT1}, s{sSPIN}, 15")
E("s_cbranch_scc0 L_gp_retry")
L("L_gp_again")
p_loads()
L("L_gp_use")
E("s_waitcnt vmcnt(4)")
for t in range(4):
    E(f"v_mfma_f32_16x16x32_bf16 {vr(CA,4)}, {vr(AW+4*t,4)}, {vr(GB+4*t,4)}, {'0' if t == 0 else vr(CA,4)}")
E("s_nop 7")
E(f"v_cmp_u_f32 vcc, v{CA}, v{CA}")
E(f"v_permlane32_swap_b32 v{CA}, v{CA+2}")
E(f"v_permlane32_swap_b32 v{CA+1}, v{CA+3}")
E("s_cbranch_vccnz L_gp_nan")
L("L_gp_ok")
E(f"v_add_f32 v{CA}, v{CA}, v{CA+2}")
E(f"v_add_f32 v{CA+1}, v{CA+1}, v{CA+3}")
E(f"v_cvt_pk_bf16_f32 v{CA}, v{CA}, v{CA+1}")
E(f"ds_write_b32 v{aOS}, v{CA}")
E(f"v_mov_b32 v{vT}, 0")
stamp(4, True)
mark("d2")
E("s_waitcnt lgkmcnt(0)")
E("s_barrier")
E(f"ds_read_b128 {vr(XB,4)}, v{aIN}")
E(f"buffer_load_dwordx4 {vr(CA,4)}, v{vL16}, {WSR}, s{sLOC} offen offset:{W_X2} sc1")
E("s_waitcnt lgkmcnt(0)")
matvec(16, XB, WA, [], per=PN)
y_publish()
stamp(5, True)
ampx("xy", 0)
if W1L == 2:
    E(f"s_cmp_lg_u32 s{sLAY}, 0")
    E("s_cbranch_scc1 L_D2_havew1")
    w1_frags()
    E("s_waitcnt lgkmcnt(0)")
    w1_sums()
    L("L_D2_havew1")
def pre_y():
    E(f"s_cmp_eq_u32 s{sLAY}, 0")
    E("s_cbranch_scc1 L_D2_havex")
    E("s_waitcnt vmcnt(1)")
    chk_bf16(CA, TT)
    E("s_cbranch_vccz L_gx2_have")
    gather1("gx2", CA, vL16, sLOC, W_X2, TT, pd=1, slp=0)
    L("L_gx2_have")
    unpack_resid(CA)
    L("L_D2_havex")
relay_X("gy", sYoff, pre_y)
stamp(6, True)
ampx("xz", 0)
E(f"s_cmp_eq_u32 s{sC}, 7")
E("s_cbranch_scc1 L_D2_x1")
matvec(8, XB, WB, stats_fillers(), rows=[(0x5, 0xf, [0,1,2,3]), (0xa, 0xf, [4,5,6,7])], per=PER+2)
mark("d2")
xgroup_sum(True)
h, u, a, b = vT, TT+5, TT+6, TT+7
E(f"v_add_f32 v{h}, v{h}, v{vB1}")
E(f"v_mul_f32 v{u}, s{sC3}, |v{h}|")
E(f"v_exp_f32 v{u}, v{u}")
E(f"v_cmp_le_f32 vcc, 0, v{h}")
E(f"v_add_f32 v{b}, 2.0, v{u}")
E(f"v_fma_f32 v{a}, v{u}, 2.0, 1.0")
E(f"v_mul_f32 v{b}, v{u}, v{b}")
E(f"v_mul_f32 v{u}, v{u}, v{u}")
E(f"v_cndmask_b32 v{a}, v{b}, v{a}, vcc")
E(f"v_cndmask_b32 v{u}, 1.0, v{u}, vcc")
E(f"v_fma_f32 v{b}, v{u}, 2.0, v{a}")
E(f"v_rcp_f32 v{b}, v{b}")
E(f"v_mul_f32 v{h}, v{h}, v{a}")
E(f"v_mul_f32 v{h}, v{h}, v{b}")
E(f"v_cvt_pk_bf16_f32 v{h}, v{h}, v{h}")
E(f"v_min_u32 v{h}, -2, v{h}")
pub2("buffer_store_short", f"v{h}", aP16, sPub, sMA_f, sMA_s, W_ACT)
stamp(7, True)
L("L_D2_next")
for s_ in (sLOC, sPoff, sPub, sPubG, sYoff):
    E(f"s_add_u32 s{s_}, s{s_}, {LS}")
E(f"s_add_u32 s{sLAY}, s{sLAY}, 1")
E(f"s_cmp_lt_u32 s{sLAY}, 2")
E("s_cbranch_scc1 L_D2_loop")
stamp_flush(0, 0)
E("s_endpgm")
L("L_D2_x1")
pub_resid(W_X1)
unpack_resid(XB)
E("s_branch L_D2_next")
sec("cold")
L("L_exit")
E("s_endpgm")
L("L_gp_retry")
for i in range(0, 16, 2): E(f"v_pk_max_u16 v{ACC+i//2}, v{GB+i}, v{GB+i+1}")
for i in range(0, 8, 2): E(f"v_pk_max_u16 v{ACC+i//2}, v{ACC+i}, v{ACC+i+1}")
chk_bf16(ACC, TT)
E("s_cbranch_vccnz L_gp_again")
for t in range(4):
    E(f"v_mfma_f32_16x16x32_bf16 {vr(CA,4)}, {vr(AW+4*t,4)}, {vr(GB+4*t,4)}, {'0' if t == 0 else vr(CA,4)}")
E("s_nop 9")
E(f"v_permlane32_swap_b32 v{CA}, v{CA+2}")
E(f"v_permlane32_swap_b32 v{CA+1}, v{CA+3}")
E("s_branch L_gp_ok")
for b_ in retry_blocks: b_()
L("L_code_end")

out = [open("cdna_kernels/" + NAME + ".s.ref").read().split("; Override")[0].rstrip("\n"),
       f"; @launch grid=(256,1,1) block=(512,1,1) lds={LDS_BYTES}", '.amdgcn_target "amdgcn-amd-amdhsa--gfx950"', ".text",
       f".globl {NAME}_kernel", ".p2align 8", f".type {NAME}_kernel,@function"]
for k in ORDER:
    for x in secs[k]:
        if isinstance(x, tuple) and x[0] == "MARK":
            _, role, i = x
            n = wstep[role]
            out.append("    s_cbranch_execz " + (marks[role][i + n] if i + n < len(marks[role]) else f"L_wd_{role}{i % n}"))
        elif isinstance(x, tuple):
            _, role, first, step = x
            assert first < len(marks[role])
            out += ["    s_mov_b64 exec, 0", f"    s_branch {marks[role][first]}", f"L_wd_{role}{first}:", "    s_mov_b64 exec, -1"]
        else: out.append(x)
out.append('.section .rodata,"a"')
out.append(".p2align 6")
out.append(f".amdhsa_kernel {NAME}_kernel")
out.append("  .amdhsa_next_free_vgpr 256")
out.append("  .amdhsa_next_free_sgpr 96")
out.append("  .amdhsa_accum_offset 256")
out.append("  .amdhsa_group_segment_fixed_size 0")
out.append("  .amdhsa_kernarg_size 96")
out.append("  .amdhsa_user_sgpr_count 2")
out.append("  .amdhsa_user_sgpr_kernarg_segment_ptr 1")
out.append("  .amdhsa_system_sgpr_workgroup_id_x 1")
out.append("  .amdhsa_float_denorm_mode_32 3")
out.append(".end_amdhsa_kernel")
open(sys.argv[1], "w").write("\n".join(out) + "\n")
```

```python
import sys, math, struct
PROF = int(sys.argv[2]) if len(sys.argv) > 2 else 0
OPT = dict(a.split("=") for a in sys.argv[3:])
THR = int(OPT.get("thr", 6))
ACK = int(OPT.get("ack", 1))
PER = int(OPT.get("per", 3))
PD = int(OPT.get("pd", 3))
SLP = int(OPT.get("slp", 0))
LATE0 = int(OPT.get("late0", 1))
GP = int(OPT.get("gp", 1))
GSL = int(OPT.get("gsl", 0))
THV = int(OPT.get("thv", 10))
GD = int(OPT.get("gd", 0))
fl = lambda k, d: {"0": "", "1": " nt", "2": " sc1", "3": " sc0 sc1", "4": " sc1 nt"}[OPT.get(k, d)]
NTQ, NTW, NTK, NTV = fl("ntq", "0"), fl("ntw", "0"), fl("ntk", "1"), fl("ntv", "0")
TQ = int(OPT.get("tq", 1))
MARKGAP = int(OPT.get("gap", 768))
CPF = int(OPT.get("cpf", 1))
W1L = int(OPT.get("w1l", 1))
STW = 1
REORD = int(OPT.get("reord", 0))
PAD = int(OPT.get("pad", 1))
PN = int(OPT.get("pn", 4))
W2P = int(OPT.get("w2p", 0))
W1N = int(OPT.get("w1n", 1))
FSL = int(OPT.get("fsl", 3))
PSL = int(OPT.get("psl", 3))
TP = int(OPT.get("tp", 0))
VPF = int(OPT.get("vpf", 0))
TDO, TD1 = int(OPT.get("tdo", 0)), int(OPT.get("td1", 0))
PRIO = int(OPT.get("prio", 1))
WARM = int(OPT.get("warm", 0))
NTT = fl("ntt", "0")
GFL = fl("gfl", "2")
SFL = {"2": " sc1", "3": " sc0 sc1", "4": " sc1 nt"}[OPT.get("sfl", "2")]
NAME = "interleave_layers__sliding_block_cached__dense_activation_mish__decode"
import re
ORDER = ["entry", "dinit", "d1", "actl", "a", "d2", "help", "cold"]
secs = {k: [] for k in ORDER}
cur = ["entry"]
since = {k: 0 for k in ORDER}
unsafe = [False]
marks = {k: [] for k in ORDER}
WARMED = ("d1", "a", "d2")
BIG = ("v_mfma", "v_pk_", "v_fma_", "v_max3", "v_or3", "v_add3", "v_lshl_add", "v_bfe", "v_mul_lo", "v_cvt_pk", "v_readlane", "v_writelane",
       "ds_", "buffer_", "global_", "s_load", "s_memrealtime")
def isize(t):
    if t.startswith(BIG) or "_dpp" in t or "|v" in t or (t.startswith(("v_cmp", "v_cndmask")) and "s[" in t): return 8
    ops = t.split(None, 1)[1] if " " in t else ""
    if t.startswith(("s_waitcnt", "s_nop", "s_sleep", "s_branch", "s_cbranch", "s_call", "s_getreg", "s_setprio")): return 4
    for tok in re.split(r"[,\s]+", ops):
        if re.fullmatch(r"0x[0-9a-f]+|\d+", tok) and int(tok, 0) > 64: return 8
    return 4
def sec(name): cur[0] = name
def put_mark():
    k = cur[0]
    marks[k].append(f"L_wm_{k}{len(marks[k])}")
    secs[k].append(marks[k][-1] + ":")
    secs[k].append(("MARK", k, len(marks[k]) - 1))
    since[k] = 4
def E(s=""):
    k = cur[0]
    if WARM and k in WARMED and not unsafe[0] and (since[k] >= MARKGAP or not marks[k]): put_mark()
    secs[k].append("    " + s)
    since[k] += isize(s)
    if re.match(r"s_\w+ exec", s): unsafe[0] = s != "s_mov_b64 exec, -1"
def L(s): secs[cur[0]].append(s + ":")
def vr(a, n=1): return f"v{a}" if n == 1 else f"v[{a}:{a+n-1}]"
def f32(x): return hex(struct.unpack("<I", struct.pack("<f", x))[0])

K_LDS, V_LDS = 0, 65536
WA_LDS, WB_LDS = 0, 65536
QS_LDS, PX_LDS, SX_LDS, FL_LDS = 131072, 132608, 140800, 141312
OS_LDS, XS_LDS = QS_LDS, PX_LDS
LDS_BYTES = 141824
LS = 0x30000
W_Q, W_X2, W_X1, W_ST, W_ACT = 0, 1024, 2048, 3072, 3584
W_Y, W_Z, W_P = 32768, 40960, 65536
W_Q0 = 2 * LS
W_Q0B = 32768
W_EP = W_Q0 + 65536
ALT = 0x80000
WS_USED = ALT + 2 * LS
PROF_OFF = 0x300000
WS_REC = PROF_OFF + 256 * 1024

sX, sK, sV, sWQ, sWO, sBX, sW1, sB1 = 8, 10, 12, 14, 16, 18, 20, 22
sW2, sOUT, sDBG, sWS = 24, 26, 28, 30
sG, sJ, sWV, sC, sPJ = 3, 4, 5, 6, 7
R_WS, R_A, R_B, R_C = 32, 36, 40, 44
sT0, sT1, sT2, sT3 = 48, 49, 50, 51
sLOC, sLAY = 52, 53
sYoff, sZoff, sPoff = 54, 55, 56
sSPIN = 57
sRET = 58
sMA_f, sMA_s, sMB_f, sMB_s, sMC_f, sMC_s = 60, 62, 64, 66, 68, 70
sTAG, sXCC, sQ0, sQ0B = 72, 73, 74, 75
sFFFE = 76
sC1, sC2, sC3 = 77, 78, 79
sS1, sS2, sPIV = 80, 81, 82
sPub, sPubG = 83, 84
sST = 88
sPe, sLe, sMODE = 90, 91, 92
SPIN0 = 0x200000
WSR = f"s[{R_WS}:{R_WS+3}]"

def srd(r, base, add_lo=None, rec=None):
    if add_lo is None:
        E(f"s_mov_b32 s{r}, s{base}")
        E(f"s_and_b32 s{r+1}, s{base+1}, 0xffff")
    else:
        E(f"s_add_u32 s{r}, s{base}, {add_lo}")
        E(f"s_addc_u32 s{r+1}, s{base+1}, 0")
        E(f"s_and_b32 s{r+1}, s{r+1}, 0xffff")
    E(f"s_mov_b32 s{r+2}, {rec}")
    E(f"s_mov_b32 s{r+3}, 0x00020000")

V_STAMP = 254
ROLE = ["a"]
def stamp(idx, layer_dep=False):
    if not PROF: return
    if PROF == 9 and not (idx == 8 and not layer_dep) and not (idx == 6 and layer_dep and ROLE[0] == "a" and "pt" not in OPT) and OPT.get("pt") != f"{cur[0]}_{idx}": return
    E(f"s_memrealtime s[{sST}:{sST+1}]")
    E("s_waitcnt lgkmcnt(0)")
    if layer_dep:
        E(f"s_lshl_b32 s{sT3}, s{sLAY}, 4")
        E(f"s_add_u32 s{sT3}, s{sT3}, {idx}")
        E(f"s_mov_b32 m0, s{sT3}")
        E("s_nop 0")
        E(f"v_writelane_b32 v{V_STAMP}, s{sST}, m0")
    else:
        E(f"v_writelane_b32 v{V_STAMP}, s{sST}, {idx}")
AMP = OPT.get("amp")
def amp(name):
    if AMP != name: return
    E(f"s_cmp_eq_u32 s{sLAY}, {OPT.get('amplay', '0')}")
    E(f"s_cbranch_scc0 L_amp_{name}")
    E("s_memrealtime s[94:95]")
    E("s_waitcnt lgkmcnt(0)")
    L(f"L_amp_{name}")
def ampx(name, wave):
    if AMP != name: return
    E(f"s_cmp_eq_u32 s2, {OPT.get('ampwg', '0')}")
    E(f"s_cbranch_scc0 L_amp_{name}")
    E(f"s_cmp_eq_u32 s{sWV}, {wave}")
    E(f"s_cbranch_scc0 L_amp_{name}")
    E(f"s_cmp_eq_u32 s{sLAY}, 0")
    E(f"s_cbranch_scc0 L_amp_{name}")
    E("s_memrealtime s[94:95]")
    E("s_waitcnt lgkmcnt(0)")
    if name == "xs": E("s_mov_b32 s94, s86")
    if name == "xa": E("s_mov_b32 s94, s88")
    E("v_mov_b32 v246, s94")
    E(f"v_mov_b32 v247, {W_EP + 64}")
    E(f"buffer_store_dword v246, v247, {WSR}, 0 offen sc1")
    L(f"L_amp_{name}")
def stamp_flush(wave, slot, dbg=None):
    if not PROF: return
    E(f"s_cmp_lg_u32 s{sWV}, {wave}")
    E("s_cbranch_scc1 L_exit")
    E("s_mov_b64 exec, -1")
    if dbg and "dbg" in OPT:
        wg, off, idx = dbg
        for i, x in enumerate(idx):
            E(f"v_readlane_b32 s{sT0}, v{V_STAMP}, {x}")
            E("s_nop 3")
            E(f"v_writelane_b32 v{V_STAMP-2}, s{sT0}, {i}")
        srd(R_A, sDBG, None, 256)
        E(f"v_lshlrev_b32 v{V_STAMP-1}, 2, v1")
        E(f"s_cmp_eq_u32 s2, {wg}")
        E(f"s_cselect_b32 exec_lo, {(1 << len(idx)) - 1}, 0")
        E("s_mov_b32 exec_hi, 0")
        E(f"buffer_store_dword v{V_STAMP-2}, v{V_STAMP-1}, s[{R_A}:{R_A+3}], 0 offen offset:{off}")
        E("s_mov_b64 exec, -1")
    E(f"s_lshl_b32 s{sT0}, s2, 10")
    E(f"s_add_u32 s{sT0}, s{sT0}, {PROF_OFF + slot*256}")
    E(f"v_lshlrev_b32 v{V_STAMP-1}, 2, v1")
    E(f"buffer_store_dword v{V_STAMP}, v{V_STAMP-1}, {WSR}, s{sT0} offen")

wstep = {}
def mark(role): pass
def warm(role, first=0, step=1):
    if WARM:
        secs[cur[0]].append(("WARM", role, first, step))
        assert wstep.setdefault(role, step) == step

def spin_check(fail_label):
    E(f"s_sub_u32 s{sSPIN}, s{sSPIN}, 1")
    E(f"s_cbranch_scc1 L_exit")
    E(f"s_branch {fail_label}")

def chk_bf16(v, t):
    E(f"v_pk_max_u16 v{t}, v{v}, v{v+1}")
    E(f"v_pk_max_u16 v{t+1}, v{v+2}, v{v+3}")
    E(f"v_pk_max_u16 v{t}, v{t}, v{t+1}")
    E(f"v_pk_max_u16 v{t}, v{t}, v{t} op_sel:[0,1] op_sel_hi:[1,0]")
    E(f"v_cmp_eq_u32 vcc, -1, v{t}")

def pub2(op, data, addr, soff, mf, ms, imm=0):
    o = f" offset:{imm}" if imm else ""
    E(f"s_mov_b64 exec, s[{mf}:{mf+1}]")
    E(f"{op} {data}, v{addr}, {WSR}, s{soff} offen{o}")
    E(f"s_mov_b64 exec, s[{ms}:{ms+1}]")
    E(f"{op} {data}, v{addr}, {WSR}, s{soff} offen{o} sc1")
    E("s_mov_b64 exec, -1")

def masks(mf, ms, lo, hi):
    E(f"s_cselect_b32 s{mf}, {lo}, 0")
    E(f"s_cselect_b32 s{mf+1}, {hi}, 0")
    E(f"s_cselect_b32 s{ms}, 0, {lo}")
    E(f"s_cselect_b32 s{ms+1}, 0, {hi}")

def arm(dst, n):
    for r in range(n): E(f"v_mov_b32 v{dst+r}, -1")

def gather1(tag, dst, addr, soff, imm, t, pd=None, slp=None):
    pd = PD if pd is None else pd
    slp = SLP if slp is None else slp
    L(f"L_{tag}_poll")
    E(f"buffer_load_dwordx4 {vr(dst,4)}, v{addr}, {WSR}, s{soff} offen offset:{imm} sc1")
    E(f"s_waitcnt vmcnt({pd-1})")
    chk_bf16(dst, t)
    E(f"s_cbranch_vccz L_{tag}_ok")
    if slp: E(f"s_sleep {slp}")
    spin_check(f"L_{tag}_poll")
    L(f"L_{tag}_ok")

cD, cA, cXa, cG, cT, cL16 = 208, 210, 211, 212, 224, 232
def xc_publish():
    E(f"s_getreg_b32 s{sXCC}, hwreg(HW_REG_XCC_ID, 0, 4)")
    E(f"v_mov_b32 v{cD+1}, s{sTAG}")
    E(f"s_lshl_b32 s{sT3}, s{sJ}, 3")
    E(f"v_mov_b32 v{cD}, s{sXCC}")
    E(f"v_mov_b32 v{cA}, s{sT3}")
    E("s_mov_b64 exec, 1")
    E(f"buffer_store_dwordx2 {vr(cD,2)}, v{cA}, {WSR}, s{sQ0} offen offset:2048")
    E("s_mov_b64 exec, -1")

def first_gather(tag, with_q, clear_alt, armed=False):
    regs = (1, 3, 5, 7) if with_q else (9,)
    nl = 3 if with_q else 1
    E(f"s_sub_u32 s{sS2}, s{sSPIN}, {480 // FSL}")
    if not armed:
        E(f"v_and_b32 v{cXa}, 31, v1")
        E(f"v_lshlrev_b32 v{cXa}, 3, v{cXa}")
        E(f"s_not_b32 s{sT1}, s{sTAG}")
        for r in regs + ((9,) if with_q else ()): E(f"v_mov_b32 v{cG+r}, s{sT1}")
    def loads(so):
        if with_q:
            E(f"buffer_load_dwordx4 {vr(cG,4)}, v{cL16}, {WSR}, s{so} offen sc1")
            E(f"buffer_load_dwordx4 {vr(cG+4,4)}, v{cL16}, {WSR}, s{so} offen offset:1024 sc1")
        E(f"buffer_load_dwordx2 {vr(cG+8,2)}, v{cXa}, {WSR}, s{so} offen offset:2048 sc1")
    def check():
        if with_q:
            for i, r in enumerate(regs): E(f"v_xor_b32 v{cT+i}, s{sTAG}, v{cG+r}")
            E(f"v_or3_b32 v{cT}, v{cT}, v{cT+1}, v{cT+2}")
            E(f"v_or_b32 v{cT}, v{cT}, v{cT+3}")
            E(f"v_cmp_ne_u32 vcc, 0, v{cT}")
        else:
            E(f"v_cmp_ne_u32 vcc, s{sTAG}, v{cG+9}")
    def copy_b():
        E("s_mov_b64 exec, 1")
        E(f"buffer_store_dwordx2 {vr(cD,2)}, v{cA}, {WSR}, s{sQ0B} offen offset:2048 sc1")
        E("s_mov_b64 exec, -1")
    L(f"L_{tag}_poll")
    loads(sQ0)
    E(f"s_waitcnt vmcnt({24 if armed else nl*6})")
    check()
    E(f"s_cbranch_vccz L_{tag}_seen")
    E(f"s_sleep {FSL}")
    E(f"s_cmp_gt_u32 s{sSPIN}, s{sS2}")
    E(f"s_cbranch_scc0 L_{tag}_b")
    spin_check(f"L_{tag}_poll")
    home = cur[0]; sec("cold")
    L(f"L_{tag}_b")
    copy_b()
    L(f"L_{tag}_alt")
    for so in (sQ0B, sQ0):
        loads(so)
        E("s_waitcnt vmcnt(0)")
        check()
        E(f"s_cbranch_vccz L_{tag}_{'altok' if with_q else 'ok'}")
    spin_check(f"L_{tag}_alt")
    if with_q:
        L(f"L_{tag}_altok")
        E(f"s_not_b32 s{sT1}, s{sTAG}")
        E(f"v_mov_b32 v{cG+9}, s{sT1}")
        E(f"s_branch L_{tag}_ok")
    sec(home)
    L(f"L_{tag}_seen")
    E("s_nop 15")
    L(f"L_{tag}_ok")
    if with_q:
        E(f"ds_write2_b32 v{cT+5}, v{cG}, v{cG+2} offset0:0 offset1:1")
        E(f"ds_write2_b32 v{cT+5}, v{cG+4}, v{cG+6} offset0:160 offset1:161")
        return
    E(f"v_cmp_ne_u32 vcc, s{sXCC}, v{cG+8}")
    E("s_nop 3")
    if OPT.get("slow") == "1": E("s_mov_b64 vcc, -1")
    E("s_cmp_eq_u64 vcc, 0")
    E(f"s_cselect_b32 s{sMODE}, 1, 0")
    E(f"s_cbranch_scc0 L_{tag}_slow")
    sec("cold")
    L(f"L_{tag}_slow")
    E("s_waitcnt vmcnt(0) lgkmcnt(0)")
    copy_b()
    if clear_alt: clear_alt()
    if clear_alt:
        E("s_waitcnt vmcnt(0)")
        E("s_mov_b64 exec, 1")
        E(f"buffer_store_dwordx2 {vr(cD,2)}, v{cA}, {WSR}, s{sQ0B} offen offset:2560 sc1")
        E("s_mov_b64 exec, -1")
    E(f"v_and_b32 v{cXa}, 56, v{cXa}")
    E(f"v_add_u32 v{cXa}, 192, v{cXa}")
    L(f"L_{tag}_h")
    E(f"buffer_load_dwordx2 {vr(cG+8,2)}, v{cXa}, {WSR}, s{sQ0B} offen offset:2560 sc1")
    E("s_waitcnt vmcnt(0)")
    E(f"v_cmp_ne_u32 vcc, s{sTAG}, v{cG+9}")
    E(f"s_cbranch_vccz L_{tag}_done")
    spin_check(f"L_{tag}_h")
    sec(home)
    L(f"L_{tag}_done")
    E(f"v_mov_b32 v{cT+2}, {FL_LDS}")
    E(f"v_mov_b32 v{cT+3}, s{sMODE}")
    E(f"ds_write_b32 v{cT+2}, v{cT+3}")

L(f"{NAME}_kernel")
E("s_cmp_ge_u32 s2, 256")
E("s_cbranch_scc1 L_exit")
E("s_load_dwordx16 s[8:23], s[0:1], 0")
E("s_load_dwordx8 s[24:31], s[0:1], 64")
if PROF:
    E(f"v_mov_b32 v{V_STAMP}, 0")
    E(f"s_memrealtime s[{sST}:{sST+1}]")
if AMP: E("s_memrealtime s[86:87]")
E("s_getpc_b64 s[92:93]")
E("v_lshrrev_b32 v1, 6, v0")
E(f"s_and_b32 s{sG}, s2, 7")
E(f"v_readfirstlane_b32 s{sWV}, v1")
E(f"s_lshr_b32 s{sJ}, s2, 3")
E("v_and_b32 v1, 63, v0")
if CPF:
    E("s_and_b32 s92, s92, 0xffffff00")
    E("v_lshlrev_b32 v4, 7, v1")
    E("v_add_u32 v5, 0x2000, v4")
    E(f"v_min_u32 v5, L_code_end-{NAME}_kernel-4, v5")
    E(f"s_cmp_lg_u32 s{sWV}, 7")
    E("s_cbranch_scc1 L_nocpf")
    E("global_load_dword v239, v4, s[92:93]")
    E("global_load_dword v239, v5, s[92:93]")
    L("L_nocpf")
E("v_and_b32 v2, 15, v0")
E("v_lshrrev_b32 v3, 4, v1")
E(f"s_mov_b32 s{sSPIN}, {SPIN0}")
E(f"s_mov_b32 s{sLAY}, 0")
E(f"s_lshl_b32 s{sLOC}, s{sG}, 12")
E(f"s_lshl_b32 s{sPoff}, s{sG}, 14")
E(f"s_add_u32 s{sPoff}, s{sPoff}, {W_P}")
E(f"s_add_u32 s{sQ0}, s{sLOC}, {W_Q0}")
E(f"s_add_u32 s{sQ0B}, s{sQ0}, {W_Q0B}")
E("v_lshrrev_b32 v5, 3, v1")
E("v_and_b32 v6, 7, v1")
E("v_lshlrev_b32 v4, 13, v5")
E("v_lshl_add_u32 v4, v6, 7, v4")
E(f"s_lshl_b32 s{sT0}, s{sJ}, 17")
E(f"s_lshl_b32 s{sT1}, s{sG}, 10")
E(f"s_add_u32 s{sT0}, s{sT0}, s{sT1}")
E(f"s_sub_u32 s{sT1}, s{sWV}, 1")
E(f"s_lshl_b32 s{sT2}, s{sT1}, 16")
E(f"s_add_u32 s{sT0}, s{sT0}, s{sT2}")
E(f"s_mov_b32 s{sT2}, {W_EP}")
E("v_mov_b32 v7, 0")
for r, rec in ((R_WS, WS_REC if PROF else WS_USED), (R_A, 65536), (R_B, 65536), (R_C, 4194304)):
    E(f"s_mov_b32 s{r+2}, {rec}")
    E(f"s_mov_b32 s{r+3}, 0x00020000")
E(f"v_mov_b32 v{cA}, 0")
E(f"v_lshlrev_b32 v{cL16}, 4, v1")
E(f"s_lshl_b32 s{sPe}, s{sG}, 24")
E(f"s_lshl_b32 s{sT3}, s{sJ}, 16")
E(f"s_add_u32 s{sPe}, s{sPe}, s{sT3}")
E(f"s_add_u32 s{sPe}, s{sPe}, {61440*256}")
E("v_xor_b32 v8, v2, v3")
E("v_lshlrev_b32 v8, 4, v8")
E("v_lshl_add_u32 v8, v3, 8, v8")
E("v_lshlrev_b32 v5, 1, v3")
E("v_xor_b32 v5, v2, v5")
E("v_lshlrev_b32 v5, 4, v5")
E("v_lshl_add_u32 v5, v3, 8, v5")
E(f"s_add_u32 s{sC1}, s{sJ}, s{sG}")
E(f"s_cmp_lt_u32 s{sT1}, 2")
E("s_waitcnt lgkmcnt(0)")
E(f"s_mov_b32 s{R_C}, s{sWQ}")
E(f"s_mov_b32 s{R_C+1}, s{sWQ+1}")
E("s_cbranch_scc0 L_notouch")
if TQ: E(f"buffer_load_dword v240, v4, s[{R_C}:{R_C+3}], s{sT0} offen{NTQ}")
L("L_notouch")
if AMP == "xa":
    E("s_memrealtime s[88:89]")
    E("s_waitcnt lgkmcnt(0)")
E(f"s_mov_b32 s{R_WS}, s{sWS}")
E(f"s_mov_b32 s{R_WS+1}, s{sWS+1}")
E(f"buffer_load_dword v241, v7, {WSR}, s{sT2} offen sc1")
if PROF: E(f"v_writelane_b32 v{V_STAMP}, s{sST}, 60")
E(f"s_add_u32 s{R_A}, s{sK}, s{sPe}")
E(f"s_addc_u32 s{R_A+1}, s{sK+1}, 0")
E(f"s_add_u32 s{R_B}, s{sV}, s{sPe}")
E(f"s_addc_u32 s{R_B+1}, s{sV+1}, 0")
E(f"s_cmp_ge_u32 s{sJ}, 16")
E("s_cbranch_scc1 L_D_init")

E(f"s_cmp_eq_u32 s{sWV}, 4")
E("s_cbranch_scc1 L_A_ctl")
E(f"s_cmp_gt_u32 s{sWV}, 4")
E("s_cbranch_scc1 L_A_help")
E(f"s_lshl_b32 s{sT0}, s{sWV}, 14")
E(f"s_add_u32 s{sT3}, s{sC1}, 16")
L("L_A_kl")
E(f"s_and_b32 s{sT1}, s{sC1}, 15")
E(f"s_and_b32 s{sT2}, s{sT1}, 3")
E(f"s_lshl_b32 s{sT2}, s{sT2}, 6")
E(f"s_lshl_b32 s{sT1}, s{sT1}, 10")
E(f"s_add_u32 s{sT1}, s{sT1}, s{sT0}")
E(f"s_mov_b32 m0, s{sT1}")
E(f"v_xor_b32 v6, s{sT2}, v8")
E(f"s_waitcnt vmcnt({THR-1})")
E(f"buffer_load_dwordx4 v6, s[{R_A}:{R_A+3}], s{sT1} offen{NTK} lds")
E(f"s_add_u32 s{sC1}, s{sC1}, 1")
E(f"s_cmp_lt_u32 s{sC1}, s{sT3}")
E("s_cbranch_scc1 L_A_kl")
E("s_branch L_A_setup")
L("L_A_help")
E(f"s_sub_u32 s{sT0}, s{sWV}, 5")
E(f"s_lshl_b32 s{sC1}, s{sC1}, 2")
E(f"s_mov_b32 s{sT3}, 0")
THV1, NV1 = int(OPT.get("thv1", 0)), int(OPT.get("nv1", 15))
if THV1:
    L("L_A_vl1")
    E(f"s_add_u32 s{sT1}, s{sC1}, s{sT0}")
    E(f"s_and_b32 s{sT1}, s{sT1}, 63")
    E(f"s_and_b32 s{sT2}, s{sT1}, 1")
    E(f"s_lshl_b32 s{sT2}, s{sT2}, 7")
    E(f"s_lshl_b32 s{sT1}, s{sT1}, 10")
    E(f"s_add_u32 m0, s{sT1}, {V_LDS}")
    E(f"v_xor_b32 v6, s{sT2}, v5")
    E(f"s_waitcnt vmcnt({THV1-1})")
    E(f"buffer_load_dwordx4 v6, s[{R_B}:{R_B+3}], s{sT1} offen{NTV} lds")
    E(f"s_add_u32 s{sT0}, s{sT0}, 3")
    E(f"s_cmp_lt_u32 s{sT0}, {NV1}")
    E("s_cbranch_scc1 L_A_vl1")
L("L_A_vl")
E(f"s_add_u32 s{sT1}, s{sC1}, s{sT0}")
E(f"s_and_b32 s{sT1}, s{sT1}, 63")
E(f"s_and_b32 s{sT2}, s{sT1}, 1")
E(f"s_lshl_b32 s{sT2}, s{sT2}, 7")
E(f"s_lshl_b32 s{sT1}, s{sT1}, 10")
E(f"s_add_u32 m0, s{sT1}, {V_LDS}")
E(f"v_xor_b32 v6, s{sT2}, v5")
E(f"s_waitcnt vmcnt({THV-1})")
E(f"buffer_load_dwordx4 v6, s[{R_B}:{R_B+3}], s{sT1} offen{NTV} lds")
E(f"s_add_u32 s{sT0}, s{sT0}, 3")
E(f"s_cmp_lt_u32 s{sT0}, 64")
E("s_cbranch_scc1 L_A_vl")
stamp(1)
E("s_branch L_A_pf2")
sec("actl")
L("L_A_pf2")
E(f"s_mul_i32 s{sT1}, s{sG}, {224*1024}")
E(f"s_mul_i32 s{sT2}, s{sJ}, 14336")
E(f"s_add_u32 s{sT1}, s{sT1}, s{sT2}")
E(f"s_cmp_eq_u32 s{sWV}, 6")
E(f"s_cselect_b32 s{sT3}, {14336 if W2P else 0}, 0")
srd(R_C, sW2, f"s{sT1}", f"s{sT3}")
E(f"s_mov_b32 s{sT1}, 0")
E(f"s_mov_b32 s{sT2}, 8192")
E("v_lshlrev_b32 v6, 7, v1")
E(f"buffer_load_dword v240, v6, s[{R_C}:{R_C+3}], s{sT1} offen{NTT}")
E(f"buffer_load_dword v240, v6, s[{R_C}:{R_C+3}], s{sT2} offen{NTT}")
E("s_barrier")
E("s_waitcnt vmcnt(2)")
stamp(2)
ampx("xv", 5)
E("s_barrier")
stamp_flush(5, 2)
E("s_endpgm")
sec("a")
L("L_A_setup")
if PRIO: E("s_setprio 1")
stamp(1)
KF, VF, QF, SC, PB, OD, OUTV, PF, STT = 16, 80, 144, 160, 176, 144, 176, 184, 216
T = 224
E("v_xor_b32 v4, v2, v3")
E("v_lshlrev_b32 v4, 4, v4")
E("v_lshl_add_u32 v4, v2, 8, v4")
E(f"v_add_u32 v4, s{sT0}, v4")
E("v_xor_b32 v5, 64, v4")
E("v_xor_b32 v6, 0x80, v4")
E("v_xor_b32 v7, 0xc0, v4")
E("v_and_b32 v15, 3, v2")
E("v_mul_u32_u24 v8, 320, v15")
E("v_lshl_add_u32 v8, v3, 4, v8")
E(f"v_add_u32 v8, {QS_LDS}, v8")
E("v_lshlrev_b32 v10, 4, v1")
E(f"v_add_u32 v10, {PX_LDS}, v10")
E(f"s_lshl_b32 s{sT1}, s{sWV}, 11")
E(f"v_add_u32 v9, s{sT1}, v10")
E("v_lshlrev_b32 v12, 5, v2")
E(f"v_add_u32 v12, {SX_LDS}, v12")
E(f"s_lshl_b32 s{sT1}, s{sWV}, 3")
E(f"v_add_u32 v11, s{sT1}, v12")
E("v_lshlrev_b32 v13, 12, v15")
E("v_lshl_add_u32 v13, v3, 3, v13")
E("v_bfe_u32 v14, v2, 2, 1")
E("v_lshl_add_u32 v13, v14, 5, v13")
E(f"s_lshl_b32 s{sT1}, s{sWV}, 6")
E(f"v_add_u32 v13, s{sT1}, v13")
E(f"v_cmp_eq_u32 s[{sMC_f}:{sMC_f+1}], 1, v14")
E(f"v_lshlrev_b32 v14, 7, v15")
E(f"v_lshrrev_b32 v{T}, 2, v2")
E(f"v_lshl_add_u32 v{T}, v3, 2, v{T}")
E(f"v_and_b32 v{T+1}, 7, v{T}")
E(f"s_lshl_b32 s{sT1}, s{sWV}, 1")
E(f"v_xor_b32 v{T+1}, s{sT1}, v{T+1}")
E(f"v_lshlrev_b32 v{T}, 8, v{T}")
E(f"v_lshl_add_u32 v{T}, v{T+1}, 5, v{T}")
E(f"v_lshl_add_u32 v{T}, v15, 3, v{T}")
E(f"v_add_u32 v{T}, {V_LDS}, v{T}")
E(f"v_xor_b32 v{T+1}, 32, v{T}")
E(f"s_lshl_b32 s{sT1}, s{sJ}, 8")
E(f"s_add_u32 s{sPoff}, s{sPoff}, s{sT1}")
E(f"s_and_b32 s{sT1}, s{sJ}, 3")
E(f"s_lshl_b32 s{sT1}, s{sT1}, 5")
E(f"s_lshr_b32 s{sT2}, s{sJ}, 2")
E(f"s_lshl_b32 s{sT2}, s{sT2}, 3")
E(f"s_add_u32 s{sT1}, s{sT1}, s{sT2}")
E(f"s_add_u32 s{sPub}, s{sT1}, {W_ST}")
E(f"s_mov_b32 s{sC1}, {f32((128**-0.5)*math.log2(math.e))}")
E(f"s_mov_b32 s{sFFFE}, 0xfffefffe")
E(f"v_mov_b32 v{T+2}, {FL_LDS}")
E(f"v_mov_b32 v{T+8}, s{sC1}")
E(f"s_cmp_eq_u32 s{sWV}, 0")
E(f"s_cselect_b32 s{sC2}, 15, 0")
E(f"s_mov_b32 s{sMB_f+1}, 0")
E(f"s_mov_b32 s{sMB_s+1}, 0")
E("s_waitcnt vmcnt(0)")
stamp(2)
ampx("xk", 0)
for e in range(4):
    for s in range(4):
        E(f"ds_read_b128 {vr(KF+(e*4+s)*4,4)}, v{4+s} offset:{4096*e}")
L("L_A_b1")
mark("a")
E("s_barrier")
for s in range(4):
    E(f"ds_read_b128 {vr(QF+4*s,4)}, v8 offset:{64*s}")
stamp(3, True)
def qk(e, s):
    c = "0" if s == 0 else vr(SC+4*e,4)
    E(f"v_mfma_f32_16x16x32_bf16 {vr(SC+4*e,4)}, {vr(KF+(e*4+s)*4,4)}, {vr(QF+4*s,4)}, {c}")
for s in range(4):
    E(f"s_waitcnt lgkmcnt({3-s})")
    qk(0, s); qk(1, s)
for s in range(4):
    qk(2, s); qk(3, s)
E(f"v_max3_f32 v{T+4}, v{SC}, v{SC+1}, v{SC+2}")
E(f"v_max3_f32 v{T+5}, v{SC+3}, v{SC+4}, v{SC+5}")
E(f"v_max3_f32 v{T+4}, v{T+4}, v{SC+6}, v{SC+7}")
E("s_nop 3")
E(f"v_max3_f32 v{T+5}, v{T+5}, v{SC+8}, v{SC+9}")
E(f"v_max3_f32 v{T+4}, v{T+4}, v{SC+10}, v{SC+11}")
E(f"v_max3_f32 v{T+5}, v{T+5}, v{SC+12}, v{SC+13}")
E(f"v_max3_f32 v{T+4}, v{T+4}, v{SC+14}, v{SC+15}")
E(f"v_max_f32 v{T+4}, v{T+4}, v{T+5}")
E(f"v_mov_b32 v{T+5}, v{T+4}")
E("s_nop 1")
E(f"v_permlane16_swap_b32 v{T+4}, v{T+5}")
E(f"v_max_f32 v{T+4}, v{T+4}, v{T+5}")
E(f"v_mov_b32 v{T+5}, v{T+4}")
E("s_nop 1")
E(f"v_permlane32_swap_b32 v{T+4}, v{T+5}")
E(f"v_max_f32 v{T+4}, v{T+4}, v{T+5}")
E(f"v_mul_f32 v{T+6}, s{sC1}, v{T+4}")
for i in range(8):
    E(f"v_pk_fma_f32 {vr(SC+2*i,2)}, {vr(SC+2*i,2)}, {vr(T+8,2)}, {vr(T+6,2)} op_sel_hi:[1,0,0] neg_lo:[0,0,1] neg_hi:[0,0,1]")
for i in range(8):
    E(f"v_exp_f32 v{SC+i}, v{SC+i}")
E(f"v_exp_f32 v{SC+8}, v{SC+8}")
for i in range(4):
    E(f"v_cvt_pk_bf16_f32 v{PB+i}, v{SC+2*i}, v{SC+2*i+1}")
E(f"ds_write_b128 v9, {vr(PB,4)}")
for i in range(9, 16):
    E(f"v_exp_f32 v{SC+i}, v{SC+i}")
E(f"v_add_f32 v{T+7}, v{SC}, v{SC+1}")
for i in range(4, 8):
    E(f"v_cvt_pk_bf16_f32 v{PB+i}, v{SC+2*i}, v{SC+2*i+1}")
E(f"ds_write_b128 v9, {vr(PB+4,4)} offset:1024")
for i in range(4):
    E(f"v_pk_add_f32 {vr(SC+2+ 0,2) if False else vr(SC+4*i,2)}, {vr(SC+4*i,2)}, {vr(SC+4*i+2,2)}")
E(f"v_pk_add_f32 {vr(SC,2)}, {vr(SC,2)}, {vr(SC+4,2)}")
E(f"v_pk_add_f32 {vr(SC+8,2)}, {vr(SC+8,2)}, {vr(SC+12,2)}")
E(f"v_pk_add_f32 {vr(SC,2)}, {vr(SC,2)}, {vr(SC+8,2)}")
E(f"v_add_f32 v{T+7}, v{SC}, v{SC+1}")
E(f"v_mov_b32 v{T+5}, v{T+7}")
E("s_nop 1")
E(f"v_permlane16_swap_b32 v{T+7}, v{T+5}")
E(f"v_add_f32 v{T+7}, v{T+7}, v{T+5}")
E(f"v_mov_b32 v{T+5}, v{T+7}")
E("s_nop 1")
E(f"v_permlane32_swap_b32 v{T+7}, v{T+5}")
E(f"v_add_f32 v{T+7}, v{T+7}, v{T+5}")
E(f"ds_write_b64 v11, {vr(T+6,2)}")
stamp(4, True)
mark("a")
E("s_waitcnt lgkmcnt(0)")
E("s_barrier")
ampx("xb", 0)
E(f"ds_read_b32 v{T+3}, v{T+2}")
for b in range(2):
    E(f"ds_read_b128 {vr(STT+4*b,4)}, v12 offset:{16*b}")
stamp(5, True)
F = STT
def pv(first):
    def reads(u):
        E(f"ds_read_b128 {vr(PF+4*u,4)}, v10 offset:{1024*u}")
        if first:
            for tp in range(2):
                for e in range(2):
                    E(f"ds_read_b64_tr_b16 {vr(VF+(tp*8+u)*4+2*e,2)}, v{T+tp} offset:{(32*u+16*e)*256}")
    ahead = 2 if first else 8
    per_u = 5 if first else 1
    for u in range(ahead): reads(u)
    E(f"s_waitcnt lgkmcnt({ahead*per_u})")
    va = [f"v_max3_f32 v{T+4}, v{STT}, v{STT+2}, v{STT+4}", f"v_max_f32 v{T+6}, v{T+4}, v{STT+6}"]
    va += [f"v_sub_f32 v{F+2*b}, v{STT+2*b}, v{T+6}" for b in range(4)]
    va += [f"v_exp_f32 v{F+2*b}, v{F+2*b}" for b in range(4)]
    va += [f"v_mul_f32 v{T+7}, v{F}, v{STT+1}"] + [f"v_fmac_f32 v{T+7}, v{F+2*b}, v{STT+2*b+1}" for b in range(1, 4)]
    E(f"v_readfirstlane_b32 s{sMODE}, v{T+3}")
    for x in va[:2]: E(x)
    sa = [f"s_cmp_eq_u32 s{sMODE}, 1", f"s_cselect_b32 s{sMB_f}, s{sC2}, 0", f"s_cselect_b32 s{sMB_s}, 0, s{sC2}",
          f"s_cselect_b32 s{sMA_f}, 0x00ff00ff, 0", f"s_cselect_b32 s{sMA_f+1}, 0x00ff00ff, 0", f"s_cselect_b32 s{sMA_s}, 0, 0x00ff00ff",
          f"s_cselect_b32 s{sMA_s+1}, 0, 0x00ff00ff", f"s_cselect_b32 s{sT2}, 0, {ALT}", f"s_add_u32 s{sPe}, s{sPoff}, s{sT2}",
          f"s_add_u32 s{sT2}, s{sLOC}, s{sT2}", f"s_add_u32 s{sT2}, s{sT2}, s{sPub}"]
    k = 2
    for u in range(8):
        if u + ahead < 8: reads(u + ahead)
        E(f"s_waitcnt lgkmcnt({(min(8, u + ahead + 1) - u - 1) * per_u})")
        for tp in range(2):
            d = vr(OD+(tp*4+u//2)*4,4)
            E(f"v_mfma_f32_16x16x32_bf16 {d}, {vr(VF+(tp*8+u)*4,4)}, {vr(PF+4*u,4)}, {'0' if u % 2 == 0 else d}")
            if k < len(va): E(va[k]); k += 1
            if sa and u >= 1: E(sa.pop(0)); E(sa.pop(0)) if sa else None
        if u == 5:
            assert k == len(va)
            E(f"v_min_u32 v{T+6}, -2, v{T+6}")
            E(f"v_min_u32 v{T+7}, -2, v{T+7}")
            pub2("buffer_store_dwordx2", vr(T+6,2), 14, sT2, sMB_f, sMB_s)
E(f"s_cmp_lg_u32 s{sLAY}, 0")
E("s_cbranch_scc1 L_A_havev")
pv(True)
E("s_branch L_A_comb")
L("L_A_havev")
pv(False)
L("L_A_comb")
def cb(b):
    for tp in range(2):
        for h in range(2):
            o = vr(OUTV+4*tp+2*h,2)
            if b == 0: E(f"v_pk_mul_f32 {o}, {vr(OD+tp*16+2*h,2)}, {vr(F,2)} op_sel_hi:[1,0]")
            else: E(f"v_pk_fma_f32 {o}, {vr(OD+(tp*4+b)*4+2*h,2)}, {vr(F+2*b,2)}, {o} op_sel_hi:[1,0,1]")
for b in range(4): cb(b)
for r in range(4):
    E(f"v_cndmask_b32 v{OUTV+r}, v{OUTV+r}, v{OUTV+4+r}, s[{sMC_f}:{sMC_f+1}]")
E(f"v_cvt_pk_bf16_f32 v{OUTV}, v{OUTV}, v{OUTV+1}")
E(f"v_cvt_pk_bf16_f32 v{OUTV+1}, v{OUTV+2}, v{OUTV+3}")
E(f"v_pk_min_u16 v{OUTV}, v{OUTV}, s{sFFFE}")
E(f"v_pk_min_u16 v{OUTV+1}, v{OUTV+1}, s{sFFFE}")
pub2("buffer_store_dwordx2", vr(OUTV,2), 13, sPe, sMA_f, sMA_s)
stamp(6, True)
ampx("xp", 0)
E(f"s_add_u32 s{sPoff}, s{sPoff}, {LS}")
E(f"s_add_u32 s{sLOC}, s{sLOC}, {LS}")
E(f"s_add_u32 s{sLAY}, s{sLAY}, 1")
E(f"s_cmp_lt_u32 s{sLAY}, 2")
E("s_cbranch_scc1 L_A_b1")
stamp_flush(0, 0, (int(OPT.get("dbg", 0)), 36, [60, 2, 3, 5, 6, 19, 22]))
E("s_endpgm")
sec("actl")
L("L_A_ctl")
E("s_waitcnt vmcnt(0)")
E(f"v_readfirstlane_b32 s{sTAG}, v241")
E("s_nop 3")
E(f"s_add_u32 s{sTAG}, s{sTAG}, 1")
ampx("xe", 4)
ampx("xs", 4)
ampx("xa", 4)
xc_publish()
warm("a")
E(f"v_lshrrev_b32 v{cT+5}, 5, v1")
E(f"v_lshlrev_b32 v{cT+5}, 6, v{cT+5}")
E(f"v_lshl_add_u32 v{cT+5}, v1, 3, v{cT+5}")
E(f"v_add_u32 v{cT+5}, {QS_LDS}, v{cT+5}")
first_gather("aq0", True, None)
stamp(2)
ampx("xq", 4)
E("s_waitcnt lgkmcnt(0)")
E("s_barrier")
first_gather("ax", False, None, armed=True)
stamp(3)
E("s_waitcnt lgkmcnt(0)")
E(f"s_cmp_eq_u32 s{sMODE}, 1")
E(f"s_cselect_b32 s{sT2}, 0, {ALT}")
E(f"s_add_u32 s{sLe}, s{sLOC}, s{sT2}")
E(f"s_add_u32 s{sLe}, s{sLe}, {LS}")
E(f"v_lshl_add_u32 v{cT+2}, v3, 6, v{cL16}")
E(f"v_add_u32 v{cT+2}, {QS_LDS}, v{cT+2}")
E("s_barrier")
E("s_waitcnt vmcnt(0)")
if TP & 4:
    E(f"s_sub_u32 s{sT1}, s{sLe}, {LS}")
    gather1("ax1", cG+4, cL16, sT1, W_X1, cT, pd=1, slp=2*PSL)
arm(cG, 4)
gather1("aq", cG, cL16, sLe, W_Q, cT)
E(f"ds_write_b128 v{cT+2}, {vr(cG,4)}")
stamp(18)
E("s_waitcnt lgkmcnt(0)")
E("s_barrier")
stamp_flush(4, 1)
E("s_endpgm")

vL16, aXIO, aTA, aTB, aIN, aST, aP16, aPY, vONE, aOS, aXS = 4, 5, 6, 7, 8, 9, 10, 11, 12, 13, 14
SEL0, ONESB, XR, XN, XB, vT = 16, 24, 28, 36, 44, 48
TT = 49
vB1, vCS, aGX, vINV, vVAL = 15, 0, 249, 250, 252
GB, WA, ACC, WB = 64, 96, 160, 192
vST, CA, MK, vFLG = 224, 232, 236, 248
NACC = 8

retry_blocks = []
def gather_X(tag, soff, role, hook=None):
    def loads():
        for i in range(8):
            so = soff if i < 4 else sT0
            E(f"buffer_load_dwordx4 {vr(GB+4*i,4)}, v{aGX}, {WSR}, s{so} offen offset:{256*(i%4)}{GFL}")
    def sums(wait):
        for i in range(8):
            if wait is not None: E(f"s_waitcnt vmcnt({wait + 7 - i})")
            e, w = (i % 4) // 2, i % 2
            c = vr(XR+4*e,4) if i in (0, 2) else vr(XN+4*e,4)
            E(f"v_mfma_f32_16x16x32_bf16 {vr(XN+4*e,4)}, {vr(SEL0+4*w,4)}, {vr(GB+4*i,4)}, {c}")
    E(f"s_add_u32 s{sT0}, s{soff}, 4096")
    if ACK: E("s_waitcnt vmcnt(0)")
    elif GD: E(f"s_sleep {GD}")
    if PROF in (2, 9): stamp(9, True)
    for _ in range(GP - 1):
        loads()
        if GSL: E(f"s_sleep {GSL}")
    E(f"s_branch L_{tag}_again")
    L(f"L_{tag}_nan")
    E(f"s_sub_u32 s{sSPIN}, s{sSPIN}, 1")
    E("s_cbranch_scc1 L_exit")
    E(f"s_and_b32 s{sT1}, s{sSPIN}, 15")
    E(f"s_cbranch_scc0 L_{tag}_retry")
    if GSL: E(f"s_sleep {GSL}")
    L(f"L_{tag}_again")
    loads()
    if hook: hook()
    mark(role)
    sums(8 * (GP - 1))
    E("s_nop 6")
    E(f"v_cmp_u_f32 vcc, v{XN}, v{XN}")
    E(f"v_cmp_u_f32 s[{sS1}:{sS1+1}], v{XN+4}, v{XN+4}")
    for d in range(4):
        E(f"v_cvt_pk_bf16_f32 v{XB+d}, v{XN+2*d}, v{XN+2*d+1}")
    E(f"s_or_b64 vcc, vcc, s[{sS1}:{sS1+1}]")
    E(f"s_cbranch_vccnz L_{tag}_nan")
    L(f"L_{tag}_ok")
    if PROF in (2, 9):
        stamp(11, True)
        E(f"s_mov_b32 s{sST}, s{sSPIN}")
    def blk():
        L(f"L_{tag}_retry")
        for i in range(16): E(f"v_pk_max_u16 v{ACC+i}, v{GB+2*i}, v{GB+2*i+1}")
        for i in range(8): E(f"v_pk_max_u16 v{ACC+i}, v{ACC+2*i}, v{ACC+2*i+1}")
        for i in range(4): E(f"v_pk_max_u16 v{ACC+i}, v{ACC+2*i}, v{ACC+2*i+1}")
        chk_bf16(ACC, TT)
        E(f"s_cbranch_vccnz L_{tag}_again")
        sums(None)
        E("s_nop 7")
        for d in range(4):
            E(f"v_cvt_pk_bf16_f32 v{XB+d}, v{XN+2*d}, v{XN+2*d+1}")
        E(f"s_branch L_{tag}_ok")
    retry_blocks.append(blk)

def relay_X(tag, soff, pre):
    E(f"v_mov_b32 v{vT}, 0")
    E(f"s_cmp_lg_u32 s{sWV}, 0")
    E(f"s_cbranch_scc1 L_{tag}_other")
    pre()
    gather_X(tag, soff, "d2")
    E(f"ds_write_b128 v{aXS}, {vr(XB,4)}")
    post = f"L_{tag}_join"
    E("s_waitcnt lgkmcnt(0)")
    E("s_barrier")
    E(f"s_branch {post}")
    L(f"L_{tag}_other")
    E("s_waitcnt vmcnt(0)")
    E("s_barrier")
    E(f"ds_read_b128 {vr(XB,4)}, v{aXS}")
    E("s_waitcnt lgkmcnt(0)")
    L(post)

def unpack_resid(src):
    for d in range(4):
        E(f"v_lshlrev_b32 v{XR+2*d}, 16, v{src+d}")
        E(f"v_and_b32 v{XR+2*d+1}, 0xffff0000, v{src+d}")

def matvec(nsteps, A, W, fillers, rows=None, per=PER, waits=False):
    if rows is None:
        rows = [(1 << G, 0xf, list(range(4*G, min(4*G+4, nsteps)))) for G in range((nsteps + 3) // 4)]
    acc = lambda s_: ACC + 4*(rank[s_] % NACC)
    order = [x for x in range(nsteps) if not any(x == st_[-1] for _, _, st_ in rows)] + [st_[-1] for _, _, st_ in rows]
    if waits or not REORD: order = list(range(nsteps))
    rank = {x: i for i, x in enumerate(order)}
    ext = []
    for (rm, bm, st_) in rows:
        dp = f"quad_perm:[0,1,2,3] row_mask:{hex(rm)} bank_mask:{hex(bm)}"
        a = lambda s_: f"v{acc(s_) + s_ % 4}"
        ext.append((st_[1], f"v_add_f32_dpp v{vT}, {a(st_[0])}, {a(st_[1])} {dp}"))
        for s_ in st_[2:]:
            ext.append((s_, f"v_add_f32_dpp v{vT}, {a(s_)}, v{vT} {dp}"))
    order = [x for x in range(nsteps) if not any(x == st_[-1] for _, _, st_ in rows)] + [st_[-1] for _, _, st_ in rows]
    if waits or not REORD: order = list(range(nsteps))
    rank = {x: i for i, x in enumerate(order)}
    ext.sort(key=lambda e: rank[e[0]])
    st = dict(pos=0, lastT=-1)
    pm = {}
    def put(x, n=1):
        E(x); st["pos"] += n
    def need(e):
        if e[0] not in pm: return 99
        return max(pm[e[0]] + 9 - st["pos"], st["lastT"] + 3 - st["pos"], 0)
    fl = list(fillers)
    for s_ in order:
        while ext and rank[ext[0][0]] <= rank[s_] - NACC + 1 and rank[s_] >= NACC:
            n = need(ext[0])
            if n: put(f"s_nop {n-1}", n)
            st["lastT"] = st["pos"]; put(ext.pop(0)[1])
        if waits and s_ >= 8 or waits and s_ == 0: put(f"s_waitcnt lgkmcnt({min(15, 30-2*s_)})")
        pm[s_] = st["pos"]
        put(f"v_mfma_f32_16x16x32_bf16 {vr(acc(s_),4)}, {vr(A,4)}, {vr(W+4*s_,4)}, 0")
        idle = 0
        for _ in range(per):
            if ext and need(ext[0]) - idle <= 0:
                if idle: put(f"s_nop {idle-1}", idle); idle = 0
                st["lastT"] = st["pos"]; put(ext.pop(0)[1])
            elif fl:
                if idle: put(f"s_nop {idle-1}", idle); idle = 0
                put(fl.pop(0))
            elif PAD and s_ != order[-1]: idle += 1
        if idle: put(f"s_nop {idle-1}", idle)
    while ext or fl:
        if ext and need(ext[0]) == 0:
            st["lastT"] = st["pos"]; put(ext.pop(0)[1])
        elif fl:
            put(fl.pop(0))
        else:
            n = need(ext[0]); put(f"s_nop {n-1}", n)

def stats_fillers():
    f = []
    for d in range(4):
        f.append(f"v_lshlrev_b32 v{XR+2*d}, 16, v{XB+d}")
        f.append(f"v_and_b32 v{XR+2*d+1}, 0xffff0000, v{XB+d}")
        if d == 0: f.append(f"v_readfirstlane_b32 s{sPIV}, v{XR}")
    D = XN
    for i in range(4):
        f.append(f"v_pk_add_f32 {vr(D+2*i,2)}, {vr(XR+2*i,2)}, s[{sPIV}:{sPIV+1}] op_sel_hi:[1,0] neg_lo:[0,1] neg_hi:[0,1]")
    a, b = TT+1, TT+3
    assert a % 2 == 0
    f.append(f"v_pk_add_f32 {vr(a,2)}, {vr(D,2)}, {vr(D+2,2)}")
    f.append(f"v_pk_mul_f32 {vr(b,2)}, {vr(D,2)}, {vr(D,2)}")
    for i in range(1, 4):
        f.append(f"v_pk_fma_f32 {vr(b,2)}, {vr(D+2*i,2)}, {vr(D+2*i,2)}, {vr(b,2)}")
        if i > 1: f.append(f"v_pk_add_f32 {vr(a,2)}, {vr(a,2)}, {vr(D+2*i,2)}")
    f.append(f"v_add_f32 v{b}, v{b}, v{b+1}")
    f.append(f"v_add_f32 v{a}, v{a}, v{a+1}")
    f.append("s_nop 0")
    for dp in ("quad_perm:[1,0,3,2] row_mask:0xf", "quad_perm:[2,3,0,1] row_mask:0xf", "row_half_mirror row_mask:0xf",
               "row_mirror row_mask:0xf", "row_bcast:15 row_mask:0xa", "row_bcast:31 row_mask:0xc"):
        f.append(f"v_add_f32_dpp v{b}, v{b}, v{b} {dp} bank_mask:0xf")
        f.append(f"v_add_f32_dpp v{a}, v{a}, v{a} {dp} bank_mask:0xf")
        f.append("s_nop 0")
    f.append(f"v_readlane_b32 s{sS2}, v{b}, 63")
    f.append(f"v_readlane_b32 s{sS1}, v{a}, 63")
    f.append(f"v_fma_f32 v{TT+3}, s{sS2}, v{vINV}, v{vINV+1}" if False else "s_nop 0")
    f.append(f"v_fma_f32 v{TT+3}, s{sS2}, v{vINV}, v{vINV+1}")
    f.append(f"v_mul_f32 v{TT+2}, s{sS1}, v{vINV}")
    f.append(f"v_fma_f32 v{TT+3}, -v{TT+2}, v{TT+2}, v{TT+3}")
    f.append(f"v_max_f32 v{TT+3}, v{vINV+1}, v{TT+3}")
    f.append(f"v_rsq_f32 v{TT+3}, v{TT+3}")
    f.append(f"v_add_f32 v{TT+2}, s{sPIV}, v{TT+2}")
    return f

def xgroup_sum(fold8=False, plain=False):
    if fold8: E(f"v_and_b32 v{vT}, v{vVAL}, v{vT}")
    E(f"v_mov_b32 v{TT+5}, v{vT}")
    E("s_nop 1")
    E(f"v_permlane16_swap_b32 v{vT}, v{TT+5}")
    E(f"v_add_f32 v{vT}, v{vT}, v{TT+5}")
    E(f"v_mov_b32 v{TT+5}, v{vT}")
    E("s_nop 1")
    E(f"v_permlane32_swap_b32 v{vT}, v{TT+5}")
    E(f"v_add_f32 v{vT}, v{vT}, v{TT+5}")
    if fold8:
        E("s_nop 1")
        E(f"v_add_f32_dpp v{vT}, v{vT}, v{vT} row_ror:8 row_mask:0xf bank_mask:0xf")
    if plain: return
    E(f"v_fma_f32 v{vT}, -v{TT+2}, v{vCS}, v{vT}")
    E(f"v_mul_f32 v{vT}, v{vT}, v{TT+3}")

def y_publish():
    xgroup_sum(plain=True)
    E("s_nop 1")
    E(f"v_mov_b32_dpp v{TT+5}, v{vT} quad_perm:[1,1,3,3] row_mask:0xf bank_mask:0xf")
    E("s_mov_b64 exec, 0x5555")
    E(f"v_cvt_pk_bf16_f32 v{vT}, v{vT}, v{TT+5}")
    E(f"v_pk_min_u16 v{vT}, v{vT}, s{sFFFE}")
    E(f"buffer_store_dword v{vT}, v{aP16}, {WSR}, s{sPubG} offen{SFL}")
    E("s_mov_b64 exec, -1")

def pub_resid(off):
    for d in range(4): E(f"v_pk_min_u16 v{TT+7+d}, v{XB+d}, s{sFFFE}")
    pub2("buffer_store_dwordx4", vr(TT+7,4), vL16, sLOC, sMB_f, sMB_s, off)

def read_mode(lo_a, pj=0):
    E(f"v_mov_b32 v{TT}, {FL_LDS}")
    E(f"ds_read_b32 v{TT+1}, v{TT}")
    E("s_waitcnt lgkmcnt(0)")
    E(f"v_readfirstlane_b32 s{sMODE}, v{TT+1}")
    E(f"s_cmp_eq_u32 s{sPJ}, {pj}")
    E(f"s_cselect_b32 s{sT1}, -1, 0")
    E("s_nop 2")
    E(f"s_cmp_eq_u32 s{sMODE}, 1")
    masks(sMA_f, sMA_s, lo_a, "0")
    masks(sMB_f, sMB_s, f"s{sT1}", f"s{sT1}")
    E(f"s_cselect_b32 s{sT1}, 0, {ALT}")
    for s_ in (sLOC, sPoff, sPub):
        E(f"s_add_u32 s{s_}, s{s_}, s{sT1}")

sec("entry")
L("L_D_init")
ROLE[0] = "d"
E(f"s_and_b32 s{sC}, s{sJ}, 7")
E(f"s_lshl_b32 s{sPJ}, s{sC}, 2")
E(f"s_add_u32 s{sPJ}, s{sPJ}, s{sWV}")
E("v_lshrrev_b32 v242, 3, v1")
E("v_and_b32 v243, 7, v1")
def v_prefetch():
    if not VPF: return
    E(f"s_lshl_b32 s{sS2}, s{sG}, 24")
    E(f"s_add_u32 s{sS2}, s{sS2}, {61440*256}")
    srd(R_A, sV, f"s{sS2}", 1 << 20)
    E(f"s_lshl_b32 s{sS1}, s{sC}, 1")
    E(f"s_lshr_b32 s{sS2}, s{sWV}, 2")
    E(f"s_add_u32 s{sS1}, s{sS1}, s{sS2}")
    E(f"s_add_u32 s{sS2}, s{sS1}, s{sG}")
    E(f"s_lshl_b32 s{sS2}, s{sS2}, 2")
    E(f"s_and_b32 s{sT0}, s{sWV}, 3")
    E(f"s_lshl_b32 s{sT0}, s{sT0}, 3")
    E(f"s_add_u32 s{sS2}, s{sS2}, s{sT0}")
    E(f"s_add_u32 s{sS2}, s{sS2}, 32")
    E(f"v_add_u32 v238, s{sS2}, v242")
    E("v_and_b32 v238, 63, v238")
    E("v_lshlrev_b32 v238, 10, v238")
    E("v_lshl_add_u32 v238, v243, 7, v238")
    E(f"s_lshl_b32 s{sS1}, s{sS1}, 16")
    E(f"buffer_load_dword v255, v238, s[{R_A}:{R_A+3}], s{sS1} offen{NTV}")
def wo_issue():
    E(f"s_lshl_b32 s{sT0}, s{sG}, 19")
    E(f"s_lshl_b32 s{sT1}, s{sC}, 7")
    E(f"s_add_u32 s{sT0}, s{sT0}, s{sT1}")
    E(f"s_sub_u32 s{sT3}, {4194304}, s{sT0}")
    srd(R_A, sWO, f"s{sT0}", f"s{sT3}")
    E("v_and_b32 v245, 2, v242")
    E("v_xor_b32 v245, v245, v243")
    E(f"s_and_b32 s{sT1}, s{sWV}, 1")
    E(f"s_lshl_b32 s{sT1}, s{sT1}, 2")
    E(f"v_xor_b32 v245, s{sT1}, v245")
    E("v_lshlrev_b32 v244, 10, v242")
    E("v_lshl_add_u32 v244, v245, 4, v244")
    E(f"s_lshl_b32 s{sT0}, s{sWV}, 14")
    E(f"s_mov_b32 m0, s{sT0}")
    E(f"s_lshl_b32 s{sT1}, s{sWV}, 17")
    if LATE0 == 1: E("s_waitcnt vmcnt(0)")
    if LATE0 >= 2: E("s_barrier")
    E(f"s_add_u32 s{sT2}, s{sT1}, {16*8192}")
    L("L_D2_wol")
    if TDO: E(f"s_waitcnt vmcnt({TDO-1})")
    E(f"buffer_load_dwordx4 v244, s[{R_A}:{R_A+3}], s{sT1} offen{NTW} lds")
    E("s_add_u32 m0, m0, 1024")
    E(f"s_add_u32 s{sT1}, s{sT1}, 8192")
    E(f"s_cmp_lt_u32 s{sT1}, s{sT2}")
    E("s_cbranch_scc1 L_D2_wol")
def clear_global():
    for r in range(4): E(f"v_mov_b32 v{cG+r}, -1")
    E(f"s_mov_b32 s{sT1}, {LS}")
    E(f"v_lshrrev_b32 v{cT}, 3, v2")
    E(f"v_mul_lo_u32 v{cT}, v{cT}, s{sT1}")
    E(f"v_lshl_add_u32 v{cT}, v243, 4, v{cT}")
    E(f"v_lshl_add_u32 v{cT}, v3, 13, v{cT}")
    E(f"s_lshl_b32 s{sT1}, s{sG}, 10")
    E(f"s_lshl_b32 s{sT2}, s{sC}, 7")
    E(f"s_add_u32 s{sT1}, s{sT1}, s{sT2}")
    E(f"s_add_u32 s{sT1}, s{sT1}, {W_Y}")
    E("s_mov_b32 exec_hi, 0")
    E(f"buffer_store_dwordx4 {vr(cG,4)}, v{cT}, {WSR}, s{sT1} offen sc1")
    E("s_mov_b64 exec, -1")

def d2_clear(sc, alt):
    for r in range(4): E(f"v_mov_b32 v{cG+r}, -1")
    E(f"s_lshl_b32 s{sT1}, s{sC}, 11")
    E(f"s_add_u32 s{sT1}, s{sT1}, s{sPoff}")
    if alt: E(f"s_add_u32 s{sT1}, s{sT1}, {ALT}")
    E(f"s_add_u32 s{sT2}, s{sT1}, {LS}")
    for so in (sT1, sT2):
        for o in range(2):
            E(f"buffer_store_dwordx4 {vr(cG,4)}, v{cL16}, {WSR}, s{so} offen offset:{1024*o}{sc}")
    E(f"s_mov_b32 s{sT1}, {LS}")
    E(f"v_lshrrev_b32 v{cT}, 5, v1")
    E(f"v_mul_lo_u32 v{cT}, v{cT}, s{sT1}")
    E(f"v_and_b32 v{cT+1}, 31, v1")
    E(f"v_lshl_add_u32 v{cT}, v{cT+1}, 4, v{cT}")
    E(f"s_lshl_b32 s{sT1}, s{sC}, 9")
    E(f"s_add_u32 s{sT1}, s{sT1}, s{sLOC}")
    if alt: E(f"s_add_u32 s{sT1}, s{sT1}, {ALT}")
    E(f"buffer_store_dwordx4 {vr(cG,4)}, v{cT}, {WSR}, s{sT1} offen{sc}")
E(f"s_cmp_lt_u32 s{sJ}, 24")
E("s_cbranch_scc1 L_D_const")
E(f"s_cmp_lg_u32 s{sWV}, 4")
E("s_cbranch_scc1 L_D2_e1")
d2_clear("", False)
E("s_branch L_D2_init")
L("L_D2_e1")
E(f"s_cmp_lg_u32 s{sWV}, 5")
E("s_cbranch_scc1 L_D2_e2")
clear_global()
E("s_branch L_D2_init")
L("L_D2_e2")
E(f"s_cmp_ge_u32 s{sWV}, 4")
E("s_cbranch_scc1 L_D2_init")
if LATE0 == 0: wo_issue()
else:
    E(f"s_lshl_b32 s{sT0}, s{sG}, 19")
    srd(R_A, sWO, f"s{sT0}", 1 << 19)
    E(f"buffer_load_dword v255, v{cL16}, s[{R_A}:{R_A+3}], 0 offen")
sec("dinit")
L("L_D_const")
E("v_mov_b32 v245, 0")
E("v_mov_b32 v244, 0")
srd(R_B, sX, None, 1024)
E(f"v_lshrrev_b32 v{TT}, 1, v3")
E(f"v_and_b32 v{TT+1}, 1, v3")
E(f"v_lshlrev_b32 v{aXIO}, 8, v{TT}")
E(f"v_lshl_add_u32 v{aXIO}, v2, 4, v{aXIO}")
E(f"v_lshl_add_u32 v{aXIO}, v{TT+1}, 3, v{aXIO}")
E(f"buffer_load_dwordx2 {vr(XB,2)}, v{aXIO}, s[{R_B}:{R_B+3}], 0 offen")
E(f"buffer_load_dwordx2 {vr(XB+2,2)}, v{aXIO}, s[{R_B}:{R_B+3}], 0 offen offset:512")
E(f"v_lshlrev_b32 v{vL16}, 4, v1")
E(f"v_lshrrev_b32 v{TT+2}, 2, v2")
E(f"v_and_b32 v{TT+3}, 3, v2")
E(f"v_lshl_add_u32 v{TT+4}, v{TT}, 7, v{TT+2}")
E(f"v_lshl_add_u32 v{TT+4}, v{TT+1}, 2, v{TT+4}")
E(f"v_lshlrev_b32 v{aP16}, 1, v2")
E(f"v_lshrrev_b32 v{aPY}, 5, v1")
E(f"v_lshlrev_b32 v{aPY}, 4, v{aPY}")
E(f"v_add_u32 v{aXS}, {XS_LDS}, v{vL16}")
E(f"v_mov_b32 v{vONE}, 1.0")
for d in range(4): E(f"v_mov_b32 v{ONESB+d}, 0x3f803f80")
E(f"v_and_b32 v{TT+5}, 1, v2")
E(f"v_lshlrev_b32 v{TT+5}, 4, v{TT+5}")
E(f"v_mov_b32 v{TT+6}, 0x3f80")
E(f"v_lshlrev_b32 v{TT+6}, v{TT+5}, v{TT+6}")
E(f"v_lshrrev_b32 v{TT+7}, 1, v2")
E(f"v_lshlrev_b32 v{aGX}, 10, v3")
E(f"v_lshl_add_u32 v{aGX}, v2, 4, v{aGX}")
for d in range(8):
    E(f"v_cmp_eq_u32 vcc, {d}, v{TT+7}")
    E("s_nop 1")
    E(f"v_cndmask_b32 v{SEL0+d}, 0, v{TT+6}, vcc")
E(f"s_mov_b32 s{sFFFE}, 0xfffefffe")
E(f"v_mov_b32 v{vINV}, {f32(1/512)}")
E(f"v_mov_b32 v{vINV+1}, {f32(1e-5)}")
E(f"s_mov_b32 s{sC3}, {f32(-math.log2(math.e))}")
E(f"s_lshl_b32 s{sT1}, s{sPJ}, 5")
E(f"s_lshl_b32 s{sPubG}, s{sG}, 10")
E(f"s_add_u32 s{sPubG}, s{sPubG}, s{sT1}")
E(f"s_lshl_b32 s{sT2}, s{sWV}, 5")
E(f"s_cmp_ge_u32 s{sJ}, 24")
E("s_cbranch_scc1 L_D2_comp")

def ctl_head():
    E("s_waitcnt vmcnt(0)")
    E(f"v_readfirstlane_b32 s{sTAG}, v241")
    for r in range(4): E(f"v_mov_b32 v{cG+r}, -1")
    E(f"s_add_u32 s{sTAG}, s{sTAG}, 1")
E(f"s_lshl_b32 s{sT0}, s{sG}, 10")
E(f"s_lshl_b32 s{sT1}, s{sC}, 7")
E(f"s_add_u32 s{sT0}, s{sT0}, s{sT1}")
E(f"s_sub_u32 s{sT3}, {4194304}, s{sT0}")
srd(R_A, sWQ, f"s{sT0}", f"s{sT3}")
E("v_and_b32 v245, 6, v242")
E("v_xor_b32 v245, v245, v243")
E("v_lshlrev_b32 v244, 13, v242")
E("v_lshl_add_u32 v244, v245, 4, v244")
E(f"s_cmp_ge_u32 s{sWV}, 4")
E("s_cbranch_scc1 L_D1_help")
if TQ: E("s_waitcnt vmcnt(0)")
stamp(1)
E(f"s_lshl_b32 s{sT0}, s{sWV}, 14")
E(f"s_mov_b32 m0, s{sT0}")
E(f"s_lshl_b32 s{sT1}, s{sWV}, 20")
E(f"s_add_u32 s{sT3}, s{sT1}, {16*65536}")
L("L_D1_wql")
E(f"buffer_load_dwordx4 v244, s[{R_A}:{R_A+3}], s{sT1} offen{NTW} lds")
E("s_add_u32 m0, m0, 1024")
E(f"s_add_u32 s{sT1}, s{sT1}, 65536")
E(f"s_cmp_lt_u32 s{sT1}, s{sT3}")
E("s_cbranch_scc1 L_D1_wql")
sec("d1")
if VPF == 1: v_prefetch()
E(f"v_bfe_u32 v{TT+5}, v{TT+4}, 1, 2")
E(f"v_xor_b32 v{TT+5}, s{sWV}, v{TT+5}")
E(f"v_lshlrev_b32 v{aTA}, 7, v{TT+4}")
E(f"v_lshl_add_u32 v{aTA}, v{TT+3}, 3, v{aTA}")
E(f"v_lshl_add_u32 v{aTA}, v{TT+5}, 5, v{aTA}")
if not TQ: E("s_waitcnt vmcnt(16)")
E(f"v_lshl_add_u32 v{aTB}, v3, 3, v{TT+2}")
E(f"v_lshlrev_b32 v{aTB}, 7, v{aTB}")
E(f"v_lshl_add_u32 v{aTB}, v{TT+3}, 3, v{aTB}")
E(f"s_add_u32 s{sT2}, s{sT2}, {WB_LDS}")
E(f"v_add_u32 v{aTB}, s{sT2}, v{aTB}")
E(f"v_min_u32 v{aIN}, 6, v2")
E(f"v_lshlrev_b32 v{aIN}, 6, v{aIN}")
E(f"v_lshl_add_u32 v{aIN}, v3, 4, v{aIN}")
E(f"v_readfirstlane_b32 s{sTAG}, v241")
E(f"s_add_u32 s{sPubG}, s{sPubG}, {W_Z}")
E(f"s_mov_b32 s{sZoff}, {W_Z}")
E(f"s_lshl_b32 s{sT1}, s{sPJ}, 5")
E(f"s_add_u32 s{sPub}, s{sLOC}, s{sT1}")
srd(R_B, sOUT, None, 1024)
E(f"s_add_u32 s{sTAG}, s{sTAG}, 1")
for x in stats_fillers(): E(x)
for i in range(8): E(f"v_sub_f32 v{XN+i}, v{XR+i}, v{TT+2}")
for i in range(8): E(f"v_mul_f32 v{XN+i}, v{XN+i}, v{TT+3}")
for d in range(4): E(f"v_cvt_pk_bf16_f32 v{GB+d}, v{XN+2*d}, v{XN+2*d+1}")
E(f"v_mov_b32 v{vT}, 0")
D0 = GB + 12
E(f"v_mov_b32 v{D0+1}, s{sTAG}")
E(f"s_lshl_b32 s{sT1}, s{sPJ}, 6")
E(f"v_lshl_add_u32 v{TT+6}, v2, 2, s{sT1}")
E(f"s_waitcnt vmcnt({1 if VPF == 1 else 0})")
E("s_barrier")
amp("wq")
stamp(2)
for s in range(16):
    for e in range(2):
        E(f"ds_read_b64_tr_b16 {vr(WA+4*s+2*e,2)}, v{aTA} offset:{32768*e+1024*s}")
matvec(16, GB, WA, [], per=PN, waits=True)
xgroup_sum(plain=True)
E("s_nop 1")
E(f"v_mov_b32_dpp v{TT+5}, v{vT} quad_perm:[1,1,3,3] row_mask:0xf bank_mask:0xf")
E(f"v_cvt_pk_bf16_f32 v{D0}, v{vT}, v{TT+5}")
E("s_mov_b64 exec, 0x5555")
E(f"buffer_store_dwordx2 {vr(D0,2)}, v{TT+6}, {WSR}, s{sQ0} offen")
E("s_mov_b64 exec, -1")
stamp(3, True)
if VPF == 2: v_prefetch()
E(f"v_mov_b32 v{TT+7}, 0")
E(f"buffer_load_dword v{GB+20}, v{TT+7}, s[{R_B}:{R_B+3}], 0 offen")
for s in range(16):
    c = "0" if s == 0 else vr(CA,4)
    E(f"v_mfma_f32_16x16x32_bf16 {vr(CA,4)}, {vr(ONESB,4)}, {vr(WA+4*s,4)}, {c}")
E("s_nop 7")
E(f"v_mov_b32 v{vCS}, v{CA}")
E("s_barrier")
amp("st")
read_mode("0xffff")
E(f"s_mov_b32 s{sT1}, 0x5555")
E(f"s_cmp_eq_u32 s{sMODE}, 1")
E(f"s_cselect_b32 exec_lo, 0, s{sT1}")
E("s_mov_b32 exec_hi, 0")
E(f"buffer_store_dwordx2 {vr(D0,2)}, v{TT+6}, {WSR}, s{sQ0B} offen sc1")
E("s_mov_b64 exec, -1")
E("s_barrier")
for s in range(7):
    for e in range(2):
        E(f"ds_read_b64_tr_b16 {vr(WB+4*s+2*e,2)}, v{aTB} offset:{4096*s+512*e}")
E("s_waitcnt lgkmcnt(0)")
E("s_branch L_D1_act")
L("L_D1_q")
mark("d1")
matvec(16, XB, WA, stats_fillers())
xgroup_sum()
E(f"v_cvt_pk_bf16_f32 v{vT}, v{vT}, v{vT}")
E(f"v_min_u32 v{vT}, -2, v{vT}")
pub2("buffer_store_short", f"v{vT}", aP16, sPub, sMA_f, sMA_s, W_Q)
stamp(3, True)
pub_resid(W_X2)
L("L_D1_act")
mark("d1")
AIN = vST
arm(AIN, 4)
E(f"buffer_load_dwordx4 {vr(CA,4)}, v{vL16}, {WSR}, s{sLOC} offen offset:{W_X1} sc1")
E(f"v_mov_b32 v{vT}, 0")
if TP & 1:
    E(f"v_lshlrev_b32 v{TT+2}, 3, v1")
    L("L_D1_far")
    E(f"buffer_load_dword v{TT+3}, v{TT+2}, {WSR}, s{sLOC} offen offset:{W_ST} sc1")
    E("s_waitcnt vmcnt(0)")
    E(f"v_cmp_eq_u32 vcc, -1, v{TT+3}")
    E("s_cbranch_vccz L_D1_near")
    E(f"s_sleep {2*PSL}")
    spin_check("L_D1_far")
    L("L_D1_near")
gather1("ga", AIN, aIN, sLOC, W_ACT, TT)
amp("act")
stamp(4, True)
E(f"buffer_load_dwordx4 {vr(CA,4)}, v{vL16}, {WSR}, s{sLOC} offen offset:{W_X1} sc1")
matvec(7, AIN, WB, [], per=PN)
y_publish()
stamp(5, True)
E(f"s_add_u32 s{sLAY}, s{sLAY}, 1")
E(f"s_cmp_lt_u32 s{sLAY}, 2")
E("s_cbranch_scc1 L_D1_z")
E(f"s_cmp_lg_u32 s2, 128")
E("s_cbranch_scc1 L_D1_end")
E(f"s_cmp_lg_u32 s{sWV}, 0")
E("s_cbranch_scc1 L_D1_end")
L("L_D1_z")
mark("d1")
def pre_z():
    E("s_waitcnt vmcnt(1)")
    chk_bf16(CA, TT)
    E("s_cbranch_vccz L_gx1_have")
    gather1("gx1", CA, vL16, sLOC, W_X1, TT, pd=1, slp=0)
    L("L_gx1_have")
    unpack_resid(CA)
def relay_z():
    E(f"v_mov_b32 v{vT}, 0")
    E(f"s_cmp_lg_u32 s{sWV}, 0")
    E(f"s_cbranch_scc1 L_gz_other")
    pre_z()
    gather_X("gz", sZoff, "d1")
    E(f"s_cmp_eq_u32 s{sLAY}, 2")
    E("s_cbranch_scc1 L_D1_out")
    E(f"ds_write_b128 v{aXS}, {vr(XB,4)}")
    E("s_waitcnt lgkmcnt(0)")
    E("s_barrier")
    E(f"s_branch L_gz_join")
    L(f"L_gz_other")
    E("s_waitcnt vmcnt(0)")
    E("s_barrier")
    E(f"ds_read_b128 {vr(XB,4)}, v{aXS}")
    E("s_waitcnt lgkmcnt(0)")
    L("L_gz_join")
relay_z()
stamp(6)
for s_ in (sLOC, sPub, sPubG, sZoff):
    E(f"s_add_u32 s{s_}, s{s_}, {LS}")
E("s_branch L_D1_q")
L("L_D1_out")
E(f"buffer_store_dwordx2 {vr(XB,2)}, v{aXIO}, s[{R_B}:{R_B+3}], 0 offen")
E(f"buffer_store_dwordx2 {vr(XB+2,2)}, v{aXIO}, s[{R_B}:{R_B+3}], 0 offen offset:512")
E(f"v_mov_b32 v{TT}, s{sTAG}")
E(f"v_mov_b32 v{TT+1}, {W_EP}")
E("s_mov_b64 exec, 1")
E(f"buffer_store_dword v{TT}, v{TT+1}, {WSR}, 0 offen")
if AMP:
    E("s_memrealtime s[88:89]")
    E("s_waitcnt lgkmcnt(0)")
    if AMP == "end": E("s_mov_b32 s94, s88")
    E("s_sub_u32 s94, s94, s86")
    if AMP.startswith("x"):
        E(f"v_mov_b32 v253, {W_EP + 64}")
        E(f"buffer_load_dword v252, v253, {WSR}, 0 offen sc1")
        E("s_waitcnt vmcnt(0)")
        E("v_readfirstlane_b32 s94, v252")
        E("s_nop 3")
        E("s_sub_u32 s94, s94, s86")
        E("s_add_u32 s94, s94, 100")
        E("s_max_i32 s94, s94, 0")
    E("s_lshl_b32 s94, s94, 2")
    E("s_min_u32 s94, s94, 20000")
    E("s_add_u32 s94, s94, s88")
    L("L_amp_spin")
    E("s_memrealtime s[88:89]")
    E("s_waitcnt lgkmcnt(0)")
    E("s_sub_u32 s89, s94, s88")
    E("s_cmp_gt_i32 s89, 0")
    E("s_cbranch_scc1 L_amp_spin")
if PROF:
    stamp(7)
    E("s_waitcnt vmcnt(0)")
    stamp(8)
L("L_D1_end")
stamp_flush(0, 0, (128, 4, [60, 2, 3, 4, 6, 20, 8]))
E("s_endpgm")
sec("help")
L("L_D1_help")
E(f"s_mul_i32 s{sT0}, s{sG}, {224*1024}")
E(f"s_lshl_b32 s{sT1}, s{sC}, 7")
E(f"s_add_u32 s{sT0}, s{sT0}, s{sT1}")
srd(R_B, sW2, f"s{sT0}", 224*1024 - 896)
E("v_lshlrev_b32 v244, 10, v242")
E("v_lshl_add_u32 v244, v243, 4, v244")
E(f"s_cmp_eq_u32 s{sWV}, 4")
E("s_cbranch_scc1 L_D1_ctl")
if not W2P: E(f"buffer_load_dword v255, v244, s[{R_B}:{R_B+3}], 0 offen")
for u in range(3):
    E(f"s_cmp_lg_u32 s{sWV}, {5+u}")
    E(f"s_cbranch_scc1 L_D1_wm{u}")
    warm("d1", u, 3)
    L(f"L_D1_wm{u}")
E("s_branch L_D1_bq")
L("L_D1_ctl")
E(f"v_lshlrev_b32 v{cT}, 7, v2")
E(f"buffer_load_dword v240, v{cT}, {WSR}, s{sQ0} offen sc1")
ctl_head()
xc_publish()
L("L_D1_bq")
E("s_barrier")
v_prefetch()
E(f"s_cmp_lg_u32 s{sWV}, 4")
E("s_cbranch_scc1 L_D1_w2")
first_gather("d1x", False, None)
stamp(3)
E(f"v_lshlrev_b32 v{cT}, 3, v1")
E(f"s_cmp_eq_u32 s{sMODE}, 1")
E("s_cbranch_scc0 L_D1_b2")
L("L_D1_st")
E(f"buffer_load_dword v{cT+1}, v{cT}, {WSR}, s{sLOC} offen offset:{W_ST} sc1")
E("s_waitcnt vmcnt(0)")
E(f"v_cmp_ne_u32 vcc, -1, v{cT+1}")
E("s_cbranch_vccnz L_D1_b2")
E("s_sleep 8")
spin_check("L_D1_st")
L("L_D1_b2")
E("s_waitcnt lgkmcnt(0)")
L("L_D1_w2")
E("s_barrier")
E(f"s_sub_u32 s{sT0}, s{sWV}, 4")
E(f"s_mul_i32 s{sT1}, s{sT0}, 7168")
E(f"s_add_u32 m0, s{sT1}, {WB_LDS}")
E(f"s_mul_i32 s{sT1}, s{sT0}, {56*1024}")
for i in range(7):
    E(f"buffer_load_dwordx4 v244, s[{R_B}:{R_B+3}], s{sT1} offen{NTW} lds")
    if i < 6:
        E("s_add_u32 m0, m0, 1024")
        E(f"s_add_u32 s{sT1}, s{sT1}, 8192")
E("s_waitcnt vmcnt(0) lgkmcnt(0)")
stamp(4)
E("s_barrier")
stamp_flush(4, 1)
E("s_endpgm")

L("L_D2_init")
E(f"s_min_u32 s{sT1}, s{sC}, 6")
E(f"s_lshl_b32 s{sT1}, s{sT1}, 6")
E(f"s_mul_i32 s{sT0}, s{sG}, 448")
E(f"s_add_u32 s{sS1}, s{sT0}, s{sT1}")
E(f"s_sub_u32 s{sT3}, {1835008}, s{sS1}")
srd(R_B, sW1, f"s{sS1}", f"s{sT3}")
srd(R_C, sDBG, None, 256)
E(f"s_cmp_eq_u32 s{sWV}, 4")
E("s_cbranch_scc1 L_D2_ctl")
E(f"s_cmp_eq_u32 s{sWV}, 5")
E("s_cbranch_scc1 L_D2_flag")
E("v_lshrrev_b32 v245, 2, v1")
E("v_mul_u32_u24 v245, 3584, v245")
E("v_and_b32 v246, 3, v1")
E("v_and_b32 v247, 1, v3")
E("v_xor_b32 v246, v246, v247")
E("v_lshl_add_u32 v244, v246, 4, v245")
E("v_xor_b32 v246, 2, v246")
E("v_lshl_add_u32 v245, v246, 4, v245")
E(f"s_sub_u32 s{sT0}, s{sWV}, 6")
E(f"s_lshl_b32 s{sT1}, s{sT0}, 14")
E(f"s_add_u32 m0, s{sT1}, {WB_LDS}")
E(f"s_mul_i32 s{sT1}, s{sT0}, {256*3584}")
if W1L == 2:
    E(f"buffer_load_dword v255, v244, s[{R_B}:{R_B+3}], s{sT1} offen")
    E(f"s_add_u32 s{sT2}, s{sT1}, {240*3584}")
    E(f"buffer_load_dword v255, v244, s[{R_B}:{R_B+3}], s{sT2} offen")
for u in range(2):
    E(f"s_cmp_lg_u32 s{sWV}, {6+u}")
    E(f"s_cbranch_scc1 L_D2_wm{u}")
    warm("d2", u, 2)
    L(f"L_D2_wm{u}")
if LATE0 >= 2 or W1L == 1: E("s_barrier")
if W1L == 2:
    E("s_barrier")
    E(f"v_mov_b32 v{cT}, {FL_LDS}")
    E(f"ds_read_b32 v{cT+1}, v{cT}")
    E(f"v_lshlrev_b32 v{cT}, 3, v1")
    E("s_waitcnt lgkmcnt(0)")
    E(f"v_cmp_ne_u32 vcc, 1, v{cT+1}")
    E("s_cbranch_vccnz L_D2_w1go")
    L("L_D2_w1st")
    E(f"buffer_load_dword v{cT+1}, v{cT}, {WSR}, s{sLOC} offen offset:{W_ST} sc1")
    E("s_waitcnt vmcnt(0)")
    E(f"v_cmp_ne_u32 vcc, -1, v{cT+1}")
    if W1N > 1:
        E(f"s_bcnt1_i32_b64 s{sT2}, vcc")
        E(f"s_cmp_ge_u32 s{sT2}, {4*W1N}")
        E("s_cbranch_scc1 L_D2_w1go")
    else: E("s_cbranch_vccnz L_D2_w1go")
    E("s_sleep 2")
    spin_check("L_D2_w1st")
    L("L_D2_w1go")
for i in range(16):
    if TD1 and i >= TD1: E(f"s_waitcnt vmcnt({TD1-1})")
    E(f"buffer_load_dwordx4 v{244 + (i//4) % 2}, s[{R_B}:{R_B+3}], s{sT1} offen{NTW} lds")
    if i < 15:
        E("s_add_u32 m0, m0, 1024")
        E(f"s_add_u32 s{sT1}, s{sT1}, {16*3584}")
E("s_waitcnt vmcnt(0)")
stamp(4)
E("s_barrier")
stamp_flush(6, 2)
E("s_endpgm")
L("L_D2_flag")
E(f"s_lshl_b32 s{sT1}, s{sG}, 5")
E(f"s_lshl_b32 s{sT2}, s{sC}, 2")
E(f"s_add_u32 s{sT1}, s{sT1}, s{sT2}")
E(f"v_mov_b32 v{cT}, 1")
E(f"v_mov_b32 v{cT+1}, s{sT1}")
E(f"v_lshlrev_b32 v{cT+2}, 2, v1")
E("s_waitcnt vmcnt(0)")
E("s_mov_b64 exec, 1")
E(f"buffer_store_dword v{cT}, v{cT+1}, s[{R_C}:{R_C+3}], 0 offen sc1")
E("s_mov_b64 exec, -1")
if LATE0 >= 2 or W1L == 1: E("s_barrier")
E("s_waitcnt vmcnt(0)")
L("L_D2_fpoll")
E(f"buffer_load_dword v{cT+3}, v{cT+2}, s[{R_C}:{R_C+3}], 0 offen sc1")
E("s_waitcnt vmcnt(0)")
E(f"v_cmp_ne_u32 vcc, 1, v{cT+3}")
E("s_cbranch_vccz L_D2_fok")
E("s_sleep 8")
spin_check("L_D2_fpoll")
L("L_D2_fok")
E("s_barrier")
E("s_endpgm")
L("L_D2_ctl")
ctl_head()
stamp(1)
xc_publish()
first_gather("d2x", False, lambda: d2_clear(" sc1", True))
stamp(2)
if LATE0 == 3:
    E(f"v_lshlrev_b32 v{cT}, {'3' if STW else '2'}, v1")
    E(f"s_cmp_eq_u32 s{sMODE}, 1")
    E("s_cbranch_scc0 L_D2_go")
    L("L_D2_st")
    if STW:
        E(f"buffer_load_dword v{cT+1}, v{cT}, {WSR}, s{sLOC} offen offset:{W_ST} sc1")
        E("s_waitcnt vmcnt(0)")
        E(f"v_cmp_ne_u32 vcc, -1, v{cT+1}")
    E("s_cbranch_vccnz L_D2_go")
    E("s_sleep 2")
    spin_check("L_D2_st")
    L("L_D2_go")
    stamp(3)
E("s_waitcnt lgkmcnt(0)")
if LATE0 >= 2 or W1L == 1: E("s_barrier")
E("s_barrier")
stamp_flush(4, 1)
E("s_endpgm")
sec("d2")
L("L_D2_comp")
E(f"s_min_u32 s{sT1}, s{sC}, 6")
E(f"s_lshl_b32 s{sT1}, s{sT1}, 6")
E(f"s_mul_i32 s{sT0}, s{sG}, 448")
E(f"s_add_u32 s{sS1}, s{sT0}, s{sT1}")
if LATE0: wo_issue()
if W1L == 1 and LATE0 < 2: E("s_barrier")
srd(R_C, sB1, None, 3584)
E(f"v_and_b32 v{TT+5}, 7, v2")
E(f"v_lshlrev_b32 v{TT+5}, 1, v{TT+5}")
E(f"s_lshl_b32 s{sT1}, s{sWV}, 4")
E(f"s_add_u32 s{sT0}, s{sS1}, s{sT1}")
E(f"buffer_load_ushort v{vB1}, v{TT+5}, s[{R_C}:{R_C+3}], s{sT0} offen")
E(f"v_lshrrev_b32 v{TT+5}, 1, v{TT+2}")
E(f"v_lshl_add_u32 v{TT+5}, v{TT+1}, 1, v{TT+5}")
E(f"v_xor_b32 v{TT+5}, s{sWV}, v{TT+5}")
E(f"v_lshl_add_u32 v{aTA}, v3, 7, v{TT+2}")
E(f"v_lshlrev_b32 v{aTA}, 7, v{aTA}")
E(f"v_lshl_add_u32 v{aTA}, v{TT+3}, 3, v{aTA}")
E(f"v_lshl_add_u32 v{aTA}, v{TT+5}, 5, v{aTA}")
E(f"v_bfe_u32 v{TT+5}, v2, 1, 1")
E(f"v_lshl_add_u32 v{TT+6}, v{TT+5}, 6, v{TT+4}")
E(f"v_lshl_add_u32 v{TT+5}, v{TT+5}, 1, v{TT+1}")
E(f"v_xor_b32 v{TT+5}, s{sWV}, v{TT+5}")
E(f"v_lshlrev_b32 v{aTB}, 6, v{TT+6}")
E(f"v_lshl_add_u32 v{aTB}, v{TT+5}, 4, v{aTB}")
E(f"v_and_b32 v{TT+5}, 1, v2")
E(f"v_lshl_add_u32 v{aTB}, v{TT+5}, 3, v{aTB}")
E(f"v_add_u32 v{aTB}, {WB_LDS}, v{aTB}")
E(f"s_lshl_b32 s{sT1}, s{sWV}, 7")
E(f"v_lshlrev_b32 v{aST}, 5, v3")
E(f"v_add_u32 v{aST}, s{sT1}, v{aST}")
E(f"v_lshlrev_b32 v{aOS}, 4, v2")
E(f"v_lshl_add_u32 v{aOS}, v{TT+1}, 3, v{aOS}")
E(f"v_lshl_add_u32 v{aOS}, v{TT}, 2, v{aOS}")
E(f"s_lshl_b32 s{sT1}, s{sWV}, 8")
E(f"s_add_u32 s{sT1}, s{sT1}, {OS_LDS}")
E(f"v_add_u32 v{aOS}, s{sT1}, v{aOS}")
E(f"v_add_u32 v{aIN}, {OS_LDS}, v{vL16}")
E(f"v_lshlrev_b32 v{TT+5}, 4, v{TT+5}")
E(f"v_mov_b32 v{TT+6}, 0xffff")
E(f"v_lshlrev_b32 v{TT+6}, v{TT+5}, v{TT+6}")
E(f"v_bfe_u32 v{TT+7}, v2, 1, 2")
for d in range(4):
    E(f"v_cmp_eq_u32 vcc, {d}, v{TT+7}")
    E("s_nop 1")
    E(f"v_cndmask_b32 v{MK+d}, 0, v{TT+6}, vcc")
E(f"v_lshrrev_b32 v{vFLG}, 3, v2")
E(f"v_cmp_eq_u32 vcc, v{vFLG}, v{TT}")
E(f"v_cvt_f32_u32 v{vFLG}, v{vFLG}")
E("s_nop 0")
E(f"v_cndmask_b32 v{vVAL}, 0, -1, vcc")
E(f"s_lshl_b32 s{sT1}, s{sWV}, 12")
E(f"s_add_u32 s{sPoff}, s{sPoff}, s{sT1}")
E(f"s_lshl_b32 s{sT1}, s{sPJ}, 4")
E(f"s_add_u32 s{sPub}, s{sLOC}, s{sT1}")
E(f"s_add_u32 s{sPubG}, s{sPubG}, {W_Y}")
E(f"s_mov_b32 s{sYoff}, {W_Y}")
E(f"s_mov_b32 s{sC2}, 0")
E("s_waitcnt vmcnt(0)")
unpack_resid(XB)
E(f"v_lshlrev_b32 v{vB1}, 16, v{vB1}")
stamp(1)
E("s_barrier")
stamp(2)
ampx("xw", 0)
for s in range(16):
    for e in range(2):
        E(f"ds_read_b64_tr_b16 {vr(WA+4*s+2*e,2)}, v{aTA} offset:{1024*s+512*e}")
def w1_frags():
    for s in range(8):
        for e in range(2):
            E(f"ds_read_b64_tr_b16 {vr(WB+4*s+2*e,2)}, v{aTB} offset:{16384*e+512*s}")
def w1_sums():
    for s in range(8):
        c = "0" if s == 0 else vr(ACC,4)
        E(f"v_mfma_f32_16x16x32_bf16 {vr(ACC,4)}, {vr(ONESB,4)}, {vr(WB+4*s,4)}, {c}")
    E("s_nop 7")
    E(f"v_add_f32_dpp v{vCS}, v{ACC}, v{ACC} row_ror:8 row_mask:0xf bank_mask:0xf")
if W1L != 2: w1_frags()
read_mode("0xff", 28)
if W1L != 2: w1_sums()
L("L_D2_loop")
mark("d2")
def p_loads():
    for i in range(4):
        E(f"buffer_load_dwordx4 {vr(GB+4*i,4)}, v{vL16}, {WSR}, s{sPoff} offen offset:{1024*i} sc1")
arm(vST, 8)
p_loads()
if TP & 2:
    E(f"s_cmp_eq_u32 s{sLAY}, 0")
    E("s_cbranch_scc1 L_D2_near")
    gather1("gx2s", CA, vL16, sLOC, W_X2, TT, pd=1, slp=PSL)
    L("L_D2_near")
L("L_gs_poll")
E(f"buffer_load_dwordx4 {vr(vST,4)}, v{aST}, {WSR}, s{sLOC} offen offset:{W_ST} sc1")
E(f"buffer_load_dwordx4 {vr(vST+4,4)}, v{aST}, {WSR}, s{sLOC} offen offset:{W_ST+16} sc1")
E(f"s_waitcnt vmcnt({2*(PD-1)})")
E(f"v_max3_u32 v{TT}, v{vST}, v{vST+1}, v{vST+2}")
E(f"v_max3_u32 v{TT+1}, v{vST+3}, v{vST+4}, v{vST+5}")
E(f"v_max3_u32 v{TT}, v{TT}, v{vST+6}, v{vST+7}")
E(f"v_max_u32 v{TT}, v{TT}, v{TT+1}")
E(f"v_cmp_eq_u32 vcc, -1, v{TT}")
E("s_cbranch_vccz L_gs_ok")
if SLP: E(f"s_sleep {SLP}")
spin_check("L_gs_poll")
L("L_gs_ok")
p_loads()
stamp(3, True)
vM, vU, vLs = TT, TT+1, TT+2
WT = TT + 3
AW = GB + 16
E(f"v_max3_f32 v{vM}, v{vST}, v{vST+2}, v{vST+4}")
E(f"v_max_f32 v{vM}, v{vM}, v{vST+6}")
for sw in ("16", "32"):
    E(f"v_mov_b32 v{vU}, v{vM}")
    E("s_nop 1")
    E(f"v_permlane{sw}_swap_b32 v{vM}, v{vU}")
    E(f"v_max_f32 v{vM}, v{vM}, v{vU}")
for t in range(4): E(f"v_sub_f32 v{WT+t}, v{vST+2*t}, v{vM}")
for t in range(4): E(f"v_exp_f32 v{WT+t}, v{WT+t}")
E("s_nop 0")
E(f"v_mul_f32 v{vLs}, v{WT}, v{vST+1}")
for t in range(1, 4): E(f"v_fmac_f32 v{vLs}, v{WT+t}, v{vST+2*t+1}")
for sw in ("16", "32"):
    E(f"v_mov_b32 v{vU}, v{vLs}")
    E("s_nop 1")
    E(f"v_permlane{sw}_swap_b32 v{vLs}, v{vU}")
    E(f"v_add_f32 v{vLs}, v{vLs}, v{vU}")
E(f"v_rcp_f32 v{vLs}, v{vLs}")
p_loads()
for t in range(4): E(f"v_mul_f32 v{WT+t}, v{WT+t}, v{vLs}")
for t in range(4): E(f"v_cvt_pk_bf16_f32 v{WT+4+t}, v{WT+t}, v{WT+t}")
for t in range(4): E(f"v_and_b32 v{WT+4+t}, 0xffff0000, v{WT+4+t}")
for t in range(4): E(f"v_fma_f32 v{WT+t}, -v{WT+4+t}, v{vFLG}, v{WT+t}")
for t in range(4): E(f"v_cvt_pk_bf16_f32 v{WT+t}, v{WT+t}, v{WT+t}")
for t in range(4):
    for d in range(4): E(f"v_and_b32 v{AW+4*t+d}, v{MK+d}, v{WT+t}")
E("s_branch L_gp_use")
L("L_gp_nan")
E(f"s_sub_u32 s{sSPIN}, s{sSPIN}, 1")
E("s_cbranch_scc1 L_exit")
E(f"s_and_b32 s{sT1}, s{sSPIN}, 15")
E("s_cbranch_scc0 L_gp_retry")
L("L_gp_again")
p_loads()
L("L_gp_use")
E("s_waitcnt vmcnt(4)")
for t in range(4):
    E(f"v_mfma_f32_16x16x32_bf16 {vr(CA,4)}, {vr(AW+4*t,4)}, {vr(GB+4*t,4)}, {'0' if t == 0 else vr(CA,4)}")
E("s_nop 7")
E(f"v_cmp_u_f32 vcc, v{CA}, v{CA}")
E(f"v_permlane32_swap_b32 v{CA}, v{CA+2}")
E(f"v_permlane32_swap_b32 v{CA+1}, v{CA+3}")
E("s_cbranch_vccnz L_gp_nan")
L("L_gp_ok")
E(f"v_add_f32 v{CA}, v{CA}, v{CA+2}")
E(f"v_add_f32 v{CA+1}, v{CA+1}, v{CA+3}")
E(f"v_cvt_pk_bf16_f32 v{CA}, v{CA}, v{CA+1}")
E(f"ds_write_b32 v{aOS}, v{CA}")
E(f"v_mov_b32 v{vT}, 0")
stamp(4, True)
mark("d2")
E("s_waitcnt lgkmcnt(0)")
E("s_barrier")
E(f"ds_read_b128 {vr(XB,4)}, v{aIN}")
E(f"buffer_load_dwordx4 {vr(CA,4)}, v{vL16}, {WSR}, s{sLOC} offen offset:{W_X2} sc1")
E("s_waitcnt lgkmcnt(0)")
matvec(16, XB, WA, [], per=PN)
y_publish()
stamp(5, True)
ampx("xy", 0)
if W1L == 2:
    E(f"s_cmp_lg_u32 s{sLAY}, 0")
    E("s_cbranch_scc1 L_D2_havew1")
    w1_frags()
    E("s_waitcnt lgkmcnt(0)")
    w1_sums()
    L("L_D2_havew1")
def pre_y():
    E(f"s_cmp_eq_u32 s{sLAY}, 0")
    E("s_cbranch_scc1 L_D2_havex")
    E("s_waitcnt vmcnt(1)")
    chk_bf16(CA, TT)
    E("s_cbranch_vccz L_gx2_have")
    gather1("gx2", CA, vL16, sLOC, W_X2, TT, pd=1, slp=0)
    L("L_gx2_have")
    unpack_resid(CA)
    L("L_D2_havex")
relay_X("gy", sYoff, pre_y)
stamp(6, True)
ampx("xz", 0)
E(f"s_cmp_eq_u32 s{sC}, 7")
E("s_cbranch_scc1 L_D2_x1")
matvec(8, XB, WB, stats_fillers(), rows=[(0x5, 0xf, [0,1,2,3]), (0xa, 0xf, [4,5,6,7])], per=PER+2)
mark("d2")
xgroup_sum(True)
h, u, a, b = vT, TT+5, TT+6, TT+7
E(f"v_add_f32 v{h}, v{h}, v{vB1}")
E(f"v_mul_f32 v{u}, s{sC3}, |v{h}|")
E(f"v_exp_f32 v{u}, v{u}")
E(f"v_cmp_le_f32 vcc, 0, v{h}")
E(f"v_add_f32 v{b}, 2.0, v{u}")
E(f"v_fma_f32 v{a}, v{u}, 2.0, 1.0")
E(f"v_mul_f32 v{b}, v{u}, v{b}")
E(f"v_mul_f32 v{u}, v{u}, v{u}")
E(f"v_cndmask_b32 v{a}, v{b}, v{a}, vcc")
E(f"v_cndmask_b32 v{u}, 1.0, v{u}, vcc")
E(f"v_fma_f32 v{b}, v{u}, 2.0, v{a}")
E(f"v_rcp_f32 v{b}, v{b}")
E(f"v_mul_f32 v{h}, v{h}, v{a}")
E(f"v_mul_f32 v{h}, v{h}, v{b}")
E(f"v_cvt_pk_bf16_f32 v{h}, v{h}, v{h}")
E(f"v_min_u32 v{h}, -2, v{h}")
pub2("buffer_store_short", f"v{h}", aP16, sPub, sMA_f, sMA_s, W_ACT)
stamp(7, True)
L("L_D2_next")
for s_ in (sLOC, sPoff, sPub, sPubG, sYoff):
    E(f"s_add_u32 s{s_}, s{s_}, {LS}")
E(f"s_add_u32 s{sLAY}, s{sLAY}, 1")
E(f"s_cmp_lt_u32 s{sLAY}, 2")
E("s_cbranch_scc1 L_D2_loop")
stamp_flush(0, 0)
E("s_endpgm")
L("L_D2_x1")
pub_resid(W_X1)
unpack_resid(XB)
E("s_branch L_D2_next")
sec("cold")
L("L_exit")
E("s_endpgm")
L("L_gp_retry")
for i in range(0, 16, 2): E(f"v_pk_max_u16 v{ACC+i//2}, v{GB+i}, v{GB+i+1}")
for i in range(0, 8, 2): E(f"v_pk_max_u16 v{ACC+i//2}, v{ACC+i}, v{ACC+i+1}")
chk_bf16(ACC, TT)
E("s_cbranch_vccnz L_gp_again")
for t in range(4):
    E(f"v_mfma_f32_16x16x32_bf16 {vr(CA,4)}, {vr(AW+4*t,4)}, {vr(GB+4*t,4)}, {'0' if t == 0 else vr(CA,4)}")
E("s_nop 9")
E(f"v_permlane32_swap_b32 v{CA}, v{CA+2}")
E(f"v_permlane32_swap_b32 v{CA+1}, v{CA+3}")
E("s_branch L_gp_ok")
for b_ in retry_blocks: b_()
L("L_code_end")

out = [open("cdna_kernels/" + NAME + ".s.ref").read().split("; Override")[0].rstrip("\n"),
       f"; @launch grid=(256,1,1) block=(512,1,1) lds={LDS_BYTES}", '.amdgcn_target "amdgcn-amd-amdhsa--gfx950"', ".text",
       f".globl {NAME}_kernel", ".p2align 8", f".type {NAME}_kernel,@function"]
for k in ORDER:
    for x in secs[k]:
        if isinstance(x, tuple) and x[0] == "MARK":
            _, role, i = x
            n = wstep[role]
            out.append("    s_cbranch_execz " + (marks[role][i + n] if i + n < len(marks[role]) else f"L_wd_{role}{i % n}"))
        elif isinstance(x, tuple):
            _, role, first, step = x
            assert first < len(marks[role])
            out += ["    s_mov_b64 exec, 0", f"    s_branch {marks[role][first]}", f"L_wd_{role}{first}:", "    s_mov_b64 exec, -1"]
        else: out.append(x)
out.append('.section .rodata,"a"')
out.append(".p2align 6")
out.append(f".amdhsa_kernel {NAME}_kernel")
out.append("  .amdhsa_next_free_vgpr 256")
out.append("  .amdhsa_next_free_sgpr 96")
out.append("  .amdhsa_accum_offset 256")
out.append("  .amdhsa_group_segment_fixed_size 0")
out.append("  .amdhsa_kernarg_size 96")
out.append("  .amdhsa_user_sgpr_count 2")
out.append("  .amdhsa_user_sgpr_kernarg_segment_ptr 1")
out.append("  .amdhsa_system_sgpr_workgroup_id_x 1")
out.append("  .amdhsa_float_denorm_mode_32 3")
out.append(".end_amdhsa_kernel")
open(sys.argv[1], "w").write("\n".join(out) + "\n")
```

```python
import sys, math, struct
PROF = int(sys.argv[2]) if len(sys.argv) > 2 else 0
OPT = dict(a.split("=") for a in sys.argv[3:])
THR = int(OPT.get("thr", 6))
ACK = int(OPT.get("ack", 1))
PER = int(OPT.get("per", 3))
PD = int(OPT.get("pd", 3))
SLP = int(OPT.get("slp", 0))
LATE0 = int(OPT.get("late0", 1))
GP = int(OPT.get("gp", 1))
GSL = int(OPT.get("gsl", 0))
THV = int(OPT.get("thv", 10))
GD = int(OPT.get("gd", 0))
fl = lambda k, d: {"0": "", "1": " nt", "2": " sc1", "3": " sc0 sc1", "4": " sc1 nt"}[OPT.get(k, d)]
NTQ, NTW, NTK, NTV = fl("ntq", "0"), fl("ntw", "0"), fl("ntk", "1"), fl("ntv", "0")
TQ = int(OPT.get("tq", 1))
MARKGAP = int(OPT.get("gap", 768))
CPF = int(OPT.get("cpf", 1))
W1L = int(OPT.get("w1l", 1))
STW = 1
REORD = int(OPT.get("reord", 0))
PAD = int(OPT.get("pad", 1))
PN = int(OPT.get("pn", 4))
W2P = int(OPT.get("w2p", 0))
W1N = int(OPT.get("w1n", 1))
FSL = int(OPT.get("fsl", 3))
PSL = int(OPT.get("psl", 3))
TP = int(OPT.get("tp", 0))
VPF = int(OPT.get("vpf", 0))
TDO, TD1 = int(OPT.get("tdo", 0)), int(OPT.get("td1", 0))
PRIO = int(OPT.get("prio", 1))
WARM = int(OPT.get("warm", 0))
NTT = fl("ntt", "0")
GFL = fl("gfl", "2")
SFL = {"2": " sc1", "3": " sc0 sc1", "4": " sc1 nt"}[OPT.get("sfl", "2")]
NAME = "interleave_layers__sliding_block_cached__dense_activation_mish__decode"
import re
ORDER = ["entry", "dinit", "d1", "actl", "a", "d2", "help", "cold"]
secs = {k: [] for k in ORDER}
cur = ["entry"]
since = {k: 0 for k in ORDER}
unsafe = [False]
marks = {k: [] for k in ORDER}
WARMED = ("d1", "a", "d2")
BIG = ("v_mfma", "v_pk_", "v_fma_", "v_max3", "v_or3", "v_add3", "v_lshl_add", "v_bfe", "v_mul_lo", "v_cvt_pk", "v_readlane", "v_writelane",
       "ds_", "buffer_", "global_", "s_load", "s_memrealtime")
def isize(t):
    if t.startswith(BIG) or "_dpp" in t or "|v" in t or (t.startswith(("v_cmp", "v_cndmask")) and "s[" in t): return 8
    ops = t.split(None, 1)[1] if " " in t else ""
    if t.startswith(("s_waitcnt", "s_nop", "s_sleep", "s_branch", "s_cbranch", "s_call", "s_getreg", "s_setprio")): return 4
    for tok in re.split(r"[,\s]+", ops):
        if re.fullmatch(r"0x[0-9a-f]+|\d+", tok) and int(tok, 0) > 64: return 8
    return 4
def sec(name): cur[0] = name
def put_mark():
    k = cur[0]
    marks[k].append(f"L_wm_{k}{len(marks[k])}")
    secs[k].append(marks[k][-1] + ":")
    secs[k].append(("MARK", k, len(marks[k]) - 1))
    since[k] = 4
def E(s=""):
    k = cur[0]
    if WARM and k in WARMED and not unsafe[0] and (since[k] >= MARKGAP or not marks[k]): put_mark()
    secs[k].append("    " + s)
    since[k] += isize(s)
    if re.match(r"s_\w+ exec", s): unsafe[0] = s != "s_mov_b64 exec, -1"
def L(s): secs[cur[0]].append(s + ":")
def vr(a, n=1): return f"v{a}" if n == 1 else f"v[{a}:{a+n-1}]"
def f32(x): return hex(struct.unpack("<I", struct.pack("<f", x))[0])

K_LDS, V_LDS = 0, 65536
WA_LDS, WB_LDS = 0, 65536
QS_LDS, PX_LDS, SX_LDS, FL_LDS = 131072, 132608, 140800, 141312
OS_LDS, XS_LDS = QS_LDS, PX_LDS
LDS_BYTES = 141824
LS = 0x30000
W_Q, W_X2, W_X1, W_ST, W_ACT = 0, 1024, 2048, 3072, 3584
W_Y, W_Z, W_P = 32768, 40960, 65536
W_Q0 = 2 * LS
W_Q0B = 32768
W_EP = W_Q0 + 65536
ALT = 0x80000
WS_USED = ALT + 2 * LS
PROF_OFF = 0x300000
WS_REC = PROF_OFF + 256 * 1024

sX, sK, sV, sWQ, sWO, sBX, sW1, sB1 = 8, 10, 12, 14, 16, 18, 20, 22
sW2, sOUT, sDBG, sWS = 24, 26, 28, 30
sG, sJ, sWV, sC, sPJ = 3, 4, 5, 6, 7
R_WS, R_A, R_B, R_C = 32, 36, 40, 44
sT0, sT1, sT2, sT3 = 48, 49, 50, 51
sLOC, sLAY = 52, 53
sYoff, sZoff, sPoff = 54, 55, 56
sSPIN = 57
sRET = 58
sMA_f, sMA_s, sMB_f, sMB_s, sMC_f, sMC_s = 60, 62, 64, 66, 68, 70
sTAG, sXCC, sQ0, sQ0B = 72, 73, 74, 75
sFFFE = 76
sC1, sC2, sC3 = 77, 78, 79
sS1, sS2, sPIV = 80, 81, 82
sPub, sPubG = 83, 84
sST = 88
sPe, sLe, sMODE = 90, 91, 92
SPIN0 = 0x200000
WSR = f"s[{R_WS}:{R_WS+3}]"

def srd(r, base, add_lo=None, rec=None):
    if add_lo is None:
        E(f"s_mov_b32 s{r}, s{base}")
        E(f"s_and_b32 s{r+1}, s{base+1}, 0xffff")
    else:
        E(f"s_add_u32 s{r}, s{base}, {add_lo}")
        E(f"s_addc_u32 s{r+1}, s{base+1}, 0")
        E(f"s_and_b32 s{r+1}, s{r+1}, 0xffff")
    E(f"s_mov_b32 s{r+2}, {rec}")
    E(f"s_mov_b32 s{r+3}, 0x00020000")

V_STAMP = 254
ROLE = ["a"]
def stamp(idx, layer_dep=False):
    if not PROF: return
    if PROF == 9 and not (idx == 8 and not layer_dep) and not (idx == 6 and layer_dep and ROLE[0] == "a" and "pt" not in OPT) and OPT.get("pt") != f"{cur[0]}_{idx}": return
    E(f"s_memrealtime s[{sST}:{sST+1}]")
    E("s_waitcnt lgkmcnt(0)")
    if layer_dep:
        E(f"s_lshl_b32 s{sT3}, s{sLAY}, 4")
        E(f"s_add_u32 s{sT3}, s{sT3}, {idx}")
        E(f"s_mov_b32 m0, s{sT3}")
        E("s_nop 0")
        E(f"v_writelane_b32 v{V_STAMP}, s{sST}, m0")
    else:
        E(f"v_writelane_b32 v{V_STAMP}, s{sST}, {idx}")
AMP = OPT.get("amp")
def amp(name):
    if AMP != name: return
    E(f"s_cmp_eq_u32 s{sLAY}, {OPT.get('amplay', '0')}")
    E(f"s_cbranch_scc0 L_amp_{name}")
    E("s_memrealtime s[94:95]")
    E("s_waitcnt lgkmcnt(0)")
    L(f"L_amp_{name}")
def ampx(name, wave):
    if AMP != name: return
    E(f"s_cmp_eq_u32 s2, {OPT.get('ampwg', '0')}")
    E(f"s_cbranch_scc0 L_amp_{name}")
    E(f"s_cmp_eq_u32 s{sWV}, {wave}")
    E(f"s_cbranch_scc0 L_amp_{name}")
    E(f"s_cmp_eq_u32 s{sLAY}, 0")
    E(f"s_cbranch_scc0 L_amp_{name}")
    E("s_memrealtime s[94:95]")
    E("s_waitcnt lgkmcnt(0)")
    if name == "xs": E("s_mov_b32 s94, s86")
    if name == "xa": E("s_mov_b32 s94, s88")
    E("v_mov_b32 v246, s94")
    E(f"v_mov_b32 v247, {W_EP + 64}")
    E(f"buffer_store_dword v246, v247, {WSR}, 0 offen sc1")
    L(f"L_amp_{name}")
def stamp_flush(wave, slot, dbg=None):
    if not PROF: return
    E(f"s_cmp_lg_u32 s{sWV}, {wave}")
    E("s_cbranch_scc1 L_exit")
    E("s_mov_b64 exec, -1")
    if dbg and "dbg" in OPT:
        wg, off, idx = dbg
        for i, x in enumerate(idx):
            E(f"v_readlane_b32 s{sT0}, v{V_STAMP}, {x}")
            E("s_nop 3")
            E(f"v_writelane_b32 v{V_STAMP-2}, s{sT0}, {i}")
        srd(R_A, sDBG, None, 256)
        E(f"v_lshlrev_b32 v{V_STAMP-1}, 2, v1")
        E(f"s_cmp_eq_u32 s2, {wg}")
        E(f"s_cselect_b32 exec_lo, {(1 << len(idx)) - 1}, 0")
        E("s_mov_b32 exec_hi, 0")
        E(f"buffer_store_dword v{V_STAMP-2}, v{V_STAMP-1}, s[{R_A}:{R_A+3}], 0 offen offset:{off}")
        E("s_mov_b64 exec, -1")
    E(f"s_lshl_b32 s{sT0}, s2, 10")
    E(f"s_add_u32 s{sT0}, s{sT0}, {PROF_OFF + slot*256}")
    E(f"v_lshlrev_b32 v{V_STAMP-1}, 2, v1")
    E(f"buffer_store_dword v{V_STAMP}, v{V_STAMP-1}, {WSR}, s{sT0} offen")

wstep = {}
def mark(role): pass
def warm(role, first=0, step=1):
    if WARM:
        secs[cur[0]].append(("WARM", role, first, step))
        assert wstep.setdefault(role, step) == step

def spin_check(fail_label):
    E(f"s_sub_u32 s{sSPIN}, s{sSPIN}, 1")
    E(f"s_cbranch_scc1 L_exit")
    E(f"s_branch {fail_label}")

def chk_bf16(v, t):
    E(f"v_pk_max_u16 v{t}, v{v}, v{v+1}")
    E(f"v_pk_max_u16 v{t+1}, v{v+2}, v{v+3}")
    E(f"v_pk_max_u16 v{t}, v{t}, v{t+1}")
    E(f"v_pk_max_u16 v{t}, v{t}, v{t} op_sel:[0,1] op_sel_hi:[1,0]")
    E(f"v_cmp_eq_u32 vcc, -1, v{t}")

def pub2(op, data, addr, soff, mf, ms, imm=0):
    o = f" offset:{imm}" if imm else ""
    E(f"s_mov_b64 exec, s[{mf}:{mf+1}]")
    E(f"{op} {data}, v{addr}, {WSR}, s{soff} offen{o}")
    E(f"s_mov_b64 exec, s[{ms}:{ms+1}]")
    E(f"{op} {data}, v{addr}, {WSR}, s{soff} offen{o} sc1")
    E("s_mov_b64 exec, -1")

def masks(mf, ms, lo, hi):
    E(f"s_cselect_b32 s{mf}, {lo}, 0")
    E(f"s_cselect_b32 s{mf+1}, {hi}, 0")
    E(f"s_cselect_b32 s{ms}, 0, {lo}")
    E(f"s_cselect_b32 s{ms+1}, 0, {hi}")

def arm(dst, n):
    for r in range(n): E(f"v_mov_b32 v{dst+r}, -1")

def gather1(tag, dst, addr, soff, imm, t, pd=None, slp=None):
    pd = PD if pd is None else pd
    slp = SLP if slp is None else slp
    L(f"L_{tag}_poll")
    E(f"buffer_load_dwordx4 {vr(dst,4)}, v{addr}, {WSR}, s{soff} offen offset:{imm} sc1")
    E(f"s_waitcnt vmcnt({pd-1})")
    chk_bf16(dst, t)
    E(f"s_cbranch_vccz L_{tag}_ok")
    if slp: E(f"s_sleep {slp}")
    spin_check(f"L_{tag}_poll")
    L(f"L_{tag}_ok")

cD, cA, cXa, cG, cT, cL16 = 208, 210, 211, 212, 224, 232
def xc_publish():
    E(f"s_getreg_b32 s{sXCC}, hwreg(HW_REG_XCC_ID, 0, 4)")
    E(f"v_mov_b32 v{cD+1}, s{sTAG}")
    E(f"s_lshl_b32 s{sT3}, s{sJ}, 3")
    E(f"v_mov_b32 v{cD}, s{sXCC}")
    E(f"v_mov_b32 v{cA}, s{sT3}")
    E("s_mov_b64 exec, 1")
    E(f"buffer_store_dwordx2 {vr(cD,2)}, v{cA}, {WSR}, s{sQ0} offen offset:2048")
    E("s_mov_b64 exec, -1")

def first_gather(tag, with_q, clear_alt, armed=False):
    regs = (1, 3, 5, 7) if with_q else (9,)
    nl = 3 if with_q else 1
    E(f"s_sub_u32 s{sS2}, s{sSPIN}, {480 // FSL}")
    if not armed:
        E(f"v_and_b32 v{cXa}, 31, v1")
        E(f"v_lshlrev_b32 v{cXa}, 3, v{cXa}")
        E(f"s_not_b32 s{sT1}, s{sTAG}")
        for r in regs + ((9,) if with_q else ()): E(f"v_mov_b32 v{cG+r}, s{sT1}")
    def loads(so):
        if with_q:
            E(f"buffer_load_dwordx4 {vr(cG,4)}, v{cL16}, {WSR}, s{so} offen sc1")
            E(f"buffer_load_dwordx4 {vr(cG+4,4)}, v{cL16}, {WSR}, s{so} offen offset:1024 sc1")
        E(f"buffer_load_dwordx2 {vr(cG+8,2)}, v{cXa}, {WSR}, s{so} offen offset:2048 sc1")
    def check():
        if with_q:
            for i, r in enumerate(regs): E(f"v_xor_b32 v{cT+i}, s{sTAG}, v{cG+r}")
            E(f"v_or3_b32 v{cT}, v{cT}, v{cT+1}, v{cT+2}")
            E(f"v_or_b32 v{cT}, v{cT}, v{cT+3}")
            E(f"v_cmp_ne_u32 vcc, 0, v{cT}")
        else:
            E(f"v_cmp_ne_u32 vcc, s{sTAG}, v{cG+9}")
    def copy_b():
        E("s_mov_b64 exec, 1")
        E(f"buffer_store_dwordx2 {vr(cD,2)}, v{cA}, {WSR}, s{sQ0B} offen offset:2048 sc1")
        E("s_mov_b64 exec, -1")
    L(f"L_{tag}_poll")
    loads(sQ0)
    E(f"s_waitcnt vmcnt({24 if armed else nl*6})")
    check()
    E(f"s_cbranch_vccz L_{tag}_seen")
    E(f"s_sleep {FSL}")
    E(f"s_cmp_gt_u32 s{sSPIN}, s{sS2}")
    E(f"s_cbranch_scc0 L_{tag}_b")
    spin_check(f"L_{tag}_poll")
    home = cur[0]; sec("cold")
    L(f"L_{tag}_b")
    copy_b()
    L(f"L_{tag}_alt")
    for so in (sQ0B, sQ0):
        loads(so)
        E("s_waitcnt vmcnt(0)")
        check()
        E(f"s_cbranch_vccz L_{tag}_{'altok' if with_q else 'ok'}")
    spin_check(f"L_{tag}_alt")
    if with_q:
        L(f"L_{tag}_altok")
        E(f"s_not_b32 s{sT1}, s{sTAG}")
        E(f"v_mov_b32 v{cG+9}, s{sT1}")
        E(f"s_branch L_{tag}_ok")
    sec(home)
    L(f"L_{tag}_seen")
    E("s_nop 15")
    L(f"L_{tag}_ok")
    if with_q:
        E(f"ds_write2_b32 v{cT+5}, v{cG}, v{cG+2} offset0:0 offset1:1")
        E(f"ds_write2_b32 v{cT+5}, v{cG+4}, v{cG+6} offset0:160 offset1:161")
        return
    E(f"v_cmp_ne_u32 vcc, s{sXCC}, v{cG+8}")
    E("s_nop 3")
    if OPT.get("slow") == "1": E("s_mov_b64 vcc, -1")
    E("s_cmp_eq_u64 vcc, 0")
    E(f"s_cselect_b32 s{sMODE}, 1, 0")
    E(f"s_cbranch_scc0 L_{tag}_slow")
    sec("cold")
    L(f"L_{tag}_slow")
    E("s_waitcnt vmcnt(0) lgkmcnt(0)")
    copy_b()
    if clear_alt: clear_alt()
    if clear_alt:
        E("s_waitcnt vmcnt(0)")
        E("s_mov_b64 exec, 1")
        E(f"buffer_store_dwordx2 {vr(cD,2)}, v{cA}, {WSR}, s{sQ0B} offen offset:2560 sc1")
        E("s_mov_b64 exec, -1")
    E(f"v_and_b32 v{cXa}, 56, v{cXa}")
    E(f"v_add_u32 v{cXa}, 192, v{cXa}")
    L(f"L_{tag}_h")
    E(f"buffer_load_dwordx2 {vr(cG+8,2)}, v{cXa}, {WSR}, s{sQ0B} offen offset:2560 sc1")
    E("s_waitcnt vmcnt(0)")
    E(f"v_cmp_ne_u32 vcc, s{sTAG}, v{cG+9}")
    E(f"s_cbranch_vccz L_{tag}_done")
    spin_check(f"L_{tag}_h")
    sec(home)
    L(f"L_{tag}_done")
    E(f"v_mov_b32 v{cT+2}, {FL_LDS}")
    E(f"v_mov_b32 v{cT+3}, s{sMODE}")
    E(f"ds_write_b32 v{cT+2}, v{cT+3}")

L(f"{NAME}_kernel")
E("s_cmp_ge_u32 s2, 256")
E("s_cbranch_scc1 L_exit")
E("s_load_dwordx16 s[8:23], s[0:1], 0")
E("s_load_dwordx8 s[24:31], s[0:1], 64")
if PROF:
    E(f"v_mov_b32 v{V_STAMP}, 0")
    E(f"s_memrealtime s[{sST}:{sST+1}]")
if AMP: E("s_memrealtime s[86:87]")
E("s_getpc_b64 s[92:93]")
E("v_lshrrev_b32 v1, 6, v0")
E(f"s_and_b32 s{sG}, s2, 7")
E(f"v_readfirstlane_b32 s{sWV}, v1")
E(f"s_lshr_b32 s{sJ}, s2, 3")
E("v_and_b32 v1, 63, v0")
if CPF:
    E("s_and_b32 s92, s92, 0xffffff00")
    E("v_lshlrev_b32 v4, 7, v1")
    E("v_add_u32 v5, 0x2000, v4")
    E(f"v_min_u32 v5, L_code_end-{NAME}_kernel-4, v5")
    E(f"s_cmp_lg_u32 s{sWV}, 7")
    E("s_cbranch_scc1 L_nocpf")
    E("global_load_dword v239, v4, s[92:93]")
    E("global_load_dword v239, v5, s[92:93]")
    L("L_nocpf")
E("v_and_b32 v2, 15, v0")
E("v_lshrrev_b32 v3, 4, v1")
E(f"s_mov_b32 s{sSPIN}, {SPIN0}")
E(f"s_mov_b32 s{sLAY}, 0")
E(f"s_lshl_b32 s{sLOC}, s{sG}, 12")
E(f"s_lshl_b32 s{sPoff}, s{sG}, 14")
E(f"s_add_u32 s{sPoff}, s{sPoff}, {W_P}")
E(f"s_add_u32 s{sQ0}, s{sLOC}, {W_Q0}")
E(f"s_add_u32 s{sQ0B}, s{sQ0}, {W_Q0B}")
E("v_lshrrev_b32 v5, 3, v1")
E("v_and_b32 v6, 7, v1")
E("v_lshlrev_b32 v4, 13, v5")
E("v_lshl_add_u32 v4, v6, 7, v4")
E(f"s_lshl_b32 s{sT0}, s{sJ}, 17")
E(f"s_lshl_b32 s{sT1}, s{sG}, 10")
E(f"s_add_u32 s{sT0}, s{sT0}, s{sT1}")
E(f"s_sub_u32 s{sT1}, s{sWV}, 1")
E(f"s_lshl_b32 s{sT2}, s{sT1}, 16")
E(f"s_add_u32 s{sT0}, s{sT0}, s{sT2}")
E(f"s_mov_b32 s{sT2}, {W_EP}")
E("v_mov_b32 v7, 0")
for r, rec in ((R_WS, WS_REC if PROF else WS_USED), (R_A, 65536), (R_B, 65536), (R_C, 4194304)):
    E(f"s_mov_b32 s{r+2}, {rec}")
    E(f"s_mov_b32 s{r+3}, 0x00020000")
E(f"v_mov_b32 v{cA}, 0")
E(f"v_lshlrev_b32 v{cL16}, 4, v1")
E(f"s_lshl_b32 s{sPe}, s{sG}, 24")
E(f"s_lshl_b32 s{sT3}, s{sJ}, 16")
E(f"s_add_u32 s{sPe}, s{sPe}, s{sT3}")
E(f"s_add_u32 s{sPe}, s{sPe}, {61440*256}")
E("v_xor_b32 v8, v2, v3")
E("v_lshlrev_b32 v8, 4, v8")
E("v_lshl_add_u32 v8, v3, 8, v8")
E("v_lshlrev_b32 v5, 1, v3")
E("v_xor_b32 v5, v2, v5")
E("v_lshlrev_b32 v5, 4, v5")
E("v_lshl_add_u32 v5, v3, 8, v5")
E(f"s_add_u32 s{sC1}, s{sJ}, s{sG}")
E(f"s_cmp_lt_u32 s{sT1}, 2")
E("s_waitcnt lgkmcnt(0)")
E(f"s_mov_b32 s{R_C}, s{sWQ}")
E(f"s_mov_b32 s{R_C+1}, s{sWQ+1}")
E("s_cbranch_scc0 L_notouch")
if TQ: E(f"buffer_load_dword v240, v4, s[{R_C}:{R_C+3}], s{sT0} offen{NTQ}")
L("L_notouch")
if AMP == "xa":
    E("s_memrealtime s[88:89]")
    E("s_waitcnt lgkmcnt(0)")
E(f"s_mov_b32 s{R_WS}, s{sWS}")
E(f"s_mov_b32 s{R_WS+1}, s{sWS+1}")
E(f"buffer_load_dword v241, v7, {WSR}, s{sT2} offen sc1")
if PROF: E(f"v_writelane_b32 v{V_STAMP}, s{sST}, 60")
E(f"s_add_u32 s{R_A}, s{sK}, s{sPe}")
E(f"s_addc_u32 s{R_A+1}, s{sK+1}, 0")
E(f"s_add_u32 s{R_B}, s{sV}, s{sPe}")
E(f"s_addc_u32 s{R_B+1}, s{sV+1}, 0")
E(f"s_cmp_ge_u32 s{sJ}, 16")
E("s_cbranch_scc1 L_D_init")

E(f"s_cmp_eq_u32 s{sWV}, 4")
E("s_cbranch_scc1 L_A_ctl")
E(f"s_cmp_gt_u32 s{sWV}, 4")
E("s_cbranch_scc1 L_A_help")
if PRIO & 4: E("s_setprio 1")
E(f"s_lshl_b32 s{sT0}, s{sWV}, 14")
E(f"s_add_u32 s{sT3}, s{sC1}, 16")
L("L_A_kl")
E(f"s_and_b32 s{sT1}, s{sC1}, 15")
E(f"s_and_b32 s{sT2}, s{sT1}, 3")
E(f"s_lshl_b32 s{sT2}, s{sT2}, 6")
E(f"s_lshl_b32 s{sT1}, s{sT1}, 10")
E(f"s_add_u32 s{sT1}, s{sT1}, s{sT0}")
E(f"s_mov_b32 m0, s{sT1}")
E(f"v_xor_b32 v6, s{sT2}, v8")
E(f"s_waitcnt vmcnt({THR-1})")
E(f"buffer_load_dwordx4 v6, s[{R_A}:{R_A+3}], s{sT1} offen{NTK} lds")
E(f"s_add_u32 s{sC1}, s{sC1}, 1")
E(f"s_cmp_lt_u32 s{sC1}, s{sT3}")
E("s_cbranch_scc1 L_A_kl")
E("s_branch L_A_setup")
L("L_A_help")
if PRIO & 8: E("s_setprio 1")
E(f"s_sub_u32 s{sT0}, s{sWV}, 5")
E(f"s_lshl_b32 s{sC1}, s{sC1}, 2")
E(f"s_mov_b32 s{sT3}, 0")
THV1, NV1 = int(OPT.get("thv1", 0)), int(OPT.get("nv1", 15))
if THV1:
    L("L_A_vl1")
    E(f"s_add_u32 s{sT1}, s{sC1}, s{sT0}")
    E(f"s_and_b32 s{sT1}, s{sT1}, 63")
    E(f"s_and_b32 s{sT2}, s{sT1}, 1")
    E(f"s_lshl_b32 s{sT2}, s{sT2}, 7")
    E(f"s_lshl_b32 s{sT1}, s{sT1}, 10")
    E(f"s_add_u32 m0, s{sT1}, {V_LDS}")
    E(f"v_xor_b32 v6, s{sT2}, v5")
    E(f"s_waitcnt vmcnt({THV1-1})")
    E(f"buffer_load_dwordx4 v6, s[{R_B}:{R_B+3}], s{sT1} offen{NTV} lds")
    E(f"s_add_u32 s{sT0}, s{sT0}, 3")
    E(f"s_cmp_lt_u32 s{sT0}, {NV1}")
    E("s_cbranch_scc1 L_A_vl1")
L("L_A_vl")
E(f"s_add_u32 s{sT1}, s{sC1}, s{sT0}")
E(f"s_and_b32 s{sT1}, s{sT1}, 63")
E(f"s_and_b32 s{sT2}, s{sT1}, 1")
E(f"s_lshl_b32 s{sT2}, s{sT2}, 7")
E(f"s_lshl_b32 s{sT1}, s{sT1}, 10")
E(f"s_add_u32 m0, s{sT1}, {V_LDS}")
E(f"v_xor_b32 v6, s{sT2}, v5")
E(f"s_waitcnt vmcnt({THV-1})")
E(f"buffer_load_dwordx4 v6, s[{R_B}:{R_B+3}], s{sT1} offen{NTV} lds")
E(f"s_add_u32 s{sT0}, s{sT0}, 3")
E(f"s_cmp_lt_u32 s{sT0}, 64")
E("s_cbranch_scc1 L_A_vl")
stamp(1)
E("s_branch L_A_pf2")
sec("actl")
L("L_A_pf2")
E(f"s_mul_i32 s{sT1}, s{sG}, {224*1024}")
E(f"s_mul_i32 s{sT2}, s{sJ}, 14336")
E(f"s_add_u32 s{sT1}, s{sT1}, s{sT2}")
E(f"s_cmp_eq_u32 s{sWV}, 6")
E(f"s_cselect_b32 s{sT3}, {14336 if W2P else 0}, 0")
srd(R_C, sW2, f"s{sT1}", f"s{sT3}")
E(f"s_mov_b32 s{sT1}, 0")
E(f"s_mov_b32 s{sT2}, 8192")
E("v_lshlrev_b32 v6, 7, v1")
E(f"buffer_load_dword v240, v6, s[{R_C}:{R_C+3}], s{sT1} offen{NTT}")
E(f"buffer_load_dword v240, v6, s[{R_C}:{R_C+3}], s{sT2} offen{NTT}")
E("s_barrier")
E("s_waitcnt vmcnt(2)")
stamp(2)
ampx("xv", 5)
E("s_barrier")
stamp_flush(5, 2)
E("s_endpgm")
sec("a")
L("L_A_setup")
if PRIO & 1: E(f"s_setprio {2 if PRIO & 8 else 1}")
stamp(1)
KF, VF, QF, SC, PB, OD, OUTV, PF, STT = 16, 80, 144, 160, 176, 144, 176, 184, 216
T = 224
E("v_xor_b32 v4, v2, v3")
E("v_lshlrev_b32 v4, 4, v4")
E("v_lshl_add_u32 v4, v2, 8, v4")
E(f"v_add_u32 v4, s{sT0}, v4")
E("v_xor_b32 v5, 64, v4")
E("v_xor_b32 v6, 0x80, v4")
E("v_xor_b32 v7, 0xc0, v4")
E("v_and_b32 v15, 3, v2")
E("v_mul_u32_u24 v8, 320, v15")
E("v_lshl_add_u32 v8, v3, 4, v8")
E(f"v_add_u32 v8, {QS_LDS}, v8")
E("v_lshlrev_b32 v10, 4, v1")
E(f"v_add_u32 v10, {PX_LDS}, v10")
E(f"s_lshl_b32 s{sT1}, s{sWV}, 11")
E(f"v_add_u32 v9, s{sT1}, v10")
E("v_lshlrev_b32 v12, 5, v2")
E(f"v_add_u32 v12, {SX_LDS}, v12")
E(f"s_lshl_b32 s{sT1}, s{sWV}, 3")
E(f"v_add_u32 v11, s{sT1}, v12")
E("v_lshlrev_b32 v13, 12, v15")
E("v_lshl_add_u32 v13, v3, 3, v13")
E("v_bfe_u32 v14, v2, 2, 1")
E("v_lshl_add_u32 v13, v14, 5, v13")
E(f"s_lshl_b32 s{sT1}, s{sWV}, 6")
E(f"v_add_u32 v13, s{sT1}, v13")
E(f"v_cmp_eq_u32 s[{sMC_f}:{sMC_f+1}], 1, v14")
E(f"v_lshlrev_b32 v14, 7, v15")
E(f"v_lshrrev_b32 v{T}, 2, v2")
E(f"v_lshl_add_u32 v{T}, v3, 2, v{T}")
E(f"v_and_b32 v{T+1}, 7, v{T}")
E(f"s_lshl_b32 s{sT1}, s{sWV}, 1")
E(f"v_xor_b32 v{T+1}, s{sT1}, v{T+1}")
E(f"v_lshlrev_b32 v{T}, 8, v{T}")
E(f"v_lshl_add_u32 v{T}, v{T+1}, 5, v{T}")
E(f"v_lshl_add_u32 v{T}, v15, 3, v{T}")
E(f"v_add_u32 v{T}, {V_LDS}, v{T}")
E(f"v_xor_b32 v{T+1}, 32, v{T}")
E(f"s_lshl_b32 s{sT1}, s{sJ}, 8")
E(f"s_add_u32 s{sPoff}, s{sPoff}, s{sT1}")
E(f"s_and_b32 s{sT1}, s{sJ}, 3")
E(f"s_lshl_b32 s{sT1}, s{sT1}, 5")
E(f"s_lshr_b32 s{sT2}, s{sJ}, 2")
E(f"s_lshl_b32 s{sT2}, s{sT2}, 3")
E(f"s_add_u32 s{sT1}, s{sT1}, s{sT2}")
E(f"s_add_u32 s{sPub}, s{sT1}, {W_ST}")
E(f"s_mov_b32 s{sC1}, {f32((128**-0.5)*math.log2(math.e))}")
E(f"s_mov_b32 s{sFFFE}, 0xfffefffe")
E(f"v_mov_b32 v{T+2}, {FL_LDS}")
E(f"v_mov_b32 v{T+8}, s{sC1}")
E(f"s_cmp_eq_u32 s{sWV}, 0")
E(f"s_cselect_b32 s{sC2}, 15, 0")
E(f"s_mov_b32 s{sMB_f+1}, 0")
E(f"s_mov_b32 s{sMB_s+1}, 0")
E("s_waitcnt vmcnt(0)")
stamp(2)
ampx("xk", 0)
for e in range(4):
    for s in range(4):
        E(f"ds_read_b128 {vr(KF+(e*4+s)*4,4)}, v{4+s} offset:{4096*e}")
L("L_A_b1")
mark("a")
E("s_barrier")
for s in range(4):
    E(f"ds_read_b128 {vr(QF+4*s,4)}, v8 offset:{64*s}")
stamp(3, True)
def qk(e, s):
    c = "0" if s == 0 else vr(SC+4*e,4)
    E(f"v_mfma_f32_16x16x32_bf16 {vr(SC+4*e,4)}, {vr(KF+(e*4+s)*4,4)}, {vr(QF+4*s,4)}, {c}")
for s in range(4):
    E(f"s_waitcnt lgkmcnt({3-s})")
    qk(0, s); qk(1, s)
for s in range(4):
    qk(2, s); qk(3, s)
E(f"v_max3_f32 v{T+4}, v{SC}, v{SC+1}, v{SC+2}")
E(f"v_max3_f32 v{T+5}, v{SC+3}, v{SC+4}, v{SC+5}")
E(f"v_max3_f32 v{T+4}, v{T+4}, v{SC+6}, v{SC+7}")
E("s_nop 3")
E(f"v_max3_f32 v{T+5}, v{T+5}, v{SC+8}, v{SC+9}")
E(f"v_max3_f32 v{T+4}, v{T+4}, v{SC+10}, v{SC+11}")
E(f"v_max3_f32 v{T+5}, v{T+5}, v{SC+12}, v{SC+13}")
E(f"v_max3_f32 v{T+4}, v{T+4}, v{SC+14}, v{SC+15}")
E(f"v_max_f32 v{T+4}, v{T+4}, v{T+5}")
E(f"v_mov_b32 v{T+5}, v{T+4}")
E("s_nop 1")
E(f"v_permlane16_swap_b32 v{T+4}, v{T+5}")
E(f"v_max_f32 v{T+4}, v{T+4}, v{T+5}")
E(f"v_mov_b32 v{T+5}, v{T+4}")
E("s_nop 1")
E(f"v_permlane32_swap_b32 v{T+4}, v{T+5}")
E(f"v_max_f32 v{T+4}, v{T+4}, v{T+5}")
E(f"v_mul_f32 v{T+6}, s{sC1}, v{T+4}")
for i in range(8):
    E(f"v_pk_fma_f32 {vr(SC+2*i,2)}, {vr(SC+2*i,2)}, {vr(T+8,2)}, {vr(T+6,2)} op_sel_hi:[1,0,0] neg_lo:[0,0,1] neg_hi:[0,0,1]")
for i in range(8):
    E(f"v_exp_f32 v{SC+i}, v{SC+i}")
E(f"v_exp_f32 v{SC+8}, v{SC+8}")
for i in range(4):
    E(f"v_cvt_pk_bf16_f32 v{PB+i}, v{SC+2*i}, v{SC+2*i+1}")
E(f"ds_write_b128 v9, {vr(PB,4)}")
for i in range(9, 16):
    E(f"v_exp_f32 v{SC+i}, v{SC+i}")
E(f"v_add_f32 v{T+7}, v{SC}, v{SC+1}")
for i in range(4, 8):
    E(f"v_cvt_pk_bf16_f32 v{PB+i}, v{SC+2*i}, v{SC+2*i+1}")
E(f"ds_write_b128 v9, {vr(PB+4,4)} offset:1024")
for i in range(4):
    E(f"v_pk_add_f32 {vr(SC+2+ 0,2) if False else vr(SC+4*i,2)}, {vr(SC+4*i,2)}, {vr(SC+4*i+2,2)}")
E(f"v_pk_add_f32 {vr(SC,2)}, {vr(SC,2)}, {vr(SC+4,2)}")
E(f"v_pk_add_f32 {vr(SC+8,2)}, {vr(SC+8,2)}, {vr(SC+12,2)}")
E(f"v_pk_add_f32 {vr(SC,2)}, {vr(SC,2)}, {vr(SC+8,2)}")
E(f"v_add_f32 v{T+7}, v{SC}, v{SC+1}")
E(f"v_mov_b32 v{T+5}, v{T+7}")
E("s_nop 1")
E(f"v_permlane16_swap_b32 v{T+7}, v{T+5}")
E(f"v_add_f32 v{T+7}, v{T+7}, v{T+5}")
E(f"v_mov_b32 v{T+5}, v{T+7}")
E("s_nop 1")
E(f"v_permlane32_swap_b32 v{T+7}, v{T+5}")
E(f"v_add_f32 v{T+7}, v{T+7}, v{T+5}")
E(f"ds_write_b64 v11, {vr(T+6,2)}")
stamp(4, True)
mark("a")
E("s_waitcnt lgkmcnt(0)")
E("s_barrier")
ampx("xb", 0)
E(f"ds_read_b32 v{T+3}, v{T+2}")
for b in range(2):
    E(f"ds_read_b128 {vr(STT+4*b,4)}, v12 offset:{16*b}")
stamp(5, True)
F = STT
def pv(first):
    def reads(u):
        E(f"ds_read_b128 {vr(PF+4*u,4)}, v10 offset:{1024*u}")
        if first:
            for tp in range(2):
                for e in range(2):
                    E(f"ds_read_b64_tr_b16 {vr(VF+(tp*8+u)*4+2*e,2)}, v{T+tp} offset:{(32*u+16*e)*256}")
    ahead = 2 if first else 8
    per_u = 5 if first else 1
    for u in range(ahead): reads(u)
    E(f"s_waitcnt lgkmcnt({ahead*per_u})")
    va = [f"v_max3_f32 v{T+4}, v{STT}, v{STT+2}, v{STT+4}", f"v_max_f32 v{T+6}, v{T+4}, v{STT+6}"]
    va += [f"v_sub_f32 v{F+2*b}, v{STT+2*b}, v{T+6}" for b in range(4)]
    va += [f"v_exp_f32 v{F+2*b}, v{F+2*b}" for b in range(4)]
    va += [f"v_mul_f32 v{T+7}, v{F}, v{STT+1}"] + [f"v_fmac_f32 v{T+7}, v{F+2*b}, v{STT+2*b+1}" for b in range(1, 4)]
    E(f"v_readfirstlane_b32 s{sMODE}, v{T+3}")
    for x in va[:2]: E(x)
    sa = [f"s_cmp_eq_u32 s{sMODE}, 1", f"s_cselect_b32 s{sMB_f}, s{sC2}, 0", f"s_cselect_b32 s{sMB_s}, 0, s{sC2}",
          f"s_cselect_b32 s{sMA_f}, 0x00ff00ff, 0", f"s_cselect_b32 s{sMA_f+1}, 0x00ff00ff, 0", f"s_cselect_b32 s{sMA_s}, 0, 0x00ff00ff",
          f"s_cselect_b32 s{sMA_s+1}, 0, 0x00ff00ff", f"s_cselect_b32 s{sT2}, 0, {ALT}", f"s_add_u32 s{sPe}, s{sPoff}, s{sT2}",
          f"s_add_u32 s{sT2}, s{sLOC}, s{sT2}", f"s_add_u32 s{sT2}, s{sT2}, s{sPub}"]
    k = 2
    for u in range(8):
        if u + ahead < 8: reads(u + ahead)
        E(f"s_waitcnt lgkmcnt({(min(8, u + ahead + 1) - u - 1) * per_u})")
        for tp in range(2):
            d = vr(OD+(tp*4+u//2)*4,4)
            E(f"v_mfma_f32_16x16x32_bf16 {d}, {vr(VF+(tp*8+u)*4,4)}, {vr(PF+4*u,4)}, {'0' if u % 2 == 0 else d}")
            if k < len(va): E(va[k]); k += 1
            if sa and u >= 1: E(sa.pop(0)); E(sa.pop(0)) if sa else None
        if u == 5:
            assert k == len(va)
            E(f"v_min_u32 v{T+6}, -2, v{T+6}")
            E(f"v_min_u32 v{T+7}, -2, v{T+7}")
            pub2("buffer_store_dwordx2", vr(T+6,2), 14, sT2, sMB_f, sMB_s)
E(f"s_cmp_lg_u32 s{sLAY}, 0")
E("s_cbranch_scc1 L_A_havev")
pv(True)
E("s_branch L_A_comb")
L("L_A_havev")
pv(False)
L("L_A_comb")
def cb(b):
    for tp in range(2):
        for h in range(2):
            o = vr(OUTV+4*tp+2*h,2)
            if b == 0: E(f"v_pk_mul_f32 {o}, {vr(OD+tp*16+2*h,2)}, {vr(F,2)} op_sel_hi:[1,0]")
            else: E(f"v_pk_fma_f32 {o}, {vr(OD+(tp*4+b)*4+2*h,2)}, {vr(F+2*b,2)}, {o} op_sel_hi:[1,0,1]")
for b in range(4): cb(b)
for r in range(4):
    E(f"v_cndmask_b32 v{OUTV+r}, v{OUTV+r}, v{OUTV+4+r}, s[{sMC_f}:{sMC_f+1}]")
E(f"v_cvt_pk_bf16_f32 v{OUTV}, v{OUTV}, v{OUTV+1}")
E(f"v_cvt_pk_bf16_f32 v{OUTV+1}, v{OUTV+2}, v{OUTV+3}")
E(f"v_pk_min_u16 v{OUTV}, v{OUTV}, s{sFFFE}")
E(f"v_pk_min_u16 v{OUTV+1}, v{OUTV+1}, s{sFFFE}")
pub2("buffer_store_dwordx2", vr(OUTV,2), 13, sPe, sMA_f, sMA_s)
stamp(6, True)
ampx("xp", 0)
E(f"s_add_u32 s{sPoff}, s{sPoff}, {LS}")
E(f"s_add_u32 s{sLOC}, s{sLOC}, {LS}")
E(f"s_add_u32 s{sLAY}, s{sLAY}, 1")
E(f"s_cmp_lt_u32 s{sLAY}, 2")
E("s_cbranch_scc1 L_A_b1")
stamp_flush(0, 0, (int(OPT.get("dbg", 0)), 36, [60, 2, 3, 5, 6, 19, 22]))
E("s_endpgm")
sec("actl")
L("L_A_ctl")
E("s_waitcnt vmcnt(0)")
E(f"v_readfirstlane_b32 s{sTAG}, v241")
E("s_nop 3")
E(f"s_add_u32 s{sTAG}, s{sTAG}, 1")
ampx("xe", 4)
ampx("xs", 4)
ampx("xa", 4)
xc_publish()
warm("a")
E(f"v_lshrrev_b32 v{cT+5}, 5, v1")
E(f"v_lshlrev_b32 v{cT+5}, 6, v{cT+5}")
E(f"v_lshl_add_u32 v{cT+5}, v1, 3, v{cT+5}")
E(f"v_add_u32 v{cT+5}, {QS_LDS}, v{cT+5}")
first_gather("aq0", True, None)
stamp(2)
ampx("xq", 4)
E("s_waitcnt lgkmcnt(0)")
E("s_barrier")
first_gather("ax", False, None, armed=True)
stamp(3)
E("s_waitcnt lgkmcnt(0)")
E(f"s_cmp_eq_u32 s{sMODE}, 1")
E(f"s_cselect_b32 s{sT2}, 0, {ALT}")
E(f"s_add_u32 s{sLe}, s{sLOC}, s{sT2}")
E(f"s_add_u32 s{sLe}, s{sLe}, {LS}")
E(f"v_lshl_add_u32 v{cT+2}, v3, 6, v{cL16}")
E(f"v_add_u32 v{cT+2}, {QS_LDS}, v{cT+2}")
E("s_barrier")
E("s_waitcnt vmcnt(0)")
if TP & 4:
    E(f"s_sub_u32 s{sT1}, s{sLe}, {LS}")
    gather1("ax1", cG+4, cL16, sT1, W_X1, cT, pd=1, slp=2*PSL)
arm(cG, 4)
gather1("aq", cG, cL16, sLe, W_Q, cT)
E(f"ds_write_b128 v{cT+2}, {vr(cG,4)}")
stamp(18)
E("s_waitcnt lgkmcnt(0)")
E("s_barrier")
stamp_flush(4, 1)
E("s_endpgm")

vL16, aXIO, aTA, aTB, aIN, aST, aP16, aPY, vONE, aOS, aXS = 4, 5, 6, 7, 8, 9, 10, 11, 12, 13, 14
SEL0, ONESB, XR, XN, XB, vT = 16, 24, 28, 36, 44, 48
TT = 49
vB1, vCS, aGX, vINV, vVAL = 15, 0, 249, 250, 252
GB, WA, ACC, WB = 64, 96, 160, 192
vST, CA, MK, vFLG = 224, 232, 236, 248
NACC = 8

retry_blocks = []
def gather_X(tag, soff, role, hook=None):
    def loads():
        for i in range(8):
            so = soff if i < 4 else sT0
            E(f"buffer_load_dwordx4 {vr(GB+4*i,4)}, v{aGX}, {WSR}, s{so} offen offset:{256*(i%4)}{GFL}")
    def sums(wait):
        for i in range(8):
            if wait is not None: E(f"s_waitcnt vmcnt({wait + 7 - i})")
            e, w = (i % 4) // 2, i % 2
            c = vr(XR+4*e,4) if i in (0, 2) else vr(XN+4*e,4)
            E(f"v_mfma_f32_16x16x32_bf16 {vr(XN+4*e,4)}, {vr(SEL0+4*w,4)}, {vr(GB+4*i,4)}, {c}")
    E(f"s_add_u32 s{sT0}, s{soff}, 4096")
    if ACK: E("s_waitcnt vmcnt(0)")
    elif GD: E(f"s_sleep {GD}")
    if PROF in (2, 9): stamp(9, True)
    for _ in range(GP - 1):
        loads()
        if GSL: E(f"s_sleep {GSL}")
    E(f"s_branch L_{tag}_again")
    L(f"L_{tag}_nan")
    E(f"s_sub_u32 s{sSPIN}, s{sSPIN}, 1")
    E("s_cbranch_scc1 L_exit")
    E(f"s_and_b32 s{sT1}, s{sSPIN}, 15")
    E(f"s_cbranch_scc0 L_{tag}_retry")
    if GSL: E(f"s_sleep {GSL}")
    L(f"L_{tag}_again")
    loads()
    if hook: hook()
    mark(role)
    sums(8 * (GP - 1))
    E("s_nop 6")
    E(f"v_cmp_u_f32 vcc, v{XN}, v{XN}")
    E(f"v_cmp_u_f32 s[{sS1}:{sS1+1}], v{XN+4}, v{XN+4}")
    for d in range(4):
        E(f"v_cvt_pk_bf16_f32 v{XB+d}, v{XN+2*d}, v{XN+2*d+1}")
    E(f"s_or_b64 vcc, vcc, s[{sS1}:{sS1+1}]")
    E(f"s_cbranch_vccnz L_{tag}_nan")
    L(f"L_{tag}_ok")
    if PROF in (2, 9):
        stamp(11, True)
        E(f"s_mov_b32 s{sST}, s{sSPIN}")
    def blk():
        L(f"L_{tag}_retry")
        for i in range(16): E(f"v_pk_max_u16 v{ACC+i}, v{GB+2*i}, v{GB+2*i+1}")
        for i in range(8): E(f"v_pk_max_u16 v{ACC+i}, v{ACC+2*i}, v{ACC+2*i+1}")
        for i in range(4): E(f"v_pk_max_u16 v{ACC+i}, v{ACC+2*i}, v{ACC+2*i+1}")
        chk_bf16(ACC, TT)
        E(f"s_cbranch_vccnz L_{tag}_again")
        sums(None)
        E("s_nop 7")
        for d in range(4):
            E(f"v_cvt_pk_bf16_f32 v{XB+d}, v{XN+2*d}, v{XN+2*d+1}")
        E(f"s_branch L_{tag}_ok")
    retry_blocks.append(blk)

def relay_X(tag, soff, pre):
    E(f"v_mov_b32 v{vT}, 0")
    E(f"s_cmp_lg_u32 s{sWV}, 0")
    E(f"s_cbranch_scc1 L_{tag}_other")
    pre()
    gather_X(tag, soff, "d2")
    E(f"ds_write_b128 v{aXS}, {vr(XB,4)}")
    post = f"L_{tag}_join"
    E("s_waitcnt lgkmcnt(0)")
    E("s_barrier")
    E(f"s_branch {post}")
    L(f"L_{tag}_other")
    E("s_waitcnt vmcnt(0)")
    E("s_barrier")
    E(f"ds_read_b128 {vr(XB,4)}, v{aXS}")
    E("s_waitcnt lgkmcnt(0)")
    L(post)

def unpack_resid(src):
    for d in range(4):
        E(f"v_lshlrev_b32 v{XR+2*d}, 16, v{src+d}")
        E(f"v_and_b32 v{XR+2*d+1}, 0xffff0000, v{src+d}")

def matvec(nsteps, A, W, fillers, rows=None, per=PER, waits=False):
    if rows is None:
        rows = [(1 << G, 0xf, list(range(4*G, min(4*G+4, nsteps)))) for G in range((nsteps + 3) // 4)]
    acc = lambda s_: ACC + 4*(rank[s_] % NACC)
    order = [x for x in range(nsteps) if not any(x == st_[-1] for _, _, st_ in rows)] + [st_[-1] for _, _, st_ in rows]
    if waits or not REORD: order = list(range(nsteps))
    rank = {x: i for i, x in enumerate(order)}
    ext = []
    for (rm, bm, st_) in rows:
        dp = f"quad_perm:[0,1,2,3] row_mask:{hex(rm)} bank_mask:{hex(bm)}"
        a = lambda s_: f"v{acc(s_) + s_ % 4}"
        ext.append((st_[1], f"v_add_f32_dpp v{vT}, {a(st_[0])}, {a(st_[1])} {dp}"))
        for s_ in st_[2:]:
            ext.append((s_, f"v_add_f32_dpp v{vT}, {a(s_)}, v{vT} {dp}"))
    order = [x for x in range(nsteps) if not any(x == st_[-1] for _, _, st_ in rows)] + [st_[-1] for _, _, st_ in rows]
    if waits or not REORD: order = list(range(nsteps))
    rank = {x: i for i, x in enumerate(order)}
    ext.sort(key=lambda e: rank[e[0]])
    st = dict(pos=0, lastT=-1)
    pm = {}
    def put(x, n=1):
        E(x); st["pos"] += n
    def need(e):
        if e[0] not in pm: return 99
        return max(pm[e[0]] + 9 - st["pos"], st["lastT"] + 3 - st["pos"], 0)
    fl = list(fillers)
    for s_ in order:
        while ext and rank[ext[0][0]] <= rank[s_] - NACC + 1 and rank[s_] >= NACC:
            n = need(ext[0])
            if n: put(f"s_nop {n-1}", n)
            st["lastT"] = st["pos"]; put(ext.pop(0)[1])
        if waits and s_ >= 8 or waits and s_ == 0: put(f"s_waitcnt lgkmcnt({min(15, 30-2*s_)})")
        pm[s_] = st["pos"]
        put(f"v_mfma_f32_16x16x32_bf16 {vr(acc(s_),4)}, {vr(A,4)}, {vr(W+4*s_,4)}, 0")
        idle = 0
        for _ in range(per):
            if ext and need(ext[0]) - idle <= 0:
                if idle: put(f"s_nop {idle-1}", idle); idle = 0
                st["lastT"] = st["pos"]; put(ext.pop(0)[1])
            elif fl:
                if idle: put(f"s_nop {idle-1}", idle); idle = 0
                put(fl.pop(0))
            elif PAD and s_ != order[-1]: idle += 1
        if idle: put(f"s_nop {idle-1}", idle)
    while ext or fl:
        if ext and need(ext[0]) == 0:
            st["lastT"] = st["pos"]; put(ext.pop(0)[1])
        elif fl:
            put(fl.pop(0))
        else:
            n = need(ext[0]); put(f"s_nop {n-1}", n)

def stats_fillers():
    f = []
    for d in range(4):
        f.append(f"v_lshlrev_b32 v{XR+2*d}, 16, v{XB+d}")
        f.append(f"v_and_b32 v{XR+2*d+1}, 0xffff0000, v{XB+d}")
        if d == 0: f.append(f"v_readfirstlane_b32 s{sPIV}, v{XR}")
    D = XN
    for i in range(4):
        f.append(f"v_pk_add_f32 {vr(D+2*i,2)}, {vr(XR+2*i,2)}, s[{sPIV}:{sPIV+1}] op_sel_hi:[1,0] neg_lo:[0,1] neg_hi:[0,1]")
    a, b = TT+1, TT+3
    assert a % 2 == 0
    f.append(f"v_pk_add_f32 {vr(a,2)}, {vr(D,2)}, {vr(D+2,2)}")
    f.append(f"v_pk_mul_f32 {vr(b,2)}, {vr(D,2)}, {vr(D,2)}")
    for i in range(1, 4):
        f.append(f"v_pk_fma_f32 {vr(b,2)}, {vr(D+2*i,2)}, {vr(D+2*i,2)}, {vr(b,2)}")
        if i > 1: f.append(f"v_pk_add_f32 {vr(a,2)}, {vr(a,2)}, {vr(D+2*i,2)}")
    f.append(f"v_add_f32 v{b}, v{b}, v{b+1}")
    f.append(f"v_add_f32 v{a}, v{a}, v{a+1}")
    f.append("s_nop 0")
    for dp in ("quad_perm:[1,0,3,2] row_mask:0xf", "quad_perm:[2,3,0,1] row_mask:0xf", "row_half_mirror row_mask:0xf",
               "row_mirror row_mask:0xf", "row_bcast:15 row_mask:0xa", "row_bcast:31 row_mask:0xc"):
        f.append(f"v_add_f32_dpp v{b}, v{b}, v{b} {dp} bank_mask:0xf")
        f.append(f"v_add_f32_dpp v{a}, v{a}, v{a} {dp} bank_mask:0xf")
        f.append("s_nop 0")
    f.append(f"v_readlane_b32 s{sS2}, v{b}, 63")
    f.append(f"v_readlane_b32 s{sS1}, v{a}, 63")
    f.append(f"v_fma_f32 v{TT+3}, s{sS2}, v{vINV}, v{vINV+1}" if False else "s_nop 0")
    f.append(f"v_fma_f32 v{TT+3}, s{sS2}, v{vINV}, v{vINV+1}")
    f.append(f"v_mul_f32 v{TT+2}, s{sS1}, v{vINV}")
    f.append(f"v_fma_f32 v{TT+3}, -v{TT+2}, v{TT+2}, v{TT+3}")
    f.append(f"v_max_f32 v{TT+3}, v{vINV+1}, v{TT+3}")
    f.append(f"v_rsq_f32 v{TT+3}, v{TT+3}")
    f.append(f"v_add_f32 v{TT+2}, s{sPIV}, v{TT+2}")
    return f

def xgroup_sum(fold8=False, plain=False):
    if fold8: E(f"v_and_b32 v{vT}, v{vVAL}, v{vT}")
    E(f"v_mov_b32 v{TT+5}, v{vT}")
    E("s_nop 1")
    E(f"v_permlane16_swap_b32 v{vT}, v{TT+5}")
    E(f"v_add_f32 v{vT}, v{vT}, v{TT+5}")
    E(f"v_mov_b32 v{TT+5}, v{vT}")
    E("s_nop 1")
    E(f"v_permlane32_swap_b32 v{vT}, v{TT+5}")
    E(f"v_add_f32 v{vT}, v{vT}, v{TT+5}")
    if fold8:
        E("s_nop 1")
        E(f"v_add_f32_dpp v{vT}, v{vT}, v{vT} row_ror:8 row_mask:0xf bank_mask:0xf")
    if plain: return
    E(f"v_fma_f32 v{vT}, -v{TT+2}, v{vCS}, v{vT}")
    E(f"v_mul_f32 v{vT}, v{vT}, v{TT+3}")

def y_publish():
    xgroup_sum(plain=True)
    E("s_nop 1")
    E(f"v_mov_b32_dpp v{TT+5}, v{vT} quad_perm:[1,1,3,3] row_mask:0xf bank_mask:0xf")
    E("s_mov_b64 exec, 0x5555")
    E(f"v_cvt_pk_bf16_f32 v{vT}, v{vT}, v{TT+5}")
    E(f"v_pk_min_u16 v{vT}, v{vT}, s{sFFFE}")
    E(f"buffer_store_dword v{vT}, v{aP16}, {WSR}, s{sPubG} offen{SFL}")
    E("s_mov_b64 exec, -1")

def pub_resid(off):
    for d in range(4): E(f"v_pk_min_u16 v{TT+7+d}, v{XB+d}, s{sFFFE}")
    pub2("buffer_store_dwordx4", vr(TT+7,4), vL16, sLOC, sMB_f, sMB_s, off)

def read_mode(lo_a, pj=0):
    E(f"v_mov_b32 v{TT}, {FL_LDS}")
    E(f"ds_read_b32 v{TT+1}, v{TT}")
    E("s_waitcnt lgkmcnt(0)")
    E(f"v_readfirstlane_b32 s{sMODE}, v{TT+1}")
    E(f"s_cmp_eq_u32 s{sPJ}, {pj}")
    E(f"s_cselect_b32 s{sT1}, -1, 0")
    E("s_nop 2")
    E(f"s_cmp_eq_u32 s{sMODE}, 1")
    masks(sMA_f, sMA_s, lo_a, "0")
    masks(sMB_f, sMB_s, f"s{sT1}", f"s{sT1}")
    E(f"s_cselect_b32 s{sT1}, 0, {ALT}")
    for s_ in (sLOC, sPoff, sPub):
        E(f"s_add_u32 s{s_}, s{s_}, s{sT1}")

sec("entry")
L("L_D_init")
ROLE[0] = "d"
E(f"s_and_b32 s{sC}, s{sJ}, 7")
E(f"s_lshl_b32 s{sPJ}, s{sC}, 2")
E(f"s_add_u32 s{sPJ}, s{sPJ}, s{sWV}")
E("v_lshrrev_b32 v242, 3, v1")
E("v_and_b32 v243, 7, v1")
def v_prefetch():
    if not VPF: return
    E(f"s_lshl_b32 s{sS2}, s{sG}, 24")
    E(f"s_add_u32 s{sS2}, s{sS2}, {61440*256}")
    srd(R_A, sV, f"s{sS2}", 1 << 20)
    E(f"s_lshl_b32 s{sS1}, s{sC}, 1")
    E(f"s_lshr_b32 s{sS2}, s{sWV}, 2")
    E(f"s_add_u32 s{sS1}, s{sS1}, s{sS2}")
    E(f"s_add_u32 s{sS2}, s{sS1}, s{sG}")
    E(f"s_lshl_b32 s{sS2}, s{sS2}, 2")
    E(f"s_and_b32 s{sT0}, s{sWV}, 3")
    E(f"s_lshl_b32 s{sT0}, s{sT0}, 3")
    E(f"s_add_u32 s{sS2}, s{sS2}, s{sT0}")
    E(f"s_add_u32 s{sS2}, s{sS2}, 32")
    E(f"v_add_u32 v238, s{sS2}, v242")
    E("v_and_b32 v238, 63, v238")
    E("v_lshlrev_b32 v238, 10, v238")
    E("v_lshl_add_u32 v238, v243, 7, v238")
    E(f"s_lshl_b32 s{sS1}, s{sS1}, 16")
    E(f"buffer_load_dword v255, v238, s[{R_A}:{R_A+3}], s{sS1} offen{NTV}")
def wo_issue():
    E(f"s_lshl_b32 s{sT0}, s{sG}, 19")
    E(f"s_lshl_b32 s{sT1}, s{sC}, 7")
    E(f"s_add_u32 s{sT0}, s{sT0}, s{sT1}")
    E(f"s_sub_u32 s{sT3}, {4194304}, s{sT0}")
    srd(R_A, sWO, f"s{sT0}", f"s{sT3}")
    E("v_and_b32 v245, 2, v242")
    E("v_xor_b32 v245, v245, v243")
    E(f"s_and_b32 s{sT1}, s{sWV}, 1")
    E(f"s_lshl_b32 s{sT1}, s{sT1}, 2")
    E(f"v_xor_b32 v245, s{sT1}, v245")
    E("v_lshlrev_b32 v244, 10, v242")
    E("v_lshl_add_u32 v244, v245, 4, v244")
    E(f"s_lshl_b32 s{sT0}, s{sWV}, 14")
    E(f"s_mov_b32 m0, s{sT0}")
    E(f"s_lshl_b32 s{sT1}, s{sWV}, 17")
    if LATE0 == 1: E("s_waitcnt vmcnt(0)")
    if LATE0 >= 2: E("s_barrier")
    E(f"s_add_u32 s{sT2}, s{sT1}, {16*8192}")
    L("L_D2_wol")
    if TDO: E(f"s_waitcnt vmcnt({TDO-1})")
    E(f"buffer_load_dwordx4 v244, s[{R_A}:{R_A+3}], s{sT1} offen{NTW} lds")
    E("s_add_u32 m0, m0, 1024")
    E(f"s_add_u32 s{sT1}, s{sT1}, 8192")
    E(f"s_cmp_lt_u32 s{sT1}, s{sT2}")
    E("s_cbranch_scc1 L_D2_wol")
def clear_global():
    for r in range(4): E(f"v_mov_b32 v{cG+r}, -1")
    E(f"s_mov_b32 s{sT1}, {LS}")
    E(f"v_lshrrev_b32 v{cT}, 3, v2")
    E(f"v_mul_lo_u32 v{cT}, v{cT}, s{sT1}")
    E(f"v_lshl_add_u32 v{cT}, v243, 4, v{cT}")
    E(f"v_lshl_add_u32 v{cT}, v3, 13, v{cT}")
    E(f"s_lshl_b32 s{sT1}, s{sG}, 10")
    E(f"s_lshl_b32 s{sT2}, s{sC}, 7")
    E(f"s_add_u32 s{sT1}, s{sT1}, s{sT2}")
    E(f"s_add_u32 s{sT1}, s{sT1}, {W_Y}")
    E("s_mov_b32 exec_hi, 0")
    E(f"buffer_store_dwordx4 {vr(cG,4)}, v{cT}, {WSR}, s{sT1} offen sc1")
    E("s_mov_b64 exec, -1")

def d2_clear(sc, alt):
    for r in range(4): E(f"v_mov_b32 v{cG+r}, -1")
    E(f"s_lshl_b32 s{sT1}, s{sC}, 11")
    E(f"s_add_u32 s{sT1}, s{sT1}, s{sPoff}")
    if alt: E(f"s_add_u32 s{sT1}, s{sT1}, {ALT}")
    E(f"s_add_u32 s{sT2}, s{sT1}, {LS}")
    for so in (sT1, sT2):
        for o in range(2):
            E(f"buffer_store_dwordx4 {vr(cG,4)}, v{cL16}, {WSR}, s{so} offen offset:{1024*o}{sc}")
    E(f"s_mov_b32 s{sT1}, {LS}")
    E(f"v_lshrrev_b32 v{cT}, 5, v1")
    E(f"v_mul_lo_u32 v{cT}, v{cT}, s{sT1}")
    E(f"v_and_b32 v{cT+1}, 31, v1")
    E(f"v_lshl_add_u32 v{cT}, v{cT+1}, 4, v{cT}")
    E(f"s_lshl_b32 s{sT1}, s{sC}, 9")
    E(f"s_add_u32 s{sT1}, s{sT1}, s{sLOC}")
    if alt: E(f"s_add_u32 s{sT1}, s{sT1}, {ALT}")
    E(f"buffer_store_dwordx4 {vr(cG,4)}, v{cT}, {WSR}, s{sT1} offen{sc}")
E(f"s_cmp_lt_u32 s{sJ}, 24")
E("s_cbranch_scc1 L_D_const")
E(f"s_cmp_lg_u32 s{sWV}, 4")
E("s_cbranch_scc1 L_D2_e1")
d2_clear("", False)
E("s_branch L_D2_init")
L("L_D2_e1")
E(f"s_cmp_lg_u32 s{sWV}, 5")
E("s_cbranch_scc1 L_D2_e2")
clear_global()
E("s_branch L_D2_init")
L("L_D2_e2")
E(f"s_cmp_ge_u32 s{sWV}, 4")
E("s_cbranch_scc1 L_D2_init")
if LATE0 == 0: wo_issue()
else:
    E(f"s_lshl_b32 s{sT0}, s{sG}, 19")
    srd(R_A, sWO, f"s{sT0}", 1 << 19)
    E(f"buffer_load_dword v255, v{cL16}, s[{R_A}:{R_A+3}], 0 offen")
sec("dinit")
L("L_D_const")
E("v_mov_b32 v245, 0")
E("v_mov_b32 v244, 0")
srd(R_B, sX, None, 1024)
E(f"v_lshrrev_b32 v{TT}, 1, v3")
E(f"v_and_b32 v{TT+1}, 1, v3")
E(f"v_lshlrev_b32 v{aXIO}, 8, v{TT}")
E(f"v_lshl_add_u32 v{aXIO}, v2, 4, v{aXIO}")
E(f"v_lshl_add_u32 v{aXIO}, v{TT+1}, 3, v{aXIO}")
E(f"buffer_load_dwordx2 {vr(XB,2)}, v{aXIO}, s[{R_B}:{R_B+3}], 0 offen")
E(f"buffer_load_dwordx2 {vr(XB+2,2)}, v{aXIO}, s[{R_B}:{R_B+3}], 0 offen offset:512")
E(f"v_lshlrev_b32 v{vL16}, 4, v1")
E(f"v_lshrrev_b32 v{TT+2}, 2, v2")
E(f"v_and_b32 v{TT+3}, 3, v2")
E(f"v_lshl_add_u32 v{TT+4}, v{TT}, 7, v{TT+2}")
E(f"v_lshl_add_u32 v{TT+4}, v{TT+1}, 2, v{TT+4}")
E(f"v_lshlrev_b32 v{aP16}, 1, v2")
E(f"v_lshrrev_b32 v{aPY}, 5, v1")
E(f"v_lshlrev_b32 v{aPY}, 4, v{aPY}")
E(f"v_add_u32 v{aXS}, {XS_LDS}, v{vL16}")
E(f"v_mov_b32 v{vONE}, 1.0")
for d in range(4): E(f"v_mov_b32 v{ONESB+d}, 0x3f803f80")
E(f"v_and_b32 v{TT+5}, 1, v2")
E(f"v_lshlrev_b32 v{TT+5}, 4, v{TT+5}")
E(f"v_mov_b32 v{TT+6}, 0x3f80")
E(f"v_lshlrev_b32 v{TT+6}, v{TT+5}, v{TT+6}")
E(f"v_lshrrev_b32 v{TT+7}, 1, v2")
E(f"v_lshlrev_b32 v{aGX}, 10, v3")
E(f"v_lshl_add_u32 v{aGX}, v2, 4, v{aGX}")
for d in range(8):
    E(f"v_cmp_eq_u32 vcc, {d}, v{TT+7}")
    E("s_nop 1")
    E(f"v_cndmask_b32 v{SEL0+d}, 0, v{TT+6}, vcc")
E(f"s_mov_b32 s{sFFFE}, 0xfffefffe")
E(f"v_mov_b32 v{vINV}, {f32(1/512)}")
E(f"v_mov_b32 v{vINV+1}, {f32(1e-5)}")
E(f"s_mov_b32 s{sC3}, {f32(-math.log2(math.e))}")
E(f"s_lshl_b32 s{sT1}, s{sPJ}, 5")
E(f"s_lshl_b32 s{sPubG}, s{sG}, 10")
E(f"s_add_u32 s{sPubG}, s{sPubG}, s{sT1}")
E(f"s_lshl_b32 s{sT2}, s{sWV}, 5")
E(f"s_cmp_ge_u32 s{sJ}, 24")
E("s_cbranch_scc1 L_D2_comp")

def ctl_head():
    E("s_waitcnt vmcnt(0)")
    E(f"v_readfirstlane_b32 s{sTAG}, v241")
    for r in range(4): E(f"v_mov_b32 v{cG+r}, -1")
    E(f"s_add_u32 s{sTAG}, s{sTAG}, 1")
E(f"s_lshl_b32 s{sT0}, s{sG}, 10")
E(f"s_lshl_b32 s{sT1}, s{sC}, 7")
E(f"s_add_u32 s{sT0}, s{sT0}, s{sT1}")
E(f"s_sub_u32 s{sT3}, {4194304}, s{sT0}")
srd(R_A, sWQ, f"s{sT0}", f"s{sT3}")
E("v_and_b32 v245, 6, v242")
E("v_xor_b32 v245, v245, v243")
E("v_lshlrev_b32 v244, 13, v242")
E("v_lshl_add_u32 v244, v245, 4, v244")
E(f"s_cmp_ge_u32 s{sWV}, 4")
E("s_cbranch_scc1 L_D1_help")
if PRIO & 2: E("s_setprio 1")
if TQ: E("s_waitcnt vmcnt(0)")
stamp(1)
E(f"s_lshl_b32 s{sT0}, s{sWV}, 14")
E(f"s_mov_b32 m0, s{sT0}")
E(f"s_lshl_b32 s{sT1}, s{sWV}, 20")
E(f"s_add_u32 s{sT3}, s{sT1}, {16*65536}")
L("L_D1_wql")
E(f"buffer_load_dwordx4 v244, s[{R_A}:{R_A+3}], s{sT1} offen{NTW} lds")
E("s_add_u32 m0, m0, 1024")
E(f"s_add_u32 s{sT1}, s{sT1}, 65536")
E(f"s_cmp_lt_u32 s{sT1}, s{sT3}")
E("s_cbranch_scc1 L_D1_wql")
sec("d1")
if VPF == 1: v_prefetch()
E(f"v_bfe_u32 v{TT+5}, v{TT+4}, 1, 2")
E(f"v_xor_b32 v{TT+5}, s{sWV}, v{TT+5}")
E(f"v_lshlrev_b32 v{aTA}, 7, v{TT+4}")
E(f"v_lshl_add_u32 v{aTA}, v{TT+3}, 3, v{aTA}")
E(f"v_lshl_add_u32 v{aTA}, v{TT+5}, 5, v{aTA}")
if not TQ: E("s_waitcnt vmcnt(16)")
E(f"v_lshl_add_u32 v{aTB}, v3, 3, v{TT+2}")
E(f"v_lshlrev_b32 v{aTB}, 7, v{aTB}")
E(f"v_lshl_add_u32 v{aTB}, v{TT+3}, 3, v{aTB}")
E(f"s_add_u32 s{sT2}, s{sT2}, {WB_LDS}")
E(f"v_add_u32 v{aTB}, s{sT2}, v{aTB}")
E(f"v_min_u32 v{aIN}, 6, v2")
E(f"v_lshlrev_b32 v{aIN}, 6, v{aIN}")
E(f"v_lshl_add_u32 v{aIN}, v3, 4, v{aIN}")
E(f"v_readfirstlane_b32 s{sTAG}, v241")
E(f"s_add_u32 s{sPubG}, s{sPubG}, {W_Z}")
E(f"s_mov_b32 s{sZoff}, {W_Z}")
E(f"s_lshl_b32 s{sT1}, s{sPJ}, 5")
E(f"s_add_u32 s{sPub}, s{sLOC}, s{sT1}")
srd(R_B, sOUT, None, 1024)
E(f"s_add_u32 s{sTAG}, s{sTAG}, 1")
for x in stats_fillers(): E(x)
for i in range(8): E(f"v_sub_f32 v{XN+i}, v{XR+i}, v{TT+2}")
for i in range(8): E(f"v_mul_f32 v{XN+i}, v{XN+i}, v{TT+3}")
for d in range(4): E(f"v_cvt_pk_bf16_f32 v{GB+d}, v{XN+2*d}, v{XN+2*d+1}")
E(f"v_mov_b32 v{vT}, 0")
D0 = GB + 12
E(f"v_mov_b32 v{D0+1}, s{sTAG}")
E(f"s_lshl_b32 s{sT1}, s{sPJ}, 6")
E(f"v_lshl_add_u32 v{TT+6}, v2, 2, s{sT1}")
E(f"s_waitcnt vmcnt({1 if VPF == 1 else 0})")
E("s_barrier")
amp("wq")
stamp(2)
for s in range(16):
    for e in range(2):
        E(f"ds_read_b64_tr_b16 {vr(WA+4*s+2*e,2)}, v{aTA} offset:{32768*e+1024*s}")
matvec(16, GB, WA, [], per=PN, waits=True)
xgroup_sum(plain=True)
E("s_nop 1")
E(f"v_mov_b32_dpp v{TT+5}, v{vT} quad_perm:[1,1,3,3] row_mask:0xf bank_mask:0xf")
E(f"v_cvt_pk_bf16_f32 v{D0}, v{vT}, v{TT+5}")
E("s_mov_b64 exec, 0x5555")
E(f"buffer_store_dwordx2 {vr(D0,2)}, v{TT+6}, {WSR}, s{sQ0} offen")
E("s_mov_b64 exec, -1")
stamp(3, True)
if VPF == 2: v_prefetch()
E(f"v_mov_b32 v{TT+7}, 0")
E(f"buffer_load_dword v{GB+20}, v{TT+7}, s[{R_B}:{R_B+3}], 0 offen")
for s in range(16):
    c = "0" if s == 0 else vr(CA,4)
    E(f"v_mfma_f32_16x16x32_bf16 {vr(CA,4)}, {vr(ONESB,4)}, {vr(WA+4*s,4)}, {c}")
E("s_nop 7")
E(f"v_mov_b32 v{vCS}, v{CA}")
E("s_barrier")
amp("st")
read_mode("0xffff")
E(f"s_mov_b32 s{sT1}, 0x5555")
E(f"s_cmp_eq_u32 s{sMODE}, 1")
E(f"s_cselect_b32 exec_lo, 0, s{sT1}")
E("s_mov_b32 exec_hi, 0")
E(f"buffer_store_dwordx2 {vr(D0,2)}, v{TT+6}, {WSR}, s{sQ0B} offen sc1")
E("s_mov_b64 exec, -1")
E("s_barrier")
for s in range(7):
    for e in range(2):
        E(f"ds_read_b64_tr_b16 {vr(WB+4*s+2*e,2)}, v{aTB} offset:{4096*s+512*e}")
E("s_waitcnt lgkmcnt(0)")
E("s_branch L_D1_act")
L("L_D1_q")
mark("d1")
matvec(16, XB, WA, stats_fillers())
xgroup_sum()
E(f"v_cvt_pk_bf16_f32 v{vT}, v{vT}, v{vT}")
E(f"v_min_u32 v{vT}, -2, v{vT}")
pub2("buffer_store_short", f"v{vT}", aP16, sPub, sMA_f, sMA_s, W_Q)
stamp(3, True)
pub_resid(W_X2)
L("L_D1_act")
mark("d1")
AIN = vST
arm(AIN, 4)
E(f"buffer_load_dwordx4 {vr(CA,4)}, v{vL16}, {WSR}, s{sLOC} offen offset:{W_X1} sc1")
E(f"v_mov_b32 v{vT}, 0")
if TP & 1:
    E(f"v_lshlrev_b32 v{TT+2}, 3, v1")
    L("L_D1_far")
    E(f"buffer_load_dword v{TT+3}, v{TT+2}, {WSR}, s{sLOC} offen offset:{W_ST} sc1")
    E("s_waitcnt vmcnt(0)")
    E(f"v_cmp_eq_u32 vcc, -1, v{TT+3}")
    E("s_cbranch_vccz L_D1_near")
    E(f"s_sleep {2*PSL}")
    spin_check("L_D1_far")
    L("L_D1_near")
gather1("ga", AIN, aIN, sLOC, W_ACT, TT)
amp("act")
stamp(4, True)
E(f"buffer_load_dwordx4 {vr(CA,4)}, v{vL16}, {WSR}, s{sLOC} offen offset:{W_X1} sc1")
matvec(7, AIN, WB, [], per=PN)
y_publish()
stamp(5, True)
E(f"s_add_u32 s{sLAY}, s{sLAY}, 1")
E(f"s_cmp_lt_u32 s{sLAY}, 2")
E("s_cbranch_scc1 L_D1_z")
E(f"s_cmp_lg_u32 s2, 128")
E("s_cbranch_scc1 L_D1_end")
E(f"s_cmp_lg_u32 s{sWV}, 0")
E("s_cbranch_scc1 L_D1_end")
L("L_D1_z")
mark("d1")
def pre_z():
    E("s_waitcnt vmcnt(1)")
    chk_bf16(CA, TT)
    E("s_cbranch_vccz L_gx1_have")
    gather1("gx1", CA, vL16, sLOC, W_X1, TT, pd=1, slp=0)
    L("L_gx1_have")
    unpack_resid(CA)
def relay_z():
    E(f"v_mov_b32 v{vT}, 0")
    E(f"s_cmp_lg_u32 s{sWV}, 0")
    E(f"s_cbranch_scc1 L_gz_other")
    pre_z()
    gather_X("gz", sZoff, "d1")
    E(f"s_cmp_eq_u32 s{sLAY}, 2")
    E("s_cbranch_scc1 L_D1_out")
    E(f"ds_write_b128 v{aXS}, {vr(XB,4)}")
    E("s_waitcnt lgkmcnt(0)")
    E("s_barrier")
    E(f"s_branch L_gz_join")
    L(f"L_gz_other")
    E("s_waitcnt vmcnt(0)")
    E("s_barrier")
    E(f"ds_read_b128 {vr(XB,4)}, v{aXS}")
    E("s_waitcnt lgkmcnt(0)")
    L("L_gz_join")
relay_z()
stamp(6)
for s_ in (sLOC, sPub, sPubG, sZoff):
    E(f"s_add_u32 s{s_}, s{s_}, {LS}")
E("s_branch L_D1_q")
L("L_D1_out")
E(f"buffer_store_dwordx2 {vr(XB,2)}, v{aXIO}, s[{R_B}:{R_B+3}], 0 offen")
E(f"buffer_store_dwordx2 {vr(XB+2,2)}, v{aXIO}, s[{R_B}:{R_B+3}], 0 offen offset:512")
E(f"v_mov_b32 v{TT}, s{sTAG}")
E(f"v_mov_b32 v{TT+1}, {W_EP}")
E("s_mov_b64 exec, 1")
E(f"buffer_store_dword v{TT}, v{TT+1}, {WSR}, 0 offen")
if AMP:
    E("s_memrealtime s[88:89]")
    E("s_waitcnt lgkmcnt(0)")
    if AMP == "end": E("s_mov_b32 s94, s88")
    E("s_sub_u32 s94, s94, s86")
    if AMP.startswith("x"):
        E(f"v_mov_b32 v253, {W_EP + 64}")
        E(f"buffer_load_dword v252, v253, {WSR}, 0 offen sc1")
        E("s_waitcnt vmcnt(0)")
        E("v_readfirstlane_b32 s94, v252")
        E("s_nop 3")
        E("s_sub_u32 s94, s94, s86")
        E("s_add_u32 s94, s94, 100")
        E("s_max_i32 s94, s94, 0")
    E("s_lshl_b32 s94, s94, 2")
    E("s_min_u32 s94, s94, 20000")
    E("s_add_u32 s94, s94, s88")
    L("L_amp_spin")
    E("s_memrealtime s[88:89]")
    E("s_waitcnt lgkmcnt(0)")
    E("s_sub_u32 s89, s94, s88")
    E("s_cmp_gt_i32 s89, 0")
    E("s_cbranch_scc1 L_amp_spin")
if PROF:
    stamp(7)
    E("s_waitcnt vmcnt(0)")
    stamp(8)
L("L_D1_end")
stamp_flush(0, 0, (128, 4, [60, 2, 3, 4, 6, 20, 8]))
E("s_endpgm")
sec("help")
L("L_D1_help")
E(f"s_mul_i32 s{sT0}, s{sG}, {224*1024}")
E(f"s_lshl_b32 s{sT1}, s{sC}, 7")
E(f"s_add_u32 s{sT0}, s{sT0}, s{sT1}")
srd(R_B, sW2, f"s{sT0}", 224*1024 - 896)
E("v_lshlrev_b32 v244, 10, v242")
E("v_lshl_add_u32 v244, v243, 4, v244")
E(f"s_cmp_eq_u32 s{sWV}, 4")
E("s_cbranch_scc1 L_D1_ctl")
if not W2P: E(f"buffer_load_dword v255, v244, s[{R_B}:{R_B+3}], 0 offen")
for u in range(3):
    E(f"s_cmp_lg_u32 s{sWV}, {5+u}")
    E(f"s_cbranch_scc1 L_D1_wm{u}")
    warm("d1", u, 3)
    L(f"L_D1_wm{u}")
E("s_branch L_D1_bq")
L("L_D1_ctl")
E(f"v_lshlrev_b32 v{cT}, 7, v2")
E(f"buffer_load_dword v240, v{cT}, {WSR}, s{sQ0} offen sc1")
ctl_head()
xc_publish()
L("L_D1_bq")
E("s_barrier")
v_prefetch()
E(f"s_cmp_lg_u32 s{sWV}, 4")
E("s_cbranch_scc1 L_D1_w2")
first_gather("d1x", False, None)
stamp(3)
E(f"v_lshlrev_b32 v{cT}, 3, v1")
E(f"s_cmp_eq_u32 s{sMODE}, 1")
E("s_cbranch_scc0 L_D1_b2")
L("L_D1_st")
E(f"buffer_load_dword v{cT+1}, v{cT}, {WSR}, s{sLOC} offen offset:{W_ST} sc1")
E("s_waitcnt vmcnt(0)")
E(f"v_cmp_ne_u32 vcc, -1, v{cT+1}")
E("s_cbranch_vccnz L_D1_b2")
E("s_sleep 8")
spin_check("L_D1_st")
L("L_D1_b2")
E("s_waitcnt lgkmcnt(0)")
L("L_D1_w2")
E("s_barrier")
E(f"s_sub_u32 s{sT0}, s{sWV}, 4")
E(f"s_mul_i32 s{sT1}, s{sT0}, 7168")
E(f"s_add_u32 m0, s{sT1}, {WB_LDS}")
E(f"s_mul_i32 s{sT1}, s{sT0}, {56*1024}")
for i in range(7):
    E(f"buffer_load_dwordx4 v244, s[{R_B}:{R_B+3}], s{sT1} offen{NTW} lds")
    if i < 6:
        E("s_add_u32 m0, m0, 1024")
        E(f"s_add_u32 s{sT1}, s{sT1}, 8192")
E("s_waitcnt vmcnt(0) lgkmcnt(0)")
stamp(4)
E("s_barrier")
stamp_flush(4, 1)
E("s_endpgm")

L("L_D2_init")
E(f"s_min_u32 s{sT1}, s{sC}, 6")
E(f"s_lshl_b32 s{sT1}, s{sT1}, 6")
E(f"s_mul_i32 s{sT0}, s{sG}, 448")
E(f"s_add_u32 s{sS1}, s{sT0}, s{sT1}")
E(f"s_sub_u32 s{sT3}, {1835008}, s{sS1}")
srd(R_B, sW1, f"s{sS1}", f"s{sT3}")
srd(R_C, sDBG, None, 256)
E(f"s_cmp_eq_u32 s{sWV}, 4")
E("s_cbranch_scc1 L_D2_ctl")
E(f"s_cmp_eq_u32 s{sWV}, 5")
E("s_cbranch_scc1 L_D2_flag")
E("v_lshrrev_b32 v245, 2, v1")
E("v_mul_u32_u24 v245, 3584, v245")
E("v_and_b32 v246, 3, v1")
E("v_and_b32 v247, 1, v3")
E("v_xor_b32 v246, v246, v247")
E("v_lshl_add_u32 v244, v246, 4, v245")
E("v_xor_b32 v246, 2, v246")
E("v_lshl_add_u32 v245, v246, 4, v245")
E(f"s_sub_u32 s{sT0}, s{sWV}, 6")
E(f"s_lshl_b32 s{sT1}, s{sT0}, 14")
E(f"s_add_u32 m0, s{sT1}, {WB_LDS}")
E(f"s_mul_i32 s{sT1}, s{sT0}, {256*3584}")
if W1L == 2:
    E(f"buffer_load_dword v255, v244, s[{R_B}:{R_B+3}], s{sT1} offen")
    E(f"s_add_u32 s{sT2}, s{sT1}, {240*3584}")
    E(f"buffer_load_dword v255, v244, s[{R_B}:{R_B+3}], s{sT2} offen")
for u in range(2):
    E(f"s_cmp_lg_u32 s{sWV}, {6+u}")
    E(f"s_cbranch_scc1 L_D2_wm{u}")
    warm("d2", u, 2)
    L(f"L_D2_wm{u}")
if LATE0 >= 2 or W1L == 1: E("s_barrier")
if W1L == 2:
    E("s_barrier")
    E(f"v_mov_b32 v{cT}, {FL_LDS}")
    E(f"ds_read_b32 v{cT+1}, v{cT}")
    E(f"v_lshlrev_b32 v{cT}, 3, v1")
    E("s_waitcnt lgkmcnt(0)")
    E(f"v_cmp_ne_u32 vcc, 1, v{cT+1}")
    E("s_cbranch_vccnz L_D2_w1go")
    L("L_D2_w1st")
    E(f"buffer_load_dword v{cT+1}, v{cT}, {WSR}, s{sLOC} offen offset:{W_ST} sc1")
    E("s_waitcnt vmcnt(0)")
    E(f"v_cmp_ne_u32 vcc, -1, v{cT+1}")
    if W1N > 1:
        E(f"s_bcnt1_i32_b64 s{sT2}, vcc")
        E(f"s_cmp_ge_u32 s{sT2}, {4*W1N}")
        E("s_cbranch_scc1 L_D2_w1go")
    else: E("s_cbranch_vccnz L_D2_w1go")
    E("s_sleep 2")
    spin_check("L_D2_w1st")
    L("L_D2_w1go")
for i in range(16):
    if TD1 and i >= TD1: E(f"s_waitcnt vmcnt({TD1-1})")
    E(f"buffer_load_dwordx4 v{244 + (i//4) % 2}, s[{R_B}:{R_B+3}], s{sT1} offen{NTW} lds")
    if i < 15:
        E("s_add_u32 m0, m0, 1024")
        E(f"s_add_u32 s{sT1}, s{sT1}, {16*3584}")
E("s_waitcnt vmcnt(0)")
stamp(4)
E("s_barrier")
stamp_flush(6, 2)
E("s_endpgm")
L("L_D2_flag")
E(f"s_lshl_b32 s{sT1}, s{sG}, 5")
E(f"s_lshl_b32 s{sT2}, s{sC}, 2")
E(f"s_add_u32 s{sT1}, s{sT1}, s{sT2}")
E(f"v_mov_b32 v{cT}, 1")
E(f"v_mov_b32 v{cT+1}, s{sT1}")
E(f"v_lshlrev_b32 v{cT+2}, 2, v1")
E("s_waitcnt vmcnt(0)")
E("s_mov_b64 exec, 1")
E(f"buffer_store_dword v{cT}, v{cT+1}, s[{R_C}:{R_C+3}], 0 offen sc1")
E("s_mov_b64 exec, -1")
if LATE0 >= 2 or W1L == 1: E("s_barrier")
E("s_waitcnt vmcnt(0)")
L("L_D2_fpoll")
E(f"buffer_load_dword v{cT+3}, v{cT+2}, s[{R_C}:{R_C+3}], 0 offen sc1")
E("s_waitcnt vmcnt(0)")
E(f"v_cmp_ne_u32 vcc, 1, v{cT+3}")
E("s_cbranch_vccz L_D2_fok")
E("s_sleep 8")
spin_check("L_D2_fpoll")
L("L_D2_fok")
E("s_barrier")
E("s_endpgm")
L("L_D2_ctl")
ctl_head()
stamp(1)
xc_publish()
first_gather("d2x", False, lambda: d2_clear(" sc1", True))
stamp(2)
if LATE0 == 3:
    E(f"v_lshlrev_b32 v{cT}, {'3' if STW else '2'}, v1")
    E(f"s_cmp_eq_u32 s{sMODE}, 1")
    E("s_cbranch_scc0 L_D2_go")
    L("L_D2_st")
    if STW:
        E(f"buffer_load_dword v{cT+1}, v{cT}, {WSR}, s{sLOC} offen offset:{W_ST} sc1")
        E("s_waitcnt vmcnt(0)")
        E(f"v_cmp_ne_u32 vcc, -1, v{cT+1}")
    E("s_cbranch_vccnz L_D2_go")
    E("s_sleep 2")
    spin_check("L_D2_st")
    L("L_D2_go")
    stamp(3)
E("s_waitcnt lgkmcnt(0)")
if LATE0 >= 2 or W1L == 1: E("s_barrier")
E("s_barrier")
stamp_flush(4, 1)
E("s_endpgm")
sec("d2")
L("L_D2_comp")
if PRIO & 2: E("s_setprio 1")
E(f"s_min_u32 s{sT1}, s{sC}, 6")
E(f"s_lshl_b32 s{sT1}, s{sT1}, 6")
E(f"s_mul_i32 s{sT0}, s{sG}, 448")
E(f"s_add_u32 s{sS1}, s{sT0}, s{sT1}")
if LATE0: wo_issue()
if W1L == 1 and LATE0 < 2: E("s_barrier")
srd(R_C, sB1, None, 3584)
E(f"v_and_b32 v{TT+5}, 7, v2")
E(f"v_lshlrev_b32 v{TT+5}, 1, v{TT+5}")
E(f"s_lshl_b32 s{sT1}, s{sWV}, 4")
E(f"s_add_u32 s{sT0}, s{sS1}, s{sT1}")
E(f"buffer_load_ushort v{vB1}, v{TT+5}, s[{R_C}:{R_C+3}], s{sT0} offen")
E(f"v_lshrrev_b32 v{TT+5}, 1, v{TT+2}")
E(f"v_lshl_add_u32 v{TT+5}, v{TT+1}, 1, v{TT+5}")
E(f"v_xor_b32 v{TT+5}, s{sWV}, v{TT+5}")
E(f"v_lshl_add_u32 v{aTA}, v3, 7, v{TT+2}")
E(f"v_lshlrev_b32 v{aTA}, 7, v{aTA}")
E(f"v_lshl_add_u32 v{aTA}, v{TT+3}, 3, v{aTA}")
E(f"v_lshl_add_u32 v{aTA}, v{TT+5}, 5, v{aTA}")
E(f"v_bfe_u32 v{TT+5}, v2, 1, 1")
E(f"v_lshl_add_u32 v{TT+6}, v{TT+5}, 6, v{TT+4}")
E(f"v_lshl_add_u32 v{TT+5}, v{TT+5}, 1, v{TT+1}")
E(f"v_xor_b32 v{TT+5}, s{sWV}, v{TT+5}")
E(f"v_lshlrev_b32 v{aTB}, 6, v{TT+6}")
E(f"v_lshl_add_u32 v{aTB}, v{TT+5}, 4, v{aTB}")
E(f"v_and_b32 v{TT+5}, 1, v2")
E(f"v_lshl_add_u32 v{aTB}, v{TT+5}, 3, v{aTB}")
E(f"v_add_u32 v{aTB}, {WB_LDS}, v{aTB}")
E(f"s_lshl_b32 s{sT1}, s{sWV}, 7")
E(f"v_lshlrev_b32 v{aST}, 5, v3")
E(f"v_add_u32 v{aST}, s{sT1}, v{aST}")
E(f"v_lshlrev_b32 v{aOS}, 4, v2")
E(f"v_lshl_add_u32 v{aOS}, v{TT+1}, 3, v{aOS}")
E(f"v_lshl_add_u32 v{aOS}, v{TT}, 2, v{aOS}")
E(f"s_lshl_b32 s{sT1}, s{sWV}, 8")
E(f"s_add_u32 s{sT1}, s{sT1}, {OS_LDS}")
E(f"v_add_u32 v{aOS}, s{sT1}, v{aOS}")
E(f"v_add_u32 v{aIN}, {OS_LDS}, v{vL16}")
E(f"v_lshlrev_b32 v{TT+5}, 4, v{TT+5}")
E(f"v_mov_b32 v{TT+6}, 0xffff")
E(f"v_lshlrev_b32 v{TT+6}, v{TT+5}, v{TT+6}")
E(f"v_bfe_u32 v{TT+7}, v2, 1, 2")
for d in range(4):
    E(f"v_cmp_eq_u32 vcc, {d}, v{TT+7}")
    E("s_nop 1")
    E(f"v_cndmask_b32 v{MK+d}, 0, v{TT+6}, vcc")
E(f"v_lshrrev_b32 v{vFLG}, 3, v2")
E(f"v_cmp_eq_u32 vcc, v{vFLG}, v{TT}")
E(f"v_cvt_f32_u32 v{vFLG}, v{vFLG}")
E("s_nop 0")
E(f"v_cndmask_b32 v{vVAL}, 0, -1, vcc")
E(f"s_lshl_b32 s{sT1}, s{sWV}, 12")
E(f"s_add_u32 s{sPoff}, s{sPoff}, s{sT1}")
E(f"s_lshl_b32 s{sT1}, s{sPJ}, 4")
E(f"s_add_u32 s{sPub}, s{sLOC}, s{sT1}")
E(f"s_add_u32 s{sPubG}, s{sPubG}, {W_Y}")
E(f"s_mov_b32 s{sYoff}, {W_Y}")
E(f"s_mov_b32 s{sC2}, 0")
E("s_waitcnt vmcnt(0)")
unpack_resid(XB)
E(f"v_lshlrev_b32 v{vB1}, 16, v{vB1}")
stamp(1)
E("s_barrier")
stamp(2)
ampx("xw", 0)
for s in range(16):
    for e in range(2):
        E(f"ds_read_b64_tr_b16 {vr(WA+4*s+2*e,2)}, v{aTA} offset:{1024*s+512*e}")
def w1_frags():
    for s in range(8):
        for e in range(2):
            E(f"ds_read_b64_tr_b16 {vr(WB+4*s+2*e,2)}, v{aTB} offset:{16384*e+512*s}")
def w1_sums():
    for s in range(8):
        c = "0" if s == 0 else vr(ACC,4)
        E(f"v_mfma_f32_16x16x32_bf16 {vr(ACC,4)}, {vr(ONESB,4)}, {vr(WB+4*s,4)}, {c}")
    E("s_nop 7")
    E(f"v_add_f32_dpp v{vCS}, v{ACC}, v{ACC} row_ror:8 row_mask:0xf bank_mask:0xf")
if W1L != 2: w1_frags()
read_mode("0xff", 28)
if W1L != 2: w1_sums()
L("L_D2_loop")
mark("d2")
def p_loads():
    for i in range(4):
        E(f"buffer_load_dwordx4 {vr(GB+4*i,4)}, v{vL16}, {WSR}, s{sPoff} offen offset:{1024*i} sc1")
arm(vST, 8)
p_loads()
if TP & 2:
    E(f"s_cmp_eq_u32 s{sLAY}, 0")
    E("s_cbranch_scc1 L_D2_near")
    gather1("gx2s", CA, vL16, sLOC, W_X2, TT, pd=1, slp=PSL)
    L("L_D2_near")
L("L_gs_poll")
E(f"buffer_load_dwordx4 {vr(vST,4)}, v{aST}, {WSR}, s{sLOC} offen offset:{W_ST} sc1")
E(f"buffer_load_dwordx4 {vr(vST+4,4)}, v{aST}, {WSR}, s{sLOC} offen offset:{W_ST+16} sc1")
E(f"s_waitcnt vmcnt({2*(PD-1)})")
E(f"v_max3_u32 v{TT}, v{vST}, v{vST+1}, v{vST+2}")
E(f"v_max3_u32 v{TT+1}, v{vST+3}, v{vST+4}, v{vST+5}")
E(f"v_max3_u32 v{TT}, v{TT}, v{vST+6}, v{vST+7}")
E(f"v_max_u32 v{TT}, v{TT}, v{TT+1}")
E(f"v_cmp_eq_u32 vcc, -1, v{TT}")
E("s_cbranch_vccz L_gs_ok")
if SLP: E(f"s_sleep {SLP}")
spin_check("L_gs_poll")
L("L_gs_ok")
p_loads()
stamp(3, True)
vM, vU, vLs = TT, TT+1, TT+2
WT = TT + 3
AW = GB + 16
E(f"v_max3_f32 v{vM}, v{vST}, v{vST+2}, v{vST+4}")
E(f"v_max_f32 v{vM}, v{vM}, v{vST+6}")
for sw in ("16", "32"):
    E(f"v_mov_b32 v{vU}, v{vM}")
    E("s_nop 1")
    E(f"v_permlane{sw}_swap_b32 v{vM}, v{vU}")
    E(f"v_max_f32 v{vM}, v{vM}, v{vU}")
for t in range(4): E(f"v_sub_f32 v{WT+t}, v{vST+2*t}, v{vM}")
for t in range(4): E(f"v_exp_f32 v{WT+t}, v{WT+t}")
E("s_nop 0")
E(f"v_mul_f32 v{vLs}, v{WT}, v{vST+1}")
for t in range(1, 4): E(f"v_fmac_f32 v{vLs}, v{WT+t}, v{vST+2*t+1}")
for sw in ("16", "32"):
    E(f"v_mov_b32 v{vU}, v{vLs}")
    E("s_nop 1")
    E(f"v_permlane{sw}_swap_b32 v{vLs}, v{vU}")
    E(f"v_add_f32 v{vLs}, v{vLs}, v{vU}")
E(f"v_rcp_f32 v{vLs}, v{vLs}")
p_loads()
for t in range(4): E(f"v_mul_f32 v{WT+t}, v{WT+t}, v{vLs}")
for t in range(4): E(f"v_cvt_pk_bf16_f32 v{WT+4+t}, v{WT+t}, v{WT+t}")
for t in range(4): E(f"v_and_b32 v{WT+4+t}, 0xffff0000, v{WT+4+t}")
for t in range(4): E(f"v_fma_f32 v{WT+t}, -v{WT+4+t}, v{vFLG}, v{WT+t}")
for t in range(4): E(f"v_cvt_pk_bf16_f32 v{WT+t}, v{WT+t}, v{WT+t}")
for t in range(4):
    for d in range(4): E(f"v_and_b32 v{AW+4*t+d}, v{MK+d}, v{WT+t}")
E("s_branch L_gp_use")
L("L_gp_nan")
E(f"s_sub_u32 s{sSPIN}, s{sSPIN}, 1")
E("s_cbranch_scc1 L_exit")
E(f"s_and_b32 s{sT1}, s{sSPIN}, 15")
E("s_cbranch_scc0 L_gp_retry")
L("L_gp_again")
p_loads()
L("L_gp_use")
E("s_waitcnt vmcnt(4)")
for t in range(4):
    E(f"v_mfma_f32_16x16x32_bf16 {vr(CA,4)}, {vr(AW+4*t,4)}, {vr(GB+4*t,4)}, {'0' if t == 0 else vr(CA,4)}")
E("s_nop 7")
E(f"v_cmp_u_f32 vcc, v{CA}, v{CA}")
E(f"v_permlane32_swap_b32 v{CA}, v{CA+2}")
E(f"v_permlane32_swap_b32 v{CA+1}, v{CA+3}")
E("s_cbranch_vccnz L_gp_nan")
L("L_gp_ok")
E(f"v_add_f32 v{CA}, v{CA}, v{CA+2}")
E(f"v_add_f32 v{CA+1}, v{CA+1}, v{CA+3}")
E(f"v_cvt_pk_bf16_f32 v{CA}, v{CA}, v{CA+1}")
E(f"ds_write_b32 v{aOS}, v{CA}")
E(f"v_mov_b32 v{vT}, 0")
stamp(4, True)
mark("d2")
E("s_waitcnt lgkmcnt(0)")
E("s_barrier")
E(f"ds_read_b128 {vr(XB,4)}, v{aIN}")
E(f"buffer_load_dwordx4 {vr(CA,4)}, v{vL16}, {WSR}, s{sLOC} offen offset:{W_X2} sc1")
E("s_waitcnt lgkmcnt(0)")
matvec(16, XB, WA, [], per=PN)
y_publish()
stamp(5, True)
ampx("xy", 0)
if W1L == 2:
    E(f"s_cmp_lg_u32 s{sLAY}, 0")
    E("s_cbranch_scc1 L_D2_havew1")
    w1_frags()
    E("s_waitcnt lgkmcnt(0)")
    w1_sums()
    L("L_D2_havew1")
def pre_y():
    E(f"s_cmp_eq_u32 s{sLAY}, 0")
    E("s_cbranch_scc1 L_D2_havex")
    E("s_waitcnt vmcnt(1)")
    chk_bf16(CA, TT)
    E("s_cbranch_vccz L_gx2_have")
    gather1("gx2", CA, vL16, sLOC, W_X2, TT, pd=1, slp=0)
    L("L_gx2_have")
    unpack_resid(CA)
    L("L_D2_havex")
relay_X("gy", sYoff, pre_y)
stamp(6, True)
ampx("xz", 0)
E(f"s_cmp_eq_u32 s{sC}, 7")
E("s_cbranch_scc1 L_D2_x1")
matvec(8, XB, WB, stats_fillers(), rows=[(0x5, 0xf, [0,1,2,3]), (0xa, 0xf, [4,5,6,7])], per=PER+2)
mark("d2")
xgroup_sum(True)
h, u, a, b = vT, TT+5, TT+6, TT+7
E(f"v_add_f32 v{h}, v{h}, v{vB1}")
E(f"v_mul_f32 v{u}, s{sC3}, |v{h}|")
E(f"v_exp_f32 v{u}, v{u}")
E(f"v_cmp_le_f32 vcc, 0, v{h}")
E(f"v_add_f32 v{b}, 2.0, v{u}")
E(f"v_fma_f32 v{a}, v{u}, 2.0, 1.0")
E(f"v_mul_f32 v{b}, v{u}, v{b}")
E(f"v_mul_f32 v{u}, v{u}, v{u}")
E(f"v_cndmask_b32 v{a}, v{b}, v{a}, vcc")
E(f"v_cndmask_b32 v{u}, 1.0, v{u}, vcc")
E(f"v_fma_f32 v{b}, v{u}, 2.0, v{a}")
E(f"v_rcp_f32 v{b}, v{b}")
E(f"v_mul_f32 v{h}, v{h}, v{a}")
E(f"v_mul_f32 v{h}, v{h}, v{b}")
E(f"v_cvt_pk_bf16_f32 v{h}, v{h}, v{h}")
E(f"v_min_u32 v{h}, -2, v{h}")
pub2("buffer_store_short", f"v{h}", aP16, sPub, sMA_f, sMA_s, W_ACT)
stamp(7, True)
L("L_D2_next")
for s_ in (sLOC, sPoff, sPub, sPubG, sYoff):
    E(f"s_add_u32 s{s_}, s{s_}, {LS}")
E(f"s_add_u32 s{sLAY}, s{sLAY}, 1")
E(f"s_cmp_lt_u32 s{sLAY}, 2")
E("s_cbranch_scc1 L_D2_loop")
stamp_flush(0, 0)
E("s_endpgm")
L("L_D2_x1")
pub_resid(W_X1)
unpack_resid(XB)
E("s_branch L_D2_next")
sec("cold")
L("L_exit")
E("s_endpgm")
L("L_gp_retry")
for i in range(0, 16, 2): E(f"v_pk_max_u16 v{ACC+i//2}, v{GB+i}, v{GB+i+1}")
for i in range(0, 8, 2): E(f"v_pk_max_u16 v{ACC+i//2}, v{ACC+i}, v{ACC+i+1}")
chk_bf16(ACC, TT)
E("s_cbranch_vccnz L_gp_again")
for t in range(4):
    E(f"v_mfma_f32_16x16x32_bf16 {vr(CA,4)}, {vr(AW+4*t,4)}, {vr(GB+4*t,4)}, {'0' if t == 0 else vr(CA,4)}")
E("s_nop 9")
E(f"v_permlane32_swap_b32 v{CA}, v{CA+2}")
E(f"v_permlane32_swap_b32 v{CA+1}, v{CA+3}")
E("s_branch L_gp_ok")
for b_ in retry_blocks: b_()
L("L_code_end")

out = [open("cdna_kernels/" + NAME + ".s.ref").read().split("; Override")[0].rstrip("\n"),
       f"; @launch grid=(256,1,1) block=(512,1,1) lds={LDS_BYTES}", '.amdgcn_target "amdgcn-amd-amdhsa--gfx950"', ".text",
       f".globl {NAME}_kernel", ".p2align 8", f".type {NAME}_kernel,@function"]
for k in ORDER:
    for x in secs[k]:
        if isinstance(x, tuple) and x[0] == "MARK":
            _, role, i = x
            n = wstep[role]
            out.append("    s_cbranch_execz " + (marks[role][i + n] if i + n < len(marks[role]) else f"L_wd_{role}{i % n}"))
        elif isinstance(x, tuple):
            _, role, first, step = x
            assert first < len(marks[role])
            out += ["    s_mov_b64 exec, 0", f"    s_branch {marks[role][first]}", f"L_wd_{role}{first}:", "    s_mov_b64 exec, -1"]
        else: out.append(x)
out.append('.section .rodata,"a"')
out.append(".p2align 6")
out.append(f".amdhsa_kernel {NAME}_kernel")
out.append("  .amdhsa_next_free_vgpr 256")
out.append("  .amdhsa_next_free_sgpr 96")
out.append("  .amdhsa_accum_offset 256")
out.append("  .amdhsa_group_segment_fixed_size 0")
out.append("  .amdhsa_kernarg_size 96")
out.append("  .amdhsa_user_sgpr_count 2")
out.append("  .amdhsa_user_sgpr_kernarg_segment_ptr 1")
out.append("  .amdhsa_system_sgpr_workgroup_id_x 1")
out.append("  .amdhsa_float_denorm_mode_32 3")
out.append(".end_amdhsa_kernel")
open(sys.argv[1], "w").write("\n".join(out) + "\n")
```

```python
import sys, math, struct
PROF = int(sys.argv[2]) if len(sys.argv) > 2 else 0
OPT = dict(a.split("=") for a in sys.argv[3:])
THR = int(OPT.get("thr", 6))
ACK = int(OPT.get("ack", 1))
PER = int(OPT.get("per", 3))
PD = int(OPT.get("pd", 3))
SLP = int(OPT.get("slp", 0))
LATE0 = int(OPT.get("late0", 1))
GP = int(OPT.get("gp", 1))
GSL = int(OPT.get("gsl", 0))
THV = int(OPT.get("thv", 10))
GD = int(OPT.get("gd", 0))
fl = lambda k, d: {"0": "", "1": " nt", "2": " sc1", "3": " sc0 sc1", "4": " sc1 nt"}[OPT.get(k, d)]
NTQ, NTW, NTK, NTV = fl("ntq", "0"), fl("ntw", "0"), fl("ntk", "1"), fl("ntv", "0")
TQ = int(OPT.get("tq", 1))
MARKGAP = int(OPT.get("gap", 768))
CPF = int(OPT.get("cpf", 1))
W1L = int(OPT.get("w1l", 1))
STW = 1
REORD = int(OPT.get("reord", 0))
PAD = int(OPT.get("pad", 1))
PN = int(OPT.get("pn", 4))
W2P = int(OPT.get("w2p", 0))
W1N = int(OPT.get("w1n", 1))
FSL = int(OPT.get("fsl", 3))
PSL = int(OPT.get("psl", 3))
TP = int(OPT.get("tp", 0))
VPF = int(OPT.get("vpf", 0))
TDO, TD1 = int(OPT.get("tdo", 0)), int(OPT.get("td1", 0))
PRIO = int(OPT.get("prio", 7))
WARM = int(OPT.get("warm", 0))
NTT = fl("ntt", "0")
GFL = fl("gfl", "2")
SFL = {"2": " sc1", "3": " sc0 sc1", "4": " sc1 nt"}[OPT.get("sfl", "2")]
NAME = "interleave_layers__sliding_block_cached__dense_activation_mish__decode"
import re
ORDER = ["entry", "dinit", "d1", "actl", "a", "d2", "help", "cold"]
secs = {k: [] for k in ORDER}
cur = ["entry"]
since = {k: 0 for k in ORDER}
unsafe = [False]
marks = {k: [] for k in ORDER}
WARMED = ("d1", "a", "d2")
BIG = ("v_mfma", "v_pk_", "v_fma_", "v_max3", "v_or3", "v_add3", "v_lshl_add", "v_bfe", "v_mul_lo", "v_cvt_pk", "v_readlane", "v_writelane",
       "ds_", "buffer_", "global_", "s_load", "s_memrealtime")
def isize(t):
    if t.startswith(BIG) or "_dpp" in t or "|v" in t or (t.startswith(("v_cmp", "v_cndmask")) and "s[" in t): return 8
    ops = t.split(None, 1)[1] if " " in t else ""
    if t.startswith(("s_waitcnt", "s_nop", "s_sleep", "s_branch", "s_cbranch", "s_call", "s_getreg", "s_setprio")): return 4
    for tok in re.split(r"[,\s]+", ops):
        if re.fullmatch(r"0x[0-9a-f]+|\d+", tok) and int(tok, 0) > 64: return 8
    return 4
def sec(name): cur[0] = name
def put_mark():
    k = cur[0]
    marks[k].append(f"L_wm_{k}{len(marks[k])}")
    secs[k].append(marks[k][-1] + ":")
    secs[k].append(("MARK", k, len(marks[k]) - 1))
    since[k] = 4
def E(s=""):
    k = cur[0]
    if WARM and k in WARMED and not unsafe[0] and (since[k] >= MARKGAP or not marks[k]): put_mark()
    secs[k].append("    " + s)
    since[k] += isize(s)
    if re.match(r"s_\w+ exec", s): unsafe[0] = s != "s_mov_b64 exec, -1"
def L(s): secs[cur[0]].append(s + ":")
def vr(a, n=1): return f"v{a}" if n == 1 else f"v[{a}:{a+n-1}]"
def f32(x): return hex(struct.unpack("<I", struct.pack("<f", x))[0])

K_LDS, V_LDS = 0, 65536
WA_LDS, WB_LDS = 0, 65536
QS_LDS, PX_LDS, SX_LDS, FL_LDS = 131072, 132608, 140800, 141312
OS_LDS, XS_LDS = QS_LDS, PX_LDS
LDS_BYTES = 141824
LS = 0x30000
W_Q, W_X2, W_X1, W_ST, W_ACT = 0, 1024, 2048, 3072, 3584
W_Y, W_Z, W_P = 32768, 40960, 65536
W_Q0 = 2 * LS
W_Q0B = 32768
W_EP = W_Q0 + 65536
ALT = 0x80000
WS_USED = ALT + 2 * LS
PROF_OFF = 0x300000
WS_REC = PROF_OFF + 256 * 1024

sX, sK, sV, sWQ, sWO, sBX, sW1, sB1 = 8, 10, 12, 14, 16, 18, 20, 22
sW2, sOUT, sDBG, sWS = 24, 26, 28, 30
sG, sJ, sWV, sC, sPJ = 3, 4, 5, 6, 7
R_WS, R_A, R_B, R_C = 32, 36, 40, 44
sT0, sT1, sT2, sT3 = 48, 49, 50, 51
sLOC, sLAY = 52, 53
sYoff, sZoff, sPoff = 54, 55, 56
sSPIN = 57
sRET = 58
sMA_f, sMA_s, sMB_f, sMB_s, sMC_f, sMC_s = 60, 62, 64, 66, 68, 70
sTAG, sXCC, sQ0, sQ0B = 72, 73, 74, 75
sFFFE = 76
sC1, sC2, sC3 = 77, 78, 79
sS1, sS2, sPIV = 80, 81, 82
sPub, sPubG = 83, 84
sST = 88
sPe, sLe, sMODE = 90, 91, 92
SPIN0 = 0x200000
WSR = f"s[{R_WS}:{R_WS+3}]"

def srd(r, base, add_lo=None, rec=None):
    if add_lo is None:
        E(f"s_mov_b32 s{r}, s{base}")
        E(f"s_and_b32 s{r+1}, s{base+1}, 0xffff")
    else:
        E(f"s_add_u32 s{r}, s{base}, {add_lo}")
        E(f"s_addc_u32 s{r+1}, s{base+1}, 0")
        E(f"s_and_b32 s{r+1}, s{r+1}, 0xffff")
    E(f"s_mov_b32 s{r+2}, {rec}")
    E(f"s_mov_b32 s{r+3}, 0x00020000")

V_STAMP = 254
ROLE = ["a"]
def stamp(idx, layer_dep=False):
    if not PROF: return
    if PROF == 9 and not (idx == 8 and not layer_dep) and not (idx == 6 and layer_dep and ROLE[0] == "a" and "pt" not in OPT) and OPT.get("pt") != f"{cur[0]}_{idx}": return
    E(f"s_memrealtime s[{sST}:{sST+1}]")
    E("s_waitcnt lgkmcnt(0)")
    if layer_dep:
        E(f"s_lshl_b32 s{sT3}, s{sLAY}, 4")
        E(f"s_add_u32 s{sT3}, s{sT3}, {idx}")
        E(f"s_mov_b32 m0, s{sT3}")
        E("s_nop 0")
        E(f"v_writelane_b32 v{V_STAMP}, s{sST}, m0")
    else:
        E(f"v_writelane_b32 v{V_STAMP}, s{sST}, {idx}")
AMP = OPT.get("amp")
def amp(name):
    if AMP != name: return
    E(f"s_cmp_eq_u32 s{sLAY}, {OPT.get('amplay', '0')}")
    E(f"s_cbranch_scc0 L_amp_{name}")
    E("s_memrealtime s[94:95]")
    E("s_waitcnt lgkmcnt(0)")
    L(f"L_amp_{name}")
def ampx(name, wave):
    if AMP != name: return
    E(f"s_cmp_eq_u32 s2, {OPT.get('ampwg', '0')}")
    E(f"s_cbranch_scc0 L_amp_{name}")
    E(f"s_cmp_eq_u32 s{sWV}, {wave}")
    E(f"s_cbranch_scc0 L_amp_{name}")
    E(f"s_cmp_eq_u32 s{sLAY}, 0")
    E(f"s_cbranch_scc0 L_amp_{name}")
    E("s_memrealtime s[94:95]")
    E("s_waitcnt lgkmcnt(0)")
    if name == "xs": E("s_mov_b32 s94, s86")
    if name == "xa": E("s_mov_b32 s94, s88")
    E("v_mov_b32 v246, s94")
    E(f"v_mov_b32 v247, {W_EP + 64}")
    E(f"buffer_store_dword v246, v247, {WSR}, 0 offen sc1")
    L(f"L_amp_{name}")
def stamp_flush(wave, slot, dbg=None):
    if not PROF: return
    E(f"s_cmp_lg_u32 s{sWV}, {wave}")
    E("s_cbranch_scc1 L_exit")
    E("s_mov_b64 exec, -1")
    if dbg and "dbg" in OPT:
        wg, off, idx = dbg
        for i, x in enumerate(idx):
            E(f"v_readlane_b32 s{sT0}, v{V_STAMP}, {x}")
            E("s_nop 3")
            E(f"v_writelane_b32 v{V_STAMP-2}, s{sT0}, {i}")
        srd(R_A, sDBG, None, 256)
        E(f"v_lshlrev_b32 v{V_STAMP-1}, 2, v1")
        E(f"s_cmp_eq_u32 s2, {wg}")
        E(f"s_cselect_b32 exec_lo, {(1 << len(idx)) - 1}, 0")
        E("s_mov_b32 exec_hi, 0")
        E(f"buffer_store_dword v{V_STAMP-2}, v{V_STAMP-1}, s[{R_A}:{R_A+3}], 0 offen offset:{off}")
        E("s_mov_b64 exec, -1")
    E(f"s_lshl_b32 s{sT0}, s2, 10")
    E(f"s_add_u32 s{sT0}, s{sT0}, {PROF_OFF + slot*256}")
    E(f"v_lshlrev_b32 v{V_STAMP-1}, 2, v1")
    E(f"buffer_store_dword v{V_STAMP}, v{V_STAMP-1}, {WSR}, s{sT0} offen")

wstep = {}
def mark(role): pass
def warm(role, first=0, step=1):
    if WARM:
        secs[cur[0]].append(("WARM", role, first, step))
        assert wstep.setdefault(role, step) == step

def spin_check(fail_label):
    E(f"s_sub_u32 s{sSPIN}, s{sSPIN}, 1")
    E(f"s_cbranch_scc1 L_exit")
    E(f"s_branch {fail_label}")

def chk_bf16(v, t):
    E(f"v_pk_max_u16 v{t}, v{v}, v{v+1}")
    E(f"v_pk_max_u16 v{t+1}, v{v+2}, v{v+3}")
    E(f"v_pk_max_u16 v{t}, v{t}, v{t+1}")
    E(f"v_pk_max_u16 v{t}, v{t}, v{t} op_sel:[0,1] op_sel_hi:[1,0]")
    E(f"v_cmp_eq_u32 vcc, -1, v{t}")

def pub2(op, data, addr, soff, mf, ms, imm=0):
    o = f" offset:{imm}" if imm else ""
    E(f"s_mov_b64 exec, s[{mf}:{mf+1}]")
    E(f"{op} {data}, v{addr}, {WSR}, s{soff} offen{o}")
    E(f"s_mov_b64 exec, s[{ms}:{ms+1}]")
    E(f"{op} {data}, v{addr}, {WSR}, s{soff} offen{o} sc1")
    E("s_mov_b64 exec, -1")

def masks(mf, ms, lo, hi):
    E(f"s_cselect_b32 s{mf}, {lo}, 0")
    E(f"s_cselect_b32 s{mf+1}, {hi}, 0")
    E(f"s_cselect_b32 s{ms}, 0, {lo}")
    E(f"s_cselect_b32 s{ms+1}, 0, {hi}")

def arm(dst, n):
    for r in range(n): E(f"v_mov_b32 v{dst+r}, -1")

def gather1(tag, dst, addr, soff, imm, t, pd=None, slp=None):
    pd = PD if pd is None else pd
    slp = SLP if slp is None else slp
    L(f"L_{tag}_poll")
    E(f"buffer_load_dwordx4 {vr(dst,4)}, v{addr}, {WSR}, s{soff} offen offset:{imm} sc1")
    E(f"s_waitcnt vmcnt({pd-1})")
    chk_bf16(dst, t)
    E(f"s_cbranch_vccz L_{tag}_ok")
    if slp: E(f"s_sleep {slp}")
    spin_check(f"L_{tag}_poll")
    L(f"L_{tag}_ok")

cD, cA, cXa, cG, cT, cL16 = 208, 210, 211, 212, 224, 232
def xc_publish():
    E(f"s_getreg_b32 s{sXCC}, hwreg(HW_REG_XCC_ID, 0, 4)")
    E(f"v_mov_b32 v{cD+1}, s{sTAG}")
    E(f"s_lshl_b32 s{sT3}, s{sJ}, 3")
    E(f"v_mov_b32 v{cD}, s{sXCC}")
    E(f"v_mov_b32 v{cA}, s{sT3}")
    E("s_mov_b64 exec, 1")
    E(f"buffer_store_dwordx2 {vr(cD,2)}, v{cA}, {WSR}, s{sQ0} offen offset:2048")
    E("s_mov_b64 exec, -1")

def first_gather(tag, with_q, clear_alt, armed=False):
    regs = (1, 3, 5, 7) if with_q else (9,)
    nl = 3 if with_q else 1
    E(f"s_sub_u32 s{sS2}, s{sSPIN}, {480 // FSL}")
    if not armed:
        E(f"v_and_b32 v{cXa}, 31, v1")
        E(f"v_lshlrev_b32 v{cXa}, 3, v{cXa}")
        E(f"s_not_b32 s{sT1}, s{sTAG}")
        for r in regs + ((9,) if with_q else ()): E(f"v_mov_b32 v{cG+r}, s{sT1}")
    def loads(so):
        if with_q:
            E(f"buffer_load_dwordx4 {vr(cG,4)}, v{cL16}, {WSR}, s{so} offen sc1")
            E(f"buffer_load_dwordx4 {vr(cG+4,4)}, v{cL16}, {WSR}, s{so} offen offset:1024 sc1")
        E(f"buffer_load_dwordx2 {vr(cG+8,2)}, v{cXa}, {WSR}, s{so} offen offset:2048 sc1")
    def check():
        if with_q:
            for i, r in enumerate(regs): E(f"v_xor_b32 v{cT+i}, s{sTAG}, v{cG+r}")
            E(f"v_or3_b32 v{cT}, v{cT}, v{cT+1}, v{cT+2}")
            E(f"v_or_b32 v{cT}, v{cT}, v{cT+3}")
            E(f"v_cmp_ne_u32 vcc, 0, v{cT}")
        else:
            E(f"v_cmp_ne_u32 vcc, s{sTAG}, v{cG+9}")
    def copy_b():
        E("s_mov_b64 exec, 1")
        E(f"buffer_store_dwordx2 {vr(cD,2)}, v{cA}, {WSR}, s{sQ0B} offen offset:2048 sc1")
        E("s_mov_b64 exec, -1")
    L(f"L_{tag}_poll")
    loads(sQ0)
    E(f"s_waitcnt vmcnt({24 if armed else nl*6})")
    check()
    E(f"s_cbranch_vccz L_{tag}_seen")
    E(f"s_sleep {FSL}")
    E(f"s_cmp_gt_u32 s{sSPIN}, s{sS2}")
    E(f"s_cbranch_scc0 L_{tag}_b")
    spin_check(f"L_{tag}_poll")
    home = cur[0]; sec("cold")
    L(f"L_{tag}_b")
    copy_b()
    L(f"L_{tag}_alt")
    for so in (sQ0B, sQ0):
        loads(so)
        E("s_waitcnt vmcnt(0)")
        check()
        E(f"s_cbranch_vccz L_{tag}_{'altok' if with_q else 'ok'}")
    spin_check(f"L_{tag}_alt")
    if with_q:
        L(f"L_{tag}_altok")
        E(f"s_not_b32 s{sT1}, s{sTAG}")
        E(f"v_mov_b32 v{cG+9}, s{sT1}")
        E(f"s_branch L_{tag}_ok")
    sec(home)
    L(f"L_{tag}_seen")
    E("s_nop 15")
    L(f"L_{tag}_ok")
    if with_q:
        E(f"ds_write2_b32 v{cT+5}, v{cG}, v{cG+2} offset0:0 offset1:1")
        E(f"ds_write2_b32 v{cT+5}, v{cG+4}, v{cG+6} offset0:160 offset1:161")
        return
    E(f"v_cmp_ne_u32 vcc, s{sXCC}, v{cG+8}")
    E("s_nop 3")
    if OPT.get("slow") == "1": E("s_mov_b64 vcc, -1")
    E("s_cmp_eq_u64 vcc, 0")
    E(f"s_cselect_b32 s{sMODE}, 1, 0")
    E(f"s_cbranch_scc0 L_{tag}_slow")
    sec("cold")
    L(f"L_{tag}_slow")
    E("s_waitcnt vmcnt(0) lgkmcnt(0)")
    copy_b()
    if clear_alt: clear_alt()
    if clear_alt:
        E("s_waitcnt vmcnt(0)")
        E("s_mov_b64 exec, 1")
        E(f"buffer_store_dwordx2 {vr(cD,2)}, v{cA}, {WSR}, s{sQ0B} offen offset:2560 sc1")
        E("s_mov_b64 exec, -1")
    E(f"v_and_b32 v{cXa}, 56, v{cXa}")
    E(f"v_add_u32 v{cXa}, 192, v{cXa}")
    L(f"L_{tag}_h")
    E(f"buffer_load_dwordx2 {vr(cG+8,2)}, v{cXa}, {WSR}, s{sQ0B} offen offset:2560 sc1")
    E("s_waitcnt vmcnt(0)")
    E(f"v_cmp_ne_u32 vcc, s{sTAG}, v{cG+9}")
    E(f"s_cbranch_vccz L_{tag}_done")
    spin_check(f"L_{tag}_h")
    sec(home)
    L(f"L_{tag}_done")
    E(f"v_mov_b32 v{cT+2}, {FL_LDS}")
    E(f"v_mov_b32 v{cT+3}, s{sMODE}")
    E(f"ds_write_b32 v{cT+2}, v{cT+3}")

L(f"{NAME}_kernel")
E("s_cmp_ge_u32 s2, 256")
E("s_cbranch_scc1 L_exit")
E("s_load_dwordx16 s[8:23], s[0:1], 0")
E("s_load_dwordx8 s[24:31], s[0:1], 64")
if PROF:
    E(f"v_mov_b32 v{V_STAMP}, 0")
    E(f"s_memrealtime s[{sST}:{sST+1}]")
if AMP: E("s_memrealtime s[86:87]")
E("s_getpc_b64 s[92:93]")
E("v_lshrrev_b32 v1, 6, v0")
E(f"s_and_b32 s{sG}, s2, 7")
E(f"v_readfirstlane_b32 s{sWV}, v1")
E(f"s_lshr_b32 s{sJ}, s2, 3")
E("v_and_b32 v1, 63, v0")
if CPF:
    E("s_and_b32 s92, s92, 0xffffff00")
    E("v_lshlrev_b32 v4, 7, v1")
    E("v_add_u32 v5, 0x2000, v4")
    E(f"v_min_u32 v5, L_code_end-{NAME}_kernel-4, v5")
    E(f"s_cmp_lg_u32 s{sWV}, 7")
    E("s_cbranch_scc1 L_nocpf")
    E("global_load_dword v239, v4, s[92:93]")
    E("global_load_dword v239, v5, s[92:93]")
    L("L_nocpf")
E("v_and_b32 v2, 15, v0")
E("v_lshrrev_b32 v3, 4, v1")
E(f"s_mov_b32 s{sSPIN}, {SPIN0}")
E(f"s_mov_b32 s{sLAY}, 0")
E(f"s_lshl_b32 s{sLOC}, s{sG}, 12")
E(f"s_lshl_b32 s{sPoff}, s{sG}, 14")
E(f"s_add_u32 s{sPoff}, s{sPoff}, {W_P}")
E(f"s_add_u32 s{sQ0}, s{sLOC}, {W_Q0}")
E(f"s_add_u32 s{sQ0B}, s{sQ0}, {W_Q0B}")
E("v_lshrrev_b32 v5, 3, v1")
E("v_and_b32 v6, 7, v1")
E("v_lshlrev_b32 v4, 13, v5")
E("v_lshl_add_u32 v4, v6, 7, v4")
E(f"s_lshl_b32 s{sT0}, s{sJ}, 17")
E(f"s_lshl_b32 s{sT1}, s{sG}, 10")
E(f"s_add_u32 s{sT0}, s{sT0}, s{sT1}")
E(f"s_sub_u32 s{sT1}, s{sWV}, 1")
E(f"s_lshl_b32 s{sT2}, s{sT1}, 16")
E(f"s_add_u32 s{sT0}, s{sT0}, s{sT2}")
E(f"s_mov_b32 s{sT2}, {W_EP}")
E("v_mov_b32 v7, 0")
for r, rec in ((R_WS, WS_REC if PROF else WS_USED), (R_A, 65536), (R_B, 65536), (R_C, 4194304)):
    E(f"s_mov_b32 s{r+2}, {rec}")
    E(f"s_mov_b32 s{r+3}, 0x00020000")
E(f"v_mov_b32 v{cA}, 0")
E(f"v_lshlrev_b32 v{cL16}, 4, v1")
E(f"s_lshl_b32 s{sPe}, s{sG}, 24")
E(f"s_lshl_b32 s{sT3}, s{sJ}, 16")
E(f"s_add_u32 s{sPe}, s{sPe}, s{sT3}")
E(f"s_add_u32 s{sPe}, s{sPe}, {61440*256}")
E("v_xor_b32 v8, v2, v3")
E("v_lshlrev_b32 v8, 4, v8")
E("v_lshl_add_u32 v8, v3, 8, v8")
E("v_lshlrev_b32 v5, 1, v3")
E("v_xor_b32 v5, v2, v5")
E("v_lshlrev_b32 v5, 4, v5")
E("v_lshl_add_u32 v5, v3, 8, v5")
E(f"s_add_u32 s{sC1}, s{sJ}, s{sG}")
E(f"s_cmp_lt_u32 s{sT1}, 2")
E("s_waitcnt lgkmcnt(0)")
E(f"s_mov_b32 s{R_C}, s{sWQ}")
E(f"s_mov_b32 s{R_C+1}, s{sWQ+1}")
E("s_cbranch_scc0 L_notouch")
if TQ: E(f"buffer_load_dword v240, v4, s[{R_C}:{R_C+3}], s{sT0} offen{NTQ}")
L("L_notouch")
if AMP == "xa":
    E("s_memrealtime s[88:89]")
    E("s_waitcnt lgkmcnt(0)")
E(f"s_mov_b32 s{R_WS}, s{sWS}")
E(f"s_mov_b32 s{R_WS+1}, s{sWS+1}")
E(f"buffer_load_dword v241, v7, {WSR}, s{sT2} offen sc1")
if PROF: E(f"v_writelane_b32 v{V_STAMP}, s{sST}, 60")
E(f"s_add_u32 s{R_A}, s{sK}, s{sPe}")
E(f"s_addc_u32 s{R_A+1}, s{sK+1}, 0")
E(f"s_add_u32 s{R_B}, s{sV}, s{sPe}")
E(f"s_addc_u32 s{R_B+1}, s{sV+1}, 0")
E(f"s_cmp_ge_u32 s{sJ}, 16")
E("s_cbranch_scc1 L_D_init")

E(f"s_cmp_eq_u32 s{sWV}, 4")
E("s_cbranch_scc1 L_A_ctl")
E(f"s_cmp_gt_u32 s{sWV}, 4")
E("s_cbranch_scc1 L_A_help")
if PRIO & 4: E("s_setprio 1")
E(f"s_lshl_b32 s{sT0}, s{sWV}, 14")
E(f"s_add_u32 s{sT3}, s{sC1}, 16")
L("L_A_kl")
E(f"s_and_b32 s{sT1}, s{sC1}, 15")
E(f"s_and_b32 s{sT2}, s{sT1}, 3")
E(f"s_lshl_b32 s{sT2}, s{sT2}, 6")
E(f"s_lshl_b32 s{sT1}, s{sT1}, 10")
E(f"s_add_u32 s{sT1}, s{sT1}, s{sT0}")
E(f"s_mov_b32 m0, s{sT1}")
E(f"v_xor_b32 v6, s{sT2}, v8")
E(f"s_waitcnt vmcnt({THR-1})")
E(f"buffer_load_dwordx4 v6, s[{R_A}:{R_A+3}], s{sT1} offen{NTK} lds")
E(f"s_add_u32 s{sC1}, s{sC1}, 1")
E(f"s_cmp_lt_u32 s{sC1}, s{sT3}")
E("s_cbranch_scc1 L_A_kl")
E("s_branch L_A_setup")
L("L_A_help")
if PRIO & 8: E("s_setprio 1")
E(f"s_sub_u32 s{sT0}, s{sWV}, 5")
E(f"s_lshl_b32 s{sC1}, s{sC1}, 2")
E(f"s_mov_b32 s{sT3}, 0")
THV1, NV1 = int(OPT.get("thv1", 0)), int(OPT.get("nv1", 15))
if THV1:
    L("L_A_vl1")
    E(f"s_add_u32 s{sT1}, s{sC1}, s{sT0}")
    E(f"s_and_b32 s{sT1}, s{sT1}, 63")
    E(f"s_and_b32 s{sT2}, s{sT1}, 1")
    E(f"s_lshl_b32 s{sT2}, s{sT2}, 7")
    E(f"s_lshl_b32 s{sT1}, s{sT1}, 10")
    E(f"s_add_u32 m0, s{sT1}, {V_LDS}")
    E(f"v_xor_b32 v6, s{sT2}, v5")
    E(f"s_waitcnt vmcnt({THV1-1})")
    E(f"buffer_load_dwordx4 v6, s[{R_B}:{R_B+3}], s{sT1} offen{NTV} lds")
    E(f"s_add_u32 s{sT0}, s{sT0}, 3")
    E(f"s_cmp_lt_u32 s{sT0}, {NV1}")
    E("s_cbranch_scc1 L_A_vl1")
L("L_A_vl")
E(f"s_add_u32 s{sT1}, s{sC1}, s{sT0}")
E(f"s_and_b32 s{sT1}, s{sT1}, 63")
E(f"s_and_b32 s{sT2}, s{sT1}, 1")
E(f"s_lshl_b32 s{sT2}, s{sT2}, 7")
E(f"s_lshl_b32 s{sT1}, s{sT1}, 10")
E(f"s_add_u32 m0, s{sT1}, {V_LDS}")
E(f"v_xor_b32 v6, s{sT2}, v5")
E(f"s_waitcnt vmcnt({THV-1})")
E(f"buffer_load_dwordx4 v6, s[{R_B}:{R_B+3}], s{sT1} offen{NTV} lds")
E(f"s_add_u32 s{sT0}, s{sT0}, 3")
E(f"s_cmp_lt_u32 s{sT0}, 64")
E("s_cbranch_scc1 L_A_vl")
stamp(1)
E("s_branch L_A_pf2")
sec("actl")
L("L_A_pf2")
E(f"s_mul_i32 s{sT1}, s{sG}, {224*1024}")
E(f"s_mul_i32 s{sT2}, s{sJ}, 14336")
E(f"s_add_u32 s{sT1}, s{sT1}, s{sT2}")
E(f"s_cmp_eq_u32 s{sWV}, 6")
E(f"s_cselect_b32 s{sT3}, {14336 if W2P else 0}, 0")
srd(R_C, sW2, f"s{sT1}", f"s{sT3}")
E(f"s_mov_b32 s{sT1}, 0")
E(f"s_mov_b32 s{sT2}, 8192")
E("v_lshlrev_b32 v6, 7, v1")
E(f"buffer_load_dword v240, v6, s[{R_C}:{R_C+3}], s{sT1} offen{NTT}")
E(f"buffer_load_dword v240, v6, s[{R_C}:{R_C+3}], s{sT2} offen{NTT}")
E("s_barrier")
E("s_waitcnt vmcnt(2)")
stamp(2)
ampx("xv", 5)
E("s_barrier")
stamp_flush(5, 2)
E("s_endpgm")
sec("a")
L("L_A_setup")
if PRIO & 1: E(f"s_setprio {2 if PRIO & 8 else 1}")
stamp(1)
KF, VF, QF, SC, PB, OD, OUTV, PF, STT = 16, 80, 144, 160, 176, 144, 176, 184, 216
T = 224
E("v_xor_b32 v4, v2, v3")
E("v_lshlrev_b32 v4, 4, v4")
E("v_lshl_add_u32 v4, v2, 8, v4")
E(f"v_add_u32 v4, s{sT0}, v4")
E("v_xor_b32 v5, 64, v4")
E("v_xor_b32 v6, 0x80, v4")
E("v_xor_b32 v7, 0xc0, v4")
E("v_and_b32 v15, 3, v2")
E("v_mul_u32_u24 v8, 320, v15")
E("v_lshl_add_u32 v8, v3, 4, v8")
E(f"v_add_u32 v8, {QS_LDS}, v8")
E("v_lshlrev_b32 v10, 4, v1")
E(f"v_add_u32 v10, {PX_LDS}, v10")
E(f"s_lshl_b32 s{sT1}, s{sWV}, 11")
E(f"v_add_u32 v9, s{sT1}, v10")
E("v_lshlrev_b32 v12, 5, v2")
E(f"v_add_u32 v12, {SX_LDS}, v12")
E(f"s_lshl_b32 s{sT1}, s{sWV}, 3")
E(f"v_add_u32 v11, s{sT1}, v12")
E("v_lshlrev_b32 v13, 12, v15")
E("v_lshl_add_u32 v13, v3, 3, v13")
E("v_bfe_u32 v14, v2, 2, 1")
E("v_lshl_add_u32 v13, v14, 5, v13")
E(f"s_lshl_b32 s{sT1}, s{sWV}, 6")
E(f"v_add_u32 v13, s{sT1}, v13")
E(f"v_cmp_eq_u32 s[{sMC_f}:{sMC_f+1}], 1, v14")
E(f"v_lshlrev_b32 v14, 7, v15")
E(f"v_lshrrev_b32 v{T}, 2, v2")
E(f"v_lshl_add_u32 v{T}, v3, 2, v{T}")
E(f"v_and_b32 v{T+1}, 7, v{T}")
E(f"s_lshl_b32 s{sT1}, s{sWV}, 1")
E(f"v_xor_b32 v{T+1}, s{sT1}, v{T+1}")
E(f"v_lshlrev_b32 v{T}, 8, v{T}")
E(f"v_lshl_add_u32 v{T}, v{T+1}, 5, v{T}")
E(f"v_lshl_add_u32 v{T}, v15, 3, v{T}")
E(f"v_add_u32 v{T}, {V_LDS}, v{T}")
E(f"v_xor_b32 v{T+1}, 32, v{T}")
E(f"s_lshl_b32 s{sT1}, s{sJ}, 8")
E(f"s_add_u32 s{sPoff}, s{sPoff}, s{sT1}")
E(f"s_and_b32 s{sT1}, s{sJ}, 3")
E(f"s_lshl_b32 s{sT1}, s{sT1}, 5")
E(f"s_lshr_b32 s{sT2}, s{sJ}, 2")
E(f"s_lshl_b32 s{sT2}, s{sT2}, 3")
E(f"s_add_u32 s{sT1}, s{sT1}, s{sT2}")
E(f"s_add_u32 s{sPub}, s{sT1}, {W_ST}")
E(f"s_mov_b32 s{sC1}, {f32((128**-0.5)*math.log2(math.e))}")
E(f"s_mov_b32 s{sFFFE}, 0xfffefffe")
E(f"v_mov_b32 v{T+2}, {FL_LDS}")
E(f"v_mov_b32 v{T+8}, s{sC1}")
E(f"s_cmp_eq_u32 s{sWV}, 0")
E(f"s_cselect_b32 s{sC2}, 15, 0")
E(f"s_mov_b32 s{sMB_f+1}, 0")
E(f"s_mov_b32 s{sMB_s+1}, 0")
E("s_waitcnt vmcnt(0)")
stamp(2)
ampx("xk", 0)
for e in range(4):
    for s in range(4):
        E(f"ds_read_b128 {vr(KF+(e*4+s)*4,4)}, v{4+s} offset:{4096*e}")
L("L_A_b1")
mark("a")
E("s_barrier")
for s in range(4):
    E(f"ds_read_b128 {vr(QF+4*s,4)}, v8 offset:{64*s}")
stamp(3, True)
def qk(e, s):
    c = "0" if s == 0 else vr(SC+4*e,4)
    E(f"v_mfma_f32_16x16x32_bf16 {vr(SC+4*e,4)}, {vr(KF+(e*4+s)*4,4)}, {vr(QF+4*s,4)}, {c}")
for s in range(4):
    E(f"s_waitcnt lgkmcnt({3-s})")
    qk(0, s); qk(1, s)
for s in range(4):
    qk(2, s); qk(3, s)
E(f"v_max3_f32 v{T+4}, v{SC}, v{SC+1}, v{SC+2}")
E(f"v_max3_f32 v{T+5}, v{SC+3}, v{SC+4}, v{SC+5}")
E(f"v_max3_f32 v{T+4}, v{T+4}, v{SC+6}, v{SC+7}")
E("s_nop 3")
E(f"v_max3_f32 v{T+5}, v{T+5}, v{SC+8}, v{SC+9}")
E(f"v_max3_f32 v{T+4}, v{T+4}, v{SC+10}, v{SC+11}")
E(f"v_max3_f32 v{T+5}, v{T+5}, v{SC+12}, v{SC+13}")
E(f"v_max3_f32 v{T+4}, v{T+4}, v{SC+14}, v{SC+15}")
E(f"v_max_f32 v{T+4}, v{T+4}, v{T+5}")
E(f"v_mov_b32 v{T+5}, v{T+4}")
E("s_nop 1")
E(f"v_permlane16_swap_b32 v{T+4}, v{T+5}")
E(f"v_max_f32 v{T+4}, v{T+4}, v{T+5}")
E(f"v_mov_b32 v{T+5}, v{T+4}")
E("s_nop 1")
E(f"v_permlane32_swap_b32 v{T+4}, v{T+5}")
E(f"v_max_f32 v{T+4}, v{T+4}, v{T+5}")
E(f"v_mul_f32 v{T+6}, s{sC1}, v{T+4}")
for i in range(8):
    E(f"v_pk_fma_f32 {vr(SC+2*i,2)}, {vr(SC+2*i,2)}, {vr(T+8,2)}, {vr(T+6,2)} op_sel_hi:[1,0,0] neg_lo:[0,0,1] neg_hi:[0,0,1]")
for i in range(8):
    E(f"v_exp_f32 v{SC+i}, v{SC+i}")
E(f"v_exp_f32 v{SC+8}, v{SC+8}")
for i in range(4):
    E(f"v_cvt_pk_bf16_f32 v{PB+i}, v{SC+2*i}, v{SC+2*i+1}")
E(f"ds_write_b128 v9, {vr(PB,4)}")
for i in range(9, 16):
    E(f"v_exp_f32 v{SC+i}, v{SC+i}")
E(f"v_add_f32 v{T+7}, v{SC}, v{SC+1}")
for i in range(4, 8):
    E(f"v_cvt_pk_bf16_f32 v{PB+i}, v{SC+2*i}, v{SC+2*i+1}")
E(f"ds_write_b128 v9, {vr(PB+4,4)} offset:1024")
for i in range(4):
    E(f"v_pk_add_f32 {vr(SC+2+ 0,2) if False else vr(SC+4*i,2)}, {vr(SC+4*i,2)}, {vr(SC+4*i+2,2)}")
E(f"v_pk_add_f32 {vr(SC,2)}, {vr(SC,2)}, {vr(SC+4,2)}")
E(f"v_pk_add_f32 {vr(SC+8,2)}, {vr(SC+8,2)}, {vr(SC+12,2)}")
E(f"v_pk_add_f32 {vr(SC,2)}, {vr(SC,2)}, {vr(SC+8,2)}")
E(f"v_add_f32 v{T+7}, v{SC}, v{SC+1}")
E(f"v_mov_b32 v{T+5}, v{T+7}")
E("s_nop 1")
E(f"v_permlane16_swap_b32 v{T+7}, v{T+5}")
E(f"v_add_f32 v{T+7}, v{T+7}, v{T+5}")
E(f"v_mov_b32 v{T+5}, v{T+7}")
E("s_nop 1")
E(f"v_permlane32_swap_b32 v{T+7}, v{T+5}")
E(f"v_add_f32 v{T+7}, v{T+7}, v{T+5}")
E(f"ds_write_b64 v11, {vr(T+6,2)}")
stamp(4, True)
mark("a")
E("s_waitcnt lgkmcnt(0)")
E("s_barrier")
ampx("xb", 0)
E(f"ds_read_b32 v{T+3}, v{T+2}")
for b in range(2):
    E(f"ds_read_b128 {vr(STT+4*b,4)}, v12 offset:{16*b}")
stamp(5, True)
F = STT
def pv(first):
    def reads(u):
        E(f"ds_read_b128 {vr(PF+4*u,4)}, v10 offset:{1024*u}")
        if first:
            for tp in range(2):
                for e in range(2):
                    E(f"ds_read_b64_tr_b16 {vr(VF+(tp*8+u)*4+2*e,2)}, v{T+tp} offset:{(32*u+16*e)*256}")
    ahead = 2 if first else 8
    per_u = 5 if first else 1
    for u in range(ahead): reads(u)
    E(f"s_waitcnt lgkmcnt({ahead*per_u})")
    va = [f"v_max3_f32 v{T+4}, v{STT}, v{STT+2}, v{STT+4}", f"v_max_f32 v{T+6}, v{T+4}, v{STT+6}"]
    va += [f"v_sub_f32 v{F+2*b}, v{STT+2*b}, v{T+6}" for b in range(4)]
    va += [f"v_exp_f32 v{F+2*b}, v{F+2*b}" for b in range(4)]
    va += [f"v_mul_f32 v{T+7}, v{F}, v{STT+1}"] + [f"v_fmac_f32 v{T+7}, v{F+2*b}, v{STT+2*b+1}" for b in range(1, 4)]
    E(f"v_readfirstlane_b32 s{sMODE}, v{T+3}")
    for x in va[:2]: E(x)
    sa = [f"s_cmp_eq_u32 s{sMODE}, 1", f"s_cselect_b32 s{sMB_f}, s{sC2}, 0", f"s_cselect_b32 s{sMB_s}, 0, s{sC2}",
          f"s_cselect_b32 s{sMA_f}, 0x00ff00ff, 0", f"s_cselect_b32 s{sMA_f+1}, 0x00ff00ff, 0", f"s_cselect_b32 s{sMA_s}, 0, 0x00ff00ff",
          f"s_cselect_b32 s{sMA_s+1}, 0, 0x00ff00ff", f"s_cselect_b32 s{sT2}, 0, {ALT}", f"s_add_u32 s{sPe}, s{sPoff}, s{sT2}",
          f"s_add_u32 s{sT2}, s{sLOC}, s{sT2}", f"s_add_u32 s{sT2}, s{sT2}, s{sPub}"]
    k = 2
    for u in range(8):
        if u + ahead < 8: reads(u + ahead)
        E(f"s_waitcnt lgkmcnt({(min(8, u + ahead + 1) - u - 1) * per_u})")
        for tp in range(2):
            d = vr(OD+(tp*4+u//2)*4,4)
            E(f"v_mfma_f32_16x16x32_bf16 {d}, {vr(VF+(tp*8+u)*4,4)}, {vr(PF+4*u,4)}, {'0' if u % 2 == 0 else d}")
            if k < len(va): E(va[k]); k += 1
            if sa and u >= 1: E(sa.pop(0)); E(sa.pop(0)) if sa else None
        if u == 5:
            assert k == len(va)
            E(f"v_min_u32 v{T+6}, -2, v{T+6}")
            E(f"v_min_u32 v{T+7}, -2, v{T+7}")
            pub2("buffer_store_dwordx2", vr(T+6,2), 14, sT2, sMB_f, sMB_s)
E(f"s_cmp_lg_u32 s{sLAY}, 0")
E("s_cbranch_scc1 L_A_havev")
pv(True)
E("s_branch L_A_comb")
L("L_A_havev")
pv(False)
L("L_A_comb")
def cb(b):
    for tp in range(2):
        for h in range(2):
            o = vr(OUTV+4*tp+2*h,2)
            if b == 0: E(f"v_pk_mul_f32 {o}, {vr(OD+tp*16+2*h,2)}, {vr(F,2)} op_sel_hi:[1,0]")
            else: E(f"v_pk_fma_f32 {o}, {vr(OD+(tp*4+b)*4+2*h,2)}, {vr(F+2*b,2)}, {o} op_sel_hi:[1,0,1]")
for b in range(4): cb(b)
for r in range(4):
    E(f"v_cndmask_b32 v{OUTV+r}, v{OUTV+r}, v{OUTV+4+r}, s[{sMC_f}:{sMC_f+1}]")
E(f"v_cvt_pk_bf16_f32 v{OUTV}, v{OUTV}, v{OUTV+1}")
E(f"v_cvt_pk_bf16_f32 v{OUTV+1}, v{OUTV+2}, v{OUTV+3}")
E(f"v_pk_min_u16 v{OUTV}, v{OUTV}, s{sFFFE}")
E(f"v_pk_min_u16 v{OUTV+1}, v{OUTV+1}, s{sFFFE}")
pub2("buffer_store_dwordx2", vr(OUTV,2), 13, sPe, sMA_f, sMA_s)
stamp(6, True)
ampx("xp", 0)
E(f"s_add_u32 s{sPoff}, s{sPoff}, {LS}")
E(f"s_add_u32 s{sLOC}, s{sLOC}, {LS}")
E(f"s_add_u32 s{sLAY}, s{sLAY}, 1")
E(f"s_cmp_lt_u32 s{sLAY}, 2")
E("s_cbranch_scc1 L_A_b1")
stamp_flush(0, 0, (int(OPT.get("dbg", 0)), 36, [60, 2, 3, 5, 6, 19, 22]))
E("s_endpgm")
sec("actl")
L("L_A_ctl")
E("s_waitcnt vmcnt(0)")
E(f"v_readfirstlane_b32 s{sTAG}, v241")
E("s_nop 3")
E(f"s_add_u32 s{sTAG}, s{sTAG}, 1")
ampx("xe", 4)
ampx("xs", 4)
ampx("xa", 4)
xc_publish()
warm("a")
E(f"v_lshrrev_b32 v{cT+5}, 5, v1")
E(f"v_lshlrev_b32 v{cT+5}, 6, v{cT+5}")
E(f"v_lshl_add_u32 v{cT+5}, v1, 3, v{cT+5}")
E(f"v_add_u32 v{cT+5}, {QS_LDS}, v{cT+5}")
first_gather("aq0", True, None)
stamp(2)
ampx("xq", 4)
E("s_waitcnt lgkmcnt(0)")
E("s_barrier")
first_gather("ax", False, None, armed=True)
stamp(3)
E("s_waitcnt lgkmcnt(0)")
E(f"s_cmp_eq_u32 s{sMODE}, 1")
E(f"s_cselect_b32 s{sT2}, 0, {ALT}")
E(f"s_add_u32 s{sLe}, s{sLOC}, s{sT2}")
E(f"s_add_u32 s{sLe}, s{sLe}, {LS}")
E(f"v_lshl_add_u32 v{cT+2}, v3, 6, v{cL16}")
E(f"v_add_u32 v{cT+2}, {QS_LDS}, v{cT+2}")
E("s_barrier")
E("s_waitcnt vmcnt(0)")
if TP & 4:
    E(f"s_sub_u32 s{sT1}, s{sLe}, {LS}")
    gather1("ax1", cG+4, cL16, sT1, W_X1, cT, pd=1, slp=2*PSL)
arm(cG, 4)
gather1("aq", cG, cL16, sLe, W_Q, cT)
E(f"ds_write_b128 v{cT+2}, {vr(cG,4)}")
stamp(18)
E("s_waitcnt lgkmcnt(0)")
E("s_barrier")
stamp_flush(4, 1)
E("s_endpgm")

vL16, aXIO, aTA, aTB, aIN, aST, aP16, aPY, vONE, aOS, aXS = 4, 5, 6, 7, 8, 9, 10, 11, 12, 13, 14
SEL0, ONESB, XR, XN, XB, vT = 16, 24, 28, 36, 44, 48
TT = 49
vB1, vCS, aGX, vINV, vVAL = 15, 0, 249, 250, 252
GB, WA, ACC, WB = 64, 96, 160, 192
vST, CA, MK, vFLG = 224, 232, 236, 248
NACC = 8

retry_blocks = []
def gather_X(tag, soff, role, hook=None):
    def loads():
        for i in range(8):
            so = soff if i < 4 else sT0
            E(f"buffer_load_dwordx4 {vr(GB+4*i,4)}, v{aGX}, {WSR}, s{so} offen offset:{256*(i%4)}{GFL}")
    def sums(wait):
        for i in range(8):
            if wait is not None: E(f"s_waitcnt vmcnt({wait + 7 - i})")
            e, w = (i % 4) // 2, i % 2
            c = vr(XR+4*e,4) if i in (0, 2) else vr(XN+4*e,4)
            E(f"v_mfma_f32_16x16x32_bf16 {vr(XN+4*e,4)}, {vr(SEL0+4*w,4)}, {vr(GB+4*i,4)}, {c}")
    E(f"s_add_u32 s{sT0}, s{soff}, 4096")
    if ACK: E("s_waitcnt vmcnt(0)")
    elif GD: E(f"s_sleep {GD}")
    if PROF in (2, 9): stamp(9, True)
    for _ in range(GP - 1):
        loads()
        if GSL: E(f"s_sleep {GSL}")
    E(f"s_branch L_{tag}_again")
    L(f"L_{tag}_nan")
    E(f"s_sub_u32 s{sSPIN}, s{sSPIN}, 1")
    E("s_cbranch_scc1 L_exit")
    E(f"s_and_b32 s{sT1}, s{sSPIN}, 15")
    E(f"s_cbranch_scc0 L_{tag}_retry")
    if GSL: E(f"s_sleep {GSL}")
    L(f"L_{tag}_again")
    loads()
    if hook: hook()
    mark(role)
    sums(8 * (GP - 1))
    E("s_nop 6")
    E(f"v_cmp_u_f32 vcc, v{XN}, v{XN}")
    E(f"v_cmp_u_f32 s[{sS1}:{sS1+1}], v{XN+4}, v{XN+4}")
    for d in range(4):
        E(f"v_cvt_pk_bf16_f32 v{XB+d}, v{XN+2*d}, v{XN+2*d+1}")
    E(f"s_or_b64 vcc, vcc, s[{sS1}:{sS1+1}]")
    E(f"s_cbranch_vccnz L_{tag}_nan")
    L(f"L_{tag}_ok")
    if PROF in (2, 9):
        stamp(11, True)
        E(f"s_mov_b32 s{sST}, s{sSPIN}")
    def blk():
        L(f"L_{tag}_retry")
        for i in range(16): E(f"v_pk_max_u16 v{ACC+i}, v{GB+2*i}, v{GB+2*i+1}")
        for i in range(8): E(f"v_pk_max_u16 v{ACC+i}, v{ACC+2*i}, v{ACC+2*i+1}")
        for i in range(4): E(f"v_pk_max_u16 v{ACC+i}, v{ACC+2*i}, v{ACC+2*i+1}")
        chk_bf16(ACC, TT)
        E(f"s_cbranch_vccnz L_{tag}_again")
        sums(None)
        E("s_nop 7")
        for d in range(4):
            E(f"v_cvt_pk_bf16_f32 v{XB+d}, v{XN+2*d}, v{XN+2*d+1}")
        E(f"s_branch L_{tag}_ok")
    retry_blocks.append(blk)

def relay_X(tag, soff, pre):
    E(f"v_mov_b32 v{vT}, 0")
    E(f"s_cmp_lg_u32 s{sWV}, 0")
    E(f"s_cbranch_scc1 L_{tag}_other")
    pre()
    gather_X(tag, soff, "d2")
    E(f"ds_write_b128 v{aXS}, {vr(XB,4)}")
    post = f"L_{tag}_join"
    E("s_waitcnt lgkmcnt(0)")
    E("s_barrier")
    E(f"s_branch {post}")
    L(f"L_{tag}_other")
    E("s_waitcnt vmcnt(0)")
    E("s_barrier")
    E(f"ds_read_b128 {vr(XB,4)}, v{aXS}")
    E("s_waitcnt lgkmcnt(0)")
    L(post)

def unpack_resid(src):
    for d in range(4):
        E(f"v_lshlrev_b32 v{XR+2*d}, 16, v{src+d}")
        E(f"v_and_b32 v{XR+2*d+1}, 0xffff0000, v{src+d}")

def matvec(nsteps, A, W, fillers, rows=None, per=PER, waits=False):
    if rows is None:
        rows = [(1 << G, 0xf, list(range(4*G, min(4*G+4, nsteps)))) for G in range((nsteps + 3) // 4)]
    acc = lambda s_: ACC + 4*(rank[s_] % NACC)
    order = [x for x in range(nsteps) if not any(x == st_[-1] for _, _, st_ in rows)] + [st_[-1] for _, _, st_ in rows]
    if waits or not REORD: order = list(range(nsteps))
    rank = {x: i for i, x in enumerate(order)}
    ext = []
    for (rm, bm, st_) in rows:
        dp = f"quad_perm:[0,1,2,3] row_mask:{hex(rm)} bank_mask:{hex(bm)}"
        a = lambda s_: f"v{acc(s_) + s_ % 4}"
        ext.append((st_[1], f"v_add_f32_dpp v{vT}, {a(st_[0])}, {a(st_[1])} {dp}"))
        for s_ in st_[2:]:
            ext.append((s_, f"v_add_f32_dpp v{vT}, {a(s_)}, v{vT} {dp}"))
    order = [x for x in range(nsteps) if not any(x == st_[-1] for _, _, st_ in rows)] + [st_[-1] for _, _, st_ in rows]
    if waits or not REORD: order = list(range(nsteps))
    rank = {x: i for i, x in enumerate(order)}
    ext.sort(key=lambda e: rank[e[0]])
    st = dict(pos=0, lastT=-1)
    pm = {}
    def put(x, n=1):
        E(x); st["pos"] += n
    def need(e):
        if e[0] not in pm: return 99
        return max(pm[e[0]] + 9 - st["pos"], st["lastT"] + 3 - st["pos"], 0)
    fl = list(fillers)
    for s_ in order:
        while ext and rank[ext[0][0]] <= rank[s_] - NACC + 1 and rank[s_] >= NACC:
            n = need(ext[0])
            if n: put(f"s_nop {n-1}", n)
            st["lastT"] = st["pos"]; put(ext.pop(0)[1])
        if waits and s_ >= 8 or waits and s_ == 0: put(f"s_waitcnt lgkmcnt({min(15, 30-2*s_)})")
        pm[s_] = st["pos"]
        put(f"v_mfma_f32_16x16x32_bf16 {vr(acc(s_),4)}, {vr(A,4)}, {vr(W+4*s_,4)}, 0")
        idle = 0
        for _ in range(per):
            if ext and need(ext[0]) - idle <= 0:
                if idle: put(f"s_nop {idle-1}", idle); idle = 0
                st["lastT"] = st["pos"]; put(ext.pop(0)[1])
            elif fl:
                if idle: put(f"s_nop {idle-1}", idle); idle = 0
                put(fl.pop(0))
            elif PAD and s_ != order[-1]: idle += 1
        if idle: put(f"s_nop {idle-1}", idle)
    while ext or fl:
        if ext and need(ext[0]) == 0:
            st["lastT"] = st["pos"]; put(ext.pop(0)[1])
        elif fl:
            put(fl.pop(0))
        else:
            n = need(ext[0]); put(f"s_nop {n-1}", n)

def stats_fillers():
    f = []
    for d in range(4):
        f.append(f"v_lshlrev_b32 v{XR+2*d}, 16, v{XB+d}")
        f.append(f"v_and_b32 v{XR+2*d+1}, 0xffff0000, v{XB+d}")
        if d == 0: f.append(f"v_readfirstlane_b32 s{sPIV}, v{XR}")
    D = XN
    for i in range(4):
        f.append(f"v_pk_add_f32 {vr(D+2*i,2)}, {vr(XR+2*i,2)}, s[{sPIV}:{sPIV+1}] op_sel_hi:[1,0] neg_lo:[0,1] neg_hi:[0,1]")
    a, b = TT+1, TT+3
    assert a % 2 == 0
    f.append(f"v_pk_add_f32 {vr(a,2)}, {vr(D,2)}, {vr(D+2,2)}")
    f.append(f"v_pk_mul_f32 {vr(b,2)}, {vr(D,2)}, {vr(D,2)}")
    for i in range(1, 4):
        f.append(f"v_pk_fma_f32 {vr(b,2)}, {vr(D+2*i,2)}, {vr(D+2*i,2)}, {vr(b,2)}")
        if i > 1: f.append(f"v_pk_add_f32 {vr(a,2)}, {vr(a,2)}, {vr(D+2*i,2)}")
    f.append(f"v_add_f32 v{b}, v{b}, v{b+1}")
    f.append(f"v_add_f32 v{a}, v{a}, v{a+1}")
    f.append("s_nop 0")
    for dp in ("quad_perm:[1,0,3,2] row_mask:0xf", "quad_perm:[2,3,0,1] row_mask:0xf", "row_half_mirror row_mask:0xf",
               "row_mirror row_mask:0xf", "row_bcast:15 row_mask:0xa", "row_bcast:31 row_mask:0xc"):
        f.append(f"v_add_f32_dpp v{b}, v{b}, v{b} {dp} bank_mask:0xf")
        f.append(f"v_add_f32_dpp v{a}, v{a}, v{a} {dp} bank_mask:0xf")
        f.append("s_nop 0")
    f.append(f"v_readlane_b32 s{sS2}, v{b}, 63")
    f.append(f"v_readlane_b32 s{sS1}, v{a}, 63")
    f.append(f"v_fma_f32 v{TT+3}, s{sS2}, v{vINV}, v{vINV+1}" if False else "s_nop 0")
    f.append(f"v_fma_f32 v{TT+3}, s{sS2}, v{vINV}, v{vINV+1}")
    f.append(f"v_mul_f32 v{TT+2}, s{sS1}, v{vINV}")
    f.append(f"v_fma_f32 v{TT+3}, -v{TT+2}, v{TT+2}, v{TT+3}")
    f.append(f"v_max_f32 v{TT+3}, v{vINV+1}, v{TT+3}")
    f.append(f"v_rsq_f32 v{TT+3}, v{TT+3}")
    f.append(f"v_add_f32 v{TT+2}, s{sPIV}, v{TT+2}")
    return f

def xgroup_sum(fold8=False, plain=False):
    if fold8: E(f"v_and_b32 v{vT}, v{vVAL}, v{vT}")
    E(f"v_mov_b32 v{TT+5}, v{vT}")
    E("s_nop 1")
    E(f"v_permlane16_swap_b32 v{vT}, v{TT+5}")
    E(f"v_add_f32 v{vT}, v{vT}, v{TT+5}")
    E(f"v_mov_b32 v{TT+5}, v{vT}")
    E("s_nop 1")
    E(f"v_permlane32_swap_b32 v{vT}, v{TT+5}")
    E(f"v_add_f32 v{vT}, v{vT}, v{TT+5}")
    if fold8:
        E("s_nop 1")
        E(f"v_add_f32_dpp v{vT}, v{vT}, v{vT} row_ror:8 row_mask:0xf bank_mask:0xf")
    if plain: return
    E(f"v_fma_f32 v{vT}, -v{TT+2}, v{vCS}, v{vT}")
    E(f"v_mul_f32 v{vT}, v{vT}, v{TT+3}")

def y_publish():
    xgroup_sum(plain=True)
    E("s_nop 1")
    E(f"v_mov_b32_dpp v{TT+5}, v{vT} quad_perm:[1,1,3,3] row_mask:0xf bank_mask:0xf")
    E("s_mov_b64 exec, 0x5555")
    E(f"v_cvt_pk_bf16_f32 v{vT}, v{vT}, v{TT+5}")
    E(f"v_pk_min_u16 v{vT}, v{vT}, s{sFFFE}")
    E(f"buffer_store_dword v{vT}, v{aP16}, {WSR}, s{sPubG} offen{SFL}")
    E("s_mov_b64 exec, -1")

def pub_resid(off):
    for d in range(4): E(f"v_pk_min_u16 v{TT+7+d}, v{XB+d}, s{sFFFE}")
    pub2("buffer_store_dwordx4", vr(TT+7,4), vL16, sLOC, sMB_f, sMB_s, off)

def read_mode(lo_a, pj=0):
    E(f"v_mov_b32 v{TT}, {FL_LDS}")
    E(f"ds_read_b32 v{TT+1}, v{TT}")
    E("s_waitcnt lgkmcnt(0)")
    E(f"v_readfirstlane_b32 s{sMODE}, v{TT+1}")
    E(f"s_cmp_eq_u32 s{sPJ}, {pj}")
    E(f"s_cselect_b32 s{sT1}, -1, 0")
    E("s_nop 2")
    E(f"s_cmp_eq_u32 s{sMODE}, 1")
    masks(sMA_f, sMA_s, lo_a, "0")
    masks(sMB_f, sMB_s, f"s{sT1}", f"s{sT1}")
    E(f"s_cselect_b32 s{sT1}, 0, {ALT}")
    for s_ in (sLOC, sPoff, sPub):
        E(f"s_add_u32 s{s_}, s{s_}, s{sT1}")

sec("entry")
L("L_D_init")
ROLE[0] = "d"
E(f"s_and_b32 s{sC}, s{sJ}, 7")
E(f"s_lshl_b32 s{sPJ}, s{sC}, 2")
E(f"s_add_u32 s{sPJ}, s{sPJ}, s{sWV}")
E("v_lshrrev_b32 v242, 3, v1")
E("v_and_b32 v243, 7, v1")
def v_prefetch():
    if not VPF: return
    E(f"s_lshl_b32 s{sS2}, s{sG}, 24")
    E(f"s_add_u32 s{sS2}, s{sS2}, {61440*256}")
    srd(R_A, sV, f"s{sS2}", 1 << 20)
    E(f"s_lshl_b32 s{sS1}, s{sC}, 1")
    E(f"s_lshr_b32 s{sS2}, s{sWV}, 2")
    E(f"s_add_u32 s{sS1}, s{sS1}, s{sS2}")
    E(f"s_add_u32 s{sS2}, s{sS1}, s{sG}")
    E(f"s_lshl_b32 s{sS2}, s{sS2}, 2")
    E(f"s_and_b32 s{sT0}, s{sWV}, 3")
    E(f"s_lshl_b32 s{sT0}, s{sT0}, 3")
    E(f"s_add_u32 s{sS2}, s{sS2}, s{sT0}")
    E(f"s_add_u32 s{sS2}, s{sS2}, 32")
    E(f"v_add_u32 v238, s{sS2}, v242")
    E("v_and_b32 v238, 63, v238")
    E("v_lshlrev_b32 v238, 10, v238")
    E("v_lshl_add_u32 v238, v243, 7, v238")
    E(f"s_lshl_b32 s{sS1}, s{sS1}, 16")
    E(f"buffer_load_dword v255, v238, s[{R_A}:{R_A+3}], s{sS1} offen{NTV}")
def wo_issue():
    E(f"s_lshl_b32 s{sT0}, s{sG}, 19")
    E(f"s_lshl_b32 s{sT1}, s{sC}, 7")
    E(f"s_add_u32 s{sT0}, s{sT0}, s{sT1}")
    E(f"s_sub_u32 s{sT3}, {4194304}, s{sT0}")
    srd(R_A, sWO, f"s{sT0}", f"s{sT3}")
    E("v_and_b32 v245, 2, v242")
    E("v_xor_b32 v245, v245, v243")
    E(f"s_and_b32 s{sT1}, s{sWV}, 1")
    E(f"s_lshl_b32 s{sT1}, s{sT1}, 2")
    E(f"v_xor_b32 v245, s{sT1}, v245")
    E("v_lshlrev_b32 v244, 10, v242")
    E("v_lshl_add_u32 v244, v245, 4, v244")
    E(f"s_lshl_b32 s{sT0}, s{sWV}, 14")
    E(f"s_mov_b32 m0, s{sT0}")
    E(f"s_lshl_b32 s{sT1}, s{sWV}, 17")
    if LATE0 == 1: E("s_waitcnt vmcnt(0)")
    if LATE0 >= 2: E("s_barrier")
    E(f"s_add_u32 s{sT2}, s{sT1}, {16*8192}")
    L("L_D2_wol")
    if TDO: E(f"s_waitcnt vmcnt({TDO-1})")
    E(f"buffer_load_dwordx4 v244, s[{R_A}:{R_A+3}], s{sT1} offen{NTW} lds")
    E("s_add_u32 m0, m0, 1024")
    E(f"s_add_u32 s{sT1}, s{sT1}, 8192")
    E(f"s_cmp_lt_u32 s{sT1}, s{sT2}")
    E("s_cbranch_scc1 L_D2_wol")
def clear_global():
    for r in range(4): E(f"v_mov_b32 v{cG+r}, -1")
    E(f"s_mov_b32 s{sT1}, {LS}")
    E(f"v_lshrrev_b32 v{cT}, 3, v2")
    E(f"v_mul_lo_u32 v{cT}, v{cT}, s{sT1}")
    E(f"v_lshl_add_u32 v{cT}, v243, 4, v{cT}")
    E(f"v_lshl_add_u32 v{cT}, v3, 13, v{cT}")
    E(f"s_lshl_b32 s{sT1}, s{sG}, 10")
    E(f"s_lshl_b32 s{sT2}, s{sC}, 7")
    E(f"s_add_u32 s{sT1}, s{sT1}, s{sT2}")
    E(f"s_add_u32 s{sT1}, s{sT1}, {W_Y}")
    E("s_mov_b32 exec_hi, 0")
    E(f"buffer_store_dwordx4 {vr(cG,4)}, v{cT}, {WSR}, s{sT1} offen sc1")
    E("s_mov_b64 exec, -1")

def d2_clear(sc, alt):
    for r in range(4): E(f"v_mov_b32 v{cG+r}, -1")
    E(f"s_lshl_b32 s{sT1}, s{sC}, 11")
    E(f"s_add_u32 s{sT1}, s{sT1}, s{sPoff}")
    if alt: E(f"s_add_u32 s{sT1}, s{sT1}, {ALT}")
    E(f"s_add_u32 s{sT2}, s{sT1}, {LS}")
    for so in (sT1, sT2):
        for o in range(2):
            E(f"buffer_store_dwordx4 {vr(cG,4)}, v{cL16}, {WSR}, s{so} offen offset:{1024*o}{sc}")
    E(f"s_mov_b32 s{sT1}, {LS}")
    E(f"v_lshrrev_b32 v{cT}, 5, v1")
    E(f"v_mul_lo_u32 v{cT}, v{cT}, s{sT1}")
    E(f"v_and_b32 v{cT+1}, 31, v1")
    E(f"v_lshl_add_u32 v{cT}, v{cT+1}, 4, v{cT}")
    E(f"s_lshl_b32 s{sT1}, s{sC}, 9")
    E(f"s_add_u32 s{sT1}, s{sT1}, s{sLOC}")
    if alt: E(f"s_add_u32 s{sT1}, s{sT1}, {ALT}")
    E(f"buffer_store_dwordx4 {vr(cG,4)}, v{cT}, {WSR}, s{sT1} offen{sc}")
E(f"s_cmp_lt_u32 s{sJ}, 24")
E("s_cbranch_scc1 L_D_const")
E(f"s_cmp_lg_u32 s{sWV}, 4")
E("s_cbranch_scc1 L_D2_e1")
d2_clear("", False)
E("s_branch L_D2_init")
L("L_D2_e1")
E(f"s_cmp_lg_u32 s{sWV}, 5")
E("s_cbranch_scc1 L_D2_e2")
clear_global()
E("s_branch L_D2_init")
L("L_D2_e2")
E(f"s_cmp_ge_u32 s{sWV}, 4")
E("s_cbranch_scc1 L_D2_init")
if LATE0 == 0: wo_issue()
else:
    E(f"s_lshl_b32 s{sT0}, s{sG}, 19")
    srd(R_A, sWO, f"s{sT0}", 1 << 19)
    E(f"buffer_load_dword v255, v{cL16}, s[{R_A}:{R_A+3}], 0 offen")
sec("dinit")
L("L_D_const")
E("v_mov_b32 v245, 0")
E("v_mov_b32 v244, 0")
srd(R_B, sX, None, 1024)
E(f"v_lshrrev_b32 v{TT}, 1, v3")
E(f"v_and_b32 v{TT+1}, 1, v3")
E(f"v_lshlrev_b32 v{aXIO}, 8, v{TT}")
E(f"v_lshl_add_u32 v{aXIO}, v2, 4, v{aXIO}")
E(f"v_lshl_add_u32 v{aXIO}, v{TT+1}, 3, v{aXIO}")
E(f"buffer_load_dwordx2 {vr(XB,2)}, v{aXIO}, s[{R_B}:{R_B+3}], 0 offen")
E(f"buffer_load_dwordx2 {vr(XB+2,2)}, v{aXIO}, s[{R_B}:{R_B+3}], 0 offen offset:512")
E(f"v_lshlrev_b32 v{vL16}, 4, v1")
E(f"v_lshrrev_b32 v{TT+2}, 2, v2")
E(f"v_and_b32 v{TT+3}, 3, v2")
E(f"v_lshl_add_u32 v{TT+4}, v{TT}, 7, v{TT+2}")
E(f"v_lshl_add_u32 v{TT+4}, v{TT+1}, 2, v{TT+4}")
E(f"v_lshlrev_b32 v{aP16}, 1, v2")
E(f"v_lshrrev_b32 v{aPY}, 5, v1")
E(f"v_lshlrev_b32 v{aPY}, 4, v{aPY}")
E(f"v_add_u32 v{aXS}, {XS_LDS}, v{vL16}")
E(f"v_mov_b32 v{vONE}, 1.0")
for d in range(4): E(f"v_mov_b32 v{ONESB+d}, 0x3f803f80")
E(f"v_and_b32 v{TT+5}, 1, v2")
E(f"v_lshlrev_b32 v{TT+5}, 4, v{TT+5}")
E(f"v_mov_b32 v{TT+6}, 0x3f80")
E(f"v_lshlrev_b32 v{TT+6}, v{TT+5}, v{TT+6}")
E(f"v_lshrrev_b32 v{TT+7}, 1, v2")
E(f"v_lshlrev_b32 v{aGX}, 10, v3")
E(f"v_lshl_add_u32 v{aGX}, v2, 4, v{aGX}")
for d in range(8):
    E(f"v_cmp_eq_u32 vcc, {d}, v{TT+7}")
    E("s_nop 1")
    E(f"v_cndmask_b32 v{SEL0+d}, 0, v{TT+6}, vcc")
E(f"s_mov_b32 s{sFFFE}, 0xfffefffe")
E(f"v_mov_b32 v{vINV}, {f32(1/512)}")
E(f"v_mov_b32 v{vINV+1}, {f32(1e-5)}")
E(f"s_mov_b32 s{sC3}, {f32(-math.log2(math.e))}")
E(f"s_lshl_b32 s{sT1}, s{sPJ}, 5")
E(f"s_lshl_b32 s{sPubG}, s{sG}, 10")
E(f"s_add_u32 s{sPubG}, s{sPubG}, s{sT1}")
E(f"s_lshl_b32 s{sT2}, s{sWV}, 5")
E(f"s_cmp_ge_u32 s{sJ}, 24")
E("s_cbranch_scc1 L_D2_comp")

def ctl_head():
    E("s_waitcnt vmcnt(0)")
    E(f"v_readfirstlane_b32 s{sTAG}, v241")
    for r in range(4): E(f"v_mov_b32 v{cG+r}, -1")
    E(f"s_add_u32 s{sTAG}, s{sTAG}, 1")
E(f"s_lshl_b32 s{sT0}, s{sG}, 10")
E(f"s_lshl_b32 s{sT1}, s{sC}, 7")
E(f"s_add_u32 s{sT0}, s{sT0}, s{sT1}")
E(f"s_sub_u32 s{sT3}, {4194304}, s{sT0}")
srd(R_A, sWQ, f"s{sT0}", f"s{sT3}")
E("v_and_b32 v245, 6, v242")
E("v_xor_b32 v245, v245, v243")
E("v_lshlrev_b32 v244, 13, v242")
E("v_lshl_add_u32 v244, v245, 4, v244")
E(f"s_cmp_ge_u32 s{sWV}, 4")
E("s_cbranch_scc1 L_D1_help")
if PRIO & 2: E("s_setprio 1")
if TQ: E("s_waitcnt vmcnt(0)")
stamp(1)
E(f"s_lshl_b32 s{sT0}, s{sWV}, 14")
E(f"s_mov_b32 m0, s{sT0}")
E(f"s_lshl_b32 s{sT1}, s{sWV}, 20")
E(f"s_add_u32 s{sT3}, s{sT1}, {16*65536}")
L("L_D1_wql")
E(f"buffer_load_dwordx4 v244, s[{R_A}:{R_A+3}], s{sT1} offen{NTW} lds")
E("s_add_u32 m0, m0, 1024")
E(f"s_add_u32 s{sT1}, s{sT1}, 65536")
E(f"s_cmp_lt_u32 s{sT1}, s{sT3}")
E("s_cbranch_scc1 L_D1_wql")
sec("d1")
if VPF == 1: v_prefetch()
E(f"v_bfe_u32 v{TT+5}, v{TT+4}, 1, 2")
E(f"v_xor_b32 v{TT+5}, s{sWV}, v{TT+5}")
E(f"v_lshlrev_b32 v{aTA}, 7, v{TT+4}")
E(f"v_lshl_add_u32 v{aTA}, v{TT+3}, 3, v{aTA}")
E(f"v_lshl_add_u32 v{aTA}, v{TT+5}, 5, v{aTA}")
if not TQ: E("s_waitcnt vmcnt(16)")
E(f"v_lshl_add_u32 v{aTB}, v3, 3, v{TT+2}")
E(f"v_lshlrev_b32 v{aTB}, 7, v{aTB}")
E(f"v_lshl_add_u32 v{aTB}, v{TT+3}, 3, v{aTB}")
E(f"s_add_u32 s{sT2}, s{sT2}, {WB_LDS}")
E(f"v_add_u32 v{aTB}, s{sT2}, v{aTB}")
E(f"v_min_u32 v{aIN}, 6, v2")
E(f"v_lshlrev_b32 v{aIN}, 6, v{aIN}")
E(f"v_lshl_add_u32 v{aIN}, v3, 4, v{aIN}")
E(f"v_readfirstlane_b32 s{sTAG}, v241")
E(f"s_add_u32 s{sPubG}, s{sPubG}, {W_Z}")
E(f"s_mov_b32 s{sZoff}, {W_Z}")
E(f"s_lshl_b32 s{sT1}, s{sPJ}, 5")
E(f"s_add_u32 s{sPub}, s{sLOC}, s{sT1}")
srd(R_B, sOUT, None, 1024)
E(f"s_add_u32 s{sTAG}, s{sTAG}, 1")
for x in stats_fillers(): E(x)
for i in range(8): E(f"v_sub_f32 v{XN+i}, v{XR+i}, v{TT+2}")
for i in range(8): E(f"v_mul_f32 v{XN+i}, v{XN+i}, v{TT+3}")
for d in range(4): E(f"v_cvt_pk_bf16_f32 v{GB+d}, v{XN+2*d}, v{XN+2*d+1}")
E(f"v_mov_b32 v{vT}, 0")
D0 = GB + 12
E(f"v_mov_b32 v{D0+1}, s{sTAG}")
E(f"s_lshl_b32 s{sT1}, s{sPJ}, 6")
E(f"v_lshl_add_u32 v{TT+6}, v2, 2, s{sT1}")
E(f"s_waitcnt vmcnt({1 if VPF == 1 else 0})")
E("s_barrier")
amp("wq")
stamp(2)
for s in range(16):
    for e in range(2):
        E(f"ds_read_b64_tr_b16 {vr(WA+4*s+2*e,2)}, v{aTA} offset:{32768*e+1024*s}")
matvec(16, GB, WA, [], per=PN, waits=True)
xgroup_sum(plain=True)
E("s_nop 1")
E(f"v_mov_b32_dpp v{TT+5}, v{vT} quad_perm:[1,1,3,3] row_mask:0xf bank_mask:0xf")
E(f"v_cvt_pk_bf16_f32 v{D0}, v{vT}, v{TT+5}")
E("s_mov_b64 exec, 0x5555")
E(f"buffer_store_dwordx2 {vr(D0,2)}, v{TT+6}, {WSR}, s{sQ0} offen")
E("s_mov_b64 exec, -1")
stamp(3, True)
if VPF == 2: v_prefetch()
E(f"v_mov_b32 v{TT+7}, 0")
E(f"buffer_load_dword v{GB+20}, v{TT+7}, s[{R_B}:{R_B+3}], 0 offen")
for s in range(16):
    c = "0" if s == 0 else vr(CA,4)
    E(f"v_mfma_f32_16x16x32_bf16 {vr(CA,4)}, {vr(ONESB,4)}, {vr(WA+4*s,4)}, {c}")
E("s_nop 7")
E(f"v_mov_b32 v{vCS}, v{CA}")
E("s_barrier")
amp("st")
read_mode("0xffff")
E(f"s_mov_b32 s{sT1}, 0x5555")
E(f"s_cmp_eq_u32 s{sMODE}, 1")
E(f"s_cselect_b32 exec_lo, 0, s{sT1}")
E("s_mov_b32 exec_hi, 0")
E(f"buffer_store_dwordx2 {vr(D0,2)}, v{TT+6}, {WSR}, s{sQ0B} offen sc1")
E("s_mov_b64 exec, -1")
E("s_barrier")
for s in range(7):
    for e in range(2):
        E(f"ds_read_b64_tr_b16 {vr(WB+4*s+2*e,2)}, v{aTB} offset:{4096*s+512*e}")
E("s_waitcnt lgkmcnt(0)")
L("L_D1_act")
mark("d1")
AIN = vST
arm(AIN, 4)
E(f"buffer_load_dwordx4 {vr(CA,4)}, v{vL16}, {WSR}, s{sLOC} offen offset:{W_X1} sc1")
E(f"v_mov_b32 v{vT}, 0")
if TP & 1:
    E(f"v_lshlrev_b32 v{TT+2}, 3, v1")
    L("L_D1_far")
    E(f"buffer_load_dword v{TT+3}, v{TT+2}, {WSR}, s{sLOC} offen offset:{W_ST} sc1")
    E("s_waitcnt vmcnt(0)")
    E(f"v_cmp_eq_u32 vcc, -1, v{TT+3}")
    E("s_cbranch_vccz L_D1_near")
    E(f"s_sleep {2*PSL}")
    spin_check("L_D1_far")
    L("L_D1_near")
gather1("ga", AIN, aIN, sLOC, W_ACT, TT)
amp("act")
stamp(4, True)
E(f"buffer_load_dwordx4 {vr(CA,4)}, v{vL16}, {WSR}, s{sLOC} offen offset:{W_X1} sc1")
matvec(7, AIN, WB, [], per=PN)
y_publish()
stamp(5, True)
E(f"s_add_u32 s{sLAY}, s{sLAY}, 1")
E(f"s_cmp_lt_u32 s{sLAY}, 2")
E("s_cbranch_scc1 L_D1_z")
E(f"s_cmp_lg_u32 s2, 128")
E("s_cbranch_scc1 L_D1_end")
E(f"s_cmp_lg_u32 s{sWV}, 0")
E("s_cbranch_scc1 L_D1_end")
L("L_D1_z")
mark("d1")
def pre_z():
    E("s_waitcnt vmcnt(1)")
    chk_bf16(CA, TT)
    E("s_cbranch_vccz L_gx1_have")
    gather1("gx1", CA, vL16, sLOC, W_X1, TT, pd=1, slp=0)
    L("L_gx1_have")
    unpack_resid(CA)
def relay_z():
    E(f"v_mov_b32 v{vT}, 0")
    E(f"s_cmp_lg_u32 s{sWV}, 0")
    E(f"s_cbranch_scc1 L_gz_other")
    pre_z()
    gather_X("gz", sZoff, "d1")
    E(f"s_cmp_eq_u32 s{sLAY}, 2")
    E("s_cbranch_scc1 L_D1_out")
    E(f"ds_write_b128 v{aXS}, {vr(XB,4)}")
    E("s_waitcnt lgkmcnt(0)")
    E("s_barrier")
    E(f"s_branch L_gz_join")
    L(f"L_gz_other")
    E("s_waitcnt vmcnt(0)")
    E("s_barrier")
    E(f"ds_read_b128 {vr(XB,4)}, v{aXS}")
    E("s_waitcnt lgkmcnt(0)")
    L("L_gz_join")
relay_z()
stamp(6)
mark("d1")
matvec(16, XB, WA, stats_fillers())
for s_ in (sLOC, sPub, sPubG, sZoff):
    E(f"s_add_u32 s{s_}, s{s_}, {LS}")

xgroup_sum()
E(f"v_cvt_pk_bf16_f32 v{vT}, v{vT}, v{vT}")
E(f"v_min_u32 v{vT}, -2, v{vT}")
pub2("buffer_store_short", f"v{vT}", aP16, sPub, sMA_f, sMA_s, W_Q)
stamp(3, True)
pub_resid(W_X2)
E("s_branch L_D1_act")
L("L_D1_out")
E(f"buffer_store_dwordx2 {vr(XB,2)}, v{aXIO}, s[{R_B}:{R_B+3}], 0 offen")
E(f"buffer_store_dwordx2 {vr(XB+2,2)}, v{aXIO}, s[{R_B}:{R_B+3}], 0 offen offset:512")
E(f"v_mov_b32 v{TT}, s{sTAG}")
E(f"v_mov_b32 v{TT+1}, {W_EP}")
E("s_mov_b64 exec, 1")
E(f"buffer_store_dword v{TT}, v{TT+1}, {WSR}, 0 offen")
if AMP:
    E("s_memrealtime s[88:89]")
    E("s_waitcnt lgkmcnt(0)")
    if AMP == "end": E("s_mov_b32 s94, s88")
    E("s_sub_u32 s94, s94, s86")
    if AMP.startswith("x"):
        E(f"v_mov_b32 v253, {W_EP + 64}")
        E(f"buffer_load_dword v252, v253, {WSR}, 0 offen sc1")
        E("s_waitcnt vmcnt(0)")
        E("v_readfirstlane_b32 s94, v252")
        E("s_nop 3")
        E("s_sub_u32 s94, s94, s86")
        E("s_add_u32 s94, s94, 100")
        E("s_max_i32 s94, s94, 0")
    E("s_lshl_b32 s94, s94, 2")
    E("s_min_u32 s94, s94, 20000")
    E("s_add_u32 s94, s94, s88")
    L("L_amp_spin")
    E("s_memrealtime s[88:89]")
    E("s_waitcnt lgkmcnt(0)")
    E("s_sub_u32 s89, s94, s88")
    E("s_cmp_gt_i32 s89, 0")
    E("s_cbranch_scc1 L_amp_spin")
if PROF:
    stamp(7)
    E("s_waitcnt vmcnt(0)")
    stamp(8)
L("L_D1_end")
stamp_flush(0, 0, (128, 4, [60, 2, 3, 4, 6, 20, 8]))
E("s_endpgm")
sec("help")
L("L_D1_help")
E(f"s_mul_i32 s{sT0}, s{sG}, {224*1024}")
E(f"s_lshl_b32 s{sT1}, s{sC}, 7")
E(f"s_add_u32 s{sT0}, s{sT0}, s{sT1}")
srd(R_B, sW2, f"s{sT0}", 224*1024 - 896)
E("v_lshlrev_b32 v244, 10, v242")
E("v_lshl_add_u32 v244, v243, 4, v244")
E(f"s_cmp_eq_u32 s{sWV}, 4")
E("s_cbranch_scc1 L_D1_ctl")
if not W2P:
    E("v_lshlrev_b32 v245, 12, v1")
    E(f"buffer_load_dword v255, v245, s[{R_B}:{R_B+3}], 0 offen")
for u in range(3):
    E(f"s_cmp_lg_u32 s{sWV}, {5+u}")
    E(f"s_cbranch_scc1 L_D1_wm{u}")
    warm("d1", u, 3)
    L(f"L_D1_wm{u}")
E("s_branch L_D1_bq")
L("L_D1_ctl")
E(f"v_lshlrev_b32 v{cT}, 7, v2")
E(f"buffer_load_dword v240, v{cT}, {WSR}, s{sQ0} offen sc1")
ctl_head()
xc_publish()
L("L_D1_bq")
E("s_barrier")
v_prefetch()
E(f"s_cmp_lg_u32 s{sWV}, 4")
E("s_cbranch_scc1 L_D1_w2")
first_gather("d1x", False, None)
stamp(3)
E(f"v_lshlrev_b32 v{cT}, 3, v1")
E(f"s_cmp_eq_u32 s{sMODE}, 1")
E("s_cbranch_scc0 L_D1_b2")
L("L_D1_st")
E(f"buffer_load_dword v{cT+1}, v{cT}, {WSR}, s{sLOC} offen offset:{W_ST} sc1")
E("s_waitcnt vmcnt(0)")
E(f"v_cmp_ne_u32 vcc, -1, v{cT+1}")
E("s_cbranch_vccnz L_D1_b2")
E("s_sleep 8")
spin_check("L_D1_st")
L("L_D1_b2")
E("s_waitcnt lgkmcnt(0)")
L("L_D1_w2")
E("s_barrier")
E(f"s_sub_u32 s{sT0}, s{sWV}, 4")
E(f"s_mul_i32 s{sT1}, s{sT0}, 7168")
E(f"s_add_u32 m0, s{sT1}, {WB_LDS}")
E(f"s_mul_i32 s{sT1}, s{sT0}, {56*1024}")
for i in range(7):
    E(f"buffer_load_dwordx4 v244, s[{R_B}:{R_B+3}], s{sT1} offen{NTW} lds")
    if i < 6:
        E("s_add_u32 m0, m0, 1024")
        E(f"s_add_u32 s{sT1}, s{sT1}, 8192")
E("s_waitcnt vmcnt(0) lgkmcnt(0)")
stamp(4)
E("s_barrier")
stamp_flush(4, 1)
E("s_endpgm")

L("L_D2_init")
E(f"s_min_u32 s{sT1}, s{sC}, 6")
E(f"s_lshl_b32 s{sT1}, s{sT1}, 6")
E(f"s_mul_i32 s{sT0}, s{sG}, 448")
E(f"s_add_u32 s{sS1}, s{sT0}, s{sT1}")
E(f"s_sub_u32 s{sT3}, {1835008}, s{sS1}")
srd(R_B, sW1, f"s{sS1}", f"s{sT3}")
srd(R_C, sDBG, None, 256)
E(f"s_cmp_eq_u32 s{sWV}, 4")
E("s_cbranch_scc1 L_D2_ctl")
E(f"s_cmp_eq_u32 s{sWV}, 5")
E("s_cbranch_scc1 L_D2_flag")
E("v_lshrrev_b32 v245, 2, v1")
E("v_mul_u32_u24 v245, 3584, v245")
E("v_and_b32 v246, 3, v1")
E("v_and_b32 v247, 1, v3")
E("v_xor_b32 v246, v246, v247")
E("v_lshl_add_u32 v244, v246, 4, v245")
E("v_xor_b32 v246, 2, v246")
E("v_lshl_add_u32 v245, v246, 4, v245")
E(f"s_sub_u32 s{sT0}, s{sWV}, 6")
E(f"s_lshl_b32 s{sT1}, s{sT0}, 14")
E(f"s_add_u32 m0, s{sT1}, {WB_LDS}")
E(f"s_mul_i32 s{sT1}, s{sT0}, {256*3584}")
if W1L == 2:
    E(f"buffer_load_dword v255, v244, s[{R_B}:{R_B+3}], s{sT1} offen")
    E(f"s_add_u32 s{sT2}, s{sT1}, {240*3584}")
    E(f"buffer_load_dword v255, v244, s[{R_B}:{R_B+3}], s{sT2} offen")
for u in range(2):
    E(f"s_cmp_lg_u32 s{sWV}, {6+u}")
    E(f"s_cbranch_scc1 L_D2_wm{u}")
    warm("d2", u, 2)
    L(f"L_D2_wm{u}")
if LATE0 >= 2 or W1L == 1: E("s_barrier")
if W1L == 2:
    E("s_barrier")
    E(f"v_mov_b32 v{cT}, {FL_LDS}")
    E(f"ds_read_b32 v{cT+1}, v{cT}")
    E(f"v_lshlrev_b32 v{cT}, 3, v1")
    E("s_waitcnt lgkmcnt(0)")
    E(f"v_cmp_ne_u32 vcc, 1, v{cT+1}")
    E("s_cbranch_vccnz L_D2_w1go")
    L("L_D2_w1st")
    E(f"buffer_load_dword v{cT+1}, v{cT}, {WSR}, s{sLOC} offen offset:{W_ST} sc1")
    E("s_waitcnt vmcnt(0)")
    E(f"v_cmp_ne_u32 vcc, -1, v{cT+1}")
    if W1N > 1:
        E(f"s_bcnt1_i32_b64 s{sT2}, vcc")
        E(f"s_cmp_ge_u32 s{sT2}, {4*W1N}")
        E("s_cbranch_scc1 L_D2_w1go")
    else: E("s_cbranch_vccnz L_D2_w1go")
    E("s_sleep 2")
    spin_check("L_D2_w1st")
    L("L_D2_w1go")
for i in range(16):
    if TD1 and i >= TD1: E(f"s_waitcnt vmcnt({TD1-1})")
    E(f"buffer_load_dwordx4 v{244 + (i//4) % 2}, s[{R_B}:{R_B+3}], s{sT1} offen{NTW} lds")
    if i < 15:
        E("s_add_u32 m0, m0, 1024")
        E(f"s_add_u32 s{sT1}, s{sT1}, {16*3584}")
E("s_waitcnt vmcnt(0)")
stamp(4)
E("s_barrier")
stamp_flush(6, 2)
E("s_endpgm")
L("L_D2_flag")
E(f"s_lshl_b32 s{sT1}, s{sG}, 5")
E(f"s_lshl_b32 s{sT2}, s{sC}, 2")
E(f"s_add_u32 s{sT1}, s{sT1}, s{sT2}")
E(f"v_mov_b32 v{cT}, 1")
E(f"v_mov_b32 v{cT+1}, s{sT1}")
E(f"v_lshlrev_b32 v{cT+2}, 2, v1")
E("s_waitcnt vmcnt(0)")
E("s_mov_b64 exec, 1")
E(f"buffer_store_dword v{cT}, v{cT+1}, s[{R_C}:{R_C+3}], 0 offen sc1")
E("s_mov_b64 exec, -1")
if LATE0 >= 2 or W1L == 1: E("s_barrier")
E("s_waitcnt vmcnt(0)")
L("L_D2_fpoll")
E(f"buffer_load_dword v{cT+3}, v{cT+2}, s[{R_C}:{R_C+3}], 0 offen sc1")
E("s_waitcnt vmcnt(0)")
E(f"v_cmp_ne_u32 vcc, 1, v{cT+3}")
E("s_cbranch_vccz L_D2_fok")
E("s_sleep 8")
spin_check("L_D2_fpoll")
L("L_D2_fok")
E("s_barrier")
E("s_endpgm")
L("L_D2_ctl")
ctl_head()
stamp(1)
xc_publish()
first_gather("d2x", False, lambda: d2_clear(" sc1", True))
stamp(2)
if LATE0 == 3:
    E(f"v_lshlrev_b32 v{cT}, {'3' if STW else '2'}, v1")
    E(f"s_cmp_eq_u32 s{sMODE}, 1")
    E("s_cbranch_scc0 L_D2_go")
    L("L_D2_st")
    if STW:
        E(f"buffer_load_dword v{cT+1}, v{cT}, {WSR}, s{sLOC} offen offset:{W_ST} sc1")
        E("s_waitcnt vmcnt(0)")
        E(f"v_cmp_ne_u32 vcc, -1, v{cT+1}")
    E("s_cbranch_vccnz L_D2_go")
    E("s_sleep 2")
    spin_check("L_D2_st")
    L("L_D2_go")
    stamp(3)
E("s_waitcnt lgkmcnt(0)")
if LATE0 >= 2 or W1L == 1: E("s_barrier")
E("s_barrier")
stamp_flush(4, 1)
E("s_endpgm")
sec("d2")
L("L_D2_comp")
if PRIO & 2: E("s_setprio 1")
E(f"s_min_u32 s{sT1}, s{sC}, 6")
E(f"s_lshl_b32 s{sT1}, s{sT1}, 6")
E(f"s_mul_i32 s{sT0}, s{sG}, 448")
E(f"s_add_u32 s{sS1}, s{sT0}, s{sT1}")
if LATE0: wo_issue()
if W1L == 1 and LATE0 < 2: E("s_barrier")
srd(R_C, sB1, None, 3584)
E(f"v_and_b32 v{TT+5}, 7, v2")
E(f"v_lshlrev_b32 v{TT+5}, 1, v{TT+5}")
E(f"s_lshl_b32 s{sT1}, s{sWV}, 4")
E(f"s_add_u32 s{sT0}, s{sS1}, s{sT1}")
E(f"buffer_load_ushort v{vB1}, v{TT+5}, s[{R_C}:{R_C+3}], s{sT0} offen")
E(f"v_lshrrev_b32 v{TT+5}, 1, v{TT+2}")
E(f"v_lshl_add_u32 v{TT+5}, v{TT+1}, 1, v{TT+5}")
E(f"v_xor_b32 v{TT+5}, s{sWV}, v{TT+5}")
E(f"v_lshl_add_u32 v{aTA}, v3, 7, v{TT+2}")
E(f"v_lshlrev_b32 v{aTA}, 7, v{aTA}")
E(f"v_lshl_add_u32 v{aTA}, v{TT+3}, 3, v{aTA}")
E(f"v_lshl_add_u32 v{aTA}, v{TT+5}, 5, v{aTA}")
E(f"v_bfe_u32 v{TT+5}, v2, 1, 1")
E(f"v_lshl_add_u32 v{TT+6}, v{TT+5}, 6, v{TT+4}")
E(f"v_lshl_add_u32 v{TT+5}, v{TT+5}, 1, v{TT+1}")
E(f"v_xor_b32 v{TT+5}, s{sWV}, v{TT+5}")
E(f"v_lshlrev_b32 v{aTB}, 6, v{TT+6}")
E(f"v_lshl_add_u32 v{aTB}, v{TT+5}, 4, v{aTB}")
E(f"v_and_b32 v{TT+5}, 1, v2")
E(f"v_lshl_add_u32 v{aTB}, v{TT+5}, 3, v{aTB}")
E(f"v_add_u32 v{aTB}, {WB_LDS}, v{aTB}")
E(f"s_lshl_b32 s{sT1}, s{sWV}, 7")
E(f"v_lshlrev_b32 v{aST}, 5, v3")
E(f"v_add_u32 v{aST}, s{sT1}, v{aST}")
E(f"v_lshlrev_b32 v{aOS}, 4, v2")
E(f"v_lshl_add_u32 v{aOS}, v{TT+1}, 3, v{aOS}")
E(f"v_lshl_add_u32 v{aOS}, v{TT}, 2, v{aOS}")
E(f"s_lshl_b32 s{sT1}, s{sWV}, 8")
E(f"s_add_u32 s{sT1}, s{sT1}, {OS_LDS}")
E(f"v_add_u32 v{aOS}, s{sT1}, v{aOS}")
E(f"v_add_u32 v{aIN}, {OS_LDS}, v{vL16}")
E(f"v_lshlrev_b32 v{TT+5}, 4, v{TT+5}")
E(f"v_mov_b32 v{TT+6}, 0xffff")
E(f"v_lshlrev_b32 v{TT+6}, v{TT+5}, v{TT+6}")
E(f"v_bfe_u32 v{TT+7}, v2, 1, 2")
for d in range(4):
    E(f"v_cmp_eq_u32 vcc, {d}, v{TT+7}")
    E("s_nop 1")
    E(f"v_cndmask_b32 v{MK+d}, 0, v{TT+6}, vcc")
E(f"v_lshrrev_b32 v{vFLG}, 3, v2")
E(f"v_cmp_eq_u32 vcc, v{vFLG}, v{TT}")
E(f"v_cvt_f32_u32 v{vFLG}, v{vFLG}")
E("s_nop 0")
E(f"v_cndmask_b32 v{vVAL}, 0, -1, vcc")
E(f"s_lshl_b32 s{sT1}, s{sWV}, 12")
E(f"s_add_u32 s{sPoff}, s{sPoff}, s{sT1}")
E(f"s_lshl_b32 s{sT1}, s{sPJ}, 4")
E(f"s_add_u32 s{sPub}, s{sLOC}, s{sT1}")
E(f"s_add_u32 s{sPubG}, s{sPubG}, {W_Y}")
E(f"s_mov_b32 s{sYoff}, {W_Y}")
E(f"s_mov_b32 s{sC2}, 0")
E("s_waitcnt vmcnt(0)")
unpack_resid(XB)
E(f"v_lshlrev_b32 v{vB1}, 16, v{vB1}")
stamp(1)
E("s_barrier")
stamp(2)
ampx("xw", 0)
for s in range(16):
    for e in range(2):
        E(f"ds_read_b64_tr_b16 {vr(WA+4*s+2*e,2)}, v{aTA} offset:{1024*s+512*e}")
def w1_frags():
    for s in range(8):
        for e in range(2):
            E(f"ds_read_b64_tr_b16 {vr(WB+4*s+2*e,2)}, v{aTB} offset:{16384*e+512*s}")
def w1_sums():
    for s in range(8):
        c = "0" if s == 0 else vr(ACC,4)
        E(f"v_mfma_f32_16x16x32_bf16 {vr(ACC,4)}, {vr(ONESB,4)}, {vr(WB+4*s,4)}, {c}")
    E("s_nop 7")
    E(f"v_add_f32_dpp v{vCS}, v{ACC}, v{ACC} row_ror:8 row_mask:0xf bank_mask:0xf")
if W1L != 2: w1_frags()
read_mode("0xff", 28)
if W1L != 2: w1_sums()
L("L_D2_loop")
mark("d2")
def p_loads():
    for i in range(4):
        E(f"buffer_load_dwordx4 {vr(GB+4*i,4)}, v{vL16}, {WSR}, s{sPoff} offen offset:{1024*i} sc1")
arm(vST, 8)
p_loads()
if TP & 2:
    E(f"s_cmp_eq_u32 s{sLAY}, 0")
    E("s_cbranch_scc1 L_D2_near")
    gather1("gx2s", CA, vL16, sLOC, W_X2, TT, pd=1, slp=PSL)
    L("L_D2_near")
L("L_gs_poll")
E(f"buffer_load_dwordx4 {vr(vST,4)}, v{aST}, {WSR}, s{sLOC} offen offset:{W_ST} sc1")
E(f"buffer_load_dwordx4 {vr(vST+4,4)}, v{aST}, {WSR}, s{sLOC} offen offset:{W_ST+16} sc1")
E(f"s_waitcnt vmcnt({2*(PD-1)})")
E(f"v_max3_u32 v{TT}, v{vST}, v{vST+1}, v{vST+2}")
E(f"v_max3_u32 v{TT+1}, v{vST+3}, v{vST+4}, v{vST+5}")
E(f"v_max3_u32 v{TT}, v{TT}, v{vST+6}, v{vST+7}")
E(f"v_max_u32 v{TT}, v{TT}, v{TT+1}")
E(f"v_cmp_eq_u32 vcc, -1, v{TT}")
E("s_cbranch_vccz L_gs_ok")
if SLP: E(f"s_sleep {SLP}")
spin_check("L_gs_poll")
L("L_gs_ok")
p_loads()
stamp(3, True)
vM, vU, vLs = TT, TT+1, TT+2
WT = TT + 3
AW = GB + 16
E(f"v_max3_f32 v{vM}, v{vST}, v{vST+2}, v{vST+4}")
E(f"v_max_f32 v{vM}, v{vM}, v{vST+6}")
for sw in ("16", "32"):
    E(f"v_mov_b32 v{vU}, v{vM}")
    E("s_nop 1")
    E(f"v_permlane{sw}_swap_b32 v{vM}, v{vU}")
    E(f"v_max_f32 v{vM}, v{vM}, v{vU}")
for t in range(4): E(f"v_sub_f32 v{WT+t}, v{vST+2*t}, v{vM}")
for t in range(4): E(f"v_exp_f32 v{WT+t}, v{WT+t}")
E("s_nop 0")
E(f"v_mul_f32 v{vLs}, v{WT}, v{vST+1}")
for t in range(1, 4): E(f"v_fmac_f32 v{vLs}, v{WT+t}, v{vST+2*t+1}")
for sw in ("16", "32"):
    E(f"v_mov_b32 v{vU}, v{vLs}")
    E("s_nop 1")
    E(f"v_permlane{sw}_swap_b32 v{vLs}, v{vU}")
    E(f"v_add_f32 v{vLs}, v{vLs}, v{vU}")
E(f"v_rcp_f32 v{vLs}, v{vLs}")
p_loads()
for t in range(4): E(f"v_mul_f32 v{WT+t}, v{WT+t}, v{vLs}")
for t in range(4): E(f"v_cvt_pk_bf16_f32 v{WT+4+t}, v{WT+t}, v{WT+t}")
for t in range(4): E(f"v_and_b32 v{WT+4+t}, 0xffff0000, v{WT+4+t}")
for t in range(4): E(f"v_fma_f32 v{WT+t}, -v{WT+4+t}, v{vFLG}, v{WT+t}")
for t in range(4): E(f"v_cvt_pk_bf16_f32 v{WT+t}, v{WT+t}, v{WT+t}")
for t in range(4):
    for d in range(4): E(f"v_and_b32 v{AW+4*t+d}, v{MK+d}, v{WT+t}")
E("s_branch L_gp_use")
L("L_gp_nan")
E(f"s_sub_u32 s{sSPIN}, s{sSPIN}, 1")
E("s_cbranch_scc1 L_exit")
E(f"s_and_b32 s{sT1}, s{sSPIN}, 15")
E("s_cbranch_scc0 L_gp_retry")
L("L_gp_again")
p_loads()
L("L_gp_use")
E("s_waitcnt vmcnt(4)")
for t in range(4):
    E(f"v_mfma_f32_16x16x32_bf16 {vr(CA,4)}, {vr(AW+4*t,4)}, {vr(GB+4*t,4)}, {'0' if t == 0 else vr(CA,4)}")
E("s_nop 7")
E(f"v_cmp_u_f32 vcc, v{CA}, v{CA}")
E(f"v_permlane32_swap_b32 v{CA}, v{CA+2}")
E(f"v_permlane32_swap_b32 v{CA+1}, v{CA+3}")
E("s_cbranch_vccnz L_gp_nan")
L("L_gp_ok")
E(f"v_add_f32 v{CA}, v{CA}, v{CA+2}")
E(f"v_add_f32 v{CA+1}, v{CA+1}, v{CA+3}")
E(f"v_cvt_pk_bf16_f32 v{CA}, v{CA}, v{CA+1}")
E(f"ds_write_b32 v{aOS}, v{CA}")
E(f"v_mov_b32 v{vT}, 0")
stamp(4, True)
mark("d2")
E("s_waitcnt lgkmcnt(0)")
E("s_barrier")
E(f"ds_read_b128 {vr(XB,4)}, v{aIN}")
E(f"buffer_load_dwordx4 {vr(CA,4)}, v{vL16}, {WSR}, s{sLOC} offen offset:{W_X2} sc1")
E("s_waitcnt lgkmcnt(0)")
matvec(16, XB, WA, [], per=PN)
y_publish()
stamp(5, True)
ampx("xy", 0)
if W1L == 2:
    E(f"s_cmp_lg_u32 s{sLAY}, 0")
    E("s_cbranch_scc1 L_D2_havew1")
    w1_frags()
    E("s_waitcnt lgkmcnt(0)")
    w1_sums()
    L("L_D2_havew1")
def pre_y():
    E(f"s_cmp_eq_u32 s{sLAY}, 0")
    E("s_cbranch_scc1 L_D2_havex")
    E("s_waitcnt vmcnt(1)")
    chk_bf16(CA, TT)
    E("s_cbranch_vccz L_gx2_have")
    gather1("gx2", CA, vL16, sLOC, W_X2, TT, pd=1, slp=0)
    L("L_gx2_have")
    unpack_resid(CA)
    L("L_D2_havex")
relay_X("gy", sYoff, pre_y)
stamp(6, True)
ampx("xz", 0)
E(f"s_cmp_eq_u32 s{sC}, 7")
E("s_cbranch_scc1 L_D2_x1")
matvec(8, XB, WB, stats_fillers(), rows=[(0x5, 0xf, [0,1,2,3]), (0xa, 0xf, [4,5,6,7])], per=PER+2)
mark("d2")
xgroup_sum(True)
h, u, a, b = vT, TT+5, TT+6, TT+7
E(f"v_add_f32 v{h}, v{h}, v{vB1}")
E(f"v_mul_f32 v{u}, s{sC3}, |v{h}|")
E(f"v_exp_f32 v{u}, v{u}")
E(f"v_cmp_le_f32 vcc, 0, v{h}")
E(f"v_add_f32 v{b}, 2.0, v{u}")
E(f"v_fma_f32 v{a}, v{u}, 2.0, 1.0")
E(f"v_mul_f32 v{b}, v{u}, v{b}")
E(f"v_mul_f32 v{u}, v{u}, v{u}")
E(f"v_cndmask_b32 v{a}, v{b}, v{a}, vcc")
E(f"v_cndmask_b32 v{u}, 1.0, v{u}, vcc")
E(f"v_fma_f32 v{b}, v{u}, 2.0, v{a}")
E(f"v_rcp_f32 v{b}, v{b}")
E(f"v_mul_f32 v{h}, v{h}, v{a}")
E(f"v_mul_f32 v{h}, v{h}, v{b}")
E(f"v_cvt_pk_bf16_f32 v{h}, v{h}, v{h}")
E(f"v_min_u32 v{h}, -2, v{h}")
pub2("buffer_store_short", f"v{h}", aP16, sPub, sMA_f, sMA_s, W_ACT)
stamp(7, True)
L("L_D2_next")
for s_ in (sLOC, sPoff, sPub, sPubG, sYoff):
    E(f"s_add_u32 s{s_}, s{s_}, {LS}")
E(f"s_add_u32 s{sLAY}, s{sLAY}, 1")
E(f"s_cmp_lt_u32 s{sLAY}, 2")
E("s_cbranch_scc1 L_D2_loop")
stamp_flush(0, 0)
E("s_endpgm")
L("L_D2_x1")
pub_resid(W_X1)
unpack_resid(XB)
E("s_branch L_D2_next")
sec("cold")
L("L_exit")
E("s_endpgm")
L("L_gp_retry")
for i in range(0, 16, 2): E(f"v_pk_max_u16 v{ACC+i//2}, v{GB+i}, v{GB+i+1}")
for i in range(0, 8, 2): E(f"v_pk_max_u16 v{ACC+i//2}, v{ACC+i}, v{ACC+i+1}")
chk_bf16(ACC, TT)
E("s_cbranch_vccnz L_gp_again")
for t in range(4):
    E(f"v_mfma_f32_16x16x32_bf16 {vr(CA,4)}, {vr(AW+4*t,4)}, {vr(GB+4*t,4)}, {'0' if t == 0 else vr(CA,4)}")
E("s_nop 9")
E(f"v_permlane32_swap_b32 v{CA}, v{CA+2}")
E(f"v_permlane32_swap_b32 v{CA+1}, v{CA+3}")
E("s_branch L_gp_ok")
for b_ in retry_blocks: b_()
L("L_code_end")

DOC = """;
;   is written through (separate regions), so the result does not depend on placement.
"""
out = [open("cdna_kernels/" + NAME + ".s.ref").read().split("; Override")[0].rstrip("\n"),
       f"; @launch grid=(256,1,1) block=(512,1,1) lds={LDS_BYTES}", DOC.rstrip("\n"), '.amdgcn_target "amdgcn-amd-amdhsa--gfx950"', ".text",
       f".globl {NAME}_kernel", ".p2align 8", f".type {NAME}_kernel,@function"]
for k in ORDER:
    for x in secs[k]:
        if isinstance(x, tuple) and x[0] == "MARK":
            _, role, i = x
            n = wstep[role]
            out.append("    s_cbranch_execz " + (marks[role][i + n] if i + n < len(marks[role]) else f"L_wd_{role}{i % n}"))
        elif isinstance(x, tuple):
            _, role, first, step = x
            assert first < len(marks[role])
            out += ["    s_mov_b64 exec, 0", f"    s_branch {marks[role][first]}", f"L_wd_{role}{first}:", "    s_mov_b64 exec, -1"]
        else: out.append(x)
out.append('.section .rodata,"a"')
out.append(".p2align 6")
out.append(f".amdhsa_kernel {NAME}_kernel")
out.append("  .amdhsa_next_free_vgpr 256")
out.append("  .amdhsa_next_free_sgpr 96")
out.append("  .amdhsa_accum_offset 256")
out.append("  .amdhsa_group_segment_fixed_size 0")
out.append("  .amdhsa_kernarg_size 96")
out.append("  .amdhsa_user_sgpr_count 2")
out.append("  .amdhsa_user_sgpr_kernarg_segment_ptr 1")
out.append("  .amdhsa_system_sgpr_workgroup_id_x 1")
out.append("  .amdhsa_float_denorm_mode_32 3")
out.append(".end_amdhsa_kernel")
open(sys.argv[1], "w").write("\n".join(out) + "\n")
```

```python
import sys, math, struct
PROF = int(sys.argv[2]) if len(sys.argv) > 2 else 0
OPT = dict(a.split("=") for a in sys.argv[3:])
THR = int(OPT.get("thr", 6))
ACK = int(OPT.get("ack", 1))
PER = int(OPT.get("per", 3))
PD = int(OPT.get("pd", 3))
SLP = int(OPT.get("slp", 0))
LATE0 = int(OPT.get("late0", 1))
GP = int(OPT.get("gp", 1))
GSL = int(OPT.get("gsl", 0))
THV = int(OPT.get("thv", 10))
GD = int(OPT.get("gd", 0))
fl = lambda k, d: {"0": "", "1": " nt", "2": " sc1", "3": " sc0 sc1", "4": " sc1 nt"}[OPT.get(k, d)]
NTQ, NTW, NTK, NTV = fl("ntq", "0"), fl("ntw", "0"), fl("ntk", "1"), fl("ntv", "0")
TQ = int(OPT.get("tq", 1))
MARKGAP = int(OPT.get("gap", 768))
CPF = int(OPT.get("cpf", 1))
W1L = int(OPT.get("w1l", 1))
STW = 1
REORD = int(OPT.get("reord", 0))
PAD = int(OPT.get("pad", 1))
PN = int(OPT.get("pn", 4))
W2P = int(OPT.get("w2p", 0))
W1N = int(OPT.get("w1n", 1))
FSL = int(OPT.get("fsl", 3))
PSL = int(OPT.get("psl", 3))
TP = int(OPT.get("tp", 0))
VPF = int(OPT.get("vpf", 0))
TDO, TD1 = int(OPT.get("tdo", 0)), int(OPT.get("td1", 0))
PRIO = int(OPT.get("prio", 7))
WARM = int(OPT.get("warm", 0))
NTT = fl("ntt", "0")
GFL = fl("gfl", "2")
SFL = {"2": " sc1", "3": " sc0 sc1", "4": " sc1 nt"}[OPT.get("sfl", "2")]
NAME = "interleave_layers__sliding_block_cached__dense_activation_mish__decode"
import re
ORDER = ["entry", "dinit", "d1", "actl", "a", "d2", "help", "cold"]
secs = {k: [] for k in ORDER}
cur = ["entry"]
since = {k: 0 for k in ORDER}
unsafe = [False]
marks = {k: [] for k in ORDER}
WARMED = ("d1", "a", "d2")
BIG = ("v_mfma", "v_pk_", "v_fma_", "v_max3", "v_or3", "v_add3", "v_lshl_add", "v_bfe", "v_mul_lo", "v_cvt_pk", "v_readlane", "v_writelane",
       "ds_", "buffer_", "global_", "s_load", "s_memrealtime")
def isize(t):
    if t.startswith(BIG) or "_dpp" in t or "|v" in t or (t.startswith(("v_cmp", "v_cndmask")) and "s[" in t): return 8
    ops = t.split(None, 1)[1] if " " in t else ""
    if t.startswith(("s_waitcnt", "s_nop", "s_sleep", "s_branch", "s_cbranch", "s_call", "s_getreg", "s_setprio")): return 4
    for tok in re.split(r"[,\s]+", ops):
        if re.fullmatch(r"0x[0-9a-f]+|\d+", tok) and int(tok, 0) > 64: return 8
    return 4
def sec(name): cur[0] = name
def put_mark():
    k = cur[0]
    marks[k].append(f"L_wm_{k}{len(marks[k])}")
    secs[k].append(marks[k][-1] + ":")
    secs[k].append(("MARK", k, len(marks[k]) - 1))
    since[k] = 4
def E(s=""):
    k = cur[0]
    if WARM and k in WARMED and not unsafe[0] and (since[k] >= MARKGAP or not marks[k]): put_mark()
    secs[k].append("    " + s)
    since[k] += isize(s)
    if re.match(r"s_\w+ exec", s): unsafe[0] = s != "s_mov_b64 exec, -1"
def L(s): secs[cur[0]].append(s + ":")
def vr(a, n=1): return f"v{a}" if n == 1 else f"v[{a}:{a+n-1}]"
def f32(x): return hex(struct.unpack("<I", struct.pack("<f", x))[0])

K_LDS, V_LDS = 0, 65536
WA_LDS, WB_LDS = 0, 65536
QS_LDS, PX_LDS, SX_LDS, FL_LDS = 131072, 132608, 140800, 141312
OS_LDS, XS_LDS = QS_LDS, PX_LDS
LDS_BYTES = 141824
LS = 0x30000
W_Q, W_X2, W_X1, W_ST, W_ACT = 0, 1024, 2048, 3072, 3584
W_Y, W_Z, W_P = 32768, 40960, 65536
W_Q0 = 2 * LS
W_Q0B = 32768
W_EP = W_Q0 + 65536
ALT = 0x80000
WS_USED = ALT + 2 * LS
PROF_OFF = 0x300000
WS_REC = PROF_OFF + 256 * 1024

sX, sK, sV, sWQ, sWO, sBX, sW1, sB1 = 8, 10, 12, 14, 16, 18, 20, 22
sW2, sOUT, sDBG, sWS = 24, 26, 28, 30
sG, sJ, sWV, sC, sPJ = 3, 4, 5, 6, 7
R_WS, R_A, R_B, R_C = 32, 36, 40, 44
sT0, sT1, sT2, sT3 = 48, 49, 50, 51
sLOC, sLAY = 52, 53
sYoff, sZoff, sPoff = 54, 55, 56
sSPIN = 57
sRET = 58
sMA_f, sMA_s, sMB_f, sMB_s, sMC_f, sMC_s = 60, 62, 64, 66, 68, 70
sTAG, sXCC, sQ0, sQ0B = 72, 73, 74, 75
sFFFE = 76
sC1, sC2, sC3 = 77, 78, 79
sS1, sS2, sPIV = 80, 81, 82
sPub, sPubG = 83, 84
sST = 88
sPe, sLe, sMODE = 90, 91, 92
SPIN0 = 0x200000
WSR = f"s[{R_WS}:{R_WS+3}]"

def srd(r, base, add_lo=None, rec=None):
    if add_lo is None:
        E(f"s_mov_b32 s{r}, s{base}")
        E(f"s_and_b32 s{r+1}, s{base+1}, 0xffff")
    else:
        E(f"s_add_u32 s{r}, s{base}, {add_lo}")
        E(f"s_addc_u32 s{r+1}, s{base+1}, 0")
        E(f"s_and_b32 s{r+1}, s{r+1}, 0xffff")
    E(f"s_mov_b32 s{r+2}, {rec}")
    E(f"s_mov_b32 s{r+3}, 0x00020000")

V_STAMP = 254
ROLE = ["a"]
def stamp(idx, layer_dep=False):
    if not PROF: return
    if PROF == 9 and not (idx == 8 and not layer_dep) and not (idx == 6 and layer_dep and ROLE[0] == "a" and "pt" not in OPT) and OPT.get("pt") != f"{cur[0]}_{idx}": return
    E(f"s_memrealtime s[{sST}:{sST+1}]")
    E("s_waitcnt lgkmcnt(0)")
    if layer_dep:
        E(f"s_lshl_b32 s{sT3}, s{sLAY}, 4")
        E(f"s_add_u32 s{sT3}, s{sT3}, {idx}")
        E(f"s_mov_b32 m0, s{sT3}")
        E("s_nop 0")
        E(f"v_writelane_b32 v{V_STAMP}, s{sST}, m0")
    else:
        E(f"v_writelane_b32 v{V_STAMP}, s{sST}, {idx}")
AMP = OPT.get("amp")
def amp(name):
    if AMP != name: return
    E(f"s_cmp_eq_u32 s{sLAY}, {OPT.get('amplay', '0')}")
    E(f"s_cbranch_scc0 L_amp_{name}")
    E("s_memrealtime s[94:95]")
    E("s_waitcnt lgkmcnt(0)")
    L(f"L_amp_{name}")
def ampx(name, wave):
    if AMP != name: return
    E(f"s_cmp_eq_u32 s2, {OPT.get('ampwg', '0')}")
    E(f"s_cbranch_scc0 L_amp_{name}")
    E(f"s_cmp_eq_u32 s{sWV}, {wave}")
    E(f"s_cbranch_scc0 L_amp_{name}")
    E(f"s_cmp_eq_u32 s{sLAY}, 0")
    E(f"s_cbranch_scc0 L_amp_{name}")
    E("s_memrealtime s[94:95]")
    E("s_waitcnt lgkmcnt(0)")
    if name == "xs": E("s_mov_b32 s94, s86")
    if name == "xa": E("s_mov_b32 s94, s88")
    E("v_mov_b32 v246, s94")
    E(f"v_mov_b32 v247, {W_EP + 64}")
    E(f"buffer_store_dword v246, v247, {WSR}, 0 offen sc1")
    L(f"L_amp_{name}")
def stamp_flush(wave, slot, dbg=None):
    if not PROF: return
    E(f"s_cmp_lg_u32 s{sWV}, {wave}")
    E("s_cbranch_scc1 L_exit")
    E("s_mov_b64 exec, -1")
    if dbg and "dbg" in OPT:
        wg, off, idx = dbg
        for i, x in enumerate(idx):
            E(f"v_readlane_b32 s{sT0}, v{V_STAMP}, {x}")
            E("s_nop 3")
            E(f"v_writelane_b32 v{V_STAMP-2}, s{sT0}, {i}")
        srd(R_A, sDBG, None, 256)
        E(f"v_lshlrev_b32 v{V_STAMP-1}, 2, v1")
        E(f"s_cmp_eq_u32 s2, {wg}")
        E(f"s_cselect_b32 exec_lo, {(1 << len(idx)) - 1}, 0")
        E("s_mov_b32 exec_hi, 0")
        E(f"buffer_store_dword v{V_STAMP-2}, v{V_STAMP-1}, s[{R_A}:{R_A+3}], 0 offen offset:{off}")
        E("s_mov_b64 exec, -1")
    E(f"s_lshl_b32 s{sT0}, s2, 10")
    E(f"s_add_u32 s{sT0}, s{sT0}, {PROF_OFF + slot*256}")
    E(f"v_lshlrev_b32 v{V_STAMP-1}, 2, v1")
    E(f"buffer_store_dword v{V_STAMP}, v{V_STAMP-1}, {WSR}, s{sT0} offen")

wstep = {}
def mark(role): pass
def warm(role, first=0, step=1):
    if WARM:
        secs[cur[0]].append(("WARM", role, first, step))
        assert wstep.setdefault(role, step) == step

def spin_check(fail_label):
    E(f"s_sub_u32 s{sSPIN}, s{sSPIN}, 1")
    E(f"s_cbranch_scc1 L_exit")
    E(f"s_branch {fail_label}")

def chk_bf16(v, t):
    E(f"v_pk_max_u16 v{t}, v{v}, v{v+1}")
    E(f"v_pk_max_u16 v{t+1}, v{v+2}, v{v+3}")
    E(f"v_pk_max_u16 v{t}, v{t}, v{t+1}")
    E(f"v_pk_max_u16 v{t}, v{t}, v{t} op_sel:[0,1] op_sel_hi:[1,0]")
    E(f"v_cmp_eq_u32 vcc, -1, v{t}")

def pub2(op, data, addr, soff, mf, ms, imm=0):
    o = f" offset:{imm}" if imm else ""
    E(f"s_mov_b64 exec, s[{mf}:{mf+1}]")
    E(f"{op} {data}, v{addr}, {WSR}, s{soff} offen{o}")
    E(f"s_mov_b64 exec, s[{ms}:{ms+1}]")
    E(f"{op} {data}, v{addr}, {WSR}, s{soff} offen{o} sc1")
    E("s_mov_b64 exec, -1")

def masks(mf, ms, lo, hi):
    E(f"s_cselect_b32 s{mf}, {lo}, 0")
    E(f"s_cselect_b32 s{mf+1}, {hi}, 0")
    E(f"s_cselect_b32 s{ms}, 0, {lo}")
    E(f"s_cselect_b32 s{ms+1}, 0, {hi}")

def arm(dst, n):
    for r in range(n): E(f"v_mov_b32 v{dst+r}, -1")

def gather1(tag, dst, addr, soff, imm, t, pd=None, slp=None):
    pd = PD if pd is None else pd
    slp = SLP if slp is None else slp
    L(f"L_{tag}_poll")
    E(f"buffer_load_dwordx4 {vr(dst,4)}, v{addr}, {WSR}, s{soff} offen offset:{imm} sc1")
    E(f"s_waitcnt vmcnt({pd-1})")
    chk_bf16(dst, t)
    E(f"s_cbranch_vccz L_{tag}_ok")
    if slp: E(f"s_sleep {slp}")
    spin_check(f"L_{tag}_poll")
    L(f"L_{tag}_ok")

cD, cA, cXa, cG, cT, cL16 = 208, 210, 211, 212, 224, 232
def xc_publish():
    E(f"s_getreg_b32 s{sXCC}, hwreg(HW_REG_XCC_ID, 0, 4)")
    E(f"v_mov_b32 v{cD+1}, s{sTAG}")
    E(f"s_lshl_b32 s{sT3}, s{sJ}, 3")
    E(f"v_mov_b32 v{cD}, s{sXCC}")
    E(f"v_mov_b32 v{cA}, s{sT3}")
    E("s_mov_b64 exec, 1")
    E(f"buffer_store_dwordx2 {vr(cD,2)}, v{cA}, {WSR}, s{sQ0} offen offset:2048")
    E("s_mov_b64 exec, -1")

def first_gather(tag, with_q, clear_alt, armed=False):
    regs = (1, 3, 5, 7) if with_q else (9,)
    nl = 3 if with_q else 1
    E(f"s_sub_u32 s{sS2}, s{sSPIN}, {480 // FSL}")
    if not armed:
        E(f"v_and_b32 v{cXa}, 31, v1")
        E(f"v_lshlrev_b32 v{cXa}, 3, v{cXa}")
        E(f"s_not_b32 s{sT1}, s{sTAG}")
        for r in regs + ((9,) if with_q else ()): E(f"v_mov_b32 v{cG+r}, s{sT1}")
    def loads(so):
        if with_q:
            E(f"buffer_load_dwordx4 {vr(cG,4)}, v{cL16}, {WSR}, s{so} offen sc1")
            E(f"buffer_load_dwordx4 {vr(cG+4,4)}, v{cL16}, {WSR}, s{so} offen offset:1024 sc1")
        E(f"buffer_load_dwordx2 {vr(cG+8,2)}, v{cXa}, {WSR}, s{so} offen offset:2048 sc1")
    def check():
        if with_q:
            for i, r in enumerate(regs): E(f"v_xor_b32 v{cT+i}, s{sTAG}, v{cG+r}")
            E(f"v_or3_b32 v{cT}, v{cT}, v{cT+1}, v{cT+2}")
            E(f"v_or_b32 v{cT}, v{cT}, v{cT+3}")
            E(f"v_cmp_ne_u32 vcc, 0, v{cT}")
        else:
            E(f"v_cmp_ne_u32 vcc, s{sTAG}, v{cG+9}")
    def copy_b():
        E("s_mov_b64 exec, 1")
        E(f"buffer_store_dwordx2 {vr(cD,2)}, v{cA}, {WSR}, s{sQ0B} offen offset:2048 sc1")
        E("s_mov_b64 exec, -1")
    L(f"L_{tag}_poll")
    loads(sQ0)
    E(f"s_waitcnt vmcnt({24 if armed else nl*6})")
    check()
    E(f"s_cbranch_vccz L_{tag}_seen")
    E(f"s_sleep {FSL}")
    E(f"s_cmp_gt_u32 s{sSPIN}, s{sS2}")
    E(f"s_cbranch_scc0 L_{tag}_b")
    spin_check(f"L_{tag}_poll")
    home = cur[0]; sec("cold")
    L(f"L_{tag}_b")
    copy_b()
    L(f"L_{tag}_alt")
    for so in (sQ0B, sQ0):
        loads(so)
        E("s_waitcnt vmcnt(0)")
        check()
        E(f"s_cbranch_vccz L_{tag}_{'altok' if with_q else 'ok'}")
    spin_check(f"L_{tag}_alt")
    if with_q:
        L(f"L_{tag}_altok")
        E(f"s_not_b32 s{sT1}, s{sTAG}")
        E(f"v_mov_b32 v{cG+9}, s{sT1}")
        E(f"s_branch L_{tag}_ok")
    sec(home)
    L(f"L_{tag}_seen")
    E("s_nop 15")
    L(f"L_{tag}_ok")
    if with_q:
        E(f"ds_write2_b32 v{cT+5}, v{cG}, v{cG+2} offset0:0 offset1:1")
        E(f"ds_write2_b32 v{cT+5}, v{cG+4}, v{cG+6} offset0:160 offset1:161")
        return
    E(f"v_cmp_ne_u32 vcc, s{sXCC}, v{cG+8}")
    E("s_nop 3")
    if OPT.get("slow") == "1": E("s_mov_b64 vcc, -1")
    E("s_cmp_eq_u64 vcc, 0")
    E(f"s_cselect_b32 s{sMODE}, 1, 0")
    E(f"s_cbranch_scc0 L_{tag}_slow")
    sec("cold")
    L(f"L_{tag}_slow")
    E("s_waitcnt vmcnt(0) lgkmcnt(0)")
    copy_b()
    if clear_alt: clear_alt()
    if clear_alt:
        E("s_waitcnt vmcnt(0)")
        E("s_mov_b64 exec, 1")
        E(f"buffer_store_dwordx2 {vr(cD,2)}, v{cA}, {WSR}, s{sQ0B} offen offset:2560 sc1")
        E("s_mov_b64 exec, -1")
    E(f"v_and_b32 v{cXa}, 56, v{cXa}")
    E(f"v_add_u32 v{cXa}, 192, v{cXa}")
    L(f"L_{tag}_h")
    E(f"buffer_load_dwordx2 {vr(cG+8,2)}, v{cXa}, {WSR}, s{sQ0B} offen offset:2560 sc1")
    E("s_waitcnt vmcnt(0)")
    E(f"v_cmp_ne_u32 vcc, s{sTAG}, v{cG+9}")
    E(f"s_cbranch_vccz L_{tag}_done")
    spin_check(f"L_{tag}_h")
    sec(home)
    L(f"L_{tag}_done")
    E(f"v_mov_b32 v{cT+2}, {FL_LDS}")
    E(f"v_mov_b32 v{cT+3}, s{sMODE}")
    E(f"ds_write_b32 v{cT+2}, v{cT+3}")

L(f"{NAME}_kernel")
E("s_cmp_ge_u32 s2, 256")
E("s_cbranch_scc1 L_exit")
E("s_load_dwordx16 s[8:23], s[0:1], 0")
E("s_load_dwordx8 s[24:31], s[0:1], 64")
if PROF:
    E(f"v_mov_b32 v{V_STAMP}, 0")
    E(f"s_memrealtime s[{sST}:{sST+1}]")
if AMP: E("s_memrealtime s[86:87]")
E("s_getpc_b64 s[92:93]")
E("v_lshrrev_b32 v1, 6, v0")
E(f"s_and_b32 s{sG}, s2, 7")
E(f"v_readfirstlane_b32 s{sWV}, v1")
E(f"s_lshr_b32 s{sJ}, s2, 3")
E("v_and_b32 v1, 63, v0")
if CPF:
    E("s_and_b32 s92, s92, 0xffffff00")
    E("v_lshlrev_b32 v4, 7, v1")
    E("v_add_u32 v5, 0x2000, v4")
    E(f"v_min_u32 v5, L_code_end-{NAME}_kernel-4, v5")
    E(f"s_cmp_lg_u32 s{sWV}, 7")
    E("s_cbranch_scc1 L_nocpf")
    E("global_load_dword v239, v4, s[92:93]")
    E("global_load_dword v239, v5, s[92:93]")
    L("L_nocpf")
E("v_and_b32 v2, 15, v0")
E("v_lshrrev_b32 v3, 4, v1")
E(f"s_mov_b32 s{sSPIN}, {SPIN0}")
E(f"s_mov_b32 s{sLAY}, 0")
E(f"s_lshl_b32 s{sLOC}, s{sG}, 12")
E(f"s_lshl_b32 s{sPoff}, s{sG}, 14")
E(f"s_add_u32 s{sPoff}, s{sPoff}, {W_P}")
E(f"s_add_u32 s{sQ0}, s{sLOC}, {W_Q0}")
E(f"s_add_u32 s{sQ0B}, s{sQ0}, {W_Q0B}")
E("v_lshrrev_b32 v5, 3, v1")
E("v_and_b32 v6, 7, v1")
E("v_lshlrev_b32 v4, 13, v5")
E("v_lshl_add_u32 v4, v6, 7, v4")
E(f"s_lshl_b32 s{sT0}, s{sJ}, 17")
E(f"s_lshl_b32 s{sT1}, s{sG}, 10")
E(f"s_add_u32 s{sT0}, s{sT0}, s{sT1}")
E(f"s_sub_u32 s{sT1}, s{sWV}, 1")
E(f"s_lshl_b32 s{sT2}, s{sT1}, 16")
E(f"s_add_u32 s{sT0}, s{sT0}, s{sT2}")
E(f"s_mov_b32 s{sT2}, {W_EP}")
E("v_mov_b32 v7, 0")
for r, rec in ((R_WS, WS_REC if PROF else WS_USED), (R_A, 65536), (R_B, 65536), (R_C, 4194304)):
    E(f"s_mov_b32 s{r+2}, {rec}")
    E(f"s_mov_b32 s{r+3}, 0x00020000")
E(f"v_mov_b32 v{cA}, 0")
E(f"v_lshlrev_b32 v{cL16}, 4, v1")
E(f"s_lshl_b32 s{sPe}, s{sG}, 24")
E(f"s_lshl_b32 s{sT3}, s{sJ}, 16")
E(f"s_add_u32 s{sPe}, s{sPe}, s{sT3}")
E(f"s_add_u32 s{sPe}, s{sPe}, {61440*256}")
E("v_xor_b32 v8, v2, v3")
E("v_lshlrev_b32 v8, 4, v8")
E("v_lshl_add_u32 v8, v3, 8, v8")
E("v_lshlrev_b32 v5, 1, v3")
E("v_xor_b32 v5, v2, v5")
E("v_lshlrev_b32 v5, 4, v5")
E("v_lshl_add_u32 v5, v3, 8, v5")
E(f"s_add_u32 s{sC1}, s{sJ}, s{sG}")
E(f"s_cmp_lt_u32 s{sT1}, 2")
E("s_waitcnt lgkmcnt(0)")
E(f"s_mov_b32 s{R_C}, s{sWQ}")
E(f"s_mov_b32 s{R_C+1}, s{sWQ+1}")
E("s_cbranch_scc0 L_notouch")
if TQ: E(f"buffer_load_dword v240, v4, s[{R_C}:{R_C+3}], s{sT0} offen{NTQ}")
L("L_notouch")
if AMP == "xa":
    E("s_memrealtime s[88:89]")
    E("s_waitcnt lgkmcnt(0)")
E(f"s_mov_b32 s{R_WS}, s{sWS}")
E(f"s_mov_b32 s{R_WS+1}, s{sWS+1}")
E(f"buffer_load_dword v241, v7, {WSR}, s{sT2} offen sc1")
if PROF: E(f"v_writelane_b32 v{V_STAMP}, s{sST}, 60")
E(f"s_add_u32 s{R_A}, s{sK}, s{sPe}")
E(f"s_addc_u32 s{R_A+1}, s{sK+1}, 0")
E(f"s_add_u32 s{R_B}, s{sV}, s{sPe}")
E(f"s_addc_u32 s{R_B+1}, s{sV+1}, 0")
E(f"s_cmp_ge_u32 s{sJ}, 16")
E("s_cbranch_scc1 L_D_init")

E(f"s_cmp_eq_u32 s{sWV}, 4")
E("s_cbranch_scc1 L_A_ctl")
E(f"s_cmp_gt_u32 s{sWV}, 4")
E("s_cbranch_scc1 L_A_help")
if PRIO & 4: E("s_setprio 1")
E(f"s_lshl_b32 s{sT0}, s{sWV}, 14")
E(f"s_add_u32 s{sT3}, s{sC1}, 16")
L("L_A_kl")
E(f"s_and_b32 s{sT1}, s{sC1}, 15")
E(f"s_and_b32 s{sT2}, s{sT1}, 3")
E(f"s_lshl_b32 s{sT2}, s{sT2}, 6")
E(f"s_lshl_b32 s{sT1}, s{sT1}, 10")
E(f"s_add_u32 s{sT1}, s{sT1}, s{sT0}")
E(f"s_mov_b32 m0, s{sT1}")
E(f"v_xor_b32 v6, s{sT2}, v8")
E(f"s_waitcnt vmcnt({THR-1})")
E(f"buffer_load_dwordx4 v6, s[{R_A}:{R_A+3}], s{sT1} offen{NTK} lds")
E(f"s_add_u32 s{sC1}, s{sC1}, 1")
E(f"s_cmp_lt_u32 s{sC1}, s{sT3}")
E("s_cbranch_scc1 L_A_kl")
E("s_branch L_A_setup")
L("L_A_help")
if PRIO & 8: E("s_setprio 1")
E(f"s_sub_u32 s{sT0}, s{sWV}, 5")
E(f"s_lshl_b32 s{sC1}, s{sC1}, 2")
E(f"s_mov_b32 s{sT3}, 0")
THV1, NV1 = int(OPT.get("thv1", 0)), int(OPT.get("nv1", 15))
if THV1:
    L("L_A_vl1")
    E(f"s_add_u32 s{sT1}, s{sC1}, s{sT0}")
    E(f"s_and_b32 s{sT1}, s{sT1}, 63")
    E(f"s_and_b32 s{sT2}, s{sT1}, 1")
    E(f"s_lshl_b32 s{sT2}, s{sT2}, 7")
    E(f"s_lshl_b32 s{sT1}, s{sT1}, 10")
    E(f"s_add_u32 m0, s{sT1}, {V_LDS}")
    E(f"v_xor_b32 v6, s{sT2}, v5")
    E(f"s_waitcnt vmcnt({THV1-1})")
    E(f"buffer_load_dwordx4 v6, s[{R_B}:{R_B+3}], s{sT1} offen{NTV} lds")
    E(f"s_add_u32 s{sT0}, s{sT0}, 3")
    E(f"s_cmp_lt_u32 s{sT0}, {NV1}")
    E("s_cbranch_scc1 L_A_vl1")
L("L_A_vl")
E(f"s_add_u32 s{sT1}, s{sC1}, s{sT0}")
E(f"s_and_b32 s{sT1}, s{sT1}, 63")
E(f"s_and_b32 s{sT2}, s{sT1}, 1")
E(f"s_lshl_b32 s{sT2}, s{sT2}, 7")
E(f"s_lshl_b32 s{sT1}, s{sT1}, 10")
E(f"s_add_u32 m0, s{sT1}, {V_LDS}")
E(f"v_xor_b32 v6, s{sT2}, v5")
E(f"s_waitcnt vmcnt({THV-1})")
E(f"buffer_load_dwordx4 v6, s[{R_B}:{R_B+3}], s{sT1} offen{NTV} lds")
E(f"s_add_u32 s{sT0}, s{sT0}, 3")
E(f"s_cmp_lt_u32 s{sT0}, 64")
E("s_cbranch_scc1 L_A_vl")
stamp(1)
E("s_branch L_A_pf2")
sec("actl")
L("L_A_pf2")
E(f"s_mul_i32 s{sT1}, s{sG}, {224*1024}")
E(f"s_mul_i32 s{sT2}, s{sJ}, 14336")
E(f"s_add_u32 s{sT1}, s{sT1}, s{sT2}")
E(f"s_cmp_eq_u32 s{sWV}, 6")
E(f"s_cselect_b32 s{sT3}, {14336 if W2P else 0}, 0")
srd(R_C, sW2, f"s{sT1}", f"s{sT3}")
E(f"s_mov_b32 s{sT1}, 0")
E(f"s_mov_b32 s{sT2}, 8192")
E("v_lshlrev_b32 v6, 7, v1")
E(f"buffer_load_dword v240, v6, s[{R_C}:{R_C+3}], s{sT1} offen{NTT}")
E(f"buffer_load_dword v240, v6, s[{R_C}:{R_C+3}], s{sT2} offen{NTT}")
E("s_barrier")
E("s_waitcnt vmcnt(2)")
stamp(2)
ampx("xv", 5)
E("s_barrier")
stamp_flush(5, 2)
E("s_endpgm")
sec("a")
L("L_A_setup")
if PRIO & 1: E(f"s_setprio {2 if PRIO & 8 else 1}")
stamp(1)
KF, VF, QF, SC, PB, OD, OUTV, PF, STT = 16, 80, 144, 160, 176, 144, 176, 184, 216
T = 224
E("v_xor_b32 v4, v2, v3")
E("v_lshlrev_b32 v4, 4, v4")
E("v_lshl_add_u32 v4, v2, 8, v4")
E(f"v_add_u32 v4, s{sT0}, v4")
E("v_xor_b32 v5, 64, v4")
E("v_xor_b32 v6, 0x80, v4")
E("v_xor_b32 v7, 0xc0, v4")
E("v_and_b32 v15, 3, v2")
E("v_mul_u32_u24 v8, 320, v15")
E("v_lshl_add_u32 v8, v3, 4, v8")
E(f"v_add_u32 v8, {QS_LDS}, v8")
E("v_lshlrev_b32 v10, 4, v1")
E(f"v_add_u32 v10, {PX_LDS}, v10")
E(f"s_lshl_b32 s{sT1}, s{sWV}, 11")
E(f"v_add_u32 v9, s{sT1}, v10")
E("v_lshlrev_b32 v12, 5, v2")
E(f"v_add_u32 v12, {SX_LDS}, v12")
E(f"s_lshl_b32 s{sT1}, s{sWV}, 3")
E(f"v_add_u32 v11, s{sT1}, v12")
E("v_lshlrev_b32 v13, 12, v15")
E("v_lshl_add_u32 v13, v3, 3, v13")
E("v_bfe_u32 v14, v2, 2, 1")
E("v_lshl_add_u32 v13, v14, 5, v13")
E(f"s_lshl_b32 s{sT1}, s{sWV}, 6")
E(f"v_add_u32 v13, s{sT1}, v13")
E(f"v_cmp_eq_u32 s[{sMC_f}:{sMC_f+1}], 1, v14")
E(f"v_lshlrev_b32 v14, 7, v15")
E(f"v_lshrrev_b32 v{T}, 2, v2")
E(f"v_lshl_add_u32 v{T}, v3, 2, v{T}")
E(f"v_and_b32 v{T+1}, 7, v{T}")
E(f"s_lshl_b32 s{sT1}, s{sWV}, 1")
E(f"v_xor_b32 v{T+1}, s{sT1}, v{T+1}")
E(f"v_lshlrev_b32 v{T}, 8, v{T}")
E(f"v_lshl_add_u32 v{T}, v{T+1}, 5, v{T}")
E(f"v_lshl_add_u32 v{T}, v15, 3, v{T}")
E(f"v_add_u32 v{T}, {V_LDS}, v{T}")
E(f"v_xor_b32 v{T+1}, 32, v{T}")
E(f"s_lshl_b32 s{sT1}, s{sJ}, 8")
E(f"s_add_u32 s{sPoff}, s{sPoff}, s{sT1}")
E(f"s_and_b32 s{sT1}, s{sJ}, 3")
E(f"s_lshl_b32 s{sT1}, s{sT1}, 5")
E(f"s_lshr_b32 s{sT2}, s{sJ}, 2")
E(f"s_lshl_b32 s{sT2}, s{sT2}, 3")
E(f"s_add_u32 s{sT1}, s{sT1}, s{sT2}")
E(f"s_add_u32 s{sPub}, s{sT1}, {W_ST}")
E(f"s_mov_b32 s{sC1}, {f32((128**-0.5)*math.log2(math.e))}")
E(f"s_mov_b32 s{sFFFE}, 0xfffefffe")
E(f"v_mov_b32 v{T+2}, {FL_LDS}")
E(f"v_mov_b32 v{T+8}, s{sC1}")
E(f"s_cmp_eq_u32 s{sWV}, 0")
E(f"s_cselect_b32 s{sC2}, 15, 0")
E(f"s_mov_b32 s{sMB_f+1}, 0")
E(f"s_mov_b32 s{sMB_s+1}, 0")
E("s_waitcnt vmcnt(0)")
stamp(2)
ampx("xk", 0)
for e in range(4):
    for s in range(4):
        E(f"ds_read_b128 {vr(KF+(e*4+s)*4,4)}, v{4+s} offset:{4096*e}")
L("L_A_b1")
mark("a")
E("s_barrier")
for s in range(4):
    E(f"ds_read_b128 {vr(QF+4*s,4)}, v8 offset:{64*s}")
stamp(3, True)
def qk(e, s):
    c = "0" if s == 0 else vr(SC+4*e,4)
    E(f"v_mfma_f32_16x16x32_bf16 {vr(SC+4*e,4)}, {vr(KF+(e*4+s)*4,4)}, {vr(QF+4*s,4)}, {c}")
for s in range(4):
    E(f"s_waitcnt lgkmcnt({3-s})")
    qk(0, s); qk(1, s)
for s in range(4):
    qk(2, s); qk(3, s)
E(f"v_max3_f32 v{T+4}, v{SC}, v{SC+1}, v{SC+2}")
E(f"v_max3_f32 v{T+5}, v{SC+3}, v{SC+4}, v{SC+5}")
E(f"v_max3_f32 v{T+4}, v{T+4}, v{SC+6}, v{SC+7}")
E("s_nop 3")
E(f"v_max3_f32 v{T+5}, v{T+5}, v{SC+8}, v{SC+9}")
E(f"v_max3_f32 v{T+4}, v{T+4}, v{SC+10}, v{SC+11}")
E(f"v_max3_f32 v{T+5}, v{T+5}, v{SC+12}, v{SC+13}")
E(f"v_max3_f32 v{T+4}, v{T+4}, v{SC+14}, v{SC+15}")
E(f"v_max_f32 v{T+4}, v{T+4}, v{T+5}")
E(f"v_mov_b32 v{T+5}, v{T+4}")
E("s_nop 1")
E(f"v_permlane16_swap_b32 v{T+4}, v{T+5}")
E(f"v_max_f32 v{T+4}, v{T+4}, v{T+5}")
E(f"v_mov_b32 v{T+5}, v{T+4}")
E("s_nop 1")
E(f"v_permlane32_swap_b32 v{T+4}, v{T+5}")
E(f"v_max_f32 v{T+4}, v{T+4}, v{T+5}")
E(f"v_mul_f32 v{T+6}, s{sC1}, v{T+4}")
for i in range(8):
    E(f"v_pk_fma_f32 {vr(SC+2*i,2)}, {vr(SC+2*i,2)}, {vr(T+8,2)}, {vr(T+6,2)} op_sel_hi:[1,0,0] neg_lo:[0,0,1] neg_hi:[0,0,1]")
for i in range(8):
    E(f"v_exp_f32 v{SC+i}, v{SC+i}")
E(f"v_exp_f32 v{SC+8}, v{SC+8}")
for i in range(4):
    E(f"v_cvt_pk_bf16_f32 v{PB+i}, v{SC+2*i}, v{SC+2*i+1}")
E(f"ds_write_b128 v9, {vr(PB,4)}")
for i in range(9, 16):
    E(f"v_exp_f32 v{SC+i}, v{SC+i}")
E(f"v_add_f32 v{T+7}, v{SC}, v{SC+1}")
for i in range(4, 8):
    E(f"v_cvt_pk_bf16_f32 v{PB+i}, v{SC+2*i}, v{SC+2*i+1}")
E(f"ds_write_b128 v9, {vr(PB+4,4)} offset:1024")
for i in range(4):
    E(f"v_pk_add_f32 {vr(SC+2+ 0,2) if False else vr(SC+4*i,2)}, {vr(SC+4*i,2)}, {vr(SC+4*i+2,2)}")
E(f"v_pk_add_f32 {vr(SC,2)}, {vr(SC,2)}, {vr(SC+4,2)}")
E(f"v_pk_add_f32 {vr(SC+8,2)}, {vr(SC+8,2)}, {vr(SC+12,2)}")
E(f"v_pk_add_f32 {vr(SC,2)}, {vr(SC,2)}, {vr(SC+8,2)}")
E(f"v_add_f32 v{T+7}, v{SC}, v{SC+1}")
E(f"v_mov_b32 v{T+5}, v{T+7}")
E("s_nop 1")
E(f"v_permlane16_swap_b32 v{T+7}, v{T+5}")
E(f"v_add_f32 v{T+7}, v{T+7}, v{T+5}")
E(f"v_mov_b32 v{T+5}, v{T+7}")
E("s_nop 1")
E(f"v_permlane32_swap_b32 v{T+7}, v{T+5}")
E(f"v_add_f32 v{T+7}, v{T+7}, v{T+5}")
E(f"ds_write_b64 v11, {vr(T+6,2)}")
stamp(4, True)
mark("a")
E("s_waitcnt lgkmcnt(0)")
E("s_barrier")
ampx("xb", 0)
E(f"ds_read_b32 v{T+3}, v{T+2}")
for b in range(2):
    E(f"ds_read_b128 {vr(STT+4*b,4)}, v12 offset:{16*b}")
stamp(5, True)
F = STT
def pv(first):
    def reads(u):
        E(f"ds_read_b128 {vr(PF+4*u,4)}, v10 offset:{1024*u}")
        if first:
            for tp in range(2):
                for e in range(2):
                    E(f"ds_read_b64_tr_b16 {vr(VF+(tp*8+u)*4+2*e,2)}, v{T+tp} offset:{(32*u+16*e)*256}")
    ahead = 2 if first else 8
    per_u = 5 if first else 1
    for u in range(ahead): reads(u)
    E(f"s_waitcnt lgkmcnt({ahead*per_u})")
    va = [f"v_max3_f32 v{T+4}, v{STT}, v{STT+2}, v{STT+4}", f"v_max_f32 v{T+6}, v{T+4}, v{STT+6}"]
    va += [f"v_sub_f32 v{F+2*b}, v{STT+2*b}, v{T+6}" for b in range(4)]
    va += [f"v_exp_f32 v{F+2*b}, v{F+2*b}" for b in range(4)]
    va += [f"v_mul_f32 v{T+7}, v{F}, v{STT+1}"] + [f"v_fmac_f32 v{T+7}, v{F+2*b}, v{STT+2*b+1}" for b in range(1, 4)]
    E(f"v_readfirstlane_b32 s{sMODE}, v{T+3}")
    for x in va[:2]: E(x)
    sa = [f"s_cmp_eq_u32 s{sMODE}, 1", f"s_cselect_b32 s{sMB_f}, s{sC2}, 0", f"s_cselect_b32 s{sMB_s}, 0, s{sC2}",
          f"s_cselect_b32 s{sMA_f}, 0x00ff00ff, 0", f"s_cselect_b32 s{sMA_f+1}, 0x00ff00ff, 0", f"s_cselect_b32 s{sMA_s}, 0, 0x00ff00ff",
          f"s_cselect_b32 s{sMA_s+1}, 0, 0x00ff00ff", f"s_cselect_b32 s{sT2}, 0, {ALT}", f"s_add_u32 s{sPe}, s{sPoff}, s{sT2}",
          f"s_add_u32 s{sT2}, s{sLOC}, s{sT2}", f"s_add_u32 s{sT2}, s{sT2}, s{sPub}"]
    k = 2
    for u in range(8):
        if u + ahead < 8: reads(u + ahead)
        E(f"s_waitcnt lgkmcnt({(min(8, u + ahead + 1) - u - 1) * per_u})")
        for tp in range(2):
            d = vr(OD+(tp*4+u//2)*4,4)
            E(f"v_mfma_f32_16x16x32_bf16 {d}, {vr(VF+(tp*8+u)*4,4)}, {vr(PF+4*u,4)}, {'0' if u % 2 == 0 else d}")
            if k < len(va): E(va[k]); k += 1
            if sa and u >= 1: E(sa.pop(0)); E(sa.pop(0)) if sa else None
        if u == 5:
            assert k == len(va)
            E(f"v_min_u32 v{T+6}, -2, v{T+6}")
            E(f"v_min_u32 v{T+7}, -2, v{T+7}")
            pub2("buffer_store_dwordx2", vr(T+6,2), 14, sT2, sMB_f, sMB_s)
E(f"s_cmp_lg_u32 s{sLAY}, 0")
E("s_cbranch_scc1 L_A_havev")
pv(True)
E("s_branch L_A_comb")
L("L_A_havev")
pv(False)
L("L_A_comb")
def cb(b):
    for tp in range(2):
        for h in range(2):
            o = vr(OUTV+4*tp+2*h,2)
            if b == 0: E(f"v_pk_mul_f32 {o}, {vr(OD+tp*16+2*h,2)}, {vr(F,2)} op_sel_hi:[1,0]")
            else: E(f"v_pk_fma_f32 {o}, {vr(OD+(tp*4+b)*4+2*h,2)}, {vr(F+2*b,2)}, {o} op_sel_hi:[1,0,1]")
for b in range(4): cb(b)
for r in range(4):
    E(f"v_cndmask_b32 v{OUTV+r}, v{OUTV+r}, v{OUTV+4+r}, s[{sMC_f}:{sMC_f+1}]")
E(f"v_cvt_pk_bf16_f32 v{OUTV}, v{OUTV}, v{OUTV+1}")
E(f"v_cvt_pk_bf16_f32 v{OUTV+1}, v{OUTV+2}, v{OUTV+3}")
E(f"v_pk_min_u16 v{OUTV}, v{OUTV}, s{sFFFE}")
E(f"v_pk_min_u16 v{OUTV+1}, v{OUTV+1}, s{sFFFE}")
pub2("buffer_store_dwordx2", vr(OUTV,2), 13, sPe, sMA_f, sMA_s)
stamp(6, True)
ampx("xp", 0)
E(f"s_add_u32 s{sPoff}, s{sPoff}, {LS}")
E(f"s_add_u32 s{sLOC}, s{sLOC}, {LS}")
E(f"s_add_u32 s{sLAY}, s{sLAY}, 1")
E(f"s_cmp_lt_u32 s{sLAY}, 2")
E("s_cbranch_scc1 L_A_b1")
stamp_flush(0, 0, (int(OPT.get("dbg", 0)), 36, [60, 2, 3, 5, 6, 19, 22]))
E("s_endpgm")
sec("actl")
L("L_A_ctl")
E("s_waitcnt vmcnt(0)")
E(f"v_readfirstlane_b32 s{sTAG}, v241")
E("s_nop 3")
E(f"s_add_u32 s{sTAG}, s{sTAG}, 1")
ampx("xe", 4)
ampx("xs", 4)
ampx("xa", 4)
xc_publish()
warm("a")
E(f"v_lshrrev_b32 v{cT+5}, 5, v1")
E(f"v_lshlrev_b32 v{cT+5}, 6, v{cT+5}")
E(f"v_lshl_add_u32 v{cT+5}, v1, 3, v{cT+5}")
E(f"v_add_u32 v{cT+5}, {QS_LDS}, v{cT+5}")
first_gather("aq0", True, None)
stamp(2)
ampx("xq", 4)
E("s_waitcnt lgkmcnt(0)")
E("s_barrier")
first_gather("ax", False, None, armed=True)
stamp(3)
E("s_waitcnt lgkmcnt(0)")
E(f"s_cmp_eq_u32 s{sMODE}, 1")
E(f"s_cselect_b32 s{sT2}, 0, {ALT}")
E(f"s_add_u32 s{sLe}, s{sLOC}, s{sT2}")
E(f"s_add_u32 s{sLe}, s{sLe}, {LS}")
E(f"v_lshl_add_u32 v{cT+2}, v3, 6, v{cL16}")
E(f"v_add_u32 v{cT+2}, {QS_LDS}, v{cT+2}")
E("s_barrier")
E("s_waitcnt vmcnt(0)")
if TP & 4:
    E(f"s_sub_u32 s{sT1}, s{sLe}, {LS}")
    gather1("ax1", cG+4, cL16, sT1, W_X1, cT, pd=1, slp=2*PSL)
arm(cG, 4)
gather1("aq", cG, cL16, sLe, W_Q, cT)
E(f"ds_write_b128 v{cT+2}, {vr(cG,4)}")
stamp(18)
E("s_waitcnt lgkmcnt(0)")
E("s_barrier")
stamp_flush(4, 1)
E("s_endpgm")

vL16, aXIO, aTA, aTB, aIN, aST, aP16, aPY, vONE, aOS, aXS = 4, 5, 6, 7, 8, 9, 10, 11, 12, 13, 14
SEL0, ONESB, XR, XN, XB, vT = 16, 24, 28, 36, 44, 48
TT = 49
vB1, vCS, aGX, vINV, vVAL = 15, 0, 249, 250, 252
GB, WA, ACC, WB = 64, 96, 160, 192
vST, CA, MK, vFLG = 224, 232, 236, 248
NACC = 8

retry_blocks = []
def gather_X(tag, soff, role, hook=None):
    def loads():
        for i in range(8):
            so = soff if i < 4 else sT0
            E(f"buffer_load_dwordx4 {vr(GB+4*i,4)}, v{aGX}, {WSR}, s{so} offen offset:{256*(i%4)}{GFL}")
    def sums(wait):
        for i in range(8):
            if wait is not None: E(f"s_waitcnt vmcnt({wait + 7 - i})")
            e, w = (i % 4) // 2, i % 2
            c = vr(XR+4*e,4) if i in (0, 2) else vr(XN+4*e,4)
            E(f"v_mfma_f32_16x16x32_bf16 {vr(XN+4*e,4)}, {vr(SEL0+4*w,4)}, {vr(GB+4*i,4)}, {c}")
    E(f"s_add_u32 s{sT0}, s{soff}, 4096")
    if ACK: E("s_waitcnt vmcnt(0)")
    elif GD: E(f"s_sleep {GD}")
    if PROF in (2, 9): stamp(9, True)
    for _ in range(GP - 1):
        loads()
        if GSL: E(f"s_sleep {GSL}")
    E(f"s_branch L_{tag}_again")
    L(f"L_{tag}_nan")
    E(f"s_sub_u32 s{sSPIN}, s{sSPIN}, 1")
    E("s_cbranch_scc1 L_exit")
    E(f"s_and_b32 s{sT1}, s{sSPIN}, 15")
    E(f"s_cbranch_scc0 L_{tag}_retry")
    if GSL: E(f"s_sleep {GSL}")
    L(f"L_{tag}_again")
    loads()
    if hook: hook()
    mark(role)
    sums(8 * (GP - 1))
    E("s_nop 6")
    E(f"v_cmp_u_f32 vcc, v{XN}, v{XN}")
    E(f"v_cmp_u_f32 s[{sS1}:{sS1+1}], v{XN+4}, v{XN+4}")
    for d in range(4):
        E(f"v_cvt_pk_bf16_f32 v{XB+d}, v{XN+2*d}, v{XN+2*d+1}")
    E(f"s_or_b64 vcc, vcc, s[{sS1}:{sS1+1}]")
    E(f"s_cbranch_vccnz L_{tag}_nan")
    L(f"L_{tag}_ok")
    if PROF in (2, 9):
        stamp(11, True)
        E(f"s_mov_b32 s{sST}, s{sSPIN}")
    def blk():
        L(f"L_{tag}_retry")
        for i in range(16): E(f"v_pk_max_u16 v{ACC+i}, v{GB+2*i}, v{GB+2*i+1}")
        for i in range(8): E(f"v_pk_max_u16 v{ACC+i}, v{ACC+2*i}, v{ACC+2*i+1}")
        for i in range(4): E(f"v_pk_max_u16 v{ACC+i}, v{ACC+2*i}, v{ACC+2*i+1}")
        chk_bf16(ACC, TT)
        E(f"s_cbranch_vccnz L_{tag}_again")
        sums(None)
        E("s_nop 7")
        for d in range(4):
            E(f"v_cvt_pk_bf16_f32 v{XB+d}, v{XN+2*d}, v{XN+2*d+1}")
        E(f"s_branch L_{tag}_ok")
    retry_blocks.append(blk)

def relay_X(tag, soff, pre):
    E(f"v_mov_b32 v{vT}, 0")
    E(f"s_cmp_lg_u32 s{sWV}, 0")
    E(f"s_cbranch_scc1 L_{tag}_other")
    pre()
    gather_X(tag, soff, "d2")
    E(f"ds_write_b128 v{aXS}, {vr(XB,4)}")
    post = f"L_{tag}_join"
    E("s_waitcnt lgkmcnt(0)")
    E("s_barrier")
    E(f"s_branch {post}")
    L(f"L_{tag}_other")
    E("s_waitcnt vmcnt(0)")
    E("s_barrier")
    E(f"ds_read_b128 {vr(XB,4)}, v{aXS}")
    E("s_waitcnt lgkmcnt(0)")
    L(post)

def unpack_resid(src):
    for d in range(4):
        E(f"v_lshlrev_b32 v{XR+2*d}, 16, v{src+d}")
        E(f"v_and_b32 v{XR+2*d+1}, 0xffff0000, v{src+d}")

def matvec(nsteps, A, W, fillers, rows=None, per=PER, waits=False):
    if rows is None:
        rows = [(1 << G, 0xf, list(range(4*G, min(4*G+4, nsteps)))) for G in range((nsteps + 3) // 4)]
    acc = lambda s_: ACC + 4*(rank[s_] % NACC)
    order = [x for x in range(nsteps) if not any(x == st_[-1] for _, _, st_ in rows)] + [st_[-1] for _, _, st_ in rows]
    if waits or not REORD: order = list(range(nsteps))
    rank = {x: i for i, x in enumerate(order)}
    ext = []
    for (rm, bm, st_) in rows:
        dp = f"quad_perm:[0,1,2,3] row_mask:{hex(rm)} bank_mask:{hex(bm)}"
        a = lambda s_: f"v{acc(s_) + s_ % 4}"
        ext.append((st_[1], f"v_add_f32_dpp v{vT}, {a(st_[0])}, {a(st_[1])} {dp}"))
        for s_ in st_[2:]:
            ext.append((s_, f"v_add_f32_dpp v{vT}, {a(s_)}, v{vT} {dp}"))
    order = [x for x in range(nsteps) if not any(x == st_[-1] for _, _, st_ in rows)] + [st_[-1] for _, _, st_ in rows]
    if waits or not REORD: order = list(range(nsteps))
    rank = {x: i for i, x in enumerate(order)}
    ext.sort(key=lambda e: rank[e[0]])
    st = dict(pos=0, lastT=-1)
    pm = {}
    def put(x, n=1):
        E(x); st["pos"] += n
    def need(e):
        if e[0] not in pm: return 99
        return max(pm[e[0]] + 9 - st["pos"], st["lastT"] + 3 - st["pos"], 0)
    fl = list(fillers)
    for s_ in order:
        while ext and rank[ext[0][0]] <= rank[s_] - NACC + 1 and rank[s_] >= NACC:
            n = need(ext[0])
            if n: put(f"s_nop {n-1}", n)
            st["lastT"] = st["pos"]; put(ext.pop(0)[1])
        if waits and s_ >= 8 or waits and s_ == 0: put(f"s_waitcnt lgkmcnt({min(15, 30-2*s_)})")
        pm[s_] = st["pos"]
        put(f"v_mfma_f32_16x16x32_bf16 {vr(acc(s_),4)}, {vr(A,4)}, {vr(W+4*s_,4)}, 0")
        idle = 0
        for _ in range(per):
            if ext and need(ext[0]) - idle <= 0:
                if idle: put(f"s_nop {idle-1}", idle); idle = 0
                st["lastT"] = st["pos"]; put(ext.pop(0)[1])
            elif fl:
                if idle: put(f"s_nop {idle-1}", idle); idle = 0
                put(fl.pop(0))
            elif PAD and s_ != order[-1]: idle += 1
        if idle: put(f"s_nop {idle-1}", idle)
    while ext or fl:
        if ext and need(ext[0]) == 0:
            st["lastT"] = st["pos"]; put(ext.pop(0)[1])
        elif fl:
            put(fl.pop(0))
        else:
            n = need(ext[0]); put(f"s_nop {n-1}", n)

def stats_fillers():
    f = []
    for d in range(4):
        f.append(f"v_lshlrev_b32 v{XR+2*d}, 16, v{XB+d}")
        f.append(f"v_and_b32 v{XR+2*d+1}, 0xffff0000, v{XB+d}")
        if d == 0: f.append(f"v_readfirstlane_b32 s{sPIV}, v{XR}")
    D = XN
    for i in range(4):
        f.append(f"v_pk_add_f32 {vr(D+2*i,2)}, {vr(XR+2*i,2)}, s[{sPIV}:{sPIV+1}] op_sel_hi:[1,0] neg_lo:[0,1] neg_hi:[0,1]")
    a, b = TT+1, TT+3
    assert a % 2 == 0
    f.append(f"v_pk_add_f32 {vr(a,2)}, {vr(D,2)}, {vr(D+2,2)}")
    f.append(f"v_pk_mul_f32 {vr(b,2)}, {vr(D,2)}, {vr(D,2)}")
    for i in range(1, 4):
        f.append(f"v_pk_fma_f32 {vr(b,2)}, {vr(D+2*i,2)}, {vr(D+2*i,2)}, {vr(b,2)}")
        if i > 1: f.append(f"v_pk_add_f32 {vr(a,2)}, {vr(a,2)}, {vr(D+2*i,2)}")
    f.append(f"v_add_f32 v{b}, v{b}, v{b+1}")
    f.append(f"v_add_f32 v{a}, v{a}, v{a+1}")
    f.append("s_nop 0")
    for dp in ("quad_perm:[1,0,3,2] row_mask:0xf", "quad_perm:[2,3,0,1] row_mask:0xf", "row_half_mirror row_mask:0xf",
               "row_mirror row_mask:0xf", "row_bcast:15 row_mask:0xa", "row_bcast:31 row_mask:0xc"):
        f.append(f"v_add_f32_dpp v{b}, v{b}, v{b} {dp} bank_mask:0xf")
        f.append(f"v_add_f32_dpp v{a}, v{a}, v{a} {dp} bank_mask:0xf")
        f.append("s_nop 0")
    f.append(f"v_readlane_b32 s{sS2}, v{b}, 63")
    f.append(f"v_readlane_b32 s{sS1}, v{a}, 63")
    f.append(f"v_fma_f32 v{TT+3}, s{sS2}, v{vINV}, v{vINV+1}" if False else "s_nop 0")
    f.append(f"v_fma_f32 v{TT+3}, s{sS2}, v{vINV}, v{vINV+1}")
    f.append(f"v_mul_f32 v{TT+2}, s{sS1}, v{vINV}")
    f.append(f"v_fma_f32 v{TT+3}, -v{TT+2}, v{TT+2}, v{TT+3}")
    f.append(f"v_max_f32 v{TT+3}, v{vINV+1}, v{TT+3}")
    f.append(f"v_rsq_f32 v{TT+3}, v{TT+3}")
    f.append(f"v_add_f32 v{TT+2}, s{sPIV}, v{TT+2}")
    return f

def xgroup_sum(fold8=False, plain=False):
    if fold8: E(f"v_and_b32 v{vT}, v{vVAL}, v{vT}")
    E(f"v_mov_b32 v{TT+5}, v{vT}")
    E("s_nop 1")
    E(f"v_permlane16_swap_b32 v{vT}, v{TT+5}")
    E(f"v_add_f32 v{vT}, v{vT}, v{TT+5}")
    E(f"v_mov_b32 v{TT+5}, v{vT}")
    E("s_nop 1")
    E(f"v_permlane32_swap_b32 v{vT}, v{TT+5}")
    E(f"v_add_f32 v{vT}, v{vT}, v{TT+5}")
    if fold8:
        E("s_nop 1")
        E(f"v_add_f32_dpp v{vT}, v{vT}, v{vT} row_ror:8 row_mask:0xf bank_mask:0xf")
    if plain: return
    E(f"v_fma_f32 v{vT}, -v{TT+2}, v{vCS}, v{vT}")
    E(f"v_mul_f32 v{vT}, v{vT}, v{TT+3}")

def y_publish():
    xgroup_sum(plain=True)
    E("s_nop 1")
    E(f"v_mov_b32_dpp v{TT+5}, v{vT} quad_perm:[1,1,3,3] row_mask:0xf bank_mask:0xf")
    E("s_mov_b64 exec, 0x5555")
    E(f"v_cvt_pk_bf16_f32 v{vT}, v{vT}, v{TT+5}")
    E(f"v_pk_min_u16 v{vT}, v{vT}, s{sFFFE}")
    E(f"buffer_store_dword v{vT}, v{aP16}, {WSR}, s{sPubG} offen{SFL}")
    E("s_mov_b64 exec, -1")

def pub_resid(off):
    for d in range(4): E(f"v_pk_min_u16 v{TT+7+d}, v{XB+d}, s{sFFFE}")
    pub2("buffer_store_dwordx4", vr(TT+7,4), vL16, sLOC, sMB_f, sMB_s, off)

def read_mode(lo_a, pj=0):
    E(f"v_mov_b32 v{TT}, {FL_LDS}")
    E(f"ds_read_b32 v{TT+1}, v{TT}")
    E("s_waitcnt lgkmcnt(0)")
    E(f"v_readfirstlane_b32 s{sMODE}, v{TT+1}")
    E(f"s_cmp_eq_u32 s{sPJ}, {pj}")
    E(f"s_cselect_b32 s{sT1}, -1, 0")
    E("s_nop 2")
    E(f"s_cmp_eq_u32 s{sMODE}, 1")
    masks(sMA_f, sMA_s, lo_a, "0")
    masks(sMB_f, sMB_s, f"s{sT1}", f"s{sT1}")
    E(f"s_cselect_b32 s{sT1}, 0, {ALT}")
    for s_ in (sLOC, sPoff, sPub):
        E(f"s_add_u32 s{s_}, s{s_}, s{sT1}")

sec("entry")
L("L_D_init")
ROLE[0] = "d"
E(f"s_and_b32 s{sC}, s{sJ}, 7")
E(f"s_lshl_b32 s{sPJ}, s{sC}, 2")
E(f"s_add_u32 s{sPJ}, s{sPJ}, s{sWV}")
E("v_lshrrev_b32 v242, 3, v1")
E("v_and_b32 v243, 7, v1")
def v_prefetch():
    if not VPF: return
    E(f"s_lshl_b32 s{sS2}, s{sG}, 24")
    E(f"s_add_u32 s{sS2}, s{sS2}, {61440*256}")
    srd(R_A, sV, f"s{sS2}", 1 << 20)
    E(f"s_lshl_b32 s{sS1}, s{sC}, 1")
    E(f"s_lshr_b32 s{sS2}, s{sWV}, 2")
    E(f"s_add_u32 s{sS1}, s{sS1}, s{sS2}")
    E(f"s_add_u32 s{sS2}, s{sS1}, s{sG}")
    E(f"s_lshl_b32 s{sS2}, s{sS2}, 2")
    E(f"s_and_b32 s{sT0}, s{sWV}, 3")
    E(f"s_lshl_b32 s{sT0}, s{sT0}, 3")
    E(f"s_add_u32 s{sS2}, s{sS2}, s{sT0}")
    E(f"s_add_u32 s{sS2}, s{sS2}, 32")
    E(f"v_add_u32 v238, s{sS2}, v242")
    E("v_and_b32 v238, 63, v238")
    E("v_lshlrev_b32 v238, 10, v238")
    E("v_lshl_add_u32 v238, v243, 7, v238")
    E(f"s_lshl_b32 s{sS1}, s{sS1}, 16")
    E(f"buffer_load_dword v255, v238, s[{R_A}:{R_A+3}], s{sS1} offen{NTV}")
def wo_issue():
    E(f"s_lshl_b32 s{sT0}, s{sG}, 19")
    E(f"s_lshl_b32 s{sT1}, s{sC}, 7")
    E(f"s_add_u32 s{sT0}, s{sT0}, s{sT1}")
    E(f"s_sub_u32 s{sT3}, {4194304}, s{sT0}")
    srd(R_A, sWO, f"s{sT0}", f"s{sT3}")
    E("v_and_b32 v245, 2, v242")
    E("v_xor_b32 v245, v245, v243")
    E(f"s_and_b32 s{sT1}, s{sWV}, 1")
    E(f"s_lshl_b32 s{sT1}, s{sT1}, 2")
    E(f"v_xor_b32 v245, s{sT1}, v245")
    E("v_lshlrev_b32 v244, 10, v242")
    E("v_lshl_add_u32 v244, v245, 4, v244")
    E(f"s_lshl_b32 s{sT0}, s{sWV}, 14")
    E(f"s_mov_b32 m0, s{sT0}")
    E(f"s_lshl_b32 s{sT1}, s{sWV}, 17")
    if LATE0 == 1: E("s_waitcnt vmcnt(0)")
    if LATE0 >= 2: E("s_barrier")
    E(f"s_add_u32 s{sT2}, s{sT1}, {16*8192}")
    L("L_D2_wol")
    if TDO: E(f"s_waitcnt vmcnt({TDO-1})")
    E(f"buffer_load_dwordx4 v244, s[{R_A}:{R_A+3}], s{sT1} offen{NTW} lds")
    E("s_add_u32 m0, m0, 1024")
    E(f"s_add_u32 s{sT1}, s{sT1}, 8192")
    E(f"s_cmp_lt_u32 s{sT1}, s{sT2}")
    E("s_cbranch_scc1 L_D2_wol")
def clear_global():
    for r in range(4): E(f"v_mov_b32 v{cG+r}, -1")
    E(f"s_mov_b32 s{sT1}, {LS}")
    E(f"v_lshrrev_b32 v{cT}, 3, v2")
    E(f"v_mul_lo_u32 v{cT}, v{cT}, s{sT1}")
    E(f"v_lshl_add_u32 v{cT}, v243, 4, v{cT}")
    E(f"v_lshl_add_u32 v{cT}, v3, 13, v{cT}")
    E(f"s_lshl_b32 s{sT1}, s{sG}, 10")
    E(f"s_lshl_b32 s{sT2}, s{sC}, 7")
    E(f"s_add_u32 s{sT1}, s{sT1}, s{sT2}")
    E(f"s_add_u32 s{sT1}, s{sT1}, {W_Y}")
    E("s_mov_b32 exec_hi, 0")
    E(f"buffer_store_dwordx4 {vr(cG,4)}, v{cT}, {WSR}, s{sT1} offen sc1")
    E("s_mov_b64 exec, -1")

def d2_clear(sc, alt):
    for r in range(4): E(f"v_mov_b32 v{cG+r}, -1")
    E(f"s_lshl_b32 s{sT1}, s{sC}, 11")
    E(f"s_add_u32 s{sT1}, s{sT1}, s{sPoff}")
    if alt: E(f"s_add_u32 s{sT1}, s{sT1}, {ALT}")
    E(f"s_add_u32 s{sT2}, s{sT1}, {LS}")
    for so in (sT1, sT2):
        for o in range(2):
            E(f"buffer_store_dwordx4 {vr(cG,4)}, v{cL16}, {WSR}, s{so} offen offset:{1024*o}{sc}")
    E(f"s_mov_b32 s{sT1}, {LS}")
    E(f"v_lshrrev_b32 v{cT}, 5, v1")
    E(f"v_mul_lo_u32 v{cT}, v{cT}, s{sT1}")
    E(f"v_and_b32 v{cT+1}, 31, v1")
    E(f"v_lshl_add_u32 v{cT}, v{cT+1}, 4, v{cT}")
    E(f"s_lshl_b32 s{sT1}, s{sC}, 9")
    E(f"s_add_u32 s{sT1}, s{sT1}, s{sLOC}")
    if alt: E(f"s_add_u32 s{sT1}, s{sT1}, {ALT}")
    E(f"buffer_store_dwordx4 {vr(cG,4)}, v{cT}, {WSR}, s{sT1} offen{sc}")
E(f"s_cmp_lt_u32 s{sJ}, 24")
E("s_cbranch_scc1 L_D_const")
E(f"s_cmp_lg_u32 s{sWV}, 4")
E("s_cbranch_scc1 L_D2_e1")
d2_clear("", False)
E("s_branch L_D2_init")
L("L_D2_e1")
E(f"s_cmp_lg_u32 s{sWV}, 5")
E("s_cbranch_scc1 L_D2_e2")
clear_global()
E("s_branch L_D2_init")
L("L_D2_e2")
E(f"s_cmp_ge_u32 s{sWV}, 4")
E("s_cbranch_scc1 L_D2_init")
if LATE0 == 0: wo_issue()
else:
    E(f"s_lshl_b32 s{sT0}, s{sG}, 19")
    srd(R_A, sWO, f"s{sT0}", 1 << 19)
    E(f"buffer_load_dword v255, v{cL16}, s[{R_A}:{R_A+3}], 0 offen")
sec("dinit")
L("L_D_const")
E("v_mov_b32 v245, 0")
E("v_mov_b32 v244, 0")
srd(R_B, sX, None, 1024)
E(f"v_lshrrev_b32 v{TT}, 1, v3")
E(f"v_and_b32 v{TT+1}, 1, v3")
E(f"v_lshlrev_b32 v{aXIO}, 8, v{TT}")
E(f"v_lshl_add_u32 v{aXIO}, v2, 4, v{aXIO}")
E(f"v_lshl_add_u32 v{aXIO}, v{TT+1}, 3, v{aXIO}")
E(f"buffer_load_dwordx2 {vr(XB,2)}, v{aXIO}, s[{R_B}:{R_B+3}], 0 offen")
E(f"buffer_load_dwordx2 {vr(XB+2,2)}, v{aXIO}, s[{R_B}:{R_B+3}], 0 offen offset:512")
E(f"v_lshlrev_b32 v{vL16}, 4, v1")
E(f"v_lshrrev_b32 v{TT+2}, 2, v2")
E(f"v_and_b32 v{TT+3}, 3, v2")
E(f"v_lshl_add_u32 v{TT+4}, v{TT}, 7, v{TT+2}")
E(f"v_lshl_add_u32 v{TT+4}, v{TT+1}, 2, v{TT+4}")
E(f"v_lshlrev_b32 v{aP16}, 1, v2")
E(f"v_lshrrev_b32 v{aPY}, 5, v1")
E(f"v_lshlrev_b32 v{aPY}, 4, v{aPY}")
E(f"v_add_u32 v{aXS}, {XS_LDS}, v{vL16}")
E(f"v_mov_b32 v{vONE}, 1.0")
for d in range(4): E(f"v_mov_b32 v{ONESB+d}, 0x3f803f80")
E(f"v_and_b32 v{TT+5}, 1, v2")
E(f"v_lshlrev_b32 v{TT+5}, 4, v{TT+5}")
E(f"v_mov_b32 v{TT+6}, 0x3f80")
E(f"v_lshlrev_b32 v{TT+6}, v{TT+5}, v{TT+6}")
E(f"v_lshrrev_b32 v{TT+7}, 1, v2")
E(f"v_lshlrev_b32 v{aGX}, 10, v3")
E(f"v_lshl_add_u32 v{aGX}, v2, 4, v{aGX}")
for d in range(8):
    E(f"v_cmp_eq_u32 vcc, {d}, v{TT+7}")
    E("s_nop 1")
    E(f"v_cndmask_b32 v{SEL0+d}, 0, v{TT+6}, vcc")
E(f"s_mov_b32 s{sFFFE}, 0xfffefffe")
E(f"v_mov_b32 v{vINV}, {f32(1/512)}")
E(f"v_mov_b32 v{vINV+1}, {f32(1e-5)}")
E(f"s_mov_b32 s{sC3}, {f32(-math.log2(math.e))}")
E(f"s_lshl_b32 s{sT1}, s{sPJ}, 5")
E(f"s_lshl_b32 s{sPubG}, s{sG}, 10")
E(f"s_add_u32 s{sPubG}, s{sPubG}, s{sT1}")
E(f"s_lshl_b32 s{sT2}, s{sWV}, 5")
E(f"s_cmp_ge_u32 s{sJ}, 24")
E("s_cbranch_scc1 L_D2_comp")

def ctl_head():
    E("s_waitcnt vmcnt(0)")
    E(f"v_readfirstlane_b32 s{sTAG}, v241")
    for r in range(4): E(f"v_mov_b32 v{cG+r}, -1")
    E(f"s_add_u32 s{sTAG}, s{sTAG}, 1")
E(f"s_lshl_b32 s{sT0}, s{sG}, 10")
E(f"s_lshl_b32 s{sT1}, s{sC}, 7")
E(f"s_add_u32 s{sT0}, s{sT0}, s{sT1}")
E(f"s_sub_u32 s{sT3}, {4194304}, s{sT0}")
srd(R_A, sWQ, f"s{sT0}", f"s{sT3}")
E("v_and_b32 v245, 6, v242")
E("v_xor_b32 v245, v245, v243")
E("v_lshlrev_b32 v244, 13, v242")
E("v_lshl_add_u32 v244, v245, 4, v244")
E(f"s_cmp_ge_u32 s{sWV}, 4")
E("s_cbranch_scc1 L_D1_help")
if PRIO & 2: E("s_setprio 1")
if TQ: E("s_waitcnt vmcnt(0)")
stamp(1)
E(f"s_lshl_b32 s{sT0}, s{sWV}, 14")
E(f"s_mov_b32 m0, s{sT0}")
E(f"s_lshl_b32 s{sT1}, s{sWV}, 20")
E(f"s_add_u32 s{sT3}, s{sT1}, {16*65536}")
L("L_D1_wql")
E(f"buffer_load_dwordx4 v244, s[{R_A}:{R_A+3}], s{sT1} offen{NTW} lds")
E("s_add_u32 m0, m0, 1024")
E(f"s_add_u32 s{sT1}, s{sT1}, 65536")
E(f"s_cmp_lt_u32 s{sT1}, s{sT3}")
E("s_cbranch_scc1 L_D1_wql")
sec("d1")
if VPF == 1: v_prefetch()
E(f"v_bfe_u32 v{TT+5}, v{TT+4}, 1, 2")
E(f"v_xor_b32 v{TT+5}, s{sWV}, v{TT+5}")
E(f"v_lshlrev_b32 v{aTA}, 7, v{TT+4}")
E(f"v_lshl_add_u32 v{aTA}, v{TT+3}, 3, v{aTA}")
E(f"v_lshl_add_u32 v{aTA}, v{TT+5}, 5, v{aTA}")
if not TQ: E("s_waitcnt vmcnt(16)")
E(f"v_lshl_add_u32 v{aTB}, v3, 3, v{TT+2}")
E(f"v_lshlrev_b32 v{aTB}, 7, v{aTB}")
E(f"v_lshl_add_u32 v{aTB}, v{TT+3}, 3, v{aTB}")
E(f"s_add_u32 s{sT2}, s{sT2}, {WB_LDS}")
E(f"v_add_u32 v{aTB}, s{sT2}, v{aTB}")
E(f"v_min_u32 v{aIN}, 6, v2")
E(f"v_lshlrev_b32 v{aIN}, 6, v{aIN}")
E(f"v_lshl_add_u32 v{aIN}, v3, 4, v{aIN}")
E(f"v_readfirstlane_b32 s{sTAG}, v241")
E(f"s_add_u32 s{sPubG}, s{sPubG}, {W_Z}")
E(f"s_mov_b32 s{sZoff}, {W_Z}")
E(f"s_lshl_b32 s{sT1}, s{sPJ}, 5")
E(f"s_add_u32 s{sPub}, s{sLOC}, s{sT1}")
srd(R_B, sOUT, None, 1024)
E(f"s_add_u32 s{sTAG}, s{sTAG}, 1")
for x in stats_fillers(): E(x)
for i in range(8): E(f"v_sub_f32 v{XN+i}, v{XR+i}, v{TT+2}")
for i in range(8): E(f"v_mul_f32 v{XN+i}, v{XN+i}, v{TT+3}")
for d in range(4): E(f"v_cvt_pk_bf16_f32 v{GB+d}, v{XN+2*d}, v{XN+2*d+1}")
E(f"v_mov_b32 v{vT}, 0")
D0 = GB + 12
E(f"v_mov_b32 v{D0+1}, s{sTAG}")
E(f"s_lshl_b32 s{sT1}, s{sPJ}, 6")
E(f"v_lshl_add_u32 v{TT+6}, v2, 2, s{sT1}")
E(f"s_waitcnt vmcnt({1 if VPF == 1 else 0})")
E("s_barrier")
amp("wq")
stamp(2)
for s in range(16):
    for e in range(2):
        E(f"ds_read_b64_tr_b16 {vr(WA+4*s+2*e,2)}, v{aTA} offset:{32768*e+1024*s}")
matvec(16, GB, WA, [], per=PN, waits=True)
xgroup_sum(plain=True)
E("s_nop 1")
E(f"v_mov_b32_dpp v{TT+5}, v{vT} quad_perm:[1,1,3,3] row_mask:0xf bank_mask:0xf")
E(f"v_cvt_pk_bf16_f32 v{D0}, v{vT}, v{TT+5}")
E("s_mov_b64 exec, 0x5555")
E(f"buffer_store_dwordx2 {vr(D0,2)}, v{TT+6}, {WSR}, s{sQ0} offen")
E("s_mov_b64 exec, -1")
stamp(3, True)
if VPF == 2: v_prefetch()
E(f"v_mov_b32 v{TT+7}, 0")
E(f"buffer_load_dword v{GB+20}, v{TT+7}, s[{R_B}:{R_B+3}], 0 offen")
for s in range(16):
    c = "0" if s == 0 else vr(CA,4)
    E(f"v_mfma_f32_16x16x32_bf16 {vr(CA,4)}, {vr(ONESB,4)}, {vr(WA+4*s,4)}, {c}")
E("s_nop 7")
E(f"v_mov_b32 v{vCS}, v{CA}")
E("s_barrier")
amp("st")
read_mode("0xffff")
E(f"s_mov_b32 s{sT1}, 0x5555")
E(f"s_cmp_eq_u32 s{sMODE}, 1")
E(f"s_cselect_b32 exec_lo, 0, s{sT1}")
E("s_mov_b32 exec_hi, 0")
E(f"buffer_store_dwordx2 {vr(D0,2)}, v{TT+6}, {WSR}, s{sQ0B} offen sc1")
E("s_mov_b64 exec, -1")
E("s_barrier")
for s in range(7):
    for e in range(2):
        E(f"ds_read_b64_tr_b16 {vr(WB+4*s+2*e,2)}, v{aTB} offset:{4096*s+512*e}")
E("s_waitcnt lgkmcnt(0)")
L("L_D1_act")
mark("d1")
AIN = vST
arm(AIN, 4)
E(f"buffer_load_dwordx4 {vr(CA,4)}, v{vL16}, {WSR}, s{sLOC} offen offset:{W_X1} sc1")
E(f"v_mov_b32 v{vT}, 0")
if TP & 1:
    E(f"v_lshlrev_b32 v{TT+2}, 3, v1")
    L("L_D1_far")
    E(f"buffer_load_dword v{TT+3}, v{TT+2}, {WSR}, s{sLOC} offen offset:{W_ST} sc1")
    E("s_waitcnt vmcnt(0)")
    E(f"v_cmp_eq_u32 vcc, -1, v{TT+3}")
    E("s_cbranch_vccz L_D1_near")
    E(f"s_sleep {2*PSL}")
    spin_check("L_D1_far")
    L("L_D1_near")
gather1("ga", AIN, aIN, sLOC, W_ACT, TT)
amp("act")
stamp(4, True)
E(f"buffer_load_dwordx4 {vr(CA,4)}, v{vL16}, {WSR}, s{sLOC} offen offset:{W_X1} sc1")
matvec(7, AIN, WB, [], per=PN)
y_publish()
stamp(5, True)
E(f"s_add_u32 s{sLAY}, s{sLAY}, 1")
E(f"s_cmp_lt_u32 s{sLAY}, 2")
E("s_cbranch_scc1 L_D1_z")
E(f"s_cmp_lg_u32 s2, 128")
E("s_cbranch_scc1 L_D1_end")
E(f"s_cmp_lg_u32 s{sWV}, 0")
E("s_cbranch_scc1 L_D1_end")
L("L_D1_z")
mark("d1")
def pre_z():
    E("s_waitcnt vmcnt(1)")
    chk_bf16(CA, TT)
    E("s_cbranch_vccz L_gx1_have")
    gather1("gx1", CA, vL16, sLOC, W_X1, TT, pd=1, slp=0)
    L("L_gx1_have")
    unpack_resid(CA)
def relay_z():
    E(f"v_mov_b32 v{vT}, 0")
    E(f"s_cmp_lg_u32 s{sWV}, 0")
    E(f"s_cbranch_scc1 L_gz_other")
    pre_z()
    gather_X("gz", sZoff, "d1")
    E(f"s_cmp_eq_u32 s{sLAY}, 2")
    E("s_cbranch_scc1 L_D1_out")
    E(f"ds_write_b128 v{aXS}, {vr(XB,4)}")
    E("s_waitcnt lgkmcnt(0)")
    E("s_barrier")
    E(f"s_branch L_gz_join")
    L(f"L_gz_other")
    E("s_waitcnt vmcnt(0)")
    E("s_barrier")
    E(f"ds_read_b128 {vr(XB,4)}, v{aXS}")
    E("s_waitcnt lgkmcnt(0)")
    L("L_gz_join")
relay_z()
stamp(6)
mark("d1")
matvec(16, XB, WA, stats_fillers())
for s_ in (sLOC, sPub, sPubG, sZoff):
    E(f"s_add_u32 s{s_}, s{s_}, {LS}")

xgroup_sum()
E(f"v_cvt_pk_bf16_f32 v{vT}, v{vT}, v{vT}")
E(f"v_min_u32 v{vT}, -2, v{vT}")
pub2("buffer_store_short", f"v{vT}", aP16, sPub, sMA_f, sMA_s, W_Q)
stamp(3, True)
pub_resid(W_X2)
E("s_branch L_D1_act")
L("L_D1_out")
E(f"buffer_store_dwordx2 {vr(XB,2)}, v{aXIO}, s[{R_B}:{R_B+3}], 0 offen")
E(f"buffer_store_dwordx2 {vr(XB+2,2)}, v{aXIO}, s[{R_B}:{R_B+3}], 0 offen offset:512")
E(f"v_mov_b32 v{TT}, s{sTAG}")
E(f"v_mov_b32 v{TT+1}, {W_EP}")
E("s_mov_b64 exec, 1")
E(f"buffer_store_dword v{TT}, v{TT+1}, {WSR}, 0 offen")
if AMP:
    E("s_memrealtime s[88:89]")
    E("s_waitcnt lgkmcnt(0)")
    if AMP == "end": E("s_mov_b32 s94, s88")
    E("s_sub_u32 s94, s94, s86")
    if AMP.startswith("x"):
        E(f"v_mov_b32 v253, {W_EP + 64}")
        E(f"buffer_load_dword v252, v253, {WSR}, 0 offen sc1")
        E("s_waitcnt vmcnt(0)")
        E("v_readfirstlane_b32 s94, v252")
        E("s_nop 3")
        E("s_sub_u32 s94, s94, s86")
        E("s_add_u32 s94, s94, 100")
        E("s_max_i32 s94, s94, 0")
    E("s_lshl_b32 s94, s94, 2")
    E("s_min_u32 s94, s94, 20000")
    E("s_add_u32 s94, s94, s88")
    L("L_amp_spin")
    E("s_memrealtime s[88:89]")
    E("s_waitcnt lgkmcnt(0)")
    E("s_sub_u32 s89, s94, s88")
    E("s_cmp_gt_i32 s89, 0")
    E("s_cbranch_scc1 L_amp_spin")
if PROF:
    stamp(7)
    E("s_waitcnt vmcnt(0)")
    stamp(8)
L("L_D1_end")
stamp_flush(0, 0, (128, 4, [60, 2, 3, 4, 6, 20, 8]))
E("s_endpgm")
sec("help")
L("L_D1_help")
E(f"s_mul_i32 s{sT0}, s{sG}, {224*1024}")
E(f"s_lshl_b32 s{sT1}, s{sC}, 7")
E(f"s_add_u32 s{sT0}, s{sT0}, s{sT1}")
srd(R_B, sW2, f"s{sT0}", 224*1024 - 896)
E("v_lshlrev_b32 v244, 10, v242")
E("v_lshl_add_u32 v244, v243, 4, v244")
E(f"s_cmp_eq_u32 s{sWV}, 4")
E("s_cbranch_scc1 L_D1_ctl")
if not W2P:
    E("v_lshlrev_b32 v245, 12, v1")
    E(f"buffer_load_dword v255, v245, s[{R_B}:{R_B+3}], 0 offen")
for u in range(3):
    E(f"s_cmp_lg_u32 s{sWV}, {5+u}")
    E(f"s_cbranch_scc1 L_D1_wm{u}")
    warm("d1", u, 3)
    L(f"L_D1_wm{u}")
E("s_branch L_D1_bq")
L("L_D1_ctl")
E(f"v_lshlrev_b32 v{cT}, 7, v2")
E(f"buffer_load_dword v240, v{cT}, {WSR}, s{sQ0} offen sc1")
ctl_head()
xc_publish()
L("L_D1_bq")
E("s_barrier")
v_prefetch()
E(f"s_cmp_lg_u32 s{sWV}, 4")
E("s_cbranch_scc1 L_D1_w2")
first_gather("d1x", False, None)
stamp(3)
E(f"v_lshlrev_b32 v{cT}, 3, v1")
E(f"s_cmp_eq_u32 s{sMODE}, 1")
E("s_cbranch_scc0 L_D1_b2")
L("L_D1_st")
E(f"buffer_load_dword v{cT+1}, v{cT}, {WSR}, s{sLOC} offen offset:{W_ST} sc1")
E("s_waitcnt vmcnt(0)")
E(f"v_cmp_ne_u32 vcc, -1, v{cT+1}")
E("s_cbranch_vccnz L_D1_b2")
E("s_sleep 8")
spin_check("L_D1_st")
L("L_D1_b2")
E("s_waitcnt lgkmcnt(0)")
L("L_D1_w2")
E("s_barrier")
E(f"s_sub_u32 s{sT0}, s{sWV}, 4")
E(f"s_mul_i32 s{sT1}, s{sT0}, 7168")
E(f"s_add_u32 m0, s{sT1}, {WB_LDS}")
E(f"s_mul_i32 s{sT1}, s{sT0}, {56*1024}")
for i in range(7):
    E(f"buffer_load_dwordx4 v244, s[{R_B}:{R_B+3}], s{sT1} offen{NTW} lds")
    if i < 6:
        E("s_add_u32 m0, m0, 1024")
        E(f"s_add_u32 s{sT1}, s{sT1}, 8192")
E("s_waitcnt vmcnt(0) lgkmcnt(0)")
stamp(4)
E("s_barrier")
stamp_flush(4, 1)
E("s_endpgm")

L("L_D2_init")
E(f"s_min_u32 s{sT1}, s{sC}, 6")
E(f"s_lshl_b32 s{sT1}, s{sT1}, 6")
E(f"s_mul_i32 s{sT0}, s{sG}, 448")
E(f"s_add_u32 s{sS1}, s{sT0}, s{sT1}")
E(f"s_sub_u32 s{sT3}, {1835008}, s{sS1}")
srd(R_B, sW1, f"s{sS1}", f"s{sT3}")
srd(R_C, sDBG, None, 256)
E(f"s_cmp_eq_u32 s{sWV}, 4")
E("s_cbranch_scc1 L_D2_ctl")
E(f"s_cmp_eq_u32 s{sWV}, 5")
E("s_cbranch_scc1 L_D2_flag")
E("v_lshrrev_b32 v245, 2, v1")
E("v_mul_u32_u24 v245, 3584, v245")
E("v_and_b32 v246, 3, v1")
E("v_and_b32 v247, 1, v3")
E("v_xor_b32 v246, v246, v247")
E("v_lshl_add_u32 v244, v246, 4, v245")
E("v_xor_b32 v246, 2, v246")
E("v_lshl_add_u32 v245, v246, 4, v245")
E(f"s_sub_u32 s{sT0}, s{sWV}, 6")
E(f"s_lshl_b32 s{sT1}, s{sT0}, 14")
E(f"s_add_u32 m0, s{sT1}, {WB_LDS}")
E(f"s_mul_i32 s{sT1}, s{sT0}, {256*3584}")
if W1L == 2:
    E(f"buffer_load_dword v255, v244, s[{R_B}:{R_B+3}], s{sT1} offen")
    E(f"s_add_u32 s{sT2}, s{sT1}, {240*3584}")
    E(f"buffer_load_dword v255, v244, s[{R_B}:{R_B+3}], s{sT2} offen")
for u in range(2):
    E(f"s_cmp_lg_u32 s{sWV}, {6+u}")
    E(f"s_cbranch_scc1 L_D2_wm{u}")
    warm("d2", u, 2)
    L(f"L_D2_wm{u}")
if LATE0 >= 2 or W1L in (1, 3): E("s_barrier")
if W1L == 2:
    E("s_barrier")
    E(f"v_mov_b32 v{cT}, {FL_LDS}")
    E(f"ds_read_b32 v{cT+1}, v{cT}")
    E(f"v_lshlrev_b32 v{cT}, 3, v1")
    E("s_waitcnt lgkmcnt(0)")
    E(f"v_cmp_ne_u32 vcc, 1, v{cT+1}")
    E("s_cbranch_vccnz L_D2_w1go")
    L("L_D2_w1st")
    E(f"buffer_load_dword v{cT+1}, v{cT}, {WSR}, s{sLOC} offen offset:{W_ST} sc1")
    E("s_waitcnt vmcnt(0)")
    E(f"v_cmp_ne_u32 vcc, -1, v{cT+1}")
    if W1N > 1:
        E(f"s_bcnt1_i32_b64 s{sT2}, vcc")
        E(f"s_cmp_ge_u32 s{sT2}, {4*W1N}")
        E("s_cbranch_scc1 L_D2_w1go")
    else: E("s_cbranch_vccnz L_D2_w1go")
    E("s_sleep 2")
    spin_check("L_D2_w1st")
    L("L_D2_w1go")
for i in range(16):
    if TD1 and i >= TD1: E(f"s_waitcnt vmcnt({TD1-1})")
    E(f"buffer_load_dwordx4 v{244 + (i//4) % 2}, s[{R_B}:{R_B+3}], s{sT1} offen{NTW} lds")
    if i < 15:
        E("s_add_u32 m0, m0, 1024")
        E(f"s_add_u32 s{sT1}, s{sT1}, {16*3584}")
E("s_waitcnt vmcnt(0)")
stamp(4)
E("s_barrier")
stamp_flush(6, 2)
E("s_endpgm")
L("L_D2_flag")
E(f"s_lshl_b32 s{sT1}, s{sG}, 5")
E(f"s_lshl_b32 s{sT2}, s{sC}, 2")
E(f"s_add_u32 s{sT1}, s{sT1}, s{sT2}")
E(f"v_mov_b32 v{cT}, 1")
E(f"v_mov_b32 v{cT+1}, s{sT1}")
E(f"v_lshlrev_b32 v{cT+2}, 2, v1")
E("s_waitcnt vmcnt(0)")
E("s_mov_b64 exec, 1")
E(f"buffer_store_dword v{cT}, v{cT+1}, s[{R_C}:{R_C+3}], 0 offen sc1")
E("s_mov_b64 exec, -1")
if LATE0 >= 2 or W1L in (1, 3): E("s_barrier")
E("s_waitcnt vmcnt(0)")
L("L_D2_fpoll")
E(f"buffer_load_dword v{cT+3}, v{cT+2}, s[{R_C}:{R_C+3}], 0 offen sc1")
E("s_waitcnt vmcnt(0)")
E(f"v_cmp_ne_u32 vcc, 1, v{cT+3}")
E("s_cbranch_vccz L_D2_fok")
E("s_sleep 8")
spin_check("L_D2_fpoll")
L("L_D2_fok")
E("s_barrier")
E("s_endpgm")
L("L_D2_ctl")
ctl_head()
stamp(1)
xc_publish()
first_gather("d2x", False, lambda: d2_clear(" sc1", True))
stamp(2)
if LATE0 == 3:
    E(f"v_lshlrev_b32 v{cT}, {'3' if STW else '2'}, v1")
    E(f"s_cmp_eq_u32 s{sMODE}, 1")
    E("s_cbranch_scc0 L_D2_go")
    L("L_D2_st")
    if STW:
        E(f"buffer_load_dword v{cT+1}, v{cT}, {WSR}, s{sLOC} offen offset:{W_ST} sc1")
        E("s_waitcnt vmcnt(0)")
        E(f"v_cmp_ne_u32 vcc, -1, v{cT+1}")
    E("s_cbranch_vccnz L_D2_go")
    E("s_sleep 2")
    spin_check("L_D2_st")
    L("L_D2_go")
    stamp(3)
E("s_waitcnt lgkmcnt(0)")
if LATE0 >= 2 or W1L in (1, 3): E("s_barrier")
E("s_barrier")
stamp_flush(4, 1)
E("s_endpgm")
sec("d2")
L("L_D2_comp")
if PRIO & 2: E("s_setprio 1")
E(f"s_min_u32 s{sT1}, s{sC}, 6")
E(f"s_lshl_b32 s{sT1}, s{sT1}, 6")
E(f"s_mul_i32 s{sT0}, s{sG}, 448")
E(f"s_add_u32 s{sS1}, s{sT0}, s{sT1}")
if LATE0: wo_issue()
if W1L == 1 and LATE0 < 2: E("s_barrier")
srd(R_C, sB1, None, 3584)
E(f"v_and_b32 v{TT+5}, 7, v2")
E(f"v_lshlrev_b32 v{TT+5}, 1, v{TT+5}")
E(f"s_lshl_b32 s{sT1}, s{sWV}, 4")
E(f"s_add_u32 s{sT0}, s{sS1}, s{sT1}")
E(f"buffer_load_ushort v{vB1}, v{TT+5}, s[{R_C}:{R_C+3}], s{sT0} offen")
E(f"v_lshrrev_b32 v{TT+5}, 1, v{TT+2}")
E(f"v_lshl_add_u32 v{TT+5}, v{TT+1}, 1, v{TT+5}")
E(f"v_xor_b32 v{TT+5}, s{sWV}, v{TT+5}")
E(f"v_lshl_add_u32 v{aTA}, v3, 7, v{TT+2}")
E(f"v_lshlrev_b32 v{aTA}, 7, v{aTA}")
E(f"v_lshl_add_u32 v{aTA}, v{TT+3}, 3, v{aTA}")
E(f"v_lshl_add_u32 v{aTA}, v{TT+5}, 5, v{aTA}")
E(f"v_bfe_u32 v{TT+5}, v2, 1, 1")
E(f"v_lshl_add_u32 v{TT+6}, v{TT+5}, 6, v{TT+4}")
E(f"v_lshl_add_u32 v{TT+5}, v{TT+5}, 1, v{TT+1}")
E(f"v_xor_b32 v{TT+5}, s{sWV}, v{TT+5}")
E(f"v_lshlrev_b32 v{aTB}, 6, v{TT+6}")
E(f"v_lshl_add_u32 v{aTB}, v{TT+5}, 4, v{aTB}")
E(f"v_and_b32 v{TT+5}, 1, v2")
E(f"v_lshl_add_u32 v{aTB}, v{TT+5}, 3, v{aTB}")
E(f"v_add_u32 v{aTB}, {WB_LDS}, v{aTB}")
E(f"s_lshl_b32 s{sT1}, s{sWV}, 7")
E(f"v_lshlrev_b32 v{aST}, 5, v3")
E(f"v_add_u32 v{aST}, s{sT1}, v{aST}")
E(f"v_lshlrev_b32 v{aOS}, 4, v2")
E(f"v_lshl_add_u32 v{aOS}, v{TT+1}, 3, v{aOS}")
E(f"v_lshl_add_u32 v{aOS}, v{TT}, 2, v{aOS}")
E(f"s_lshl_b32 s{sT1}, s{sWV}, 8")
E(f"s_add_u32 s{sT1}, s{sT1}, {OS_LDS}")
E(f"v_add_u32 v{aOS}, s{sT1}, v{aOS}")
E(f"v_add_u32 v{aIN}, {OS_LDS}, v{vL16}")
E(f"v_lshlrev_b32 v{TT+5}, 4, v{TT+5}")
E(f"v_mov_b32 v{TT+6}, 0xffff")
E(f"v_lshlrev_b32 v{TT+6}, v{TT+5}, v{TT+6}")
E(f"v_bfe_u32 v{TT+7}, v2, 1, 2")
for d in range(4):
    E(f"v_cmp_eq_u32 vcc, {d}, v{TT+7}")
    E("s_nop 1")
    E(f"v_cndmask_b32 v{MK+d}, 0, v{TT+6}, vcc")
E(f"v_lshrrev_b32 v{vFLG}, 3, v2")
E(f"v_cmp_eq_u32 vcc, v{vFLG}, v{TT}")
E(f"v_cvt_f32_u32 v{vFLG}, v{vFLG}")
E("s_nop 0")
E(f"v_cndmask_b32 v{vVAL}, 0, -1, vcc")
E(f"s_lshl_b32 s{sT1}, s{sWV}, 12")
E(f"s_add_u32 s{sPoff}, s{sPoff}, s{sT1}")
E(f"s_lshl_b32 s{sT1}, s{sPJ}, 4")
E(f"s_add_u32 s{sPub}, s{sLOC}, s{sT1}")
E(f"s_add_u32 s{sPubG}, s{sPubG}, {W_Y}")
E(f"s_mov_b32 s{sYoff}, {W_Y}")
E(f"s_mov_b32 s{sC2}, 0")
E("s_waitcnt vmcnt(0)")
unpack_resid(XB)
E(f"v_lshlrev_b32 v{vB1}, 16, v{vB1}")
stamp(1)
if W1L == 3 and LATE0 < 2: E("s_barrier")
E("s_barrier")
stamp(2)
ampx("xw", 0)
for s in range(16):
    for e in range(2):
        E(f"ds_read_b64_tr_b16 {vr(WA+4*s+2*e,2)}, v{aTA} offset:{1024*s+512*e}")
def w1_frags():
    for s in range(8):
        for e in range(2):
            E(f"ds_read_b64_tr_b16 {vr(WB+4*s+2*e,2)}, v{aTB} offset:{16384*e+512*s}")
def w1_sums():
    for s in range(8):
        c = "0" if s == 0 else vr(ACC,4)
        E(f"v_mfma_f32_16x16x32_bf16 {vr(ACC,4)}, {vr(ONESB,4)}, {vr(WB+4*s,4)}, {c}")
    E("s_nop 7")
    E(f"v_add_f32_dpp v{vCS}, v{ACC}, v{ACC} row_ror:8 row_mask:0xf bank_mask:0xf")
if W1L != 2: w1_frags()
read_mode("0xff", 28)
if W1L != 2: w1_sums()
L("L_D2_loop")
mark("d2")
def p_loads():
    for i in range(4):
        E(f"buffer_load_dwordx4 {vr(GB+4*i,4)}, v{vL16}, {WSR}, s{sPoff} offen offset:{1024*i} sc1")
arm(vST, 8)
p_loads()
if TP & 2:
    E(f"s_cmp_eq_u32 s{sLAY}, 0")
    E("s_cbranch_scc1 L_D2_near")
    gather1("gx2s", CA, vL16, sLOC, W_X2, TT, pd=1, slp=PSL)
    L("L_D2_near")
L("L_gs_poll")
E(f"buffer_load_dwordx4 {vr(vST,4)}, v{aST}, {WSR}, s{sLOC} offen offset:{W_ST} sc1")
E(f"buffer_load_dwordx4 {vr(vST+4,4)}, v{aST}, {WSR}, s{sLOC} offen offset:{W_ST+16} sc1")
E(f"s_waitcnt vmcnt({2*(PD-1)})")
E(f"v_max3_u32 v{TT}, v{vST}, v{vST+1}, v{vST+2}")
E(f"v_max3_u32 v{TT+1}, v{vST+3}, v{vST+4}, v{vST+5}")
E(f"v_max3_u32 v{TT}, v{TT}, v{vST+6}, v{vST+7}")
E(f"v_max_u32 v{TT}, v{TT}, v{TT+1}")
E(f"v_cmp_eq_u32 vcc, -1, v{TT}")
E("s_cbranch_vccz L_gs_ok")
if SLP: E(f"s_sleep {SLP}")
spin_check("L_gs_poll")
L("L_gs_ok")
p_loads()
stamp(3, True)
vM, vU, vLs = TT, TT+1, TT+2
WT = TT + 3
AW = GB + 16
E(f"v_max3_f32 v{vM}, v{vST}, v{vST+2}, v{vST+4}")
E(f"v_max_f32 v{vM}, v{vM}, v{vST+6}")
for sw in ("16", "32"):
    E(f"v_mov_b32 v{vU}, v{vM}")
    E("s_nop 1")
    E(f"v_permlane{sw}_swap_b32 v{vM}, v{vU}")
    E(f"v_max_f32 v{vM}, v{vM}, v{vU}")
for t in range(4): E(f"v_sub_f32 v{WT+t}, v{vST+2*t}, v{vM}")
for t in range(4): E(f"v_exp_f32 v{WT+t}, v{WT+t}")
E("s_nop 0")
E(f"v_mul_f32 v{vLs}, v{WT}, v{vST+1}")
for t in range(1, 4): E(f"v_fmac_f32 v{vLs}, v{WT+t}, v{vST+2*t+1}")
for sw in ("16", "32"):
    E(f"v_mov_b32 v{vU}, v{vLs}")
    E("s_nop 1")
    E(f"v_permlane{sw}_swap_b32 v{vLs}, v{vU}")
    E(f"v_add_f32 v{vLs}, v{vLs}, v{vU}")
E(f"v_rcp_f32 v{vLs}, v{vLs}")
p_loads()
for t in range(4): E(f"v_mul_f32 v{WT+t}, v{WT+t}, v{vLs}")
for t in range(4): E(f"v_cvt_pk_bf16_f32 v{WT+4+t}, v{WT+t}, v{WT+t}")
for t in range(4): E(f"v_and_b32 v{WT+4+t}, 0xffff0000, v{WT+4+t}")
for t in range(4): E(f"v_fma_f32 v{WT+t}, -v{WT+4+t}, v{vFLG}, v{WT+t}")
for t in range(4): E(f"v_cvt_pk_bf16_f32 v{WT+t}, v{WT+t}, v{WT+t}")
for t in range(4):
    for d in range(4): E(f"v_and_b32 v{AW+4*t+d}, v{MK+d}, v{WT+t}")
E("s_branch L_gp_use")
L("L_gp_nan")
E(f"s_sub_u32 s{sSPIN}, s{sSPIN}, 1")
E("s_cbranch_scc1 L_exit")
E(f"s_and_b32 s{sT1}, s{sSPIN}, 15")
E("s_cbranch_scc0 L_gp_retry")
L("L_gp_again")
p_loads()
L("L_gp_use")
E("s_waitcnt vmcnt(4)")
for t in range(4):
    E(f"v_mfma_f32_16x16x32_bf16 {vr(CA,4)}, {vr(AW+4*t,4)}, {vr(GB+4*t,4)}, {'0' if t == 0 else vr(CA,4)}")
E("s_nop 7")
E(f"v_cmp_u_f32 vcc, v{CA}, v{CA}")
E(f"v_permlane32_swap_b32 v{CA}, v{CA+2}")
E(f"v_permlane32_swap_b32 v{CA+1}, v{CA+3}")
E("s_cbranch_vccnz L_gp_nan")
L("L_gp_ok")
E(f"v_add_f32 v{CA}, v{CA}, v{CA+2}")
E(f"v_add_f32 v{CA+1}, v{CA+1}, v{CA+3}")
E(f"v_cvt_pk_bf16_f32 v{CA}, v{CA}, v{CA+1}")
E(f"ds_write_b32 v{aOS}, v{CA}")
E(f"v_mov_b32 v{vT}, 0")
stamp(4, True)
mark("d2")
E("s_waitcnt lgkmcnt(0)")
E("s_barrier")
E(f"ds_read_b128 {vr(XB,4)}, v{aIN}")
E(f"buffer_load_dwordx4 {vr(CA,4)}, v{vL16}, {WSR}, s{sLOC} offen offset:{W_X2} sc1")
E("s_waitcnt lgkmcnt(0)")
matvec(16, XB, WA, [], per=PN)
y_publish()
stamp(5, True)
ampx("xy", 0)
if W1L == 2:
    E(f"s_cmp_lg_u32 s{sLAY}, 0")
    E("s_cbranch_scc1 L_D2_havew1")
    w1_frags()
    E("s_waitcnt lgkmcnt(0)")
    w1_sums()
    L("L_D2_havew1")
def pre_y():
    E(f"s_cmp_eq_u32 s{sLAY}, 0")
    E("s_cbranch_scc1 L_D2_havex")
    E("s_waitcnt vmcnt(1)")
    chk_bf16(CA, TT)
    E("s_cbranch_vccz L_gx2_have")
    gather1("gx2", CA, vL16, sLOC, W_X2, TT, pd=1, slp=0)
    L("L_gx2_have")
    unpack_resid(CA)
    L("L_D2_havex")
relay_X("gy", sYoff, pre_y)
stamp(6, True)
ampx("xz", 0)
E(f"s_cmp_eq_u32 s{sC}, 7")
E("s_cbranch_scc1 L_D2_x1")
matvec(8, XB, WB, stats_fillers(), rows=[(0x5, 0xf, [0,1,2,3]), (0xa, 0xf, [4,5,6,7])], per=PER+2)
mark("d2")
xgroup_sum(True)
h, u, a, b = vT, TT+5, TT+6, TT+7
E(f"v_add_f32 v{h}, v{h}, v{vB1}")
E(f"v_mul_f32 v{u}, s{sC3}, |v{h}|")
E(f"v_exp_f32 v{u}, v{u}")
E(f"v_cmp_le_f32 vcc, 0, v{h}")
E(f"v_add_f32 v{b}, 2.0, v{u}")
E(f"v_fma_f32 v{a}, v{u}, 2.0, 1.0")
E(f"v_mul_f32 v{b}, v{u}, v{b}")
E(f"v_mul_f32 v{u}, v{u}, v{u}")
E(f"v_cndmask_b32 v{a}, v{b}, v{a}, vcc")
E(f"v_cndmask_b32 v{u}, 1.0, v{u}, vcc")
E(f"v_fma_f32 v{b}, v{u}, 2.0, v{a}")
E(f"v_rcp_f32 v{b}, v{b}")
E(f"v_mul_f32 v{h}, v{h}, v{a}")
E(f"v_mul_f32 v{h}, v{h}, v{b}")
E(f"v_cvt_pk_bf16_f32 v{h}, v{h}, v{h}")
E(f"v_min_u32 v{h}, -2, v{h}")
pub2("buffer_store_short", f"v{h}", aP16, sPub, sMA_f, sMA_s, W_ACT)
stamp(7, True)
L("L_D2_next")
for s_ in (sLOC, sPoff, sPub, sPubG, sYoff):
    E(f"s_add_u32 s{s_}, s{s_}, {LS}")
E(f"s_add_u32 s{sLAY}, s{sLAY}, 1")
E(f"s_cmp_lt_u32 s{sLAY}, 2")
E("s_cbranch_scc1 L_D2_loop")
stamp_flush(0, 0)
E("s_endpgm")
L("L_D2_x1")
pub_resid(W_X1)
unpack_resid(XB)
E("s_branch L_D2_next")
sec("cold")
L("L_exit")
E("s_endpgm")
L("L_gp_retry")
for i in range(0, 16, 2): E(f"v_pk_max_u16 v{ACC+i//2}, v{GB+i}, v{GB+i+1}")
for i in range(0, 8, 2): E(f"v_pk_max_u16 v{ACC+i//2}, v{ACC+i}, v{ACC+i+1}")
chk_bf16(ACC, TT)
E("s_cbranch_vccnz L_gp_again")
for t in range(4):
    E(f"v_mfma_f32_16x16x32_bf16 {vr(CA,4)}, {vr(AW+4*t,4)}, {vr(GB+4*t,4)}, {'0' if t == 0 else vr(CA,4)}")
E("s_nop 9")
E(f"v_permlane32_swap_b32 v{CA}, v{CA+2}")
E(f"v_permlane32_swap_b32 v{CA+1}, v{CA+3}")
E("s_branch L_gp_ok")
for b_ in retry_blocks: b_()
L("L_code_end")

DOC = """;
;   is written through (separate regions), so the result does not depend on placement.
"""
out = [open("cdna_kernels/" + NAME + ".s.ref").read().split("; Override")[0].rstrip("\n"),
       f"; @launch grid=(256,1,1) block=(512,1,1) lds={LDS_BYTES}", DOC.rstrip("\n"), '.amdgcn_target "amdgcn-amd-amdhsa--gfx950"', ".text",
       f".globl {NAME}_kernel", ".p2align 8", f".type {NAME}_kernel,@function"]
for k in ORDER:
    for x in secs[k]:
        if isinstance(x, tuple) and x[0] == "MARK":
            _, role, i = x
            n = wstep[role]
            out.append("    s_cbranch_execz " + (marks[role][i + n] if i + n < len(marks[role]) else f"L_wd_{role}{i % n}"))
        elif isinstance(x, tuple):
            _, role, first, step = x
            assert first < len(marks[role])
            out += ["    s_mov_b64 exec, 0", f"    s_branch {marks[role][first]}", f"L_wd_{role}{first}:", "    s_mov_b64 exec, -1"]
        else: out.append(x)
out.append('.section .rodata,"a"')
out.append(".p2align 6")
out.append(f".amdhsa_kernel {NAME}_kernel")
out.append("  .amdhsa_next_free_vgpr 256")
out.append("  .amdhsa_next_free_sgpr 96")
out.append("  .amdhsa_accum_offset 256")
out.append("  .amdhsa_group_segment_fixed_size 0")
out.append("  .amdhsa_kernarg_size 96")
out.append("  .amdhsa_user_sgpr_count 2")
out.append("  .amdhsa_user_sgpr_kernarg_segment_ptr 1")
out.append("  .amdhsa_system_sgpr_workgroup_id_x 1")
out.append("  .amdhsa_float_denorm_mode_32 3")
out.append(".end_amdhsa_kernel")
open(sys.argv[1], "w").write("\n".join(out) + "\n")
```
